```python
import torch

def _softmax(x, axis=-1):
    return torch.softmax(x, dim=axis)

def _gelu(x):
    return torch.nn.functional.gelu(x, approximate='tanh')

def _silu(x):
    return torch.nn.functional.silu(x)

def _sigmoid(x):
    return torch.sigmoid(x)

def _layernorm(x, axis=-1, eps=1e-05):
    m = x.mean(dim=axis, keepdim=True)
    v = x.var(dim=axis, keepdim=True, unbiased=False)
    return (x - m) / torch.sqrt(v + eps)

def _scatter_add(tgt, idx, src, axis=0):
    return tgt.clone().index_add_(axis, idx, src)

def _segment_sum(src, seg, n):
    out = torch.zeros((n,) + src.shape[1:], dtype=src.dtype)
    return out.index_add_(0, seg, src)

def _pad(x, pw):
    flat = tuple((v for pair in reversed(pw) for v in pair))
    return torch.nn.functional.pad(x, flat)
kernel_name = 'standalone__conformer_family_branchformer__speech'

def setup_inputs():

    _w = lambda a: (lambda t: t.to(torch.bfloat16) if t.is_floating_point() else t)(torch.as_tensor(a))
    B, T, D, K = (2, 4000, 512, 5)
    s = float(D) ** (-0.5)
    return {'x': _w((lambda *s: torch.randn(*s, dtype=torch.bfloat16) * 0.05)(B, T, D)), 'w_q': _w((lambda *s: torch.randn(*s, dtype=torch.bfloat16) * 1.6)(D, D) * s), 'w_k': _w((lambda *s: torch.randn(*s, dtype=torch.bfloat16) * 1.6)(D, D) * s), 'w_v': _w((lambda *s: torch.randn(*s, dtype=torch.bfloat16) * 0.4)(D, D) * s), 'w_ao': _w((lambda *s: torch.randn(*s, dtype=torch.bfloat16) * 0.4)(D, D) * s), 'w_up': _w((lambda *s: torch.randn(*s, dtype=torch.bfloat16) * 0.8)(D, 2 * D) * s), 'dw': _w((lambda *s: torch.randn(*s, dtype=torch.bfloat16) * 0.8)(K, D) * (1.0 / K)), 'w_dn': _w((lambda *s: torch.randn(*s, dtype=torch.bfloat16) * 0.4)(D, D) * s), 'w_merge': _w((lambda *s: torch.randn(*s, dtype=torch.bfloat16) * 0.4)(2 * D, D) * s)}

def reference(x, w_q, w_k, w_v, w_ao, w_up, dw, w_dn, w_merge):
    B, T, D = x.shape
    K = dw.shape[0]
    xa = _layernorm(x, axis=-1)
    q = torch.einsum('btd,de->bte', xa, w_q)
    k = torch.einsum('btd,de->bte', xa, w_k)
    v = torch.einsum('btd,de->bte', xa, w_v)
    logits = torch.einsum('btd,bsd->bts', q, k) * float(D) ** (-0.5)
    attn = _softmax(logits, axis=-1)
    ya = torch.einsum('bts,bsd->btd', attn, v)
    ya = torch.einsum('btd,de->bte', ya, w_ao)
    xc = _layernorm(x, axis=-1)
    h = _gelu(torch.einsum('btd,de->bte', xc, w_up))
    u = h[..., :D].clone()
    g = _layernorm(h[..., D:], axis=-1)
    pad = K // 2
    gp = _pad(g, ((0, 0), (pad, pad), (0, 0)))
    conv = torch.zeros_like(g)
    for i in range(K):
        conv = conv + gp[:, i:i + T, :] * dw[i][None, None, :]
    yc = torch.einsum('btd,de->bte', u * conv, w_dn)
    merged = torch.concatenate([ya, yc], axis=-1)
    out = torch.einsum('btf,fd->btd', merged, w_merge)
    return x + out
```

```python
class Asm:
    def __init__(self):
        self.lines = []
        self._uid = 0

    def __call__(self, s=""):
        for ln in s.split("\n"):
            self.lines.append(ln)

    def e(self, s):
        self.lines.append("    " + s)

    def label(self, name):
        self.lines.append(name + ":")

    def uid(self, base="L"):
        self._uid += 1
        return f"{base}_{self._uid}"

    def text(self):
        return "\n".join(self.lines) + "\n"


def vr(b, n=1):
    return f"v{b}" if n == 1 else f"v[{b}:{b+n-1}]"


def ar(b, n=1):
    return f"a{b}" if n == 1 else f"a[{b}:{b+n-1}]"


def sr(b, n=1):
    return f"s{b}" if n == 1 else f"s[{b}:{b+n-1}]"


def kernel_begin(a, name):
    a(".text")
    a(f".globl {name}")
    a(".p2align 8")
    a(f".type {name},@function")
    a(f"{name}:")


def kernel_desc(a, name, vgpr, accum, sgpr=102):
    a('.section .rodata,"a"')
    a(".p2align 6")
    a(f".amdhsa_kernel {name}")
    a(f"  .amdhsa_next_free_vgpr {vgpr}")
    a(f"  .amdhsa_next_free_sgpr {sgpr}")
    a(f"  .amdhsa_accum_offset {accum}")
    a("  .amdhsa_group_segment_fixed_size 0")
    a("  .amdhsa_kernarg_size 96")
    a("  .amdhsa_user_sgpr_count 2")
    a("  .amdhsa_user_sgpr_kernarg_segment_ptr 1")
    a("  .amdhsa_system_sgpr_workgroup_id_x 1")
    a("  .amdhsa_float_denorm_mode_32 3")
    a(".end_amdhsa_kernel")


def make_srd(a, d, base, nbytes):
    a.e(f"s_mov_b32 s{d}, s{base}")
    a.e(f"s_and_b32 s{d+1}, s{base+1}, 0xffff")
    a.e(f"s_mov_b32 s{d+2}, {nbytes}")
    a.e(f"s_mov_b32 s{d+3}, 0x00020000")


def emit_stamps(a, n, wave="s16", lane="v2", ws=4, off=0x8000000, nw=4):
    for k in range(n):
        a.e(f"v_mov_b32 v{8+2*k}, s{60+4*k}")
        a.e(f"v_mov_b32 v{9+2*k}, s{62+4*k}")
    make_srd(a, 92, ws, 0x10000000)
    a.e(f"s_mul_i32 s3, s2, {nw}")
    a.e(f"s_add_u32 s3, s3, {wave}")
    a.e("s_lshl_b32 s3, s3, 6")
    a.e(f"s_add_u32 s3, s3, {off}")
    a.e("v_mov_b32 v7, 0")
    a.e(f"v_cmp_eq_u32 vcc, 0, {lane}")
    a.e("s_and_saveexec_b64 s[96:97], vcc")
    for k in range(n):
        a.e(f"buffer_store_dwordx2 v[{8+2*k}:{9+2*k}], v7, s[92:95], s3 offen offset:{8*k}")


def srd_off(a, d, base, off, nbytes, tmp=None):
    a.e(f"s_add_u32 s{d}, s{base}, {off}")
    a.e(f"s_addc_u32 s{d+1}, s{base+1}, 0")
    a.e(f"s_and_b32 s{d+1}, s{d+1}, 0xffff")
    a.e(f"s_mov_b32 s{d+2}, {nbytes}")
    a.e(f"s_mov_b32 s{d+3}, 0x00020000")


def f2u(x):
    import struct
    return "0x%08x" % struct.unpack("<I", struct.pack("<f", x))[0]


class Stamper:
    def __init__(self, a, on):
        self.a, self.on, self.n = a, on, 0

    def __call__(self, k):
        if self.on:
            a = self.a
            a.e(f"s_memtime s[{60+4*k}:{61+4*k}]")
            a.e(f"s_memrealtime s[{62+4*k}:{63+4*k}]")
            a.e("s_waitcnt lgkmcnt(0)")
```

```python
import sys
sys.path.insert(0, "gen")
from asmlib import *
from layout import *

LDS_P = 131072
LDS_MX = LDS_P + 8192
LDS_ATT = LDS_MX + 1024

def emit_interval(a, mfmas, fill):
    for i, m in enumerate(mfmas):
        if m is not None:
            a.e(m)
        for f in fill.get(i, []):
            a.e(f)

def gen_attn(a, name, nQ=0, nP=16, stamp=False, opt=None):
    opt = opt or {}
    assert 2 * (nQ + nP) == 32 and nQ % 4 == 0 and nP % 4 == 0
    L = lambda s: f"{name}_{s}"
    kernel_begin(a, name)
    a.e("s_cmp_ge_u32 s2, 256")
    a.e(f"s_cbranch_scc1 {L('end')}")
    a.e("s_load_dwordx2 s[4:5], s[0:1], 88")
    a.e("s_and_b32 s20, s2, 3")
    a.e("s_lshr_b32 s21, s20, 1")
    a.e("s_and_b32 s22, s20, 1")
    a.e("s_lshr_b32 s23, s2, 2")
    a.e("s_cmp_ge_u32 s23, 63")
    a.e(f"s_cbranch_scc1 {L('end')}")
    a.e("v_lshrrev_b32 v1, 6, v0")
    a.e("v_and_b32 v2, 63, v0")
    a.e("v_readfirstlane_b32 s16, v1")
    a.e("v_lshlrev_b32 v3, 4, v2")
    a.e("s_mul_i32 s24, s21, 4096000")
    a.e("s_mul_i32 s25, s22, 2064384")
    a.e("s_sub_u32 s17, 63, s22")
    a.e("s_lshl_b32 s26, s17, 15")
    a.e("s_lshl_b32 s27, s23, 16")
    a.e("s_waitcnt lgkmcnt(0)")
    def st(k):
        if stamp:
            a.e(f"s_memtime s[{60+4*k}:{61+4*k}]")
            a.e(f"s_memrealtime s[{62+4*k}:{63+4*k}]")
            a.e("s_waitcnt lgkmcnt(0)")
    st(0)
    a.e("s_add_u32 s28, s24, s25")
    a.e(f"s_add_u32 s8, s4, s28")
    a.e("s_addc_u32 s9, s5, 0")
    a.e("s_and_b32 s9, s9, 0xffff")
    a.e("s_mov_b32 s10, s26")
    a.e("s_mov_b32 s11, 0x00020000")
    a.e("s_cmp_ge_u32 s16, 2")
    a.e(f"s_cbranch_scc1 {L('pv')}")

    def dma_group(first, n=4):
        return [f"s_and_b32 m0, s18, 0x1ffff"], [f"buffer_load_dwordx4 v3, s[8:11], s18 offen offset:{1024*j} lds" for j in range(n)]

    def place_dma(fill, ngroups, gaps):
        k = 0
        for g in range(ngroups):
            pre, ld = dma_group(g)
            fill.setdefault(gaps[k] - 1, []).extend(pre)
            for j in range(4):
                fill.setdefault(gaps[k], []).append(ld[j]); k += 1
            step = 4096 if g < ngroups - 1 else 32768 - 4096 * (ngroups - 1)
            fill.setdefault(gaps[k - 1] + 1, []).append(f"s_add_u32 s18, s18, {step}")

    KB = [32, 96]
    S = 160
    NEGM = 176
    E = 192
    PK = 200
    LS = 204
    VK = 208
    VPW = 209
    TMP = 210
    a.e(f"s_add_u32 s12, s4, {WS_QP}")
    a.e("s_addc_u32 s13, s5, 0")
    a.e("s_add_u32 s12, s12, s24")
    a.e("s_addc_u32 s13, s13, 0")
    a.e("s_and_b32 s13, s13, 0xffff")
    a.e("s_mov_b32 s14, 4096000")
    a.e("s_mov_b32 s15, 0x00020000")
    for qb in range(4):
        for s4 in range(4):
            a.e(f"s_add_u32 s29, s27, {qb*16384 + s4*4096}")
            for j in range(4):
                r = 64 * qb + 16 * s4 + 4 * j
                a.e(f"buffer_load_dwordx4 a[{r}:{r+3}], v3, s[12:15], s29 offen offset:{1024*j}")
    a.e("v_and_b32 v4, 15, v2")
    a.e("v_lshrrev_b32 v5, 4, v2")
    a.e("v_and_b32 v6, 0x27, v2")
    a.e("v_and_b32 v7, 8, v2")
    a.e("v_lshl_add_u32 v6, v7, 1, v6")
    a.e("v_and_b32 v7, 16, v2")
    a.e("v_lshrrev_b32 v7, 1, v7")
    a.e("v_add_lshl_u32 v6, v6, v7, 4")
    a.e("s_lshl_b32 s29, s16, 14")
    a.e(f"v_add_u32 v{VK}, s29, v6")
    a.e("s_lshl_b32 s29, s16, 11")
    a.e(f"s_add_u32 s29, s29, {LDS_P}")
    a.e(f"v_lshl_add_u32 v{VPW}, v2, 3, s29")
    for i in range(4):
        a.e(f"v_mov_b32 v{LS+i}, 0")
    a.e(f"s_mul_i32 s18, s16, {nQ*1024}")
    a.e(f"s_add_u32 s18, s18, {3*32768 + 2*nP*1024}")
    a.e("s_barrier")
    st(1)
    def kread(par, s, imm):
        r = KB[par] + 4 * s
        return f"ds_read_b128 v[{r}:{r+3}], v{VK} offset:{imm + 1024*s}"
    def chain(par, qb, c0):
        out = []
        for s in range(16):
            k = KB[par] + 4 * s; q = 64 * qb + 4 * s; d = S + 4 * qb
            c = c0 if s == 0 else f"v[{d}:{d+3}]"
            out.append(f"{M16} v[{d}:{d+3}], v[{k}:{k+3}], a[{q}:{q+3}], {c}")
        return out
    for s in range(16):
        a.e(kread(0, s, 0))
        if s == 11: a.e("s_waitcnt lgkmcnt(4)")
    a.e("s_waitcnt lgkmcnt(0)")
    for qb in range(4):
        a.e(f"s_waitcnt vmcnt({48 - 16*qb})")
        for m in chain(0, qb, "0"):
            a.e(m)
    a.e("s_nop 7")
    for qb in range(4):
        d = S + 4 * qb
        a.e(f"v_max3_f32 v{E+qb}, v{d}, v{d+1}, v{d+2}")
        a.e(f"v_max_f32 v{E+qb}, v{E+qb}, v{d+3}")
    for sw in ("v_permlane16_swap_b32", "v_permlane32_swap_b32"):
        for qb in range(4):
            a.e(f"v_mov_b32 v{E+4+qb}, v{E+qb}")
        a.e("s_nop 1")
        for qb in range(4):
            a.e(f"{sw} v{E+qb}, v{E+4+qb}")
        a.e("s_nop 1")
        for qb in range(4):
            a.e(f"v_max_f32 v{E+qb}, v{E+qb}, v{E+4+qb}")
    a.e("s_lshl_b32 s29, s16, 8")
    a.e(f"s_add_u32 s29, s29, {LDS_MX}")
    a.e(f"v_lshl_add_u32 v{TMP}, v4, 4, s29")
    a.e(f"ds_write_b128 v{TMP}, v[{E}:{E+3}]")
    a.e(f"v_xor_b32 v{TMP}, 256, v{TMP}")
    a.e("s_waitcnt lgkmcnt(0)")
    a.e("s_barrier")
    a.e(f"ds_read_b128 v[{E+4}:{E+7}], v{TMP}")
    for s in range(8):
        a.e(kread(1, s, 32768))
    a.e("s_waitcnt lgkmcnt(8)")
    for qb in range(4):
        a.e(f"v_max_f32 v{E+qb}, v{E+qb}, v{E+4+qb}")
    for qb in range(4):
        for j in range(4):
            a.e(f"v_sub_f32 v{NEGM+4*qb+j}, 0, v{E+qb}")
    for s in range(8, 16):
        a.e(kread(1, s, 32768))
    for qb in range(4):
        for j in range(4):
            a.e(f"v_add_f32 v{S+4*qb+j}, v{S+4*qb+j}, v{NEGM+4*qb}")
    def softmax_ops(qb, par):
        e = E + 4 * (qb % 2); p = PK + 2 * (qb % 2); d = S + 4 * qb
        ex = [f"v_exp_f32 v{e+j}, v{d+j}" for j in range(4)]
        ad = [f"v_add_f32 v{LS+qb}, v{LS+qb}, v{e+j}" for j in range(4)]
        cv = [f"v_cvt_pk_bf16_f32 v{p+j}, v{e+2*j}, v{e+2*j+1}" for j in range(2)]
        wr = f"ds_write_b64 v{VPW}, v[{p}:{p+1}] offset:{par*4096 + qb*512}"
        return ex, ad, cv, wr
    if nQ:
        for g in range(nQ // 4):
            pre, ld = dma_group(g)
            a.e(pre[0]); a.e("s_nop 0")
            for x in ld: a.e(x)
            a.e(f"s_add_u32 s18, s18, {4096 if g < nQ//4 - 1 else 32768 - 4096*(nQ//4 - 1)}")
    ex, ad, cv, wr = softmax_ops(0, 0)
    for x in ex + ["s_nop 0"] + cv + ad + [wr]: a.e(x)
    a.e("s_waitcnt lgkmcnt(1)")
    fill = {}
    ops = []
    for qb in range(1, 4):
        ex, ad, cv, wr = softmax_ops(qb, 0)
        ops += ex + [ad[0]] + cv + ad[1:] + [wr]
    for i, x in enumerate(ops):
        fill.setdefault(i * 15 // len(ops), []).append(x)
    emit_interval(a, chain(1, 0, f"v[{NEGM}:{NEGM+3}]"), fill)
    a.e(f"s_waitcnt vmcnt({nQ}) lgkmcnt(0)")
    a.e("s_sub_u32 s17, s17, 1")
    a.e("s_barrier")

    def qk_interval(par):
        mf = []
        for c in range(4):
            qb = (c + 1) % 4
            mf += chain(par if c < 3 else par ^ 1, qb, f"v[{NEGM+4*qb}:{NEGM+4*qb+3}]")
        fill = {}
        if par == 1:
            fill.setdefault(0, []).append(f"v_xor_b32 v{VK}, 0x10000, v{VK}")
        imm = 32768 * (par ^ 1)
        rgaps = [1, 2, 3, 12, 13, 14, 16, 17, 18, 28, 29, 30, 32, 33, 34, 35]
        for s in range(16):
            fill.setdefault(rgaps[s], []).append(kread(par ^ 1, s, imm))
        for c in range(4):
            b = 16 * c
            ex, ad, cv, wr = softmax_ops(c, par)
            if c == 3:
                fill.setdefault(b + 0, []).append("s_sub_u32 s17, s17, 1")
                fill.setdefault(b + 1, []).append("s_nop 0")
                fill.setdefault(b + 2, []).append("s_nop 0")
            for j in range(4):
                fill.setdefault(b + 4 + j, []).append(ex[j])
            fill.setdefault(b + 8, []).extend(cv)
            fill.setdefault(b + 9, []).extend([wr])
            fill.setdefault(b + 10, []).extend(ad[:2])
            fill.setdefault(b + 11, []).extend(ad[2:])
        fill.setdefault(47, []).append("s_waitcnt lgkmcnt(1)")
        if nQ == 4:
            place_dma(fill, 1, [15, 19, 31, 44])
        elif nQ == 8:
            place_dma(fill, 2, [15, 19, 31, 44, 46, 49, 51, 60])
        fill.setdefault(62, []).append("s_cmp_eq_u32 s17, 0")
        fill.setdefault(63, []).extend([f"s_waitcnt vmcnt({nQ}) lgkmcnt(0)", "s_barrier"])
        emit_interval(a, mf, fill)

    st(2)
    a(".p2align 6")
    a.label(L("qk_loop"))
    qk_interval(1)
    a.e(f"s_cbranch_scc1 {L('qk_done')}")
    qk_interval(0)
    a.e(f"s_cbranch_scc0 {L('qk_loop')}")
    a.label(L("qk_done"))
    st(3)
    for sw in ("v_permlane16_swap_b32", "v_permlane32_swap_b32"):
        for qb in range(4):
            a.e(f"v_mov_b32 v{E+qb}, v{LS+qb}")
        a.e("s_nop 1")
        for qb in range(4):
            a.e(f"{sw} v{LS+qb}, v{E+qb}")
        a.e("s_nop 1")
        for qb in range(4):
            a.e(f"v_add_f32 v{LS+qb}, v{LS+qb}, v{E+qb}")
    a.e(f"v_mov_b32 v{E}, v{NEGM}")
    a.e(f"v_mov_b32 v{E+1}, v{LS}")
    for qb in range(1, 4):
        a.e(f"v_cmp_eq_u32 vcc, {qb}, v5")
        a.e("s_nop 1")
        a.e(f"v_cndmask_b32 v{E}, v{E}, v{NEGM+4*qb}, vcc")
        a.e(f"v_cndmask_b32 v{E+1}, v{E+1}, v{LS+qb}, vcc")
    a.e("s_lshl_b32 s29, s22, 1")
    a.e("s_add_u32 s29, s29, s16")
    a.e("s_lshl_b32 s29, s29, 16")
    a.e("s_mul_i32 s30, s21, 32000")
    a.e("s_add_u32 s29, s29, s30")
    a.e(f"s_add_u32 s29, s29, {WS_ML}")
    a.e("s_add_u32 s12, s4, s29")
    a.e("s_addc_u32 s13, s5, 0")
    a.e("s_and_b32 s13, s13, 0xffff")
    a.e("s_mov_b32 s14, 32000")
    a.e("s_lshl_b32 s29, s23, 9")
    a.e(f"v_lshlrev_b32 v{TMP}, 3, v2")
    a.e(f"buffer_store_dwordx2 v[{E}:{E+1}], v{TMP}, s[12:15], s29 offen")
    a.e("s_barrier")
    a.e(f"s_branch {L('fin')}")

    VB = [32, 96]
    PR = [160, 176]
    VV = 208
    VPR = 210
    a.label(L("pv"))
    a.e("s_sub_u32 s19, s16, 2")
    a.e("s_lshl_b32 s18, s19, 14")
    for t in range(3):
        for g in range(4):
            pre, ld = dma_group(g)
            a.e(pre[0]); a.e("s_nop 0")
            for x in ld: a.e(x)
            a.e(f"s_add_u32 s18, s18, {4096 if g < 3 else 32768 - 3*4096}")
    a.e(f"s_mul_i32 s18, s19, {nP*1024}")
    a.e(f"s_add_u32 s18, s18, {3*32768}")
    for i in range(256):
        a.e(f"v_accvgpr_write_b32 a{i}, 0")
    for i in range(8):
        a.e(f"v_mov_b32 v{VB[1]+56+i}, 0")
    for i in range(16):
        a.e(f"v_mov_b32 v{PR[1]+i}, 0")
    a.e("v_lshrrev_b32 v4, 5, v2")
    a.e("v_lshlrev_b32 v4, 8, v4")
    a.e("v_and_b32 v5, 2, v2")
    a.e("v_lshl_add_u32 v4, v5, 6, v4")
    a.e("v_and_b32 v5, 28, v2")
    a.e("v_lshl_add_u32 v4, v5, 2, v4")
    a.e("v_and_b32 v5, 1, v2")
    a.e("v_lshl_add_u32 v4, v5, 3, v4")
    a.e("s_lshl_b32 s29, s19, 13")
    a.e(f"v_add_u32 v{VV}, s29, v4")
    a.e(f"s_mov_b32 s29, {LDS_P}")
    a.e(f"v_lshl_add_u32 v{VPR}, v2, 3, s29")
    a.e("s_lshl_b32 s29, s22, 23")
    a.e("s_add_u32 s29, s29, s24")
    a.e(f"s_add_u32 s29, s29, {WS_OP}")
    a.e("s_add_u32 s12, s4, s29")
    a.e("s_addc_u32 s13, s5, 0")
    a.e("s_and_b32 s13, s13, 0xffff")
    a.e("s_mov_b32 s14, 4096000")
    a.e("s_mov_b32 s15, 0x00020000")
    a.e("s_waitcnt vmcnt(32)")
    a.e("s_barrier")
    st(1)
    a.e("s_waitcnt vmcnt(16)")
    a.e("s_barrier")
    def vread(par, db, kb):
        r = VB[par] + 4 * db + 2 * kb
        return f"ds_read_b64_tr_b16 v[{r}:{r+1}], v{VV} offset:{32768*par + 16384*kb + 512*db}"
    def pvm(par, db):
        out = []
        for qb in range(4):
            d = 16 * db + 4 * qb; v = VB[par] + 4 * db; p = PR[par] + 4 * qb
            out.append(f"{M16} a[{d}:{d+3}], v[{v}:{v+3}], v[{p}:{p+3}], a[{d}:{d+3}]")
        return out
    for g in range(nP // 4):
        pre, ld = dma_group(g)
        a.e(pre[0]); a.e("s_nop 0")
        for x in ld: a.e(x)
        a.e(f"s_add_u32 s18, s18, {4096 if g < nP//4 - 1 else 32768 - 4096*(nP//4 - 1)}")
    for db in range(16):
        for kb in range(2):
            a.e(vread(0, db, kb))
        if db % 4 == 3: a.e("s_waitcnt lgkmcnt(4)")
    a.e(f"s_waitcnt vmcnt({nP}) lgkmcnt(0)")
    a.e("s_barrier")

    def pv_interval(par):
        mf = pvm(par, 14) + pvm(par, 15)
        for db in range(14):
            mf += pvm(par ^ 1, db)
        fill = {}
        for qb in range(4):
            p = PR[par ^ 1] + 4 * qb
            fill.setdefault(qb // 2, []).append(f"ds_read2st64_b64 v[{p}:{p+3}], v{VPR} offset0:{8*(par^1)+qb} offset1:{8*(par^1)+4+qb}")
        if par == 0:
            fill.setdefault(2, []).append(f"v_xor_b32 v{VV}, 0x10000, v{VV}")
        fill.setdefault(7, []).append("s_waitcnt lgkmcnt(0)")
        rg = [8 + 3 * (i // 2) + (i % 2) for i in range(32)]
        for i in range(32):
            fill.setdefault(rg[i], []).append(vread(par, i // 2, i % 2))
        dg = [10 + 3 * i for i in range(16)]
        if nP == 16: gaps = dg
        elif nP == 12: gaps = [dg[i] for i in range(16) if i % 4 != 3]
        else: gaps = dg[::2]
        place_dma(fill, nP // 4, gaps)
        fill.setdefault(60, []).append("s_sub_u32 s17, s17, 1")
        fill.setdefault(62, []).append("s_cmp_eq_u32 s17, 0")
        fill.setdefault(63, []).extend([f"s_waitcnt vmcnt({nP}) lgkmcnt(0)", "s_barrier"])
        emit_interval(a, mf, fill)

    st(2)
    a(".p2align 6")
    a.label(L("pv_loop"))
    pv_interval(1)
    a.e(f"s_cbranch_scc1 {L('pv_tail0')}")
    pv_interval(0)
    a.e(f"s_cbranch_scc0 {L('pv_loop')}")
    for m in pvm(1, 14) + pvm(1, 15): a.e(m)
    a.e(f"s_branch {L('pv_store')}")
    a.label(L("pv_tail0"))
    for m in pvm(0, 14) + pvm(0, 15): a.e(m)
    a.label(L("pv_store"))
    st(3)
    a.e("s_lshl_b32 s29, s19, 13")
    a.e("s_add_u32 s27, s27, s29")
    k = 0
    for sp in range(8):
        for qb in range(4):
            t = 32 + 12 * (k % 4); k += 1
            for e in range(2):
                for j in range(4):
                    a.e(f"v_accvgpr_read_b32 v{t+4+4*e+j}, a{16*(2*sp+e) + 4*qb + j}")
            for j in range(4):
                a.e(f"v_cvt_pk_bf16_f32 v{t+j}, v{t+4+2*j}, v{t+5+2*j}")
            a.e(f"s_add_u32 s29, s27, {qb*16384 + (sp//4)*4096}")
            a.e(f"buffer_store_dwordx4 v[{t}:{t+3}], v3, s[12:15], s29 offen offset:{1024*(sp%4)}")
    a.label(L("fin"))
    if stamp:
        a.e("s_waitcnt vmcnt(0)")
        st(4)
        emit_stamps(a, 5, nw=8, off=WS_STAMP + 0x200000)
    a.label(L("end"))
    a.e("s_endpgm")
    kernel_desc(a, name, 512, 256)
    return f"; @launch kernel={name} grid=(256,1,1) block=(256,1,1) lds={LDS_ATT}"
```

```python
import sys, math
sys.path.insert(0, "gen")
from asmlib import *
from layout import *

RS = 1056

def fold_wave(a, ldsbase, srdA, rowA, b_mode, srdB, rowB, srdO, scale=None):
    for ee in range(2):
        for r in range(16):
            a.e(f"s_add_u32 m0, {ldsbase}, {(16*ee + r) * RS}")
            a.e(f"s_add_u32 s43, s40, {rowA(ee, r) * 1024}")
            a.e(f"buffer_load_dwordx4 v3, s[{srdA}:{srdA+3}], s43 offen lds")
    if b_mode == "raw":
        for r in range(16):
            a.e(f"s_add_u32 m0, {ldsbase}, {(32 + r) * RS}")
            a.e(f"s_add_u32 s43, s41, {rowB(r) * 1024}")
            a.e(f"buffer_load_dwordx4 v3, s[{srdB}:{srdB+3}], s43 offen lds")
    else:
        for t in range(16):
            if t % 4 == 0:
                a.e(f"s_add_u32 s43, s41, {t * 1024}")
            a.e(f"buffer_load_dwordx4 v[{64+4*t}:{67+4*t}], v3, s[{srdB}:{srdB+3}], s43 offen offset:{1024*(t%4)}")
    a.e("v_and_b32 v4, 15, v2")
    a.e("v_lshrrev_b32 v5, 4, v2")
    a.e(f"v_mul_u32_u24 v4, {RS}, v4")
    a.e("v_lshl_add_u32 v4, v5, 4, v4")
    a.e(f"v_add_u32 v4, {ldsbase}, v4")
    a.e("s_waitcnt vmcnt(0)")
    if b_mode == "raw":
        for t in range(16):
            a.e(f"ds_read_b128 v[{64+4*t}:{67+4*t}], v4 offset:{32*RS + 64*t}")
            if t == 11: a.e("s_waitcnt lgkmcnt(6)")
    def rd(rnd):
        base = 16 if rnd % 2 == 0 else 128
        for tt in range(4):
            for ee in range(2):
                r = base + 8 * tt + 4 * ee
                a.e(f"ds_read_b128 v[{r}:{r+3}], v4 offset:{16*ee*RS + 64*(4*rnd+tt)}")
    a.e("s_waitcnt lgkmcnt(4)")
    rd(0)
    for rnd in range(4):
        a.e("s_waitcnt lgkmcnt(0)")
        if rnd < 3: rd(rnd + 1)
        base = 16 if rnd % 2 == 0 else 128
        for tt in range(4):
            t = 4 * rnd + tt
            for ee in range(2):
                r = base + 8 * tt + 4 * ee
                c = "0" if t == 0 else f"v[{8+4*ee}:{11+4*ee}]"
                a.e(f"{M16} v[{8+4*ee}:{11+4*ee}], v[{r}:{r+3}], v[{64+4*t}:{67+4*t}], {c}")
    a.e("s_nop 7")
    if scale is not None:
        for i in range(8):
            a.e(f"v_mul_f32 v{8+i}, {f2u(scale)}, v{8+i}")
    for j in range(4):
        a.e(f"v_cvt_pk_bf16_f32 v{16+j}, v{8+2*j}, v{9+2*j}")
    a.e(f"buffer_store_dwordx4 v[16:19], v3, s[{srdO}:{srdO+3}], s42 offen")


def ln_wave(a):
    X = 16
    F = 48
    a.e("v_lshrrev_b32 v4, 3, v2")
    a.e("v_and_b32 v5, 7, v2")
    a.e("v_lshlrev_b32 v6, 4, v5")
    a.e("v_lshl_add_u32 v6, v4, 10, v6")
    a.e("s_lshl_b32 s41, s40, 10")
    for i in range(8):
        a.e(f"buffer_load_dwordx4 v[{X+4*i}:{X+4*i+3}], v6, s[8:11], s41 offen offset:{128*i}")
    a.e("v_lshrrev_b32 v7, 1, v5")
    a.e("v_lshlrev_b32 v7, 9, v7")
    a.e("v_and_b32 v8, 1, v5")
    a.e("v_lshl_add_u32 v7, v8, 7, v7")
    a.e("v_lshl_add_u32 v7, v4, 4, v7")
    a.e("s_lshr_b32 s42, s40, 4")
    a.e("s_lshl_b32 s42, s42, 14")
    a.e("s_and_b32 s43, s40, 8")
    a.e("s_lshl_b32 s43, s43, 5")
    a.e("s_add_u32 s42, s42, s43")
    a.e(f"s_add_u32 s42, s42, {WS_XA}")
    a.e("s_mov_b32 s44, 0xffff0000")
    for i in range(8):
        a.e(f"s_waitcnt vmcnt({7-i})")
        for j in range(4):
            x = X + 4 * i + j; f = F + 8 * i + 2 * j
            a.e(f"v_lshlrev_b32 v{f}, 16, v{x}")
            a.e(f"v_and_b32 v{f+1}, s44, v{x}")
        for j in range(4):
            f = F + 8 * i + 2 * j; acc = 8 + 2 * (j % 2)
            if i == 0 and j < 2:
                a.e(f"v_pk_add_f32 v[{acc}:{acc+1}], v[{f}:{f+1}], 0")
            else:
                a.e(f"v_pk_add_f32 v[{acc}:{acc+1}], v[{acc}:{acc+1}], v[{f}:{f+1}]")
    def reduce8():
        a.e("v_pk_add_f32 v[8:9], v[8:9], v[10:11]")
        a.e("v_add_f32 v8, v8, v9")
        for d in ("quad_perm:[1,0,3,2]", "quad_perm:[2,3,0,1]", "row_half_mirror"):
            a.e("s_nop 1")
            a.e(f"v_add_f32_dpp v8, v8, v8 {d} row_mask:0xf bank_mask:0xf")
    reduce8()
    a.e(f"v_mul_f32 v12, {f2u(-1.0/512)}, v8")
    a.e("v_mov_b32 v13, v12")
    for k in range(32):
        f = F + 2 * k
        a.e(f"v_pk_add_f32 v[{f}:{f+1}], v[{f}:{f+1}], v[12:13]")
    for k in range(32):
        f = F + 2 * k; acc = 8 + 2 * (k % 2)
        if k < 2:
            a.e(f"v_pk_mul_f32 v[{acc}:{acc+1}], v[{f}:{f+1}], v[{f}:{f+1}]")
        else:
            a.e(f"v_pk_fma_f32 v[{acc}:{acc+1}], v[{f}:{f+1}], v[{f}:{f+1}], v[{acc}:{acc+1}]")
    reduce8()
    a.e(f"v_mov_b32 v9, {f2u(1e-5)}")
    a.e(f"v_fmac_f32 v9, {f2u(1.0/512)}, v8")
    a.e("v_rsq_f32 v12, v9")
    a.e("s_nop 0")
    a.e("v_mov_b32 v13, v12")
    for i in range(8):
        for j in range(4):
            f = F + 8 * i + 2 * j
            a.e(f"v_pk_mul_f32 v[{f}:{f+1}], v[{f}:{f+1}], v[12:13]")
        for j in range(4):
            f = F + 8 * i + 2 * j
            a.e(f"v_cvt_pk_bf16_f32 v{X+4*i+j}, v{f}, v{f+1}")
        if i % 2 == 0:
            a.e(f"s_add_u32 s43, s42, {2048*i}")
        a.e(f"buffer_store_dwordx4 v[{X+4*i}:{X+4*i+3}], v7, s[12:15], s43 offen offset:{2048*(i%2)}")


def tr_block(a, ldsbase, srd, rowbytes, use_phi, nblk):
    a.e("v_lshrrev_b32 v4, 2, v2")
    a.e("v_and_b32 v5, 3, v2")
    a.e(f"v_mul_u32_u24 v6, {rowbytes}, v4")
    a.e("v_lshl_add_u32 v6, v5, 4, v6")
    for b in range(nblk):
        for h in range(2):
            a.e(f"s_add_u32 m0, {ldsbase}, {2048*b + 1024*h}")
            a.e(f"s_add_u32 s43, s40, {(32*b + 16*h) * rowbytes}")
            a.e(f"buffer_load_dwordx4 v6, s[{srd}:{srd+3}], s43 offen lds")
    a.e("v_lshrrev_b32 v7, 4, v2")
    a.e("v_and_b32 v8, 3, v4")
    a.e("v_lshl_add_u32 v7, v7, 3, v8")
    a.e("v_lshlrev_b32 v7, 6, v7")
    a.e(f"v_lshl_add_u32 v7, v5, {4 if use_phi else 3}, v7")
    a.e(f"v_add_u32 v7, {ldsbase}, v7")
    a.e("s_waitcnt vmcnt(0)")
    for b in range(nblk):
        for ee in range(2):
            for h in range(2):
                r = 16 + 8 * b + 4 * ee + 2 * h
                a.e(f"ds_read_b64_tr_b16 v[{r}:{r+1}], v7 offset:{2048*b + 256*h + (8 if use_phi else 32)*ee}")
    a.e("s_waitcnt lgkmcnt(0)")
    for b in range(nblk):
        for ee in range(2):
            r = 16 + 8 * b + 4 * ee
            a.e(f"buffer_store_dwordx4 v[{r}:{r+3}], v3, s[12:15], s42 offen")
            if ee == 0: a.e("s_add_u32 s42, s42, s45")
        a.e("s_sub_u32 s42, s42, s45")
        a.e("s_add_u32 s42, s42, s46")


LDS_K0 = 2 * 48 * RS + 2 * 4096

def gen_k0(a, name, stamp=False):
    L = lambda s: f"{name}_{s}"
    st = Stamper(a, stamp)
    kernel_begin(a, name)
    a.e("s_cmp_ge_u32 s2, 256")
    a.e(f"s_cbranch_scc1 {L('end')}")
    a.e(f"s_load_dwordx2 s[4:5], s[0:1], {KA['ws']}")
    a.e(f"s_load_dwordx2 s[20:21], s[0:1], {KA['x']}")
    a.e(f"s_load_dwordx4 s[24:27], s[0:1], {KA['wq']}")
    a.e(f"s_load_dwordx2 s[28:29], s[0:1], {KA['wup']}")
    a.e(f"s_load_dwordx2 s[30:31], s[0:1], {KA['wm']}")
    a.e("v_lshrrev_b32 v1, 6, v0")
    a.e("v_and_b32 v2, 63, v0")
    a.e("v_readfirstlane_b32 s16, v1")
    a.e("v_lshlrev_b32 v3, 4, v2")
    a.e("s_waitcnt lgkmcnt(0)")
    st(0)
    make_srd(a, 12, 4, 0x4000000)
    a.e("s_cmp_ge_u32 s16, 6")
    a.e(f"s_cbranch_scc1 {L('tr')}")
    a.e("s_cmp_ge_u32 s16, 4")
    a.e(f"s_cbranch_scc1 {L('fold')}")
    a.e("s_and_b32 s17, s2, 7")
    a.e("s_lshr_b32 s18, s2, 3")
    a.e("s_lshl_b32 s17, s17, 5")
    a.e("s_add_u32 s17, s17, s18")
    a.e("s_cmp_ge_u32 s17, 250")
    a.e(f"s_cbranch_scc1 {L('fin')}")
    a.e("s_lshl_b32 s17, s17, 2")
    a.e("s_add_u32 s17, s17, s16")
    a.e("s_lshl_b32 s40, s17, 3")
    make_srd(a, 8, 20, IMG)
    ln_wave(a)
    a.e(f"s_branch {L('fin')}")
    a.label(L("fold"))
    make_srd(a, 8, 24, 524288)
    make_srd(a, 32, 26, 524288)
    a.e("s_sub_u32 s17, s16, 4")
    a.e("s_lshr_b32 s18, s2, 4")
    a.e("s_and_b32 s19, s2, 15")
    a.e("s_lshl_b32 s40, s18, 15")
    a.e("s_lshl_b32 s41, s19, 15")
    a.e("s_lshl_b32 s43, s17, 12")
    a.e("s_add_u32 s41, s41, s43")
    a.e("s_lshr_b32 s43, s19, 1")
    a.e("s_mul_i32 s42, s43, 196608")
    a.e("s_lshl_b32 s43, s18, 12")
    a.e("s_add_u32 s42, s42, s43")
    a.e("s_and_b32 s43, s19, 1")
    a.e("s_lshl_b32 s43, s43, 1")
    a.e("s_add_u32 s43, s43, s17")
    a.e("s_lshl_b32 s43, s43, 10")
    a.e("s_add_u32 s42, s42, s43")
    a.e(f"s_add_u32 s42, s42, {WS_W1 + 131072}")
    a.e(f"s_mul_i32 s47, s17, {48*RS}")
    fold_wave(a, "s47", 8, phi, "raw", 32, lambda r: phi(0, r), 12, scale=512 ** -0.5 * math.log2(math.e))
    a.e(f"s_branch {L('fin')}")
    a.label(L("tr"))
    a.e("s_cmp_ge_u32 s16, 7")
    a.e(f"s_cbranch_scc1 {L('trm')}")
    make_srd(a, 8, 28, 1048576)
    a.e("s_and_b32 s17, s2, 31")
    a.e("s_lshr_b32 s18, s2, 5")
    a.e("s_lshl_b32 s40, s18, 17")
    a.e("s_lshl_b32 s43, s17, 6")
    a.e("s_add_u32 s40, s40, s43")
    a.e("s_and_b32 s19, s17, 15")
    a.e("s_lshr_b32 s43, s19, 1")
    a.e("s_mul_i32 s42, s43, 196608")
    a.e("s_lshr_b32 s43, s17, 4")
    a.e("s_xor_b32 s43, s43, 1")
    a.e("s_lshl_b32 s43, s43, 16")
    a.e("s_add_u32 s42, s42, s43")
    a.e("s_lshl_b32 s43, s18, 13")
    a.e("s_add_u32 s42, s42, s43")
    a.e("s_and_b32 s43, s19, 1")
    a.e("s_lshl_b32 s43, s43, 11")
    a.e("s_add_u32 s42, s42, s43")
    a.e(f"s_add_u32 s42, s42, {WS_W1}")
    a.e("s_mov_b32 s45, 1024")
    a.e("s_mov_b32 s46, 4096")
    a.e(f"s_mov_b32 s47, {2*48*RS}")
    tr_block(a, "s47", 8, 2048, True, 2)
    a.e(f"s_branch {L('fin')}")
    a.label(L("trm"))
    make_srd(a, 8, 30, 1048576)
    a.e("s_and_b32 s17, s2, 15")
    a.e("s_lshr_b32 s18, s2, 4")
    a.e("s_lshl_b32 s40, s18, 16")
    a.e("s_lshl_b32 s43, s17, 6")
    a.e("s_add_u32 s40, s40, s43")
    a.e("s_lshr_b32 s43, s18, 3")
    a.e("s_lshl_b32 s42, s43, 19")
    a.e("s_lshl_b32 s43, s17, 15")
    a.e("s_add_u32 s42, s42, s43")
    a.e("s_and_b32 s43, s18, 7")
    a.e("s_lshl_b32 s43, s43, 11")
    a.e("s_add_u32 s42, s42, s43")
    a.e(f"s_add_u32 s42, s42, {WS_WM}")
    a.e("s_mov_b32 s45, 16384")
    a.e("s_mov_b32 s46, 1024")
    a.e(f"s_mov_b32 s47, {2*48*RS + 4096}")
    tr_block(a, "s47", 8, 1024, False, 2)
    a.label(L("fin"))
    if stamp:
        a.e("s_waitcnt vmcnt(0)")
        st(1)
        emit_stamps(a, 2, nw=8, off=WS_STAMP + 0x000000)
    a.label(L("end"))
    a.e("s_endpgm")
    kernel_desc(a, name, 160, 160)
    return f"; @launch kernel={name} grid=(256,1,1) block=(512,1,1) lds={LDS_K0}"


def gen_kf(a, name, stage):
    L = lambda s: f"{name}_{s}"
    kernel_begin(a, name)
    a.e("s_cmp_ge_u32 s2, 256")
    a.e(f"s_cbranch_scc1 {L('end')}")
    a.e(f"s_load_dwordx2 s[4:5], s[0:1], {KA['ws']}")
    a.e(f"s_load_dwordx4 s[24:27], s[0:1], {KA['wv']}")
    a.e(f"s_load_dwordx2 s[28:29], s[0:1], {KA['wdn']}")
    a.e("v_lshrrev_b32 v1, 6, v0")
    a.e("v_and_b32 v2, 63, v0")
    a.e("v_readfirstlane_b32 s16, v1")
    a.e("v_lshlrev_b32 v3, 4, v2")
    a.e("s_waitcnt lgkmcnt(0)")
    make_srd(a, 12, 4, 0x4000000)
    a.e("s_and_b32 s17, s16, 1")
    a.e("s_lshr_b32 s18, s2, 4")
    a.e("s_and_b32 s19, s2, 15")
    a.e("s_lshl_b32 s19, s19, 1")
    a.e("s_add_u32 s19, s19, s17")
    a.e("s_lshl_b32 s40, s18, 15")
    a.e("s_lshl_b32 s41, s19, 14")
    a.e("s_lshl_b32 s43, s18, 10")
    a.e("s_add_u32 s42, s41, s43")
    a.e(f"s_mul_i32 s47, s16, {32*RS}")
    if stage == 1:
        a.e("s_cmp_ge_u32 s16, 2")
        a.e("s_cselect_b32 s26, s28, s26")
        a.e("s_cselect_b32 s27, s29, s27")
        a.e(f"s_mov_b32 s43, {WS_WM}")
        a.e(f"s_mov_b32 s44, {WS_T2}")
        a.e(f"s_cselect_b32 s43, {WS_WM + 524288}, s43")
        a.e(f"s_cselect_b32 s44, {WS_W3}, s44")
        a.e("s_add_u32 s41, s41, s43")
        a.e("s_add_u32 s42, s42, s44")
        make_srd(a, 8, 26, 524288)
        fold_wave(a, "s47", 8, phi, "img", 12, None, 12)
    else:
        a.e(f"s_add_u32 s41, s41, {WS_T2}")
        a.e(f"s_add_u32 s42, s42, {WS_W3 + 524288}")
        make_srd(a, 8, 24, 524288)
        fold_wave(a, "s47", 8, lambda ee, r: 16 * ee + r, "img", 12, None, 12)
    a.label(L("end"))
    a.e("s_endpgm")
    kernel_desc(a, name, 160, 160)
    nw = 4 if stage == 1 else 2
    return f"; @launch kernel={name} grid=(256,1,1) block=({64*nw},1,1) lds={nw*32*RS}"
```

```python
import sys, math
sys.path.insert(0, "gen")
from asmlib import *
from layout import *

LDS_K1 = 131072

def gen_k1(a, name, stamp=False):
    L = lambda s: f"{name}_{s}"
    st = Stamper(a, stamp)
    B = 128
    ACC = [64, 96]
    AF = [32, 48]
    T = 8
    kernel_begin(a, name)
    a.e("s_cmp_ge_u32 s2, 256")
    a.e(f"s_cbranch_scc1 {L('end')}")
    a.e(f"s_load_dwordx2 s[4:5], s[0:1], {KA['ws']}")
    a.e("v_lshrrev_b32 v1, 6, v0")
    a.e("v_and_b32 v2, 63, v0")
    a.e("v_readfirstlane_b32 s16, v1")
    a.e("v_lshlrev_b32 v3, 4, v2")
    a.e("v_and_b32 v4, 0x27, v2")
    a.e("v_and_b32 v5, 8, v2")
    a.e("v_lshl_add_u32 v4, v5, 1, v4")
    a.e("v_and_b32 v5, 16, v2")
    a.e("v_lshrrev_b32 v5, 1, v5")
    a.e("v_add_lshl_u32 v4, v4, v5, 4")
    a.e("s_and_b32 s17, s2, 7")
    a.e("s_lshr_b32 s18, s2, 6")
    a.e("s_lshl_b32 s17, s17, 2")
    a.e("s_add_u32 s17, s17, s18")
    a.e("s_lshr_b32 s18, s2, 3")
    a.e("s_and_b32 s18, s18, 7")
    a.e("s_lshl_b32 s19, s17, 3")
    a.e("s_add_u32 s19, s19, s16")
    a.e("s_lshl_b32 s20, s19, 15")
    a.e("s_mul_i32 s21, s18, 196608")
    a.e(f"s_add_u32 s21, s21, {WS_W1}")
    a.e("s_waitcnt lgkmcnt(0)")
    st(0)
    srd_off(a, 8, 4, WS_XA, IMG)
    srd_off(a, 12, 4, "s21", 196608)
    a.e("s_lshl_b32 s22, s16, 11")
    def wdma(src, dst):
        a.e(f"s_add_u32 m0, s22, {dst}")
        a.e(f"s_add_u32 s23, s22, {src}")
        for j in range(2):
            a.e(f"buffer_load_dwordx4 v3, s[12:15], s23 offen offset:{1024*j} lds")
    for c in range(4):
        wdma(16384 * c, 16384 * c)
        for tb in range(2):
            a.e(f"s_add_u32 s23, s20, {16384*tb + 4096*c}")
            for j in range(4):
                r = B + 8 * (4 * c + j) + 4 * tb
                a.e(f"buffer_load_dwordx4 v[{r}:{r+3}], v4, s[8:11], s23 offen offset:{1024*j}")
    for c in range(4):
        wdma(65536 + 16384 * c, 65536 + 16384 * c)
    srd_off(a, 24, 4, WS_G, IMG)
    srd_off(a, 28, 4, WS_U, IMG)
    srd_off(a, 32, 4, WS_QP, IMG)
    a.e("s_lshl_b32 s23, s18, 16")
    a.e(f"s_add_u32 s23, s23, {WS_ST}")
    srd_off(a, 36, 4, "s23", 64000)
    a.e("v_and_b32 v5, 15, v2")
    a.e("v_lshrrev_b32 v6, 4, v2")
    a.e("v_lshlrev_b32 v7, 4, v6")
    a.e("v_lshl_add_u32 v5, v5, 10, v7")
    a.e("v_add_u32 v7, 0x10000, v3")
    a.e("s_lshl_b32 s40, s18, 7")
    a.e("s_add_u32 s40, s40, s20")
    a.e("s_add_u32 s41, s40, 16384")
    a.e("s_lshl_b32 s42, s18, 11")
    a.e("s_add_u32 s42, s42, s20")
    a.e("s_add_u32 s43, s42, 16384")
    a.e("s_lshl_b32 s44, s19, 8")
    c1 = -2 * math.sqrt(2 / math.pi) * math.log2(math.e)
    a.e(f"s_mov_b32 s45, {f2u(c1 * 0.044715)}")
    a.e(f"v_mov_b32 v1, {f2u(c1)}")

    def aread(s, va):
        for nb in range(4):
            r = AF[s % 2] + 4 * nb
            a.e(f"ds_read_b128 v[{r}:{r+3}], {va} offset:{4096*s + 1024*nb}")
    def kstep(s, acc):
        for nb in range(4):
            for tb in range(2):
                d = acc + 8 * nb + 4 * tb; r = AF[s % 2] + 4 * nb; b = B + 8 * s + 4 * tb
                c = "0" if s == 0 else f"v[{d}:{d+3}]"
                a.e(f"{M16} v[{d}:{d+3}], v[{r}:{r+3}], v[{b}:{b+3}], {c}")
    def gemm(s0, s1, acc, va):
        aread(s0, va)
        for s in range(s0, s1):
            if s + 1 < s1:
                aread(s + 1, va)
                a.e("s_waitcnt lgkmcnt(4)")
            else:
                a.e("s_waitcnt lgkmcnt(0)")
            kstep(s, acc)
    def epi(kind, acc):
        a.e("s_nop 7")
        for tb in range(2):
            for half in range(2):
                src = [acc + 8 * (2 * half + ee) + 4 * tb + j for ee in range(2) for j in range(4)]
                if kind != "q":
                    for i, x in enumerate(src): a.e(f"v_mul_f32 v{T+i}, v{x}, v{x}")
                    for i, x in enumerate(src): a.e(f"v_fma_f32 v{T+i}, v{T+i}, s45, v1")
                    for i, x in enumerate(src): a.e(f"v_mul_f32 v{T+i}, v{T+i}, v{x}")
                    for i, x in enumerate(src): a.e(f"v_exp_f32 v{T+i}, v{T+i}")
                    for i, x in enumerate(src): a.e(f"v_add_f32 v{T+i}, 1.0, v{T+i}")
                    for i, x in enumerate(src): a.e(f"v_rcp_f32 v{T+i}, v{T+i}")
                    for i, x in enumerate(src): a.e(f"v_mul_f32 v{x}, v{T+i}, v{x}")
                if kind == "g":
                    sm = T + 16 + 2 * tb
                    for i, x in enumerate(src):
                        if half == 0 and i == 0:
                            a.e(f"v_mov_b32 v{sm}, v{x}")
                            a.e(f"v_mul_f32 v{sm+1}, v{x}, v{x}")
                        else:
                            a.e(f"v_add_f32 v{sm}, v{sm}, v{x}")
                            a.e(f"v_fmac_f32 v{sm+1}, v{x}, v{x}")
                p = T + 8 + 4 * half
                for j in range(4):
                    a.e(f"v_cvt_pk_bf16_f32 v{p+j}, v{src[2*j]}, v{src[2*j+1]}")
                if kind == "q":
                    a.e(f"buffer_store_dwordx4 v[{p}:{p+3}], v3, s[32:35], s{42+tb} offen offset:{1024*half}")
                else:
                    srd = 24 if kind == "g" else 28
                    a.e(f"buffer_store_dwordx4 v[{p}:{p+3}], v5, s[{srd}:{srd+3}], s{40+tb} offen offset:{64*half}")
        if kind == "g":
            sm = T + 16
            a.e("s_nop 1")
            a.e(f"v_permlane16_swap_b32 v{sm}, v{sm+2}")
            a.e(f"v_permlane16_swap_b32 v{sm+1}, v{sm+3}")
            a.e("s_nop 1")
            a.e(f"v_add_f32 v{sm}, v{sm}, v{sm+2}")
            a.e(f"v_add_f32 v{sm+1}, v{sm+1}, v{sm+3}")
            a.e(f"v_mov_b32 v{sm+2}, v{sm}")
            a.e(f"v_mov_b32 v{sm+3}, v{sm+1}")
            a.e("s_nop 1")
            a.e(f"v_permlane32_swap_b32 v{sm}, v{sm+2}")
            a.e(f"v_permlane32_swap_b32 v{sm+1}, v{sm+3}")
            a.e(f"v_and_b32 v{sm+4}, 31, v2")
            a.e(f"v_lshlrev_b32 v{sm+4}, 3, v{sm+4}")
            a.e(f"v_add_f32 v{sm}, v{sm}, v{sm+2}")
            a.e(f"v_add_f32 v{sm+1}, v{sm+1}, v{sm+3}")
            a.e(f"buffer_store_dwordx2 v[{sm}:{sm+1}], v{sm+4}, s[36:39], s44 offen")
    for c in range(4):
        a.e(f"s_waitcnt vmcnt({8 + 10*(3-c)})")
        a.e("s_barrier")
        if c == 0: st(1)
        gemm(4 * c, 4 * c + 4, ACC[0], "v3")
    a.e("s_waitcnt vmcnt(0)")
    a.e("s_barrier")
    st(2)
    for c in range(4):
        wdma(131072 + 16384 * c, 16384 * c)
    a.e("s_cmp_ge_u32 s16, 4")
    a.e(f"s_cbranch_scc1 {L('grpb')}")
    epi("g", ACC[0])
    gemm(0, 16, ACC[1], "v7")
    a.e("s_waitcnt vmcnt(5)")
    a.e("s_barrier")
    st(3)
    epi("u", ACC[1])
    gemm(0, 16, ACC[0], "v3")
    a.e(f"s_branch {L('last')}")
    a.label(L("grpb"))
    gemm(0, 16, ACC[1], "v7")
    epi("g", ACC[0])
    a.e("s_waitcnt vmcnt(5)")
    a.e("s_barrier")
    st(3)
    gemm(0, 16, ACC[0], "v3")
    epi("u", ACC[1])
    a.label(L("last"))
    st(4)
    epi("q", ACC[0])
    if stamp:
        a.e("s_waitcnt vmcnt(0)")
        st(5)
        emit_stamps(a, 6, nw=8, off=WS_STAMP + 0x100000)
    a.label(L("end"))
    a.e("s_endpgm")
    kernel_desc(a, name, 256, 256)
    return f"; @launch kernel={name} grid=(256,1,1) block=(512,1,1) lds={LDS_K1}"
```

```python
import sys, math
sys.path.insert(0, "gen")
from asmlib import *
from layout import *

RS = 1056
LDS_O = 64 * RS
LDS_K3 = LDS_O + 65536
ES = 272

def gen_k3(a, name, stamp=False):
    L = lambda s: f"{name}_{s}"
    st = Stamper(a, stamp)
    OR = 128
    BF = [32, 48]
    XR = 64
    T = 96
    NA = 12
    kernel_begin(a, name)
    a.e("s_cmp_ge_u32 s2, 256")
    a.e(f"s_cbranch_scc1 {L('end')}")
    a.e(f"s_load_dwordx2 s[4:5], s[0:1], {KA['ws']}")
    a.e(f"s_load_dwordx2 s[6:7], s[0:1], {KA['x']}")
    a.e(f"s_load_dwordx2 s[48:49], s[0:1], {KA['out']}")
    a.e("s_lshr_b32 s17, s2, 4")
    a.e("s_lshl_b32 s17, s17, 3")
    a.e("s_and_b32 s18, s2, 7")
    a.e("s_add_u32 s17, s17, s18")
    a.e("s_cmp_ge_u32 s17, 125")
    a.e(f"s_cbranch_scc1 {L('end')}")
    a.e("s_lshr_b32 s18, s2, 3")
    a.e("s_and_b32 s18, s18, 1")
    a.e("v_lshrrev_b32 v1, 6, v0")
    a.e("v_and_b32 v2, 63, v0")
    a.e("v_readfirstlane_b32 s16, v1")
    a.e("v_lshlrev_b32 v3, 4, v2")
    a.e("v_and_b32 v4, 15, v2")
    a.e("v_lshrrev_b32 v5, 4, v2")
    a.e("s_lshl_b32 s19, s17, 2")
    a.e("s_add_u32 s19, s19, s16")
    a.e("s_lshl_b32 s20, s19, 14")
    a.e("s_lshl_b32 s21, s18, 2")
    a.e("s_add_u32 s21, s21, s16")
    a.e("s_waitcnt lgkmcnt(0)")
    st(0)
    make_srd(a, 8, 4, 0x4000000)
    a.e("v_lshlrev_b32 v6, 3, v4")
    a.e("s_lshl_b32 s22, s19, 7")
    for i in range(4):
        a.e(f"s_add_u32 s23, s22, {WS_ML + 0x10000*i}")
        a.e(f"buffer_load_dwordx2 v[{T+2*i}:{T+2*i+1}], v6, s[8:11], s23 offen")
    a.e(f"s_mul_i32 s24, s16, {16*RS}")
    for r in range(16):
        a.e(f"s_add_u32 m0, s24, {r*RS}")
        a.e(f"s_add_u32 s23, s20, {WS_Z + 1024*r}")
        a.e("buffer_load_dwordx4 v3, s[8:11], s23 offen lds")
    for s in range(16):
        for sp in range(2):
            r = OR + 8 * s + 4 * sp
            a.e(f"s_add_u32 s23, s20, {WS_OP + 0x800000*sp + 1024*s}")
            a.e(f"buffer_load_dwordx4 v[{r}:{r+3}], v3, s[8:11], s23 offen")
    a.e("s_lshl_b32 s25, s21, 16")
    a.e(f"s_add_u32 s25, s25, {WS_W3}")
    def aload(k):
        part, s = k // 16, k % 16
        for nb in range(4):
            r = 64 + 16 * (k % NA) + 4 * nb
            a.e(f"s_add_u32 s23, s25, {524288*part + 16384*nb + 1024*s}")
            a.e(f"buffer_load_dwordx4 a[{r}:{r+3}], v3, s[8:11], s23 offen")
    a.e("s_waitcnt vmcnt(48)")
    a.e(f"v_add_f32 v{T+1}, v{T+1}, v{T+3}")
    a.e(f"v_add_f32 v{T+5}, v{T+5}, v{T+7}")
    a.e(f"v_min_f32 v{T+2}, v{T}, v{T+4}")
    a.e(f"v_sub_f32 v{T}, v{T+2}, v{T}")
    a.e(f"v_sub_f32 v{T+4}, v{T+2}, v{T+4}")
    a.e(f"v_exp_f32 v{T}, v{T}")
    a.e(f"v_exp_f32 v{T+4}, v{T+4}")
    a.e("s_nop 0")
    a.e(f"v_mul_f32 v{T+1}, v{T+1}, v{T}")
    a.e(f"v_fmac_f32 v{T+1}, v{T+5}, v{T+4}")
    a.e(f"v_rcp_f32 v{T+1}, v{T+1}")
    a.e("s_mov_b32 s26, 0xffff0000")
    a.e(f"v_mul_f32 v8, v{T}, v{T+1}")
    a.e(f"v_mul_f32 v9, v{T+4}, v{T+1}")
    a.e("s_lshl_b32 s24, s16, 14")
    a.e(f"s_add_u32 s24, s24, {LDS_O}")
    a.e("v_add_u32 v10, s24, v3")
    na = 0
    for s in range(16):
        a.e(f"s_waitcnt vmcnt({2*(15-s) + 4*na})")
        r0 = OR + 8 * s
        for k in range(8):
            a.e(f"v_lshlrev_b32 v{T+2*k}, 16, v{r0+k}")
            a.e(f"v_and_b32 v{T+2*k+1}, s26, v{r0+k}")
        for k in range(4):
            a.e(f"v_pk_mul_f32 v[{T+2*k}:{T+2*k+1}], v[{T+2*k}:{T+2*k+1}], v[8:9] op_sel:[0,0] op_sel_hi:[1,0]")
        for k in range(4):
            a.e(f"v_pk_fma_f32 v[{T+2*k}:{T+2*k+1}], v[{T+8+2*k}:{T+9+2*k}], v[8:9], v[{T+2*k}:{T+2*k+1}] op_sel:[0,1,0] op_sel_hi:[1,1,1]")
        for k in range(4):
            a.e(f"v_cvt_pk_bf16_f32 v{r0+k}, v{T+2*k}, v{T+2*k+1}")
        a.e(f"ds_write_b128 v10, v[{r0}:{r0+3}] offset:{1024*s}")
        if na < NA and s >= 2:
            aload(na); na += 1
    assert na == NA
    a.e(f"v_mul_u32_u24 v11, {RS}, v4")
    a.e("v_lshl_add_u32 v11, v5, 4, v11")
    a.e(f"v_add_u32 v12, {LDS_O}, v3")
    make_srd(a, 12, 6, IMG)
    make_srd(a, 28, 48, IMG)
    a.e("v_lshrrev_b32 v13, 3, v2")
    a.e("v_and_b32 v14, 7, v2")
    a.e("v_lshlrev_b32 v15, 4, v14")
    a.e("v_lshl_add_u32 v15, v13, 10, v15")
    a.e("s_lshl_b32 s27, s17, 16")
    a.e("s_lshl_b32 s23, s21, 7")
    a.e("s_add_u32 s27, s27, s23")
    a.e(f"s_mul_i32 s24, s16, {64*ES}")
    a.e(f"v_mul_u32_u24 v16, {ES}, v13")
    a.e("v_lshl_add_u32 v16, v14, 5, v16")
    a.e("v_add_u32 v16, s24, v16")
    a.e(f"v_mul_u32_u24 v17, {ES}, v4")
    a.e("v_lshl_add_u32 v17, v5, 4, v17")
    a.e("v_add_u32 v17, s24, v17")
    a.e("s_waitcnt lgkmcnt(0)")
    a.e("s_barrier")
    st(1)
    def bread(k):
        part, s = k // 16, k % 16
        for tb in range(4):
            r = BF[k % 2] + 4 * tb
            if part == 0:
                a.e(f"ds_read_b128 v[{r}:{r+3}], v11 offset:{16*RS*tb + 64*s}")
            else:
                a.e(f"ds_read_b128 v[{r}:{r+3}], v12 offset:{16384*tb + 1024*s}")
    bread(0)
    xl = 0
    for k in range(32):
        if k + 1 < 32: bread(k + 1)
        issued = min(32, k + NA)
        a.e(f"s_waitcnt vmcnt({4*(issued-k-1) + xl}) lgkmcnt({4 if k + 1 < 32 else 0})")
        for nb in range(4):
            for tb in range(4):
                d = 16 * nb + 4 * tb; r = 64 + 16 * (k % NA) + 4 * nb; b = BF[k % 2] + 4 * tb
                c = "0" if k == 0 else f"a[{d}:{d+3}]"
                a.e(f"{M16} a[{d}:{d+3}], a[{r}:{r+3}], v[{b}:{b+3}], {c}")
        if k + NA < 32:
            aload(k + NA)
        elif xl == 0:
            for i in range(8):
                a.e(f"s_add_u32 s23, s27, {8192*i}")
                a.e(f"buffer_load_dwordx4 v[{XR+4*i}:{XR+4*i+3}], v15, s[12:15], s23 offen")
            xl = 8
    st(2)
    a.e("s_barrier")
    a.e("s_nop 4")
    for nb in range(4):
        for tb in range(4):
            d = 16 * nb + 4 * tb
            a.e(f"ds_write_b128 v17, a[{d}:{d+3}] offset:{16*ES*tb + 64*nb}")
    a.e("s_waitcnt vmcnt(0) lgkmcnt(0)")
    for i in range(8):
        for h in range(2):
            r = OR + 8 * i + 4 * h
            a.e(f"ds_read_b128 v[{r}:{r+3}], v16 offset:{8*ES*i + 16*h}")
        if i == 5: a.e("s_waitcnt lgkmcnt(8)")
    for i in range(8):
        a.e(f"s_waitcnt lgkmcnt({min(15, 2*(7-i))})")
        for k in range(4):
            a.e(f"v_lshlrev_b32 v{T+2*k}, 16, v{XR+4*i+k}")
            a.e(f"v_and_b32 v{T+2*k+1}, s26, v{XR+4*i+k}")
        for k in range(4):
            r = OR + 8 * i + 2 * k
            a.e(f"v_pk_add_f32 v[{r}:{r+1}], v[{r}:{r+1}], v[{T+2*k}:{T+2*k+1}]")
        for k in range(4):
            r = OR + 8 * i + 2 * k
            a.e(f"v_cvt_pk_bf16_f32 v{XR+4*i+k}, v{r}, v{r+1}")
        a.e(f"s_add_u32 s23, s27, {8192*i}")
        a.e(f"buffer_store_dwordx4 v[{XR+4*i}:{XR+4*i+3}], v15, s[28:31], s23 offen")
    if stamp:
        a.e("s_waitcnt vmcnt(0)")
        st(3)
        emit_stamps(a, 4, nw=8, off=WS_STAMP + 0x300000)
    a.label(L("end"))
    a.e("s_endpgm")
    kernel_desc(a, name, 512, 256)
    return f"; @launch kernel={name} grid=(256,1,1) block=(256,1,1) lds={LDS_K3}"
```

```python
import sys, math
sys.path.insert(0, "gen")
from asmlib import *
from layout import *

def conv_wave(a, NR, V0=16):
    W = V0
    GR = W + 40
    UR = GR + 4 * (NR + 4)
    GN = UR + 4 * NR
    AC = GN + 40
    UF = AC + 8
    TM = UF + 8
    a.e(f"v_add_u32 v{AC}, s40, v2")
    a.e(f"v_subrev_u32 v{AC}, 2, v{AC}")
    a.e(f"v_max_i32 v{AC}, 0, v{AC}")
    a.e(f"v_min_i32 v{AC}, 7999, v{AC}")
    a.e(f"v_lshlrev_b32 v{AC}, 3, v{AC}")
    for ct in range(8):
        a.e(f"s_mov_b32 s42, {ct*0x10000}")
        a.e(f"buffer_load_dwordx2 v[{GN+2*ct}:{GN+2*ct+1}], v{AC}, s[36:39], s42 offen")
    for i in range(5):
        a.e(f"s_mov_b32 s42, {1024*i}")
        a.e(f"buffer_load_dwordx4 v[{TM+4*i}:{TM+4*i+3}], v3, s[44:47], s42 offen")
    order = []
    for j in range(NR + 4):
        order.append(("g", j))
        if j >= 4: order.append(("u", j - 4))
    for kind, j in order:
        if kind == "g":
            a.e(f"s_add_i32 s42, s40, {j-2}")
            if j < 2: a.e("s_max_i32 s42, s42, 0")
            if j >= NR + 2: a.e("s_min_i32 s42, s42, 7999")
            a.e("s_lshl_b32 s42, s42, 10")
            a.e(f"buffer_load_dwordx4 v[{GR+4*j}:{GR+4*j+3}], v3, s[24:27], s42 offen")
        else:
            a.e(f"s_add_i32 s42, s40, {j}")
            a.e("s_lshl_b32 s42, s42, 10")
            a.e(f"buffer_load_dwordx4 v[{UR+4*j}:{UR+4*j+3}], v3, s[28:31], s42 offen")
    nload = len(order)
    a.e("s_mov_b32 s43, 0xffff0000")
    a.e(f"s_waitcnt vmcnt({nload + 5})")
    for ct in range(1, 8):
        a.e(f"v_pk_add_f32 v[{GN}:{GN+1}], v[{GN}:{GN+1}], v[{GN+2*ct}:{GN+2*ct+1}]")
    a.e(f"v_mul_f32 v{GN}, {f2u(1/512)}, v{GN}")
    a.e(f"v_mul_f32 v{GN+1}, {f2u(1/512)}, v{GN+1}")
    a.e(f"v_fma_f32 v{GN+1}, -v{GN}, v{GN}, v{GN+1}")
    a.e(f"v_max_f32 v{GN+1}, 0, v{GN+1}")
    a.e(f"v_add_f32 v{GN+1}, {f2u(1e-5)}, v{GN+1}")
    a.e(f"v_rsq_f32 v{GN+1}, v{GN+1}")
    a.e(f"v_add_u32 v{AC}, s41, v2")
    a.e(f"v_subrev_u32 v{AC}, 2, v{AC}")
    a.e(f"v_cmp_gt_u32 vcc, {T}, v{AC}")
    a.e(f"v_mul_f32 v{GN}, v{GN}, v{GN+1}")
    a.e(f"v_sub_f32 v{GN}, 0, v{GN}")
    a.e(f"v_cndmask_b32 v4, 0, v{GN+1}, vcc")
    a.e(f"v_cndmask_b32 v5, 0, v{GN}, vcc")
    a.e(f"s_waitcnt vmcnt({nload})")
    for i in range(5):
        for j in range(4):
            a.e(f"v_lshlrev_b32 v{W+8*i+2*j}, 16, v{TM+4*i+j}")
            a.e(f"v_and_b32 v{W+8*i+2*j+1}, s43, v{TM+4*i+j}")
    a.e("s_lshl_b32 s48, s40, 10")
    done = 0; nst = 0
    for j in range(NR + 4):
        a.e(f"v_readlane_b32 s50, v4, {j}")
        a.e(f"v_readlane_b32 s51, v5, {j}")
        done += 1 if j < 4 else 2
        a.e(f"s_waitcnt vmcnt({nload - done + nst})")
        gn = GN + 8 * (j % 5)
        for k in range(4):
            a.e(f"v_lshlrev_b32 v{gn+2*k}, 16, v{GR+4*j+k}")
            a.e(f"v_and_b32 v{gn+2*k+1}, s43, v{GR+4*j+k}")
        for k in range(4):
            a.e(f"v_pk_fma_f32 v[{gn+2*k}:{gn+2*k+1}], v[{gn+2*k}:{gn+2*k+1}], s[50:51], s[50:51] op_sel:[0,0,1] op_sel_hi:[1,0,1]")
        if j >= 4:
            t = j - 4
            for i in range(5):
                gi = GN + 8 * ((t + i) % 5)
                for k in range(4):
                    if i == 0:
                        a.e(f"v_pk_mul_f32 v[{AC+2*k}:{AC+2*k+1}], v[{gi+2*k}:{gi+2*k+1}], v[{W+2*k}:{W+2*k+1}]")
                    else:
                        a.e(f"v_pk_fma_f32 v[{AC+2*k}:{AC+2*k+1}], v[{gi+2*k}:{gi+2*k+1}], v[{W+8*i+2*k}:{W+8*i+2*k+1}], v[{AC+2*k}:{AC+2*k+1}]")
            for k in range(4):
                a.e(f"v_lshlrev_b32 v{UF+2*k}, 16, v{UR+4*t+k}")
                a.e(f"v_and_b32 v{UF+2*k+1}, s43, v{UR+4*t+k}")
            for k in range(4):
                a.e(f"v_pk_mul_f32 v[{AC+2*k}:{AC+2*k+1}], v[{AC+2*k}:{AC+2*k+1}], v[{UF+2*k}:{UF+2*k+1}]")
            for k in range(4):
                a.e(f"v_cvt_pk_bf16_f32 v{UR+4*t+k}, v{AC+2*k}, v{AC+2*k+1}")
            if t % 4 == 0 and t:
                a.e("s_add_u32 s48, s48, 4096")
            a.e(f"buffer_store_dwordx4 v[{UR+4*t}:{UR+4*t+3}], v3, s[32:35], s48 offen offset:{1024*(t%4)}")
            nst += 1
    return TM + 20


def gen_kc(a, name):
    L = lambda s: f"{name}_{s}"
    kernel_begin(a, name)
    a.e("s_cmp_ge_u32 s2, 250")
    a.e(f"s_cbranch_scc1 {L('end')}")
    a.e(f"s_load_dwordx2 s[4:5], s[0:1], {KA['ws']}")
    a.e(f"s_load_dwordx2 s[6:7], s[0:1], {KA['dw']}")
    a.e("v_lshrrev_b32 v1, 6, v0")
    a.e("v_and_b32 v2, 63, v0")
    a.e("v_readfirstlane_b32 s16, v1")
    a.e("v_lshlrev_b32 v3, 4, v2")
    a.e("s_lshl_b32 s40, s2, 2")
    a.e("s_add_u32 s40, s40, s16")
    a.e("s_lshl_b32 s40, s40, 3")
    a.e(f"s_sub_u32 s41, s40, {T}")
    a.e("s_cselect_b32 s41, s40, s41")
    a.e("s_waitcnt lgkmcnt(0)")
    srd_off(a, 24, 4, WS_G, IMG)
    srd_off(a, 28, 4, WS_U, IMG)
    srd_off(a, 32, 4, WS_Z, IMG)
    srd_off(a, 36, 4, WS_ST, 0x80000)
    make_srd(a, 44, 6, 5120)
    n = conv_wave(a, 8)
    a.label(L("end"))
    a.e("s_endpgm")
    kernel_desc(a, name, 256, 256)
    return f"; @launch kernel={name} grid=(250,1,1) block=(256,1,1) lds=0"
```

```python
T = 4000
NTOK = 8000
IMG = 8192000
WS_XA = 0x0000000
WS_QP = 0x0800000
WS_OP = 0x1000000
WS_U  = 0x2000000
WS_G  = 0x2800000
WS_Z  = 0x3000000
WS_ML = 0x3800000
WS_ST = 0x3880000
WS_W1 = 0x3900000
WS_WM = 0x3B00000
WS_T2 = 0x3C00000
WS_W3 = 0x3D00000
WS_STAMP = 0x8000000
KA = dict(x=0, wq=8, wk=16, wv=24, wao=32, wup=40, dw=48, wdn=56, wm=64, out=72, dbg=80, ws=88)
M16 = "v_mfma_f32_16x16x32_bf16"
def phi(ee, r):
    return 8 * (r >> 2) + 4 * ee + (r & 3)
```

```python
import sys
sys.path.insert(0, "gen")
from asmlib import *
from k0 import gen_k0, gen_kf
from k1 import gen_k1
from kc import gen_kc
from k3 import gen_k3
from attn import gen_attn

def build(path, stamp=False, extra_empty=0):
    a = Asm()
    a('.amdgcn_target "amdgcn-amd-amdhsa--gfx950"')
    ls = []
    ls.append(gen_k0(a, "k0_kernel", stamp))
    ls.append(gen_kf(a, "kf1_kernel", 1))
    ls.append(gen_kf(a, "kf2_kernel", 2))
    ls.append(gen_k1(a, "k1_kernel", stamp))
    ls.append(gen_kc(a, "kc_kernel"))
    ls.append(gen_attn(a, "attn_kernel", stamp=stamp))
    ls.append(gen_k3(a, "k3_kernel", stamp))
    if extra_empty:
        kernel_begin(a, "empty_kernel")
        a.e("s_endpgm")
        kernel_desc(a, "empty_kernel", 8, 8)
        ls += ["; @launch kernel=empty_kernel grid=(256,1,1) block=(64,1,1) lds=0"] * extra_empty
    open(path, "w").write("\n".join(ls) + "\n" + a.text())

if __name__ == "__main__":
    build("full.s")
    build("full_st.s", stamp=True)
    build("full_e4.s", extra_empty=4)
```

```python
class Asm:
    def __init__(self):
        self.lines = []
        self._uid = 0

    def __call__(self, s=""):
        for ln in s.split("\n"):
            self.lines.append(ln)

    def e(self, s):
        self.lines.append("    " + s)

    def label(self, name):
        self.lines.append(name + ":")

    def uid(self, base="L"):
        self._uid += 1
        return f"{base}_{self._uid}"

    def text(self):
        return "\n".join(self.lines) + "\n"


def vr(b, n=1):
    return f"v{b}" if n == 1 else f"v[{b}:{b+n-1}]"


def ar(b, n=1):
    return f"a{b}" if n == 1 else f"a[{b}:{b+n-1}]"


def sr(b, n=1):
    return f"s{b}" if n == 1 else f"s[{b}:{b+n-1}]"


def kernel_begin(a, name):
    a(".text")
    a(f".globl {name}")
    a(".p2align 8")
    a(f".type {name},@function")
    a(f"{name}:")


def kernel_desc(a, name, vgpr, accum, sgpr=102):
    a('.section .rodata,"a"')
    a(".p2align 6")
    a(f".amdhsa_kernel {name}")
    a(f"  .amdhsa_next_free_vgpr {vgpr}")
    a(f"  .amdhsa_next_free_sgpr {sgpr}")
    a(f"  .amdhsa_accum_offset {accum}")
    a("  .amdhsa_group_segment_fixed_size 0")
    a("  .amdhsa_kernarg_size 96")
    a("  .amdhsa_user_sgpr_count 2")
    a("  .amdhsa_user_sgpr_kernarg_segment_ptr 1")
    a("  .amdhsa_system_sgpr_workgroup_id_x 1")
    a("  .amdhsa_float_denorm_mode_32 3")
    a(".end_amdhsa_kernel")


def make_srd(a, d, base, nbytes):
    a.e(f"s_mov_b32 s{d}, s{base}")
    a.e(f"s_and_b32 s{d+1}, s{base+1}, 0xffff")
    a.e(f"s_mov_b32 s{d+2}, {nbytes}")
    a.e(f"s_mov_b32 s{d+3}, 0x00020000")


def emit_stamps(a, n, wave="s16", lane="v2", ws=4, off=0x8000000, nw=4):
    for k in range(n):
        a.e(f"v_mov_b32 v{8+2*k}, s{60+4*k}")
        a.e(f"v_mov_b32 v{9+2*k}, s{62+4*k}")
    make_srd(a, 92, ws, 0x10000000)
    a.e(f"s_mul_i32 s3, s2, {nw}")
    a.e(f"s_add_u32 s3, s3, {wave}")
    a.e("s_lshl_b32 s3, s3, 6")
    a.e(f"s_add_u32 s3, s3, {off}")
    a.e("v_mov_b32 v7, 0")
    a.e(f"v_cmp_eq_u32 vcc, 0, {lane}")
    a.e("s_and_saveexec_b64 s[96:97], vcc")
    for k in range(n):
        a.e(f"buffer_store_dwordx2 v[{8+2*k}:{9+2*k}], v7, s[92:95], s3 offen offset:{8*k}")


def srd_off(a, d, base, off, nbytes, tmp=None):
    a.e(f"s_add_u32 s{d}, s{base}, {off}")
    a.e(f"s_addc_u32 s{d+1}, s{base+1}, 0")
    a.e(f"s_and_b32 s{d+1}, s{d+1}, 0xffff")
    a.e(f"s_mov_b32 s{d+2}, {nbytes}")
    a.e(f"s_mov_b32 s{d+3}, 0x00020000")


def f2u(x):
    import struct
    return "0x%08x" % struct.unpack("<I", struct.pack("<f", x))[0]


class Stamper:
    def __init__(self, a, on):
        self.a, self.on, self.n = a, on, 0

    def __call__(self, k):
        if self.on:
            a = self.a
            a.e(f"s_memtime s[{60+4*k}:{61+4*k}]")
            a.e(f"s_memrealtime s[{62+4*k}:{63+4*k}]")
            a.e("s_waitcnt lgkmcnt(0)")


class Seq:
    def __init__(self, a):
        self.a = a
        self.vm = []
        self.lg = []

    def wait(self, *tags):
        nv = nl = None
        for t in tags:
            if t in self.vm:
                i = len(self.vm) - 1 - self.vm[::-1].index(t)
                n = len(self.vm) - 1 - i
                nv = n if nv is None else min(nv, n)
            if t in self.lg:
                i = len(self.lg) - 1 - self.lg[::-1].index(t)
                n = len(self.lg) - 1 - i
                nl = n if nl is None else min(nl, n)
        parts = []
        if nv is not None:
            nv = min(nv, 63)
            parts.append(f"vmcnt({nv})")
            self.vm = self.vm[len(self.vm) - nv:] if nv else []
        if nl is not None:
            nl = min(nl, 15)
            parts.append(f"lgkmcnt({nl})")
            self.lg = self.lg[len(self.lg) - nl:] if nl else []
        if parts:
            self.a.e("s_waitcnt " + " ".join(parts))

    def all(self, vm=True, lg=True):
        parts = []
        if vm: parts.append("vmcnt(0)"); self.vm = []
        if lg: parts.append("lgkmcnt(0)"); self.lg = []
        self.a.e("s_waitcnt " + " ".join(parts))

    def e(self, text, need=()):
        if need: self.wait(*need)
        self.a.e(text)

    def v(self, text, tag="_", need=()):
        if need: self.wait(*need)
        if len(self.vm) >= 63:
            self.a.e("s_waitcnt vmcnt(62)")
            self.vm = self.vm[-62:]
        self.a.e(text)
        self.vm.append(tag)

    def l(self, text, tag="_", need=()):
        if need: self.wait(*need)
        if len(self.lg) >= 15:
            self.a.e("s_waitcnt lgkmcnt(14)")
            self.lg = self.lg[-14:]
        self.a.e(text)
        self.lg.append(tag)


class Fine:
    def __init__(self, a, on):
        self.a, self.on = a, on

    def __call__(self, k):
        if self.on:
            self.a.e(f"{Fine.op} s[{60+2*k}:{61+2*k}]")
Fine.op = "s_memrealtime"


def emit_fine(a, wave="s16", lane="v2", ws=4, off=0x8000000, nw=8):
    a.e("s_waitcnt lgkmcnt(0)")
    for k in range(16):
        a.e(f"v_mov_b32 v{8+k}, s{60+2*k}")
    make_srd(a, 92, ws, 0x10000000)
    a.e(f"s_mul_i32 s3, s2, {nw}")
    a.e(f"s_add_u32 s3, s3, {wave}")
    a.e("s_lshl_b32 s3, s3, 6")
    a.e(f"s_add_u32 s3, s3, {off}")
    a.e("v_mov_b32 v7, 0")
    a.e(f"v_cmp_eq_u32 vcc, 0, {lane}")
    a.e("s_and_saveexec_b64 s[96:97], vcc")
    for k in range(4):
        a.e(f"buffer_store_dwordx4 v[{8+4*k}:{11+4*k}], v7, s[92:95], s3 offen offset:{16*k}")
```

```python
import sys
sys.path.insert(0, "gen")
from asmlib import *
from layout import *
from conv import Conv
from aux import gen_aux
from front import *

RS = 1056
LDS_P = 131072
LDS_MX = 139264
LDS_FG = LDS_MX + 512
LDS_ML = LDS_MX + 1024
LDS_HALO = LDS_ML + 1024
LDS_TAP = LDS_HALO + 2048
LDS_STT = LDS_TAP + 3072
LDS_ATT = 163840
ES = 272
NA = 12
BIG = 2.0 ** 100
SPIN = 200000
FK = [0, 24, 32, 36, 40, 42, 46]

def emit_interval(a, mfmas, fill):
    for i, m in enumerate(mfmas):
        if m is not None:
            a.e(m)
        for f in fill.get(i, []):
            a.e(f)

def conv_addr(a, NR, row0):
    a.e("v_lshrrev_b32 v12, 5, v2")
    a.e(f"v_mul_u32_u24 v12, {NR}, v12")
    a.e(f"v_add_u32 v12, {row0}, v12")
    a.e("v_and_b32 v13, 31, v2")
    a.e("v_lshlrev_b32 v13, 4, v13")
    a.e("v_lshl_add_u32 v14, v12, 9, v13")
    a.e("s_and_b32 s26, s25, 3")
    a.e("s_lshl_b32 s26, s26, 15")
    a.e("v_add_u32 v4, s26, v14")
    a.e("v_add_u32 v7, s49, v14")
    a.e("v_and_b32 v14, 4, v12")
    a.e("v_lshlrev_b32 v14, 5, v14")
    a.e("v_xor_b32 v8, v7, v14")
    a.e(f"v_add_u32 v10, {LDS_TAP}, v13")
    a.e(f"v_add_u32 v13, {LDS_HALO}, v13")
    a.e("v_cmp_eq_u32 vcc, 0, v12")
    a.e("v_subrev_u32 v5, 1024, v4")
    a.e(f"v_add_u32 v6, {512*NR}, v4")
    a.e("v_cndmask_b32 v5, v5, v13, vcc")
    a.e(f"v_cmp_eq_u32 vcc, {64-NR}, v12")
    a.e("v_add_u32 v13, 1024, v13")
    a.e("v_lshlrev_b32 v9, 3, v12")
    a.e("v_cndmask_b32 v6, v6, v13, vcc")
    a.e(f"v_add_u32 v9, {LDS_STT}, v9")

def gen_tail(a, L, st, fs, opt):
    q = Seq(a)
    q.vm = [f"A{k}" for k in range(NA) for _ in range(4)]
    BF = [32, 48]; YR = 64; XR = 96; MR = 16; AL = 24
    acc = lambda k: 128 if k < 24 else 192
    isz = lambda k: k % 24 >= 16
    def bread(k, tb):
        s = k % 24
        r = BF[k % 2] + 4 * tb
        if not isz(k):
            return f"ds_read_b128 v[{r}:{r+3}], v6 offset:{16384*tb + 1024*s}"
        s -= 16
        return f"ds_read_b128 v[{r}:{r+3}], v{28 + s % 4} offset:{8192*tb + 256*(s//4)}"
    a.e("v_add_u32 v6, s48, v3")
    a.e("s_waitcnt lgkmcnt(0)")
    fs(5)
    a.e("s_barrier")
    for tb in range(4): q.l(bread(0, tb), "B0")
    a.e("v_and_b32 v4, 15, v2")
    a.e("v_lshrrev_b32 v5, 4, v2")
    a.e("v_lshlrev_b32 v10, 3, v2")
    a.e("v_mov_b32 v11, 0")
    a.e("v_mov_b32 v12, 1")
    side = {}
    def at(k, g, fn): side.setdefault((k + g // 16, g % 16), []).append(fn)
    def spread(k, g, ops, per=2, skip=lambda g: False):
        n = 16 * k + g
        ops = list(ops)
        while ops:
            if not skip(n % 16):
                for _ in range(per):
                    if ops:
                        o = ops.pop(0)
                        at(n // 16, n % 16, o if callable(o) else (lambda o=o: a.e(o)))
            n += 1
    lo8 = lambda g: g < 8
    spread(0, 8, ["v_and_b32 v13, 7, v4", "v_lshlrev_b32 v13, 1, v13", "v_xor_b32 v13, v13, v5", "v_lshlrev_b32 v13, 4, v13",
                  "v_lshl_add_u32 v13, v4, 9, v13", "v_add_u32 v28, s49, v13", "v_xor_b32 v29, 64, v28", "v_xor_b32 v30, 128, v28",
                  "v_xor_b32 v31, 192, v28",
                  f"s_mul_i32 s26, s16, {64*ES}", "s_add_u32 s26, s26, s48",
                  f"v_mul_u32_u24 v7, {ES}, v4", "v_lshl_add_u32 v7, v5, 4, v7", "v_add_u32 v7, s26, v7",
                  "v_lshrrev_b32 v13, 3, v2", "v_and_b32 v14, 7, v2", f"v_mul_u32_u24 v8, {ES}, v13",
                  "v_lshl_add_u32 v8, v14, 5, v8", "v_add_u32 v8, s26, v8", "v_lshlrev_b32 v9, 4, v14",
                  "v_lshl_add_u32 v9, v13, 10, v9", f"v_add_u32 v13, {LDS_ML}, v10", "v_lshlrev_b32 v4, 2, v4",
                  "s_xor_b32 s26, s31, 1", "s_lshl_b32 s26, s26, 10", f"s_add_u32 s28, s26, {WS_MX}"], skip=lo8)
    mll = [f"buffer_load_dwordx2 v[{MR+2*w}:{MR+2*w+1}], v10, s[12:15], s28 offen offset:{512*w} sc1" for w in range(2)]
    for w in range(2):
        at(3, 9 + 2 * w, lambda w=w: q.v(mll[w], "ML"))
        at(3, 10 + 2 * w, lambda w=w: q.l(f"ds_read_b64 v[{MR+4+2*w}:{MR+5+2*w}], v13 offset:{512*w}", "MLo"))
    at(9, 8, lambda: poll(a, q, L, "ml", mll, [f"v_and_b32 v14, v{MR+1}, v{MR+3}", "v_cmp_gt_i32 vcc, 0, v14", "s_nop 1", "s_cmp_eq_u64 vcc, -1"], "ML"))
    at(9, 8, lambda: q.wait("MLo"))
    spread(9, 9, [f"v_add_f32 v{MR+1}, v{MR+1}, v{MR+3}", f"v_add_f32 v{MR+5}, v{MR+5}, v{MR+7}",
                  f"v_min_f32 v14, v{MR}, v{MR+4}", f"v_sub_f32 v{MR}, v14, v{MR}", f"v_sub_f32 v{MR+4}, v14, v{MR+4}",
                  f"v_exp_f32 v{MR}, v{MR}", f"v_exp_f32 v{MR+4}, v{MR+4}", f"v_mul_f32 v{MR+1}, v{MR+1}, v{MR}",
                  f"v_fmac_f32 v{MR+1}, v{MR+5}, v{MR+4}", f"v_rcp_f32 v{MR+1}, v{MR+1}", "s_nop 0",
                  f"v_mul_f32 v14, v{MR+4}, v{MR+1}", "v_sub_f32 v14, 0, v14"] +
                 [lambda tb=tb: q.l(f"ds_bpermute_b32 v{AL+tb}, v4, v14 offset:{64*tb}", "AL") for tb in range(4)], per=1, skip=lo8)
    for k0 in (15, 39):
        at(k0, 5, lambda: q.wait("AL"))
        for i in range(16):
            for j in range(4):
                r = acc(k0) + 4 * i + j
                at(k0, i + 6, lambda r=r, i=i: a.e(f"v_mul_f32 v{r}, v{r}, v{AL + i % 4}"))
    for i in range(8):
        tb, h = i % 4, i // 4
        k, g0 = (24 + i // 2, 8 + 4 * (i % 2)) if opt.get('y2') else (24 + i, 8)
        src = [128 + 16 * (2 * h + ee) + 4 * tb + j for ee in range(2) for j in range(4)]
        for j in range(4):
            at(k, g0 + j // 2, lambda j=j, i=i, src=src: a.e(f"v_cvt_pk_bf16_f32 v{YR+4*i+j}, v{src[2*j]}, v{src[2*j+1]}"))
        at(k, g0 + 2, lambda i=i: q.v(f"buffer_store_dwordx4 v[{YR+4*i}:{YR+4*i+3}], v3, s[12:15], s{54 + i//4} offen offset:{1024*(i%4)} sc1", "Yst"))
    KF, KL, KC, KX, KU = opt.get('k', (34, 37, 40, 37, 46))
    at(KF, 9, lambda: q.v("buffer_store_dword v12, v11, s[12:15], s56 offen sc1", need=("Yst",)))
    yl = "buffer_load_dword v14, v11, s[12:15], s57 offen sc1"
    at(KL, 9, lambda: q.v(yl, "yf"))
    for i in range(8):
        def xl(i=i):
            a.e(f"s_add_u32 s26, s58, {8192*i}")
            q.v(f"buffer_load_dwordx4 v[{XR+4*i}:{XR+4*i+3}], v9, s[32:35], s26 offen", f"X{i}")
        at(KX, 1 + 4 * i, xl)
    def gety():
        poll(a, q, L, "y", [yl], ["v_readfirstlane_b32 s26, v14", "s_cmp_eq_u32 s26, 1"], "yf")
        a.e("s_xor_b32 s54, s54, 0x8000")
        a.e("s_xor_b32 s55, s55, 0x8000")
        a.e("s_mov_b32 s43, 0xffff0000")
    at(KC, 7, gety)
    for i in range(8):
        at(KC, 9 + 2 * i, lambda i=i: q.v(f"buffer_load_dwordx4 v[{YR+4*i}:{YR+4*i+3}], v3, s[12:15], s{54 + i//4} offen offset:{1024*(i%4)} sc1", f"Y{i}"))
    ops = []
    for i in range(8):
        tb, h = i % 4, i // 4
        for j in range(4):
            o = 128 + 16 * (2 * h + j // 2) + 4 * tb + 2 * (j % 2)
            ops.append(lambda o=o, i=i, j=j: q.e(f"v_lshlrev_b32 v{o}, 16, v{YR+4*i+j}", need=(f"Y{i}",)))
            ops.append(f"v_and_b32 v{o+1}, s43, v{YR+4*i+j}")
    spread(KU, 1, ops, per=(2 if KU < 46 else 3), skip=lambda g: g < 8 and g % 2 == 0)
    for k in range(48):
        if k == 41: a.e("s_barrier")
        if k == 0: st(5)
        if k in FK: fs(6 + FK.index(k))
        q.wait(f"A{k}", f"B{k}")
        g = 0
        for nb in range(4):
            for tb in range(4):
                d = acc(k) + 16 * nb + 4 * tb; r = areg(k, nb); b = BF[k % 2] + 4 * tb
                c = "0" if k % 24 == 0 else f"v[{d}:{d+3}]"
                a.e(f"{M16} v[{d}:{d+3}], a[{r}:{r+3}], v[{b}:{b+3}], {c}")
                if g < 8 and g % 2 == 0 and k + 1 < 48:
                    q.l(bread(k + 1, g // 2), f"B{k+1}")
                if k >= 1 and k - 1 + NA < 48 and g < 8 and g % 2 == 1:
                    aload(a, q, k - 1 + NA, g // 2)
                for fn in side.pop((k, g), []): fn()
                g += 1
    assert not side, side.keys()
    st(6); fs(13)
    for nb in range(4):
        for tb in range(4):
            d = 192 + 16 * nb + 4 * tb; y = d - 64
            for j in (0, 2):
                a.e(f"v_pk_add_f32 v[{d+j}:{d+j+1}], v[{d+j}:{d+j+1}], v[{y+j}:{y+j+1}]")
            q.l(f"ds_write_b128 v7, v[{d}:{d+3}] offset:{16*ES*tb + 64*nb}", "Ew")
    XF = 32
    for i in range(8):
        q.wait(f"X{i}")
        for k in range(4):
            a.e(f"v_lshlrev_b32 v{XF+8*i+2*k}, 16, v{XR+4*i+k}")
            a.e(f"v_and_b32 v{XF+8*i+2*k+1}, s43, v{XR+4*i+k}")
        if i == 1:
            q.wait("Ew")
            fs(14)
        if i >= 1:
            for ii in ([0, 1] if i == 1 else [i]):
                for h in range(2):
                    r = 128 + 8 * ii + 4 * h
                    q.l(f"ds_read_b128 v[{r}:{r+3}], v8 offset:{8*ES*ii + 16*h}", f"E{ii}")
    for i in range(8):
        q.wait(f"E{i}")
        for k in range(4):
            r = 128 + 8 * i + 2 * k
            a.e(f"v_pk_add_f32 v[{r}:{r+1}], v[{r}:{r+1}], v[{XF+8*i+2*k}:{XF+8*i+2*k+1}]")
        for k in range(4):
            r = 128 + 8 * i + 2 * k
            a.e(f"v_cvt_pk_bf16_f32 v{XR+4*i+k}, v{r}, v{r+1}")
        a.e(f"s_add_u32 s26, s58, {8192*i}")
        q.v(f"buffer_store_dwordx4 v[{XR+4*i}:{XR+4*i+3}], v9, s[36:39], s26 offen")

def areg(k, nb):
    return 64 + 16 * ((k + 7) % NA) + 4 * nb

def aload(a, q, k, nb):
    s = k % 24
    if nb == 0:
        if s < 16:
            a.e(f"s_add_u32 s59, {'s52' if k < 24 else 's53'}, {524288 + 4096*s}")
        else:
            a.e(f"s_add_u32 s59, {'s50' if k < 24 else 's51'}, {4096*(s-16)}")
    r = areg(k, nb)
    q.v(f"buffer_load_dwordx4 a[{r}:{r+3}], v3, s[12:15], s59 offen offset:{1024*nb} sc1", f"A{k}")

def gen_attn(a, name, stamp=False, opt=None):
    opt = opt or {}
    nP = 16
    L = lambda s: f"{name}_{s}"
    st = Stamper(a, stamp == 1)
    fs = Fine(a, stamp == 2)
    ff = Fine(a, stamp == 3)
    kernel_begin(a, name)
    a.e("s_cmp_ge_u32 s2, 256")
    a.e(f"s_cbranch_scc1 {L('end')}")
    a.e(f"s_load_dwordx2 s[4:5], s[0:1], {KA['ws']}")
    a.e(f"s_load_dwordx2 s[6:7], s[0:1], {KA['x']}")
    a.e(f"s_load_dwordx2 s[40:41], s[0:1], {KA['wq']}")
    a.e(f"s_load_dwordx2 s[8:9], s[0:1], {KA['wk']}")
    a.e(f"s_load_dwordx2 s[96:97], s[0:1], {KA['wup']}")
    a.e(f"s_load_dwordx2 s[44:45], s[0:1], {KA['dw']}")
    a.e(f"s_load_dwordx4 s[48:51], s[0:1], {KA['out']}")
    a.e(f"s_load_dwordx4 s[52:55], s[0:1], {KA['wv']}")
    a.e(f"s_load_dwordx4 s[56:59], s[0:1], {KA['wdn']}")
    a.e("s_and_b32 s20, s2, 7")
    a.e("s_lshl_b32 s20, s20, 5")
    a.e("s_lshr_b32 s21, s2, 3")
    a.e("s_add_u32 s31, s20, s21")
    a.e("s_lshr_b32 s21, s31, 7")
    a.e("s_and_b32 s22, s31, 1")
    a.e("s_bfe_u32 s23, s31, 0x60001")
    a.e("v_lshrrev_b32 v1, 6, v0")
    a.e("v_and_b32 v2, 63, v0")
    a.e("v_readfirstlane_b32 s16, v1")
    a.e("v_lshlrev_b32 v3, 4, v2")
    a.e("s_mul_i32 s24, s21, 4096000")
    a.e("s_sub_u32 s25, 63, s22")
    a.e("s_lshl_b32 s27, s23, 16")
    a.e("s_waitcnt lgkmcnt(0)")
    st(0); ff(0)
    def fin_srd(d, n):
        a.e(f"s_and_b32 s{d+1}, s{d+1}, 0xffff")
        a.e(f"s_mov_b32 s{d+2}, {n}")
        a.e(f"s_mov_b32 s{d+3}, 0x00020000")
    q = Seq(a)
    fin_srd(40, 524288); fin_srd(8, 524288)
    m_issue(a, q)
    srd_off(a, 32, 6, "s24", 4096000)
    a.e("v_lshrrev_b32 v4, 2, v2")
    a.e("v_and_b32 v5, 3, v2")
    a.e("v_lshlrev_b32 v5, 4, v5")
    a.e("v_lshl_add_u32 v4, v4, 10, v5")
    a.e("s_lshl_b32 s26, s16, 14")
    a.e("s_add_u32 s26, s26, s27")
    for s_ in range(16):
        q.v(f"buffer_load_dwordx4 v[{16+4*s_}:{19+4*s_}], v4, s[32:35], s26 offen offset:{64*s_}", f"x{s_}")
    fin_srd(96, 1048576); fin_srd(44, 5120)
    make_srd(a, 12, 4, 0x4000000)
    make_srd(a, 92, 50, 256)
    srd_off(a, 36, 48, "s24", 4096000)
    touches(a, q, L)
    a.e("v_mov_b32 v12, 0")
    a.e("v_lshlrev_b32 v13, 2, v2")
    a.e("s_lshl_b32 s26, s31, 2")
    a.e("s_add_u32 s26, s26, s16")
    a.e("s_lshl_b32 s28, s26, 8")
    a.e(f"s_add_u32 s28, s28, {WS_MX}")
    q.v("buffer_store_dword v12, v13, s[12:15], s28 offen sc1", "St")
    a.e("s_lshl_b32 s28, s31, 5")
    a.e("s_add_u32 s28, s28, s16")
    a.e("s_lshl_b32 s28, s28, 2")
    a.e(f"s_add_u32 s28, s28, {WS_FL}")
    q.v("buffer_store_dword v12, v12, s[12:15], s28 offen sc1", "St")
    mfin = m_tile(a, q)
    ff(1)
    a.e("s_cmp_lt_u32 s23, 63")
    a.e(f"s_cbranch_scc1 {L('main')}")
    a.e("s_nop 7")
    vm0, lg0 = list(q.vm), list(q.lg)
    mfin()
    q.all()
    a.e("s_barrier")
    signal(a, L, "sig1a", 0, 0)
    a.e("s_lshl_b32 s20, s21, 1")
    a.e("s_add_u32 s20, s20, s22")
    gen_aux(a, L, st)
    for k in range(5, 7): st(k)
    for k in range(15): fs(k)
    for k in range(2, 15): ff(k)
    a.e(f"s_branch {L('fin')}")
    a.label(L("main"))
    q.vm, q.lg = vm0, lg0
    gen_front(a, q, L, st, ff, mfin)
    st(2); ff(10)
    a.e("s_lshl_b32 s26, s22, 2")
    a.e("s_add_u32 s26, s26, s16")
    a.e("s_lshl_b32 s53, s26, 16")
    a.e(f"s_add_u32 s53, s53, {WS_W3}")
    a.e("s_xor_b32 s52, s53, 0x40000")
    a.e("s_lshl_b32 s58, s26, 7")
    a.e("s_add_u32 s58, s58, s27")
    a.e("s_lshl_b32 s54, s31, 2")
    a.e("s_add_u32 s54, s54, s16")
    a.e("s_lshl_b32 s54, s54, 13")
    a.e(f"s_add_u32 s54, s54, {WS_YX}")
    a.e("s_add_u32 s55, s54, 4096")
    a.e("s_lshl_b32 s26, s22, 15")
    a.e("s_add_u32 s50, s52, s26")
    a.e("s_add_u32 s51, s53, s26")
    a.e("s_add_u32 s26, s25, 2")
    a.e("s_and_b32 s26, s26, 3")
    a.e("s_lshl_b32 s48, s26, 15")
    a.e("s_add_u32 s26, s25, 1")
    a.e("s_and_b32 s26, s26, 3")
    a.e("s_lshl_b32 s49, s26, 15")
    a.e("s_lshl_b32 s56, s31, 5")
    a.e("s_add_u32 s56, s56, s16")
    a.e("s_lshl_b32 s56, s56, 2")
    a.e(f"s_add_u32 s56, s56, {WS_FL}")
    a.e("s_xor_b32 s57, s56, 128")
    a.e("s_mov_b32 s17, s25")
    a.e("s_cmp_ge_u32 s16, 2")
    a.e(f"s_cbranch_scc1 {L('pv')}")

    def dma_group():
        return "s_and_b32 m0, s18, 0x1ffff", [f"buffer_load_dwordx4 v3, s[8:11], s18 offen offset:{1024*j} sc1 lds" for j in range(4)]
    def dma_tile():
        for g in range(4):
            pre, ld = dma_group()
            a.e(pre); a.e("s_nop 0")
            for x in ld: a.e(x)
            a.e(f"s_add_u32 s18, s18, {4096 if g < 3 else 32768 - 3*4096}")
    def place_dma(fill, gaps):
        k = 0
        for g in range(4):
            pre, ld = dma_group()
            fill.setdefault(gaps[k] - 1, []).append(pre)
            for j in range(4):
                fill.setdefault(gaps[k], []).append(ld[j]); k += 1
            fill.setdefault(gaps[k - 1] + 1, []).append(f"s_add_u32 s18, s18, {4096 if g < 3 else 32768 - 3*4096}")
    auxl = "buffer_load_dword v14, v11, s[92:95], 0 offen offset:128 sc1"
    auxc = ["v_readfirstlane_b32 s26, v14", "s_cmp_eq_u32 s26, 256"]

    KB = [32, 96]; S = 160; NEGM = 176; E = 192; PK = 200; LS = 204
    VK = 8; VPW = 9; TMP = 10
    a.e("v_and_b32 v4, 15, v2")
    a.e("v_lshrrev_b32 v5, 4, v2")
    a.e("v_and_b32 v6, 0x27, v2")
    a.e("v_and_b32 v7, 8, v2")
    a.e("v_lshl_add_u32 v6, v7, 1, v6")
    a.e("v_and_b32 v7, 16, v2")
    a.e("v_lshrrev_b32 v7, 1, v7")
    a.e("v_add_lshl_u32 v6, v6, v7, 4")
    a.e("s_lshl_b32 s29, s16, 14")
    a.e(f"v_add_u32 v{VK}, s29, v6")
    a.e("s_lshl_b32 s29, s16, 11")
    a.e(f"s_add_u32 s29, s29, {LDS_P}")
    a.e(f"v_lshl_add_u32 v{VPW}, v2, 3, s29")
    for i in range(4):
        a.e(f"v_mov_b32 v{LS+i}, 0")
    a.e(f"v_add_u32 v7, {LDS_XS}, v3")
    def kread(par, s, imm):
        r = KB[par] + 4 * s
        return f"ds_read_b128 v[{r}:{r+3}], v{VK} offset:{imm + 1024*s}"
    def chain(par, qb, c0):
        out = []
        for s in range(16):
            k = KB[par] + 4 * s; q = 64 * qb + 4 * s; d = S + 4 * qb
            c = c0 if s == 0 else f"v[{d}:{d+3}]"
            out.append(f"{M16} v[{d}:{d+3}], v[{k}:{k+3}], a[{q}:{q+3}], {c}")
        return out
    q = Seq(a)
    def qread(n):
        qb, s = n // 16, n % 16
        q.l(f"ds_read_b128 a[{64*qb+4*s}:{64*qb+4*s+3}], v7 offset:{16384*(s//4) + 4096*qb + 1024*(s%4)}", f"Q{n}")
        if qb == 0: q.l(kread(0, s, 0), f"Q{n}")
    mf = [m for qb in range(4) for m in chain(0, qb, "0")]
    QL = 6
    for n in range(QL): qread(n)
    for n in range(64):
        if n + QL < 64: qread(n + QL)
        q.e(mf[n], need=(f"Q{n}",))
    a.e("s_barrier")
    a.e("s_nop 7")
    for qb in range(4):
        d = S + 4 * qb
        a.e(f"v_max3_f32 v{E+qb}, v{d}, v{d+1}, v{d+2}")
        a.e(f"v_max_f32 v{E+qb}, v{E+qb}, v{d+3}")
    def group_reduce(r, t, op):
        for sw in ("v_permlane16_swap_b32", "v_permlane32_swap_b32"):
            for qb in range(4):
                a.e(f"v_mov_b32 v{t+qb}, v{r+qb}")
            a.e("s_nop 1")
            for qb in range(4):
                a.e(f"{sw} v{r+qb}, v{t+qb}")
            a.e("s_nop 1")
            for qb in range(4):
                a.e(f"{op} v{r+qb}, v{r+qb}, v{t+qb}")
    group_reduce(E, E + 4, "v_max_f32")
    a.e("s_lshl_b32 s29, s16, 8")
    a.e(f"s_add_u32 s29, s29, {LDS_MX}")
    a.e(f"v_lshl_add_u32 v{TMP}, v4, 4, s29")
    a.e(f"ds_write_b128 v{TMP}, v[{E}:{E+3}]")
    a.e(f"v_xor_b32 v{TMP}, 256, v{TMP}")
    a.e("s_waitcnt lgkmcnt(0)")
    a.e("s_barrier")
    a.e(f"ds_read_b128 v[{E+4}:{E+7}], v{TMP}")
    for s in range(8):
        a.e(kread(1, s, 32768))
    a.e("s_waitcnt lgkmcnt(8)")
    for qb in range(4):
        a.e(f"v_max_f32 v{E+qb}, v{E+qb}, v{E+4+qb}")
    for qb in range(4):
        for j in range(4):
            a.e(f"v_sub_f32 v{NEGM+4*qb+j}, 0, v{E+qb}")
    a.e("s_waitcnt lgkmcnt(4)")
    for s in range(8, 16):
        a.e(kread(1, s, 32768))
    for qb in range(4):
        for j in range(4):
            a.e(f"v_add_f32 v{S+4*qb+j}, v{S+4*qb+j}, v{NEGM+4*qb}")
    def softmax_ops(qb, par):
        e = E + 4 * (qb % 2); p = PK + 2 * (qb % 2); d = S + 4 * qb
        ex = [f"v_exp_f32 v{e+j}, v{d+j}" for j in range(4)]
        ad = [f"v_add_f32 v{LS+qb}, v{LS+qb}, v{e+j}" for j in range(4)]
        cv = [f"v_cvt_pk_bf16_f32 v{p+j}, v{e+2*j}, v{e+2*j+1}" for j in range(2)]
        wr = f"ds_write_b64 v{VPW}, v[{p}:{p+1}] offset:{par*4096 + qb*512}"
        return ex, ad, cv, wr
    ex, ad, cv, wr = softmax_ops(0, 0)
    for x in ex + ["s_nop 0"] + cv + ad + [wr]: a.e(x)
    a.e("s_waitcnt lgkmcnt(1)")
    fill = {}
    ops = []
    for qb in range(1, 4):
        ex, ad, cv, wr = softmax_ops(qb, 0)
        ops += ex + [ad[0]] + cv + ad[1:] + [wr]
    for i, x in enumerate(ops):
        fill.setdefault(i * 15 // len(ops), []).append(x)
    emit_interval(a, chain(1, 0, f"v[{NEGM}:{NEGM+3}]"), fill)
    a.e("s_waitcnt lgkmcnt(0)")
    a.e("s_sub_u32 s17, s17, 1")
    a.e("s_barrier")

    def qk_interval(par):
        mf = []
        for c in range(4):
            qb = (c + 1) % 4
            mf += chain(par if c < 3 else par ^ 1, qb, f"v[{NEGM+4*qb}:{NEGM+4*qb+3}]")
        fill = {}
        if par == 1:
            fill.setdefault(0, []).append(f"v_xor_b32 v{VK}, 0x10000, v{VK}")
        imm = 32768 * (par ^ 1)
        rgaps = [1, 2, 3, 12, 13, 14, 16, 17, 18, 28, 29, 30, 32, 33, 34, 35]
        for s in range(16):
            fill.setdefault(rgaps[s], []).append(kread(par ^ 1, s, imm))
        for c in range(4):
            b = 16 * c
            ex, ad, cv, wr = softmax_ops(c, par)
            if c == 3:
                fill.setdefault(b + 0, []).append("s_sub_u32 s17, s17, 1")
                fill.setdefault(b + 1, []).append("s_nop 0")
                fill.setdefault(b + 2, []).append("s_nop 0")
            for j in range(4):
                fill.setdefault(b + 4 + j, []).append(ex[j])
            fill.setdefault(b + 8, []).extend(cv)
            fill.setdefault(b + 9, []).extend([wr])
            fill.setdefault(b + 10, []).extend(ad[:2])
            fill.setdefault(b + 11, []).extend(ad[2:])
        fill.setdefault(47, []).append("s_waitcnt lgkmcnt(1)")
        if par == 1:
            fill.setdefault(44, []).append("s_cmp_lt_u32 s17, 16")
            fill.setdefault(45, []).extend([f"s_cbranch_scc1 {L('touch')}", L("touch_ret") + ":"])
        fill.setdefault(62, []).append("s_cmp_eq_u32 s17, 0")
        fill.setdefault(63, []).extend(["s_waitcnt lgkmcnt(0)", "s_barrier"])
        emit_interval(a, mf, fill)

    a.e("v_mov_b32 v11, 0")
    a.e("v_lshlrev_b32 v7, 7, v2")
    st(3); ff(11)
    a(".p2align 6")
    a.label(L("qk_loop"))
    qk_interval(1)
    a.e(f"s_cbranch_scc1 {L('qk_done')}")
    qk_interval(0)
    a.e(f"s_cbranch_scc0 {L('qk_loop')}")
    a.label(L("qk_done"))
    st(4); fs(0)
    q = Seq(a)
    group_reduce(LS, E, "v_add_f32")
    a.e(f"v_mov_b32 v12, v{NEGM}")
    a.e(f"v_mov_b32 v13, v{LS}")
    for qb in range(1, 4):
        a.e(f"v_cmp_eq_u32 vcc, {qb}, v5")
        a.e("s_nop 1")
        a.e(f"v_cndmask_b32 v12, v12, v{NEGM+4*qb}, vcc")
        a.e(f"v_cndmask_b32 v13, v13, v{LS+qb}, vcc")
    a.e("v_or_b32 v13, 0x80000000, v13")
    a.e("s_lshl_b32 s28, s16, 9")
    a.e("s_lshl_b32 s29, s31, 10")
    a.e("s_add_u32 s29, s29, s28")
    a.e(f"s_add_u32 s29, s29, {WS_MX}")
    a.e(f"s_add_u32 s28, s28, {LDS_ML}")
    a.e(f"v_lshlrev_b32 v{TMP}, 3, v2")
    q.v(f"buffer_store_dwordx2 v[12:13], v{TMP}, s[12:15], s29 offen sc1", "MLst")
    a.e(f"v_add_u32 v{TMP}, s28, v{TMP}")
    q.l(f"ds_write_b64 v{TMP}, v[12:13]")
    q.all(vm=False)
    fs(1)
    a.e("s_barrier")
    fs(2)
    a.e("s_mul_i32 s28, s16, 24")
    conv_addr(a, 12, "s28")
    cv = Conv(a, q, 12)
    cv.prep()
    fs(3)
    for j in range(16):
        cv.row(j)
        if j >= 2 and j < 14:
            for nb in range(4): aload(a, q, j - 2, nb)
    fs(4)
    a.e(f"s_branch {L('tail')}")
    a.label(L("touch"))
    a.e("s_lshr_b32 s26, s17, 1")
    def tl(srd, so): a.e(f"buffer_load_dword v15, v7, s[{srd}:{srd+3}], {so} offen")
    def b_code():
        a.e(auxl)
        a.e("s_getpc_b64 s[28:29]")
        a.label(L("pc0"))
        a.e(f"s_sub_u32 s28, s28, {L('pc0')} - {L('qk_done')}")
        a.e("s_subb_u32 s29, s29, 0")
        a.e("s_lshr_b32 s30, s2, 3")
        a.e("s_lshl_b32 s30, s30, 1")
        a.e("s_add_u32 s30, s30, s16")
        a.e("s_lshl_b32 s30, s30, 10")
        a.e("v_lshl_add_u32 v12, v2, 4, s30")
        a.e(f"v_min_u32 v12, {L('end')} - {L('qk_done')}, v12")
        a.e("global_load_dword v15, v12, s[28:29]")
    def b_w(part):
        def f():
            if part == 1:
                a.e("s_waitcnt vmcnt(0)")
                poll(a, Seq(a), L, "qk_aux", [auxl], auxc, "aux")
            a.e("s_lshr_b32 s30, s2, 3")
            a.e("s_lshl_b32 s30, s30, 1")
            a.e("s_add_u32 s30, s30, s16")
            a.e("s_lshl_b32 s30, s30, 13")
            a.e(f"s_add_u32 s30, s30, {WS_W3 + 524288*part}")
            tl(12, "s30")
        return f
    ST = 212
    def b_small():
        a.e("s_mul_i32 s28, s16, 34")
        a.e("s_lshl_b32 s29, s23, 6")
        a.e("s_add_u32 s28, s28, s29")
        a.e("s_sub_u32 s28, s28, 2")
        a.e(f"v_add_u32 v{ST+16}, s28, v2")
        a.e(f"v_max_i32 v12, 0, v{ST+16}")
        a.e(f"v_min_i32 v12, {T-1}, v12")
        a.e("v_lshlrev_b32 v12, 3, v12")
        a.e("s_lshl_b32 s29, s21, 15")
        for ct in range(8):
            a.e(f"s_add_u32 s30, s29, {WS_ST + 0x10000*ct}")
            a.e(f"buffer_load_dwordx2 v[{ST+2*ct}:{ST+2*ct+1}], v12, s[12:15], s30 offen sc1")
        a.e("s_lshl_b32 s28, s16, 1")
        a.e("s_add_u32 s28, s28, s23")
        a.e("s_sub_u32 s28, s28, 1")
        a.e("s_max_i32 s28, s28, 0")
        a.e("s_min_i32 s28, s28, 62")
        a.e("s_sub_u32 s28, s28, s23")
        a.e("s_lshl_b32 s28, s28, 1")
        a.e("s_add_u32 s28, s28, s31")
        a.e("s_lshl_b32 s28, s28, 16")
        a.e("s_xor_b32 s29, s16, 1")
        a.e(f"s_mul_i32 s29, s29, {62*512}")
        a.e("s_add_u32 s28, s28, s29")
        a.e(f"s_add_u32 s28, s28, {WS_GU}")
        a.e("s_lshl_b32 s29, s16, 10")
        a.e(f"s_add_u32 m0, s29, {LDS_HALO}")
        a.e("v_lshrrev_b32 v12, 5, v2")
        a.e("buffer_load_dwordx4 v3, s[12:15], s28 offen sc1 lds")
        a.e("v_lshl_add_u32 v12, v12, 9, v3")
        a.e("s_lshl_b32 s28, s22, 9")
        for i in range(3):
            a.e(f"s_mov_b32 m0, {LDS_TAP + 1024*i}")
            a.e(f"s_add_u32 s29, s28, {2048*i}")
            a.e("buffer_load_dwordx4 v12, s[44:47], s29 offen lds")
    def b_stat():
        a.e("s_waitcnt vmcnt(0)")
        for ct in range(1, 8):
            a.e(f"v_add_f32 v{ST}, v{ST}, v{ST+2*ct}")
            a.e(f"v_add_f32 v{ST+1}, v{ST+1}, v{ST+2*ct+1}")
        a.e(f"v_mul_f32 v{ST}, {f2u(1/512)}, v{ST}")
        a.e(f"v_mul_f32 v{ST+1}, {f2u(1/512)}, v{ST+1}")
        a.e(f"v_fma_f32 v{ST+1}, -v{ST}, v{ST}, v{ST+1}")
        a.e(f"v_max_f32 v{ST+1}, 0, v{ST+1}")
        a.e(f"v_add_f32 v{ST+1}, {f2u(1e-5)}, v{ST+1}")
        a.e(f"v_rsq_f32 v{ST+1}, v{ST+1}")
        a.e(f"v_cmp_gt_u32 vcc, {T}, v{ST+16}")
        a.e(f"v_mul_f32 v{ST}, v{ST}, v{ST+1}")
        a.e(f"v_sub_f32 v{ST}, 0, v{ST}")
        a.e(f"v_cndmask_b32 v{ST+2}, 0, v{ST+1}, vcc")
        a.e(f"v_cndmask_b32 v{ST+3}, 0, v{ST}, vcc")
        a.e(f"s_mul_i32 s28, s16, {34*8}")
        a.e(f"s_add_u32 s28, s28, {LDS_STT}")
        a.e("v_lshl_add_u32 v12, v2, 3, s28")
        a.e(f"ds_write_b64 v12, v[{ST+2}:{ST+3}]")
    def b_x(r0):
        def f():
            a.e("s_lshl_b32 s30, s22, 1")
            a.e("s_add_u32 s30, s30, s16")
            a.e("s_lshl_b32 s30, s30, 14")
            a.e("s_add_u32 s30, s30, s27")
            a.e(f"s_add_u32 s30, s30, {r0*1024}")
            tl(32, "s30")
        return f
    blocks = {7: [b_code], 6: [b_w(1)], 5: [b_small], 4: [b_w(0)], 3: [b_stat], 2: [b_x(0)], 1: [b_x(8)]}
    for kx, fns in blocks.items():
        a.e(f"s_cmp_lg_u32 s26, {kx}")
        a.e(f"s_cbranch_scc1 {L('touch%d' % kx)}")
        for f in fns: f()
        a.e(f"s_branch {L('touch_ret')}")
        a.label(L("touch%d" % kx))
    a.e(f"s_branch {L('touch_ret')}")

    VB = [16, 80]; PR = [144, 160]
    VV = 8; VPR = 9
    def oreg(db, qb):
        return (f"a[{4*qb}:{4*qb+3}]", None) if db == 0 else (f"v[{16*db+4*qb}:{16*db+4*qb+3}]", 16 * db + 4 * qb)
    a.label(L("pv"))
    a.e("s_sub_u32 s19, s16, 2")
    a.e("s_lshl_b32 s18, s19, 14")
    a.e("s_add_u32 s18, s18, 32768")
    signal(a, L, "sig3", 2, 128)
    for t in range(2): dma_tile()
    for i in range(16, 256, 2):
        a.e(f"v_pk_mul_f32 v[{i}:{i+1}], 0, 0")
    for i in list(range(16)) + list(range(VB[1] + 56, VB[1] + 64)) + list(range(PR[1], PR[1] + 16)):
        a.e(f"v_accvgpr_write_b32 a{i}, 0")
    a.e("v_lshrrev_b32 v4, 5, v2")
    a.e("v_lshlrev_b32 v4, 8, v4")
    a.e("v_and_b32 v5, 2, v2")
    a.e("v_lshl_add_u32 v4, v5, 6, v4")
    a.e("v_and_b32 v5, 28, v2")
    a.e("v_lshl_add_u32 v4, v5, 2, v4")
    a.e("v_and_b32 v5, 1, v2")
    a.e("v_lshl_add_u32 v4, v5, 3, v4")
    a.e("s_lshl_b32 s29, s19, 13")
    a.e(f"v_add_u32 v{VV}, s29, v4")
    a.e("s_add_u32 s29, s29, s48")
    a.e("v_add_u32 v10, s29, v3")
    a.e("s_lshl_b32 s28, s31, 16")
    a.e(f"s_add_u32 s28, s28, {WS_GU}")
    a.e("s_sub_u32 s28, s28, s10")
    a.e("s_add_u32 s98, s4, s28")
    a.e("s_addc_u32 s99, s5, 0")
    a.e("s_and_b32 s99, s99, 0xffff")
    a.e("s_add_u32 s100, s10, 65536")
    a.e(f"s_mov_b32 s29, {LDS_P}")
    a.e(f"v_lshl_add_u32 v{VPR}, v2, 3, s29")
    a.e("v_mov_b32 v11, 0")
    a.e("s_barrier")
    a.e("s_waitcnt vmcnt(16)")
    a.e("s_barrier")
    def vread(par, db, kb):
        r = VB[par] + 4 * db + 2 * kb
        return f"ds_read_b64_tr_b16 a[{r}:{r+1}], v{VV} offset:{32768*par + 16384*kb + 512*db}"
    def pvm(par, db):
        out = []
        for qb in range(4):
            d = oreg(db, qb)[0]; v = VB[par] + 4 * db; p = PR[par] + 4 * qb
            out.append(f"{M16} {d}, a[{v}:{v+3}], a[{p}:{p+3}], {d}")
        return out
    dma_tile()
    for db in range(16):
        for kb in range(2):
            a.e(vread(0, db, kb))
        if db % 4 == 3: a.e("s_waitcnt lgkmcnt(4)")
    a.e(f"s_waitcnt vmcnt({nP}) lgkmcnt(0)")
    a.e("s_sub_u32 s17, s17, 1")
    a.e("s_barrier")

    pvq = []
    def pv_interval(par, last=False):
        mf = pvm(par, 14) + pvm(par, 15)
        for db in range(16 if last else 14):
            mf += pvm(par ^ 1, db)
        fill = {}
        for qb in range(4):
            p = PR[par ^ 1] + 4 * qb
            fill.setdefault(qb // 2, []).append(f"ds_read2st64_b64 a[{p}:{p+3}], v{VPR} offset0:{8*(par^1)+qb} offset1:{8*(par^1)+4+qb}")
        fill.setdefault(7, []).append("s_waitcnt lgkmcnt(0)")
        if last:
            fs(0)
            q = Seq(a)
            ops = []
            for sp in range(8):
                for qb in range(4):
                    o = []
                    if sp == 0:
                        o += [f"v_accvgpr_read_b32 v{12+j}, a{4*qb+j}" for j in range(4)]
                        lo = 12
                    else:
                        lo = oreg(2 * sp, qb)[1]
                    hi = oreg(2 * sp + 1, qb)[1]
                    t = 4 if sp == 0 else lo
                    o += [f"v_cvt_pk_bf16_f32 v{t}, v{lo}, v{lo+1}", f"v_cvt_pk_bf16_f32 v{t+1}, v{lo+2}, v{lo+3}",
                          f"v_cvt_pk_bf16_f32 v{t+2}, v{hi}, v{hi+1}", f"v_cvt_pk_bf16_f32 v{t+3}, v{hi+2}, v{hi+3}",
                          f"ds_write_b128 v10, v[{t}:{t+3}] offset:{16384*qb + 1024*sp}"]
                    ops += [(8 + 8 * sp + 4 + qb + 5, x) for x in o]
            na = 0
            def put(x):
                if x.startswith("ds_"): q.l(x, "Ow")
                else: a.e(x)
            for i, m in enumerate(mf):
                a.e(m)
                for f in fill.get(i, []): a.e(f)
                if i == 12:
                    a.e("s_waitcnt vmcnt(0)")
                    fs(1)
                    a.e("s_barrier")
                    fs(2)
                if i > 12 and i % 2 == 0 and na < 20:
                    aload(a, q, na // 4, na % 4); na += 1
                if i > 12:
                    n = 0
                    while ops and ops[0][0] <= i and n < 3:
                        put(ops.pop(0)[1]); n += 1
                    if n == 0: a.e("s_nop 0")
            fs(3)
            for _ in range(8):
                aload(a, q, na // 4, na % 4); na += 1
            while ops: put(ops.pop(0)[1])
            pvq.append((q, na))
            return
        if par == 0:
            fill.setdefault(2, []).append(f"v_xor_b32 v{VV}, 0x10000, v{VV}")
        for g, x in enumerate(["s_cmp_eq_u32 s17, 3", "s_cselect_b32 s8, s98, s8", "s_cselect_b32 s9, s99, s9", "s_cselect_b32 s10, s100, s10"]):
            fill.setdefault(3 + g, []).append(x)
        rg = [8 + 3 * (i // 2) + (i % 2) for i in range(32)]
        for i in range(32):
            fill.setdefault(rg[i], []).append(vread(par, i // 2, i % 2))
        place_dma(fill, [10 + 3 * i for i in range(16)])
        fill.setdefault(60, []).append("s_sub_u32 s17, s17, 1")
        fill.setdefault(62, []).append("s_cmp_eq_u32 s17, 0")
        fill.setdefault(63, []).extend([f"s_waitcnt vmcnt({nP}) lgkmcnt(0)", "s_barrier"])
        emit_interval(a, mf, fill)

    st(3); ff(11)
    a(".p2align 6")
    a.label(L("pv_loop"))
    pv_interval(1)
    a.e(f"s_cbranch_scc1 {L('pv_last0')}")
    pv_interval(0)
    a.e(f"s_cbranch_scc0 {L('pv_loop')}")
    pv_interval(1, True)
    a.e(f"s_branch {L('pv_stage')}")
    a.label(L("pv_last0"))
    pv_interval(0, True)
    a.label(L("pv_stage"))
    st(4)
    q, n = pvq[0]
    assert pvq[1][0].vm == q.vm and pvq[1][0].lg == q.lg
    a.e("s_lshl_b32 s28, s19, 3")
    a.e("s_add_u32 s28, s28, 48")
    q.wait("Ow")
    conv_addr(a, 4, "s28")
    cv = Conv(a, q, 4)
    cv.prep()
    for j in range(8):
        cv.row(j)
        for _ in range(4):
            if n < 4 * NA:
                aload(a, q, n // 4, n % 4); n += 1
    assert n == 4 * NA
    fs(4)
    a.label(L("tail"))
    gen_tail(a, L, st, fs, opt)
    a.label(L("fin"))
    if stamp == 1:
        a.e("s_waitcnt vmcnt(0)")
        st(7)
        emit_stamps(a, 8, nw=8, off=WS_STAMP + 0x200000)
    if stamp >= 2:
        a.e("s_waitcnt vmcnt(0)")
        fs(15)
        for k in range(12, 16): ff(k)
        emit_fine(a, off=WS_STAMP + 0x300000)
    a.label(L("end"))
    a.e("s_endpgm")
    kernel_desc(a, name, 512, 256)
    return f"; @launch grid=(256,1,1) block=(256,1,1) lds={LDS_ATT}"
```

```python
import sys
sys.path.insert(0, "gen")
from asmlib import *
from layout import *
RS = 1056
SLOT = 32 * RS

def gen_aux(a, L, st):
    a.e(f"s_load_dwordx4 s[24:27], s[0:1], {KA['wv']}")
    a.e(f"s_load_dwordx4 s[28:31], s[0:1], {KA['wdn']}")
    a.e(f"s_load_dwordx2 s[6:7], s[0:1], {KA['dbg']}")
    a.e("s_waitcnt lgkmcnt(0)")
    make_srd(a, 8, 30, 1048576)
    a.e("s_and_b32 s25, s25, 0xffff")
    a.e("s_and_b32 s27, s27, 0xffff")
    a.e("s_and_b32 s29, s29, 0xffff")
    a.e("s_lshl_b32 s17, s20, 2")
    a.e("s_add_u32 s17, s17, s16")
    a.e("s_lshl_b32 s40, s17, 6")
    a.e("s_lshl_b32 s47, s16, 15")
    a.e("v_lshrrev_b32 v4, 2, v2")
    a.e("v_and_b32 v5, 3, v2")
    a.e("v_lshlrev_b32 v6, 10, v4")
    a.e("v_lshl_add_u32 v6, v5, 4, v6")
    a.e("v_lshrrev_b32 v7, 4, v2")
    a.e("v_and_b32 v8, 3, v4")
    a.e("v_lshl_add_u32 v7, v7, 3, v8")
    a.e("v_lshlrev_b32 v7, 6, v7")
    a.e("v_lshl_add_u32 v7, v5, 3, v7")
    a.e("v_add_u32 v7, s47, v7")
    a.e("v_lshrrev_b32 v9, 1, v2")
    a.e("v_lshlrev_b32 v9, 10, v9")
    a.e("v_and_b32 v10, 1, v2")
    a.e("v_lshl_add_u32 v9, v10, 7, v9")
    a.e("s_lshl_b32 s41, s20, 8")
    a.e("s_lshl_b32 s42, s16, 18")
    a.e("s_add_u32 s41, s41, s42")
    for i in range(8):
        a.e("buffer_load_dword v10, v9, s[8:11], s41 offen")
        a.e("s_add_u32 s41, s41, 32768")
    for part in range(2):
        a.e("s_mov_b32 s41, 0")
        lab = L(f"auxtr{part}")
        a.label(lab)
        a.e("s_add_u32 m0, s47, s41")
        a.e("s_add_u32 s41, s41, 1024")
        a.e("buffer_load_dwordx4 v6, s[8:11], s40 offen lds")
        a.e("s_add_u32 s40, s40, 16384")
        a.e("s_cmp_lt_u32 s41, 32768")
        a.e(f"s_cbranch_scc1 {lab}")
        a.e("s_waitcnt vmcnt(0)")
        for t in range(16):
            for nb in range(2):
                for h in range(2):
                    r = 64 * nb + 4 * t + 2 * h
                    d = f"v[{128+r}:{129+r}]" if part == 0 else f"a[{r}:{r+1}]"
                    a.e(f"ds_read_b64_tr_b16 {d}, v7 offset:{2048*t + 256*h + 32*nb}")
            if t % 2 == 1: a.e("s_waitcnt lgkmcnt(4)")
        a.e("s_waitcnt lgkmcnt(0)")
    a.e("s_barrier")
    st(1)
    a.e("s_mov_b32 s36, s26")
    a.e("s_mov_b32 s37, s27")
    a.e("s_mov_b32 s38, 524288")
    a.e("s_mov_b32 s39, 0x00020000")
    a.e("s_lshl_b32 s45, s16, 13")
    a.e("s_mov_b32 s41, s45")
    a.e("s_mov_b32 s42, 0")
    a.e(f"s_mul_i32 s43, s16, {4*RS}")
    a.e(f"s_mov_b32 s44, {16*RS}")
    a.e(f"s_mul_i32 s52, s16, {8*RS}")
    def dma():
        out = []
        for ee in range(2):
            out.append("s_add_u32 s46, s42, s43" if ee == 0 else "s_add_u32 s46, s46, s44")
            for j in range(4):
                out.append(f"s_add_u32 m0, s46, {j*(RS-1024)}")
                out.append("s_nop 0")
                out.append(f"buffer_load_dwordx4 v3, s[36:39], s41 offen offset:{1024*j} lds")
            out.append(f"s_add_u32 s41, s41, {4096 if ee == 0 else 32768-4096}")
        out.append(f"s_add_u32 s42, s42, {SLOT}")
        out.append(f"s_cmp_eq_u32 s42, {4*SLOT}")
        out.append("s_cselect_b32 s42, 0, s42")
        return out
    for i in range(3):
        for x in dma(): a.e(x)
    a.e("v_and_b32 v4, 15, v2")
    a.e("v_lshrrev_b32 v5, 4, v2")
    a.e(f"v_mul_u32_u24 v4, {RS}, v4")
    a.e("v_lshl_add_u32 v4, v5, 4, v4")
    a.e("v_mov_b32 v9, v4")
    a.e("s_mov_b32 s48, 0")
    a.e("s_lshr_b32 s49, s17, 1")
    a.e("s_lshl_b32 s49, s49, 16")
    a.e("s_and_b32 s50, s17, 1")
    a.e("s_lshl_b32 s50, s50, 11")
    a.e("s_add_u32 s49, s49, s50")
    def rd(t):
        return [f"ds_read_b128 v[{32+8*(t%8)+4*ee}:{35+8*(t%8)+4*ee}], v9 offset:{16*ee*RS + 64*(t%16)}" for ee in range(2)]
    ACC = [16, 104]; LA = 6
    def flush(p):
        out = []
        for nb in range(2):
            for j in range(4):
                out.append(f"v_cvt_pk_bf16_f32 v{96+4*nb+j}, v{ACC[p]+8*nb+2*j}, v{ACC[p]+1+8*nb+2*j}")
            out.append(f"buffer_store_dwordx4 v[{96+4*nb}:{99+4*nb}], v3, s[12:15], s54 offen offset:{1024*nb} sc1")
        out.append("s_mov_b32 s54, s51")
        out.append("s_add_u32 s51, s51, 4096")
        return out
    for i in range(16): a.e(f"v_mov_b32 v{ACC[1]+i}, 0")
    a.e("s_waitcnt vmcnt(8)")
    a.e("s_barrier")
    for t in range(LA):
        for x in rd(t): a.e(x)
    for stage in range(3):
        st(2 + stage)
        B = (lambda r: f"a[{r}:{r+3}]") if stage == 1 else (lambda r: f"v[{128+r}:{131+r}]")
        a.e(f"s_add_u32 s51, s49, {[WS_T2, WS_W3, WS_W3 + 524288][stage]}")
        a.e(f"s_add_u32 s54, s49, {WS_T2 + 524288}")
        if stage == 1:
            a.e("s_waitcnt vmcnt(0)")
            for t in range(16):
                a.e(f"s_add_u32 s50, s49, {WS_T2 + 4096*t}")
                for nb in range(2):
                    r = 128 + 64 * nb + 4 * t
                    a.e(f"buffer_load_dwordx4 v[{r}:{r+3}], v3, s[12:15], s50 offen offset:{1024*nb} sc1")
        a.e("s_mov_b32 s53, 0")
        lab = L(f"auxl{stage}")
        a.label(lab)
        for p in range(2):
            a.e("s_waitcnt vmcnt(10)")
            a.e("s_barrier")
            if p == 1 and stage < 2:
                nx = 28 if stage == 0 else 24
                a.e("s_cmp_eq_u32 s53, 6")
                a.e(f"s_cselect_b32 s36, s{nx}, s36")
                a.e(f"s_cselect_b32 s37, s{nx+1}, s37")
                a.e("s_cselect_b32 s41, s45, s41")
                if stage == 1:
                    a.e("s_cselect_b32 s43, s52, s43")
                    a.e(f"s_cselect_b32 s44, {4*RS}, s44")
            dm = [x for x in dma() if x != "s_nop 0"]
            fl = flush(p ^ 1)
            for t in range(16):
                if t % 2 == 0: a.e(f"s_waitcnt lgkmcnt({2*LA-4})")
                if t == 16 - LA:
                    a.e(f"s_add_u32 s48, s48, {SLOT}")
                    a.e(f"s_cmp_eq_u32 s48, {4*SLOT}")
                    a.e("s_cselect_b32 s48, 0, s48")
                    a.e("v_add_u32 v9, s48, v4")
                k = 0
                for ee in range(2):
                    for nb in range(2):
                        d = ACC[p] + 8 * nb + 4 * ee; r = 32 + 8 * (t % 8) + 4 * ee
                        c = "0" if t == 0 else f"v[{d}:{d+3}]"
                        a.e(f"{M16} v[{d}:{d+3}], v[{r}:{r+3}], {B(64*nb + 4*t)}, {c}")
                        if k < 2:
                            a.e(rd(t + LA)[k])
                            if t >= 2 and fl: a.e(fl.pop(0))
                        if k >= 2 and dm: a.e(dm.pop(0))
                        k += 1
            assert not dm and not fl
        a.e("s_add_u32 s53, s53, 1")
        a.e("s_cmp_lt_u32 s53, 8")
        a.e(f"s_cbranch_scc1 {lab}")
        a.e("s_nop 7")
        for x in flush(1): a.e(x)
    a.e("s_waitcnt vmcnt(0)")
    a.e("s_barrier")
    a.e("s_cmp_lg_u32 s16, 0")
    a.e(f"s_cbranch_scc1 {L('auxend')}")
    make_srd(a, 8, 6, 256)
    a.e("v_mov_b32 v4, 0")
    a.e("v_mov_b32 v5, 1")
    a.e("s_mov_b64 exec, 1")
    a.e("buffer_atomic_add v5, v4, s[8:11], 0 offen offset:128")
    a.e("s_mov_b64 exec, -1")
    a.label(L("auxend"))
```

```python
import sys, math
sys.path.insert(0, "gen")
from asmlib import *
from layout import *

class Conv:
    def __init__(self, a, q, NR):
        self.a, self.q, self.NR = a, q, NR
        self.W = 16
        self.GN = 56
        self.AC = 96
        self.UF = 104
        self.GR = 112
        self.UR = 128
        self.SR = 144
        self.ZP = 152
        self.LA = 3

    def fetch(self, j):
        q, NR = self.q, self.NR
        if j >= NR + 4: return
        va, off = ("v5", j) if j < 2 else ("v6", j - NR - 2) if j >= NR + 2 else ("v4", j - 2)
        r = self.GR + 4 * (j % 4)
        q.l(f"ds_read_b128 v[{r}:{r+3}], {va} offset:{512*off}", f"cg{j}")
        r = self.SR + 2 * (j % 4)
        q.l(f"ds_read_b64 v[{r}:{r+1}], v9 offset:{8*j}", f"cg{j}")
        if j >= 4:
            r = self.UR + 4 * (j % 4)
            q.l(f"ds_read_b128 v[{r}:{r+3}], v7 offset:{512*(j-4)}", f"cg{j}")

    def prep(self):
        a, q, W, GN = self.a, self.q, self.W, self.GN
        for i in range(5):
            q.l(f"ds_read_b128 v[{GN+4*i}:{GN+4*i+3}], v10 offset:{512*i}", f"ct{i}")
        for j in range(self.LA): self.fetch(j)
        a.e("s_mov_b32 s43, 0xffff0000")
        for i in range(5):
            q.wait(f"ct{i}")
            for j in range(4):
                a.e(f"v_lshlrev_b32 v{W+8*i+2*j}, 16, v{GN+4*i+j}")
                a.e(f"v_and_b32 v{W+8*i+2*j+1}, s43, v{GN+4*i+j}")

    def row(self, j):
        a, q = self.a, self.q
        AC, GN, W, UF = self.AC, self.GN, self.W, self.UF
        self.fetch(j + self.LA)
        q.wait(f"cg{j}")
        gn = GN + 8 * (j % 5); gr = self.GR + 4 * (j % 4); ur = self.UR + 4 * (j % 4); sr = self.SR + 2 * (j % 4)
        for k in range(4):
            a.e(f"v_lshlrev_b32 v{gn+2*k}, 16, v{gr+k}")
            a.e(f"v_and_b32 v{gn+2*k+1}, s43, v{gr+k}")
        for k in range(4):
            a.e(f"v_pk_fma_f32 v[{gn+2*k}:{gn+2*k+1}], v[{gn+2*k}:{gn+2*k+1}], v[{sr}:{sr+1}], v[{sr}:{sr+1}] op_sel:[0,0,1] op_sel_hi:[1,0,1]")
        if j < 4: return
        t = j - 4
        for i in range(5):
            gi = GN + 8 * ((t + i) % 5)
            for k in range(4):
                if i == 0:
                    a.e(f"v_pk_mul_f32 v[{AC+2*k}:{AC+2*k+1}], v[{gi+2*k}:{gi+2*k+1}], v[{W+2*k}:{W+2*k+1}]")
                else:
                    a.e(f"v_pk_fma_f32 v[{AC+2*k}:{AC+2*k+1}], v[{gi+2*k}:{gi+2*k+1}], v[{W+8*i+2*k}:{W+8*i+2*k+1}], v[{AC+2*k}:{AC+2*k+1}]")
        for k in range(4):
            a.e(f"v_lshlrev_b32 v{UF+2*k}, 16, v{ur+k}")
            a.e(f"v_and_b32 v{UF+2*k+1}, s43, v{ur+k}")
        for k in range(4):
            a.e(f"v_pk_mul_f32 v[{AC+2*k}:{AC+2*k+1}], v[{AC+2*k}:{AC+2*k+1}], v[{UF+2*k}:{UF+2*k+1}]")
        zp = self.ZP + 4 * (t % 2)
        for k in range(4):
            a.e(f"v_cvt_pk_bf16_f32 v{zp+k}, v{AC+2*k}, v{AC+2*k+1}")
        a.e(f"v_xor_b32 v11, {32*(t & 7)}, v8")
        q.l(f"ds_write_b128 v11, v[{zp}:{zp+3}] offset:{512*t}", "Zw")
```

```python
import sys, math
sys.path.insert(0, "gen")
from asmlib import *
from layout import *

RS = 1056
LDS_XS = 98304
RING = 6
SS = 144
SPIN = 200000

def poll(a, q, L, name, load, cond, tag):
    q.wait(tag)
    lab, done = L(name + "_spin"), L(name + "_ok")
    a.e(f"s_mov_b32 s30, {SPIN}")
    a.label(lab)
    for x in cond: a.e(x)
    a.e(f"s_cbranch_scc1 {done}")
    a.e("s_sleep 2")
    for x in load: a.e(x)
    a.e("s_sub_u32 s30, s30, 1")
    a.e("s_waitcnt vmcnt(0)")
    a.e(f"s_cbranch_scc0 {lab}")
    a.label(done)

def signal(a, L, name, wave, off):
    a.e(f"s_cmp_lg_u32 s16, {wave}")
    a.e(f"s_cbranch_scc1 {L(name)}")
    a.e("v_mov_b32 v14, 1")
    a.e("v_mov_b32 v15, 0")
    a.e("s_mov_b64 exec, 1")
    a.e(f"buffer_atomic_add v14, v15, s[92:95], 0 offen offset:{off}")
    a.e("s_mov_b64 exec, -1")
    a.label(L(name))

def m_issue(a, q):
    a.e("s_lshr_b32 s26, s2, 4")
    a.e("s_lshl_b32 s26, s26, 15")
    a.e("s_and_b32 s28, s2, 15")
    a.e("s_lshl_b32 s28, s28, 15")
    a.e("s_lshl_b32 s29, s16, 13")
    a.e("s_add_u32 s26, s26, s29")
    a.e("s_add_u32 s28, s28, s29")
    a.e(f"s_mul_i32 s29, s16, {4*RS}")
    for m, (srd, so) in enumerate(((40, "s26"), (8, "s28"))):
        for ee in range(2):
            for j in range(4):
                a.e(f"s_add_u32 m0, s29, {(32*m + 16*ee + j)*RS - 1024*j}")
                a.e(f"s_add_u32 {so}, {so}, 4096" if (ee == 1 and j == 0) else "s_nop 0")
                q.v(f"buffer_load_dwordx4 v3, s[{srd}:{srd+3}], {so} offen offset:{1024*j} lds", "Mst")

def m_tile(a, q):
    a.e("v_and_b32 v4, 15, v2")
    a.e("v_lshrrev_b32 v5, 4, v2")
    a.e(f"v_mul_u32_u24 v6, {RS}, v4")
    a.e("v_lshl_add_u32 v6, v5, 4, v6")
    a.e("s_and_b32 s26, s16, 1")
    a.e("s_lshr_b32 s28, s16, 1")
    a.e(f"s_mul_i32 s29, s26, {16*RS}")
    a.e("v_add_u32 v7, s29, v6")
    a.e(f"s_mul_i32 s29, s28, {16*RS}")
    a.e("v_add_u32 v6, s29, v6")
    a.e("s_bfe_u32 s29, s2, 0x30001")
    a.e("s_lshl_b32 s29, s29, 16")
    a.e("s_lshr_b32 s30, s2, 4")
    a.e("s_lshl_b32 s30, s30, 12")
    a.e("s_add_u32 s29, s29, s30")
    a.e("s_and_b32 s30, s2, 1")
    a.e("s_lshl_b32 s30, s30, 1")
    a.e("s_add_u32 s30, s30, s28")
    a.e("s_lshl_b32 s30, s30, 10")
    a.e("s_add_u32 s29, s29, s30")
    a.e("s_lshl_b32 s30, s26, 3")
    a.e("s_add_u32 s29, s29, s30")
    a.e(f"s_add_u32 s29, s29, {WS_MI}")
    q.wait("Mst")
    a.e("s_barrier")
    R = 128
    def rd(t):
        q.l(f"ds_read_b128 v[{R+8*t}:{R+8*t+3}], v7 offset:{64*t}", f"m{t}")
        q.l(f"ds_read_b128 v[{R+8*t+4}:{R+8*t+7}], v6 offset:{32*RS + 64*t}", f"m{t}")
    for t in range(6): rd(t)
    for t in range(16):
        if t + 6 < 16: rd(t + 6)
        q.e(f"{M16} v[8:11], v[{R+8*t}:{R+8*t+3}], v[{R+8*t+4}:{R+8*t+7}], {'0' if t == 0 else 'v[8:11]'}", need=(f"m{t}",))
    a.e("s_barrier")
    def fin():
        sc = f2u(512 ** -0.5 * math.log2(math.e))
        for i in range(4): a.e(f"v_mul_f32 v{8+i}, {sc}, v{8+i}")
        a.e("v_cvt_pk_bf16_f32 v8, v8, v9")
        a.e("v_cvt_pk_bf16_f32 v9, v10, v11")
        q.v("buffer_store_dwordx2 v[8:9], v3, s[12:15], s29 offen sc1", "St")
    return fin

def touches(a, q, L):
    a.e("v_lshlrev_b32 v7, 7, v2")
    a.e("s_lshr_b32 s26, s2, 3")
    a.e("s_lshl_b32 s26, s26, 2")
    a.e("s_add_u32 s26, s26, s16")
    a.e("s_getpc_b64 s[28:29]")
    a.label(L("pc1"))
    a.e("s_lshl_b32 s30, s26, 9")
    a.e("v_lshl_add_u32 v12, v2, 3, s30")
    a.e(f"v_min_u32 v12, {L('end')} - {L('pc1')}, v12")
    q.v("global_load_dword v15, v12, s[28:29]")
    a.e("s_lshl_b32 s26, s26, 13")
    q.v("buffer_load_dword v15, v7, s[96:99], s26 offen")
    for w in range(1, 4):
        a.e(f"s_cmp_eq_u32 s16, {w}")
        a.e(f"s_cselect_b32 s52, s{52+2*w}, s52")
        a.e(f"s_cselect_b32 s53, s{53+2*w}, s53")
    a.e("s_lshl_b32 s28, s2, 6")
    a.e("v_add_lshl_u32 v12, s28, v2, 5")
    a.e("v_lshlrev_b32 v13, 1, v12")
    a.e("s_cmp_eq_u32 s16, 3")
    a.e("s_cselect_b64 vcc, -1, 0")
    a.e("v_cndmask_b32 v12, v12, v13, vcc")
    q.v("global_load_dword v15, v12, s[52:53]")

def gen_front(a, q, L, st, fs, mfin):
    X = 16; F = 128
    a.e("v_lshrrev_b32 v12, 3, v2")
    a.e("v_and_b32 v13, 7, v2")
    a.e("v_and_b32 v14, 2, v12")
    a.e("v_xor_b32 v14, v13, v14")
    a.e("v_lshlrev_b32 v14, 4, v14")
    a.e("v_lshl_add_u32 v14, v12, 11, v14")
    WV = 80
    a.e(f"v_mov_b32 v{WV}, v14")
    a.e(f"v_xor_b32 v{WV+1}, 64, v14")
    a.e(f"v_add_u32 v{WV+1}, {16384-1024}, v{WV+1}")
    a.e(f"v_add_u32 v{WV+2}, {2*(16384-1024)}, v{WV}")
    a.e(f"v_add_u32 v{WV+3}, {2*(16384-1024)}, v{WV+1}")
    a.e("s_lshl_b32 s26, s22, 2")
    a.e("s_add_u32 s26, s26, s16")
    a.e("s_lshl_b32 s40, s26, 7")
    a.e(f"s_mul_i32 s41, s16, {RING*4096}")
    def wdma(k, j):
        if j == 0:
            a.e(f"s_add_u32 m0, s41, {4096*(k % RING)}")
            a.e(f"s_add_u32 s42, s40, {65536*(k % 16) + (1024 if k < 16 else 0)}")
        q.v(f"buffer_load_dwordx4 v{WV+j}, s[96:99], s42 offen offset:{1024*j} lds", f"W{k}")
    for k in range(RING):
        for j in range(4): wdma(k, j)
        if k == 0: mfin()
    SW, SR, SG = 84, 85, 86
    a.e("s_lshl_b32 s26, s16, 14")
    a.e(f"s_add_u32 s26, s26, {LDS_XS}")
    a.e(f"v_mul_u32_u24 v{SR}, {SS}, v12")
    a.e(f"v_lshl_add_u32 v{SR}, v13, 4, v{SR}")
    a.e(f"v_add_u32 v{SR}, s26, v{SR}")
    a.e(f"v_lshlrev_b32 v{SG}, 9, v12")
    a.e(f"v_lshl_add_u32 v{SG}, v13, 4, v{SG}")
    a.e(f"v_mul_u32_u24 v{SW}, {SS}, v4")
    a.e(f"v_lshl_add_u32 v{SW}, v5, 3, v{SW}")
    a.e(f"v_add_u32 v{SW}, s26, v{SW}")
    QW = 87
    a.e(f"v_add_u32 v{QW}, s26, v3")
    a.e("v_and_b32 v12, 16, v2")
    a.e("v_lshlrev_b32 v12, 1, v12")
    a.e(f"v_xor_b32 v12, v{QW}, v12")
    a.e("s_mov_b32 s43, 0xffff0000")
    for s in range(16):
        q.wait(f"x{s}")
        for j in range(4):
            x = X + 4 * s + j; f = F + 8 * s + 2 * j
            a.e(f"v_lshlrev_b32 v{f}, 16, v{x}")
            a.e(f"v_and_b32 v{f+1}, s43, v{x}")
        for j in range(4):
            f = F + 8 * s + 2 * j; acc = 88 + 2 * (j % 2)
            if s == 0 and j < 2:
                a.e(f"v_pk_add_f32 v[{acc}:{acc+1}], v[{f}:{f+1}], 0")
            else:
                a.e(f"v_pk_add_f32 v[{acc}:{acc+1}], v[{acc}:{acc+1}], v[{f}:{f+1}]")
    fs(2)
    def reduce4():
        a.e("v_pk_add_f32 v[88:89], v[88:89], v[90:91]")
        a.e("v_add_f32 v88, v88, v89")
        for d in ("quad_perm:[1,0,3,2]", "quad_perm:[2,3,0,1]"):
            a.e("s_nop 1")
            a.e(f"v_add_f32_dpp v88, v88, v88 {d} row_mask:0xf bank_mask:0xf")
    reduce4()
    a.e(f"v_mul_f32 v92, {f2u(-1.0/512)}, v88")
    for k in range(64):
        f = F + 2 * k; acc = 88 + 2 * (k % 2)
        a.e(f"v_pk_add_f32 v[{f}:{f+1}], v[{f}:{f+1}], v[92:93] op_sel_hi:[1,0]")
        if k >= 1:
            f -= 2; acc = 88 + 2 * ((k - 1) % 2)
            a.e(f"v_pk_mul_f32 v[{acc}:{acc+1}], v[{f}:{f+1}], v[{f}:{f+1}]" if k < 3 else
                f"v_pk_fma_f32 v[{acc}:{acc+1}], v[{f}:{f+1}], v[{f}:{f+1}], v[{acc}:{acc+1}]")
    f = F + 126
    a.e(f"v_pk_fma_f32 v[90:91], v[{f}:{f+1}], v[{f}:{f+1}], v[90:91]")
    reduce4()
    a.e(f"v_mov_b32 v89, {f2u(1e-5)}")
    a.e(f"v_fmac_f32 v89, {f2u(1.0/512)}, v88")
    a.e("v_rsq_f32 v92, v89")
    a.e("s_nop 0")
    for s in range(16):
        for j in range(4):
            f = F + 8 * s + 2 * j
            a.e(f"v_pk_mul_f32 v[{f}:{f+1}], v[{f}:{f+1}], v[92:93] op_sel_hi:[1,0]")
        for j in range(4):
            f = F + 8 * s + 2 * j
            a.e(f"v_cvt_pk_bf16_f32 v{X+4*s+j}, v{f}, v{f+1}")
        q.l(f"ds_write_b128 v12, v[{X+4*s}:{X+4*s+3}] offset:{1024*s}", "xw")
    XR_, TR = 88, 92
    a.e("v_lshrrev_b32 v12, 1, v4")
    a.e("v_and_b32 v12, 2, v12")
    a.e("v_xor_b32 v12, v5, v12")
    a.e("v_lshlrev_b32 v12, 4, v12")
    a.e("v_lshl_add_u32 v12, v4, 6, v12")
    a.e(f"v_add_u32 v{XR_}, {LDS_XS}, v12")
    a.e("s_lshl_b32 s26, s22, 2")
    a.e("s_add_u32 s26, s26, s16")
    a.e("s_lshl_b32 s26, s26, 13")
    a.e(f"v_add_u32 v{XR_+1}, s26, v{XR_}")
    a.e("s_add_u32 s19, s26, s27")
    a.e("v_and_b32 v12, 0x27, v2")
    a.e("v_and_b32 v13, 8, v2")
    a.e("v_lshl_add_u32 v12, v13, 1, v12")
    a.e("v_and_b32 v13, 16, v2")
    a.e("v_lshrrev_b32 v13, 1, v13")
    a.e(f"v_add_lshl_u32 v{XR_+2}, v12, v13, 4")
    a.e("v_lshrrev_b32 v12, 2, v4")
    a.e("v_lshl_add_u32 v12, v5, 3, v12")
    a.e("v_lshlrev_b32 v12, 7, v12")
    a.e("v_and_b32 v13, 3, v2")
    a.e("v_lshl_add_u32 v12, v13, 3, v12")
    a.e("v_and_b32 v13, 24, v2")
    a.e("v_lshl_add_u32 v12, v13, 2, v12")
    a.e(f"v_add_u32 v{TR}, s41, v12")
    for nb in range(1, 4):
        a.e(f"v_xor_b32 v{TR+nb}, {32*nb}, v{TR}")
    c1 = -2 * math.sqrt(2 / math.pi) * math.log2(math.e)
    a.e(f"s_mov_b32 s100, {f2u(c1 * 0.044715)}")
    a.e(f"v_mov_b32 v1, {f2u(c1)}")
    a.e("v_mov_b32 v11, 0")
    srd_off(a, 8, 4, "s24", 4096000)
    a.e("s_lshl_b32 s18, s31, 16")
    a.e("s_lshl_b32 s26, s16, 7")
    a.e("s_add_u32 s18, s18, s26")
    a.e(f"s_add_u32 s18, s18, {WS_GU}")
    a.e("s_lshl_b32 s20, s16, 17")
    a.e(f"s_add_u32 s20, s20, {WS_MI}")
    q.wait("xw")
    fs(3)
    a.e("s_barrier")
    st(1)
    AR = [16 + 16 * i for i in range(4)] + [96]
    ACC = [128, 192]
    T = 112
    NQ = 5
    def areg(k): return AR[k % 2] if k < 32 else AR[(k - 32 + 2) % NQ]
    def bread(s, tb):
        r = 64 * tb + 4 * s
        q.l(f"ds_read_b128 a[{r}:{r+3}], v{XR_} offset:{16384*tb + 1024*s}", f"B{s}")
    def tread(k, i):
        nb, h = i // 2, i % 2
        r = areg(k) + 4 * nb + 2 * h
        q.l(f"ds_read_b64_tr_b16 v[{r}:{r+1}], v{TR+nb} offset:{4096*(k % RING) + 512*h}", f"A{k}", need=(f"W{k}",))
    def mload(k, nb):
        if nb == 0: a.e(f"s_add_u32 s42, s20, {4096*(k-32)}")
        r = areg(k) + 4 * nb
        q.v(f"buffer_load_dwordx4 v[{r}:{r+3}], v3, s[12:15], s42 offen offset:{1024*nb} sc1", f"A{k}")
    for tb in range(4): bread(0, tb)
    for i in range(8): tread(0, i)
    for tb in range(4): bread(1, tb)
    fixed = {}
    def at(k, g, fn): fixed.setdefault((k, g), []).append(fn)
    for k in range(64):
        if k + 1 < 32:
            for i in range(8): at(k, i, lambda k=k, i=i: tread(k + 1, i))
        if k + RING < 32:
            for j in range(4): at(k, 9 + 2 * j, lambda k=k, j=j: wdma(k + RING, j))
        if k + 2 < 16:
            for tb in range(4): at(k, 8 + 2 * tb, lambda k=k, tb=tb: bread(k + 2, tb))
    for kk in range(32, 64):
        k = {32: 28, 33: 29, 34: 30, 35: 31}.get(kk, kk - NQ + 1)
        for nb in range(4): at(k, (9 if k < 32 else 1) + (2 if k < 32 else 4) * nb, lambda kk=kk, nb=nb: mload(kk, nb))
    side = {p: [] for p in range(4)}
    def S(p, x, cost=1): side[p].append((x if callable(x) else (lambda x=x: a.e(x)), 2 if (isinstance(x, str) and x.split()[0] in ("v_exp_f32", "v_rcp_f32")) else cost))
    PB = 48
    for i in range(8):
        at(1 + i // 2, 12 + 2 * (i % 2), lambda i=i: q.l(f"ds_read_b128 v[{PB+4*i}:{PB+4*i+3}], v{XR_+1} offset:{1024*i}", f"p{i}"))
        def pub(i=i):
            if i == 4: a.e("s_add_u32 s19, s19, 4096")
            q.v(f"buffer_store_dwordx4 v[{PB+4*i}:{PB+4*i+3}], v{XR_+2}, s[8:11], s19 offen offset:{1024*(i%4)} sc1", "St", need=(f"p{i}",))
        at(2 + i, 14, pub)
    def sig1():
        q.wait("St", "B15")
        a.e("s_barrier")
        signal(a, L, "sig1", 0, 0)
    at(14, 8, sig1)
    c1l = "buffer_load_dword v14, v11, s[92:95], 0 offen sc1"
    KP = 22
    at(KP, 8, lambda: q.v(c1l, "c1"))
    def chk1():
        poll(a, q, L, "c1", [c1l], ["v_readfirstlane_b32 s26, v14", "s_cmp_eq_u32 s26, 256"], "c1")
        a.e("s_lshr_b32 s26, s2, 3")
        a.e("s_lshl_b32 s26, s26, 2")
        a.e("s_add_u32 s26, s26, s16")
        a.e("s_lshl_b32 s26, s26, 12")
        a.e(f"s_add_u32 s26, s26, {WS_MI}")
        a.e("v_lshlrev_b32 v14, 6, v2")
        q.v("buffer_load_dword v15, v14, s[12:15], s26 offen sc1")
    at(KP + 3, 8, chk1)
    SM = 4
    def gelu(p, acc, kind):
        off = 0 if kind == "g" else 32768
        ST = 64
        for tb in range(4):
            for h in range(2):
                src = [acc + 16 * (2 * h + ee) + 4 * tb + j for ee in range(2) for j in range(4)]
                for i, x in enumerate(src): S(p, f"v_mul_f32 v{T+i}, v{x}, v{x}")
                for i, x in enumerate(src): S(p, f"v_fma_f32 v{T+i}, v{T+i}, s100, v1")
                for i, x in enumerate(src): S(p, f"v_mul_f32 v{T+i}, v{T+i}, v{x}")
                for i, x in enumerate(src): S(p, f"v_exp_f32 v{T+i}, v{T+i}")
                for i, x in enumerate(src): S(p, f"v_add_f32 v{T+i}, 1.0, v{T+i}")
                for i, x in enumerate(src): S(p, f"v_rcp_f32 v{T+i}, v{T+i}")
                for i, x in enumerate(src): S(p, f"v_mul_f32 v{x}, v{T+i}, v{x}")
                pk = T + 8 + 4 * h
                for j in range(4): S(p, f"v_cvt_pk_bf16_f32 v{pk+j}, v{src[2*j]}, v{src[2*j+1]}")
                for ee in range(2):
                    S(p, lambda ee=ee, pk=pk, tb=tb, h=h: q.l(f"ds_write_b64 v{SW}, v[{pk+2*ee}:{pk+2*ee+1}] offset:{16*SS*tb + 32*(2*h+ee)}", f"sw{kind}{tb}"))
                if kind == "g":
                    s0, s1 = acc + 4 * tb, acc + 4 * tb + 1
                    if h == 0:
                        S(p, f"v_mul_f32 v{T}, v{src[0]}, v{src[0]}")
                        for x in src[1:]: S(p, f"v_fmac_f32 v{T}, v{x}, v{x}")
                        for x in src[1:]: S(p, f"v_add_f32 v{s0}, v{s0}, v{x}")
                        S(p, f"v_mov_b32 v{s1}, v{T}")
                    else:
                        for x in src:
                            S(p, f"v_add_f32 v{s0}, v{s0}, v{x}")
                            S(p, f"v_fmac_f32 v{s1}, v{x}, v{x}")
            for i in (2 * tb, 2 * tb + 1):
                r = acc + 32 + 16 * (i % 2) + 4 * tb
                S(p, lambda i=i, r=r, tb=tb: q.l(f"ds_read_b128 v[{r}:{r+3}], v{SR} offset:{8*SS*i}", f"sr{kind}{i}"))
            if tb >= 1:
                stores(p, acc, kind, tb - 1, off)
        if kind == "g":
            for k in range(2):
                S(p, f"v_permlane16_swap_b32 v{acc+k}, v{acc+4+k}")
                S(p, f"v_permlane16_swap_b32 v{acc+8+k}, v{acc+12+k}")
            S(p, "s_lshl_b32 s26, s22, 2")
            for k in range(2):
                S(p, f"v_add_f32 v{acc+k}, v{acc+k}, v{acc+4+k}")
                S(p, f"v_add_f32 v{acc+8+k}, v{acc+8+k}, v{acc+12+k}")
            S(p, "s_add_u32 s26, s26, s16")
            S(p, "s_lshl_b32 s26, s26, 16")
            for k in range(2): S(p, f"v_permlane32_swap_b32 v{acc+k}, v{acc+8+k}")
            S(p, "s_lshr_b32 s28, s31, 1")
            S(p, "s_lshl_b32 s28, s28, 9")
            for k in range(2): S(p, f"v_add_f32 v{T+k}, v{acc+k}, v{acc+8+k}")
            S(p, "s_add_u32 s26, s26, s28")
            S(p, f"s_add_u32 s26, s26, {WS_ST}")
            S(p, f"v_lshlrev_b32 v{T+2}, 3, v2")
            S(p, lambda: q.v(f"buffer_store_dwordx2 v[{T}:{T+1}], v{T+2}, s[12:15], s26 offen sc1", "St"))
        stores(p, acc, kind, 3, off)
    def stores(p, acc, kind, tb, off):
        for i in (2 * tb, 2 * tb + 1):
            r = acc + 32 + 16 * (i % 2) + 4 * tb
            def f(i=i, r=r):
                a.e(f"s_add_u32 s29, s18, {off + 4096*i}")
                q.v(f"buffer_store_dwordx4 v[{r}:{r+3}], v{SG}, s[12:15], s29 offen sc1", "St", need=(f"sr{kind}{i}",))
            S(p, f, 2)
    def qpack(acc, h, emit):
        for tb in range(4):
            for half in range(2):
                src = [acc + 16 * (2 * half + ee) + 4 * tb + j for ee in range(2) for j in range(4)]
                pk = T + 4 * ((2 * tb + half) % 4)
                for j in range(4): emit(f"v_cvt_pk_bf16_f32 v{pk+j}, v{src[2*j]}, v{src[2*j+1]}")
                emit(lambda pk=pk, tb=tb, half=half: q.l(f"ds_write_b128 v{QW}, v[{pk}:{pk+3}] offset:{4096*tb + 1024*(2*h+half)}", "qw"))
    gelu(1, ACC[0], "g")
    gelu(2, ACC[1], "u")
    qpack(ACC[0], 0, lambda x: S(3, x))
    def kv0():
        a.e("s_barrier")
        a.e("s_mul_i32 s28, s22, 2064384")
        a.e("s_add_u32 s28, s28, s24")
        a.e("s_lshl_b32 s26, s25, 15")
        srd_off(a, 8, 4, "s28", "s26")
        a.e("s_lshl_b32 s19, s16, 13")
    at(48, 0, kv0)
    for i in range(8):
        def kd(i=i):
            if i % 4 == 0:
                if i: a.e("s_add_u32 s19, s19, 4096")
                a.e("s_mov_b32 m0, s19")
                a.e("s_nop 0")
            q.v(f"buffer_load_dwordx4 v3, s[8:11], s19 offen offset:{1024*(i%4)} sc1 lds", "kv0")
        at(56 + i // 2, 3 + 8 * (i % 2), kd)
    for p in range(4):
        gaps = [(k, g) for k in range(16 * p, 16 * p + 16) for g in range(16)]
        lead = 10
        tailg = 4
        cap = [0 if (n < lead or n >= len(gaps) - tailg) else max(0, 2 - len(fixed.get(x, []))) for n, x in enumerate(gaps)]
        C = sum(c for _, c in side[p]); tot = sum(cap)
        scale = min(1.0, C / tot) if p != 3 else 1.0
        extra = max(0.0, (C - tot) / (len(gaps) - lead - tailg))
        budget = 0.0; used = 0
        ops = list(side[p])
        fs(4 + p)
        for n, (k, g) in enumerate(gaps):
            if g == 0:
                q.wait(f"A{k}", f"B{k}")
            nb, tb = g // 4, g % 4
            d = ACC[p % 2] + 16 * nb + 4 * tb; r = areg(k) + 4 * nb; b = 64 * tb + 4 * (k % 16)
            c = "0" if k % 16 == 0 else f"v[{d}:{d+3}]"
            a.e(f"{M16} v[{d}:{d+3}], v[{r}:{r+3}], a[{b}:{b+3}], {c}")
            for fn in fixed.pop((k, g), []): fn()
            if lead <= n < len(gaps) - tailg:
                budget += cap[n] * scale + extra
            while ops and (used + ops[0][1] <= budget + 1e-6 or n == len(gaps) - tailg):
                fn, cst = ops.pop(0); fn(); used += cst
        assert not ops
    assert not fixed, fixed.keys()
    fs(8)
    a.e("s_nop 3")
    qpack(ACC[1], 1, lambda x: x() if callable(x) else a.e(x))
    q.all()
    fs(9)
    a.e("s_barrier")
```

```python
T = 4000
NTOK = 8000
IMG = 8192000
WS_XA = 0x0000000
WS_QP = 0x0800000
WS_OP = 0x1000000
WS_U  = 0x2000000
WS_G  = 0x2800000
WS_Z  = 0x3000000
WS_ML = 0x3800000
WS_ST = 0x3880000
WS_W1 = 0x3900000
WS_WM = 0x3B00000
WS_T2 = 0x3C00000
WS_W3 = 0x3D00000
WS_YX = 0x1000000
WS_ZX = 0x1800000
WS_MX = 0x3800000
WS_FL = 0x3840000
WS_GU = 0x2000000
WS_MI = 0x3900000
WS_UI = 0x3980000
WS_STAMP = 0x8000000
KA = dict(x=0, wq=8, wk=16, wv=24, wao=32, wup=40, dw=48, wdn=56, wm=64, out=72, dbg=80, ws=88)
M16 = "v_mfma_f32_16x16x32_bf16"
def phi(ee, r):
    return 8 * (r >> 2) + 4 * ee + (r & 3)
def a2s(pair):
    return [(e, t if pair % 2 == 0 else 3 - t) for t in range(4) for e in range(2)]
ORD16 = [(2 * p + e, t) for p in range(2) for e, t in a2s(p)]
```

```python
import sys
sys.path.insert(0, "gen")
from asmlib import *
from attn2 import gen_attn
KNAME = "standalone__conformer_family_branchformer__speech_kernel"

def build(path, stamp=0, opt=None):
    a = Asm()
    a('.amdgcn_target "amdgcn-amd-amdhsa--gfx950"')
    l = gen_attn(a, KNAME, stamp=stamp, opt=opt)
    t = a.text().replace(KNAME + "_", "L_")
    open(path, "w").write(l + "\n" + t)

if __name__ == "__main__":
    build("v3.s")
    build("v3_st.s", stamp=1)
    build("v3_fs.s", stamp=2)
    build("v3f_fs.s", stamp=3)
```

```python
import sys
sys.path.insert(0, "gen")
from asmlib import *
from layout import *
from conv import Conv
from aux import gen_aux
from front import *

RS = 1056
LDS_P = 131072
LDS_MX = 139264
LDS_FG = LDS_MX + 512
LDS_ML = LDS_MX + 1024
LDS_HALO = LDS_ML + 1024
LDS_TAP = LDS_HALO + 2048
LDS_STT = LDS_TAP + 3072
LDS_ATT = 163840
ES = 272
NA = 12
BIG = 2.0 ** 100
SPIN = 200000
FK = [0, 24, 32, 36, 40, 42, 46]

def emit_interval(a, mfmas, fill):
    for i, m in enumerate(mfmas):
        if m is not None:
            a.e(m)
        for f in fill.get(i, []):
            a.e(f)

def conv_addr(a, NR, row0):
    a.e("v_lshrrev_b32 v12, 5, v2")
    a.e(f"v_mul_u32_u24 v12, {NR}, v12")
    a.e(f"v_add_u32 v12, {row0}, v12")
    a.e("v_and_b32 v13, 31, v2")
    a.e("v_lshlrev_b32 v13, 4, v13")
    a.e("v_lshl_add_u32 v14, v12, 9, v13")
    a.e("s_and_b32 s26, s25, 3")
    a.e("s_lshl_b32 s26, s26, 15")
    a.e("v_add_u32 v4, s26, v14")
    a.e("v_add_u32 v7, s49, v14")
    a.e("v_and_b32 v14, 4, v12")
    a.e("v_lshlrev_b32 v14, 5, v14")
    a.e("v_xor_b32 v8, v7, v14")
    a.e(f"v_add_u32 v10, {LDS_TAP}, v13")
    a.e(f"v_add_u32 v13, {LDS_HALO}, v13")
    a.e("v_cmp_eq_u32 vcc, 0, v12")
    a.e("v_subrev_u32 v5, 1024, v4")
    a.e(f"v_add_u32 v6, {512*NR}, v4")
    a.e("v_cndmask_b32 v5, v5, v13, vcc")
    a.e(f"v_cmp_eq_u32 vcc, {64-NR}, v12")
    a.e("v_add_u32 v13, 1024, v13")
    a.e("v_lshlrev_b32 v9, 3, v12")
    a.e("v_cndmask_b32 v6, v6, v13, vcc")
    a.e(f"v_add_u32 v9, {LDS_STT}, v9")

def gen_tail(a, L, st, fs, opt):
    q = Seq(a)
    q.vm = [f"A{k}" for k in range(NA) for _ in range(4)]
    BF = [32, 48]; YR = 64; XR = 96; MR = 16; AL = 24
    acc = lambda k: 128 if k < 24 else 192
    isz = lambda k: k % 24 >= 16
    def bread(k, tb):
        s = k % 24
        r = BF[k % 2] + 4 * tb
        if not isz(k):
            return f"ds_read_b128 v[{r}:{r+3}], v6 offset:{16384*tb + 1024*s}"
        s -= 16
        return f"ds_read_b128 v[{r}:{r+3}], v{28 + s % 4} offset:{8192*tb + 256*(s//4)}"
    a.e("v_add_u32 v6, s48, v3")
    a.e("s_waitcnt lgkmcnt(0)")
    fs(5)
    a.e("s_barrier")
    for tb in range(4): q.l(bread(0, tb), "B0")
    a.e("v_and_b32 v4, 15, v2")
    a.e("v_lshrrev_b32 v5, 4, v2")
    a.e("v_lshlrev_b32 v10, 3, v2")
    a.e("v_mov_b32 v11, 0")
    a.e("v_mov_b32 v12, 1")
    side = {}
    def at(k, g, fn): side.setdefault((k + g // 16, g % 16), []).append(fn)
    def spread(k, g, ops, per=2, skip=lambda g: False):
        n = 16 * k + g
        ops = list(ops)
        while ops:
            if not skip(n % 16):
                for _ in range(per):
                    if ops:
                        o = ops.pop(0)
                        at(n // 16, n % 16, o if callable(o) else (lambda o=o: a.e(o)))
            n += 1
    lo8 = lambda g: g < 8
    spread(0, 8, ["v_and_b32 v13, 7, v4", "v_lshlrev_b32 v13, 1, v13", "v_xor_b32 v13, v13, v5", "v_lshlrev_b32 v13, 4, v13",
                  "v_lshl_add_u32 v13, v4, 9, v13", "v_add_u32 v28, s49, v13", "v_xor_b32 v29, 64, v28", "v_xor_b32 v30, 128, v28",
                  "v_xor_b32 v31, 192, v28",
                  f"s_mul_i32 s26, s16, {64*ES}", "s_add_u32 s26, s26, s48",
                  f"v_mul_u32_u24 v7, {ES}, v4", "v_lshl_add_u32 v7, v5, 4, v7", "v_add_u32 v7, s26, v7",
                  "v_lshrrev_b32 v13, 3, v2", "v_and_b32 v14, 7, v2", f"v_mul_u32_u24 v8, {ES}, v13",
                  "v_lshl_add_u32 v8, v14, 5, v8", "v_add_u32 v8, s26, v8", "v_lshlrev_b32 v9, 4, v14",
                  "v_lshl_add_u32 v9, v13, 10, v9", f"v_add_u32 v13, {LDS_ML}, v10", "v_lshlrev_b32 v4, 2, v4",
                  "s_xor_b32 s26, s31, 1", "s_lshl_b32 s26, s26, 10", f"s_add_u32 s28, s26, {WS_MX}"], skip=lo8)
    mll = [f"buffer_load_dwordx2 v[{MR+2*w}:{MR+2*w+1}], v10, s[12:15], s28 offen offset:{512*w} sc1" for w in range(2)]
    for w in range(2):
        at(3, 9 + 2 * w, lambda w=w: q.v(mll[w], "ML"))
        at(3, 10 + 2 * w, lambda w=w: q.l(f"ds_read_b64 v[{MR+4+2*w}:{MR+5+2*w}], v13 offset:{512*w}", "MLo"))
    at(9, 8, lambda: poll(a, q, L, "ml", mll, [f"v_and_b32 v14, v{MR+1}, v{MR+3}", "v_cmp_gt_i32 vcc, 0, v14", "s_nop 1", "s_cmp_eq_u64 vcc, -1"], "ML"))
    at(9, 8, lambda: q.wait("MLo"))
    spread(9, 9, [f"v_add_f32 v{MR+1}, v{MR+1}, v{MR+3}", f"v_add_f32 v{MR+5}, v{MR+5}, v{MR+7}",
                  f"v_min_f32 v14, v{MR}, v{MR+4}", f"v_sub_f32 v{MR}, v14, v{MR}", f"v_sub_f32 v{MR+4}, v14, v{MR+4}",
                  f"v_exp_f32 v{MR}, v{MR}", f"v_exp_f32 v{MR+4}, v{MR+4}", f"v_mul_f32 v{MR+1}, v{MR+1}, v{MR}",
                  f"v_fmac_f32 v{MR+1}, v{MR+5}, v{MR+4}", f"v_rcp_f32 v{MR+1}, v{MR+1}", "s_nop 0",
                  f"v_mul_f32 v14, v{MR+4}, v{MR+1}", "v_sub_f32 v14, 0, v14"] +
                 [lambda tb=tb: q.l(f"ds_bpermute_b32 v{AL+tb}, v4, v14 offset:{64*tb}", "AL") for tb in range(4)], per=1, skip=lo8)
    for k0 in (15, 39):
        at(k0, 5, lambda: q.wait("AL"))
        for i in range(16):
            for j in range(4):
                r = acc(k0) + 4 * i + j
                at(k0, i + 6, lambda r=r, i=i: a.e(f"v_mul_f32 v{r}, v{r}, v{AL + i % 4}"))
    for i in range(8):
        tb, h = i % 4, i // 4
        k, g0 = (24 + i // 2, 8 + 4 * (i % 2)) if opt.get('y2') else (24 + i, 8)
        src = [128 + 16 * (2 * h + ee) + 4 * tb + j for ee in range(2) for j in range(4)]
        for j in range(4):
            at(k, g0 + j // 2, lambda j=j, i=i, src=src: a.e(f"v_cvt_pk_bf16_f32 v{YR+4*i+j}, v{src[2*j]}, v{src[2*j+1]}"))
        at(k, g0 + 2, lambda i=i: q.v(f"buffer_store_dwordx4 v[{YR+4*i}:{YR+4*i+3}], v3, s[12:15], s{54 + i//4} offen offset:{1024*(i%4)} sc1", "Yst"))
    KF, KL, KC, KX, KU = opt.get('k', (34, 37, 40, 37, 46))
    at(KF, 9, lambda: q.v("buffer_store_dword v12, v11, s[12:15], s56 offen sc1", need=("Yst",)))
    yl = "buffer_load_dword v14, v11, s[12:15], s57 offen sc1"
    at(KL, 9, lambda: q.v(yl, "yf"))
    for i in range(8):
        def xl(i=i):
            a.e(f"s_add_u32 s26, s58, {8192*i}")
            q.v(f"buffer_load_dwordx4 v[{XR+4*i}:{XR+4*i+3}], v9, s[32:35], s26 offen", f"X{i}")
        at(KX, 1 + 4 * i, xl)
    def gety():
        poll(a, q, L, "y", [yl], ["v_readfirstlane_b32 s26, v14", "s_cmp_eq_u32 s26, 1"], "yf")
        a.e("s_xor_b32 s54, s54, 0x8000")
        a.e("s_xor_b32 s55, s55, 0x8000")
        a.e("s_mov_b32 s43, 0xffff0000")
    at(KC, 7, gety)
    for i in range(8):
        at(KC, 9 + 2 * i, lambda i=i: q.v(f"buffer_load_dwordx4 v[{YR+4*i}:{YR+4*i+3}], v3, s[12:15], s{54 + i//4} offen offset:{1024*(i%4)} sc1", f"Y{i}"))
    ops = []
    for i in range(8):
        tb, h = i % 4, i // 4
        for j in range(4):
            o = 128 + 16 * (2 * h + j // 2) + 4 * tb + 2 * (j % 2)
            ops.append(lambda o=o, i=i, j=j: q.e(f"v_lshlrev_b32 v{o}, 16, v{YR+4*i+j}", need=(f"Y{i}",)))
            ops.append(f"v_and_b32 v{o+1}, s43, v{YR+4*i+j}")
    spread(KU, 1, ops, per=(2 if KU < 46 else 3), skip=lambda g: g < 8 and g % 2 == 0)
    for k in range(48):
        if k == 41: a.e("s_barrier")
        if k == 0: st(5)
        if k in FK: fs(6 + FK.index(k))
        q.wait(f"A{k}", f"B{k}")
        g = 0
        for nb in range(4):
            for tb in range(4):
                d = acc(k) + 16 * nb + 4 * tb; r = areg(k, nb); b = BF[k % 2] + 4 * tb
                c = "0" if k % 24 == 0 else f"v[{d}:{d+3}]"
                a.e(f"{M16} v[{d}:{d+3}], a[{r}:{r+3}], v[{b}:{b+3}], {c}")
                if g < 8 and g % 2 == 0 and k + 1 < 48:
                    q.l(bread(k + 1, g // 2), f"B{k+1}")
                if k >= 1 and k - 1 + NA < 48 and g < 8 and g % 2 == 1:
                    aload(a, q, k - 1 + NA, g // 2)
                for fn in side.pop((k, g), []): fn()
                g += 1
    assert not side, side.keys()
    st(6); fs(13)
    for nb in range(4):
        for tb in range(4):
            d = 192 + 16 * nb + 4 * tb; y = d - 64
            for j in (0, 2):
                a.e(f"v_pk_add_f32 v[{d+j}:{d+j+1}], v[{d+j}:{d+j+1}], v[{y+j}:{y+j+1}]")
            q.l(f"ds_write_b128 v7, v[{d}:{d+3}] offset:{16*ES*tb + 64*nb}", "Ew")
    XF = 32
    for i in range(8):
        q.wait(f"X{i}")
        for k in range(4):
            a.e(f"v_lshlrev_b32 v{XF+8*i+2*k}, 16, v{XR+4*i+k}")
            a.e(f"v_and_b32 v{XF+8*i+2*k+1}, s43, v{XR+4*i+k}")
        if i == 1:
            q.wait("Ew")
            fs(14)
        if i >= 1:
            for ii in ([0, 1] if i == 1 else [i]):
                for h in range(2):
                    r = 128 + 8 * ii + 4 * h
                    q.l(f"ds_read_b128 v[{r}:{r+3}], v8 offset:{8*ES*ii + 16*h}", f"E{ii}")
    for i in range(8):
        q.wait(f"E{i}")
        for k in range(4):
            r = 128 + 8 * i + 2 * k
            a.e(f"v_pk_add_f32 v[{r}:{r+1}], v[{r}:{r+1}], v[{XF+8*i+2*k}:{XF+8*i+2*k+1}]")
        for k in range(4):
            r = 128 + 8 * i + 2 * k
            a.e(f"v_cvt_pk_bf16_f32 v{XR+4*i+k}, v{r}, v{r+1}")
        a.e(f"s_add_u32 s26, s58, {8192*i}")
        q.v(f"buffer_store_dwordx4 v[{XR+4*i}:{XR+4*i+3}], v9, s[36:39], s26 offen")

def areg(k, nb):
    return 64 + 16 * ((k + 7) % NA) + 4 * nb

def aload(a, q, k, nb):
    s = k % 24
    if nb == 0:
        if s < 16:
            a.e(f"s_add_u32 s59, {'s52' if k < 24 else 's53'}, {524288 + 4096*s}")
        else:
            a.e(f"s_add_u32 s59, {'s50' if k < 24 else 's51'}, {4096*(s-16)}")
    r = areg(k, nb)
    q.v(f"buffer_load_dwordx4 a[{r}:{r+3}], v3, s[12:15], s59 offen offset:{1024*nb} sc1", f"A{k}")

def gen_attn(a, name, stamp=False, opt=None):
    opt = opt or {}
    nP = 16
    L = lambda s: f"{name}_{s}"
    st = Stamper(a, stamp == 1)
    fs = Fine(a, stamp == 2)
    ff = Fine(a, stamp == 3)
    kernel_begin(a, name)
    a.e("s_cmp_ge_u32 s2, 256")
    a.e(f"s_cbranch_scc1 {L('end')}")
    a.e(f"s_load_dwordx2 s[4:5], s[0:1], {KA['ws']}")
    a.e(f"s_load_dwordx2 s[6:7], s[0:1], {KA['x']}")
    a.e(f"s_load_dwordx2 s[40:41], s[0:1], {KA['wq']}")
    a.e(f"s_load_dwordx2 s[8:9], s[0:1], {KA['wk']}")
    a.e(f"s_load_dwordx2 s[96:97], s[0:1], {KA['wup']}")
    a.e(f"s_load_dwordx2 s[44:45], s[0:1], {KA['dw']}")
    a.e(f"s_load_dwordx4 s[48:51], s[0:1], {KA['out']}")
    a.e(f"s_load_dwordx4 s[52:55], s[0:1], {KA['wv']}")
    a.e(f"s_load_dwordx4 s[56:59], s[0:1], {KA['wdn']}")
    a.e("s_and_b32 s20, s2, 7")
    a.e("s_lshl_b32 s20, s20, 5")
    a.e("s_lshr_b32 s21, s2, 3")
    a.e("s_add_u32 s31, s20, s21")
    a.e("s_lshr_b32 s21, s31, 7")
    a.e("s_and_b32 s22, s31, 1")
    a.e("s_bfe_u32 s23, s31, 0x60001")
    a.e("v_lshrrev_b32 v1, 6, v0")
    a.e("v_and_b32 v2, 63, v0")
    a.e("v_readfirstlane_b32 s16, v1")
    a.e("v_lshlrev_b32 v3, 4, v2")
    a.e("s_mul_i32 s24, s21, 4096000")
    a.e("s_sub_u32 s25, 63, s22")
    a.e("s_lshl_b32 s27, s23, 16")
    a.e("s_waitcnt lgkmcnt(0)")
    st(0); ff(0)
    def fin_srd(d, n):
        a.e(f"s_and_b32 s{d+1}, s{d+1}, 0xffff")
        a.e(f"s_mov_b32 s{d+2}, {n}")
        a.e(f"s_mov_b32 s{d+3}, 0x00020000")
    q = Seq(a)
    srd_off(a, 32, 6, "s24", 4096000)
    a.e("v_lshrrev_b32 v4, 3, v2")
    a.e("v_and_b32 v5, 7, v2")
    a.e("v_lshlrev_b32 v5, 4, v5")
    a.e("v_lshl_add_u32 v4, v4, 10, v5")
    a.e("s_lshl_b32 s26, s16, 14")
    a.e("s_add_u32 s26, s26, s27")
    a.e("s_lshl_b32 s28, s22, 9")
    a.e("s_add_u32 s26, s26, s28")
    for s_ in range(16):
        if s_ % 4 == 0: a.e(f"s_xor_b32 s28, s26, {8192*(s_//8) + 512*((s_//4)%2)}")
        q.v(f"buffer_load_dwordx4 v[{16+4*s_}:{19+4*s_}], v4, s[32:35], s28 offen offset:{128*(s_%4)} nt", f"x{s_}")
    fin_srd(96, 1048576)
    touches(a, q, L, opt)
    fin_srd(40, 524288); fin_srd(8, 524288); fin_srd(44, 5120)
    make_srd(a, 12, 4, 0x4000000)
    make_srd(a, 92, 50, 256)
    srd_off(a, 36, 48, "s24", 4096000)
    mi = m_issue(a, q)
    def clear():
        a.e("v_mov_b32 v14, 0")
        a.e("v_lshlrev_b32 v13, 2, v2")
        a.e("s_lshl_b32 s26, s31, 2")
        a.e("s_add_u32 s26, s26, s16")
        a.e("s_lshl_b32 s28, s26, 8")
        a.e(f"s_add_u32 s28, s28, {WS_MX}")
        q.v("buffer_store_dword v14, v13, s[12:15], s28 offen sc1", "St")
        a.e("s_lshl_b32 s28, s31, 5")
        a.e("s_add_u32 s28, s28, s16")
        a.e("s_lshl_b32 s28, s28, 2")
        a.e(f"s_add_u32 s28, s28, {WS_FL}")
        a.e("v_and_b32 v13, 16, v2")
        q.v("buffer_store_dword v14, v13, s[12:15], s28 offen sc1", "St")
    a.e("s_cmp_ge_u32 s23, 63")
    a.e(f"s_cbranch_scc1 {L('aux')}")
    def emit_aux(q0=q, vm0=list(q.vm)):
        a.label(L("aux"))
        q0.vm, q0.lg = list(vm0), []
        for f in mi: f()
        mfin = m_tile(a, q0)
        a.e("s_nop 7")
        mfin()
        q0.all()
        a.e("s_barrier")
        signal(a, L, "sig1a", 0, 0)
        signal(a, L, "sig2a", 1, 8)
        a.e("s_lshl_b32 s20, s21, 1")
        a.e("s_add_u32 s20, s20, s22")
        gen_aux(a, L, st, ff)
        signal(a, L, "sig3a", 0, 4)
        for k in range(5, 7): st(k)
        for k in range(15): fs(k)
        if stamp == 4:
            for k in range(16): Fine(a, True)(k)
        for k in range(9, 15): ff(k)
        a.e(f"s_branch {L('fin')}")
    gen_front(a, q, L, st, ff, mi, clear, opt)
    st(2); ff(10)
    def tail_consts():
        t = Asm()
        t.e("s_lshl_b32 s26, s22, 2")
        t.e("s_add_u32 s26, s26, s16")
        t.e("s_lshl_b32 s53, s26, 16")
        t.e(f"s_add_u32 s53, s53, {WS_W3}")
        t.e("s_xor_b32 s52, s53, 0x40000")
        t.e("s_lshl_b32 s58, s26, 7")
        t.e("s_add_u32 s58, s58, s27")
        t.e("s_lshl_b32 s54, s31, 2")
        t.e("s_add_u32 s54, s54, s16")
        t.e("s_lshl_b32 s54, s54, 13")
        t.e(f"s_add_u32 s54, s54, {WS_YX}")
        t.e("s_add_u32 s55, s54, 4096")
        t.e("s_lshl_b32 s26, s22, 15")
        t.e("s_add_u32 s50, s52, s26")
        t.e("s_add_u32 s51, s53, s26")
        t.e("s_add_u32 s26, s25, 2")
        t.e("s_and_b32 s26, s26, 3")
        t.e("s_lshl_b32 s48, s26, 15")
        t.e("s_add_u32 s26, s25, 1")
        t.e("s_and_b32 s26, s26, 3")
        t.e("s_lshl_b32 s49, s26, 15")
        t.e("s_lshl_b32 s56, s31, 5")
        t.e("s_add_u32 s56, s56, s16")
        t.e("s_lshl_b32 s56, s56, 2")
        t.e(f"s_add_u32 s56, s56, {WS_FL}")
        t.e("s_xor_b32 s57, s56, 128")
        return [x.strip() for x in t.lines]
    a.e("s_mov_b32 s17, s25")
    a.e("s_cmp_ge_u32 s16, 2")
    a.e(f"s_cbranch_scc1 {L('pv')}")

    def dma_group():
        return "s_and_b32 m0, s18, 0x1ffff", [f"buffer_load_dwordx4 v3, s[8:11], s18 offen offset:{1024*j} sc1 lds" for j in range(4)]
    def dma_tile():
        for g in range(4):
            pre, ld = dma_group()
            a.e(pre); a.e("s_nop 0")
            for x in ld: a.e(x)
            a.e(f"s_add_u32 s18, s18, {4096 if g < 3 else 32768 - 3*4096}")
    def place_dma(fill, gaps):
        k = 0
        for g in range(4):
            pre, ld = dma_group()
            fill.setdefault(gaps[k] - 1, []).append(pre)
            for j in range(4):
                fill.setdefault(gaps[k], []).append(ld[j]); k += 1
            fill.setdefault(gaps[k - 1] + 1, []).append(f"s_add_u32 s18, s18, {4096 if g < 3 else 32768 - 3*4096}")
    auxl = cnt_load(4, "v11")
    auxc = CNT_OK

    KB = [32, 96]; S = 160; NEGM = 176; E = 192; PK = 200; LS = 204
    VK = 8; VPW = 9; TMP = 10
    a.e("v_and_b32 v4, 15, v2")
    a.e("v_lshrrev_b32 v5, 4, v2")
    a.e("v_and_b32 v6, 0x27, v2")
    a.e("v_and_b32 v7, 8, v2")
    a.e("v_lshl_add_u32 v6, v7, 1, v6")
    a.e("v_and_b32 v7, 16, v2")
    a.e("v_lshrrev_b32 v7, 1, v7")
    a.e("v_add_lshl_u32 v6, v6, v7, 4")
    a.e("s_lshl_b32 s29, s16, 14")
    a.e(f"v_add_u32 v{VK}, s29, v6")
    a.e("s_lshl_b32 s29, s16, 11")
    a.e(f"s_add_u32 s29, s29, {LDS_P}")
    a.e(f"v_lshl_add_u32 v{VPW}, v2, 3, s29")
    for i in range(4):
        a.e(f"v_mov_b32 v{LS+i}, 0")
    def kread(par, s, imm):
        r = KB[par] + 4 * s
        return f"ds_read_b128 v[{r}:{r+3}], v{VK} offset:{imm + 1024*s}"
    def chain(par, qb, c0):
        out = []
        for s in range(16):
            k = KB[par] + 4 * s; q = 64 * qb + 4 * s; d = S + 4 * qb
            c = c0 if s == 0 else f"v[{d}:{d+3}]"
            out.append(f"{M16} v[{d}:{d+3}], v[{k}:{k+3}], a[{q}:{q+3}], {c}")
        return out
    q = Seq(a)
    mf = [m for qb in range(4) for m in chain(0, qb, "0")]
    tc = tail_consts()
    if opt.get("qe"):
        for n in range(12): q.l(kread(0, n, 0), f"K{n}")
        for n in range(64):
            q.e(mf[n], need=(f"K{n}",))
            if n < 4: q.l(kread(0, 12 + n, 0), f"K{12+n}")
            elif tc: a.e(tc.pop(0))
    else:
        a.e(f"v_add_u32 v7, {LDS_XS}, v3")
        rd = []
        for n in range(64):
            qb, s = n // 16, n % 16
            rd.append((f"ds_read_b128 a[{64*qb+4*s}:{64*qb+4*s+3}], v7 offset:{16384*((s%8)//2) + 8192*(s//8) + 2048*qb + 1024*(s%2)}", f"Q{n}"))
            if qb == 0: rd.append((kread(0, s, 0), f"Q{n}"))
        for _ in range(14): q.l(*rd.pop(0))
        for n in range(64):
            if n % 2 == 0: q.wait(f"Q{n+1}")
            a.e(mf[n])
            for _ in range(2 if n < 14 else 1):
                if rd: q.l(*rd.pop(0))
            if n >= 30 and tc: a.e(tc.pop(0))
        a.e("s_barrier")
    assert not tc
    a.e("s_nop 7")
    for qb in range(4):
        d = S + 4 * qb
        a.e(f"v_max3_f32 v{E+qb}, v{d}, v{d+1}, v{d+2}")
        a.e(f"v_max_f32 v{E+qb}, v{E+qb}, v{d+3}")
    def group_reduce(r, t, op):
        for sw in ("v_permlane16_swap_b32", "v_permlane32_swap_b32"):
            for qb in range(4):
                a.e(f"v_mov_b32 v{t+qb}, v{r+qb}")
            a.e("s_nop 1")
            for qb in range(4):
                a.e(f"{sw} v{r+qb}, v{t+qb}")
            a.e("s_nop 1")
            for qb in range(4):
                a.e(f"{op} v{r+qb}, v{r+qb}, v{t+qb}")
    group_reduce(E, E + 4, "v_max_f32")
    a.e("s_lshl_b32 s29, s16, 8")
    a.e(f"s_add_u32 s29, s29, {LDS_MX}")
    a.e(f"v_lshl_add_u32 v{TMP}, v4, 4, s29")
    a.e(f"ds_write_b128 v{TMP}, v[{E}:{E+3}]")
    a.e(f"v_xor_b32 v{TMP}, 256, v{TMP}")
    a.e("s_waitcnt vmcnt(0) lgkmcnt(0)")
    a.e("s_barrier")
    a.e(f"ds_read_b128 v[{E+4}:{E+7}], v{TMP}")
    for s in range(8):
        a.e(kread(1, s, 32768))
    a.e("s_waitcnt lgkmcnt(8)")
    for qb in range(4):
        a.e(f"v_max_f32 v{E+qb}, v{E+qb}, v{E+4+qb}")
    for qb in range(4):
        for j in range(4):
            a.e(f"v_sub_f32 v{NEGM+4*qb+j}, 0, v{E+qb}")
    a.e("s_waitcnt lgkmcnt(4)")
    for s in range(8, 16):
        a.e(kread(1, s, 32768))
    for qb in range(4):
        for j in range(4):
            a.e(f"v_add_f32 v{S+4*qb+j}, v{S+4*qb+j}, v{NEGM+4*qb}")
    def softmax_ops(qb, par):
        e = E + 4 * (qb % 2); p = PK + 2 * (qb % 2); d = S + 4 * qb
        ex = [f"v_exp_f32 v{e+j}, v{d+j}" for j in range(4)]
        ad = [f"v_add_f32 v{LS+qb}, v{LS+qb}, v{e+j}" for j in range(4)]
        cv = [f"v_cvt_pk_bf16_f32 v{p+j}, v{e+2*j}, v{e+2*j+1}" for j in range(2)]
        wr = f"ds_write_b64 v{VPW}, v[{p}:{p+1}] offset:{par*4096 + qb*512}"
        return ex, ad, cv, wr
    ex, ad, cv, wr = softmax_ops(0, 0)
    for x in ex + ["s_nop 0"] + cv + ad + [wr]: a.e(x)
    a.e("s_waitcnt lgkmcnt(1)")
    fill = {}
    ops = []
    for qb in range(1, 4):
        ex, ad, cv, wr = softmax_ops(qb, 0)
        ops += ex + [ad[0]] + cv + ad[1:] + [wr]
    for i, x in enumerate(ops):
        fill.setdefault(i * 15 // len(ops), []).append(x)
    emit_interval(a, chain(1, 0, f"v[{NEGM}:{NEGM+3}]"), fill)
    a.e("s_waitcnt lgkmcnt(0)")
    a.e("s_sub_u32 s17, s17, 1")
    a.e("s_barrier")

    def qk_interval(par):
        mf = []
        for c in range(4):
            qb = (c + 1) % 4
            mf += chain(par if c < 3 else par ^ 1, qb, f"v[{NEGM+4*qb}:{NEGM+4*qb+3}]")
        fill = {}
        if par == 1:
            fill.setdefault(0, []).append(f"v_xor_b32 v{VK}, 0x10000, v{VK}")
        imm = 32768 * (par ^ 1)
        rgaps = [1, 2, 3, 12, 13, 14, 16, 17, 18, 28, 29, 30, 32, 33, 34, 35]
        for s in range(16):
            fill.setdefault(rgaps[s], []).append(kread(par ^ 1, s, imm))
        for c in range(4):
            b = 16 * c
            ex, ad, cv, wr = softmax_ops(c, par)
            if c == 3:
                fill.setdefault(b + 0, []).append("s_sub_u32 s17, s17, 1")
                fill.setdefault(b + 1, []).append("s_nop 0")
                fill.setdefault(b + 2, []).append("s_nop 0")
            for j in range(4):
                fill.setdefault(b + 4 + j, []).append(ex[j])
            fill.setdefault(b + 8, []).extend(cv)
            fill.setdefault(b + 9, []).extend([wr])
            fill.setdefault(b + 10, []).extend(ad[:2])
            fill.setdefault(b + 11, []).extend(ad[2:])
        fill.setdefault(47, []).append("s_waitcnt lgkmcnt(1)")
        if par == 1:
            fill.setdefault(44, []).append("s_cmp_lt_u32 s17, 16")
            fill.setdefault(45, []).extend([f"s_cbranch_scc1 {L('touch')}", L("touch_ret") + ":"])
        fill.setdefault(62, []).append("s_cmp_eq_u32 s17, 0")
        fill.setdefault(63, []).extend(["s_waitcnt lgkmcnt(0)", "s_barrier"])
        emit_interval(a, mf, fill)

    a.e("v_and_b32 v11, 3, v2")
    a.e("v_lshlrev_b32 v11, 6, v11")
    a.e("v_lshlrev_b32 v7, 7, v2")
    st(3); ff(11)
    a(".p2align 6")
    a.label(L("qk_loop"))
    qk_interval(1)
    a.e(f"s_cbranch_scc1 {L('qk_done')}")
    qk_interval(0)
    a.e(f"s_cbranch_scc0 {L('qk_loop')}")
    a.label(L("qk_done"))
    st(4); fs(0)
    q = Seq(a)
    group_reduce(LS, E, "v_add_f32")
    a.e(f"v_mov_b32 v12, v{NEGM}")
    a.e(f"v_mov_b32 v13, v{LS}")
    for qb in range(1, 4):
        a.e(f"v_cmp_eq_u32 vcc, {qb}, v5")
        a.e("s_nop 1")
        a.e(f"v_cndmask_b32 v12, v12, v{NEGM+4*qb}, vcc")
        a.e(f"v_cndmask_b32 v13, v13, v{LS+qb}, vcc")
    a.e("v_or_b32 v13, 0x80000000, v13")
    a.e("s_lshl_b32 s28, s16, 9")
    a.e("s_lshl_b32 s29, s31, 10")
    a.e("s_add_u32 s29, s29, s28")
    a.e(f"s_add_u32 s29, s29, {WS_MX}")
    a.e(f"s_add_u32 s28, s28, {LDS_ML}")
    a.e(f"v_lshlrev_b32 v{TMP}, 3, v2")
    q.v(f"buffer_store_dwordx2 v[12:13], v{TMP}, s[12:15], s29 offen sc1", "MLst")
    a.e(f"v_add_u32 v{TMP}, s28, v{TMP}")
    q.l(f"ds_write_b64 v{TMP}, v[12:13]")
    q.all(vm=False)
    fs(1)
    a.e("s_barrier")
    fs(2)
    a.e("s_mul_i32 s28, s16, 24")
    conv_addr(a, 12, "s28")
    cv = Conv(a, q, 12)
    cv.prep()
    fs(3)
    for j in range(16):
        cv.row(j)
        if j >= 2 and j < 14:
            for nb in range(4): aload(a, q, j - 2, nb)
    fs(4)
    a.e(f"s_branch {L('tail')}")
    a.label(L("touch"))
    a.e("s_lshr_b32 s26, s17, 1")
    def tl(srd, so): a.e(f"buffer_load_dword v0, v7, s[{srd}:{srd+3}], {so} offen")
    def b_code():
        a.e(auxl)
        a.e("s_getpc_b64 s[28:29]")
        a.label(L("pc0"))
        a.e(f"s_sub_u32 s28, s28, {L('pc0')} - {L('qk_done')}")
        a.e("s_subb_u32 s29, s29, 0")
        a.e("s_lshr_b32 s30, s2, 3")
        a.e("s_lshl_b32 s30, s30, 1")
        a.e("s_add_u32 s30, s30, s16")
        a.e("s_lshl_b32 s30, s30, 10")
        a.e("v_lshl_add_u32 v12, v2, 4, s30")
        a.e(f"v_min_u32 v12, {L('end')} - {L('qk_done')}, v12")
        a.e("global_load_dword v0, v12, s[28:29]")
    def b_w(part):
        def f():
            if part == 1:
                a.e("s_waitcnt vmcnt(0)")
                poll(a, Seq(a), L, "qk_aux", [auxl], auxc, "aux", slp=16)
            a.e("s_lshr_b32 s30, s2, 3")
            a.e("s_lshl_b32 s30, s30, 1")
            a.e("s_add_u32 s30, s30, s16")
            a.e("s_lshl_b32 s30, s30, 13")
            a.e(f"s_add_u32 s30, s30, {WS_W3 + 524288*part}")
            tl(12, "s30")
        return f
    ST = 212
    def b_small():
        a.e("s_mul_i32 s28, s16, 34")
        a.e("s_lshl_b32 s29, s23, 6")
        a.e("s_add_u32 s28, s28, s29")
        a.e("s_sub_u32 s28, s28, 2")
        a.e(f"v_add_u32 v{ST+16}, s28, v2")
        a.e(f"v_max_i32 v12, 0, v{ST+16}")
        a.e(f"v_min_i32 v12, {T-1}, v12")
        a.e("v_lshlrev_b32 v12, 3, v12")
        a.e("s_lshl_b32 s29, s21, 15")
        for ct in range(8):
            a.e(f"s_add_u32 s30, s29, {WS_ST + 0x10000*ct}")
            a.e(f"buffer_load_dwordx2 v[{ST+2*ct}:{ST+2*ct+1}], v12, s[12:15], s30 offen sc1")
        a.e("s_lshl_b32 s28, s16, 1")
        a.e("s_add_u32 s28, s28, s23")
        a.e("s_sub_u32 s28, s28, 1")
        a.e("s_max_i32 s28, s28, 0")
        a.e("s_min_i32 s28, s28, 62")
        a.e("s_sub_u32 s28, s28, s23")
        a.e("s_lshl_b32 s28, s28, 1")
        a.e("s_add_u32 s28, s28, s31")
        a.e("s_lshl_b32 s28, s28, 16")
        a.e("s_xor_b32 s29, s16, 1")
        a.e(f"s_mul_i32 s29, s29, {62*512}")
        a.e("s_add_u32 s28, s28, s29")
        a.e(f"s_add_u32 s28, s28, {WS_GU}")
        a.e("s_lshl_b32 s29, s16, 10")
        a.e(f"s_add_u32 m0, s29, {LDS_HALO}")
        a.e("v_lshrrev_b32 v12, 5, v2")
        a.e("buffer_load_dwordx4 v3, s[12:15], s28 offen sc1 lds")
        a.e("v_lshl_add_u32 v12, v12, 9, v3")
        a.e("s_lshl_b32 s28, s22, 9")
        for i in range(3):
            a.e(f"s_mov_b32 m0, {LDS_TAP + 1024*i}")
            a.e(f"s_add_u32 s29, s28, {2048*i}")
            a.e("buffer_load_dwordx4 v12, s[44:47], s29 offen lds")
    def b_stat():
        a.e("s_waitcnt vmcnt(0)")
        for ct in range(1, 8):
            a.e(f"v_add_f32 v{ST}, v{ST}, v{ST+2*ct}")
            a.e(f"v_add_f32 v{ST+1}, v{ST+1}, v{ST+2*ct+1}")
        a.e(f"v_mul_f32 v{ST}, {f2u(1/512)}, v{ST}")
        a.e(f"v_mul_f32 v{ST+1}, {f2u(1/512)}, v{ST+1}")
        a.e(f"v_fma_f32 v{ST+1}, -v{ST}, v{ST}, v{ST+1}")
        a.e(f"v_max_f32 v{ST+1}, 0, v{ST+1}")
        a.e(f"v_add_f32 v{ST+1}, {f2u(1e-5)}, v{ST+1}")
        a.e(f"v_rsq_f32 v{ST+1}, v{ST+1}")
        a.e(f"v_cmp_gt_u32 vcc, {T}, v{ST+16}")
        a.e(f"v_mul_f32 v{ST}, v{ST}, v{ST+1}")
        a.e(f"v_sub_f32 v{ST}, 0, v{ST}")
        a.e(f"v_cndmask_b32 v{ST+2}, 0, v{ST+1}, vcc")
        a.e(f"v_cndmask_b32 v{ST+3}, 0, v{ST}, vcc")
        a.e(f"s_mul_i32 s28, s16, {34*8}")
        a.e(f"s_add_u32 s28, s28, {LDS_STT}")
        a.e("v_lshl_add_u32 v12, v2, 3, s28")
        a.e(f"ds_write_b64 v12, v[{ST+2}:{ST+3}]")
    def b_x(r0):
        def f():
            a.e("s_lshl_b32 s30, s22, 1")
            a.e("s_add_u32 s30, s30, s16")
            a.e("s_lshl_b32 s30, s30, 14")
            a.e("s_add_u32 s30, s30, s27")
            a.e(f"s_add_u32 s30, s30, {r0*1024}")
            tl(32, "s30")
        return f
    blocks = {7: [b_code], 6: [b_w(1)], 5: [b_small], 4: [b_w(0)], 3: [b_stat], 2: [b_x(0)], 1: [b_x(8)]}
    for kx, fns in blocks.items():
        a.e(f"s_cmp_lg_u32 s26, {kx}")
        a.e(f"s_cbranch_scc1 {L('touch%d' % kx)}")
        for f in fns: f()
        a.e(f"s_branch {L('touch_ret')}")
        a.label(L("touch%d" % kx))
    a.e(f"s_branch {L('touch_ret')}")

    VB = [16, 80]; PR = [144, 160]
    VV = 8; VPR = 9
    def oreg(db, qb):
        return (f"a[{4*qb}:{4*qb+3}]", None) if db == 0 else (f"v[{16*db+4*qb}:{16*db+4*qb+3}]", 16 * db + 4 * qb)
    a.label(L("pv"))
    a.e("s_sub_u32 s19, s16, 2")
    a.e("s_lshl_b32 s18, s19, 14")
    a.e("s_add_u32 s18, s18, 65536")
    dma_tile()
    for x in tail_consts(): a.e(x)
    for i in range(16, 256, 2):
        a.e(f"v_pk_mul_f32 v[{i}:{i+1}], 0, 0")
    for i in list(range(16)) + list(range(VB[1] + 56, VB[1] + 64)) + list(range(PR[1], PR[1] + 16)):
        a.e(f"v_accvgpr_write_b32 a{i}, 0")
    a.e("v_lshrrev_b32 v4, 5, v2")
    a.e("v_lshlrev_b32 v4, 8, v4")
    a.e("v_and_b32 v5, 2, v2")
    a.e("v_lshl_add_u32 v4, v5, 6, v4")
    a.e("v_and_b32 v5, 28, v2")
    a.e("v_lshl_add_u32 v4, v5, 2, v4")
    a.e("v_and_b32 v5, 1, v2")
    a.e("v_lshl_add_u32 v4, v5, 3, v4")
    a.e("s_lshl_b32 s29, s19, 13")
    a.e(f"v_add_u32 v{VV}, s29, v4")
    a.e("s_add_u32 s29, s29, s48")
    a.e("v_add_u32 v10, s29, v3")
    a.e("s_lshl_b32 s28, s31, 16")
    a.e(f"s_add_u32 s28, s28, {WS_GU}")
    a.e("s_sub_u32 s28, s28, s10")
    a.e("s_add_u32 s98, s4, s28")
    a.e("s_addc_u32 s99, s5, 0")
    a.e("s_and_b32 s99, s99, 0xffff")
    a.e("s_add_u32 s100, s10, 65536")
    a.e(f"s_mov_b32 s29, {LDS_P}")
    a.e(f"v_lshl_add_u32 v{VPR}, v2, 3, s29")
    a.e("v_mov_b32 v11, 0")
    if not opt.get("qe"): a.e("s_barrier")
    a.e("s_waitcnt vmcnt(16)")
    a.e("s_barrier")
    def vread(par, db, kb):
        r = VB[par] + 4 * db + 2 * kb
        return f"ds_read_b64_tr_b16 a[{r}:{r+1}], v{VV} offset:{32768*par + 16384*kb + 512*db}"
    def pvm(par, db):
        out = []
        for qb in range(4):
            d = oreg(db, qb)[0]; v = VB[par] + 4 * db; p = PR[par] + 4 * qb
            out.append(f"{M16} {d}, a[{v}:{v+3}], a[{p}:{p+3}], {d}")
        return out
    signal(a, L, "sig3", 2, 4)
    dma_tile()
    for db in range(16):
        for kb in range(2):
            a.e(vread(0, db, kb))
        if db % 4 == 3: a.e("s_waitcnt lgkmcnt(4)")
    a.e(f"s_waitcnt vmcnt({nP}) lgkmcnt(0)")
    a.e("s_sub_u32 s17, s17, 1")
    a.e("s_barrier")

    pvq = []
    def pv_interval(par, last=False):
        mf = pvm(par, 14) + pvm(par, 15)
        for db in range(16 if last else 14):
            mf += pvm(par ^ 1, db)
        fill = {}
        for qb in range(4):
            p = PR[par ^ 1] + 4 * qb
            fill.setdefault(qb // 2, []).append(f"ds_read2st64_b64 a[{p}:{p+3}], v{VPR} offset0:{8*(par^1)+qb} offset1:{8*(par^1)+4+qb}")
        fill.setdefault(7, []).append("s_waitcnt lgkmcnt(0)")
        if last:
            fs(0)
            q = Seq(a)
            ops = []
            for sp in range(8):
                for qb in range(4):
                    o = []
                    if sp == 0:
                        o += [f"v_accvgpr_read_b32 v{12+j}, a{4*qb+j}" for j in range(4)]
                        lo = 12
                    else:
                        lo = oreg(2 * sp, qb)[1]
                    hi = oreg(2 * sp + 1, qb)[1]
                    t = 4 if sp == 0 else lo
                    o += [f"v_cvt_pk_bf16_f32 v{t}, v{lo}, v{lo+1}", f"v_cvt_pk_bf16_f32 v{t+1}, v{lo+2}, v{lo+3}",
                          f"v_cvt_pk_bf16_f32 v{t+2}, v{hi}, v{hi+1}", f"v_cvt_pk_bf16_f32 v{t+3}, v{hi+2}, v{hi+3}",
                          f"ds_write_b128 v10, v[{t}:{t+3}] offset:{16384*qb + 1024*sp}"]
                    ops += [(8 + 8 * sp + 4 + qb + 5, x) for x in o]
            na = 0
            def put(x):
                if x.startswith("ds_"): q.l(x, "Ow")
                else: a.e(x)
            for i, m in enumerate(mf):
                a.e(m)
                for f in fill.get(i, []): a.e(f)
                if i == 12:
                    a.e("s_waitcnt vmcnt(0)")
                    fs(1)
                    a.e("s_barrier")
                    fs(2)
                if i > 12 and i % 2 == 0 and na < 20:
                    aload(a, q, na // 4, na % 4); na += 1
                if i > 12:
                    n = 0
                    while ops and ops[0][0] <= i and n < 3:
                        put(ops.pop(0)[1]); n += 1
                    if n == 0: a.e("s_nop 0")
            fs(3)
            for _ in range(8):
                aload(a, q, na // 4, na % 4); na += 1
            while ops: put(ops.pop(0)[1])
            pvq.append((q, na))
            return
        if par == 0:
            fill.setdefault(2, []).append(f"v_xor_b32 v{VV}, 0x10000, v{VV}")
        for g, x in enumerate(["s_cmp_eq_u32 s17, 3", "s_cselect_b32 s8, s98, s8", "s_cselect_b32 s9, s99, s9", "s_cselect_b32 s10, s100, s10"]):
            fill.setdefault(3 + g, []).append(x)
        rg = [8 + 3 * (i // 2) + (i % 2) for i in range(32)]
        for i in range(32):
            fill.setdefault(rg[i], []).append(vread(par, i // 2, i % 2))
        place_dma(fill, [10 + 3 * i for i in range(16)])
        fill.setdefault(60, []).append("s_sub_u32 s17, s17, 1")
        fill.setdefault(62, []).append("s_cmp_eq_u32 s17, 0")
        fill.setdefault(63, []).extend([f"s_waitcnt vmcnt({nP}) lgkmcnt(0)", "s_barrier"])
        emit_interval(a, mf, fill)

    st(3); ff(11)
    a(".p2align 6")
    a.label(L("pv_loop"))
    pv_interval(1)
    a.e(f"s_cbranch_scc1 {L('pv_last0')}")
    pv_interval(0)
    a.e(f"s_cbranch_scc0 {L('pv_loop')}")
    pv_interval(1, True)
    a.e(f"s_branch {L('pv_stage')}")
    a.label(L("pv_last0"))
    pv_interval(0, True)
    a.label(L("pv_stage"))
    st(4)
    q, n = pvq[0]
    assert pvq[1][0].vm == q.vm and pvq[1][0].lg == q.lg
    a.e("s_lshl_b32 s28, s19, 3")
    a.e("s_add_u32 s28, s28, 48")
    q.wait("Ow")
    conv_addr(a, 4, "s28")
    cv = Conv(a, q, 4)
    cv.prep()
    for j in range(8):
        cv.row(j)
        for _ in range(4):
            if n < 4 * NA:
                aload(a, q, n // 4, n % 4); n += 1
    assert n == 4 * NA
    fs(4)
    a.label(L("tail"))
    gen_tail(a, L, st, fs, opt)
    a.label(L("fin"))
    if stamp == 1:
        a.e("s_waitcnt vmcnt(0)")
        st(7)
        emit_stamps(a, 8, nw=8, off=WS_STAMP + 0x200000)
    if stamp >= 2:
        a.e("s_waitcnt vmcnt(0)")
        fs(15)
        for k in range(13, 16): ff(k)
        emit_fine(a, off=WS_STAMP + 0x300000)
    a.label(L("end"))
    a.e("s_endpgm")
    emit_aux()
    kernel_desc(a, name, 512, 256)
    return f"; @launch grid=(256,1,1) block=(256,1,1) lds={LDS_ATT}"
```

```python
import sys
sys.path.insert(0, "gen")
from asmlib import *
from layout import *
RS = 1056
SLOT = 32 * RS

def gen_aux(a, L, st, ff):
    a.e(f"s_load_dwordx4 s[24:27], s[0:1], {KA['wv']}")
    a.e(f"s_load_dwordx4 s[28:31], s[0:1], {KA['wdn']}")
    a.e("s_waitcnt lgkmcnt(0)")
    ff(1)
    make_srd(a, 8, 30, 1048576)
    a.e("s_and_b32 s25, s25, 0xffff")
    a.e("s_and_b32 s27, s27, 0xffff")
    a.e("s_and_b32 s29, s29, 0xffff")
    a.e("s_lshl_b32 s17, s20, 2")
    a.e("s_add_u32 s17, s17, s16")
    a.e("s_lshl_b32 s40, s17, 6")
    a.e("s_lshl_b32 s47, s16, 15")
    a.e("v_lshrrev_b32 v4, 2, v2")
    a.e("v_and_b32 v5, 3, v2")
    a.e("v_lshlrev_b32 v6, 10, v4")
    a.e("v_lshl_add_u32 v6, v5, 4, v6")
    a.e("v_lshrrev_b32 v7, 4, v2")
    a.e("v_and_b32 v8, 3, v4")
    a.e("v_lshl_add_u32 v7, v7, 3, v8")
    a.e("v_lshlrev_b32 v7, 6, v7")
    a.e("v_lshl_add_u32 v7, v5, 3, v7")
    a.e("v_add_u32 v7, s47, v7")
    ff(2)
    for part in range(2):
        a.e("s_mov_b32 s41, 0")
        lab = L(f"auxtr{part}")
        a.label(lab)
        a.e("s_add_u32 m0, s47, s41")
        a.e("s_add_u32 s41, s41, 1024")
        a.e("buffer_load_dwordx4 v6, s[8:11], s40 offen lds")
        a.e("s_add_u32 s40, s40, 16384")
        a.e("s_cmp_lt_u32 s41, 32768")
        a.e(f"s_cbranch_scc1 {lab}")
        ff(3 + 3 * part)
        a.e("s_waitcnt vmcnt(0)")
        ff(4 + 3 * part)
        for t in range(16):
            for nb in range(2):
                for h in range(2):
                    r = 64 * nb + 4 * t + 2 * h
                    d = f"v[{128+r}:{129+r}]" if part == 0 else f"a[{r}:{r+1}]"
                    a.e(f"ds_read_b64_tr_b16 {d}, v7 offset:{2048*t + 256*h + 32*nb}")
            if t % 2 == 1: a.e("s_waitcnt lgkmcnt(4)")
        a.e("s_waitcnt lgkmcnt(0)")
        ff(5 + 3 * part)
    a.e("s_barrier")
    st(1)
    a.e("s_mov_b32 s36, s26")
    a.e("s_mov_b32 s37, s27")
    a.e("s_mov_b32 s38, 524288")
    a.e("s_mov_b32 s39, 0x00020000")
    a.e("s_lshl_b32 s45, s16, 13")
    a.e("s_mov_b32 s41, s45")
    a.e("s_mov_b32 s42, 0")
    a.e(f"s_mul_i32 s43, s16, {4*RS}")
    a.e(f"s_mov_b32 s44, {16*RS}")
    a.e(f"s_mul_i32 s52, s16, {8*RS}")
    def dma():
        out = []
        for ee in range(2):
            out.append("s_add_u32 s46, s42, s43" if ee == 0 else "s_add_u32 s46, s46, s44")
            for j in range(4):
                out.append(f"s_add_u32 m0, s46, {j*(RS-1024)}")
                out.append("s_nop 0")
                out.append(f"buffer_load_dwordx4 v3, s[36:39], s41 offen offset:{1024*j} lds")
            out.append(f"s_add_u32 s41, s41, {4096 if ee == 0 else 32768-4096}")
        out.append(f"s_add_u32 s42, s42, {SLOT}")
        out.append(f"s_cmp_eq_u32 s42, {4*SLOT}")
        out.append("s_cselect_b32 s42, 0, s42")
        return out
    for i in range(3):
        for x in dma(): a.e(x)
    a.e("v_and_b32 v4, 15, v2")
    a.e("v_lshrrev_b32 v5, 4, v2")
    a.e(f"v_mul_u32_u24 v4, {RS}, v4")
    a.e("v_lshl_add_u32 v4, v5, 4, v4")
    a.e("v_mov_b32 v9, v4")
    a.e("s_mov_b32 s48, 0")
    a.e("s_lshr_b32 s49, s17, 1")
    a.e("s_lshl_b32 s49, s49, 16")
    a.e("s_and_b32 s50, s17, 1")
    a.e("s_lshl_b32 s50, s50, 11")
    a.e("s_add_u32 s49, s49, s50")
    def rd(t):
        return [f"ds_read_b128 v[{32+8*(t%8)+4*ee}:{35+8*(t%8)+4*ee}], v9 offset:{16*ee*RS + 64*(t%16)}" for ee in range(2)]
    ACC = [16, 104]; LA = 6
    def flush(p):
        out = []
        for nb in range(2):
            for j in range(4):
                out.append(f"v_cvt_pk_bf16_f32 v{96+4*nb+j}, v{ACC[p]+8*nb+2*j}, v{ACC[p]+1+8*nb+2*j}")
            out.append(f"buffer_store_dwordx4 v[{96+4*nb}:{99+4*nb}], v3, s[12:15], s54 offen offset:{1024*nb} sc1")
        out.append("s_mov_b32 s54, s51")
        out.append("s_add_u32 s51, s51, 4096")
        return out
    for i in range(16): a.e(f"v_mov_b32 v{ACC[1]+i}, 0")
    a.e("s_waitcnt vmcnt(8)")
    a.e("s_barrier")
    for t in range(LA):
        for x in rd(t): a.e(x)
    for stage in range(3):
        st(2 + stage)
        B = (lambda r: f"a[{r}:{r+3}]") if stage == 1 else (lambda r: f"v[{128+r}:{131+r}]")
        a.e(f"s_add_u32 s51, s49, {[WS_T2, WS_W3, WS_W3 + 524288][stage]}")
        a.e(f"s_add_u32 s54, s49, {WS_T2 + 524288}")
        if stage == 1:
            a.e("s_waitcnt vmcnt(0)")
            for t in range(16):
                a.e(f"s_add_u32 s50, s49, {WS_T2 + 4096*t}")
                for nb in range(2):
                    r = 128 + 64 * nb + 4 * t
                    a.e(f"buffer_load_dwordx4 v[{r}:{r+3}], v3, s[12:15], s50 offen offset:{1024*nb} sc1")
        a.e("s_mov_b32 s53, 0")
        lab = L(f"auxl{stage}")
        a.label(lab)
        for p in range(2):
            a.e("s_waitcnt vmcnt(10)")
            a.e("s_barrier")
            if p == 1 and stage < 2:
                nx = 28 if stage == 0 else 24
                a.e("s_cmp_eq_u32 s53, 6")
                a.e(f"s_cselect_b32 s36, s{nx}, s36")
                a.e(f"s_cselect_b32 s37, s{nx+1}, s37")
                a.e("s_cselect_b32 s41, s45, s41")
                if stage == 1:
                    a.e("s_cselect_b32 s43, s52, s43")
                    a.e(f"s_cselect_b32 s44, {4*RS}, s44")
            dm = [x for x in dma() if x != "s_nop 0"]
            fl = flush(p ^ 1)
            for t in range(16):
                if t % 2 == 0: a.e(f"s_waitcnt lgkmcnt({2*LA-4})")
                if t == 16 - LA:
                    a.e(f"s_add_u32 s48, s48, {SLOT}")
                    a.e(f"s_cmp_eq_u32 s48, {4*SLOT}")
                    a.e("s_cselect_b32 s48, 0, s48")
                    a.e("v_add_u32 v9, s48, v4")
                k = 0
                for ee in range(2):
                    for nb in range(2):
                        d = ACC[p] + 8 * nb + 4 * ee; r = 32 + 8 * (t % 8) + 4 * ee
                        c = "0" if t == 0 else f"v[{d}:{d+3}]"
                        a.e(f"{M16} v[{d}:{d+3}], v[{r}:{r+3}], {B(64*nb + 4*t)}, {c}")
                        if k < 2:
                            a.e(rd(t + LA)[k])
                            if t >= 2 and fl: a.e(fl.pop(0))
                        if k >= 2 and dm: a.e(dm.pop(0))
                        k += 1
            assert not dm and not fl
        a.e("s_add_u32 s53, s53, 1")
        a.e("s_cmp_lt_u32 s53, 8")
        a.e(f"s_cbranch_scc1 {lab}")
        a.e("s_nop 7")
        for x in flush(1): a.e(x)
    a.e("s_waitcnt vmcnt(0)")
    a.e("s_barrier")
```

```python
import sys, math
sys.path.insert(0, "gen")
from asmlib import *
from layout import *

RS = 1056
LDS_XS = 98304
LDS_MS = 163840 - 64 * RS
RING = 5
SS = 144
SPIN = 40000

def poll(a, q, L, name, load, cond, tag, slp=2):
    q.wait(tag)
    lab, done = L(name + "_spin"), L(name + "_ok")
    a.e(f"s_mov_b32 s30, {SPIN}")
    a.label(lab)
    for x in cond: a.e(x)
    a.e(f"s_cbranch_scc1 {done}")
    a.e(f"s_sleep {slp}")
    for x in load: a.e(x)
    a.e("s_sub_u32 s30, s30, 1")
    a.e("s_waitcnt vmcnt(0)")
    a.e(f"s_cbranch_scc0 {lab}")
    a.label(done)

def signal(a, L, name, wave, off):
    a.e(f"s_cmp_lg_u32 s16, {wave}")
    a.e(f"s_cbranch_scc1 {L(name)}")
    a.e("v_mov_b32 v14, 1")
    a.e("s_and_b32 s26, s2, 3")
    a.e("s_lshl_b32 s26, s26, 6")
    a.e("s_mov_b64 exec, 1")
    a.e(f"buffer_atomic_add v14, off, s[92:95], s26 offset:{off}")
    a.e("s_mov_b64 exec, -1")
    a.label(L(name))

def cnt_load(off, va="v13"):
    return f"buffer_load_dword v14, {va}, s[92:95], 0 offen offset:{off} sc1"
CNT_OK = ["v_cmp_le_u32 vcc, 64, v14", "s_nop 1", "s_cmp_eq_u64 vcc, -1"]

def m_issue(a, q):
    a.e("s_lshr_b32 s17, s2, 4")
    a.e("s_lshl_b32 s17, s17, 15")
    a.e("s_and_b32 s18, s2, 15")
    a.e("s_lshl_b32 s18, s18, 15")
    a.e("s_lshl_b32 s19, s16, 13")
    a.e("s_add_u32 s17, s17, s19")
    a.e("s_add_u32 s18, s18, s19")
    a.e(f"s_mul_i32 s19, s16, {4*RS}")
    out = []
    for m, (srd, so) in enumerate(((40, "s17"), (8, "s18"))):
        for ee in range(2):
            for j in range(4):
                def f(m=m, srd=srd, so=so, ee=ee, j=j):
                    a.e(f"s_add_u32 m0, s19, {LDS_MS + (32*m + 16*ee + j)*RS - 1024*j}")
                    a.e(f"s_add_u32 {so}, {so}, 4096" if (ee == 1 and j == 0) else "s_nop 0")
                    q.v(f"buffer_load_dwordx4 v3, s[{srd}:{srd+3}], {so} offen offset:{1024*j} lds", "Mst")
                out.append(f)
    return out

def m_tile(a, q):
    a.e("v_and_b32 v4, 15, v2")
    a.e("v_lshrrev_b32 v5, 4, v2")
    a.e(f"v_mul_u32_u24 v6, {RS}, v4")
    a.e("v_lshl_add_u32 v6, v5, 4, v6")
    a.e(f"v_add_u32 v6, {LDS_MS}, v6")
    a.e("s_and_b32 s26, s16, 1")
    a.e("s_lshr_b32 s28, s16, 1")
    a.e(f"s_mul_i32 s29, s26, {16*RS}")
    a.e("v_add_u32 v7, s29, v6")
    a.e(f"s_mul_i32 s29, s28, {16*RS}")
    a.e("v_add_u32 v6, s29, v6")
    a.e("s_bfe_u32 s29, s2, 0x30001")
    a.e("s_lshl_b32 s29, s29, 16")
    a.e("s_lshr_b32 s30, s2, 4")
    a.e("s_lshl_b32 s30, s30, 12")
    a.e("s_add_u32 s29, s29, s30")
    a.e("s_and_b32 s30, s2, 1")
    a.e("s_lshl_b32 s30, s30, 1")
    a.e("s_add_u32 s30, s30, s28")
    a.e("s_lshl_b32 s30, s30, 10")
    a.e("s_add_u32 s29, s29, s30")
    a.e("s_lshl_b32 s30, s26, 3")
    a.e("s_add_u32 s29, s29, s30")
    a.e(f"s_add_u32 s29, s29, {WS_MI}")
    q.wait("Mst")
    a.e("s_barrier")
    R = lambda t: 16 + 8 * (t % 8)
    def rd(t):
        q.l(f"ds_read_b128 v[{R(t)}:{R(t)+3}], v7 offset:{64*t}", f"m{t}")
        q.l(f"ds_read_b128 v[{R(t)+4}:{R(t)+7}], v6 offset:{32*RS + 64*t}", f"m{t}")
    for t in range(7): rd(t)
    for t in range(16):
        q.e(f"{M16} v[8:11], v[{R(t)}:{R(t)+3}], v[{R(t)+4}:{R(t)+7}], {'0' if t == 0 else 'v[8:11]'}", need=(f"m{t}",))
        if t + 7 < 16: rd(t + 7)
    a.e("s_barrier")
    def fin():
        sc = f2u(512 ** -0.5 * math.log2(math.e))
        for i in range(4): a.e(f"v_mul_f32 v{8+i}, {sc}, v{8+i}")
        a.e("v_cvt_pk_bf16_f32 v8, v8, v9")
        a.e("v_cvt_pk_bf16_f32 v9, v10, v11")
        q.v("buffer_store_dwordx2 v[8:9], v3, s[12:15], s29 offen sc1", "St")
    return fin

def touches(a, q, L, opt):
    a.e("v_lshlrev_b32 v7, 7, v2")
    a.e("s_lshr_b32 s26, s2, 3")
    a.e("s_lshl_b32 s26, s26, 2")
    a.e("s_add_u32 s26, s26, s16")
    a.e("s_getpc_b64 s[28:29]")
    a.label(L("pc1"))
    a.e("s_lshl_b32 s30, s26, 9")
    a.e("v_lshl_add_u32 v12, v2, 3, s30")
    a.e(f"v_min_u32 v12, {L('end')} - {L('pc1')}, v12")
    q.v("global_load_dword v0, v12, s[28:29]")
    if opt.get("tw"):
        a.e("s_lshl_b32 s26, s26, 13")
        q.v("buffer_load_dword v0, v7, s[96:99], s26 offen")

def touch_aux(a, q):
    for w in range(1, 4):
        a.e(f"s_cmp_eq_u32 s16, {w}")
        a.e(f"s_cselect_b32 s52, s{52+2*w}, s52")
        a.e(f"s_cselect_b32 s53, s{53+2*w}, s53")
    a.e("s_lshl_b32 s28, s2, 6")
    a.e("v_add_lshl_u32 v14, s28, v2, 5")
    a.e("v_lshlrev_b32 v13, 1, v14")
    a.e("s_cmp_eq_u32 s16, 3")
    a.e("s_cselect_b64 vcc, -1, 0")
    a.e("v_cndmask_b32 v14, v14, v13, vcc")
    q.v("global_load_dword v0, v14, s[52:53]")

def gen_front(a, q, L, st, fs, mi, clear, opt):
    X = 16; F = 128
    if opt.get("skip"):
        v0 = q.v
        def v1(text, tag="_", need=()):
            if text.startswith("buffer_store_dwordx4") and tag[0] in opt["skip"]: return
            v0(text, tag, need)
        q.v = v1
    a.e("v_lshrrev_b32 v12, 3, v2")
    a.e("v_and_b32 v13, 7, v2")
    a.e("v_and_b32 v14, 2, v12")
    a.e("v_xor_b32 v14, v13, v14")
    a.e("v_lshlrev_b32 v14, 4, v14")
    WV = 80
    a.e(f"v_lshl_add_u32 v{WV}, v12, 11, v14")
    a.e(f"v_xor_b32 v{WV+1}, 64, v{WV}")
    a.e(f"v_add_u32 v{WV+1}, {16384-1024}, v{WV+1}")
    a.e(f"v_add_u32 v{WV+2}, {2*(16384-1024)}, v{WV}")
    a.e(f"v_add_u32 v{WV+3}, {2*(16384-1024)}, v{WV+1}")
    a.e("s_lshl_b32 s26, s22, 2")
    a.e("s_add_u32 s26, s26, s16")
    a.e("s_add_u32 s28, s26, s23")
    a.e("s_and_b32 s28, s28, 7")
    a.e("s_lshl_b32 s3, s26, 7")
    a.e("s_lshl_b32 s29, s28, 17")
    a.e("s_add_u32 s3, s3, s29")
    a.e("s_lshl_b32 s20, s26, 16")
    a.e("s_lshl_b32 s29, s28, 13")
    a.e("s_add_u32 s20, s20, s29")
    a.e(f"s_add_u32 s20, s20, {WS_MI}")
    a.e(f"s_mul_i32 s6, s16, {RING*4096}")
    a.e("v_and_b32 v4, 15, v2")
    a.e("v_lshrrev_b32 v5, 4, v2")
    widx = lambda k: k if k < 16 else k - 16
    def wdma(k, j):
        if j == 0:
            a.e(f"s_add_u32 m0, s6, {4096*(widx(k) % RING)}")
            a.e(f"s_xor_b32 s7, s3, {65536*(k % 16) + (1024 if k < 16 else 0)}")
        q.v(f"buffer_load_dwordx4 v{WV+j}, s[96:99], s7 offen offset:{1024*j} lds", f"W{k}")
    ringf = [lambda k=k, j=j: wdma(k, j) for k in range(RING) for j in range(4)]
    EM = opt.get("early", 0)
    early = list(mi) + [clear] + (ringf if EM == 0 else [])
    late = ringf if EM else []
    SW, SR, SG, QW = 84, 85, 86, 87
    a.e(f"s_mul_i32 s26, s16, {16*SS}")
    a.e(f"s_add_u32 s26, s26, {4*RING*4096}")
    a.e(f"v_mul_u32_u24 v{SR}, {SS}, v12")
    a.e(f"v_lshl_add_u32 v{SR}, v13, 4, v{SR}")
    a.e(f"v_add_u32 v{SR}, s26, v{SR}")
    a.e(f"v_lshlrev_b32 v{SG}, 9, v12")
    a.e(f"v_lshl_add_u32 v{SG}, v13, 4, v{SG}")
    a.e(f"v_mul_u32_u24 v{SW}, {SS}, v4")
    a.e(f"v_lshl_add_u32 v{SW}, v5, 3, v{SW}")
    a.e(f"v_add_u32 v{SW}, s26, v{SW}")
    a.e("s_lshl_b32 s26, s16, 14")
    a.e(f"s_add_u32 s26, s26, {LDS_XS}")
    a.e("s_lshl_b32 s28, s22, 13")
    a.e("s_add_u32 s28, s28, s26")
    a.e(f"v_add_u32 v{QW}, s28, v3")
    a.e("v_lshrrev_b32 v14, 2, v12")
    a.e("v_lshlrev_b32 v14, 1, v14")
    a.e("v_xor_b32 v14, v13, v14")
    a.e("v_and_b32 v14, 3, v14")
    a.e("v_lshlrev_b32 v14, 4, v14")
    a.e("v_lshl_add_u32 v14, v12, 6, v14")
    a.e("v_lshrrev_b32 v13, 2, v13")
    a.e("v_lshl_add_u32 v14, v13, 10, v14")
    a.e("v_add_u32 v12, s28, v14")
    a.e("v_xor_b32 v15, 0x2000, v12")
    a.e("s_mov_b32 s101, 0xffff0000")
    if EM == 2:
        while early: early.pop(0)()
    A0 = 96
    def reduce8(r):
        a.e(f"v_pk_add_f32 v[{r}:{r+1}], v[{r}:{r+1}], v[{r+2}:{r+3}]")
        a.e(f"v_add_f32 v{r}, v{r}, v{r+1}")
        for d in ("quad_perm:[1,0,3,2]", "quad_perm:[2,3,0,1]", "row_half_mirror"):
            a.e("s_nop 1")
            a.e(f"v_add_f32_dpp v{r}, v{r}, v{r} {d} row_mask:0xf bank_mask:0xf")
    for h in range(2):
        for i in range(8):
            s = 8 * h + i
            q.wait(f"x{s}")
            if s == 0: fs(1)
            if early: early.pop(0)()
            for j in range(4):
                x = X + 4 * s + j; f = F + 8 * s + 2 * j
                a.e(f"v_lshlrev_b32 v{f}, 16, v{x}")
                a.e(f"v_and_b32 v{f+1}, s101, v{x}")
            for j in range(4):
                f = F + 8 * s + 2 * j; acc = A0 + 2 * (j % 2)
                if i == 0 and j < 2:
                    a.e(f"v_pk_add_f32 v[{acc}:{acc+1}], v[{f}:{f+1}], 0")
                else:
                    a.e(f"v_pk_add_f32 v[{acc}:{acc+1}], v[{acc}:{acc+1}], v[{f}:{f+1}]")
        if h == 1: fs(2)
        reduce8(A0)
        a.e(f"v_mul_f32 v{A0+4}, {f2u(-1.0/512)}, v{A0}")
        for k in range(33):
            f = F + 64 * h + 2 * k
            if k < 32:
                a.e(f"v_pk_add_f32 v[{f}:{f+1}], v[{f}:{f+1}], v[{A0+4}:{A0+5}] op_sel_hi:[1,0]")
            if k % 3 == 0 and early: early.pop(0)()
            if k >= 1:
                f -= 2; acc = A0 + 2 * ((k - 1) % 2)
                a.e(f"v_pk_mul_f32 v[{acc}:{acc+1}], v[{f}:{f+1}], v[{f}:{f+1}]" if k < 3 else
                    f"v_pk_fma_f32 v[{acc}:{acc+1}], v[{f}:{f+1}], v[{f}:{f+1}], v[{acc}:{acc+1}]")
        reduce8(A0)
        a.e(f"v_mov_b32 v{A0+1}, {f2u(1e-5)}")
        a.e(f"v_fmac_f32 v{A0+1}, {f2u(1.0/512)}, v{A0}")
        a.e(f"v_rsq_f32 v{A0+6+2*h}, v{A0+1}")
    assert not early
    fs(3)
    mfin = m_tile(a, q)
    fs(4)
    srd_off(a, 8, 4, "s24", 4096000)
    a.e("s_nop 2")
    mfin()
    ZR, YO = 88, 90
    a.e("v_lshrrev_b32 v13, 1, v4")
    a.e("v_and_b32 v13, 2, v13")
    a.e("v_xor_b32 v13, v5, v13")
    a.e("v_lshlrev_b32 v13, 4, v13")
    a.e(f"v_lshl_add_u32 v{ZR}, v4, 6, v13")
    a.e("v_and_b32 v13, 0x27, v2")
    a.e("v_and_b32 v14, 8, v2")
    a.e("v_lshl_add_u32 v13, v14, 1, v13")
    a.e("v_and_b32 v14, 16, v2")
    a.e("v_lshrrev_b32 v14, 1, v14")
    a.e(f"v_add_lshl_u32 v{YO}, v13, v14, 4")
    def touch_u():
        a.e("s_lshr_b32 s26, s2, 3")
        a.e("s_lshl_b32 s26, s26, 2")
        a.e("s_add_u32 s26, s26, s16")
        a.e("s_lshl_b32 s26, s26, 13")
        a.e("v_lshlrev_b32 v14, 6, v4")
        a.e("v_lshl_add_u32 v14, v5, 11, v14")
        q.v("buffer_load_dword v0, v14, s[96:99], s26 offen")
    for n, s in enumerate([0, 8, 1, 9, 2, 10, 3, 11, 4, 12, 5, 13, 6, 14, 7, 15]):
        h, i = s // 8, s % 8
        for j in range(4):
            f = F + 8 * s + 2 * j
            a.e(f"v_pk_mul_f32 v[{f}:{f+1}], v[{f}:{f+1}], v[{A0+6+2*h}:{A0+7+2*h}] op_sel_hi:[1,0]")
        for j in range(4):
            f = F + 8 * s + 2 * j
            a.e(f"v_cvt_pk_bf16_f32 v{X+4*s+j}, v{f}, v{f+1}")
        q.l(f"ds_write_b128 {'v12' if i < 4 else 'v15'}, v[{X+4*s}:{X+4*s+3}] offset:{2048*(i%4) + 512*h}", "xw")
        for _ in range(2):
            if late: late.pop(0)()
        if n == 0 and opt.get('ta', 1): touch_aux(a, q)
        if n == 1 and not opt.get("tw"): touch_u()
    XR_, TR = 88, 92
    a.e("s_lshr_b32 s26, s3, 17")
    a.e("s_lshl_b32 s26, s26, 11")
    a.e("s_add_u32 s19, s26, s27")
    a.e(f"s_add_u32 s26, s26, {LDS_XS}")
    a.e(f"v_add_u32 v{XR_}, s26, v{ZR}")
    a.e("v_lshrrev_b32 v12, 2, v4")
    a.e("v_lshl_add_u32 v12, v5, 3, v12")
    a.e("v_lshlrev_b32 v12, 7, v12")
    a.e("v_and_b32 v13, 3, v2")
    a.e("v_lshl_add_u32 v12, v13, 3, v12")
    a.e("v_and_b32 v14, 24, v2")
    a.e("v_lshl_add_u32 v12, v14, 2, v12")
    a.e(f"v_add_u32 v{TR}, s6, v12")
    for nb in range(1, 4):
        a.e(f"v_xor_b32 v{TR+nb}, {32*nb}, v{TR}")
    q.wait("xw", "St")
    a.e("s_barrier")
    st(1)
    AR = [16 + 16 * i for i in range(4)] + [96]
    ACC = [128, 192, 128]
    T = 112
    NQ = 5
    def areg(k): return AR[(k - 16 + 2) % NQ] if 16 <= k < 32 else AR[k % 2] if k < 16 else AR[3 + k % 2]
    def bread(s, tb):
        r = 64 * tb + 4 * s
        if tb == 0 and s % 2 == 0: a.e(f"v_xor_b32 v{XR_+1}, {1024*s}, v{XR_}")
        q.l(f"ds_read_b128 a[{r}:{r+3}], v{XR_+1} offset:{16384*tb + 1024*(s%2)}", f"B{s}")
    def tread(k, i):
        nb, h = i // 2, i % 2
        r = areg(k) + 4 * nb + 2 * h
        q.l(f"ds_read_b64_tr_b16 v[{r}:{r+1}], v{TR+nb} offset:{4096*(widx(k) % RING) + 512*h}", f"A{k}", need=(f"W{k}",))
    def mload(k, nb):
        if nb == 0: a.e(f"s_xor_b32 s42, s20, {4096*(k-16)}")
        r = areg(k) + 4 * nb
        q.v(f"buffer_load_dwordx4 v[{r}:{r+3}], v3, s[12:15], s42 offen offset:{1024*nb} sc1", f"A{k}")
    for tb in range(4): bread(0, tb)
    for i in range(8): tread(0, i)
    signal(a, L, "sig1", 0, 0)
    for tb in range(4): bread(1, tb)
    c1 = -2 * math.sqrt(2 / math.pi) * math.log2(math.e)
    a.e(f"s_mov_b32 s100, {f2u(c1 * 0.044715)}")
    a.e(f"s_mov_b32 s101, {f2u(c1)}")
    a.e(f"v_mov_b32 v1, s101")
    a.e("v_mov_b32 v11, 0")
    a.e("v_lshlrev_b32 v13, 6, v13")
    a.e("s_cmp_eq_u32 s16, 1")
    a.e("s_cselect_b32 s26, 0, 0x1000")
    a.e("v_add_u32 v13, s26, v13")
    fixed = {}
    def at(k, g, fn): fixed.setdefault((k, g), []).append(fn)
    for k in range(48):
        if k + 1 < 16 or 32 <= k + 1 < 48:
            for i in range(8): at(k, i, lambda k=k, i=i: tread(k + 1, i))
        if k + 2 < 16:
            for tb in range(4): at(k, 8 + 2 * tb, lambda k=k, tb=tb: bread(k + 2, tb))
    for kk in list(range(RING, 16)) + list(range(32, 48)):
        k = 11 if kk == 32 else kk - RING
        for j in range(4): at(k, 9 + 2 * j, lambda kk=kk, j=j: wdma(kk, j))
    for kk in range(16, 32):
        k = kk - NQ + 1
        for nb in range(4): at(k, (9 + 2 * nb) if k < 16 else (1 + 4 * nb), lambda kk=kk, nb=nb: mload(kk, nb))
    side = {p: [] for p in range(3)}
    def S(p, x, cost=1): side[p].append((x if callable(x) else (lambda x=x: a.e(x)), 2 if (isinstance(x, str) and x.split()[0] in ("v_exp_f32", "v_rcp_f32")) else cost))
    def setup0():
        a.e("s_lshl_b32 s18, s31, 16")
        a.e("s_lshl_b32 s26, s16, 7")
        a.e("s_add_u32 s18, s18, s26")
        a.e(f"s_add_u32 s18, s18, {WS_GU}")
        a.e("s_lshl_b32 s40, s31, 2")
        a.e("s_add_u32 s40, s40, s16")
        a.e("s_lshl_b32 s40, s40, 13")
        a.e(f"s_add_u32 s40, s40, {WS_QP}")
        a.e("s_lshl_b32 s41, s31, 5")
        a.e("s_add_u32 s41, s41, s16")
        a.e("s_lshl_b32 s41, s41, 2")
        a.e(f"s_add_u32 s41, s41, {WS_FL + 16}")
    setup0()
    def pub(i):
        tb, sl = i // 2, i % 2
        q.v(f"buffer_store_dwordx4 a[{64*tb+4*sl}:{64*tb+4*sl+3}], v{YO}, s[8:11], s19 offen offset:{1024*sl} sc1", "Xst", need=(f"B{sl}",))
        if sl: a.e("s_add_u32 s19, s19, 16384")
    PUB = opt.get("pub", [(13 + 2 * i, 3 if i > 1 else 8) for i in range(8)])
    for i in range(8): at(*PUB[i], lambda i=i: pub(i))
    KP = opt.get("kp", 8)
    at(KP, 8, lambda: q.v(cnt_load(0), "c1"))
    def chk(name, off):
        q.wait(name)
        a.e("s_cmp_lg_u32 s16, 1")
        a.e(f"s_cbranch_scc1 {L(name + '_ok')}")
        poll(a, q, L, name, [cnt_load(off)], CNT_OK, name, slp=8)
        a.e("s_barrier")
    def chk1():
        chk("c1", 0)
        a.e("s_lshr_b32 s26, s2, 3")
        a.e("s_lshl_b32 s26, s26, 2")
        a.e("s_add_u32 s26, s26, s16")
        a.e("s_lshl_b32 s26, s26, 12")
        a.e(f"s_add_u32 s26, s26, {WS_MI}")
        a.e("v_lshlrev_b32 v14, 6, v2")
        q.v("buffer_load_dword v0, v14, s[12:15], s26 offen sc1")
    at(KP + 3, 8, chk1)
    def sig2():
        q.wait("Xst")
        a.e("s_barrier")
        signal(a, L, "sig2", 0, 8)
    at(opt.get("k2", 31), 8, sig2)
    if opt.get("k2", 31) > 31: at(17, 0, lambda: a.e("s_barrier"))
    def gelu(E0, E1, nb0, acc, kind):
        off = 0 if kind == "g" else 32768
        for tb in range(4):
            for h in range(2):
                pk = 2 * tb + h >= nb0
                E = E1 if pk else E0
                src = [acc + 16 * (2 * h + ee) + 4 * tb + j for ee in range(2) for j in range(4)]
                P = lambda r: f"v[{r}:{r+1}]"
                if pk:
                    for i in range(0, 8, 2): E(f"v_pk_mul_f32 {P(T+i)}, {P(src[i])}, {P(src[i])}")
                    for i in range(0, 8, 2): E(f"v_pk_fma_f32 {P(T+i)}, {P(T+i)}, s[100:101], s[100:101] op_sel:[0,0,1] op_sel_hi:[1,0,1]")
                    for i in range(0, 8, 2): E(f"v_pk_mul_f32 {P(T+i)}, {P(T+i)}, {P(src[i])}")
                    for i in range(8): E(f"v_exp_f32 v{T+i}, v{T+i}")
                    for i in range(0, 8, 2): E(f"v_pk_add_f32 {P(T+i)}, {P(T+i)}, 1.0 op_sel_hi:[1,0]")
                    for i in range(8): E(f"v_rcp_f32 v{T+i}, v{T+i}")
                    for i in range(0, 8, 2): E(f"v_pk_mul_f32 {P(src[i])}, {P(T+i)}, {P(src[i])}")
                else:
                    for i, x in enumerate(src): E(f"v_mul_f32 v{T+i}, v{x}, v{x}")
                    for i, x in enumerate(src): E(f"v_fma_f32 v{T+i}, v{T+i}, s100, v1")
                    for i, x in enumerate(src): E(f"v_mul_f32 v{T+i}, v{T+i}, v{x}")
                    for i, x in enumerate(src): E(f"v_exp_f32 v{T+i}, v{T+i}")
                    for i, x in enumerate(src): E(f"v_add_f32 v{T+i}, 1.0, v{T+i}")
                    for i, x in enumerate(src): E(f"v_rcp_f32 v{T+i}, v{T+i}")
                    for i, x in enumerate(src): E(f"v_mul_f32 v{x}, v{T+i}, v{x}")
                pr = T + 8 + 4 * h
                for j in range(4): E(f"v_cvt_pk_bf16_f32 v{pr+j}, v{src[2*j]}, v{src[2*j+1]}")
                for ee in range(2):
                    E(lambda ee=ee, pr=pr, tb=tb, h=h: q.l(f"ds_write_b64 v{SW}, v[{pr+2*ee}:{pr+2*ee+1}] offset:{32*(2*h+ee)}"))
                if kind == "g":
                    s0, s1 = acc + 4 * tb, acc + 4 * tb + 1
                    if pk:
                        E(f"v_pk_mul_f32 {P(T)}, {P(src[0])}, {P(src[0])}")
                        E(f"v_pk_add_f32 {P(T+2)}, {P(src[0])}, {P(src[2])}")
                        for i in (2, 4, 6):
                            E(f"v_pk_fma_f32 {P(T)}, {P(src[i])}, {P(src[i])}, {P(T)}")
                            if i > 2: E(f"v_pk_add_f32 {P(T+2)}, {P(T+2)}, {P(src[i])}")
                        if h == 0:
                            E(f"v_add_f32 v{s0}, v{T+2}, v{T+3}")
                            E(f"v_add_f32 v{s1}, v{T}, v{T+1}")
                        else:
                            E(f"v_add_f32 v{T+2}, v{T+2}, v{T+3}")
                            E(f"v_add_f32 v{T+3}, v{T}, v{T+1}")
                            E(f"v_pk_add_f32 {P(s0)}, {P(s0)}, {P(T+2)}")
                    elif h == 0:
                        E(f"v_mul_f32 v{T}, v{src[0]}, v{src[0]}")
                        for x in src[1:]: E(f"v_fmac_f32 v{T}, v{x}, v{x}")
                        for x in src[1:]: E(f"v_add_f32 v{s0}, v{s0}, v{x}")
                        E(f"v_mov_b32 v{s1}, v{T}")
                    else:
                        for x in src:
                            E(f"v_add_f32 v{s0}, v{s0}, v{x}")
                            E(f"v_fmac_f32 v{s1}, v{x}, v{x}")
                if tb >= 1: store(E, acc, kind, 2 * (tb - 1) + h, off)
            for i in (2 * tb, 2 * tb + 1):
                r = acc + 32 + 16 * (i % 2) + 4 * tb
                E(lambda i=i, r=r: q.l(f"ds_read_b128 v[{r}:{r+3}], v{SR} offset:{8*SS*(i%2)}", f"sr{kind}{i}"))
        if kind == "g":
            for k in range(2):
                E(f"v_permlane16_swap_b32 v{acc+k}, v{acc+4+k}")
                E(f"v_permlane16_swap_b32 v{acc+8+k}, v{acc+12+k}")
            E("s_lshl_b32 s26, s22, 2")
            for k in range(2):
                E(f"v_add_f32 v{acc+k}, v{acc+k}, v{acc+4+k}")
                E(f"v_add_f32 v{acc+8+k}, v{acc+8+k}, v{acc+12+k}")
            E("s_add_u32 s26, s26, s16")
            E("s_lshl_b32 s26, s26, 16")
            for k in range(2): E(f"v_permlane32_swap_b32 v{acc+k}, v{acc+8+k}")
            E("s_lshr_b32 s28, s31, 1")
            E("s_lshl_b32 s28, s28, 9")
            for k in range(2): E(f"v_add_f32 v{T+k}, v{acc+k}, v{acc+8+k}")
            E("s_add_u32 s26, s26, s28")
            E(f"s_add_u32 s26, s26, {WS_ST}")
            E(f"v_lshlrev_b32 v{T+2}, 3, v2")
            E(lambda: q.v(f"buffer_store_dwordx2 v[{T}:{T+1}], v{T+2}, s[12:15], s26 offen sc1", "St"))
        store(E, acc, kind, 6, off); store(E, acc, kind, 7, off)
    def store(E, acc, kind, i, off):
        r = acc + 32 + 16 * (i % 2) + 4 * (i // 2)
        def f():
            a.e(f"s_add_u32 s29, s18, {off + 4096*i}")
            q.v(f"buffer_store_dwordx4 v[{r}:{r+3}], v{SG}, s[12:15], s29 offen{' sc1' if kind == 'g' and i in (0, 7) else ''}", "St", need=(f"sr{kind}{i}",))
        E(f)
    post1 = []
    for i in range(8):
        tb, half = i // 2, i % 2
        src = [ACC[1] + 16 * (2 * half + ee) + 4 * tb + j for ee in range(2) for j in range(4)]
        pr = src[0]
        for j in range(4): post1.append(f"v_cvt_pk_bf16_f32 v{pr+j}, v{src[2*j]}, v{src[2*j+1]}")
        def qs(i=i, pr=pr):
            if i == 4: a.e("s_add_u32 s40, s40, 4096")
            q.v(f"buffer_store_dwordx4 v[{pr}:{pr+3}], v3, s[12:15], s40 offen offset:{1024*(i%4)} sc1", "Qst")
            q.l(f"ds_write_b128 v{QW}, v[{pr}:{pr+3}] offset:{1024*i}", "qw")
        post1.append(qs)
    gelu(lambda x: S(1, x), post1.append, opt.get("nb", 4), ACC[0], "g")
    def qflag():
        a.e("v_mov_b32 v12, 1")
        q.v("buffer_store_dword v12, v11, s[12:15], s41 offen sc1", need=("Qst",))
        a.e("s_xor_b32 s41, s41, 128")
    if opt.get("kq"): at(opt["kq"], 8, qflag)
    else: post1.append(qflag)
    at(opt.get("kc2", 43), 8, lambda: q.v(cnt_load(8), "c2"))
    qfl = "buffer_load_dword v15, v11, s[12:15], s41 offen sc1"
    KG = opt.get("kg", 45)
    at(43, 0, lambda: q.v(qfl, "qf"))
    def getq():
        poll(a, q, L, "q", [qfl], ["v_readfirstlane_b32 s26, v15", "s_cmp_eq_u32 s26, 1"], "qf", slp=4)
        a.e("s_xor_b32 s26, s22, 1")
        a.e("s_lshl_b32 s26, s26, 13")
        a.e("s_lshl_b32 s28, s16, 14")
        a.e("s_add_u32 s17, s26, s28")
        a.e("s_xor_b32 s40, s40, 0x9000")
    at(KG, 8, getq)
    for i in range(8):
        def qd(i=i):
            if i % 4 == 0:
                a.e(f"s_add_u32 m0, s17, {LDS_XS + 1024*i}")
                a.e("s_add_u32 s40, s40, 4096" if i else "s_nop 0")
            q.v(f"buffer_load_dwordx4 v3, s[12:15], s40 offen offset:{1024*(i%4)} sc1 lds", "qd")
        at(KG + i // 4, 9 + 2 * (i % 4), qd)
    def setup2():
        a.e("s_mul_i32 s28, s22, 2064384")
        a.e("s_add_u32 s28, s28, s24")
        a.e("s_lshl_b32 s26, s25, 15")
        srd_off(a, 8, 4, "s28", "s26")
        a.e("s_lshl_b32 s19, s16, 13")
    at(44, 9, setup2)
    for p in range(3):
        gaps = [(k, g) for k in range(16 * p, 16 * p + 16) for g in range(16)]
        lead = 10
        tailg = 4
        cap = [0 if (n < lead or n >= len(gaps) - tailg) else max(0, 2 - len(fixed.get(x, []))) for n, x in enumerate(gaps)]
        C = sum(c for _, c in side[p]); tot = sum(cap)
        scale = min(1.0, C / tot)
        extra = max(0.0, (C - tot) / (len(gaps) - lead - tailg))
        budget = 0.0; used = 0
        ops = list(side[p])
        fs(5 + p)
        for n, (k, g) in enumerate(gaps):
            if g == 0:
                if k in opt.get("fk", []): Fine(a, True)(opt["fk"].index(k))
                q.wait(f"A{k}", f"B{k}")
            nb, tb = g // 4, g % 4
            d = ACC[p] + 16 * nb + 4 * tb; r = areg(k) + 4 * nb; b = 64 * tb + 4 * (k % 16)
            c = "0" if k % 16 == 0 else f"v[{d}:{d+3}]"
            a.e(f"{M16} v[{d}:{d+3}], v[{r}:{r+3}], a[{b}:{b+3}], {c}")
            for fn in fixed.pop((k, g), []): fn()
            if lead <= n < len(gaps) - tailg:
                budget += cap[n] * scale + extra
            while ops and (used + ops[0][1] <= budget + 1e-6 or n == len(gaps) - tailg):
                fn, cst = ops.pop(0); fn(); used += cst
        assert not ops
        if p == 1:
            fs(12)
            a.e("s_nop 3")
            for x in post1: x() if callable(x) else a.e(x)
    assert not fixed, fixed.keys()
    fs(8)
    chk("c2", 8)
    def kv(t):
        for i in range(8):
            if i % 4 == 0:
                a.e(f"s_add_u32 m0, s19, {32768*t + 1024*i}")
                a.e(f"s_add_u32 s29, s19, {32768*t + 1024*i}")
            q.v(f"buffer_load_dwordx4 v3, s[8:11], s29 offen offset:{1024*(i%4)} sc1 lds", f"kv{t}")
    kv(0)
    ops = []
    gelu(None, ops.append, 0, ACC[2], "u")
    def qbar():
        q.wait("qd", "qw")
        a.e("s_barrier")
        a.e(f"v_add_u32 v7, {LDS_XS}, v3")
    QB = opt.get("qb", 84)
    nq = 0
    for n, x in enumerate(ops):
        if n == opt.get("gk", 42): kv(1)
        if n == QB and opt.get('qe'): qbar()
        x() if callable(x) else a.e(x)
        if opt.get('qe') and n >= QB and nq < 64 and (n - QB) % 3 == 0:
            qb, s = nq // 16, nq % 16; nq += 1
            q.l(f"ds_read_b128 a[{64*qb+4*s}:{64*qb+4*s+3}], v7 offset:{16384*((s%8)//2) + 8192*(s//8) + 2048*qb + 1024*(s%2)}")
    fs(9)
    q.wait("kv0", "qd")
    q.all(vm=False)
    a.e("s_barrier")
```

```python
import sys
sys.path.insert(0, "gen")
from asmlib import *
from attn2 import gen_attn
KNAME = "standalone__conformer_family_branchformer__speech_kernel"

def build(path, stamp=0, opt=None):
    a = Asm()
    a('.amdgcn_target "amdgcn-amd-amdhsa--gfx950"')
    l = gen_attn(a, KNAME, stamp=stamp, opt=opt)
    t = a.text().replace(KNAME + "_", "L_")
    open(path, "w").write(l + "\n" + t)

if __name__ == "__main__":
    build("v3.s")
    build("v3_st.s", stamp=1)
    build("v3_fs.s", stamp=2)
    build("v3f_fs.s", stamp=3)
    build("v3g_fs.s", stamp=3, opt=dict(tw=1))
    build("v3h_fs.s", stamp=3, opt=dict(tw=1, pub=[(16 + 2 * i, 3) for i in range(8)], k2=33))
    build("v3i_fs.s", stamp=3, opt=dict(tw=1, pub=[(28 + i // 2, 3 + 4 * (i % 2)) for i in range(8)], k2=35))
    build("v3j_fs.s", stamp=3, opt=dict(tw=1, pub=[(2 * i, 8) for i in range(8)], k2=20))
    build("v3_dbg.s", stamp=5)
```

```python
import sys
sys.path.insert(0, "gen")
from asmlib import *
from layout import *
from conv import Conv
from aux import gen_aux
from front import *

RS = 1056
LDS_P = 131072
LDS_MX = 139264
LDS_FG = LDS_MX + 512
LDS_ML = LDS_MX + 1024
LDS_HALO = LDS_ML + 1024
LDS_TAP = LDS_HALO + 2048
LDS_STT = LDS_TAP + 3072
LDS_ATT = 163840
ES = 272
NA = 12
BIG = 2.0 ** 100
SPIN = 200000
FK = [0, 24, 32, 36, 40, 42, 46]

def emit_interval(a, mfmas, fill):
    for i, m in enumerate(mfmas):
        if m is not None:
            a.e(m)
        for f in fill.get(i, []):
            a.e(f)

def conv_addr(a, NR, row0):
    a.e("v_lshrrev_b32 v12, 5, v2")
    a.e(f"v_mul_u32_u24 v12, {NR}, v12")
    a.e(f"v_add_u32 v12, {row0}, v12")
    a.e("v_and_b32 v13, 31, v2")
    a.e("v_lshlrev_b32 v13, 4, v13")
    a.e("v_lshl_add_u32 v14, v12, 9, v13")
    a.e("s_and_b32 s26, s25, 3")
    a.e("s_lshl_b32 s26, s26, 15")
    a.e("v_add_u32 v4, s26, v14")
    a.e("v_add_u32 v7, s49, v14")
    a.e("v_and_b32 v14, 4, v12")
    a.e("v_lshlrev_b32 v14, 5, v14")
    a.e("v_xor_b32 v8, v7, v14")
    a.e(f"v_add_u32 v10, {LDS_TAP}, v13")
    a.e(f"v_add_u32 v13, {LDS_HALO}, v13")
    a.e("v_cmp_eq_u32 vcc, 0, v12")
    a.e("v_subrev_u32 v5, 1024, v4")
    a.e(f"v_add_u32 v6, {512*NR}, v4")
    a.e("v_cndmask_b32 v5, v5, v13, vcc")
    a.e(f"v_cmp_eq_u32 vcc, {64-NR}, v12")
    a.e("v_add_u32 v13, 1024, v13")
    a.e("v_lshlrev_b32 v9, 3, v12")
    a.e("v_cndmask_b32 v6, v6, v13, vcc")
    a.e(f"v_add_u32 v9, {LDS_STT}, v9")

def gen_tail(a, L, st, fs, opt):
    q = Seq(a)
    q.vm = [f"A{k}" for k in range(NA) for _ in range(4)]
    BF = [32, 48]; YR = 64; XR = 96; MR = 16; AL = 24
    acc = lambda k: 128 if k < 24 else 192
    isz = lambda k: k % 24 >= 16
    def bread(k, tb):
        s = k % 24
        r = BF[k % 2] + 4 * tb
        if not isz(k):
            return f"ds_read_b128 v[{r}:{r+3}], v6 offset:{16384*tb + 1024*s}"
        s -= 16
        return f"ds_read_b128 v[{r}:{r+3}], v{28 + s % 4} offset:{8192*tb + 256*(s//4)}"
    a.e("v_add_u32 v6, s48, v3")
    a.e("s_waitcnt lgkmcnt(0)")
    fs(5)
    a.e("s_barrier")
    for tb in range(4): q.l(bread(0, tb), "B0")
    a.e("v_and_b32 v4, 15, v2")
    a.e("v_lshrrev_b32 v5, 4, v2")
    a.e("v_lshlrev_b32 v10, 3, v2")
    a.e("v_mov_b32 v11, 0")
    a.e("v_mov_b32 v12, 1")
    side = {}
    def at(k, g, fn): side.setdefault((k + g // 16, g % 16), []).append(fn)
    def spread(k, g, ops, per=2, skip=lambda g: False):
        n = 16 * k + g
        ops = list(ops)
        while ops:
            if not skip(n % 16):
                for _ in range(per):
                    if ops:
                        o = ops.pop(0)
                        at(n // 16, n % 16, o if callable(o) else (lambda o=o: a.e(o)))
            n += 1
    lo8 = lambda g: g < 8
    spread(0, 8, ["v_and_b32 v13, 7, v4", "v_lshlrev_b32 v13, 1, v13", "v_xor_b32 v13, v13, v5", "v_lshlrev_b32 v13, 4, v13",
                  "v_lshl_add_u32 v13, v4, 9, v13", "v_add_u32 v28, s49, v13", "v_xor_b32 v29, 64, v28", "v_xor_b32 v30, 128, v28",
                  "v_xor_b32 v31, 192, v28",
                  f"s_mul_i32 s26, s16, {64*ES}", "s_add_u32 s26, s26, s48",
                  f"v_mul_u32_u24 v7, {ES}, v4", "v_lshl_add_u32 v7, v5, 4, v7", "v_add_u32 v7, s26, v7",
                  "v_lshrrev_b32 v13, 3, v2", "v_and_b32 v14, 7, v2", f"v_mul_u32_u24 v8, {ES}, v13",
                  "v_lshl_add_u32 v8, v14, 5, v8", "v_add_u32 v8, s26, v8", "v_lshlrev_b32 v9, 4, v14",
                  "v_lshl_add_u32 v9, v13, 10, v9", f"v_add_u32 v13, {LDS_ML}, v10", "v_lshlrev_b32 v4, 2, v4",
                  "s_xor_b32 s26, s31, 1", "s_lshl_b32 s26, s26, 10", f"s_add_u32 s28, s26, {WS_MX}"], skip=lo8)
    mll = [f"buffer_load_dwordx2 v[{MR+2*w}:{MR+2*w+1}], v10, s[12:15], s28 offen offset:{512*w} sc1" for w in range(2)]
    for w in range(2):
        at(3, 9 + 2 * w, lambda w=w: q.v(mll[w], "ML"))
        at(3, 10 + 2 * w, lambda w=w: q.l(f"ds_read_b64 v[{MR+4+2*w}:{MR+5+2*w}], v13 offset:{512*w}", "MLo"))
    at(9, 8, lambda: poll(a, q, L, "ml", mll, [f"v_and_b32 v14, v{MR+1}, v{MR+3}", "v_cmp_gt_i32 vcc, 0, v14", "s_nop 1", "s_cmp_eq_u64 vcc, -1"], "ML"))
    at(9, 8, lambda: q.wait("MLo"))
    spread(9, 9, [f"v_add_f32 v{MR+1}, v{MR+1}, v{MR+3}", f"v_add_f32 v{MR+5}, v{MR+5}, v{MR+7}",
                  f"v_min_f32 v14, v{MR}, v{MR+4}", f"v_sub_f32 v{MR}, v14, v{MR}", f"v_sub_f32 v{MR+4}, v14, v{MR+4}",
                  f"v_exp_f32 v{MR}, v{MR}", f"v_exp_f32 v{MR+4}, v{MR+4}", f"v_mul_f32 v{MR+1}, v{MR+1}, v{MR}",
                  f"v_fmac_f32 v{MR+1}, v{MR+5}, v{MR+4}", f"v_rcp_f32 v{MR+1}, v{MR+1}", "s_nop 0",
                  f"v_mul_f32 v14, v{MR+4}, v{MR+1}", "v_sub_f32 v14, 0, v14"] +
                 [lambda tb=tb: q.l(f"ds_bpermute_b32 v{AL+tb}, v4, v14 offset:{64*tb}", "AL") for tb in range(4)], per=1, skip=lo8)
    for k0 in (15, 39):
        at(k0, 5, lambda: q.wait("AL"))
        for i in range(16):
            for j in range(4):
                r = acc(k0) + 4 * i + j
                at(k0, i + 6, lambda r=r, i=i: a.e(f"v_mul_f32 v{r}, v{r}, v{AL + i % 4}"))
    for i in range(8):
        tb, h = i % 4, i // 4
        k, g0 = (24 + i // 2, 8 + 4 * (i % 2)) if opt.get('y2') else (24 + i, 8)
        src = [128 + 16 * (2 * h + ee) + 4 * tb + j for ee in range(2) for j in range(4)]
        for j in range(4):
            at(k, g0 + j // 2, lambda j=j, i=i, src=src: a.e(f"v_cvt_pk_bf16_f32 v{YR+4*i+j}, v{src[2*j]}, v{src[2*j+1]}"))
        at(k, g0 + 2, lambda i=i: q.v(f"buffer_store_dwordx4 v[{YR+4*i}:{YR+4*i+3}], v3, s[12:15], s{54 + i//4} offen offset:{1024*(i%4)} sc1", "Yst"))
    KF, KL, KC, KX, KU = opt.get('k', (34, 37, 40, 37, 46))
    at(KF, 9, lambda: q.v("buffer_store_dword v12, v11, s[12:15], s56 offen sc1", need=("Yst",)))
    yl = "buffer_load_dword v14, v11, s[12:15], s57 offen sc1"
    at(KL, 9, lambda: q.v(yl, "yf"))
    for i in range(8):
        def xl(i=i):
            a.e(f"s_add_u32 s26, s58, {8192*i}")
            q.v(f"buffer_load_dwordx4 v[{XR+4*i}:{XR+4*i+3}], v9, s[32:35], s26 offen", f"X{i}")
        at(KX, 1 + 4 * i, xl)
    def gety():
        poll(a, q, L, "y", [yl], ["v_readfirstlane_b32 s26, v14", "s_cmp_eq_u32 s26, 1"], "yf")
        a.e("s_xor_b32 s54, s54, 0x8000")
        a.e("s_xor_b32 s55, s55, 0x8000")
        a.e("s_mov_b32 s43, 0xffff0000")
    at(KC, 7, gety)
    for i in range(8):
        at(KC, 9 + 2 * i, lambda i=i: q.v(f"buffer_load_dwordx4 v[{YR+4*i}:{YR+4*i+3}], v3, s[12:15], s{54 + i//4} offen offset:{1024*(i%4)} sc1", f"Y{i}"))
    ops = []
    for i in range(8):
        tb, h = i % 4, i // 4
        for j in range(4):
            o = 128 + 16 * (2 * h + j // 2) + 4 * tb + 2 * (j % 2)
            ops.append(lambda o=o, i=i, j=j: q.e(f"v_lshlrev_b32 v{o}, 16, v{YR+4*i+j}", need=(f"Y{i}",)))
            ops.append(f"v_and_b32 v{o+1}, s43, v{YR+4*i+j}")
    spread(KU, 1, ops, per=(2 if KU < 46 else 3), skip=lambda g: g < 8 and g % 2 == 0)
    for k in range(48):
        if k == 41: a.e("s_barrier")
        if k == 0: st(5)
        if k in FK: fs(6 + FK.index(k))
        q.wait(f"A{k}", f"B{k}")
        g = 0
        for nb in range(4):
            for tb in range(4):
                d = acc(k) + 16 * nb + 4 * tb; r = areg(k, nb); b = BF[k % 2] + 4 * tb
                c = "0" if k % 24 == 0 else f"v[{d}:{d+3}]"
                a.e(f"{M16} v[{d}:{d+3}], a[{r}:{r+3}], v[{b}:{b+3}], {c}")
                if g < 8 and g % 2 == 0 and k + 1 < 48:
                    q.l(bread(k + 1, g // 2), f"B{k+1}")
                if k >= 1 and k - 1 + NA < 48 and g < 8 and g % 2 == 1:
                    aload(a, q, k - 1 + NA, g // 2)
                for fn in side.pop((k, g), []): fn()
                g += 1
    assert not side, side.keys()
    st(6); fs(13)
    for nb in range(4):
        for tb in range(4):
            d = 192 + 16 * nb + 4 * tb; y = d - 64
            for j in (0, 2):
                a.e(f"v_pk_add_f32 v[{d+j}:{d+j+1}], v[{d+j}:{d+j+1}], v[{y+j}:{y+j+1}]")
            q.l(f"ds_write_b128 v7, v[{d}:{d+3}] offset:{16*ES*tb + 64*nb}", "Ew")
    XF = 32
    for i in range(8):
        q.wait(f"X{i}")
        for k in range(4):
            a.e(f"v_lshlrev_b32 v{XF+8*i+2*k}, 16, v{XR+4*i+k}")
            a.e(f"v_and_b32 v{XF+8*i+2*k+1}, s43, v{XR+4*i+k}")
        if i == 1:
            q.wait("Ew")
            fs(14)
        if i >= 1:
            for ii in ([0, 1] if i == 1 else [i]):
                for h in range(2):
                    r = 128 + 8 * ii + 4 * h
                    q.l(f"ds_read_b128 v[{r}:{r+3}], v8 offset:{8*ES*ii + 16*h}", f"E{ii}")
    for i in range(8):
        q.wait(f"E{i}")
        for k in range(4):
            r = 128 + 8 * i + 2 * k
            a.e(f"v_pk_add_f32 v[{r}:{r+1}], v[{r}:{r+1}], v[{XF+8*i+2*k}:{XF+8*i+2*k+1}]")
        for k in range(4):
            r = 128 + 8 * i + 2 * k
            a.e(f"v_cvt_pk_bf16_f32 v{XR+4*i+k}, v{r}, v{r+1}")
        a.e(f"s_add_u32 s26, s58, {8192*i}")
        q.v(f"buffer_store_dwordx4 v[{XR+4*i}:{XR+4*i+3}], v9, s[36:39], s26 offen")

def areg(k, nb):
    return 64 + 16 * ((k + 7) % NA) + 4 * nb

def aload(a, q, k, nb):
    s = k % 24
    if nb == 0:
        if s < 16:
            a.e(f"s_add_u32 s59, {'s52' if k < 24 else 's53'}, {524288 + 4096*s}")
        else:
            a.e(f"s_add_u32 s59, {'s50' if k < 24 else 's51'}, {4096*(s-16)}")
    r = areg(k, nb)
    q.v(f"buffer_load_dwordx4 a[{r}:{r+3}], v3, s[12:15], s59 offen offset:{1024*nb} sc1", f"A{k}")

def gen_attn(a, name, stamp=False, opt=None):
    opt = opt or {}
    nP = 16
    L = lambda s: f"{name}_{s}"
    st = Stamper(a, stamp in (1, 5))
    fs = Fine(a, stamp == 2)
    ff = Fine(a, stamp == 3)
    kernel_begin(a, name)
    a.e("s_cmp_ge_u32 s2, 256")
    a.e(f"s_cbranch_scc1 {L('end')}")
    a.e(f"s_load_dwordx2 s[4:5], s[0:1], {KA['ws']}")
    a.e(f"s_load_dwordx2 s[6:7], s[0:1], {KA['x']}")
    a.e(f"s_load_dwordx2 s[40:41], s[0:1], {KA['wq']}")
    a.e(f"s_load_dwordx2 s[8:9], s[0:1], {KA['wk']}")
    a.e(f"s_load_dwordx2 s[96:97], s[0:1], {KA['wup']}")
    a.e(f"s_load_dwordx2 s[44:45], s[0:1], {KA['dw']}")
    a.e(f"s_load_dwordx4 s[48:51], s[0:1], {KA['out']}")
    a.e(f"s_load_dwordx4 s[52:55], s[0:1], {KA['wv']}")
    a.e(f"s_load_dwordx4 s[56:59], s[0:1], {KA['wdn']}")
    a.e("s_and_b32 s20, s2, 7")
    a.e("s_lshl_b32 s20, s20, 5")
    a.e("s_lshr_b32 s21, s2, 3")
    a.e("s_add_u32 s31, s20, s21")
    a.e("s_lshr_b32 s21, s31, 7")
    a.e("s_and_b32 s22, s31, 1")
    a.e("s_bfe_u32 s23, s31, 0x60001")
    a.e("v_lshrrev_b32 v1, 6, v0")
    a.e("v_and_b32 v2, 63, v0")
    a.e("v_readfirstlane_b32 s16, v1")
    a.e("v_lshlrev_b32 v3, 4, v2")
    a.e("s_mul_i32 s24, s21, 4096000")
    a.e("s_sub_u32 s25, 63, s22")
    a.e("s_lshl_b32 s27, s23, 16")
    a.e("s_waitcnt lgkmcnt(0)")
    st(0); ff(0)
    def fin_srd(d, n):
        a.e(f"s_and_b32 s{d+1}, s{d+1}, 0xffff")
        a.e(f"s_mov_b32 s{d+2}, {n}")
        a.e(f"s_mov_b32 s{d+3}, 0x00020000")
    q = Seq(a)
    srd_off(a, 32, 6, "s24", 4096000)
    a.e("v_lshrrev_b32 v4, 3, v2")
    a.e("v_and_b32 v5, 7, v2")
    a.e("v_lshlrev_b32 v5, 4, v5")
    a.e("v_lshl_add_u32 v4, v4, 10, v5")
    a.e("s_lshl_b32 s26, s16, 14")
    a.e("s_add_u32 s26, s26, s27")
    a.e("s_lshl_b32 s28, s22, 9")
    a.e("s_add_u32 s26, s26, s28")
    for s_ in range(16):
        if s_ % 4 == 0: a.e(f"s_xor_b32 s28, s26, {8192*(s_//8) + 512*((s_//4)%2)}")
        q.v(f"buffer_load_dwordx4 v[{16+4*s_}:{19+4*s_}], v4, s[32:35], s28 offen offset:{128*(s_%4)} nt", f"x{s_}")
    fin_srd(96, 1048576)
    touches(a, q, L, opt)
    fin_srd(40, 524288); fin_srd(8, 524288); fin_srd(44, 5120)
    make_srd(a, 12, 4, 0x4000000)
    make_srd(a, 92, 50, 256)
    srd_off(a, 36, 48, "s24", 4096000)
    mi = m_issue(a, q)
    def clear():
        a.e("v_mov_b32 v14, 0")
        a.e("v_lshlrev_b32 v13, 2, v2")
        a.e("s_lshl_b32 s26, s31, 2")
        a.e("s_add_u32 s26, s26, s16")
        a.e("s_lshl_b32 s28, s26, 8")
        a.e(f"s_add_u32 s28, s28, {WS_MX}")
        q.v("buffer_store_dword v14, v13, s[12:15], s28 offen sc1", "St")
        a.e("s_lshl_b32 s28, s31, 5")
        a.e("s_add_u32 s28, s28, s16")
        a.e("s_lshl_b32 s28, s28, 2")
        a.e(f"s_add_u32 s28, s28, {WS_FL}")
        a.e("v_and_b32 v13, 16, v2")
        q.v("buffer_store_dword v14, v13, s[12:15], s28 offen sc1", "St")
    a.e("s_cmp_ge_u32 s23, 63")
    a.e(f"s_cbranch_scc1 {L('aux')}")
    def emit_aux(q0=q, vm0=list(q.vm)):
        a.label(L("aux"))
        q0.vm, q0.lg = list(vm0), []
        for f in mi: f()
        mfin = m_tile(a, q0)
        a.e("s_nop 7")
        mfin()
        q0.all()
        a.e("s_barrier")
        signal(a, L, "sig1a", 0, 0)
        signal(a, L, "sig2a", 1, 8)
        a.e("s_lshl_b32 s20, s21, 1")
        a.e("s_add_u32 s20, s20, s22")
        gen_aux(a, L, st, ff)
        signal(a, L, "sig3a", 0, 4)
        for k in range(5, 7): st(k)
        for k in range(15): fs(k)
        if stamp == 4:
            for k in range(16): Fine(a, True)(k)
        for k in range(9, 15): ff(k)
        a.e(f"s_branch {L('fin')}")
    gen_front(a, q, L, st, ff, mi, clear, opt)
    st(2); ff(10)
    def tail_consts():
        t = Asm()
        t.e("s_lshl_b32 s26, s22, 2")
        t.e("s_add_u32 s26, s26, s16")
        t.e("s_lshl_b32 s53, s26, 16")
        t.e(f"s_add_u32 s53, s53, {WS_W3}")
        t.e("s_xor_b32 s52, s53, 0x40000")
        t.e("s_lshl_b32 s58, s26, 7")
        t.e("s_add_u32 s58, s58, s27")
        t.e("s_lshl_b32 s54, s31, 2")
        t.e("s_add_u32 s54, s54, s16")
        t.e("s_lshl_b32 s54, s54, 13")
        t.e(f"s_add_u32 s54, s54, {WS_YX}")
        t.e("s_add_u32 s55, s54, 4096")
        t.e("s_lshl_b32 s26, s22, 15")
        t.e("s_add_u32 s50, s52, s26")
        t.e("s_add_u32 s51, s53, s26")
        t.e("s_add_u32 s26, s25, 2")
        t.e("s_and_b32 s26, s26, 3")
        t.e("s_lshl_b32 s48, s26, 15")
        t.e("s_add_u32 s26, s25, 1")
        t.e("s_and_b32 s26, s26, 3")
        t.e("s_lshl_b32 s49, s26, 15")
        t.e("s_lshl_b32 s56, s31, 5")
        t.e("s_add_u32 s56, s56, s16")
        t.e("s_lshl_b32 s56, s56, 2")
        t.e(f"s_add_u32 s56, s56, {WS_FL}")
        t.e("s_xor_b32 s57, s56, 128")
        return [x.strip() for x in t.lines]
    a.e("s_mov_b32 s17, s25")
    a.e("s_cmp_ge_u32 s16, 2")
    a.e(f"s_cbranch_scc1 {L('pv')}")

    def dma_group():
        return "s_and_b32 m0, s18, 0x1ffff", [f"buffer_load_dwordx4 v3, s[8:11], s18 offen offset:{1024*j} sc1 lds" for j in range(4)]
    def dma_tile():
        for g in range(4):
            pre, ld = dma_group()
            a.e(pre); a.e("s_nop 0")
            for x in ld: a.e(x)
            a.e(f"s_add_u32 s18, s18, {4096 if g < 3 else 32768 - 3*4096}")
    def place_dma(fill, gaps):
        k = 0
        for g in range(4):
            pre, ld = dma_group()
            fill.setdefault(gaps[k] - 1, []).append(pre)
            for j in range(4):
                fill.setdefault(gaps[k], []).append(ld[j]); k += 1
            fill.setdefault(gaps[k - 1] + 1, []).append(f"s_add_u32 s18, s18, {4096 if g < 3 else 32768 - 3*4096}")
    auxl = cnt_load(4, "v11")
    auxc = CNT_OK

    KB = [32, 96]; S = 160; NEGM = 176; E = 192; PK = 200; LS = 204
    VK = 8; VPW = 9; TMP = 10
    a.e("v_and_b32 v4, 15, v2")
    a.e("v_lshrrev_b32 v5, 4, v2")
    a.e("v_and_b32 v6, 0x27, v2")
    a.e("v_and_b32 v7, 8, v2")
    a.e("v_lshl_add_u32 v6, v7, 1, v6")
    a.e("v_and_b32 v7, 16, v2")
    a.e("v_lshrrev_b32 v7, 1, v7")
    a.e("v_add_lshl_u32 v6, v6, v7, 4")
    a.e("s_lshl_b32 s29, s16, 14")
    a.e(f"v_add_u32 v{VK}, s29, v6")
    a.e("s_lshl_b32 s29, s16, 11")
    a.e(f"s_add_u32 s29, s29, {LDS_P}")
    a.e(f"v_lshl_add_u32 v{VPW}, v2, 3, s29")
    for i in range(4):
        a.e(f"v_mov_b32 v{LS+i}, 0")
    def kread(par, s, imm):
        r = KB[par] + 4 * s
        return f"ds_read_b128 v[{r}:{r+3}], v{VK} offset:{imm + 1024*s}"
    def chain(par, qb, c0):
        out = []
        for s in range(16):
            k = KB[par] + 4 * s; q = 64 * qb + 4 * s; d = S + 4 * qb
            c = c0 if s == 0 else f"v[{d}:{d+3}]"
            out.append(f"{M16} v[{d}:{d+3}], v[{k}:{k+3}], a[{q}:{q+3}], {c}")
        return out
    q = Seq(a)
    mf = [m for qb in range(4) for m in chain(0, qb, "0")]
    tc = tail_consts()
    if opt.get("qe"):
        for n in range(12): q.l(kread(0, n, 0), f"K{n}")
        for n in range(64):
            q.e(mf[n], need=(f"K{n}",))
            if n < 4: q.l(kread(0, 12 + n, 0), f"K{12+n}")
            elif tc: a.e(tc.pop(0))
    else:
        a.e(f"v_add_u32 v7, {LDS_XS}, v3")
        rd = []
        for n in range(64):
            qb, s = n // 16, n % 16
            rd.append((f"ds_read_b128 a[{64*qb+4*s}:{64*qb+4*s+3}], v7 offset:{16384*((s%8)//2) + 8192*(s//8) + 2048*qb + 1024*(s%2)}", f"Q{n}"))
            if qb == 0: rd.append((kread(0, s, 0), f"Q{n}"))
        for _ in range(14): q.l(*rd.pop(0))
        for n in range(64):
            if n % 2 == 0: q.wait(f"Q{n+1}")
            a.e(mf[n])
            for _ in range(2 if n < 14 else 1):
                if rd: q.l(*rd.pop(0))
            if n >= 30 and tc: a.e(tc.pop(0))
        a.e("s_barrier")
    assert not tc
    a.e("s_nop 7")
    for qb in range(4):
        d = S + 4 * qb
        a.e(f"v_max3_f32 v{E+qb}, v{d}, v{d+1}, v{d+2}")
        a.e(f"v_max_f32 v{E+qb}, v{E+qb}, v{d+3}")
    def group_reduce(r, t, op):
        for sw in ("v_permlane16_swap_b32", "v_permlane32_swap_b32"):
            for qb in range(4):
                a.e(f"v_mov_b32 v{t+qb}, v{r+qb}")
            a.e("s_nop 1")
            for qb in range(4):
                a.e(f"{sw} v{r+qb}, v{t+qb}")
            a.e("s_nop 1")
            for qb in range(4):
                a.e(f"{op} v{r+qb}, v{r+qb}, v{t+qb}")
    group_reduce(E, E + 4, "v_max_f32")
    a.e("s_lshl_b32 s29, s16, 8")
    a.e(f"s_add_u32 s29, s29, {LDS_MX}")
    a.e(f"v_lshl_add_u32 v{TMP}, v4, 4, s29")
    a.e(f"ds_write_b128 v{TMP}, v[{E}:{E+3}]")
    a.e(f"v_xor_b32 v{TMP}, 256, v{TMP}")
    a.e("s_waitcnt vmcnt(0) lgkmcnt(0)")
    a.e("s_barrier")
    a.e(f"ds_read_b128 v[{E+4}:{E+7}], v{TMP}")
    for s in range(8):
        a.e(kread(1, s, 32768))
    a.e("s_waitcnt lgkmcnt(8)")
    for qb in range(4):
        a.e(f"v_max_f32 v{E+qb}, v{E+qb}, v{E+4+qb}")
    for qb in range(4):
        for j in range(4):
            a.e(f"v_sub_f32 v{NEGM+4*qb+j}, 0, v{E+qb}")
    a.e("s_waitcnt lgkmcnt(4)")
    for s in range(8, 16):
        a.e(kread(1, s, 32768))
    for qb in range(4):
        for j in range(4):
            a.e(f"v_add_f32 v{S+4*qb+j}, v{S+4*qb+j}, v{NEGM+4*qb}")
    def softmax_ops(qb, par):
        e = E + 4 * (qb % 2); p = PK + 2 * (qb % 2); d = S + 4 * qb
        ex = [f"v_exp_f32 v{e+j}, v{d+j}" for j in range(4)]
        ad = [f"v_add_f32 v{LS+qb}, v{LS+qb}, v{e+j}" for j in range(4)]
        cv = [f"v_cvt_pk_bf16_f32 v{p+j}, v{e+2*j}, v{e+2*j+1}" for j in range(2)]
        wr = f"ds_write_b64 v{VPW}, v[{p}:{p+1}] offset:{par*4096 + qb*512}"
        return ex, ad, cv, wr
    ex, ad, cv, wr = softmax_ops(0, 0)
    for x in ex + ["s_nop 0"] + cv + ad + [wr]: a.e(x)
    a.e("s_waitcnt lgkmcnt(1)")
    fill = {}
    ops = []
    for qb in range(1, 4):
        ex, ad, cv, wr = softmax_ops(qb, 0)
        ops += ex + [ad[0]] + cv + ad[1:] + [wr]
    for i, x in enumerate(ops):
        fill.setdefault(i * 15 // len(ops), []).append(x)
    emit_interval(a, chain(1, 0, f"v[{NEGM}:{NEGM+3}]"), fill)
    a.e("s_waitcnt lgkmcnt(0)")
    a.e("s_sub_u32 s17, s17, 1")
    a.e("s_barrier")

    def qk_interval(par):
        mf = []
        for c in range(4):
            qb = (c + 1) % 4
            mf += chain(par if c < 3 else par ^ 1, qb, f"v[{NEGM+4*qb}:{NEGM+4*qb+3}]")
        fill = {}
        if par == 1:
            fill.setdefault(0, []).append(f"v_xor_b32 v{VK}, 0x10000, v{VK}")
        imm = 32768 * (par ^ 1)
        rgaps = [1, 2, 3, 12, 13, 14, 16, 17, 18, 28, 29, 30, 32, 33, 34, 35]
        for s in range(16):
            fill.setdefault(rgaps[s], []).append(kread(par ^ 1, s, imm))
        for c in range(4):
            b = 16 * c
            ex, ad, cv, wr = softmax_ops(c, par)
            if c == 3:
                fill.setdefault(b + 0, []).append("s_sub_u32 s17, s17, 1")
                fill.setdefault(b + 1, []).append("s_nop 0")
                fill.setdefault(b + 2, []).append("s_nop 0")
            for j in range(4):
                fill.setdefault(b + 4 + j, []).append(ex[j])
            fill.setdefault(b + 8, []).extend(cv)
            fill.setdefault(b + 9, []).extend([wr])
            fill.setdefault(b + 10, []).extend(ad[:2])
            fill.setdefault(b + 11, []).extend(ad[2:])
        fill.setdefault(47, []).append("s_waitcnt lgkmcnt(1)")
        if par == 1:
            fill.setdefault(44, []).append("s_cmp_lt_u32 s17, 16")
            fill.setdefault(45, []).extend([f"s_cbranch_scc1 {L('touch')}", L("touch_ret") + ":"])
        fill.setdefault(62, []).append("s_cmp_eq_u32 s17, 0")
        fill.setdefault(63, []).extend(["s_waitcnt lgkmcnt(0)", "s_barrier"])
        emit_interval(a, mf, fill)

    a.e("v_and_b32 v11, 3, v2")
    a.e("v_lshlrev_b32 v11, 6, v11")
    a.e("v_lshlrev_b32 v7, 7, v2")
    st(3); ff(11)
    a(".p2align 6")
    a.label(L("qk_loop"))
    qk_interval(1)
    a.e(f"s_cbranch_scc1 {L('qk_done')}")
    qk_interval(0)
    a.e(f"s_cbranch_scc0 {L('qk_loop')}")
    a.label(L("qk_done"))
    st(4); fs(0)
    q = Seq(a)
    group_reduce(LS, E, "v_add_f32")
    a.e(f"v_mov_b32 v12, v{NEGM}")
    a.e(f"v_mov_b32 v13, v{LS}")
    for qb in range(1, 4):
        a.e(f"v_cmp_eq_u32 vcc, {qb}, v5")
        a.e("s_nop 1")
        a.e(f"v_cndmask_b32 v12, v12, v{NEGM+4*qb}, vcc")
        a.e(f"v_cndmask_b32 v13, v13, v{LS+qb}, vcc")
    a.e("v_or_b32 v13, 0x80000000, v13")
    a.e("s_lshl_b32 s28, s16, 9")
    a.e("s_lshl_b32 s29, s31, 10")
    a.e("s_add_u32 s29, s29, s28")
    a.e(f"s_add_u32 s29, s29, {WS_MX}")
    a.e(f"s_add_u32 s28, s28, {LDS_ML}")
    a.e(f"v_lshlrev_b32 v{TMP}, 3, v2")
    q.v(f"buffer_store_dwordx2 v[12:13], v{TMP}, s[12:15], s29 offen sc1", "MLst")
    a.e(f"v_add_u32 v{TMP}, s28, v{TMP}")
    q.l(f"ds_write_b64 v{TMP}, v[12:13]")
    q.all(vm=False)
    fs(1)
    a.e("s_barrier")
    fs(2)
    a.e("s_mul_i32 s28, s16, 24")
    conv_addr(a, 12, "s28")
    cv = Conv(a, q, 12)
    cv.prep()
    fs(3)
    for j in range(16):
        cv.row(j)
        if j >= 2 and j < 14:
            for nb in range(4): aload(a, q, j - 2, nb)
    fs(4)
    a.e(f"s_branch {L('tail')}")
    a.label(L("touch"))
    a.e("s_lshr_b32 s26, s17, 1")
    def tl(srd, so): a.e(f"buffer_load_dword v0, v7, s[{srd}:{srd+3}], {so} offen")
    def b_code():
        a.e(auxl)
        a.e("s_getpc_b64 s[28:29]")
        a.label(L("pc0"))
        a.e(f"s_sub_u32 s28, s28, {L('pc0')} - {L('qk_done')}")
        a.e("s_subb_u32 s29, s29, 0")
        a.e("s_lshr_b32 s30, s2, 3")
        a.e("s_lshl_b32 s30, s30, 1")
        a.e("s_add_u32 s30, s30, s16")
        a.e("s_lshl_b32 s30, s30, 10")
        a.e("v_lshl_add_u32 v12, v2, 4, s30")
        a.e(f"v_min_u32 v12, {L('end')} - {L('qk_done')}, v12")
        a.e("global_load_dword v0, v12, s[28:29]")
    def b_w(part):
        def f():
            if part == 1:
                a.e("s_waitcnt vmcnt(0)")
                poll(a, Seq(a), L, "qk_aux", [auxl], auxc, "aux", slp=16)
            a.e("s_lshr_b32 s30, s2, 3")
            a.e("s_lshl_b32 s30, s30, 1")
            a.e("s_add_u32 s30, s30, s16")
            a.e("s_lshl_b32 s30, s30, 13")
            a.e(f"s_add_u32 s30, s30, {WS_W3 + 524288*part}")
            tl(12, "s30")
        return f
    ST = 212
    def b_small():
        a.e("s_mul_i32 s28, s16, 34")
        a.e("s_lshl_b32 s29, s23, 6")
        a.e("s_add_u32 s28, s28, s29")
        a.e("s_sub_u32 s28, s28, 2")
        a.e(f"v_add_u32 v{ST+16}, s28, v2")
        a.e(f"v_max_i32 v12, 0, v{ST+16}")
        a.e(f"v_min_i32 v12, {T-1}, v12")
        a.e("v_lshlrev_b32 v12, 3, v12")
        a.e("s_lshl_b32 s29, s21, 15")
        for ct in range(8):
            a.e(f"s_add_u32 s30, s29, {WS_ST + 0x10000*ct}")
            a.e(f"buffer_load_dwordx2 v[{ST+2*ct}:{ST+2*ct+1}], v12, s[12:15], s30 offen sc1")
        a.e("s_lshl_b32 s28, s16, 1")
        a.e("s_add_u32 s28, s28, s23")
        a.e("s_sub_u32 s28, s28, 1")
        a.e("s_max_i32 s28, s28, 0")
        a.e("s_min_i32 s28, s28, 62")
        a.e("s_sub_u32 s28, s28, s23")
        a.e("s_lshl_b32 s28, s28, 1")
        a.e("s_add_u32 s28, s28, s31")
        a.e("s_lshl_b32 s28, s28, 16")
        a.e("s_xor_b32 s29, s16, 1")
        a.e(f"s_mul_i32 s29, s29, {62*512}")
        a.e("s_add_u32 s28, s28, s29")
        a.e(f"s_add_u32 s28, s28, {WS_GU}")
        a.e("s_lshl_b32 s29, s16, 10")
        a.e(f"s_add_u32 m0, s29, {LDS_HALO}")
        a.e("v_lshrrev_b32 v12, 5, v2")
        a.e("buffer_load_dwordx4 v3, s[12:15], s28 offen sc1 lds")
        a.e("v_lshl_add_u32 v12, v12, 9, v3")
        a.e("s_lshl_b32 s28, s22, 9")
        for i in range(3):
            a.e(f"s_mov_b32 m0, {LDS_TAP + 1024*i}")
            a.e(f"s_add_u32 s29, s28, {2048*i}")
            a.e("buffer_load_dwordx4 v12, s[44:47], s29 offen lds")
    def b_stat():
        a.e("s_waitcnt vmcnt(0)")
        for ct in range(1, 8):
            a.e(f"v_add_f32 v{ST}, v{ST}, v{ST+2*ct}")
            a.e(f"v_add_f32 v{ST+1}, v{ST+1}, v{ST+2*ct+1}")
        a.e(f"v_mul_f32 v{ST}, {f2u(1/512)}, v{ST}")
        a.e(f"v_mul_f32 v{ST+1}, {f2u(1/512)}, v{ST+1}")
        a.e(f"v_fma_f32 v{ST+1}, -v{ST}, v{ST}, v{ST+1}")
        a.e(f"v_max_f32 v{ST+1}, 0, v{ST+1}")
        a.e(f"v_add_f32 v{ST+1}, {f2u(1e-5)}, v{ST+1}")
        a.e(f"v_rsq_f32 v{ST+1}, v{ST+1}")
        a.e(f"v_cmp_gt_u32 vcc, {T}, v{ST+16}")
        a.e(f"v_mul_f32 v{ST}, v{ST}, v{ST+1}")
        a.e(f"v_sub_f32 v{ST}, 0, v{ST}")
        a.e(f"v_cndmask_b32 v{ST+2}, 0, v{ST+1}, vcc")
        a.e(f"v_cndmask_b32 v{ST+3}, 0, v{ST}, vcc")
        a.e(f"s_mul_i32 s28, s16, {34*8}")
        a.e(f"s_add_u32 s28, s28, {LDS_STT}")
        a.e("v_lshl_add_u32 v12, v2, 3, s28")
        a.e(f"ds_write_b64 v12, v[{ST+2}:{ST+3}]")
    def b_x(r0):
        def f():
            a.e("s_lshl_b32 s30, s22, 1")
            a.e("s_add_u32 s30, s30, s16")
            a.e("s_lshl_b32 s30, s30, 14")
            a.e("s_add_u32 s30, s30, s27")
            a.e(f"s_add_u32 s30, s30, {r0*1024}")
            tl(32, "s30")
        return f
    blocks = {7: [b_code], 6: [b_w(1)], 5: [b_small], 4: [b_w(0)], 3: [b_stat], 2: [b_x(0)], 1: [b_x(8)]}
    for kx, fns in blocks.items():
        a.e(f"s_cmp_lg_u32 s26, {kx}")
        a.e(f"s_cbranch_scc1 {L('touch%d' % kx)}")
        for f in fns: f()
        a.e(f"s_branch {L('touch_ret')}")
        a.label(L("touch%d" % kx))
    a.e(f"s_branch {L('touch_ret')}")

    VB = [16, 80]; PR = [144, 160]
    VV = 8; VPR = 9
    def oreg(db, qb):
        return (f"a[{4*qb}:{4*qb+3}]", None) if db == 0 else (f"v[{16*db+4*qb}:{16*db+4*qb+3}]", 16 * db + 4 * qb)
    a.label(L("pv"))
    a.e("s_sub_u32 s19, s16, 2")
    a.e("s_lshl_b32 s18, s19, 14")
    a.e("s_add_u32 s18, s18, 65536")
    dma_tile()
    for x in tail_consts(): a.e(x)
    for i in range(16, 256, 2):
        a.e(f"v_pk_mul_f32 v[{i}:{i+1}], 0, 0")
    for i in list(range(16)) + list(range(VB[1] + 56, VB[1] + 64)) + list(range(PR[1], PR[1] + 16)):
        a.e(f"v_accvgpr_write_b32 a{i}, 0")
    a.e("v_lshrrev_b32 v4, 5, v2")
    a.e("v_lshlrev_b32 v4, 8, v4")
    a.e("v_and_b32 v5, 2, v2")
    a.e("v_lshl_add_u32 v4, v5, 6, v4")
    a.e("v_and_b32 v5, 28, v2")
    a.e("v_lshl_add_u32 v4, v5, 2, v4")
    a.e("v_and_b32 v5, 1, v2")
    a.e("v_lshl_add_u32 v4, v5, 3, v4")
    a.e("s_lshl_b32 s29, s19, 13")
    a.e(f"v_add_u32 v{VV}, s29, v4")
    a.e("s_add_u32 s29, s29, s48")
    a.e("v_add_u32 v10, s29, v3")
    a.e("s_lshl_b32 s28, s31, 16")
    a.e(f"s_add_u32 s28, s28, {WS_GU}")
    a.e("s_sub_u32 s28, s28, s10")
    a.e("s_add_u32 s98, s4, s28")
    a.e("s_addc_u32 s99, s5, 0")
    a.e("s_and_b32 s99, s99, 0xffff")
    a.e("s_add_u32 s100, s10, 65536")
    a.e(f"s_mov_b32 s29, {LDS_P}")
    a.e(f"v_lshl_add_u32 v{VPR}, v2, 3, s29")
    a.e("v_mov_b32 v11, 0")
    if not opt.get("qe"): a.e("s_barrier")
    a.e("s_waitcnt vmcnt(16)")
    a.e("s_barrier")
    def vread(par, db, kb):
        r = VB[par] + 4 * db + 2 * kb
        return f"ds_read_b64_tr_b16 a[{r}:{r+1}], v{VV} offset:{32768*par + 16384*kb + 512*db}"
    def pvm(par, db):
        out = []
        for qb in range(4):
            d = oreg(db, qb)[0]; v = VB[par] + 4 * db; p = PR[par] + 4 * qb
            out.append(f"{M16} {d}, a[{v}:{v+3}], a[{p}:{p+3}], {d}")
        return out
    signal(a, L, "sig3", 2, 4)
    dma_tile()
    for db in range(16):
        for kb in range(2):
            a.e(vread(0, db, kb))
        if db % 4 == 3: a.e("s_waitcnt lgkmcnt(4)")
    a.e(f"s_waitcnt vmcnt({nP}) lgkmcnt(0)")
    a.e("s_sub_u32 s17, s17, 1")
    a.e("s_barrier")

    pvq = []
    def pv_interval(par, last=False):
        mf = pvm(par, 14) + pvm(par, 15)
        for db in range(16 if last else 14):
            mf += pvm(par ^ 1, db)
        fill = {}
        for qb in range(4):
            p = PR[par ^ 1] + 4 * qb
            fill.setdefault(qb // 2, []).append(f"ds_read2st64_b64 a[{p}:{p+3}], v{VPR} offset0:{8*(par^1)+qb} offset1:{8*(par^1)+4+qb}")
        fill.setdefault(7, []).append("s_waitcnt lgkmcnt(0)")
        if last:
            fs(0)
            q = Seq(a)
            ops = []
            for sp in range(8):
                for qb in range(4):
                    o = []
                    if sp == 0:
                        o += [f"v_accvgpr_read_b32 v{12+j}, a{4*qb+j}" for j in range(4)]
                        lo = 12
                    else:
                        lo = oreg(2 * sp, qb)[1]
                    hi = oreg(2 * sp + 1, qb)[1]
                    t = 4 if sp == 0 else lo
                    o += [f"v_cvt_pk_bf16_f32 v{t}, v{lo}, v{lo+1}", f"v_cvt_pk_bf16_f32 v{t+1}, v{lo+2}, v{lo+3}",
                          f"v_cvt_pk_bf16_f32 v{t+2}, v{hi}, v{hi+1}", f"v_cvt_pk_bf16_f32 v{t+3}, v{hi+2}, v{hi+3}",
                          f"ds_write_b128 v10, v[{t}:{t+3}] offset:{16384*qb + 1024*sp}"]
                    ops += [(8 + 8 * sp + 4 + qb + 5, x) for x in o]
            na = 0
            def put(x):
                if x.startswith("ds_"): q.l(x, "Ow")
                else: a.e(x)
            for i, m in enumerate(mf):
                a.e(m)
                for f in fill.get(i, []): a.e(f)
                if i == 12:
                    a.e("s_waitcnt vmcnt(0)")
                    fs(1)
                    a.e("s_barrier")
                    fs(2)
                if i > 12 and i % 2 == 0 and na < 20:
                    aload(a, q, na // 4, na % 4); na += 1
                if i > 12:
                    n = 0
                    while ops and ops[0][0] <= i and n < 3:
                        put(ops.pop(0)[1]); n += 1
                    if n == 0: a.e("s_nop 0")
            fs(3)
            for _ in range(8):
                aload(a, q, na // 4, na % 4); na += 1
            while ops: put(ops.pop(0)[1])
            pvq.append((q, na))
            return
        if par == 0:
            fill.setdefault(2, []).append(f"v_xor_b32 v{VV}, 0x10000, v{VV}")
        for g, x in enumerate(["s_cmp_eq_u32 s17, 3", "s_cselect_b32 s8, s98, s8", "s_cselect_b32 s9, s99, s9", "s_cselect_b32 s10, s100, s10"]):
            fill.setdefault(3 + g, []).append(x)
        rg = [8 + 3 * (i // 2) + (i % 2) for i in range(32)]
        for i in range(32):
            fill.setdefault(rg[i], []).append(vread(par, i // 2, i % 2))
        place_dma(fill, [10 + 3 * i for i in range(16)])
        fill.setdefault(60, []).append("s_sub_u32 s17, s17, 1")
        fill.setdefault(62, []).append("s_cmp_eq_u32 s17, 0")
        fill.setdefault(63, []).extend([f"s_waitcnt vmcnt({nP}) lgkmcnt(0)", "s_barrier"])
        emit_interval(a, mf, fill)

    st(3); ff(11)
    a(".p2align 6")
    a.label(L("pv_loop"))
    pv_interval(1)
    a.e(f"s_cbranch_scc1 {L('pv_last0')}")
    pv_interval(0)
    a.e(f"s_cbranch_scc0 {L('pv_loop')}")
    pv_interval(1, True)
    a.e(f"s_branch {L('pv_stage')}")
    a.label(L("pv_last0"))
    pv_interval(0, True)
    a.label(L("pv_stage"))
    st(4)
    q, n = pvq[0]
    assert pvq[1][0].vm == q.vm and pvq[1][0].lg == q.lg
    a.e("s_lshl_b32 s28, s19, 3")
    a.e("s_add_u32 s28, s28, 48")
    q.wait("Ow")
    conv_addr(a, 4, "s28")
    cv = Conv(a, q, 4)
    cv.prep()
    for j in range(8):
        cv.row(j)
        for _ in range(4):
            if n < 4 * NA:
                aload(a, q, n // 4, n % 4); n += 1
    assert n == 4 * NA
    fs(4)
    a.label(L("tail"))
    gen_tail(a, L, st, fs, opt)
    a.label(L("fin"))
    if stamp == 1:
        a.e("s_waitcnt vmcnt(0)")
        st(7)
        emit_stamps(a, 8, nw=8, off=WS_STAMP + 0x200000)
    if stamp == 5:
        a.e("s_waitcnt vmcnt(0)")
        st(7)
        a.e("s_cmp_lg_u32 s16, 0")
        a.e(f"s_cbranch_scc1 {L('end')}")
        a.e("s_mov_b64 exec, 1")
        a.e("s_cmp_lg_u32 s2, 0")
        a.e(f"s_cbranch_scc1 {L('dbg2')}")
        for k in range(1, 8):
            a.e(f"s_sub_u32 s26, s{62+4*k}, s62")
            a.e("v_mov_b32 v8, s26")
            a.e(f"buffer_store_dword v8, off, s[92:95], 0 offset:{8+4*k}")
        a.e("s_sub_u32 s26, s76, s72")
        a.e("v_mov_b32 v8, s26")
        a.e("buffer_store_dword v8, off, s[92:95], 0 offset:40")
        a.label(L("dbg2"))
        a.e("s_cmp_lg_u32 s2, 255")
        a.e(f"s_cbranch_scc1 {L('end')}")
        for k in range(1, 6):
            a.e(f"s_sub_u32 s26, s{62+4*k}, s62")
            a.e("v_mov_b32 v8, s26")
            a.e(f"buffer_store_dword v8, off, s[92:95], 0 offset:{40+4*k}")
    if stamp in (2, 3, 4):
        a.e("s_waitcnt vmcnt(0)")
        fs(15)
        for k in range(13, 16): ff(k)
        emit_fine(a, off=WS_STAMP + 0x300000)
    a.label(L("end"))
    a.e("s_endpgm")
    emit_aux()
    kernel_desc(a, name, 512, 256)
    return f"; @launch grid=(256,1,1) block=(256,1,1) lds={LDS_ATT}"
```

```python
import sys
sys.path.insert(0, "gen")
from asmlib import *
from layout import *
from attn2 import gen_attn
KNAME = "main_kernel"

def zk(a, i, j, wg=0, cyc=False):
    kernel_begin(a, "z_kernel")
    a.e("s_cmp_ge_u32 s2, 1")
    a.e("s_cbranch_scc1 Z_end")
    a.e("s_load_dwordx2 s[4:5], s[0:1], 88")
    a.e("s_waitcnt lgkmcnt(0)")
    make_srd(a, 8, 4, 0x10000000)
    base = WS_STAMP + 0x200000
    a.e(f"s_mov_b32 s12, {base}")
    a.e(f"s_mov_b32 s13, {base + wg*512}")
    a.e("buffer_load_dword v1, off, s[8:11], s12 offset:4")
    a.e(f"buffer_load_dword v2, off, s[8:11], s13 offset:{8*i + (0 if cyc else 4)}")
    a.e(f"buffer_load_dword v3, off, s[8:11], s13 offset:{8*j + (0 if cyc else 4)}")
    a.e("s_waitcnt vmcnt(0)")
    a.e("v_readfirstlane_b32 s14, v1")
    a.e("v_readfirstlane_b32 s15, v2")
    a.e("v_readfirstlane_b32 s16, v3")
    a.e("s_nop 3")
    a.e("s_sub_u32 s15, s16, s15")
    if cyc: a.e("s_lshr_b32 s15, s15, 4")
    a.e("s_min_u32 s15, s15, 20000")
    a.e("s_add_u32 s15, s15, 12000")
    a.label("Z_spin")
    a.e("s_memrealtime s[42:43]")
    a.e("s_waitcnt lgkmcnt(0)")
    a.e("s_sub_u32 s42, s42, s14")
    a.e("s_cmp_lt_u32 s42, s15")
    a.e("s_cbranch_scc1 Z_spin")
    a.label("Z_end")
    a.e("s_endpgm")
    kernel_desc(a, "z_kernel", 16, 16)
    return "; @launch kernel=z_kernel grid=(1,1,1) block=(64,1,1) lds=0"

def build(path, i, j, wg=0, cyc=False, opt=None):
    a = Asm()
    a('.amdgcn_target "amdgcn-amd-amdhsa--gfx950"')
    l = gen_attn(a, KNAME, stamp=1, opt=opt).replace("@launch ", f"@launch kernel={KNAME} ")
    z = zk(a, i, j, wg, cyc)
    open(path, "w").write(l + "\n" + z + "\n" + a.text().replace(KNAME + "_", "L_"))

if __name__ == "__main__":
    for i, j in ((0, 0), (0, 1), (0, 3), (0, 4), (0, 7)):
        build(f"z{i}{j}.s", i, j, wg=2)
    build("za05.s", 0, 5, wg=255)
```

```python
import sys
sys.path.insert(0, "gen")
from asmlib import *
from layout import *
from conv import Conv
from aux import gen_aux
from front import *

RS = 1056
LDS_P = 131072
LDS_MX = 139264
LDS_FG = LDS_MX + 512
LDS_ML = LDS_MX + 1024
LDS_HALO = LDS_ML + 1024
LDS_TAP = LDS_HALO + 2048
LDS_STT = LDS_TAP + 3072
LDS_ATT = 163840
ES = 272
NA = 16
ARING = [16 * i for i in range(16)]
BIG = 2.0 ** 100
SPIN = 200000
FK = [0, 8, 16, 20, 24, 28, 30]

DROP = []
def emit_interval(a, mfmas, fill):
    for i, m in enumerate(mfmas):
        if m is not None:
            a.e(m)
        for f in fill.get(i, []):
            if any(f.startswith(d) for d in DROP): continue
            a.e(f)

def conv_addr(a, NR, row0):
    a.e("v_lshrrev_b32 v12, 5, v2")
    a.e(f"v_mul_u32_u24 v12, {NR}, v12")
    a.e(f"v_add_u32 v12, {row0}, v12")
    a.e("v_and_b32 v13, 31, v2")
    a.e("v_lshlrev_b32 v13, 4, v13")
    a.e("v_lshl_add_u32 v14, v12, 9, v13")
    a.e("s_and_b32 s26, s25, 3")
    a.e("s_lshl_b32 s26, s26, 15")
    a.e("v_add_u32 v4, s26, v14")
    a.e("v_add_u32 v7, s49, v14")
    a.e("v_and_b32 v14, 4, v12")
    a.e("v_lshlrev_b32 v14, 5, v14")
    a.e("v_xor_b32 v8, v7, v14")
    a.e(f"v_add_u32 v10, {LDS_TAP}, v13")
    a.e(f"v_add_u32 v13, {LDS_HALO}, v13")
    a.e("v_cmp_eq_u32 vcc, 0, v12")
    a.e("v_subrev_u32 v5, 1024, v4")
    a.e(f"v_add_u32 v6, {512*NR}, v4")
    a.e("v_cndmask_b32 v5, v5, v13, vcc")
    a.e(f"v_cmp_eq_u32 vcc, {64-NR}, v12")
    a.e("v_add_u32 v13, 1024, v13")
    a.e("v_lshlrev_b32 v9, 3, v12")
    a.e("v_cndmask_b32 v6, v6, v13, vcc")
    a.e(f"v_add_u32 v9, {LDS_STT}, v9")

def gen_tail(a, L, st, fs, opt):
    q = Seq(a)
    PF = opt.get("pf", 10)
    q.vm = [f"A{k}" for k in range(PF) for _ in range(4)]
    BF = [32, 48]; YR = 64; XR = 96
    NS = 32
    acc = lambda k: 128 if k < 16 else 192
    def bread(k, tb):
        s = k % 8
        r = BF[k % 2] + 4 * tb
        if k % 16 < 8:
            return f"ds_read_b128 v[{r}:{r+3}], v6 offset:{8192*tb + 1024*s}"
        return f"ds_read_b128 v[{r}:{r+3}], v{28 + s % 4} offset:{8192*tb + 256*(s//4)}"
    a.e("v_add_u32 v6, s48, v3")
    a.e("s_waitcnt lgkmcnt(0)")
    fs(5)
    a.e("s_barrier")
    for tb in range(4): q.l(bread(0, tb), "B0")
    a.e("v_and_b32 v4, 15, v2")
    a.e("v_lshrrev_b32 v5, 4, v2")
    a.e("v_mov_b32 v12, 1")
    a.e("s_mov_b32 s43, 0xffff0000")
    side = {}
    def at(k, g, fn): side.setdefault((k + g // 16, g % 16), []).append(fn)
    def spread(k, g, ops, per=2, skip=lambda g: False):
        n = 16 * k + g
        ops = list(ops)
        while ops:
            if not skip(n % 16):
                for _ in range(per):
                    if ops:
                        o = ops.pop(0)
                        at(n // 16, n % 16, o if callable(o) else (lambda o=o: a.e(o)))
            n += 1
    lo8 = lambda g: g < 8
    spread(0, 8, ["v_and_b32 v13, 7, v4", "v_lshlrev_b32 v13, 1, v13", "v_xor_b32 v13, v13, v5", "v_lshlrev_b32 v13, 4, v13",
                  "v_lshl_add_u32 v13, v4, 9, v13", "v_add_u32 v28, s49, v13", "v_xor_b32 v29, 64, v28", "v_xor_b32 v30, 128, v28",
                  "v_xor_b32 v31, 192, v28",
                  f"s_mul_i32 s26, s16, {64*ES}", "s_add_u32 s26, s26, s48",
                  f"v_mul_u32_u24 v7, {ES}, v4", "v_lshl_add_u32 v7, v5, 4, v7", "v_add_u32 v7, s26, v7",
                  "v_lshrrev_b32 v13, 3, v2", "v_and_b32 v14, 7, v2", f"v_mul_u32_u24 v8, {ES}, v13",
                  "v_lshl_add_u32 v8, v14, 5, v8", "v_add_u32 v8, s26, v8",
                  "v_lshlrev_b32 v15, 4, v14", "v_lshl_add_u32 v15, v13, 10, v15"], skip=lo8)
    for i in range(8):
        def xl(i=i):
            a.e(f"s_add_u32 s26, s58, {8192*i}")
            q.v(f"buffer_load_dwordx4 v[{XR+4*i}:{XR+4*i+3}], v15, s[32:35], s26 offen", "X")
        at(opt.get("kx", 26), 1 + opt.get("dx", 4) * i, xl)
    YS = opt.get("ys", 2)
    for i in range(8):
        tb, h = i % 4, i // 4
        k, g0 = (16 + i // 2, 8 + 4 * (i % 2)) if YS == 2 else (16, 8 + 3 * i)
        src = [128 + 16 * (2 * h + ee) + 4 * tb + j for ee in range(2) for j in range(4)]
        for j in range(4):
            at(k, g0 + j // 2, lambda j=j, i=i, src=src: a.e(f"v_cvt_pk_bf16_f32 v{YR+4*i+j}, v{src[2*j]}, v{src[2*j+1]}"))
        at(k, g0 + 2, lambda i=i: q.v(f"buffer_store_dwordx4 v[{YR+4*i}:{YR+4*i+3}], v3, s[12:15], s{54 + i//4} offen offset:{1024*(i%4)} sc1", "Yst"))
    KF, KL, KC = opt.get("k", (24, 27, 29))
    at(KF, 9, lambda: q.v("buffer_store_dword v12, off, s[12:15], s56 sc1", need=("Yst",)))
    yl = "buffer_load_dword v14, off, s[12:15], s57 sc1"
    at(KL, 9, lambda: q.v(yl, "yf"))
    def gety():
        poll(a, q, L, "y", [yl], ["v_readfirstlane_b32 s26, v14", "s_cmp_eq_u32 s26, 1"], "yf", slp=1)
        a.e("s_xor_b32 s54, s54, 0x8000")
        a.e("s_xor_b32 s55, s55, 0x8000")
    at(KC, 7, gety)
    for i in range(8):
        at(KC, 8 + i, lambda i=i: q.v(f"buffer_load_dwordx4 v[{YR+4*i}:{YR+4*i+3}], v3, s[12:15], s{54 + i//4} offen offset:{1024*(i%4)} sc1", f"Y{i}"))
    XF = 128
    KU = opt.get("ku", 30)
    at(KU, 0, lambda: q.wait("X"))
    spread(KU, 0, [x for i in range(32) for x in (f"v_lshlrev_b32 v{XF+2*i}, 16, v{XR+i}", f"v_and_b32 v{XF+2*i+1}, s43, v{XR+i}")])
    nl = 4 * PF
    AS = opt.get("as", "4" * 16 + "0000" + "4" * 12)
    LG = opt.get("lg", (1, 5, 9, 13, 3))
    for k in range(NS):
        assert nl >= 4 * min(NS, k + 3)
        if k == 25: a.e("s_barrier")
        if k == 0: st(5)
        if k in FK: fs(6 + FK.index(k))
        q.wait(f"A{k}", f"B{k}")
        g = 0
        for nb in range(4):
            for tb in range(4):
                d = acc(k) + 16 * nb + 4 * tb; r = areg(k, nb); b = BF[k % 2] + 4 * tb
                c = "0" if k % 16 == 0 else f"v[{d}:{d+3}]"
                a.e(f"{M16} v[{d}:{d+3}], a[{r}:{r+3}], v[{b}:{b+3}], {c}")
                if g < 8 and g % 2 == 0 and k + 1 < NS:
                    q.l(bread(k + 1, g // 2), f"B{k+1}")
                if nl < 4 * NS and nl // 4 < k + NA and g in LG[:int(AS[k])]:
                    aload(a, q, nl // 4, nl % 4); nl += 1
                for fn in side.pop((k, g), []): fn()
                g += 1
    assert not side, side.keys()
    st(6); fs(13)
    T0 = 16
    for i in range(8):
        tb, h = i % 4, i // 4
        q.wait(f"Y{i}")
        for j in range(4):
            a.e(f"v_lshlrev_b32 v{T0+2*j}, 16, v{YR+4*i+j}")
            a.e(f"v_and_b32 v{T0+2*j+1}, s43, v{YR+4*i+j}")
        for j in range(4):
            d = 192 + 16 * (2 * h + j // 2) + 4 * tb + 2 * (j % 2)
            a.e(f"v_pk_add_f32 v[{d}:{d+1}], v[{d}:{d+1}], v[{T0+2*j}:{T0+2*j+1}]")
        for ee in range(2):
            nb = 2 * h + ee; d = 192 + 16 * nb + 4 * tb
            q.l(f"ds_write_b128 v7, v[{d}:{d+3}] offset:{16*ES*tb + 64*nb}", "Ew")
        if h == 1:
            for ii in (2 * tb, 2 * tb + 1):
                for hh in range(2):
                    r = ER(ii) + 4 * hh
                    q.l(f"ds_read_b128 v[{r}:{r+3}], v8 offset:{8*ES*ii + 16*hh}", f"E{ii}")
    fs(14)
    for i in range(8):
        q.wait(f"E{i}")
        for k in range(4):
            r = ER(i) + 2 * k
            a.e(f"v_pk_add_f32 v[{r}:{r+1}], v[{r}:{r+1}], v[{XF+8*i+2*k}:{XF+8*i+2*k+1}]")
        for k in range(4):
            r = ER(i) + 2 * k
            a.e(f"v_cvt_pk_bf16_f32 v{XF+8*i+k}, v{r}, v{r+1}")
        a.e(f"s_add_u32 s26, s58, {8192*i}")
        q.v(f"buffer_store_dwordx4 v[{XF+8*i}:{XF+8*i+3}], v15, s[36:39], s26 offen {opt.get('omod', 'sc1')}")

def ER(i):
    return (96 + 8 * i) if i < 4 else (32 + 8 * (i - 4))

def areg(k, nb):
    return ARING[k % NA] + 4 * nb

def aload(a, q, k, nb):
    s = k % 8
    if nb == 0:
        if k % 16 < 8:
            a.e(f"s_add_u32 s59, {'s52' if k < 16 else 's53'}, {524288 + 32768*(s//4) + 4096*(s%4)}")
        else:
            a.e(f"s_add_u32 s59, {'s50' if k < 16 else 's51'}, {4096*s}")
    r = areg(k, nb)
    q.v(f"buffer_load_dwordx4 a[{r}:{r+3}], v3, s[12:15], s59 offen offset:{1024*nb} sc1", f"A{k}")

def gen_attn(a, name, stamp=False, opt=None):
    opt = opt or {}
    DROP[:] = opt.get('drop', [])
    Fine.op = 's_memtime' if opt.get('cyc') else 's_memrealtime'
    nP = 16
    L = lambda s: f"{name}_{s}"
    st = Stamper(a, stamp in (1, 5))
    fs = Fine(a, stamp == 2)
    ff = Fine(a, stamp == 3)
    fp = Fine(a, stamp == 6)
    kernel_begin(a, name)
    a.e("s_cmp_ge_u32 s2, 256")
    a.e(f"s_cbranch_scc1 {L('end')}")
    a.e(f"s_load_dwordx2 s[4:5], s[0:1], {KA['ws']}")
    a.e(f"s_load_dwordx2 s[6:7], s[0:1], {KA['x']}")
    a.e(f"s_load_dwordx2 s[40:41], s[0:1], {KA['wq']}")
    a.e(f"s_load_dwordx2 s[8:9], s[0:1], {KA['wk']}")
    a.e(f"s_load_dwordx2 s[96:97], s[0:1], {KA['wup']}")
    a.e(f"s_load_dwordx2 s[44:45], s[0:1], {KA['dw']}")
    a.e(f"s_load_dwordx4 s[48:51], s[0:1], {KA['out']}")
    a.e(f"s_load_dwordx4 s[52:55], s[0:1], {KA['wv']}")
    a.e(f"s_load_dwordx4 s[56:59], s[0:1], {KA['wdn']}")
    a.e("s_and_b32 s20, s2, 7")
    a.e("s_lshl_b32 s20, s20, 5")
    a.e("s_lshr_b32 s21, s2, 3")
    a.e("s_add_u32 s31, s20, s21")
    if opt.get("map") == 1:
        a.e("s_and_b32 s20, s2, 6")
        a.e("s_lshl_b32 s20, s20, 5")
        a.e("s_lshl_b32 s21, s21, 1")
        a.e("s_add_u32 s31, s20, s21")
        a.e("s_and_b32 s20, s2, 1")
        a.e("s_add_u32 s31, s31, s20")
    a.e("s_lshr_b32 s21, s31, 7")
    a.e("s_and_b32 s22, s31, 1")
    a.e("s_bfe_u32 s23, s31, 0x60001")
    a.e("v_lshrrev_b32 v1, 6, v0")
    a.e("v_and_b32 v2, 63, v0")
    a.e("v_readfirstlane_b32 s16, v1")
    a.e("v_lshlrev_b32 v3, 4, v2")
    a.e("s_mul_i32 s24, s21, 4096000")
    a.e("s_add_u32 s25, s22, 62")
    a.e("s_lshl_b32 s27, s23, 16")
    a.e("s_waitcnt lgkmcnt(0)")
    st(0); ff(0)
    def fin_srd(d, n):
        a.e(f"s_and_b32 s{d+1}, s{d+1}, 0xffff")
        a.e(f"s_mov_b32 s{d+2}, {n}")
        a.e(f"s_mov_b32 s{d+3}, 0x00020000")
    q = Seq(a)
    srd_off(a, 32, 6, "s24", 4096000)
    a.e("v_lshrrev_b32 v4, 3, v2")
    a.e("v_and_b32 v5, 7, v2")
    a.e("v_lshlrev_b32 v5, 4, v5")
    a.e("v_lshl_add_u32 v4, v4, 10, v5")
    a.e("s_lshl_b32 s26, s16, 14")
    a.e("s_add_u32 s26, s26, s27")
    a.e("s_lshl_b32 s28, s22, 9")
    a.e("s_add_u32 s26, s26, s28")
    for s_ in range(16):
        if s_ % 4 == 0: a.e(f"s_xor_b32 s28, s26, {8192*(s_//8) + 512*((s_//4)%2)}")
        q.v(f"buffer_load_dwordx4 v[{16+4*s_}:{19+4*s_}], v4, s[32:35], s28 offen offset:{128*(s_%4)} {opt.get('xmod', 'nt')}", f"x{s_}")
    fin_srd(96, 1048576)
    touches(a, q, L, opt)
    fin_srd(40, 524288); fin_srd(8, 524288); fin_srd(44, 5120)
    make_srd(a, 12, 4, 0x4000000)
    make_srd(a, 92, 50, 256)
    srd_off(a, 36, 48, "s24", 4096000)
    mi = m_issue(a, q)
    def clear():
        a.e("v_mov_b32 v14, 0")
        a.e("v_lshlrev_b32 v13, 2, v2")
        a.e("s_lshl_b32 s26, s31, 2")
        a.e("s_add_u32 s26, s26, s16")
        a.e("s_lshl_b32 s28, s26, 8")
        a.e(f"s_add_u32 s28, s28, {WS_MX}")
        q.v("buffer_store_dword v14, v13, s[12:15], s28 offen sc1", "St")
        a.e("s_lshl_b32 s28, s31, 5")
        a.e("s_add_u32 s28, s28, s16")
        a.e("s_lshl_b32 s28, s28, 2")
        a.e(f"s_add_u32 s28, s28, {WS_FL}")
        a.e("v_and_b32 v13, 48, v2")
        q.v("buffer_store_dword v14, v13, s[12:15], s28 offen sc1", "St")
    a.e("s_cmp_ge_u32 s23, 63")
    a.e(f"s_cbranch_scc1 {L('aux')}")
    def emit_aux(q0=q, vm0=list(q.vm)):
        a.label(L("aux"))
        q0.vm, q0.lg = list(vm0), []
        for f in mi: f()
        q0.v("buffer_load_dword v0, v7, s[44:47], 0 offen")
        mfin = m_tile(a, q0)
        a.e("s_nop 7")
        mfin()
        q0.all()
        a.e("s_barrier")
        signal(a, L, "sig1a", 0, 0)
        signal(a, L, "sig2a", 1, 8)
        signal(a, L, "sig3a", 2, 4)
        a.e("s_lshl_b32 s20, s21, 1")
        a.e("s_add_u32 s20, s20, s22")
        gen_aux(a, L, st, ff)
        signal(a, L, "sig4a", 0, 12, shard=False)
        for k in range(5, 7): st(k)
        for k in range(15): fs(k)
        if stamp in (4, 6):
            for k in range(16): Fine(a, True)(k)
        for k in range(9, 15): ff(k)
        a.e(f"s_branch {L('fin')}")
    gen_front(a, q, L, st, ff, mi, clear, opt)
    st(2); ff(10)
    def tail_consts():
        t = Asm()
        t.e("s_lshl_b32 s26, s22, 2")
        t.e("s_add_u32 s26, s26, s16")
        t.e("s_lshl_b32 s53, s26, 16")
        t.e(f"s_add_u32 s53, s53, {WS_W3}")
        t.e("s_xor_b32 s52, s53, 0x40000")
        t.e("s_lshl_b32 s58, s26, 7")
        t.e("s_add_u32 s58, s58, s27")
        t.e("s_lshl_b32 s54, s31, 2")
        t.e("s_add_u32 s54, s54, s16")
        t.e("s_lshl_b32 s54, s54, 13")
        t.e(f"s_add_u32 s54, s54, {WS_YX}")
        t.e("s_add_u32 s55, s54, 4096")
        t.e("s_lshl_b32 s26, s22, 15")
        t.e("s_add_u32 s50, s52, s26")
        t.e("s_add_u32 s51, s53, s26")
        t.e("s_lshl_b32 s26, s22, 14")
        t.e("s_add_u32 s52, s52, s26")
        t.e("s_add_u32 s53, s53, s26")
        t.e("s_add_u32 s26, s25, 2")
        t.e("s_and_b32 s26, s26, 3")
        t.e("s_lshl_b32 s48, s26, 15")
        t.e("s_add_u32 s26, s25, 1")
        t.e("s_and_b32 s26, s26, 3")
        t.e("s_lshl_b32 s49, s26, 15")
        t.e("s_lshl_b32 s56, s31, 5")
        t.e("s_add_u32 s56, s56, s16")
        t.e("s_lshl_b32 s56, s56, 2")
        t.e(f"s_add_u32 s56, s56, {WS_FL}")
        t.e("s_xor_b32 s57, s56, 128")
        return [x.strip() for x in t.lines]
    a.e("s_mov_b32 s17, s25")
    a.e(f"s_mov_b32 s101, {f2u(-BIG)}")
    def guard(r):
        return [f"v_add_f32 v{r}, v{r}, v{r+1}", f"v_cmp_nle_f32 vcc, s101, v{r}", "s_cmp_eq_u32 s101, 0", "s_cselect_b64 s[28:29], 0, vcc",
                "s_cmp_lg_u64 s[28:29], 0", f"s_cbranch_scc1 {L('redo')}"]
    a.e("s_cmp_ge_u32 s16, 2")
    a.e(f"s_cbranch_scc1 {L('pv')}")

    def dma_group():
        return "s_and_b32 m0, s18, 0x1ffff", [f"buffer_load_dwordx4 v3, s[8:11], s18 offen offset:{1024*j} {opt.get('kvmod', 'sc1')} lds" for j in range(4)]
    def dma_tile():
        for g in range(4):
            pre, ld = dma_group()
            a.e(pre); a.e("s_nop 0")
            for x in ld: a.e(x)
            a.e(f"s_add_u32 s18, s18, {4096 if g < 3 else 32768 - 3*4096}")
    def place_dma(fill, gaps):
        k = 0
        for g in range(4):
            pre, ld = dma_group()
            fill.setdefault(gaps[k] - 1, []).append(pre)
            for j in range(4):
                fill.setdefault(gaps[k], []).append(ld[j]); k += 1
            fill.setdefault(gaps[k - 1] + 1, []).append(f"s_add_u32 s18, s18, {4096 if g < 3 else 32768 - 3*4096}")
    auxl = cnt_load(4, "v11")
    auxc = CNT_OK

    KB = [32, 96]; S = 160; NEGM = 176; E = 192; PK = 200; LS = 204
    VK = 8; VPW = 9; TMP = 10
    MX0 = 208
    def qk_setup():
        a.e("v_and_b32 v4, 15, v2")
        a.e("v_lshrrev_b32 v5, 4, v2")
        a.e("v_and_b32 v6, 0x27, v2")
        a.e("v_and_b32 v7, 8, v2")
        a.e("v_lshl_add_u32 v6, v7, 1, v6")
        a.e("v_and_b32 v7, 16, v2")
        a.e("v_lshrrev_b32 v7, 1, v7")
        a.e("v_add_lshl_u32 v6, v6, v7, 4")
        a.e("s_lshl_b32 s29, s16, 14")
        a.e(f"v_add_u32 v{VK}, s29, v6")
        a.e("s_lshl_b32 s29, s16, 11")
        a.e(f"s_add_u32 s29, s29, {LDS_P}")
        a.e(f"v_lshl_add_u32 v{VPW}, v2, 3, s29")
        for i in range(4):
            a.e(f"v_mov_b32 v{LS+i}, 0")
        for i in range(4):
            a.e(f"v_mov_b32 v{MX0+i}, 0xff800000")
    qk_setup()
    def kread(par, s, imm):
        r = KB[par] + 4 * s
        return f"ds_read_b128 v[{r}:{r+3}], v{VK} offset:{imm + 1024*s}"
    def chain(par, qb, c0):
        out = []
        for s in range(16):
            k = KB[par] + 4 * s; q = 64 * qb + 4 * s; d = S + 4 * qb
            c = c0 if s == 0 else f"v[{d}:{d+3}]"
            out.append(f"{M16} v[{d}:{d+3}], v[{k}:{k+3}], a[{q}:{q+3}], {c}")
        return out
    q = Seq(a)
    mf = [m for qb in range(4) for m in chain(0, qb, "0")]
    tc = tail_consts()
    if opt.get("qe"):
        for n in range(12): q.l(kread(0, n, 0), f"K{n}")
        for n in range(64):
            q.e(mf[n], need=(f"K{n}",))
            if n < 4: q.l(kread(0, 12 + n, 0), f"K{12+n}")
            elif tc: a.e(tc.pop(0))
    else:
        a.e(f"v_add_u32 v7, {LDS_XS}, v3")
        rd = []
        for n in range(64):
            qb, s = n // 16, n % 16
            rd.append((f"ds_read_b128 a[{64*qb+4*s}:{64*qb+4*s+3}], v7 offset:{16384*((s%8)//2) + 8192*(s//8) + 2048*qb + 1024*(s%2)}", f"Q{n}"))
            if qb == 0: rd.append((kread(0, s, 0), f"Q{n}"))
        for _ in range(14): q.l(*rd.pop(0))
        for n in range(64):
            if n % 2 == 0: q.wait(f"Q{n+1}")
            a.e(mf[n])
            for _ in range(2 if n < 14 else 1):
                if rd: q.l(*rd.pop(0))
            if n >= 30 and tc: a.e(tc.pop(0))
        a.label(L("qk_again"))
        a.e("s_barrier")
    assert not tc
    a.e("s_nop 7")
    for qb in range(4):
        d = S + 4 * qb
        a.e(f"v_max3_f32 v{E+qb}, v{d}, v{d+1}, v{d+2}")
        a.e(f"v_max3_f32 v{E+qb}, v{E+qb}, v{d+3}, v{MX0+qb}")
    def group_reduce(r, t, op):
        for sw in ("v_permlane16_swap_b32", "v_permlane32_swap_b32"):
            for qb in range(4):
                a.e(f"v_mov_b32 v{t+qb}, v{r+qb}")
            a.e("s_nop 1")
            for qb in range(4):
                a.e(f"{sw} v{r+qb}, v{t+qb}")
            a.e("s_nop 1")
            for qb in range(4):
                a.e(f"{op} v{r+qb}, v{r+qb}, v{t+qb}")
    group_reduce(E, E + 4, "v_max_f32")
    a.e("s_lshl_b32 s29, s16, 8")
    a.e(f"s_add_u32 s29, s29, {LDS_MX}")
    a.e(f"v_lshl_add_u32 v{TMP}, v4, 4, s29")
    a.e(f"ds_write_b128 v{TMP}, v[{E}:{E+3}]")
    a.e(f"v_xor_b32 v{TMP}, 256, v{TMP}")
    a.e("s_waitcnt vmcnt(0) lgkmcnt(0)")
    a.e("s_barrier")
    a.e(f"ds_read_b128 v[{E+4}:{E+7}], v{TMP}")
    for s in range(8):
        a.e(kread(1, s, 32768))
    a.e("s_waitcnt lgkmcnt(8)")
    for qb in range(4):
        a.e(f"v_max_f32 v{E+qb}, v{E+qb}, v{E+4+qb}")
    for qb in range(4):
        for j in range(4):
            a.e(f"v_sub_f32 v{NEGM+4*qb+j}, 0, v{E+qb}")
    a.e("s_waitcnt lgkmcnt(4)")
    for s in range(8, 16):
        a.e(kread(1, s, 32768))
    for qb in range(4):
        for j in range(4):
            a.e(f"v_add_f32 v{S+4*qb+j}, v{S+4*qb+j}, v{NEGM+4*qb}")
    def softmax_ops(qb, par):
        e = E + 4 * (qb % 2); p = PK + 2 * (qb % 2); d = S + 4 * qb
        ex = [f"v_exp_f32 v{e+j}, v{d+j}" for j in range(4)]
        ad = [f"v_add_f32 v{LS+qb}, v{LS+qb}, v{e+j}" for j in range(4)]
        cv = [f"v_cvt_pk_bf16_f32 v{p+j}, v{e+2*j}, v{e+2*j+1}" for j in range(2)]
        wr = f"ds_write_b64 v{VPW}, v[{p}:{p+1}] offset:{par*4096 + qb*512}"
        return ex, ad, cv, wr
    ex, ad, cv, wr = softmax_ops(0, 0)
    for x in ex + ["s_nop 0"] + cv + ad + [wr]: a.e(x)
    a.e("s_waitcnt lgkmcnt(1)")
    fill = {}
    ops = []
    for qb in range(1, 4):
        ex, ad, cv, wr = softmax_ops(qb, 0)
        ops += ex + [ad[0]] + cv + ad[1:] + [wr]
    for i, x in enumerate(ops):
        fill.setdefault(i * 15 // len(ops), []).append(x)
    emit_interval(a, chain(1, 0, f"v[{NEGM}:{NEGM+3}]"), fill)
    a.e("s_waitcnt lgkmcnt(0)")
    a.e("s_sub_u32 s17, s17, 1")
    a.e("s_barrier")

    XT = ["buffer_load_dword v0, v7, s[32:35], s40 offen", "s_add_u32 s40, s40, 1024"]
    def qk_interval(par):
        mf = []
        for c in range(4):
            qb = (c + 1) % 4
            mf += chain(par if c < 3 else par ^ 1, qb, f"v[{NEGM+4*qb}:{NEGM+4*qb+3}]")
        fill = {}
        if par == 1:
            fill.setdefault(0, []).append(f"v_xor_b32 v{VK}, 0x10000, v{VK}")
        imm = 32768 * (par ^ 1)
        rgaps = [1, 2, 3, 12, 13, 14, 16, 17, 18, 28, 29, 30, 32, 33, 34, 35]
        for s in range(16):
            fill.setdefault(rgaps[s], []).append(kread(par ^ 1, s, imm))
        for c in range(4):
            b = 16 * c
            ex, ad, cv, wr = softmax_ops(c, par)
            if c == 3:
                fill.setdefault(b + 0, []).append("s_sub_u32 s17, s17, 1")
                fill.setdefault(b + 1, []).append("s_nop 0")
                fill.setdefault(b + 2, []).append("s_nop 0")
            for j in range(4):
                fill.setdefault(b + 4 + j, []).append(ex[j])
            fill.setdefault(b + 8, []).extend(cv)
            fill.setdefault(b + 9, []).extend([wr])
            fill.setdefault(b + 10, []).extend(ad[:2])
            fill.setdefault(b + 11, []).extend(ad[2:])
        fill.setdefault(47, []).append("s_waitcnt lgkmcnt(1)")
        if par == 1:
            fill.setdefault(44, []).append("s_cmp_lt_u32 s17, s40")
            fill.setdefault(45, []).extend([f"s_cbranch_scc1 {L('touch')}", L("touch_ret") + ":"])
        fill.setdefault(62, []).append("s_cmp_eq_u32 s17, 0")
        fill.setdefault(63, []).extend(["s_waitcnt lgkmcnt(0)", "s_barrier"])
        emit_interval(a, mf, fill)

    a.e("v_and_b32 v11, 3, v2")
    a.e("v_lshlrev_b32 v11, 6, v11")
    a.e("s_lshr_b32 s40, s31, 1")
    a.e(f"s_and_b32 s40, s40, {opt.get('xs', 15)}")
    a.e("s_lshl_b32 s40, s40, 1")
    a.e(f"s_add_u32 s40, s40, {opt.get('xb', 12)}")
    st(3); ff(11)
    a(".p2align 6")
    a.label(L("qk_loop"))
    qk_interval(1)
    a.e(f"s_cbranch_scc1 {L('qk_done')}")
    qk_interval(0)
    a.e(f"s_cbranch_scc0 {L('qk_loop')}")
    a.label(L("qk_done"))
    def tl(srd, so):
        a.e("v_lshlrev_b32 v12, 7, v2")
        a.e(f"buffer_load_dword v0, v12, s[{srd}:{srd+3}], {so} offen")
    def b_code():
        a.e("s_getpc_b64 s[28:29]")
        a.label(L("pc0"))
        a.e(f"s_sub_u32 s28, s28, {L('pc0')} - {L('qk_done')}")
        a.e("s_subb_u32 s29, s29, 0")
        a.e("s_lshr_b32 s30, s2, 3")
        a.e("s_lshl_b32 s30, s30, 1")
        a.e("s_add_u32 s30, s30, s16")
        a.e("s_lshl_b32 s30, s30, 10")
        a.e("v_lshl_add_u32 v12, v2, 4, s30")
        a.e(f"v_min_u32 v12, {L('end')} - {L('qk_done')}, v12")
        a.e("global_load_dword v0, v12, s[28:29]")
    def b_w(part):
        def f():
            a.e("s_lshr_b32 s30, s2, 3")
            a.e("s_lshl_b32 s30, s30, 1")
            a.e("s_add_u32 s30, s30, s16")
            a.e("s_lshl_b32 s30, s30, 13")
            a.e(f"s_add_u32 s30, s30, {WS_W3 + 524288*part}")
            tl(12, "s30")
        return f
    ST = 212
    foldl = "buffer_load_dword v13, off, s[92:95], 0 offset:12 sc1"
    def b_c3():
        a.e("s_waitcnt vmcnt(0)")
        poll(a, Seq(a), L, "qk_c3", [auxl], auxc, "aux", slp=16)
    def b_c4():
        a.e("s_waitcnt vmcnt(0)")
        poll(a, Seq(a), L, "qk_c4", [foldl], ["v_readfirstlane_b32 s28, v13", "s_cmp_ge_u32 s28, 4"], "aux", slp=16)
    def b_small():
        a.e("s_mul_i32 s28, s16, 34")
        a.e("s_lshl_b32 s29, s23, 6")
        a.e("s_add_u32 s28, s28, s29")
        a.e("s_sub_u32 s28, s28, 2")
        a.e(f"v_add_u32 v{ST+16}, s28, v2")
        a.e(f"v_max_i32 v12, 0, v{ST+16}")
        a.e(f"v_min_i32 v12, {T-1}, v12")
        a.e("v_lshlrev_b32 v12, 3, v12")
        a.e("s_lshl_b32 s29, s21, 15")
        for ct in range(8):
            a.e(f"s_add_u32 s30, s29, {WS_ST + 0x10000*ct}")
            a.e(f"buffer_load_dwordx2 v[{ST+2*ct}:{ST+2*ct+1}], v12, s[12:15], s30 offen sc1")
        a.e("s_lshl_b32 s28, s16, 1")
        a.e("s_add_u32 s28, s28, s23")
        a.e("s_sub_u32 s28, s28, 1")
        a.e("s_max_i32 s28, s28, 0")
        a.e("s_min_i32 s28, s28, 62")
        a.e("s_sub_u32 s28, s28, s23")
        a.e("s_lshl_b32 s28, s28, 1")
        a.e("s_add_u32 s28, s28, s31")
        a.e("s_lshl_b32 s28, s28, 16")
        a.e("s_xor_b32 s29, s16, 1")
        a.e(f"s_mul_i32 s29, s29, {62*512}")
        a.e("s_add_u32 s28, s28, s29")
        a.e(f"s_add_u32 s28, s28, {WS_GU}")
        a.e("s_lshl_b32 s29, s16, 10")
        a.e(f"s_add_u32 m0, s29, {LDS_HALO}")
        a.e("v_lshrrev_b32 v12, 5, v2")
        a.e("buffer_load_dwordx4 v3, s[12:15], s28 offen sc1 lds")
        a.e("v_lshl_add_u32 v12, v12, 9, v3")
        a.e("s_lshl_b32 s28, s22, 9")
        for i in range(3):
            a.e(f"s_mov_b32 m0, {LDS_TAP + 1024*i}")
            a.e(f"s_add_u32 s29, s28, {2048*i}")
            a.e("buffer_load_dwordx4 v12, s[44:47], s29 offen lds")
    def b_stat():
        a.e("s_waitcnt vmcnt(0)")
        for ct in range(1, 8):
            a.e(f"v_add_f32 v{ST}, v{ST}, v{ST+2*ct}")
            a.e(f"v_add_f32 v{ST+1}, v{ST+1}, v{ST+2*ct+1}")
        a.e(f"v_mul_f32 v{ST}, {f2u(1/512)}, v{ST}")
        a.e(f"v_mul_f32 v{ST+1}, {f2u(1/512)}, v{ST+1}")
        a.e(f"v_fma_f32 v{ST+1}, -v{ST}, v{ST}, v{ST+1}")
        a.e(f"v_max_f32 v{ST+1}, 0, v{ST+1}")
        a.e(f"v_add_f32 v{ST+1}, {f2u(1e-5)}, v{ST+1}")
        a.e(f"v_rsq_f32 v{ST+1}, v{ST+1}")
        a.e(f"v_cmp_gt_u32 vcc, {T}, v{ST+16}")
        a.e(f"v_mul_f32 v{ST}, v{ST}, v{ST+1}")
        a.e(f"v_sub_f32 v{ST}, 0, v{ST}")
        a.e(f"v_cndmask_b32 v{ST+2}, 0, v{ST+1}, vcc")
        a.e(f"v_cndmask_b32 v{ST+3}, 0, v{ST}, vcc")
        a.e(f"s_mul_i32 s28, s16, {34*8}")
        a.e(f"s_add_u32 s28, s28, {LDS_STT}")
        a.e("v_lshl_add_u32 v12, v2, 3, s28")
        a.e(f"ds_write_b64 v12, v[{ST+2}:{ST+3}]")
    def b_x(r0):
        def f():
            a.e("s_lshl_b32 s30, s22, 1")
            a.e("s_add_u32 s30, s30, s16")
            a.e("s_lshl_b32 s30, s30, 14")
            a.e("s_add_u32 s30, s30, s27")
            a.e(f"s_add_u32 s30, s30, {r0*1024}")
            tl(32, "s30")
        return f
    tb_fns = B = dict(code=b_code, l3=lambda: a.e(auxl), c3=b_c3, small=b_small, stat=b_stat, x0=b_x(0), x8=b_x(8), l4=lambda: a.e(foldl), c4=b_c4, w1=b_w(1), w0=b_w(0))
    st(4); fs(0); ff(13); fp(0)
    q = Seq(a)
    group_reduce(LS, E, "v_add_f32")
    a.e(f"v_mov_b32 v{E+2}, v{NEGM}")
    a.e(f"v_mov_b32 v{E+3}, v{LS}")
    for qb in range(1, 4):
        a.e(f"v_cmp_eq_u32 vcc, {qb}, v5")
        a.e("s_nop 1")
        a.e(f"v_cndmask_b32 v{E+2}, v{E+2}, v{NEGM+4*qb}, vcc")
        a.e(f"v_cndmask_b32 v{E+3}, v{E+3}, v{LS+qb}, vcc")
    a.e(f"v_or_b32 v{E+3}, 0x80000000, v{E+3}")
    a.e("s_lshl_b32 s28, s16, 9")
    a.e("s_lshl_b32 s30, s31, 10")
    a.e("s_add_u32 s30, s30, s28")
    a.e(f"s_add_u32 s30, s30, {WS_MX}")
    a.e(f"s_add_u32 s28, s28, {LDS_ML}")
    a.e(f"v_lshlrev_b32 v{E+4}, 3, v2")
    a.e(f"v_add_u32 v{TMP}, s28, v{E+4}")
    q.l(f"ds_write_b64 v{TMP}, v[{E+2}:{E+3}]")
    a.e(f"v_add_u32 v{TMP}, {LDS_ML + 4}, v{E+4}")
    tb_fns["stat"]()
    q.all(vm=False)
    fs(1)
    a.e("s_barrier")
    fs(2)
    q.l(f"ds_read2st64_b32 v[{E}:{E+1}], v{TMP} offset0:0 offset1:2", "lsum")
    a.e("s_lshl_b32 s28, s16, 5")
    conv_addr(a, 16, "s28")
    q.wait("lsum")
    for x in guard(E): a.e(x)
    q.v(f"buffer_store_dwordx2 v[{E+2}:{E+3}], v{E+4}, s[12:15], s30 offen sc1", "MLst")
    cv = Conv(a, q, 16)
    cv.prep()
    fs(3)
    PF = opt.get("pf", 10); n = 0
    for j in range(20):
        if j in (0, 2, 4, 6, 8, 11, 14, 17): fp(1 + (0, 2, 4, 6, 8, 11, 14, 17).index(j))
        cv.row(j)
        if j >= opt.get("qa", 5):
            for _ in range(3):
                if n < 4 * PF:
                    aload(a, q, n // 4, n % 4); n += 1
    while n < 4 * PF:
        aload(a, q, n // 4, n % 4); n += 1
    fs(4)
    a.e(f"s_branch {L('tail')}")
    a.label(L("touch"))
    THR = 2 * int(opt.get("blocks", "2")[0]) + 2
    a.e(f"s_cmp_eq_u32 s40, {THR}")
    a.e(f"s_cbranch_scc1 {L('touchb')}")
    a.e(f"s_mov_b32 s40, {THR}")
    B["x0"](); B["x8"]()
    a.e(f"s_branch {L('touch_ret')}")
    a.label(L("touchb"))
    a.e("s_lshr_b32 s26, s17, 1")
    spec = opt.get("blocks", "2:l3,l4 1:c3,c4,small")
    blocks = {int(x.split(":")[0]): [B[y] for y in x.split(":")[1].split(",")] for x in spec.split()}
    for kx, fns in blocks.items():
        a.e(f"s_cmp_lg_u32 s26, {kx}")
        a.e(f"s_cbranch_scc1 {L('touch%d' % kx)}")
        for f in fns: f()
        a.e(f"s_branch {L('touch_ret')}")
        a.label(L("touch%d" % kx))
    a.e(f"s_branch {L('touch_ret')}")

    VB = [16, 80]; PR = [144, 160]
    VV = 8; VPR = 9
    def oreg(db, qb):
        return (f"a[{4*qb}:{4*qb+3}]", None) if db == 0 else (f"v[{16*db+4*qb}:{16*db+4*qb+3}]", 16 * db + 4 * qb)
    a.label(L("pv"))
    a.e("s_sub_u32 s19, s16, 2")
    a.e("s_lshl_b32 s18, s19, 14")
    a.e("s_add_u32 s18, s18, 65536")
    dma_tile()
    for x in tail_consts(): a.e(x)
    for i in range(16, 256, 2):
        a.e(f"v_pk_mul_f32 v[{i}:{i+1}], 0, 0")
    for i in list(range(16)) + list(range(VB[1] + 56, VB[1] + 64)) + list(range(PR[1], PR[1] + 16)):
        a.e(f"v_accvgpr_write_b32 a{i}, 0")
    a.e("v_lshrrev_b32 v4, 5, v2")
    a.e("v_lshlrev_b32 v4, 8, v4")
    a.e("v_and_b32 v5, 2, v2")
    a.e("v_lshl_add_u32 v4, v5, 6, v4")
    a.e("v_and_b32 v5, 28, v2")
    a.e("v_lshl_add_u32 v4, v5, 2, v4")
    a.e("v_and_b32 v5, 1, v2")
    a.e("v_lshl_add_u32 v4, v5, 3, v4")
    a.e("s_lshl_b32 s29, s19, 13")
    a.e("s_lshl_b32 s28, s22, 12")
    a.e("s_add_u32 s28, s28, s29")
    a.e("v_add_u32 v11, s28, v4")
    a.e(f"v_xor_b32 v{VV}, 0x1000, v11")
    a.e("s_lshl_b32 s29, s19, 12")
    a.e("s_add_u32 s29, s29, s48")
    a.e("v_add_u32 v10, s29, v3")
    a.e("s_lshl_b32 s40, s31, 1")
    a.e("s_add_u32 s40, s40, s19")
    a.e("s_lshl_b32 s40, s40, 14")
    a.e(f"s_add_u32 s40, s40, {WS_ZX}")
    a.e("s_lshl_b32 s28, s31, 16")
    a.e(f"s_add_u32 s28, s28, {WS_GU}")
    a.e("s_sub_u32 s28, s28, s10")
    a.e("s_add_u32 s98, s4, s28")
    a.e("s_addc_u32 s99, s5, 0")
    a.e("s_and_b32 s99, s99, 0xffff")
    a.e("s_add_u32 s100, s10, 65536")
    a.e(f"s_mov_b32 s29, {LDS_P}")
    a.e(f"v_lshl_add_u32 v{VPR}, v2, 3, s29")
    a.e(f"v_add_u32 v1, {LDS_ML + 4 - LDS_P}, v{VPR}")
    if not opt.get("qe"): a.e("s_barrier")
    a.e("s_waitcnt vmcnt(16)")
    a.e("s_barrier")
    def vread(par, db, kb):
        r = VB[par] + 4 * db + 2 * kb
        return f"ds_read_b64_tr_b16 a[{r}:{r+1}], v{VV if db < 8 else 11} offset:{32768*par + 16384*kb + 512*(db%8)}"
    def pvm(par, db):
        out = []
        for qb in range(4):
            d = oreg(db, qb)[0]; v = VB[par] + 4 * db; p = PR[par] + 4 * qb
            out.append(f"{M16} {d}, a[{v}:{v+3}], a[{p}:{p+3}], {d}")
        return out
    signal(a, L, "sig3", 2, 4)
    dma_tile()
    for db in range(16):
        for kb in range(2):
            a.e(vread(0, db, kb))
        if db % 4 == 3: a.e("s_waitcnt lgkmcnt(4)")
    a.e(f"s_waitcnt vmcnt({nP}) lgkmcnt(0)")
    a.e("s_sub_u32 s17, s17, 1")
    a.e("s_barrier")

    pvq = []
    MR = 12; MO = 4; AL = 88; TT = 96; RX = 16
    mll = [f"buffer_load_dwordx2 v[{MR+2*w}:{MR+2*w+1}], v9, s[12:15], s42 offen offset:{512*w} sc1" for w in range(2)]
    ol = "buffer_load_dword v11, off, s[12:15], s57 offset:24 sc1"
    def pv_interval(par, last=False):
        mf = pvm(par, 14) + pvm(par, 15)
        for db in range(16 if last else 14):
            mf += pvm(par ^ 1, db)
        fill = {}
        for qb in range(4):
            p = PR[par ^ 1] + 4 * qb
            fill.setdefault(qb // 2, []).append(f"ds_read2st64_b64 a[{p}:{p+3}], v{VPR} offset0:{8*(par^1)+qb} offset1:{8*(par^1)+4+qb}")
        fill.setdefault(7, []).append("s_waitcnt lgkmcnt(0)")
        if last:
            fs(0); fp(0)
            q = Seq(a)
            ops = []
            for sp in range(4):
                for qb in range(4):
                    o = []
                    if sp == 0:
                        o += [f"v_accvgpr_read_b32 v{4+j}, a{4*qb+j}" for j in range(4)]
                        lo = 4
                    else:
                        lo = oreg(2 * sp, qb)[1]
                    hi = oreg(2 * sp + 1, qb)[1]
                    o += [f"v_cvt_pk_bf16_f32 v{hi+3}, v{hi+2}, v{hi+3}", f"v_cvt_pk_bf16_f32 v{hi+2}, v{hi}, v{hi+1}",
                          f"v_cvt_pk_bf16_f32 v{hi}, v{lo}, v{lo+1}", f"v_cvt_pk_bf16_f32 v{hi+1}, v{lo+2}, v{lo+3}"]
                    if qb == 0: o.append(f"s_add_u32 s41, s40, {4096*sp}")
                    o.append(f"buffer_store_dwordx4 v[{hi}:{hi+3}], v3, s[12:15], s41 offen offset:{1024*qb} sc1")
                    ops += [(8 + 8 * sp + 4 + qb + 6, x) for x in o]
            late = [lambda x=x: a.e(x) for x in ["v_lshlrev_b32 v9, 3, v2", "s_xor_b32 s26, s31, 1", "s_lshl_b32 s26, s26, 10", f"s_add_u32 s42, s26, {WS_MX}"]]
            late += [lambda w=w: q.v(mll[w], "ML") for w in range(2)]
            late += [lambda: q.v(ol, "of"), lambda: a.e("v_subrev_u32 v8, 4, v1"),
                     lambda: q.l(f"ds_read2st64_b64 v[{MO}:{MO+3}], v8 offset0:0 offset1:1", "MLo")]
            late += [lambda x=x: a.e(x) for x in ["v_and_b32 v1, 15, v2", "v_lshlrev_b32 v1, 2, v1", "s_xor_b32 s40, s40, 0x8000", "s_mov_b32 s43, 0xffff0000", "v_mov_b32 v0, 1"]]
            na = 0
            for i, m in enumerate(mf):
                a.e(m)
                for f in fill.get(i, []): a.e(f)
                if i == 12:
                    a.e("s_waitcnt vmcnt(0)")
                    fs(1)
                    a.e("s_barrier")
                    fs(2)
                    q.l("ds_read2st64_b32 v[8:9], v1 offset0:0 offset1:2", "lsum")
                if i == 17:
                    q.wait("lsum")
                    for x in guard(8): a.e(x)
                if i > 12:
                    n = 0
                    while ops and ops[0][0] <= i and n < 3:
                        x = ops.pop(0)[1]; n += 1
                        if x.startswith("buffer"): q.v(x, "Ost")
                        else: a.e(x)
                    if n and not ops: fp(1)
                    if n == 0:
                        if not ops and late: late.pop(0)()
                        else: a.e("s_nop 0")
            assert not ops
            while late: late.pop(0)()
            fs(3)
            pvq.append((q, na))
            return
        if par == 0:
            fill.setdefault(2, []).extend([f"v_xor_b32 v{VV}, 0x10000, v{VV}", "v_xor_b32 v11, 0x10000, v11"])
        for g, x in enumerate(["s_cmp_eq_u32 s17, 3", "s_cselect_b32 s8, s98, s8", "s_cselect_b32 s9, s99, s9", "s_cselect_b32 s10, s100, s10"]):
            fill.setdefault(3 + g, []).append(x)
        rg = opt.get("rg", [8 + 3 * (i // 2) + (i % 2) for i in range(32)])
        for i in range(32):
            fill.setdefault(rg[i], []).append(vread(par, i // 2, i % 2))
        place_dma(fill, opt.get("dg", [10 + 3 * i for i in range(16)]))
        fill.setdefault(60, []).append("s_sub_u32 s17, s17, 1")
        fill.setdefault(62, []).append("s_cmp_eq_u32 s17, 0")
        fill.setdefault(63, []).extend([f"s_waitcnt vmcnt({nP}) lgkmcnt(0)", "s_barrier"])
        emit_interval(a, mf, fill)

    st(3); ff(11)
    a(".p2align 6")
    a.label(L("pv_loop"))
    pv_interval(1)
    a.e(f"s_cbranch_scc1 {L('pv_last0')}")
    pv_interval(0)
    a.e(f"s_cbranch_scc0 {L('pv_loop')}")
    pv_interval(1, True)
    a.e(f"s_branch {L('pv_stage')}")
    a.label(L("pv_last0"))
    pv_interval(0, True)
    a.label(L("pv_stage"))
    st(4); ff(13)
    q, n = pvq[0]
    assert pvq[1][0].vm == q.vm and pvq[1][0].lg == q.lg
    fp(2)
    q.v("buffer_store_dword v0, off, s[12:15], s56 offset:24 sc1", need=("Ost",))
    fp(3)
    poll(a, q, L, "o", mll + [ol], ["v_readfirstlane_b32 s26, v11", "s_cmp_eq_u32 s26, 1"], "of", slp=1)
    fp(4)
    for f in range(16):
        if f % 4 == 0: a.e(f"s_add_u32 s41, s40, {1024*f}")
        q.v(f"buffer_load_dwordx4 v[{RX+4*f}:{RX+4*f+3}], v3, s[12:15], s41 offen offset:{1024*(f%4)} sc1", f"O{f}")
    fp(5)
    poll(a, q, L, "ml", mll, [f"v_and_b32 v8, v{MR+1}, v{MR+3}", "v_cmp_gt_i32 vcc, 0, v8", "s_nop 1", "s_cmp_eq_u64 vcc, -1"], "ML", slp=1)
    q.wait("MLo")
    for x in [f"v_add_f32 v{MR+1}, v{MR+1}, v{MR+3}", f"v_add_f32 v{MO+1}, v{MO+1}, v{MO+3}",
              f"v_min_f32 v8, v{MR}, v{MO}", f"v_sub_f32 v{MR}, v8, v{MR}", f"v_sub_f32 v{MO}, v8, v{MO}",
              f"v_exp_f32 v{MR}, v{MR}", f"v_exp_f32 v{MO}, v{MO}", f"v_mul_f32 v{MR+1}, v{MR+1}, v{MR}",
              f"v_fmac_f32 v{MR+1}, v{MO+1}, v{MO}", f"v_rcp_f32 v{MR+1}, v{MR+1}", "s_nop 0",
              f"v_mul_f32 v{MO}, v{MO}, -v{MR+1}", f"v_mul_f32 v{MR}, v{MR}, -v{MR+1}"]: a.e(x)
    for tb in range(4):
        q.l(f"ds_bpermute_b32 v{AL+2*tb}, v1, v{MO} offset:{64*tb}", "AL")
        q.l(f"ds_bpermute_b32 v{AL+2*tb+1}, v1, v{MR} offset:{64*tb}", "AL")
    q.wait("AL")
    for db in range(8, 16):
        for qb in range(4):
            r = oreg(db, qb)[1]
            for j in (0, 2):
                a.e(f"v_pk_mul_f32 v[{r+j}:{r+j+1}], v[{r+j}:{r+j+1}], v[{AL+2*qb}:{AL+2*qb+1}] op_sel_hi:[1,0]")
        aload(a, q, n // 4, n % 4); n += 1
    fp(6)
    for f in range(16):
        sp, qb = f // 4, f % 4
        q.wait(f"O{f}")
        if f in (0, 8): fp(7 + f // 8)
        for j in range(4):
            a.e(f"v_lshlrev_b32 v{TT+2*j}, 16, v{RX+4*f+j}")
            a.e(f"v_and_b32 v{TT+2*j+1}, s43, v{RX+4*f+j}")
        for j in range(4):
            r = oreg(8 + 2 * sp + j // 2, qb)[1] + 2 * (j % 2)
            a.e(f"v_pk_fma_f32 v[{TT+2*j}:{TT+2*j+1}], v[{TT+2*j}:{TT+2*j+1}], v[{AL+2*qb}:{AL+2*qb+1}], v[{r}:{r+1}] op_sel:[0,1,0] op_sel_hi:[1,1,1]")
        for j in range(4):
            a.e(f"v_cvt_pk_bf16_f32 v{RX+4*f+j}, v{TT+2*j}, v{TT+2*j+1}")
        q.l(f"ds_write_b128 v10, v[{RX+4*f}:{RX+4*f+3}] offset:{8192*qb + 1024*sp}")
        for _ in range(2):
            if n < 4 * PF:
                aload(a, q, n // 4, n % 4); n += 1
    while n < 4 * PF:
        aload(a, q, n // 4, n % 4); n += 1
    fs(4)
    a.label(L("tail"))
    ff(14); fp(9)
    gen_tail(a, L, st, fs, opt)
    a.label(L("fin"))
    if stamp == 1:
        a.e("s_waitcnt vmcnt(0)")
        st(7)
        emit_stamps(a, 8, nw=8, off=WS_STAMP + 0x200000)
    if stamp == 5:
        a.e("s_waitcnt vmcnt(0)")
        st(7)
        a.e("s_cmp_lg_u32 s16, 0")
        a.e(f"s_cbranch_scc1 {L('end')}")
        a.e("s_mov_b64 exec, 1")
        a.e("s_cmp_lg_u32 s2, 0")
        a.e(f"s_cbranch_scc1 {L('dbg2')}")
        for k in range(1, 8):
            a.e(f"s_sub_u32 s26, s{62+4*k}, s62")
            a.e("v_mov_b32 v8, s26")
            a.e(f"buffer_store_dword v8, off, s[92:95], 0 offset:{8+4*k}")
        a.e("s_sub_u32 s26, s76, s72")
        a.e("v_mov_b32 v8, s26")
        a.e("buffer_store_dword v8, off, s[92:95], 0 offset:40")
        a.label(L("dbg2"))
        a.e("s_cmp_lg_u32 s2, 255")
        a.e(f"s_cbranch_scc1 {L('end')}")
        for k in range(1, 6):
            a.e(f"s_sub_u32 s26, s{62+4*k}, s62")
            a.e("v_mov_b32 v8, s26")
            a.e(f"buffer_store_dword v8, off, s[92:95], 0 offset:{40+4*k}")
    if stamp in (2, 3, 4, 6):
        for k in range(10, 16): fp(k)
        a.e("s_waitcnt vmcnt(0)")
        fs(15)
        ff(15)
        emit_fine(a, off=WS_STAMP + 0x300000)
    a.label(L("end"))
    a.e("s_endpgm")
    a.label(L("redo"))
    a.e("s_waitcnt vmcnt(0) lgkmcnt(0)")
    a.e("s_mov_b32 s101, 0")
    a.e("s_mul_i32 s28, s22, 2031616")
    a.e("s_add_u32 s28, s28, s24")
    a.e("s_lshl_b32 s26, s25, 15")
    srd_off(a, 8, 4, "s28", "s26")
    a.e("s_lshl_b32 s19, s16, 13")
    qk_setup()
    a.e("s_mov_b32 s17, s25")
    def redo_dma(slot):
        for i in range(8):
            if i % 4 == 0:
                a.e(f"s_add_u32 m0, s19, {32768*slot + 1024*i}")
                a.e(f"s_add_u32 s29, s18, {1024*i}")
            a.e(f"buffer_load_dwordx4 v3, s[8:11], s29 offen offset:{1024*(i%4)} sc1 lds")
    a.label(L("redo_loop"))
    a.e("s_sub_u32 s17, s17, 1")
    a.e("s_lshl_b32 s18, s17, 15")
    a.e("s_add_u32 s18, s18, s19")
    a.e("s_barrier")
    redo_dma(0)
    a.e("s_waitcnt vmcnt(0)")
    a.e("s_barrier")
    a.e("s_cmp_ge_u32 s16, 2")
    a.e(f"s_cbranch_scc1 {L('redo_next')}")
    for n in range(16):
        a.e(kread(0, n, 0))
        if n == 11: a.e("s_waitcnt lgkmcnt(4)")
    a.e("s_waitcnt lgkmcnt(0)")
    for qb in range(4):
        for m in chain(0, qb, "0"): a.e(m)
    a.e("s_nop 7")
    for qb in range(4):
        d = S + 4 * qb
        a.e(f"v_max3_f32 v{MX0+qb}, v{MX0+qb}, v{d}, v{d+1}")
        a.e(f"v_max3_f32 v{MX0+qb}, v{MX0+qb}, v{d+2}, v{d+3}")
    a.label(L("redo_next"))
    a.e("s_cmp_lg_u32 s17, 0")
    a.e(f"s_cbranch_scc1 {L('redo_loop')}")
    a.e("s_add_u32 s18, s19, 32768")
    redo_dma(1)
    a.e("s_mov_b32 s17, s25")
    a.e("s_cmp_ge_u32 s16, 2")
    a.e(f"s_cbranch_scc1 {L('pv')}")
    a.e(f"s_branch {L('qk_again')}")
    emit_aux()
    kernel_desc(a, name, 512, 256)
    return f"; @launch grid=(256,1,1) block=(256,1,1) lds={LDS_ATT}"
```

```python
import sys, math
sys.path.insert(0, "gen")
from asmlib import *
from layout import *

RS = 1056
LDS_XS = 98304
LDS_MS = 163840 - 64 * RS
RING = 5
SS = 144
SPIN = 40000

def poll(a, q, L, name, load, cond, tag, slp=2):
    q.wait(tag)
    lab, done = L(name + "_spin"), L(name + "_ok")
    a.e(f"s_mov_b32 s30, {SPIN}")
    a.label(lab)
    for x in cond: a.e(x)
    a.e(f"s_cbranch_scc1 {done}")
    a.e(f"s_sleep {slp}")
    for x in load: a.e(x)
    a.e("s_sub_u32 s30, s30, 1")
    a.e("s_waitcnt vmcnt(0)")
    a.e(f"s_cbranch_scc0 {lab}")
    a.label(done)

def signal(a, L, name, wave, off, shard=True):
    a.e(f"s_cmp_lg_u32 s16, {wave}")
    a.e(f"s_cbranch_scc1 {L(name)}")
    a.e("v_mov_b32 v14, 1")
    a.e(f"s_and_b32 s26, s2, {3 if shard else 0}")
    a.e("s_lshl_b32 s26, s26, 6")
    a.e("s_mov_b64 exec, 1")
    a.e(f"buffer_atomic_add v14, off, s[92:95], s26 offset:{off}")
    a.e("s_mov_b64 exec, -1")
    a.label(L(name))

def cnt_load(off, va="v13"):
    return f"buffer_load_dword v14, {va}, s[92:95], 0 offen offset:{off} sc1"
CNT_OK = ["v_cmp_le_u32 vcc, 64, v14", "s_nop 1", "s_cmp_eq_u64 vcc, -1"]

def m_issue(a, q):
    a.e("s_lshr_b32 s17, s2, 4")
    a.e("s_lshl_b32 s17, s17, 15")
    a.e("s_and_b32 s18, s2, 15")
    a.e("s_lshl_b32 s18, s18, 15")
    a.e("s_lshl_b32 s19, s16, 13")
    a.e("s_add_u32 s17, s17, s19")
    a.e("s_add_u32 s18, s18, s19")
    a.e(f"s_mul_i32 s19, s16, {4*RS}")
    out = []
    for m, (srd, so) in enumerate(((40, "s17"), (8, "s18"))):
        for ee in range(2):
            for j in range(4):
                def f(m=m, srd=srd, so=so, ee=ee, j=j):
                    a.e(f"s_add_u32 m0, s19, {LDS_MS + (32*m + 16*ee + j)*RS - 1024*j}")
                    a.e(f"s_add_u32 {so}, {so}, 4096" if (ee == 1 and j == 0) else "s_nop 0")
                    q.v(f"buffer_load_dwordx4 v3, s[{srd}:{srd+3}], {so} offen offset:{1024*j} lds", "Mst")
                out.append(f)
    return out

def m_tile(a, q):
    a.e("v_and_b32 v4, 15, v2")
    a.e("v_lshrrev_b32 v5, 4, v2")
    a.e(f"v_mul_u32_u24 v6, {RS}, v4")
    a.e("v_lshl_add_u32 v6, v5, 4, v6")
    a.e(f"v_add_u32 v6, {LDS_MS}, v6")
    a.e("s_and_b32 s26, s16, 1")
    a.e("s_lshr_b32 s28, s16, 1")
    a.e(f"s_mul_i32 s29, s26, {16*RS}")
    a.e("v_add_u32 v7, s29, v6")
    a.e(f"s_mul_i32 s29, s28, {16*RS}")
    a.e("v_add_u32 v6, s29, v6")
    a.e("s_bfe_u32 s29, s2, 0x30001")
    a.e("s_lshl_b32 s29, s29, 16")
    a.e("s_lshr_b32 s30, s2, 4")
    a.e("s_lshl_b32 s30, s30, 12")
    a.e("s_add_u32 s29, s29, s30")
    a.e("s_and_b32 s30, s2, 1")
    a.e("s_lshl_b32 s30, s30, 1")
    a.e("s_add_u32 s30, s30, s28")
    a.e("s_lshl_b32 s30, s30, 10")
    a.e("s_add_u32 s29, s29, s30")
    a.e("s_lshl_b32 s30, s26, 3")
    a.e("s_add_u32 s29, s29, s30")
    a.e(f"s_add_u32 s29, s29, {WS_MI}")
    q.wait("Mst")
    a.e("s_barrier")
    R = lambda t: 16 + 8 * (t % 8)
    def rd(t):
        q.l(f"ds_read_b128 v[{R(t)}:{R(t)+3}], v7 offset:{64*t}", f"m{t}")
        q.l(f"ds_read_b128 v[{R(t)+4}:{R(t)+7}], v6 offset:{32*RS + 64*t}", f"m{t}")
    for t in range(7): rd(t)
    for t in range(16):
        q.e(f"{M16} v[8:11], v[{R(t)}:{R(t)+3}], v[{R(t)+4}:{R(t)+7}], {'0' if t == 0 else 'v[8:11]'}", need=(f"m{t}",))
        if t + 7 < 16: rd(t + 7)
    a.e("s_barrier")
    def fin():
        sc = f2u(512 ** -0.5 * math.log2(math.e))
        for i in range(4): a.e(f"v_mul_f32 v{8+i}, {sc}, v{8+i}")
        a.e("v_cvt_pk_bf16_f32 v8, v8, v9")
        a.e("v_cvt_pk_bf16_f32 v9, v10, v11")
        q.v("buffer_store_dwordx2 v[8:9], v3, s[12:15], s29 offen sc1", "St")
    return fin

def touches(a, q, L, opt):
    a.e("v_lshlrev_b32 v7, 7, v2")
    a.e("s_lshr_b32 s26, s2, 3")
    a.e("s_lshl_b32 s26, s26, 2")
    a.e("s_add_u32 s26, s26, s16")
    a.e("s_getpc_b64 s[28:29]")
    a.label(L("pc1"))
    a.e("s_lshl_b32 s30, s26, 9")
    a.e("v_lshl_add_u32 v12, v2, 3, s30")
    a.e(f"v_min_u32 v12, {L('end')} - {L('pc1')}, v12")
    q.v("global_load_dword v0, v12, s[28:29]")
    if opt.get("tw"):
        a.e("s_lshl_b32 s26, s26, 13")
        q.v("buffer_load_dword v0, v7, s[96:99], s26 offen")

def touch_aux(a, q):
    for w in range(1, 4):
        a.e(f"s_cmp_eq_u32 s16, {w}")
        a.e(f"s_cselect_b32 s52, s{52+2*w}, s52")
        a.e(f"s_cselect_b32 s53, s{53+2*w}, s53")
    a.e("s_lshl_b32 s28, s2, 6")
    a.e("v_add_lshl_u32 v14, s28, v2, 5")
    a.e("v_lshlrev_b32 v13, 1, v14")
    a.e("s_cmp_eq_u32 s16, 3")
    a.e("s_cselect_b64 vcc, -1, 0")
    a.e("v_cndmask_b32 v14, v14, v13, vcc")
    q.v("global_load_dword v0, v14, s[52:53]")

def gen_front(a, q, L, st, fs, mi, clear, opt):
    X = 16; F = 128
    if opt.get("skip"):
        v0 = q.v
        def v1(text, tag="_", need=()):
            if text.startswith("buffer_store_dwordx4") and tag[0] in opt["skip"]: return
            v0(text, tag, need)
        q.v = v1
    a.e("v_lshrrev_b32 v12, 3, v2")
    a.e("v_and_b32 v13, 7, v2")
    a.e("v_and_b32 v14, 2, v12")
    a.e("v_xor_b32 v14, v13, v14")
    a.e("v_lshlrev_b32 v14, 4, v14")
    WV = 80
    a.e(f"v_lshl_add_u32 v{WV}, v12, 11, v14")
    a.e(f"v_xor_b32 v{WV+1}, 64, v{WV}")
    a.e(f"v_add_u32 v{WV+1}, {16384-1024}, v{WV+1}")
    a.e(f"v_add_u32 v{WV+2}, {2*(16384-1024)}, v{WV}")
    a.e(f"v_add_u32 v{WV+3}, {2*(16384-1024)}, v{WV+1}")
    a.e("s_lshl_b32 s26, s22, 2")
    a.e("s_add_u32 s26, s26, s16")
    a.e("s_add_u32 s28, s26, s23")
    a.e("s_and_b32 s28, s28, 7")
    a.e("s_lshl_b32 s3, s26, 7")
    a.e("s_lshl_b32 s29, s28, 17")
    a.e("s_add_u32 s3, s3, s29")
    a.e("s_lshl_b32 s20, s26, 16")
    a.e("s_lshl_b32 s29, s28, 13")
    a.e("s_add_u32 s20, s20, s29")
    a.e(f"s_add_u32 s20, s20, {WS_MI}")
    a.e(f"s_mul_i32 s6, s16, {RING*4096}")
    a.e("v_and_b32 v4, 15, v2")
    a.e("v_lshrrev_b32 v5, 4, v2")
    widx = lambda k: k if k < 16 else k - 16
    def wdma(k, j):
        if j == 0:
            a.e(f"s_add_u32 m0, s6, {4096*(widx(k) % RING)}")
            a.e(f"s_xor_b32 s7, s3, {65536*(k % 16) + (1024 if k < 16 else 0)}")
        q.v(f"buffer_load_dwordx4 v{WV+j}, s[96:99], s7 offen offset:{1024*j} lds", f"W{k}")
    ringf = [lambda k=k, j=j: wdma(k, j) for k in range(RING) for j in range(4)]
    EM = opt.get("early", 0)
    early = list(mi) + [clear] + (ringf if EM == 0 else [])
    late = ringf if EM else []
    SW, SR, SG, QW = 84, 85, 86, 87
    a.e(f"s_mul_i32 s26, s16, {16*SS}")
    a.e(f"s_add_u32 s26, s26, {4*RING*4096}")
    a.e(f"v_mul_u32_u24 v{SR}, {SS}, v12")
    a.e(f"v_lshl_add_u32 v{SR}, v13, 4, v{SR}")
    a.e(f"v_add_u32 v{SR}, s26, v{SR}")
    a.e(f"v_lshlrev_b32 v{SG}, 9, v12")
    a.e(f"v_lshl_add_u32 v{SG}, v13, 4, v{SG}")
    a.e(f"v_mul_u32_u24 v{SW}, {SS}, v4")
    a.e(f"v_lshl_add_u32 v{SW}, v5, 3, v{SW}")
    a.e(f"v_add_u32 v{SW}, s26, v{SW}")
    a.e("s_lshl_b32 s26, s16, 14")
    a.e(f"s_add_u32 s26, s26, {LDS_XS}")
    a.e("s_lshl_b32 s28, s22, 13")
    a.e("s_add_u32 s28, s28, s26")
    a.e(f"v_add_u32 v{QW}, s28, v3")
    a.e("v_lshrrev_b32 v14, 2, v12")
    a.e("v_lshlrev_b32 v14, 1, v14")
    a.e("v_xor_b32 v14, v13, v14")
    a.e("v_and_b32 v14, 3, v14")
    a.e("v_lshlrev_b32 v14, 4, v14")
    a.e("v_lshl_add_u32 v14, v12, 6, v14")
    a.e("v_lshrrev_b32 v13, 2, v13")
    a.e("v_lshl_add_u32 v14, v13, 10, v14")
    a.e("v_add_u32 v12, s28, v14")
    a.e("v_xor_b32 v15, 0x2000, v12")
    a.e("s_mov_b32 s101, 0xffff0000")
    if EM == 2:
        while early: early.pop(0)()
    A0 = 96
    def reduce8(r):
        a.e(f"v_pk_add_f32 v[{r}:{r+1}], v[{r}:{r+1}], v[{r+2}:{r+3}]")
        a.e(f"v_add_f32 v{r}, v{r}, v{r+1}")
        for d in ("quad_perm:[1,0,3,2]", "quad_perm:[2,3,0,1]", "row_half_mirror"):
            a.e("s_nop 1")
            a.e(f"v_add_f32_dpp v{r}, v{r}, v{r} {d} row_mask:0xf bank_mask:0xf")
    for h in range(2):
        for i in range(8):
            s = 8 * h + i
            q.wait(f"x{s}")
            if s == 0: fs(1)
            if early: early.pop(0)()
            for j in range(4):
                x = X + 4 * s + j; f = F + 8 * s + 2 * j
                a.e(f"v_lshlrev_b32 v{f}, 16, v{x}")
                a.e(f"v_and_b32 v{f+1}, s101, v{x}")
            for j in range(4):
                f = F + 8 * s + 2 * j; acc = A0 + 2 * (j % 2)
                if i == 0 and j < 2:
                    a.e(f"v_pk_add_f32 v[{acc}:{acc+1}], v[{f}:{f+1}], 0")
                else:
                    a.e(f"v_pk_add_f32 v[{acc}:{acc+1}], v[{acc}:{acc+1}], v[{f}:{f+1}]")
        if h == 1: fs(2)
        reduce8(A0)
        a.e(f"v_mul_f32 v{A0+4}, {f2u(-1.0/512)}, v{A0}")
        for k in range(33):
            f = F + 64 * h + 2 * k
            if k < 32:
                a.e(f"v_pk_add_f32 v[{f}:{f+1}], v[{f}:{f+1}], v[{A0+4}:{A0+5}] op_sel_hi:[1,0]")
            if k % 3 == 0 and early: early.pop(0)()
            if k >= 1:
                f -= 2; acc = A0 + 2 * ((k - 1) % 2)
                a.e(f"v_pk_mul_f32 v[{acc}:{acc+1}], v[{f}:{f+1}], v[{f}:{f+1}]" if k < 3 else
                    f"v_pk_fma_f32 v[{acc}:{acc+1}], v[{f}:{f+1}], v[{f}:{f+1}], v[{acc}:{acc+1}]")
        reduce8(A0)
        a.e(f"v_mov_b32 v{A0+1}, {f2u(1e-5)}")
        a.e(f"v_fmac_f32 v{A0+1}, {f2u(1.0/512)}, v{A0}")
        a.e(f"v_rsq_f32 v{A0+6+2*h}, v{A0+1}")
    assert not early
    fs(3)
    mfin = m_tile(a, q)
    fs(4)
    srd_off(a, 8, 4, "s24", 4096000)
    a.e("s_nop 2")
    mfin()
    ZR, YO = 88, 90
    a.e("v_lshrrev_b32 v13, 1, v4")
    a.e("v_and_b32 v13, 2, v13")
    a.e("v_xor_b32 v13, v5, v13")
    a.e("v_lshlrev_b32 v13, 4, v13")
    a.e(f"v_lshl_add_u32 v{ZR}, v4, 6, v13")
    a.e("v_and_b32 v13, 0x27, v2")
    a.e("v_and_b32 v14, 8, v2")
    a.e("v_lshl_add_u32 v13, v14, 1, v13")
    a.e("v_and_b32 v14, 16, v2")
    a.e("v_lshrrev_b32 v14, 1, v14")
    a.e(f"v_add_lshl_u32 v{YO}, v13, v14, 4")
    def touch_u():
        a.e("s_lshr_b32 s26, s2, 3")
        a.e("s_lshl_b32 s26, s26, 2")
        a.e("s_add_u32 s26, s26, s16")
        a.e("s_lshl_b32 s26, s26, 13")
        a.e("v_lshlrev_b32 v14, 6, v4")
        a.e("v_lshl_add_u32 v14, v5, 11, v14")
        q.v("buffer_load_dword v0, v14, s[96:99], s26 offen")
    for n, s in enumerate([0, 8, 1, 9, 2, 10, 3, 11, 4, 12, 5, 13, 6, 14, 7, 15]):
        h, i = s // 8, s % 8
        for j in range(4):
            f = F + 8 * s + 2 * j
            a.e(f"v_pk_mul_f32 v[{f}:{f+1}], v[{f}:{f+1}], v[{A0+6+2*h}:{A0+7+2*h}] op_sel_hi:[1,0]")
        for j in range(4):
            f = F + 8 * s + 2 * j
            a.e(f"v_cvt_pk_bf16_f32 v{X+4*s+j}, v{f}, v{f+1}")
        q.l(f"ds_write_b128 {'v12' if i < 4 else 'v15'}, v[{X+4*s}:{X+4*s+3}] offset:{2048*(i%4) + 512*h}", "xw")
        for _ in range(2):
            if late: late.pop(0)()
        if n == 0 and opt.get('ta', 1): touch_aux(a, q)
        if n == 1 and not opt.get("tw"): touch_u()
    XR_, TR = 88, 92
    a.e("s_lshr_b32 s26, s3, 17")
    a.e("s_lshl_b32 s26, s26, 11")
    a.e("s_add_u32 s19, s26, s27")
    a.e(f"s_add_u32 s26, s26, {LDS_XS}")
    a.e(f"v_add_u32 v{XR_}, s26, v{ZR}")
    a.e("v_lshrrev_b32 v12, 2, v4")
    a.e("v_lshl_add_u32 v12, v5, 3, v12")
    a.e("v_lshlrev_b32 v12, 7, v12")
    a.e("v_and_b32 v13, 3, v2")
    a.e("v_lshl_add_u32 v12, v13, 3, v12")
    a.e("v_and_b32 v14, 24, v2")
    a.e("v_lshl_add_u32 v12, v14, 2, v12")
    a.e(f"v_add_u32 v{TR}, s6, v12")
    for nb in range(1, 4):
        a.e(f"v_xor_b32 v{TR+nb}, {32*nb}, v{TR}")
    q.wait("xw", "St")
    a.e("s_barrier")
    st(1)
    AR = [16 + 16 * i for i in range(4)] + [96]
    ACC = [128, 192, 128]
    T = 112
    NQ = 5
    def areg(k): return AR[(k - 16 + 2) % NQ] if 16 <= k < 32 else AR[k % 2] if k < 16 else AR[3 + k % 2]
    def bread(s, tb):
        r = 64 * tb + 4 * s
        if tb == 0 and s % 2 == 0: a.e(f"v_xor_b32 v{XR_+1}, {1024*s}, v{XR_}")
        q.l(f"ds_read_b128 a[{r}:{r+3}], v{XR_+1} offset:{16384*tb + 1024*(s%2)}", f"B{s}")
    def tread(k, i):
        nb, h = i // 2, i % 2
        r = areg(k) + 4 * nb + 2 * h
        q.l(f"ds_read_b64_tr_b16 v[{r}:{r+1}], v{TR+nb} offset:{4096*(widx(k) % RING) + 512*h}", f"A{k}", need=(f"W{k}",))
    def mload(k, nb):
        if nb == 0: a.e(f"s_xor_b32 s42, s20, {4096*(k-16)}")
        r = areg(k) + 4 * nb
        q.v(f"buffer_load_dwordx4 v[{r}:{r+3}], v3, s[12:15], s42 offen offset:{1024*nb} sc1", f"A{k}")
    for tb in range(4): bread(0, tb)
    for i in range(8): tread(0, i)
    signal(a, L, "sig1", 0, 0)
    for tb in range(4): bread(1, tb)
    c1 = -2 * math.sqrt(2 / math.pi) * math.log2(math.e)
    a.e(f"s_mov_b32 s100, {f2u(c1 * 0.044715)}")
    a.e(f"s_mov_b32 s101, {f2u(c1)}")
    a.e(f"v_mov_b32 v1, s101")
    a.e("v_mov_b32 v11, 0")
    a.e("v_lshlrev_b32 v13, 6, v13")
    a.e("s_cmp_eq_u32 s16, 1")
    a.e("s_cselect_b32 s26, 0, 0x1000")
    a.e("v_add_u32 v13, s26, v13")
    fixed = {}
    def at(k, g, fn): fixed.setdefault((k, g), []).append(fn)
    for k in range(48):
        if k + 1 < 16 or 32 <= k + 1 < 48:
            for i in range(8): at(k, i, lambda k=k, i=i: tread(k + 1, i))
        if k + 2 < 16:
            for tb in range(4): at(k, 8 + 2 * tb, lambda k=k, tb=tb: bread(k + 2, tb))
    for kk in list(range(RING, 16)) + list(range(32, 48)):
        k = 11 if kk == 32 else kk - RING
        for j in range(4): at(k, 9 + 2 * j, lambda kk=kk, j=j: wdma(kk, j))
    for kk in range(16, 32):
        k = kk - NQ + 1
        for nb in range(4): at(k, (9 + 2 * nb) if k < 16 else (1 + 4 * nb), lambda kk=kk, nb=nb: mload(kk, nb))
    side = {p: [] for p in range(3)}
    def S(p, x, cost=1): side[p].append((x if callable(x) else (lambda x=x: a.e(x)), 2 if (isinstance(x, str) and x.split()[0] in ("v_exp_f32", "v_rcp_f32")) else cost))
    def setup0():
        a.e("s_lshl_b32 s18, s31, 16")
        a.e("s_lshl_b32 s26, s16, 7")
        a.e("s_add_u32 s18, s18, s26")
        a.e(f"s_add_u32 s18, s18, {WS_GU}")
        a.e("s_lshl_b32 s40, s31, 2")
        a.e("s_add_u32 s40, s40, s16")
        a.e("s_lshl_b32 s40, s40, 13")
        a.e(f"s_add_u32 s40, s40, {WS_QP}")
        a.e("s_lshl_b32 s41, s31, 5")
        a.e("s_add_u32 s41, s41, s16")
        a.e("s_lshl_b32 s41, s41, 2")
        a.e(f"s_add_u32 s41, s41, {WS_FL + 16}")
    setup0()
    def pub(i):
        tb, sl = i // 2, i % 2
        q.v(f"buffer_store_dwordx4 a[{64*tb+4*sl}:{64*tb+4*sl+3}], v{YO}, s[8:11], s19 offen offset:{1024*sl} sc1", "Xst", need=(f"B{sl}",))
        if sl: a.e("s_add_u32 s19, s19, 16384")
    PUB = opt.get("pub", [(13 + 2 * i, 3 if i > 1 else 8) for i in range(8)])
    for i in range(8): at(*PUB[i], lambda i=i: pub(i))
    KP = opt.get("kp", 8)
    at(KP, 8, lambda: q.v(cnt_load(0), "c1"))
    def chk(name, off):
        q.wait(name)
        a.e("s_cmp_lg_u32 s16, 1")
        a.e(f"s_cbranch_scc1 {L(name + '_ok')}")
        poll(a, q, L, name, [cnt_load(off)], CNT_OK, name, slp=8)
        a.e("s_barrier")
    def chk1():
        chk("c1", 0)
        a.e("s_lshr_b32 s26, s2, 3")
        a.e("s_lshl_b32 s26, s26, 2")
        a.e("s_add_u32 s26, s26, s16")
        a.e("s_lshl_b32 s26, s26, 12")
        a.e(f"s_add_u32 s26, s26, {WS_MI}")
        a.e("v_lshlrev_b32 v14, 6, v2")
        q.v("buffer_load_dword v0, v14, s[12:15], s26 offen sc1")
    at(KP + 3, 8, chk1)
    def sig2():
        q.wait("Xst")
        a.e("s_barrier")
        signal(a, L, "sig2", 0, 8)
    at(opt.get("k2", 31), 8, sig2)
    if opt.get("k2", 31) > 31: at(17, 0, lambda: a.e("s_barrier"))
    def gelu(E0, E1, nb0, acc, kind):
        off = 0 if kind == "g" else 32768
        for tb in range(4):
            for h in range(2):
                pk = 2 * tb + h >= nb0
                E = E1 if pk else E0
                src = [acc + 16 * (2 * h + ee) + 4 * tb + j for ee in range(2) for j in range(4)]
                P = lambda r: f"v[{r}:{r+1}]"
                if pk:
                    for i in range(0, 8, 2): E(f"v_pk_mul_f32 {P(T+i)}, {P(src[i])}, {P(src[i])}")
                    for i in range(0, 8, 2): E(f"v_pk_fma_f32 {P(T+i)}, {P(T+i)}, s[100:101], s[100:101] op_sel:[0,0,1] op_sel_hi:[1,0,1]")
                    for i in range(0, 8, 2): E(f"v_pk_mul_f32 {P(T+i)}, {P(T+i)}, {P(src[i])}")
                    for i in range(8): E(f"v_exp_f32 v{T+i}, v{T+i}")
                    for i in range(0, 8, 2): E(f"v_pk_add_f32 {P(T+i)}, {P(T+i)}, 1.0 op_sel_hi:[1,0]")
                    for i in range(8): E(f"v_rcp_f32 v{T+i}, v{T+i}")
                    for i in range(0, 8, 2): E(f"v_pk_mul_f32 {P(src[i])}, {P(T+i)}, {P(src[i])}")
                else:
                    for i, x in enumerate(src): E(f"v_mul_f32 v{T+i}, v{x}, v{x}")
                    for i, x in enumerate(src): E(f"v_fma_f32 v{T+i}, v{T+i}, s100, v1")
                    for i, x in enumerate(src): E(f"v_mul_f32 v{T+i}, v{T+i}, v{x}")
                    for i, x in enumerate(src): E(f"v_exp_f32 v{T+i}, v{T+i}")
                    for i, x in enumerate(src): E(f"v_add_f32 v{T+i}, 1.0, v{T+i}")
                    for i, x in enumerate(src): E(f"v_rcp_f32 v{T+i}, v{T+i}")
                    for i, x in enumerate(src): E(f"v_mul_f32 v{x}, v{T+i}, v{x}")
                pr = T + 8 + 4 * h
                for j in range(4): E(f"v_cvt_pk_bf16_f32 v{pr+j}, v{src[2*j]}, v{src[2*j+1]}")
                for ee in range(2):
                    E(lambda ee=ee, pr=pr, tb=tb, h=h: q.l(f"ds_write_b64 v{SW}, v[{pr+2*ee}:{pr+2*ee+1}] offset:{32*(2*h+ee)}"))
                if kind == "g":
                    s0, s1 = acc + 4 * tb, acc + 4 * tb + 1
                    if pk:
                        E(f"v_pk_mul_f32 {P(T)}, {P(src[0])}, {P(src[0])}")
                        E(f"v_pk_add_f32 {P(T+2)}, {P(src[0])}, {P(src[2])}")
                        for i in (2, 4, 6):
                            E(f"v_pk_fma_f32 {P(T)}, {P(src[i])}, {P(src[i])}, {P(T)}")
                            if i > 2: E(f"v_pk_add_f32 {P(T+2)}, {P(T+2)}, {P(src[i])}")
                        if h == 0:
                            E(f"v_add_f32 v{s0}, v{T+2}, v{T+3}")
                            E(f"v_add_f32 v{s1}, v{T}, v{T+1}")
                        else:
                            E(f"v_add_f32 v{T+2}, v{T+2}, v{T+3}")
                            E(f"v_add_f32 v{T+3}, v{T}, v{T+1}")
                            E(f"v_pk_add_f32 {P(s0)}, {P(s0)}, {P(T+2)}")
                    elif h == 0:
                        E(f"v_mul_f32 v{T}, v{src[0]}, v{src[0]}")
                        for x in src[1:]: E(f"v_fmac_f32 v{T}, v{x}, v{x}")
                        for x in src[1:]: E(f"v_add_f32 v{s0}, v{s0}, v{x}")
                        E(f"v_mov_b32 v{s1}, v{T}")
                    else:
                        for x in src:
                            E(f"v_add_f32 v{s0}, v{s0}, v{x}")
                            E(f"v_fmac_f32 v{s1}, v{x}, v{x}")
                if tb >= 1: store(E, acc, kind, 2 * (tb - 1) + h, off)
            for i in (2 * tb, 2 * tb + 1):
                r = acc + 32 + 16 * (i % 2) + 4 * tb
                E(lambda i=i, r=r: q.l(f"ds_read_b128 v[{r}:{r+3}], v{SR} offset:{8*SS*(i%2)}", f"sr{kind}{i}"))
        if kind == "g":
            for k in range(2):
                E(f"v_permlane16_swap_b32 v{acc+k}, v{acc+4+k}")
                E(f"v_permlane16_swap_b32 v{acc+8+k}, v{acc+12+k}")
            E("s_lshl_b32 s26, s22, 2")
            for k in range(2):
                E(f"v_add_f32 v{acc+k}, v{acc+k}, v{acc+4+k}")
                E(f"v_add_f32 v{acc+8+k}, v{acc+8+k}, v{acc+12+k}")
            E("s_add_u32 s26, s26, s16")
            E("s_lshl_b32 s26, s26, 16")
            for k in range(2): E(f"v_permlane32_swap_b32 v{acc+k}, v{acc+8+k}")
            E("s_lshr_b32 s28, s31, 1")
            E("s_lshl_b32 s28, s28, 9")
            for k in range(2): E(f"v_add_f32 v{T+k}, v{acc+k}, v{acc+8+k}")
            E("s_add_u32 s26, s26, s28")
            E(f"s_add_u32 s26, s26, {WS_ST}")
            E(f"v_lshlrev_b32 v{T+2}, 3, v2")
            E(lambda: q.v(f"buffer_store_dwordx2 v[{T}:{T+1}], v{T+2}, s[12:15], s26 offen sc1", "St"))
        store(E, acc, kind, 6, off); store(E, acc, kind, 7, off)
    def store(E, acc, kind, i, off):
        r = acc + 32 + 16 * (i % 2) + 4 * (i // 2)
        def f():
            a.e(f"s_add_u32 s29, s18, {off + 4096*i}")
            q.v(f"buffer_store_dwordx4 v[{r}:{r+3}], v{SG}, s[12:15], s29 offen{' sc1' if kind == 'g' and i in (0, 7) else ''}", "St", need=(f"sr{kind}{i}",))
        E(f)
    post1 = []
    for i in range(8):
        tb, half = i // 2, i % 2
        src = [ACC[1] + 16 * (2 * half + ee) + 4 * tb + j for ee in range(2) for j in range(4)]
        pr = src[0]
        for j in range(4): post1.append(f"v_cvt_pk_bf16_f32 v{pr+j}, v{src[2*j]}, v{src[2*j+1]}")
        def qs(i=i, pr=pr):
            if i == 4: a.e("s_add_u32 s40, s40, 4096")
            q.v(f"buffer_store_dwordx4 v[{pr}:{pr+3}], v3, s[12:15], s40 offen offset:{1024*(i%4)} sc1", "Qst")
            q.l(f"ds_write_b128 v{QW}, v[{pr}:{pr+3}] offset:{1024*i}", "qw")
        post1.append(qs)
    gelu(lambda x: S(1, x), post1.append, opt.get("nb", 4), ACC[0], "g")
    def qflag():
        a.e("v_mov_b32 v12, 1")
        q.v("buffer_store_dword v12, v11, s[12:15], s41 offen sc1", need=("Qst",))
        a.e("s_xor_b32 s41, s41, 128")
    if opt.get("kq"): at(opt["kq"], 8, qflag)
    else: post1.append(qflag)
    at(opt.get("kc2", 43), 8, lambda: q.v(cnt_load(8), "c2"))
    qfl = "buffer_load_dword v15, v11, s[12:15], s41 offen sc1"
    KG = opt.get("kg", 45)
    at(43, 0, lambda: q.v(qfl, "qf"))
    def getq():
        poll(a, q, L, "q", [qfl], ["v_readfirstlane_b32 s26, v15", "s_cmp_eq_u32 s26, 1"], "qf", slp=4)
        a.e("s_xor_b32 s26, s22, 1")
        a.e("s_lshl_b32 s26, s26, 13")
        a.e("s_lshl_b32 s28, s16, 14")
        a.e("s_add_u32 s17, s26, s28")
        a.e("s_xor_b32 s40, s40, 0x9000")
    at(KG, 8, getq)
    for i in range(8):
        def qd(i=i):
            if i % 4 == 0:
                a.e(f"s_add_u32 m0, s17, {LDS_XS + 1024*i}")
                a.e("s_add_u32 s40, s40, 4096" if i else "s_nop 0")
            q.v(f"buffer_load_dwordx4 v3, s[12:15], s40 offen offset:{1024*(i%4)} sc1 lds", "qd")
        at(KG + i // 4, 9 + 2 * (i % 4), qd)
    def setup2():
        a.e("s_mul_i32 s28, s22, 2031616")
        a.e("s_add_u32 s28, s28, s24")
        a.e("s_lshl_b32 s26, s25, 15")
        srd_off(a, 8, 4, "s28", "s26")
        a.e("s_lshl_b32 s19, s16, 13")
    at(44, 9, setup2)
    for p in range(3):
        gaps = [(k, g) for k in range(16 * p, 16 * p + 16) for g in range(16)]
        lead = 10
        tailg = 4
        cap = [0 if (n < lead or n >= len(gaps) - tailg) else max(0, 2 - len(fixed.get(x, []))) for n, x in enumerate(gaps)]
        C = sum(c for _, c in side[p]); tot = sum(cap)
        scale = min(1.0, C / tot)
        extra = max(0.0, (C - tot) / (len(gaps) - lead - tailg))
        budget = 0.0; used = 0
        ops = list(side[p])
        fs(5 + p)
        for n, (k, g) in enumerate(gaps):
            if g == 0:
                if k in opt.get("fk", []): Fine(a, True)(opt["fk"].index(k))
                q.wait(f"A{k}", f"B{k}")
            nb, tb = g // 4, g % 4
            d = ACC[p] + 16 * nb + 4 * tb; r = areg(k) + 4 * nb; b = 64 * tb + 4 * (k % 16)
            c = "0" if k % 16 == 0 else f"v[{d}:{d+3}]"
            a.e(f"{M16} v[{d}:{d+3}], v[{r}:{r+3}], a[{b}:{b+3}], {c}")
            for fn in fixed.pop((k, g), []): fn()
            if lead <= n < len(gaps) - tailg:
                budget += cap[n] * scale + extra
            while ops and (used + ops[0][1] <= budget + 1e-6 or n == len(gaps) - tailg):
                fn, cst = ops.pop(0); fn(); used += cst
        assert not ops
        if p == 1:
            fs(12)
            a.e("s_nop 3")
            for x in post1: x() if callable(x) else a.e(x)
    assert not fixed, fixed.keys()
    fs(8)
    chk("c2", 8)
    def kv(t):
        for i in range(8):
            if i % 4 == 0:
                a.e(f"s_add_u32 m0, s19, {32768*t + 1024*i}")
                a.e(f"s_add_u32 s29, s19, {32768*t + 1024*i}")
            q.v(f"buffer_load_dwordx4 v3, s[8:11], s29 offen offset:{1024*(i%4)} sc1 lds", f"kv{t}")
    kv(0)
    ops = []
    gelu(None, ops.append, 0, ACC[2], "u")
    def qbar():
        q.wait("qd", "qw")
        a.e("s_barrier")
        a.e(f"v_add_u32 v7, {LDS_XS}, v3")
    QB = opt.get("qb", 84)
    nq = 0
    for n, x in enumerate(ops):
        if n == opt.get("gk", 42): kv(1)
        if n == opt.get("gx", -1):
            a.e("s_lshl_b32 s26, s22, 2")
            a.e("s_add_u32 s26, s26, s16")
            a.e("s_lshl_b32 s26, s26, 13")
            a.e("s_add_u32 s26, s26, s27")
            a.e("v_lshlrev_b32 v14, 7, v2")
            q.v("buffer_load_dword v0, v14, s[32:35], s26 offen")
        if n == QB and opt.get('qe'): qbar()
        x() if callable(x) else a.e(x)
        if opt.get('qe') and n >= QB and nq < 64 and (n - QB) % 3 == 0:
            qb, s = nq // 16, nq % 16; nq += 1
            q.l(f"ds_read_b128 a[{64*qb+4*s}:{64*qb+4*s+3}], v7 offset:{16384*((s%8)//2) + 8192*(s//8) + 2048*qb + 1024*(s%2)}")
    fs(9)
    q.wait("kv0", "qd")
    q.all(vm=False)
    a.e("s_barrier")
```

```python
import sys
sys.path.insert(0, "gen")
from asmlib import *
from attn2 import gen_attn
KNAME = "standalone__conformer_family_branchformer__speech_kernel"

def build(path, stamp=0, opt=None):
    a = Asm()
    a('.amdgcn_target "amdgcn-amd-amdhsa--gfx950"')
    l = gen_attn(a, KNAME, stamp=stamp, opt=opt)
    t = a.text().replace(KNAME + "_", "L_")
    open(path, "w").write(l + "\n" + t)

if __name__ == "__main__":
    build("v3.s")
    build("v3_st.s", stamp=1)
    build("v3_fs.s", stamp=2)
    build("v3f_fs.s", stamp=3)
    build("b_fs.s", stamp=3, opt=dict(omod="nt"))
    build("c_fs.s", stamp=3, opt=dict(omod="sc1"))
```

```python
import sys
sys.path.insert(0, "gen")
from asmlib import *
from layout import *
from conv import Conv
from aux import gen_aux
from front import *

RS = 1056
LDS_P = 131072
LDS_MX = 139264
LDS_FG = LDS_MX + 512
LDS_ML = LDS_MX + 1024
LDS_HALO = LDS_ML + 1024
LDS_TAP = LDS_HALO + 2048
LDS_STT = LDS_TAP + 3072
LDS_ATT = 163840
ES = 272
NA = 12
BIG = 2.0 ** 100
SPIN = 200000
FK = [0, 24, 32, 36, 40, 42, 46]

def emit_interval(a, mfmas, fill):
    for i, m in enumerate(mfmas):
        if m is not None:
            a.e(m)
        for f in fill.get(i, []):
            a.e(f)

def conv_addr(a, NR, row0):
    a.e("v_lshrrev_b32 v12, 5, v2")
    a.e(f"v_mul_u32_u24 v12, {NR}, v12")
    a.e(f"v_add_u32 v12, {row0}, v12")
    a.e("v_and_b32 v13, 31, v2")
    a.e("v_lshlrev_b32 v13, 4, v13")
    a.e("v_lshl_add_u32 v14, v12, 9, v13")
    a.e("s_and_b32 s26, s25, 3")
    a.e("s_lshl_b32 s26, s26, 15")
    a.e("v_add_u32 v4, s26, v14")
    a.e("v_add_u32 v7, s49, v14")
    a.e("v_and_b32 v14, 4, v12")
    a.e("v_lshlrev_b32 v14, 5, v14")
    a.e("v_xor_b32 v8, v7, v14")
    a.e(f"v_add_u32 v10, {LDS_TAP}, v13")
    a.e(f"v_add_u32 v13, {LDS_HALO}, v13")
    a.e("v_cmp_eq_u32 vcc, 0, v12")
    a.e("v_subrev_u32 v5, 1024, v4")
    a.e(f"v_add_u32 v6, {512*NR}, v4")
    a.e("v_cndmask_b32 v5, v5, v13, vcc")
    a.e(f"v_cmp_eq_u32 vcc, {64-NR}, v12")
    a.e("v_add_u32 v13, 1024, v13")
    a.e("v_lshlrev_b32 v9, 3, v12")
    a.e("v_cndmask_b32 v6, v6, v13, vcc")
    a.e(f"v_add_u32 v9, {LDS_STT}, v9")

def gen_tail(a, L, st, fs, opt):
    q = Seq(a)
    q.vm = [f"A{k}" for k in range(NA) for _ in range(4)]
    BF = [32, 48]; YR = 64; XR = 96; MR = 16; AL = 24
    acc = lambda k: 128 if k < 24 else 192
    isz = lambda k: k % 24 >= 16
    def bread(k, tb):
        s = k % 24
        r = BF[k % 2] + 4 * tb
        if not isz(k):
            return f"ds_read_b128 v[{r}:{r+3}], v6 offset:{16384*tb + 1024*s}"
        s -= 16
        return f"ds_read_b128 v[{r}:{r+3}], v{28 + s % 4} offset:{8192*tb + 256*(s//4)}"
    a.e("v_add_u32 v6, s48, v3")
    a.e("s_waitcnt lgkmcnt(0)")
    fs(5)
    a.e("s_barrier")
    for tb in range(4): q.l(bread(0, tb), "B0")
    a.e("v_and_b32 v4, 15, v2")
    a.e("v_lshrrev_b32 v5, 4, v2")
    a.e("v_lshlrev_b32 v10, 3, v2")
    a.e("v_mov_b32 v11, 0")
    a.e("v_mov_b32 v12, 1")
    side = {}
    def at(k, g, fn): side.setdefault((k + g // 16, g % 16), []).append(fn)
    def spread(k, g, ops, per=2, skip=lambda g: False):
        n = 16 * k + g
        ops = list(ops)
        while ops:
            if not skip(n % 16):
                for _ in range(per):
                    if ops:
                        o = ops.pop(0)
                        at(n // 16, n % 16, o if callable(o) else (lambda o=o: a.e(o)))
            n += 1
    lo8 = lambda g: g < 8
    spread(0, 8, ["v_and_b32 v13, 7, v4", "v_lshlrev_b32 v13, 1, v13", "v_xor_b32 v13, v13, v5", "v_lshlrev_b32 v13, 4, v13",
                  "v_lshl_add_u32 v13, v4, 9, v13", "v_add_u32 v28, s49, v13", "v_xor_b32 v29, 64, v28", "v_xor_b32 v30, 128, v28",
                  "v_xor_b32 v31, 192, v28",
                  f"s_mul_i32 s26, s16, {64*ES}", "s_add_u32 s26, s26, s48",
                  f"v_mul_u32_u24 v7, {ES}, v4", "v_lshl_add_u32 v7, v5, 4, v7", "v_add_u32 v7, s26, v7",
                  "v_lshrrev_b32 v13, 3, v2", "v_and_b32 v14, 7, v2", f"v_mul_u32_u24 v8, {ES}, v13",
                  "v_lshl_add_u32 v8, v14, 5, v8", "v_add_u32 v8, s26, v8", "v_lshlrev_b32 v9, 4, v14",
                  "v_lshl_add_u32 v9, v13, 10, v9", f"v_add_u32 v13, {LDS_ML}, v10", "v_lshlrev_b32 v4, 2, v4",
                  "s_xor_b32 s26, s31, 1", "s_lshl_b32 s26, s26, 10", f"s_add_u32 s28, s26, {WS_MX}"], skip=lo8)
    mll = [f"buffer_load_dwordx2 v[{MR+2*w}:{MR+2*w+1}], v10, s[12:15], s28 offen offset:{512*w} sc1" for w in range(2)]
    for w in range(2):
        at(3, 9 + 2 * w, lambda w=w: q.v(mll[w], "ML"))
        at(3, 10 + 2 * w, lambda w=w: q.l(f"ds_read_b64 v[{MR+4+2*w}:{MR+5+2*w}], v13 offset:{512*w}", "MLo"))
    at(9, 8, lambda: poll(a, q, L, "ml", mll, [f"v_and_b32 v14, v{MR+1}, v{MR+3}", "v_cmp_gt_i32 vcc, 0, v14", "s_nop 1", "s_cmp_eq_u64 vcc, -1"], "ML"))
    at(9, 8, lambda: q.wait("MLo"))
    spread(9, 9, [f"v_add_f32 v{MR+1}, v{MR+1}, v{MR+3}", f"v_add_f32 v{MR+5}, v{MR+5}, v{MR+7}",
                  f"v_min_f32 v14, v{MR}, v{MR+4}", f"v_sub_f32 v{MR}, v14, v{MR}", f"v_sub_f32 v{MR+4}, v14, v{MR+4}",
                  f"v_exp_f32 v{MR}, v{MR}", f"v_exp_f32 v{MR+4}, v{MR+4}", f"v_mul_f32 v{MR+1}, v{MR+1}, v{MR}",
                  f"v_fmac_f32 v{MR+1}, v{MR+5}, v{MR+4}", f"v_rcp_f32 v{MR+1}, v{MR+1}", "s_nop 0",
                  f"v_mul_f32 v14, v{MR+4}, v{MR+1}", "v_sub_f32 v14, 0, v14"] +
                 [lambda tb=tb: q.l(f"ds_bpermute_b32 v{AL+tb}, v4, v14 offset:{64*tb}", "AL") for tb in range(4)], per=1, skip=lo8)
    for k0 in (15, 39):
        at(k0, 5, lambda: q.wait("AL"))
        for i in range(16):
            for j in range(4):
                r = acc(k0) + 4 * i + j
                at(k0, i + 6, lambda r=r, i=i: a.e(f"v_mul_f32 v{r}, v{r}, v{AL + i % 4}"))
    for i in range(8):
        tb, h = i % 4, i // 4
        k, g0 = (24 + i // 2, 8 + 4 * (i % 2)) if opt.get('y2') else (24 + i, 8)
        src = [128 + 16 * (2 * h + ee) + 4 * tb + j for ee in range(2) for j in range(4)]
        for j in range(4):
            at(k, g0 + j // 2, lambda j=j, i=i, src=src: a.e(f"v_cvt_pk_bf16_f32 v{YR+4*i+j}, v{src[2*j]}, v{src[2*j+1]}"))
        at(k, g0 + 2, lambda i=i: q.v(f"buffer_store_dwordx4 v[{YR+4*i}:{YR+4*i+3}], v3, s[12:15], s{54 + i//4} offen offset:{1024*(i%4)} sc1", "Yst"))
    KF, KL, KC, KX, KU = opt.get('k', (34, 37, 40, 37, 46))
    at(KF, 9, lambda: q.v("buffer_store_dword v12, v11, s[12:15], s56 offen sc1", need=("Yst",)))
    yl = "buffer_load_dword v14, v11, s[12:15], s57 offen sc1"
    at(KL, 9, lambda: q.v(yl, "yf"))
    for i in range(8):
        def xl(i=i):
            a.e(f"s_add_u32 s26, s58, {8192*i}")
            q.v(f"buffer_load_dwordx4 v[{XR+4*i}:{XR+4*i+3}], v9, s[32:35], s26 offen", f"X{i}")
        at(KX, 1 + 4 * i, xl)
    def gety():
        poll(a, q, L, "y", [yl], ["v_readfirstlane_b32 s26, v14", "s_cmp_eq_u32 s26, 1"], "yf")
        a.e("s_xor_b32 s54, s54, 0x8000")
        a.e("s_xor_b32 s55, s55, 0x8000")
        a.e("s_mov_b32 s43, 0xffff0000")
    at(KC, 7, gety)
    for i in range(8):
        at(KC, 9 + 2 * i, lambda i=i: q.v(f"buffer_load_dwordx4 v[{YR+4*i}:{YR+4*i+3}], v3, s[12:15], s{54 + i//4} offen offset:{1024*(i%4)} sc1", f"Y{i}"))
    ops = []
    for i in range(8):
        tb, h = i % 4, i // 4
        for j in range(4):
            o = 128 + 16 * (2 * h + j // 2) + 4 * tb + 2 * (j % 2)
            ops.append(lambda o=o, i=i, j=j: q.e(f"v_lshlrev_b32 v{o}, 16, v{YR+4*i+j}", need=(f"Y{i}",)))
            ops.append(f"v_and_b32 v{o+1}, s43, v{YR+4*i+j}")
    spread(KU, 1, ops, per=(2 if KU < 46 else 3), skip=lambda g: g < 8 and g % 2 == 0)
    for k in range(48):
        if k == 41: a.e("s_barrier")
        if k == 0: st(5)
        if k in FK: fs(6 + FK.index(k))
        q.wait(f"A{k}", f"B{k}")
        g = 0
        for nb in range(4):
            for tb in range(4):
                d = acc(k) + 16 * nb + 4 * tb; r = areg(k, nb); b = BF[k % 2] + 4 * tb
                c = "0" if k % 24 == 0 else f"v[{d}:{d+3}]"
                a.e(f"{M16} v[{d}:{d+3}], a[{r}:{r+3}], v[{b}:{b+3}], {c}")
                if g < 8 and g % 2 == 0 and k + 1 < 48:
                    q.l(bread(k + 1, g // 2), f"B{k+1}")
                if k >= 1 and k - 1 + NA < 48 and g < 8 and g % 2 == 1:
                    aload(a, q, k - 1 + NA, g // 2)
                for fn in side.pop((k, g), []): fn()
                g += 1
    assert not side, side.keys()
    st(6); fs(13)
    for nb in range(4):
        for tb in range(4):
            d = 192 + 16 * nb + 4 * tb; y = d - 64
            for j in (0, 2):
                a.e(f"v_pk_add_f32 v[{d+j}:{d+j+1}], v[{d+j}:{d+j+1}], v[{y+j}:{y+j+1}]")
            q.l(f"ds_write_b128 v7, v[{d}:{d+3}] offset:{16*ES*tb + 64*nb}", "Ew")
    XF = 32
    for i in range(8):
        q.wait(f"X{i}")
        for k in range(4):
            a.e(f"v_lshlrev_b32 v{XF+8*i+2*k}, 16, v{XR+4*i+k}")
            a.e(f"v_and_b32 v{XF+8*i+2*k+1}, s43, v{XR+4*i+k}")
        if i == 1:
            q.wait("Ew")
            fs(14)
        if i >= 1:
            for ii in ([0, 1] if i == 1 else [i]):
                for h in range(2):
                    r = 128 + 8 * ii + 4 * h
                    q.l(f"ds_read_b128 v[{r}:{r+3}], v8 offset:{8*ES*ii + 16*h}", f"E{ii}")
    for i in range(8):
        q.wait(f"E{i}")
        for k in range(4):
            r = 128 + 8 * i + 2 * k
            a.e(f"v_pk_add_f32 v[{r}:{r+1}], v[{r}:{r+1}], v[{XF+8*i+2*k}:{XF+8*i+2*k+1}]")
        for k in range(4):
            r = 128 + 8 * i + 2 * k
            a.e(f"v_cvt_pk_bf16_f32 v{XR+4*i+k}, v{r}, v{r+1}")
        a.e(f"s_add_u32 s26, s58, {8192*i}")
        q.v(f"buffer_store_dwordx4 v[{XR+4*i}:{XR+4*i+3}], v9, s[36:39], s26 offen")

def areg(k, nb):
    return 64 + 16 * ((k + 7) % NA) + 4 * nb

def aload(a, q, k, nb):
    s = k % 24
    if nb == 0:
        if s < 16:
            a.e(f"s_add_u32 s59, {'s52' if k < 24 else 's53'}, {524288 + 4096*s}")
        else:
            a.e(f"s_add_u32 s59, {'s50' if k < 24 else 's51'}, {4096*(s-16)}")
    r = areg(k, nb)
    q.v(f"buffer_load_dwordx4 a[{r}:{r+3}], v3, s[12:15], s59 offen offset:{1024*nb} sc1", f"A{k}")

def gen_attn(a, name, stamp=False, opt=None):
    opt = opt or {}
    nP = 16
    L = lambda s: f"{name}_{s}"
    st = Stamper(a, stamp in (1, 5))
    fs = Fine(a, stamp == 2)
    ff = Fine(a, stamp == 3)
    kernel_begin(a, name)
    a.e("s_cmp_ge_u32 s2, 256")
    a.e(f"s_cbranch_scc1 {L('end')}")
    a.e(f"s_load_dwordx2 s[4:5], s[0:1], {KA['ws']}")
    a.e(f"s_load_dwordx2 s[6:7], s[0:1], {KA['x']}")
    a.e(f"s_load_dwordx2 s[40:41], s[0:1], {KA['wq']}")
    a.e(f"s_load_dwordx2 s[8:9], s[0:1], {KA['wk']}")
    a.e(f"s_load_dwordx2 s[96:97], s[0:1], {KA['wup']}")
    a.e(f"s_load_dwordx2 s[44:45], s[0:1], {KA['dw']}")
    a.e(f"s_load_dwordx4 s[48:51], s[0:1], {KA['out']}")
    a.e(f"s_load_dwordx4 s[52:55], s[0:1], {KA['wv']}")
    a.e(f"s_load_dwordx4 s[56:59], s[0:1], {KA['wdn']}")
    a.e("s_and_b32 s20, s2, 7")
    a.e("s_lshl_b32 s20, s20, 5")
    a.e("s_lshr_b32 s21, s2, 3")
    a.e("s_add_u32 s31, s20, s21")
    a.e("s_lshr_b32 s21, s31, 7")
    a.e("s_and_b32 s22, s31, 1")
    a.e("s_bfe_u32 s23, s31, 0x60001")
    a.e("v_lshrrev_b32 v1, 6, v0")
    a.e("v_and_b32 v2, 63, v0")
    a.e("v_readfirstlane_b32 s16, v1")
    a.e("v_lshlrev_b32 v3, 4, v2")
    a.e("s_mul_i32 s24, s21, 4096000")
    a.e("s_sub_u32 s25, 63, s22")
    a.e("s_lshl_b32 s27, s23, 16")
    a.e("s_waitcnt lgkmcnt(0)")
    st(0); ff(0)
    def fin_srd(d, n):
        a.e(f"s_and_b32 s{d+1}, s{d+1}, 0xffff")
        a.e(f"s_mov_b32 s{d+2}, {n}")
        a.e(f"s_mov_b32 s{d+3}, 0x00020000")
    q = Seq(a)
    srd_off(a, 32, 6, "s24", 4096000)
    a.e("v_lshrrev_b32 v4, 3, v2")
    a.e("v_and_b32 v5, 7, v2")
    a.e("v_lshlrev_b32 v5, 4, v5")
    a.e("v_lshl_add_u32 v4, v4, 10, v5")
    a.e("s_lshl_b32 s26, s16, 14")
    a.e("s_add_u32 s26, s26, s27")
    a.e("s_lshl_b32 s28, s22, 9")
    a.e("s_add_u32 s26, s26, s28")
    for s_ in range(16):
        if s_ % 4 == 0: a.e(f"s_xor_b32 s28, s26, {8192*(s_//8) + 512*((s_//4)%2)}")
        q.v(f"buffer_load_dwordx4 v[{16+4*s_}:{19+4*s_}], v4, s[32:35], s28 offen offset:{128*(s_%4)} nt", f"x{s_}")
    fin_srd(96, 1048576)
    touches(a, q, L, opt)
    fin_srd(40, 524288); fin_srd(8, 524288); fin_srd(44, 5120)
    make_srd(a, 12, 4, 0x4000000)
    make_srd(a, 92, 50, 256)
    srd_off(a, 36, 48, "s24", 4096000)
    mi = m_issue(a, q)
    def clear():
        a.e("v_mov_b32 v14, 0")
        a.e("v_lshlrev_b32 v13, 2, v2")
        a.e("s_lshl_b32 s26, s31, 2")
        a.e("s_add_u32 s26, s26, s16")
        a.e("s_lshl_b32 s28, s26, 8")
        a.e(f"s_add_u32 s28, s28, {WS_MX}")
        q.v("buffer_store_dword v14, v13, s[12:15], s28 offen sc1", "St")
        a.e("s_lshl_b32 s28, s31, 5")
        a.e("s_add_u32 s28, s28, s16")
        a.e("s_lshl_b32 s28, s28, 2")
        a.e(f"s_add_u32 s28, s28, {WS_FL}")
        a.e("v_and_b32 v13, 16, v2")
        q.v("buffer_store_dword v14, v13, s[12:15], s28 offen sc1", "St")
    a.e("s_cmp_ge_u32 s23, 63")
    a.e(f"s_cbranch_scc1 {L('aux')}")
    def emit_aux(q0=q, vm0=list(q.vm)):
        a.label(L("aux"))
        q0.vm, q0.lg = list(vm0), []
        for f in mi: f()
        mfin = m_tile(a, q0)
        a.e("s_nop 7")
        mfin()
        q0.all()
        a.e("s_barrier")
        signal(a, L, "sig1a", 0, 0)
        signal(a, L, "sig2a", 1, 8)
        a.e("s_lshl_b32 s20, s21, 1")
        a.e("s_add_u32 s20, s20, s22")
        gen_aux(a, L, st, ff)
        signal(a, L, "sig3a", 0, 4)
        for k in range(5, 7): st(k)
        for k in range(15): fs(k)
        if stamp == 4:
            for k in range(16): Fine(a, True)(k)
        for k in range(9, 15): ff(k)
        a.e(f"s_branch {L('fin')}")
    gen_front(a, q, L, st, ff, mi, clear, opt)
    st(2); ff(10)
    def tail_consts():
        t = Asm()
        t.e("s_lshl_b32 s26, s22, 2")
        t.e("s_add_u32 s26, s26, s16")
        t.e("s_lshl_b32 s53, s26, 16")
        t.e(f"s_add_u32 s53, s53, {WS_W3}")
        t.e("s_xor_b32 s52, s53, 0x40000")
        t.e("s_lshl_b32 s58, s26, 7")
        t.e("s_add_u32 s58, s58, s27")
        t.e("s_lshl_b32 s54, s31, 2")
        t.e("s_add_u32 s54, s54, s16")
        t.e("s_lshl_b32 s54, s54, 13")
        t.e(f"s_add_u32 s54, s54, {WS_YX}")
        t.e("s_add_u32 s55, s54, 4096")
        t.e("s_lshl_b32 s26, s22, 15")
        t.e("s_add_u32 s50, s52, s26")
        t.e("s_add_u32 s51, s53, s26")
        t.e("s_add_u32 s26, s25, 2")
        t.e("s_and_b32 s26, s26, 3")
        t.e("s_lshl_b32 s48, s26, 15")
        t.e("s_add_u32 s26, s25, 1")
        t.e("s_and_b32 s26, s26, 3")
        t.e("s_lshl_b32 s49, s26, 15")
        t.e("s_lshl_b32 s56, s31, 5")
        t.e("s_add_u32 s56, s56, s16")
        t.e("s_lshl_b32 s56, s56, 2")
        t.e(f"s_add_u32 s56, s56, {WS_FL}")
        t.e("s_xor_b32 s57, s56, 128")
        return [x.strip() for x in t.lines]
    a.e("s_mov_b32 s17, s25")
    a.e(f"s_mov_b32 s101, {f2u(-BIG)}")
    def guard(r):
        return [f"v_add_f32 v{r}, v{r}, v{r+1}", f"v_cmp_nle_f32 vcc, s101, v{r}", "s_cmp_eq_u32 s101, 0", "s_cselect_b64 s[28:29], 0, vcc",
                "s_cmp_lg_u64 s[28:29], 0", f"s_cbranch_scc1 {L('redo')}"]
    a.e("s_cmp_ge_u32 s16, 2")
    a.e(f"s_cbranch_scc1 {L('pv')}")

    def dma_group():
        return "s_and_b32 m0, s18, 0x1ffff", [f"buffer_load_dwordx4 v3, s[8:11], s18 offen offset:{1024*j} sc1 lds" for j in range(4)]
    def dma_tile():
        for g in range(4):
            pre, ld = dma_group()
            a.e(pre); a.e("s_nop 0")
            for x in ld: a.e(x)
            a.e(f"s_add_u32 s18, s18, {4096 if g < 3 else 32768 - 3*4096}")
    def place_dma(fill, gaps):
        k = 0
        for g in range(4):
            pre, ld = dma_group()
            fill.setdefault(gaps[k] - 1, []).append(pre)
            for j in range(4):
                fill.setdefault(gaps[k], []).append(ld[j]); k += 1
            fill.setdefault(gaps[k - 1] + 1, []).append(f"s_add_u32 s18, s18, {4096 if g < 3 else 32768 - 3*4096}")
    auxl = cnt_load(4, "v11")
    auxc = CNT_OK

    KB = [32, 96]; S = 160; NEGM = 176; E = 192; PK = 200; LS = 204
    VK = 8; VPW = 9; TMP = 10
    MX0 = 208
    def qk_setup():
        a.e("v_and_b32 v4, 15, v2")
        a.e("v_lshrrev_b32 v5, 4, v2")
        a.e("v_and_b32 v6, 0x27, v2")
        a.e("v_and_b32 v7, 8, v2")
        a.e("v_lshl_add_u32 v6, v7, 1, v6")
        a.e("v_and_b32 v7, 16, v2")
        a.e("v_lshrrev_b32 v7, 1, v7")
        a.e("v_add_lshl_u32 v6, v6, v7, 4")
        a.e("s_lshl_b32 s29, s16, 14")
        a.e(f"v_add_u32 v{VK}, s29, v6")
        a.e("s_lshl_b32 s29, s16, 11")
        a.e(f"s_add_u32 s29, s29, {LDS_P}")
        a.e(f"v_lshl_add_u32 v{VPW}, v2, 3, s29")
        for i in range(4):
            a.e(f"v_mov_b32 v{LS+i}, 0")
        for i in range(4):
            a.e(f"v_mov_b32 v{MX0+i}, 0xff800000")
    qk_setup()
    def kread(par, s, imm):
        r = KB[par] + 4 * s
        return f"ds_read_b128 v[{r}:{r+3}], v{VK} offset:{imm + 1024*s}"
    def chain(par, qb, c0):
        out = []
        for s in range(16):
            k = KB[par] + 4 * s; q = 64 * qb + 4 * s; d = S + 4 * qb
            c = c0 if s == 0 else f"v[{d}:{d+3}]"
            out.append(f"{M16} v[{d}:{d+3}], v[{k}:{k+3}], a[{q}:{q+3}], {c}")
        return out
    q = Seq(a)
    mf = [m for qb in range(4) for m in chain(0, qb, "0")]
    tc = tail_consts()
    if opt.get("qe"):
        for n in range(12): q.l(kread(0, n, 0), f"K{n}")
        for n in range(64):
            q.e(mf[n], need=(f"K{n}",))
            if n < 4: q.l(kread(0, 12 + n, 0), f"K{12+n}")
            elif tc: a.e(tc.pop(0))
    else:
        a.e(f"v_add_u32 v7, {LDS_XS}, v3")
        rd = []
        for n in range(64):
            qb, s = n // 16, n % 16
            rd.append((f"ds_read_b128 a[{64*qb+4*s}:{64*qb+4*s+3}], v7 offset:{16384*((s%8)//2) + 8192*(s//8) + 2048*qb + 1024*(s%2)}", f"Q{n}"))
            if qb == 0: rd.append((kread(0, s, 0), f"Q{n}"))
        for _ in range(14): q.l(*rd.pop(0))
        for n in range(64):
            if n % 2 == 0: q.wait(f"Q{n+1}")
            a.e(mf[n])
            for _ in range(2 if n < 14 else 1):
                if rd: q.l(*rd.pop(0))
            if n >= 30 and tc: a.e(tc.pop(0))
        a.label(L("qk_again"))
        a.e("s_barrier")
    assert not tc
    a.e("s_nop 7")
    for qb in range(4):
        d = S + 4 * qb
        a.e(f"v_max3_f32 v{E+qb}, v{d}, v{d+1}, v{d+2}")
        a.e(f"v_max3_f32 v{E+qb}, v{E+qb}, v{d+3}, v{MX0+qb}")
    def group_reduce(r, t, op):
        for sw in ("v_permlane16_swap_b32", "v_permlane32_swap_b32"):
            for qb in range(4):
                a.e(f"v_mov_b32 v{t+qb}, v{r+qb}")
            a.e("s_nop 1")
            for qb in range(4):
                a.e(f"{sw} v{r+qb}, v{t+qb}")
            a.e("s_nop 1")
            for qb in range(4):
                a.e(f"{op} v{r+qb}, v{r+qb}, v{t+qb}")
    group_reduce(E, E + 4, "v_max_f32")
    a.e("s_lshl_b32 s29, s16, 8")
    a.e(f"s_add_u32 s29, s29, {LDS_MX}")
    a.e(f"v_lshl_add_u32 v{TMP}, v4, 4, s29")
    a.e(f"ds_write_b128 v{TMP}, v[{E}:{E+3}]")
    a.e(f"v_xor_b32 v{TMP}, 256, v{TMP}")
    a.e("s_waitcnt vmcnt(0) lgkmcnt(0)")
    a.e("s_barrier")
    a.e(f"ds_read_b128 v[{E+4}:{E+7}], v{TMP}")
    for s in range(8):
        a.e(kread(1, s, 32768))
    a.e("s_waitcnt lgkmcnt(8)")
    for qb in range(4):
        a.e(f"v_max_f32 v{E+qb}, v{E+qb}, v{E+4+qb}")
    for qb in range(4):
        for j in range(4):
            a.e(f"v_sub_f32 v{NEGM+4*qb+j}, 0, v{E+qb}")
    a.e("s_waitcnt lgkmcnt(4)")
    for s in range(8, 16):
        a.e(kread(1, s, 32768))
    for qb in range(4):
        for j in range(4):
            a.e(f"v_add_f32 v{S+4*qb+j}, v{S+4*qb+j}, v{NEGM+4*qb}")
    def softmax_ops(qb, par):
        e = E + 4 * (qb % 2); p = PK + 2 * (qb % 2); d = S + 4 * qb
        ex = [f"v_exp_f32 v{e+j}, v{d+j}" for j in range(4)]
        ad = [f"v_add_f32 v{LS+qb}, v{LS+qb}, v{e+j}" for j in range(4)]
        cv = [f"v_cvt_pk_bf16_f32 v{p+j}, v{e+2*j}, v{e+2*j+1}" for j in range(2)]
        wr = f"ds_write_b64 v{VPW}, v[{p}:{p+1}] offset:{par*4096 + qb*512}"
        return ex, ad, cv, wr
    ex, ad, cv, wr = softmax_ops(0, 0)
    for x in ex + ["s_nop 0"] + cv + ad + [wr]: a.e(x)
    a.e("s_waitcnt lgkmcnt(1)")
    fill = {}
    ops = []
    for qb in range(1, 4):
        ex, ad, cv, wr = softmax_ops(qb, 0)
        ops += ex + [ad[0]] + cv + ad[1:] + [wr]
    for i, x in enumerate(ops):
        fill.setdefault(i * 15 // len(ops), []).append(x)
    emit_interval(a, chain(1, 0, f"v[{NEGM}:{NEGM+3}]"), fill)
    a.e("s_waitcnt lgkmcnt(0)")
    a.e("s_sub_u32 s17, s17, 1")
    a.e("s_barrier")

    def qk_interval(par):
        mf = []
        for c in range(4):
            qb = (c + 1) % 4
            mf += chain(par if c < 3 else par ^ 1, qb, f"v[{NEGM+4*qb}:{NEGM+4*qb+3}]")
        fill = {}
        if par == 1:
            fill.setdefault(0, []).append(f"v_xor_b32 v{VK}, 0x10000, v{VK}")
        imm = 32768 * (par ^ 1)
        rgaps = [1, 2, 3, 12, 13, 14, 16, 17, 18, 28, 29, 30, 32, 33, 34, 35]
        for s in range(16):
            fill.setdefault(rgaps[s], []).append(kread(par ^ 1, s, imm))
        for c in range(4):
            b = 16 * c
            ex, ad, cv, wr = softmax_ops(c, par)
            if c == 3:
                fill.setdefault(b + 0, []).append("s_sub_u32 s17, s17, 1")
                fill.setdefault(b + 1, []).append("s_nop 0")
                fill.setdefault(b + 2, []).append("s_nop 0")
            for j in range(4):
                fill.setdefault(b + 4 + j, []).append(ex[j])
            fill.setdefault(b + 8, []).extend(cv)
            fill.setdefault(b + 9, []).extend([wr])
            fill.setdefault(b + 10, []).extend(ad[:2])
            fill.setdefault(b + 11, []).extend(ad[2:])
        fill.setdefault(47, []).append("s_waitcnt lgkmcnt(1)")
        if par == 1:
            fill.setdefault(44, []).append("s_cmp_lt_u32 s17, 16")
            fill.setdefault(45, []).extend([f"s_cbranch_scc1 {L('touch')}", L("touch_ret") + ":"])
        fill.setdefault(62, []).append("s_cmp_eq_u32 s17, 0")
        fill.setdefault(63, []).extend(["s_waitcnt lgkmcnt(0)", "s_barrier"])
        emit_interval(a, mf, fill)

    a.e("v_and_b32 v11, 3, v2")
    a.e("v_lshlrev_b32 v11, 6, v11")
    a.e("v_lshlrev_b32 v7, 7, v2")
    st(3); ff(11)
    a(".p2align 6")
    a.label(L("qk_loop"))
    qk_interval(1)
    a.e(f"s_cbranch_scc1 {L('qk_done')}")
    qk_interval(0)
    a.e(f"s_cbranch_scc0 {L('qk_loop')}")
    a.label(L("qk_done"))
    st(4); fs(0)
    q = Seq(a)
    group_reduce(LS, E, "v_add_f32")
    a.e(f"v_mov_b32 v{E+2}, v{NEGM}")
    a.e(f"v_mov_b32 v{E+3}, v{LS}")
    for qb in range(1, 4):
        a.e(f"v_cmp_eq_u32 vcc, {qb}, v5")
        a.e("s_nop 1")
        a.e(f"v_cndmask_b32 v{E+2}, v{E+2}, v{NEGM+4*qb}, vcc")
        a.e(f"v_cndmask_b32 v{E+3}, v{E+3}, v{LS+qb}, vcc")
    a.e(f"v_or_b32 v{E+3}, 0x80000000, v{E+3}")
    a.e("s_lshl_b32 s28, s16, 9")
    a.e("s_lshl_b32 s30, s31, 10")
    a.e("s_add_u32 s30, s30, s28")
    a.e(f"s_add_u32 s30, s30, {WS_MX}")
    a.e(f"s_add_u32 s28, s28, {LDS_ML}")
    a.e(f"v_lshlrev_b32 v{E+4}, 3, v2")
    a.e(f"v_add_u32 v{TMP}, s28, v{E+4}")
    q.l(f"ds_write_b64 v{TMP}, v[{E+2}:{E+3}]")
    a.e(f"v_add_u32 v{TMP}, {LDS_ML + 4}, v{E+4}")
    q.all(vm=False)
    fs(1)
    a.e("s_barrier")
    fs(2)
    q.l(f"ds_read2st64_b32 v[{E}:{E+1}], v{TMP} offset0:0 offset1:2", "lsum")
    a.e("s_mul_i32 s28, s16, 24")
    conv_addr(a, 12, "s28")
    q.wait("lsum")
    for x in guard(E): a.e(x)
    q.v(f"buffer_store_dwordx2 v[{E+2}:{E+3}], v{E+4}, s[12:15], s30 offen sc1", "MLst")
    cv = Conv(a, q, 12)
    cv.prep()
    fs(3)
    for j in range(16):
        cv.row(j)
        if j >= 2 and j < 14:
            for nb in range(4): aload(a, q, j - 2, nb)
    fs(4)
    a.e(f"s_branch {L('tail')}")
    a.label(L("touch"))
    a.e("s_lshr_b32 s26, s17, 1")
    def tl(srd, so): a.e(f"buffer_load_dword v0, v7, s[{srd}:{srd+3}], {so} offen")
    def b_code():
        a.e(auxl)
        a.e("s_getpc_b64 s[28:29]")
        a.label(L("pc0"))
        a.e(f"s_sub_u32 s28, s28, {L('pc0')} - {L('qk_done')}")
        a.e("s_subb_u32 s29, s29, 0")
        a.e("s_lshr_b32 s30, s2, 3")
        a.e("s_lshl_b32 s30, s30, 1")
        a.e("s_add_u32 s30, s30, s16")
        a.e("s_lshl_b32 s30, s30, 10")
        a.e("v_lshl_add_u32 v12, v2, 4, s30")
        a.e(f"v_min_u32 v12, {L('end')} - {L('qk_done')}, v12")
        a.e("global_load_dword v0, v12, s[28:29]")
    def b_w(part):
        def f():
            if part == 1:
                a.e("s_waitcnt vmcnt(0)")
                poll(a, Seq(a), L, "qk_aux", [auxl], auxc, "aux", slp=16)
            a.e("s_lshr_b32 s30, s2, 3")
            a.e("s_lshl_b32 s30, s30, 1")
            a.e("s_add_u32 s30, s30, s16")
            a.e("s_lshl_b32 s30, s30, 13")
            a.e(f"s_add_u32 s30, s30, {WS_W3 + 524288*part}")
            tl(12, "s30")
        return f
    ST = 212
    def b_small():
        a.e("s_mul_i32 s28, s16, 34")
        a.e("s_lshl_b32 s29, s23, 6")
        a.e("s_add_u32 s28, s28, s29")
        a.e("s_sub_u32 s28, s28, 2")
        a.e(f"v_add_u32 v{ST+16}, s28, v2")
        a.e(f"v_max_i32 v12, 0, v{ST+16}")
        a.e(f"v_min_i32 v12, {T-1}, v12")
        a.e("v_lshlrev_b32 v12, 3, v12")
        a.e("s_lshl_b32 s29, s21, 15")
        for ct in range(8):
            a.e(f"s_add_u32 s30, s29, {WS_ST + 0x10000*ct}")
            a.e(f"buffer_load_dwordx2 v[{ST+2*ct}:{ST+2*ct+1}], v12, s[12:15], s30 offen sc1")
        a.e("s_lshl_b32 s28, s16, 1")
        a.e("s_add_u32 s28, s28, s23")
        a.e("s_sub_u32 s28, s28, 1")
        a.e("s_max_i32 s28, s28, 0")
        a.e("s_min_i32 s28, s28, 62")
        a.e("s_sub_u32 s28, s28, s23")
        a.e("s_lshl_b32 s28, s28, 1")
        a.e("s_add_u32 s28, s28, s31")
        a.e("s_lshl_b32 s28, s28, 16")
        a.e("s_xor_b32 s29, s16, 1")
        a.e(f"s_mul_i32 s29, s29, {62*512}")
        a.e("s_add_u32 s28, s28, s29")
        a.e(f"s_add_u32 s28, s28, {WS_GU}")
        a.e("s_lshl_b32 s29, s16, 10")
        a.e(f"s_add_u32 m0, s29, {LDS_HALO}")
        a.e("v_lshrrev_b32 v12, 5, v2")
        a.e("buffer_load_dwordx4 v3, s[12:15], s28 offen sc1 lds")
        a.e("v_lshl_add_u32 v12, v12, 9, v3")
        a.e("s_lshl_b32 s28, s22, 9")
        for i in range(3):
            a.e(f"s_mov_b32 m0, {LDS_TAP + 1024*i}")
            a.e(f"s_add_u32 s29, s28, {2048*i}")
            a.e("buffer_load_dwordx4 v12, s[44:47], s29 offen lds")
    def b_stat():
        a.e("s_waitcnt vmcnt(0)")
        for ct in range(1, 8):
            a.e(f"v_add_f32 v{ST}, v{ST}, v{ST+2*ct}")
            a.e(f"v_add_f32 v{ST+1}, v{ST+1}, v{ST+2*ct+1}")
        a.e(f"v_mul_f32 v{ST}, {f2u(1/512)}, v{ST}")
        a.e(f"v_mul_f32 v{ST+1}, {f2u(1/512)}, v{ST+1}")
        a.e(f"v_fma_f32 v{ST+1}, -v{ST}, v{ST}, v{ST+1}")
        a.e(f"v_max_f32 v{ST+1}, 0, v{ST+1}")
        a.e(f"v_add_f32 v{ST+1}, {f2u(1e-5)}, v{ST+1}")
        a.e(f"v_rsq_f32 v{ST+1}, v{ST+1}")
        a.e(f"v_cmp_gt_u32 vcc, {T}, v{ST+16}")
        a.e(f"v_mul_f32 v{ST}, v{ST}, v{ST+1}")
        a.e(f"v_sub_f32 v{ST}, 0, v{ST}")
        a.e(f"v_cndmask_b32 v{ST+2}, 0, v{ST+1}, vcc")
        a.e(f"v_cndmask_b32 v{ST+3}, 0, v{ST}, vcc")
        a.e(f"s_mul_i32 s28, s16, {34*8}")
        a.e(f"s_add_u32 s28, s28, {LDS_STT}")
        a.e("v_lshl_add_u32 v12, v2, 3, s28")
        a.e(f"ds_write_b64 v12, v[{ST+2}:{ST+3}]")
    def b_x(r0):
        def f():
            a.e("s_lshl_b32 s30, s22, 1")
            a.e("s_add_u32 s30, s30, s16")
            a.e("s_lshl_b32 s30, s30, 14")
            a.e("s_add_u32 s30, s30, s27")
            a.e(f"s_add_u32 s30, s30, {r0*1024}")
            tl(32, "s30")
        return f
    blocks = {7: [b_code], 6: [b_w(1)], 5: [b_small], 4: [b_w(0)], 3: [b_stat], 2: [b_x(0)], 1: [b_x(8)]}
    for kx, fns in blocks.items():
        a.e(f"s_cmp_lg_u32 s26, {kx}")
        a.e(f"s_cbranch_scc1 {L('touch%d' % kx)}")
        for f in fns: f()
        a.e(f"s_branch {L('touch_ret')}")
        a.label(L("touch%d" % kx))
    a.e(f"s_branch {L('touch_ret')}")

    VB = [16, 80]; PR = [144, 160]
    VV = 8; VPR = 9
    def oreg(db, qb):
        return (f"a[{4*qb}:{4*qb+3}]", None) if db == 0 else (f"v[{16*db+4*qb}:{16*db+4*qb+3}]", 16 * db + 4 * qb)
    a.label(L("pv"))
    a.e("s_sub_u32 s19, s16, 2")
    a.e("s_lshl_b32 s18, s19, 14")
    a.e("s_add_u32 s18, s18, 65536")
    dma_tile()
    for x in tail_consts(): a.e(x)
    for i in range(16, 256, 2):
        a.e(f"v_pk_mul_f32 v[{i}:{i+1}], 0, 0")
    for i in list(range(16)) + list(range(VB[1] + 56, VB[1] + 64)) + list(range(PR[1], PR[1] + 16)):
        a.e(f"v_accvgpr_write_b32 a{i}, 0")
    a.e("v_lshrrev_b32 v4, 5, v2")
    a.e("v_lshlrev_b32 v4, 8, v4")
    a.e("v_and_b32 v5, 2, v2")
    a.e("v_lshl_add_u32 v4, v5, 6, v4")
    a.e("v_and_b32 v5, 28, v2")
    a.e("v_lshl_add_u32 v4, v5, 2, v4")
    a.e("v_and_b32 v5, 1, v2")
    a.e("v_lshl_add_u32 v4, v5, 3, v4")
    a.e("s_lshl_b32 s29, s19, 13")
    a.e(f"v_add_u32 v{VV}, s29, v4")
    a.e("s_add_u32 s29, s29, s48")
    a.e("v_add_u32 v10, s29, v3")
    a.e("s_lshl_b32 s28, s31, 16")
    a.e(f"s_add_u32 s28, s28, {WS_GU}")
    a.e("s_sub_u32 s28, s28, s10")
    a.e("s_add_u32 s98, s4, s28")
    a.e("s_addc_u32 s99, s5, 0")
    a.e("s_and_b32 s99, s99, 0xffff")
    a.e("s_add_u32 s100, s10, 65536")
    a.e(f"s_mov_b32 s29, {LDS_P}")
    a.e(f"v_lshl_add_u32 v{VPR}, v2, 3, s29")
    a.e(f"v_add_u32 v1, {LDS_ML + 4 - LDS_P}, v{VPR}")
    if not opt.get("qe"): a.e("s_barrier")
    a.e("s_waitcnt vmcnt(16)")
    a.e("s_barrier")
    def vread(par, db, kb):
        r = VB[par] + 4 * db + 2 * kb
        return f"ds_read_b64_tr_b16 a[{r}:{r+1}], v{VV} offset:{32768*par + 16384*kb + 512*db}"
    def pvm(par, db):
        out = []
        for qb in range(4):
            d = oreg(db, qb)[0]; v = VB[par] + 4 * db; p = PR[par] + 4 * qb
            out.append(f"{M16} {d}, a[{v}:{v+3}], a[{p}:{p+3}], {d}")
        return out
    signal(a, L, "sig3", 2, 4)
    dma_tile()
    for db in range(16):
        for kb in range(2):
            a.e(vread(0, db, kb))
        if db % 4 == 3: a.e("s_waitcnt lgkmcnt(4)")
    a.e(f"s_waitcnt vmcnt({nP}) lgkmcnt(0)")
    a.e("s_sub_u32 s17, s17, 1")
    a.e("s_barrier")

    pvq = []
    def pv_interval(par, last=False):
        mf = pvm(par, 14) + pvm(par, 15)
        for db in range(16 if last else 14):
            mf += pvm(par ^ 1, db)
        fill = {}
        for qb in range(4):
            p = PR[par ^ 1] + 4 * qb
            fill.setdefault(qb // 2, []).append(f"ds_read2st64_b64 a[{p}:{p+3}], v{VPR} offset0:{8*(par^1)+qb} offset1:{8*(par^1)+4+qb}")
        fill.setdefault(7, []).append("s_waitcnt lgkmcnt(0)")
        if last:
            fs(0)
            q = Seq(a)
            ops = []
            for sp in range(8):
                for qb in range(4):
                    o = []
                    if sp == 0:
                        o += [f"v_accvgpr_read_b32 v{12+j}, a{4*qb+j}" for j in range(4)]
                        lo = 12
                    else:
                        lo = oreg(2 * sp, qb)[1]
                    hi = oreg(2 * sp + 1, qb)[1]
                    t = 4 if sp == 0 else lo
                    o += [f"v_cvt_pk_bf16_f32 v{t}, v{lo}, v{lo+1}", f"v_cvt_pk_bf16_f32 v{t+1}, v{lo+2}, v{lo+3}",
                          f"v_cvt_pk_bf16_f32 v{t+2}, v{hi}, v{hi+1}", f"v_cvt_pk_bf16_f32 v{t+3}, v{hi+2}, v{hi+3}",
                          f"ds_write_b128 v10, v[{t}:{t+3}] offset:{16384*qb + 1024*sp}"]
                    ops += [(8 + 8 * sp + 4 + qb + 5, x) for x in o]
            na = 0
            def put(x):
                if x.startswith("ds_"): q.l(x, "Ow")
                else: a.e(x)
            for i, m in enumerate(mf):
                a.e(m)
                for f in fill.get(i, []): a.e(f)
                if i == 12:
                    a.e("s_waitcnt vmcnt(0)")
                    fs(1)
                    a.e("s_barrier")
                    fs(2)
                    q.l("ds_read2st64_b32 v[8:9], v1 offset0:0 offset1:2", "lsum")
                if i == 17:
                    q.wait("lsum")
                    for x in guard(8): a.e(x)
                if i > 12 and i % 2 == 0 and na < 20:
                    aload(a, q, na // 4, na % 4); na += 1
                if i > 12:
                    n = 0
                    while ops and ops[0][0] <= i and n < 3:
                        put(ops.pop(0)[1]); n += 1
                    if n == 0: a.e("s_nop 0")
            fs(3)
            for _ in range(8):
                aload(a, q, na // 4, na % 4); na += 1
            while ops: put(ops.pop(0)[1])
            pvq.append((q, na))
            return
        if par == 0:
            fill.setdefault(2, []).append(f"v_xor_b32 v{VV}, 0x10000, v{VV}")
        for g, x in enumerate(["s_cmp_eq_u32 s17, 3", "s_cselect_b32 s8, s98, s8", "s_cselect_b32 s9, s99, s9", "s_cselect_b32 s10, s100, s10"]):
            fill.setdefault(3 + g, []).append(x)
        rg = [8 + 3 * (i // 2) + (i % 2) for i in range(32)]
        for i in range(32):
            fill.setdefault(rg[i], []).append(vread(par, i // 2, i % 2))
        place_dma(fill, [10 + 3 * i for i in range(16)])
        fill.setdefault(60, []).append("s_sub_u32 s17, s17, 1")
        fill.setdefault(62, []).append("s_cmp_eq_u32 s17, 0")
        fill.setdefault(63, []).extend([f"s_waitcnt vmcnt({nP}) lgkmcnt(0)", "s_barrier"])
        emit_interval(a, mf, fill)

    st(3); ff(11)
    a(".p2align 6")
    a.label(L("pv_loop"))
    pv_interval(1)
    a.e(f"s_cbranch_scc1 {L('pv_last0')}")
    pv_interval(0)
    a.e(f"s_cbranch_scc0 {L('pv_loop')}")
    pv_interval(1, True)
    a.e(f"s_branch {L('pv_stage')}")
    a.label(L("pv_last0"))
    pv_interval(0, True)
    a.label(L("pv_stage"))
    st(4)
    q, n = pvq[0]
    assert pvq[1][0].vm == q.vm and pvq[1][0].lg == q.lg
    a.e("s_lshl_b32 s28, s19, 3")
    a.e("s_add_u32 s28, s28, 48")
    q.wait("Ow")
    conv_addr(a, 4, "s28")
    cv = Conv(a, q, 4)
    cv.prep()
    for j in range(8):
        cv.row(j)
        for _ in range(4):
            if n < 4 * NA:
                aload(a, q, n // 4, n % 4); n += 1
    assert n == 4 * NA
    fs(4)
    a.label(L("tail"))
    gen_tail(a, L, st, fs, opt)
    a.label(L("fin"))
    if stamp == 1:
        a.e("s_waitcnt vmcnt(0)")
        st(7)
        emit_stamps(a, 8, nw=8, off=WS_STAMP + 0x200000)
    if stamp == 5:
        a.e("s_waitcnt vmcnt(0)")
        st(7)
        a.e("s_cmp_lg_u32 s16, 0")
        a.e(f"s_cbranch_scc1 {L('end')}")
        a.e("s_mov_b64 exec, 1")
        a.e("s_cmp_lg_u32 s2, 0")
        a.e(f"s_cbranch_scc1 {L('dbg2')}")
        for k in range(1, 8):
            a.e(f"s_sub_u32 s26, s{62+4*k}, s62")
            a.e("v_mov_b32 v8, s26")
            a.e(f"buffer_store_dword v8, off, s[92:95], 0 offset:{8+4*k}")
        a.e("s_sub_u32 s26, s76, s72")
        a.e("v_mov_b32 v8, s26")
        a.e("buffer_store_dword v8, off, s[92:95], 0 offset:40")
        a.label(L("dbg2"))
        a.e("s_cmp_lg_u32 s2, 255")
        a.e(f"s_cbranch_scc1 {L('end')}")
        for k in range(1, 6):
            a.e(f"s_sub_u32 s26, s{62+4*k}, s62")
            a.e("v_mov_b32 v8, s26")
            a.e(f"buffer_store_dword v8, off, s[92:95], 0 offset:{40+4*k}")
    if stamp in (2, 3, 4):
        a.e("s_waitcnt vmcnt(0)")
        fs(15)
        for k in range(13, 16): ff(k)
        emit_fine(a, off=WS_STAMP + 0x300000)
    a.label(L("end"))
    a.e("s_endpgm")
    a.label(L("redo"))
    a.e("s_waitcnt vmcnt(0) lgkmcnt(0)")
    a.e("s_mov_b32 s101, 0")
    a.e("s_mul_i32 s28, s22, 2064384")
    a.e("s_add_u32 s28, s28, s24")
    a.e("s_lshl_b32 s26, s25, 15")
    srd_off(a, 8, 4, "s28", "s26")
    a.e("s_lshl_b32 s19, s16, 13")
    qk_setup()
    a.e("s_mov_b32 s17, s25")
    def redo_dma(slot):
        for i in range(8):
            if i % 4 == 0:
                a.e(f"s_add_u32 m0, s19, {32768*slot + 1024*i}")
                a.e(f"s_add_u32 s29, s18, {1024*i}")
            a.e(f"buffer_load_dwordx4 v3, s[8:11], s29 offen offset:{1024*(i%4)} sc1 lds")
    a.label(L("redo_loop"))
    a.e("s_sub_u32 s17, s17, 1")
    a.e("s_lshl_b32 s18, s17, 15")
    a.e("s_add_u32 s18, s18, s19")
    a.e("s_barrier")
    redo_dma(0)
    a.e("s_waitcnt vmcnt(0)")
    a.e("s_barrier")
    a.e("s_cmp_ge_u32 s16, 2")
    a.e(f"s_cbranch_scc1 {L('redo_next')}")
    for n in range(16):
        a.e(kread(0, n, 0))
        if n == 11: a.e("s_waitcnt lgkmcnt(4)")
    a.e("s_waitcnt lgkmcnt(0)")
    for qb in range(4):
        for m in chain(0, qb, "0"): a.e(m)
    a.e("s_nop 7")
    for qb in range(4):
        d = S + 4 * qb
        a.e(f"v_max3_f32 v{MX0+qb}, v{MX0+qb}, v{d}, v{d+1}")
        a.e(f"v_max3_f32 v{MX0+qb}, v{MX0+qb}, v{d+2}, v{d+3}")
    a.label(L("redo_next"))
    a.e("s_cmp_lg_u32 s17, 0")
    a.e(f"s_cbranch_scc1 {L('redo_loop')}")
    a.e("s_add_u32 s18, s19, 32768")
    redo_dma(1)
    a.e("s_mov_b32 s17, s25")
    a.e("s_cmp_ge_u32 s16, 2")
    a.e(f"s_cbranch_scc1 {L('pv')}")
    a.e(f"s_branch {L('qk_again')}")
    emit_aux()
    kernel_desc(a, name, 512, 256)
    return f"; @launch grid=(256,1,1) block=(256,1,1) lds={LDS_ATT}"
```

```python
import sys
sys.path.insert(0, "gen")
from asmlib import *
from layout import *
from conv import Conv
from aux import gen_aux
from front import *

RS = 1056
LDS_P = 131072
LDS_MX = 139264
LDS_FG = LDS_MX + 512
LDS_ML = LDS_MX + 1024
LDS_HALO = LDS_ML + 1024
LDS_TAP = LDS_HALO + 2048
LDS_STT = LDS_TAP + 3072
LDS_ATT = 163840
ES = 272
NA = 16
ARING = [16 * i for i in range(16)]
BIG = 2.0 ** 100
SPIN = 200000
FK = [0, 8, 16, 20, 24, 28, 30]

DROP = []
ALIGN = [0]
def emit_interval(a, mfmas, fill, lo=0, hi=None):
    for i, m in enumerate(mfmas):
        if i < lo or (hi is not None and i >= hi): continue
        if m is not None:
            if ALIGN[0]: a(".p2alignl 3, 0xbf800000")
            a.e(m)
        for f in fill.get(i, []):
            if any(f.startswith(d) for d in DROP): continue
            a.e(f)

def conv_addr(a, NR, row0):
    a.e("v_lshrrev_b32 v12, 5, v2")
    a.e(f"v_mul_u32_u24 v12, {NR}, v12")
    a.e(f"v_add_u32 v12, {row0}, v12")
    a.e("v_and_b32 v13, 31, v2")
    a.e("v_lshlrev_b32 v13, 4, v13")
    a.e("v_lshl_add_u32 v14, v12, 9, v13")
    a.e("s_and_b32 s26, s25, 3")
    a.e("s_lshl_b32 s26, s26, 15")
    a.e("v_add_u32 v4, s26, v14")
    a.e("v_add_u32 v7, s49, v14")
    a.e("v_and_b32 v14, 4, v12")
    a.e("v_lshlrev_b32 v14, 5, v14")
    a.e("v_xor_b32 v8, v7, v14")
    a.e(f"v_add_u32 v10, {LDS_TAP}, v13")
    a.e(f"v_add_u32 v13, {LDS_HALO}, v13")
    a.e("v_cmp_eq_u32 vcc, 0, v12")
    a.e("v_subrev_u32 v5, 1024, v4")
    a.e(f"v_add_u32 v6, {512*NR}, v4")
    a.e("v_cndmask_b32 v5, v5, v13, vcc")
    a.e(f"v_cmp_eq_u32 vcc, {64-NR}, v12")
    a.e("v_add_u32 v13, 1024, v13")
    a.e("v_lshlrev_b32 v9, 3, v12")
    a.e("v_cndmask_b32 v6, v6, v13, vcc")
    a.e(f"v_add_u32 v9, {LDS_STT}, v9")

def gen_tail(a, L, st, fs, opt):
    q = Seq(a)
    PF = opt.get("pf", 10)
    q.vm = [f"A{k}" for k in range(PF) for _ in range(4)]
    BF = [32, 48]; YR = 64; XR = 96
    NS = 32
    acc = lambda k: 128 if k < 16 else 192
    def bread(k, tb):
        s = k % 8
        r = BF[k % 2] + 4 * tb
        if k % 16 < 8:
            return f"ds_read_b128 v[{r}:{r+3}], v6 offset:{8192*tb + 1024*s}"
        return f"ds_read_b128 v[{r}:{r+3}], v{28 + s % 4} offset:{8192*tb + 256*(s//4)}"
    a.e("v_add_u32 v6, s48, v3")
    a.e("s_waitcnt lgkmcnt(0)")
    fs(5)
    a.e("s_barrier")
    for tb in range(4): q.l(bread(0, tb), "B0")
    a.e("v_and_b32 v4, 15, v2")
    a.e("v_lshrrev_b32 v5, 4, v2")
    a.e("v_mov_b32 v12, 1")
    a.e("s_mov_b32 s43, 0xffff0000")
    side = {}
    def at(k, g, fn): side.setdefault((k + g // 16, g % 16), []).append(fn)
    def spread(k, g, ops, per=2, skip=lambda g: False):
        n = 16 * k + g
        ops = list(ops)
        while ops:
            if not skip(n % 16):
                for _ in range(per):
                    if ops:
                        o = ops.pop(0)
                        at(n // 16, n % 16, o if callable(o) else (lambda o=o: a.e(o)))
            n += 1
    lo8 = lambda g: g < 8
    spread(0, 8, ["v_and_b32 v13, 7, v4", "v_lshlrev_b32 v13, 1, v13", "v_xor_b32 v13, v13, v5", "v_lshlrev_b32 v13, 4, v13",
                  "v_lshl_add_u32 v13, v4, 9, v13", "v_add_u32 v28, s49, v13", "v_xor_b32 v29, 64, v28", "v_xor_b32 v30, 128, v28",
                  "v_xor_b32 v31, 192, v28",
                  "s_and_b32 s26, s16, 2", "s_add_u32 s26, s26, s25", "s_and_b32 s26, s26, 3", "s_lshl_b32 s26, s26, 1",
                  "s_and_b32 s28, s16, 1", "s_add_u32 s26, s26, s28", "s_lshl_b32 s26, s26, 14",
                  "v_xor_b32 v13, v4, v5", "v_lshlrev_b32 v13, 4, v13", "v_lshl_add_u32 v13, v4, 8, v13", "v_add_u32 v8, s26, v13",
                  "v_xor_b32 v9, 64, v8", "v_xor_b32 v10, 128, v8", "v_xor_b32 v11, 192, v8",
                  "v_lshrrev_b32 v13, 3, v2", "v_and_b32 v14, 7, v2", "v_lshlrev_b32 v24, 1, v14", "v_xor_b32 v24, v24, v13",
                  "v_lshlrev_b32 v24, 4, v24", "v_lshl_add_u32 v24, v13, 8, v24", "v_add_u32 v24, s26, v24",
                  "v_xor_b32 v25, 16, v24", "v_xor_b32 v26, 128, v24", "v_xor_b32 v27, 144, v24",
                  "v_lshlrev_b32 v15, 4, v14", "v_lshl_add_u32 v15, v13, 10, v15"], skip=lo8)
    for i in range(8):
        def xl(i=i):
            a.e(f"s_add_u32 s26, s58, {8192*i}")
            q.v(f"buffer_load_dwordx4 v[{XR+4*i}:{XR+4*i+3}], v15, s[32:35], s26 offen", "X")
        at(opt.get("kx", 26), 1 + opt.get("dx", 4) * i, xl)
    YS = opt.get("ys", 2)
    for i in range(8):
        tb, h = i % 4, i // 4
        k, g0 = (16 + i // 2, 8 + 4 * (i % 2)) if YS == 2 else (16, 8 + 3 * i)
        src = [128 + 16 * (2 * h + ee) + 4 * tb + j for ee in range(2) for j in range(4)]
        for j in range(4):
            at(k, g0 + j // 2, lambda j=j, i=i, src=src: a.e(f"v_cvt_pk_bf16_f32 v{YR+4*i+j}, v{src[2*j]}, v{src[2*j+1]}"))
        at(k, g0 + 2, lambda i=i: q.v(f"buffer_store_dwordx4 v[{YR+4*i}:{YR+4*i+3}], v3, s[12:15], s{54 + i//4} offen offset:{1024*(i%4)} {opt.get('sm_', 'nt')}", "Yst"))
    KF, KL, KC = opt.get("k", (24, 27, 29))
    at(KF, 9, lambda: release(a, q, L, "ry", "Yst", "buffer_store_dword v12, off, s[12:15], s56"))
    yl = f"buffer_load_dword v14, off, s[12:15], s57 {opt.get('pm', 'sc1')}"
    at(KL, 9, lambda: q.v(yl, "yf"))
    def gety():
        poll(a, q, L, "y", [yl], ["v_readfirstlane_b32 s26, v14", "s_cmp_eq_u32 s26, 1"], "yf", slp=1)
        acquire(a, L, "ay")
        a.e("s_xor_b32 s54, s54, 0x10000")
        a.e("s_xor_b32 s55, s55, 0x10000")
    at(KC, 7, gety)
    for i in range(8):
        at(KC, 8 + i, lambda i=i: q.v(f"buffer_load_dwordx4 v[{YR+4*i}:{YR+4*i+3}], v3, s[12:15], s{54 + i//4} offen offset:{1024*(i%4)} {opt.get('lm', 'sc1')}", f"Y{i}"))
    XF = 128
    KU = opt.get("ku", 30)
    at(KU, 0, lambda: q.wait("X"))
    spread(KU, 0, [x for i in range(32) for x in (f"v_lshlrev_b32 v{XF+2*i}, 16, v{XR+i}", f"v_and_b32 v{XF+2*i+1}, s43, v{XR+i}")])
    nl = 4 * PF
    AS = opt.get("as", "4" * 16 + "0000" + "4" * 12)
    LG = opt.get("lg", (1, 5, 9, 13, 3))
    for k in range(NS):
        assert nl >= 4 * min(NS, k + 3)
        if k == 0: st(5)
        if k in FK: fs(6 + FK.index(k))
        q.wait(f"A{k}", f"B{k}")
        g = 0
        for nb in range(4):
            for tb in range(4):
                d = acc(k) + 16 * nb + 4 * tb; r = areg(k, nb); b = BF[k % 2] + 4 * tb
                c = "0" if k % 16 == 0 else f"v[{d}:{d+3}]"
                a.e(f"{M16} v[{d}:{d+3}], a[{r}:{r+3}], v[{b}:{b+3}], {c}")
                if g < 8 and g % 2 == 0 and k + 1 < NS:
                    q.l(bread(k + 1, g // 2), f"B{k+1}")
                if nl < 4 * NS and nl // 4 < k + NA and g in LG[:int(AS[k])]:
                    aload(a, q, nl // 4, nl % 4); nl += 1
                for fn in side.pop((k, g), []): fn()
                g += 1
    assert not side, side.keys()
    st(6); fs(13)
    T0 = 16
    for i in range(8):
        tb, h = i % 4, i // 4
        q.wait(f"Y{i}")
        for j in range(4):
            a.e(f"v_lshlrev_b32 v{T0+2*j}, 16, v{YR+4*i+j}")
            a.e(f"v_and_b32 v{T0+2*j+1}, s43, v{YR+4*i+j}")
        for j in range(4):
            d = 192 + 16 * (2 * h + j // 2) + 4 * tb + 2 * (j % 2)
            a.e(f"v_pk_add_f32 v[{d}:{d+1}], v[{d}:{d+1}], v[{T0+2*j}:{T0+2*j+1}]")
        for ee in range(2):
            nb = 2 * h + ee; d = 192 + 16 * nb + 4 * tb
            q.l(f"ds_write_b128 v{8+nb}, v[{d}:{d+3}] offset:{4096*tb}", "Ew")
        if h == 1:
            for ii in (2 * tb, 2 * tb + 1):
                for hh in range(2):
                    r = ER(ii) + 4 * hh
                    q.l(f"ds_read_b128 v[{r}:{r+3}], v{24 + 2*(ii%2) + hh} offset:{2048*ii}", f"E{ii}")
    fs(14)
    for i in range(8):
        q.wait(f"E{i}")
        for k in range(4):
            r = ER(i) + 2 * k
            a.e(f"v_pk_add_f32 v[{r}:{r+1}], v[{r}:{r+1}], v[{XF+8*i+2*k}:{XF+8*i+2*k+1}]")
        for k in range(4):
            r = ER(i) + 2 * k
            a.e(f"v_cvt_pk_bf16_f32 v{XF+8*i+k}, v{r}, v{r+1}")
        a.e(f"s_add_u32 s26, s58, {8192*i}")
        q.v(f"buffer_store_dwordx4 v[{XF+8*i}:{XF+8*i+3}], v15, s[36:39], s26 offen {opt.get('omod', 'nt')}")

def ER(i):
    return (96 + 8 * i) if i < 4 else (32 + 8 * (i - 4))

def areg(k, nb):
    return ARING[k % NA] + 4 * nb

def aload(a, q, k, nb):
    s = k % 8
    if nb == 0:
        if k % 16 < 8:
            a.e(f"s_add_u32 s59, {'s52' if k < 16 else 's53'}, {524288 + 32768*(s//4) + 4096*(s%4)}")
        else:
            a.e(f"s_add_u32 s59, {'s50' if k < 16 else 's51'}, {4096*s}")
    r = areg(k, nb)
    q.v(f"buffer_load_dwordx4 a[{r}:{r+3}], v3, s[12:15], s59 offen offset:{1024*nb} sc1", f"A{k}")

def gen_attn(a, name, stamp=False, opt=None):
    dg = [9 + 12 * g + 3 * j for g in range(4) for j in range(4)]
    opt = dict(dict(ps=1, xe=1, qw=62, dg=dg, mg=[8, 20, 32, 44, 60], rg=[d + e for d in dg for e in (1, 2)], rot=4,
                    kg_=list(range(8, 16)) + list(range(24, 32)), qbe=57, pbe=58), **(opt or {}))
    OOL[:] = []
    DROP[:] = opt.get('drop', [])
    ALIGN[0] = opt.get('al', 0)
    Fine.op = 's_memtime' if opt.get('cyc') else 's_memrealtime'
    nP = 16
    L = lambda s: f"{name}_{s}"
    st = Stamper(a, stamp in (1, 5))
    fs = Fine(a, stamp == 2)
    ff = Fine(a, stamp == 3)
    fp = Fine(a, stamp == 6)
    kernel_begin(a, name)
    a.e("s_cmp_ge_u32 s2, 256")
    a.e(f"s_cbranch_scc1 {L('end')}")
    a.e(f"s_load_dwordx2 s[4:5], s[0:1], {KA['ws']}")
    a.e(f"s_load_dwordx2 s[6:7], s[0:1], {KA['x']}")
    a.e(f"s_load_dwordx2 s[40:41], s[0:1], {KA['wq']}")
    a.e(f"s_load_dwordx2 s[8:9], s[0:1], {KA['wk']}")
    a.e(f"s_load_dwordx2 s[96:97], s[0:1], {KA['wup']}")
    a.e(f"s_load_dwordx2 s[44:45], s[0:1], {KA['dw']}")
    a.e(f"s_load_dwordx4 s[48:51], s[0:1], {KA['out']}")
    a.e(f"s_load_dwordx4 s[52:55], s[0:1], {KA['wv']}")
    a.e(f"s_load_dwordx4 s[56:59], s[0:1], {KA['wdn']}")
    a.e("s_and_b32 s20, s2, 7")
    a.e("s_lshl_b32 s20, s20, 5")
    a.e("s_lshr_b32 s21, s2, 3")
    a.e("s_add_u32 s31, s20, s21")
    if opt.get("map") == 1:
        a.e("s_and_b32 s20, s2, 6")
        a.e("s_lshl_b32 s20, s20, 5")
        a.e("s_lshl_b32 s21, s21, 1")
        a.e("s_add_u32 s31, s20, s21")
        a.e("s_and_b32 s20, s2, 1")
        a.e("s_add_u32 s31, s31, s20")
    a.e("s_lshr_b32 s21, s31, 7")
    a.e("s_and_b32 s22, s31, 1")
    a.e("s_bfe_u32 s23, s31, 0x60001")
    a.e("v_lshrrev_b32 v1, 6, v0")
    a.e("v_and_b32 v2, 63, v0")
    a.e("v_readfirstlane_b32 s16, v1")
    a.e("v_lshlrev_b32 v3, 4, v2")
    a.e("s_mul_i32 s24, s21, 4096000")
    N0 = opt.get("n0", 62)
    a.e(f"s_mul_i32 s25, s22, {125 - 2*N0}")
    a.e(f"s_add_i32 s25, s25, {N0}")
    a.e("s_lshl_b32 s27, s23, 16")
    a.e("s_waitcnt lgkmcnt(0)")
    st(0); ff(0)
    def fin_srd(d, n):
        a.e(f"s_and_b32 s{d+1}, s{d+1}, 0xffff")
        a.e(f"s_mov_b32 s{d+2}, {n}")
        a.e(f"s_mov_b32 s{d+3}, 0x00020000")
    q = Seq(a)
    srd_off(a, 32, 6, "s24", 4096000)
    a.e("v_lshrrev_b32 v4, 3, v2")
    a.e("v_and_b32 v5, 7, v2")
    a.e("v_lshlrev_b32 v5, 4, v5")
    a.e("v_lshl_add_u32 v4, v4, 10, v5")
    a.e("s_lshl_b32 s26, s16, 14")
    a.e("s_add_u32 s26, s26, s27")
    a.e("s_lshl_b32 s28, s22, 9")
    a.e("s_add_u32 s26, s26, s28")
    for s_ in range(16):
        if s_ % 4 == 0: a.e(f"s_xor_b32 s28, s26, {8192*(s_//8) + 512*((s_//4)%2)}")
        q.v(f"buffer_load_dwordx4 v[{16+4*s_}:{19+4*s_}], v4, s[32:35], s28 offen offset:{128*(s_%4)} {opt.get('xmod', 'nt')}", f"x{s_}")
    fin_srd(96, 1048576)
    touches(a, q, L, opt)
    fin_srd(40, 524288); fin_srd(8, 524288); fin_srd(44, 5120)
    make_srd(a, 12, 4, 0x4000000)
    make_srd(a, 92, 50, 256)
    srd_off(a, 36, 48, "s24", 4096000)
    mi = m_issue(a, q)
    def clear():
        a.e("v_mov_b32 v14, 0")
        a.e("v_lshlrev_b32 v13, 2, v2")
        a.e("s_lshl_b32 s26, s31, 2")
        a.e("s_add_u32 s26, s26, s16")
        a.e("s_lshl_b32 s28, s26, 8")
        a.e(f"s_add_u32 s28, s28, {WS_MX}")
        q.v("buffer_store_dword v14, v13, s[12:15], s28 offen sc1", "St")
        a.e("s_lshl_b32 s28, s31, 5")
        a.e("s_add_u32 s28, s28, s16")
        a.e("s_lshl_b32 s28, s28, 2")
        a.e(f"s_add_u32 s28, s28, {WS_FL}")
        a.e("v_and_b32 v13, 48, v2")
        a.e("s_getreg_b32 s26, hwreg(HW_REG_XCC_ID, 0, 4)")
        a.e("v_cmp_eq_u32 vcc, 48, v13")
        a.e("v_mov_b32 v14, s26")
        a.e("s_nop 0")
        a.e("v_cndmask_b32 v14, 0, v14, vcc")
        q.v("buffer_store_dword v14, v13, s[12:15], s28 offen sc1", "St")
    a.e("s_cmp_ge_u32 s23, 63")
    a.e(f"s_cbranch_scc1 {L('aux')}")
    def emit_aux(q0=q, vm0=list(q.vm)):
        a.label(L("aux"))
        q0.vm, q0.lg = list(vm0), []
        for f in mi: f()
        q0.v("buffer_load_dword v0, v7, s[44:47], 0 offen")
        m_addr(a)
        mfin = m_tile(a, q0)
        mfin()
        q0.all()
        a.e("s_barrier")
        signal(a, L, "sig1a", 0, 0)
        signal(a, L, "sig2a", 1, 8)
        signal(a, L, "sig3a", 2, 4)
        a.e("s_lshl_b32 s20, s21, 1")
        a.e("s_add_u32 s20, s20, s22")
        gen_aux(a, L, st, ff)
        signal(a, L, "sig4a", 0, 12, shard=False)
        for k in range(5, 7): st(k)
        for k in range(15): fs(k)
        if stamp in (4, 6):
            for k in range(16): Fine(a, True)(k)
        for k in range(9, 15): ff(k)
        a.e(f"s_branch {L('fin')}")
    qk_part, pv_part = gen_front(a, q, L, st, ff, mi, clear, opt)
    qf = q
    qk_part()
    def tail_consts():
        t = Asm()
        t.e("s_lshl_b32 s26, s22, 2")
        t.e("s_add_u32 s26, s26, s16")
        t.e("s_lshl_b32 s53, s26, 16")
        t.e(f"s_add_u32 s53, s53, {WS_W3}")
        t.e("s_xor_b32 s52, s53, 0x40000")
        t.e("s_lshl_b32 s58, s26, 7")
        t.e("s_add_u32 s58, s58, s27")
        t.e("s_xor_b32 s54, s31, 1")
        t.e("s_lshl_b32 s54, s54, 3")
        t.e("s_add_u32 s54, s54, s16")
        t.e("s_lshl_b32 s54, s54, 13")
        t.e(f"s_add_u32 s54, s54, {WS_GU + 32768}")
        t.e("s_add_u32 s55, s54, 4096")
        t.e("s_lshl_b32 s26, s22, 15")
        t.e("s_add_u32 s50, s52, s26")
        t.e("s_add_u32 s51, s53, s26")
        t.e("s_lshl_b32 s26, s22, 14")
        t.e("s_add_u32 s52, s52, s26")
        t.e("s_add_u32 s53, s53, s26")
        t.e("s_add_u32 s26, s25, 3")
        t.e("s_and_b32 s26, s26, 3")
        t.e("s_lshl_b32 s48, s26, 15")
        t.e("s_add_u32 s26, s25, 1")
        t.e("s_and_b32 s26, s26, 3")
        t.e("s_lshl_b32 s49, s26, 15")
        t.e("s_lshl_b32 s56, s31, 5")
        t.e("s_add_u32 s56, s56, s16")
        t.e("s_lshl_b32 s56, s56, 2")
        t.e(f"s_add_u32 s56, s56, {WS_FL}")
        t.e("s_xor_b32 s57, s56, 128")
        return [x.strip() for x in t.lines]
    a.e("s_mov_b32 s17, s25")
    a.e(f"s_mov_b32 s101, {f2u(-BIG)}")
    def guard(r):
        return [f"v_add_f32 v{r}, v{r}, v{r+1}", f"v_cmp_nle_f32 vcc, s101, v{r}", "s_cmp_eq_u32 s101, 0", "s_cselect_b64 s[28:29], 0, vcc",
                "s_cmp_lg_u64 s[28:29], 0", f"s_cbranch_scc1 {L('redo')}"]

    def dma_group():
        return "s_and_b32 m0, s18, 0x1ffff", [f"buffer_load_dwordx4 v3, s[8:11], s18 offen offset:{1024*j} {opt.get('kvmod', 'sc1')} lds" for j in range(4)]
    def dma_tile():
        for g in range(4):
            pre, ld = dma_group()
            a.e(pre); a.e("s_nop 0")
            for x in ld: a.e(x)
            a.e(f"s_add_u32 s18, s18, {4096 if g < 3 else 32768 - 3*4096}")
    def place_dma(fill, gaps):
        k = 0
        for g in range(4):
            pre, ld = dma_group()
            fill.setdefault(gaps[k] - 1, []).append(pre)
            for j in range(4):
                fill.setdefault(gaps[k], []).append(ld[j]); k += 1
            fill.setdefault(gaps[k - 1] + 1, []).append(f"s_add_u32 s18, s18, {4096 if g < 3 else 32768 - 3*4096}")
    auxl = cnt_load(4, "v11")
    auxc = CNT_OK

    KB = [32, 96]; S = 160; NEGM = 176; E = 192; PK = 200; LS = 204
    VK = 8; VPW = 9; TMP = 10
    MX0 = 208
    def qk_setup():
        a.e("v_and_b32 v4, 15, v2")
        a.e("v_lshrrev_b32 v5, 4, v2")
        a.e("v_and_b32 v6, 0x27, v2")
        a.e("v_and_b32 v7, 8, v2")
        a.e("v_lshl_add_u32 v6, v7, 1, v6")
        a.e("v_and_b32 v7, 16, v2")
        a.e("v_lshrrev_b32 v7, 1, v7")
        a.e("v_add_lshl_u32 v6, v6, v7, 4")
        a.e("s_lshl_b32 s29, s16, 14")
        a.e(f"v_add_u32 v{VK}, s29, v6")
        a.e("s_lshl_b32 s29, s16, 11")
        a.e(f"s_add_u32 s29, s29, {LDS_P}")
        a.e(f"v_lshl_add_u32 v{VPW}, v2, 3, s29")
        for i in range(4):
            a.e(f"v_mov_b32 v{LS+i}, 0")
        for i in range(4):
            a.e(f"v_mov_b32 v{MX0+i}, 0xff800000")
    qk_setup()
    qf.wait("kv0", "qd")
    qf.all(vm=False)
    a.e("s_barrier")
    st(2); ff(10)
    def kread(par, s, imm):
        r = KB[par] + 4 * s
        return f"ds_read_b128 v[{r}:{r+3}], v{VK} offset:{imm + 1024*s}"
    def chain(par, qb, c0):
        out = []
        for s in range(16):
            k = KB[par] + 4 * s; q = 64 * qb + 4 * s; d = S + 4 * qb
            c = c0 if s == 0 else f"v[{d}:{d+3}]"
            out.append(f"{M16} v[{d}:{d+3}], v[{k}:{k+3}], a[{q}:{q+3}], {c}")
        return out
    q = Seq(a)
    mf = [m for qb in range(4) for m in chain(0, qb, "0")]
    tc = tail_consts()
    if opt.get("qe"):
        for n in range(12): q.l(kread(0, n, 0), f"K{n}")
        for n in range(64):
            q.e(mf[n], need=(f"K{n}",))
            if n < 4: q.l(kread(0, 12 + n, 0), f"K{12+n}")
            elif tc: a.e(tc.pop(0))
    else:
        a.e(f"v_add_u32 v7, {LDS_XS}, v3")
        rd = []
        for n in range(64):
            qb, s = n // 16, n % 16
            rd.append((f"ds_read_b128 a[{64*qb+4*s}:{64*qb+4*s+3}], v7 offset:{16384*((s%8)//2) + 8192*(s//8) + 2048*qb + 1024*(s%2)}", f"Q{n}"))
            if qb == 0: rd.append((kread(0, s, 0), f"Q{n}"))
        for _ in range(14): q.l(*rd.pop(0))
        for n in range(64):
            if n % 2 == 0: q.wait(f"Q{n+1}")
            a.e(mf[n])
            for _ in range(2 if n < 14 else 1):
                if rd: q.l(*rd.pop(0))
            if n >= 28 and tc: a.e(tc.pop(0))
        a.label(L("qk_again"))
        a.e("s_barrier")
    assert not tc
    a.e("s_nop 7")
    for qb in range(4):
        d = S + 4 * qb
        a.e(f"v_max3_f32 v{E+qb}, v{d}, v{d+1}, v{d+2}")
        a.e(f"v_max3_f32 v{E+qb}, v{E+qb}, v{d+3}, v{MX0+qb}")
    def group_reduce(r, t, op):
        for sw in ("v_permlane16_swap_b32", "v_permlane32_swap_b32"):
            for qb in range(4):
                a.e(f"v_mov_b32 v{t+qb}, v{r+qb}")
            a.e("s_nop 1")
            for qb in range(4):
                a.e(f"{sw} v{r+qb}, v{t+qb}")
            a.e("s_nop 1")
            for qb in range(4):
                a.e(f"{op} v{r+qb}, v{r+qb}, v{t+qb}")
    group_reduce(E, E + 4, "v_max_f32")
    a.e("s_lshl_b32 s29, s16, 8")
    a.e(f"s_add_u32 s29, s29, {LDS_MX}")
    a.e(f"v_lshl_add_u32 v{TMP}, v4, 4, s29")
    a.e(f"ds_write_b128 v{TMP}, v[{E}:{E+3}]")
    a.e(f"v_xor_b32 v{TMP}, 256, v{TMP}")
    a.e("s_waitcnt vmcnt(0) lgkmcnt(0)")
    a.e("s_barrier")
    a.e(f"ds_read_b128 v[{E+4}:{E+7}], v{TMP}")
    for s in range(8):
        a.e(kread(1, s, 32768))
    a.e("s_waitcnt lgkmcnt(8)")
    for qb in range(4):
        a.e(f"v_max_f32 v{E+qb}, v{E+qb}, v{E+4+qb}")
    for qb in range(4):
        for j in range(4):
            a.e(f"v_sub_f32 v{NEGM+4*qb+j}, 0, v{E+qb}")
    a.e("s_waitcnt lgkmcnt(4)")
    for s in range(8, 16):
        a.e(kread(1, s, 32768))
    for qb in range(4):
        for j in range(4):
            a.e(f"v_add_f32 v{S+4*qb+j}, v{S+4*qb+j}, v{NEGM+4*qb}")
    def softmax_ops(qb, par):
        e = E + 4 * (qb % 2); p = PK + 2 * (qb % 2); d = S + 4 * qb
        ex = [f"v_exp_f32{opt.get('e64', '')} v{e+j}, v{d+j}" for j in range(4)]
        ad = [f"v_add_f32 v{LS+qb}, v{LS+qb}, v{e+j}" for j in range(4)]
        cv = [f"v_cvt_pk_bf16_f32 v{p+j}, v{e+2*j}, v{e+2*j+1}" for j in range(2)]
        wr = f"ds_write_b64 v{VPW}, v[{p}:{p+1}] offset:{par*4096 + qb*512}"
        return ex, ad, cv, wr
    ex, ad, cv, wr = softmax_ops(0, 0)
    for x in ex + ["s_nop 0"] + cv + ad + [wr]: a.e(x)
    a.e("s_waitcnt lgkmcnt(1)")
    fill = {}
    ops = []
    for qb in range(1, 4):
        ex, ad, cv, wr = softmax_ops(qb, 0)
        ops += ex + [ad[0]] + cv + ad[1:] + [wr]
    for i, x in enumerate(ops):
        fill.setdefault(i * 15 // len(ops), []).append(x)
    ROT = opt.get("rot", 0)
    emit_interval(a, chain(1, 0, f"v[{NEGM}:{NEGM+3}]") + chain(1, 1, f"v[{NEGM+4}:{NEGM+7}]")[:ROT], fill)
    a.e("s_waitcnt lgkmcnt(0)")
    a.e("s_sub_u32 s17, s17, 1")
    a.e("s_barrier")

    XT = ["buffer_load_dword v0, v7, s[32:35], s40 offen", "s_add_u32 s40, s40, 1024"]
    def qk_interval(par, lo=0, hi=None):
        mf = []
        for c in range(5):
            qb = (c + 1) % 4
            mf += chain(par if c < 3 else par ^ 1, qb, f"v[{NEGM+4*qb}:{NEGM+4*qb+3}]")
        mf = mf[ROT:64 + ROT]
        fill = {}
        F_ = lambda g, x: fill.setdefault(g, []).append(x)
        rgaps = opt.get("kg_", [1, 2, 3, 12, 13, 14, 16, 17, 18, 28, 29, 30, 32, 33, 34, 35])
        if par == 1: F_(rgaps[0] - 1, f"v_xor_b32 v{VK}, 0x10000, v{VK}")
        imm = 32768 * (par ^ 1)
        for s in range(16):
            F_(rgaps[s], kread(par ^ 1, s, imm))
        sm = opt.get("sm", [4, 5, 6, 7, 8, 8, 9, 10, 10, 11, 11])
        for c in range(4):
            ex, ad, cv, wr = softmax_ops(c, par)
            for g, x in zip(sm, ex + cv + [wr] + ad): F_(16 * c + g - ROT, x)
        kw = 47 - ROT
        nwr = sum(1 for c in range(4) if rgaps[-1] <= 16 * c + sm[6] - ROT <= kw)
        F_(kw, f"s_waitcnt lgkmcnt({nwr})")
        F_(kw + 1, "s_sub_u32 s17, s17, 1")
        if par == 1:
            F_(kw - 3, "s_cmp_lt_u32 s17, s40")
            fill.setdefault(kw - 2, []).extend([f"s_cbranch_scc1 {L('touch')}", L("touch_ret") + ":"])
        if stamp == 7:
            F_(kw + 2, "s_mov_b32 m0, s17"); F_(kw + 3, "v_writelane_b32 v230, s60, m0"); F_(kw + 3, "s_memtime s[60:61]")
        if opt.get("kt"):
            F_(opt["kt"][1], "buffer_load_dword v0, v3, s[8:11], s41 offen sc1"); F_(46, "s_add_u32 s41, s41, 32768")
        XE = opt.get("xe", 0)
        F_(59 if XE else 62, "s_cmp_eq_u32 s17, 0")
        if XE: F_(60, f"s_cbranch_scc1 {L('qk_exit')}")
        F_(opt.get("qw", 63), "s_waitcnt lgkmcnt(0)"); F_(63, "s_barrier")
        for c in range(4):
            last, first = 16 * c - 1 - ROT, 16 * c + sm[0] - ROT
            n = first - last + sum(len([x for x in fill.get(g % 64, []) if not x.endswith(":")]) for g in range(last, first))
            g = last + 2
            while n < 8:
                F_(g % 64, "s_nop 0"); n += 1; g += 1
                assert g <= first
        emit_interval(a, mf, fill, lo, hi)

    if stamp == 7:
        a.e("v_mov_b32 v230, 0")
        a.e("s_memtime s[60:61]")
    a.e("v_and_b32 v11, 3, v2")
    a.e("v_lshlrev_b32 v11, 6, v11")
    if opt.get("kt"):
        a.e("s_lshr_b32 s41, s2, 4")
        a.e("s_lshl_b32 s41, s41, 1")
        a.e("s_add_u32 s41, s41, s16")
        a.e("s_lshl_b32 s41, s41, 10")
        a.e(f"s_add_u32 s41, s41, {32768 * opt['kt'][0]}")
    a.e("s_lshr_b32 s40, s31, 1")
    a.e(f"s_and_b32 s40, s40, {opt.get('xs', 15)}")
    a.e("s_lshl_b32 s40, s40, 1")
    a.e(f"s_add_u32 s40, s40, {opt.get('xb', 12)}")
    st(3); ff(11)
    QB = opt.get("qbe", 0)
    if QB:
        a.e(f"s_branch {L('qk_in')}")
        a(".p2align 6")
        a.label(L("qk_loop"))
        XE = opt.get("xe", 0)
        qk_interval(0, QB)
        if not XE: a.e(f"s_cbranch_scc1 {L('qk_done')}")
        a.label(L("qk_in"))
        qk_interval(1)
        if not XE: a.e(f"s_cbranch_scc1 {L('qk_done')}")
        qk_interval(0, 0, QB)
        a.e(f"s_branch {L('qk_loop')}")
        a.label(L("qk_exit"))
        a.e("s_waitcnt lgkmcnt(0)")
        a.e("s_barrier")
    else:
        a(".p2align 6")
        a.label(L("qk_loop"))
        qk_interval(1)
        a.e(f"s_cbranch_scc1 {L('qk_done')}")
        qk_interval(0)
        a.e(f"s_cbranch_scc0 {L('qk_loop')}")
    a.label(L("qk_done"))
    def tl(srd, so):
        a.e("v_lshlrev_b32 v12, 7, v2")
        a.e(f"buffer_load_dword v0, v12, s[{srd}:{srd+3}], {so} offen")
    def b_code():
        a.e("s_getpc_b64 s[28:29]")
        a.label(L("pc0"))
        a.e(f"s_sub_u32 s28, s28, {L('pc0')} - {L('qk_done')}")
        a.e("s_subb_u32 s29, s29, 0")
        a.e("s_lshr_b32 s30, s2, 3")
        a.e("s_lshl_b32 s30, s30, 1")
        a.e("s_add_u32 s30, s30, s16")
        a.e("s_lshl_b32 s30, s30, 10")
        a.e("v_lshl_add_u32 v12, v2, 4, s30")
        a.e(f"v_min_u32 v12, {L('end')} - {L('qk_done')}, v12")
        a.e("global_load_dword v0, v12, s[28:29]")
    def b_w(part):
        def f():
            a.e("s_lshr_b32 s30, s2, 3")
            a.e("s_lshl_b32 s30, s30, 1")
            a.e("s_add_u32 s30, s30, s16")
            a.e("s_lshl_b32 s30, s30, 13")
            a.e(f"s_add_u32 s30, s30, {WS_W3 + 524288*part}")
            tl(12, "s30")
        return f
    ST = 212
    foldl = "buffer_load_dword v13, off, s[92:95], 0 offset:12 sc1"
    def b_c3():
        a.e("s_waitcnt vmcnt(0)")
        poll(a, Seq(a), L, "qk_c3", [auxl], auxc, "aux", slp=16)
    def b_c4():
        a.e("s_waitcnt vmcnt(0)")
        poll(a, Seq(a), L, "qk_c4", [foldl], ["v_readfirstlane_b32 s28, v13", "s_cmp_ge_u32 s28, 4"], "aux", slp=16)
    def b_small():
        a.e("s_mul_i32 s28, s16, 34")
        a.e("s_lshl_b32 s29, s23, 6")
        a.e("s_add_u32 s28, s28, s29")
        a.e("s_sub_u32 s28, s28, 2")
        a.e(f"v_add_u32 v{ST+16}, s28, v2")
        a.e(f"v_max_i32 v12, 0, v{ST+16}")
        a.e(f"v_min_i32 v12, {T-1}, v12")
        a.e("v_lshlrev_b32 v12, 3, v12")
        a.e("s_lshr_b32 s29, s31, 7")
        a.e("s_lshl_b32 s29, s29, 15")
        for ct in range(8):
            a.e(f"s_add_u32 s30, s29, {WS_ST + 0x10000*ct}")
            a.e(f"buffer_load_dwordx2 v[{ST+2*ct}:{ST+2*ct+1}], v12, s[12:15], s30 offen sc1")
        a.e("s_lshl_b32 s28, s16, 1")
        a.e("s_add_u32 s28, s28, s23")
        a.e("s_sub_u32 s28, s28, 1")
        a.e("s_max_i32 s28, s28, 0")
        a.e("s_min_i32 s28, s28, 62")
        a.e("s_sub_u32 s28, s28, s23")
        a.e("s_lshl_b32 s28, s28, 1")
        a.e("s_add_u32 s28, s28, s31")
        a.e("s_lshl_b32 s28, s28, 16")
        a.e("s_xor_b32 s29, s16, 1")
        a.e(f"s_mul_i32 s29, s29, {62*512}")
        a.e("s_add_u32 s28, s28, s29")
        a.e(f"s_add_u32 s28, s28, {WS_GU}")
        a.e("s_lshl_b32 s29, s16, 10")
        a.e(f"s_add_u32 m0, s29, {LDS_HALO}")
        a.e("v_lshrrev_b32 v12, 5, v2")
        a.e("buffer_load_dwordx4 v3, s[12:15], s28 offen sc1 lds")
        a.e("v_lshl_add_u32 v12, v12, 9, v3")
        a.e("s_lshl_b32 s28, s22, 9")
        for i in range(3):
            a.e(f"s_mov_b32 m0, {LDS_TAP + 1024*i}")
            a.e(f"s_add_u32 s29, s28, {2048*i}")
            a.e("buffer_load_dwordx4 v12, s[44:47], s29 offen lds")
    def b_stat():
        a.e("s_waitcnt vmcnt(0)")
        for ct in range(1, 8):
            a.e(f"v_add_f32 v{ST}, v{ST}, v{ST+2*ct}")
            a.e(f"v_add_f32 v{ST+1}, v{ST+1}, v{ST+2*ct+1}")
        a.e(f"v_mul_f32 v{ST}, {f2u(1/512)}, v{ST}")
        a.e(f"v_mul_f32 v{ST+1}, {f2u(1/512)}, v{ST+1}")
        a.e(f"v_fma_f32 v{ST+1}, -v{ST}, v{ST}, v{ST+1}")
        a.e(f"v_max_f32 v{ST+1}, 0, v{ST+1}")
        a.e(f"v_add_f32 v{ST+1}, {f2u(1e-5)}, v{ST+1}")
        a.e(f"v_rsq_f32 v{ST+1}, v{ST+1}")
        a.e(f"v_cmp_gt_u32 vcc, {T}, v{ST+16}")
        a.e(f"v_mul_f32 v{ST}, v{ST}, v{ST+1}")
        a.e(f"v_sub_f32 v{ST}, 0, v{ST}")
        a.e(f"v_cndmask_b32 v{ST+2}, 0, v{ST+1}, vcc")
        a.e(f"v_cndmask_b32 v{ST+3}, 0, v{ST}, vcc")
        a.e(f"s_mul_i32 s28, s16, {34*8}")
        a.e(f"s_add_u32 s28, s28, {LDS_STT}")
        a.e("v_lshl_add_u32 v12, v2, 3, s28")
        a.e(f"ds_write_b64 v12, v[{ST+2}:{ST+3}]")
    def b_x(r0):
        def f():
            a.e("s_lshl_b32 s30, s22, 1")
            a.e("s_add_u32 s30, s30, s16")
            a.e("s_lshl_b32 s30, s30, 14")
            a.e("s_add_u32 s30, s30, s27")
            a.e(f"s_add_u32 s30, s30, {r0*1024}")
            tl(32, "s30")
        return f
    tb_fns = B = dict(code=b_code, l3=lambda: a.e(auxl), c3=b_c3, small=b_small, stat=b_stat, x0=b_x(0), x8=b_x(8), l4=lambda: a.e(foldl), c4=b_c4, w1=b_w(1), w0=b_w(0))
    st(4); fs(0); ff(13); fp(0)
    if stamp == 7:
        a.e("s_lshl_b32 s26, s2, 1")
        a.e("s_add_u32 s26, s26, s16")
        a.e("s_lshl_b32 s26, s26, 8")
        a.e(f"s_add_u32 s26, s26, {0x3F00000}")
        a.e("v_lshlrev_b32 v231, 2, v2")
        a.e("buffer_store_dword v230, v231, s[12:15], s26 offen")
    q = Seq(a)
    group_reduce(LS, E, "v_add_f32")
    a.e(f"v_mov_b32 v{E+2}, v{NEGM}")
    a.e(f"v_mov_b32 v{E+3}, v{LS}")
    for qb in range(1, 4):
        a.e(f"v_cmp_eq_u32 vcc, {qb}, v5")
        a.e("s_nop 1")
        a.e(f"v_cndmask_b32 v{E+2}, v{E+2}, v{NEGM+4*qb}, vcc")
        a.e(f"v_cndmask_b32 v{E+3}, v{E+3}, v{LS+qb}, vcc")
    a.e(f"v_or_b32 v{E+3}, 0x80000000, v{E+3}")
    a.e("s_lshl_b32 s28, s16, 9")
    a.e("s_lshl_b32 s30, s31, 10")
    a.e("s_add_u32 s30, s30, s28")
    a.e(f"s_add_u32 s30, s30, {WS_MX}")
    a.e(f"s_add_u32 s28, s28, {LDS_ML}")
    a.e(f"v_lshlrev_b32 v{E+4}, 3, v2")
    a.e(f"v_add_u32 v{TMP}, s28, v{E+4}")
    q.l(f"ds_write_b64 v{TMP}, v[{E+2}:{E+3}]")
    a.e(f"v_add_u32 v{TMP}, {LDS_ML + 4}, v{E+4}")
    tb_fns["stat"]()
    q.all(vm=False)
    fs(1)
    a.e("s_barrier")
    fs(2)
    q.l(f"ds_read2st64_b32 v[{E}:{E+1}], v{TMP} offset0:0 offset1:2", "lsum")
    a.e("s_lshl_b32 s28, s16, 5")
    conv_addr(a, 16, "s28")
    q.wait("lsum")
    for x in guard(E): a.e(x)
    release(a, q, L, "rm", None, f"buffer_store_dwordx2 v[{E+2}:{E+3}], v{E+4}, s[12:15], s30 offen", wb=False)
    cv = Conv(a, q, 16)
    cv.prep()
    fs(3)
    PF = opt.get("pf", 10); n = 0
    for j in range(20):
        if j in (0, 2, 4, 6, 8, 11, 14, 17): fp(1 + (0, 2, 4, 6, 8, 11, 14, 17).index(j))
        cv.row(j)
        if j >= opt.get("qa", 5):
            for _ in range(3):
                if n < 4 * PF:
                    aload(a, q, n // 4, n % 4); n += 1
    while n < 4 * PF:
        aload(a, q, n // 4, n % 4); n += 1
    fs(4)
    a.e(f"s_branch {L('tail')}")
    a.label(L("touch"))
    THR = 2 * int(opt.get("blocks", "2")[0]) + 2
    a.e(f"s_cmp_eq_u32 s40, {THR}")
    a.e(f"s_cbranch_scc1 {L('touchb')}")
    a.e(f"s_mov_b32 s40, {THR}")
    B["x0"](); B["x8"]()
    a.e(f"s_branch {L('touch_ret')}")
    a.label(L("touchb"))
    a.e("s_lshr_b32 s26, s17, 1")
    spec = opt.get("blocks", "2:l3,l4 1:c3,c4,small")
    blocks = {int(x.split(":")[0]): [B[y] for y in x.split(":")[1].split(",")] for x in spec.split()}
    for kx, fns in blocks.items():
        a.e(f"s_cmp_lg_u32 s26, {kx}")
        a.e(f"s_cbranch_scc1 {L('touch%d' % kx)}")
        for f in fns: f()
        a.e(f"s_branch {L('touch_ret')}")
        a.label(L("touch%d" % kx))
    a.e(f"s_branch {L('touch_ret')}")

    VB = [16, 80]; PR = [144, 160]
    VV = 8; VPR = 9; PH = opt.get('ph', 2)
    def oreg(db, qb):
        return (f"a[{4*qb}:{4*qb+3}]", None) if db == 0 else (f"v[{16*db+4*qb}:{16*db+4*qb+3}]", 16 * db + 4 * qb)
    def vread(par, db, kb):
        r = VB[par] + 4 * db + 2 * kb
        return f"ds_read_b64_tr_b16 a[{r}:{r+1}], v{VV if db < 8 else 11} offset:{32768*par + 16384*kb + 512*(db%8)}"
    def pvm(par, db):
        out = []
        for qb in range(4):
            d = oreg(db, qb)[0]; v = VB[par] + 4 * db; p = PR[par] + 4 * qb
            out.append(f"{M16} {d}, a[{v}:{v+3}], a[{p}:{p+3}], {d}")
        return out
    def pv_setup():
        a.e("s_sub_u32 s19, s16, 2")
        for x in tail_consts(): a.e(x)
        a.e("v_lshrrev_b32 v4, 5, v2")
        a.e("v_lshlrev_b32 v4, 8, v4")
        a.e("v_and_b32 v5, 2, v2")
        a.e("v_lshl_add_u32 v4, v5, 6, v4")
        a.e("v_and_b32 v5, 28, v2")
        a.e("v_lshl_add_u32 v4, v5, 2, v4")
        a.e("v_and_b32 v5, 1, v2")
        a.e("v_lshl_add_u32 v4, v5, 3, v4")
        a.e("s_lshl_b32 s29, s19, 13")
        a.e("s_lshl_b32 s28, s22, 12")
        a.e("s_add_u32 s28, s28, s29")
        a.e("v_add_u32 v11, s28, v4")
        a.e(f"v_xor_b32 v{VV}, 0x1000, v11")
        a.e("s_lshl_b32 s29, s19, 12")
        a.e("s_add_u32 s29, s29, s48")
        a.e("v_add_u32 v10, s29, v3")
        a.e("s_lshl_b32 s40, s31, 2")
        a.e("s_add_u32 s40, s40, s19")
        a.e("s_lshl_b32 s40, s40, 14")
        a.e(f"s_add_u32 s40, s40, {WS_GU + 32768}")
        a.e("s_lshl_b32 s28, s31, 16")
        a.e(f"s_add_u32 s28, s28, {WS_GU}")
        a.e("s_sub_u32 s28, s28, s10")
        a.e("s_add_u32 s98, s4, s28")
        a.e("s_addc_u32 s99, s5, 0")
        a.e("s_and_b32 s99, s99, 0xffff")
        a.e("s_add_u32 s100, s10, 65536")
        if opt.get("xr", 1):
            a.e("s_lshl_b32 s28, s22, 15")
            a.e("s_add_u32 s28, s28, s27")
            a.e("s_sub_u32 s3, 4096000, s28")
            a.e("s_add_u32 s3, s3, s100")
            a.e("s_add_u32 s96, s32, s28")
            a.e("s_addc_u32 s97, s33, 0")
            a.e("s_sub_u32 s96, s96, s100")
            a.e("s_subb_u32 s97, s97, 0")
        a.e(f"s_mov_b32 s29, {LDS_P}")
        a.e(f"v_lshl_add_u32 v{VPR}, v2, 3, s29")
        a.e(f"v_add_u32 v1, {LDS_ML + 4 - LDS_P}, v{VPR}")
        for g in range(1, 4): a.e(f"v_add_u32 v{4+g}, {4096*g}, v3")
    def pv_zero():
        for i in range(16, 256, 2):
            a.e(f"v_pk_mul_f32 v[{i}:{i+1}], 0, 0")
        for i in list(range(16)) + list(range(VB[1] + 64 - 4 * PH, VB[1] + 64)) + list(range(PR[1], PR[1] + 16)):
            a.e(f"v_accvgpr_write_b32 a{i}, 0")
    def emit_pv_again():
        a.label(L("pv"))
        pv_setup()
        a.e("s_lshl_b32 s18, s19, 14")
        a.e("s_add_u32 s18, s18, 65536")
        dma_tile()
        pv_zero()
        a.e("s_barrier")
        a.e("s_waitcnt vmcnt(16)")
        a.e("s_barrier")
        dma_tile()
        for db in range(16):
            for kb in range(2):
                a.e(vread(0, db, kb))
            if db % 4 == 3: a.e("s_waitcnt lgkmcnt(4)")
        a.e(f"s_waitcnt vmcnt({nP}) lgkmcnt(0)")
        a.e(f"s_branch {L('pv_go')}")
    def setup1():
        pv_setup()
        a.e(f"s_mov_b32 s101, {f2u(-BIG)}")
    pv_part(setup1, [vread(0, db, kb) for db in range(16) for kb in range(2)], pv_zero)
    a.label(L("pv_go"))
    a.e("s_lshl_b32 s18, s19, 14")
    a.e("s_add_u32 s18, s18, 131072")
    a.e("s_sub_u32 s17, s25, 1")
    a.e("s_barrier")

    pvq = []
    MR = 12; MO = 4; AL = 88; TT = 96; RX = 16
    mll = [f"buffer_load_dwordx2 v[{MR+2*w}:{MR+2*w+1}], v9, s[12:15], s42 offen offset:{512*w} {opt.get('pm', 'sc1')}" for w in range(2)]
    ol = f"buffer_load_dword v11, off, s[12:15], s57 offset:24 {opt.get('pm', 'sc1')}"
    def pv_interval(par, last=False, lo=0, hi=None):
        mf = [m for db in range(16 - PH, 16) for m in pvm(par, db)]
        for db in range(16 if last else 16 - PH):
            mf += pvm(par ^ 1, db)
        fill = {}
        for qb in range(4):
            p = PR[par ^ 1] + 4 * qb
            fill.setdefault(opt.get('pg', [0, 0, 1, 1])[qb], []).append(f"ds_read2st64_b64 a[{p}:{p+3}], v{VPR} offset0:{8*(par^1)+qb} offset1:{8*(par^1)+4+qb}")
        rg = opt.get("rg", [8 + 3 * (i // 2) + (i % 2) for i in range(32)])
        fill.setdefault(4 * PH - 1, []).append(f"s_waitcnt lgkmcnt({0 if last else sum(1 for g in rg if g < 4 * PH - 1)})")
        if last:
            fs(0); fp(0)
            q = Seq(a)
            ops = []
            for sp in range(4):
                for qb in range(4):
                    o = []
                    if sp == 0:
                        o += [f"v_accvgpr_read_b32 v{4+j}, a{4*qb+j}" for j in range(4)]
                        lo = 4
                    else:
                        lo = oreg(2 * sp, qb)[1]
                    hi = oreg(2 * sp + 1, qb)[1]
                    o += [f"v_cvt_pk_bf16_f32 v{hi+3}, v{hi+2}, v{hi+3}", f"v_cvt_pk_bf16_f32 v{hi+2}, v{hi}, v{hi+1}",
                          f"v_cvt_pk_bf16_f32 v{hi}, v{lo}, v{lo+1}", f"v_cvt_pk_bf16_f32 v{hi+1}, v{lo+2}, v{lo+3}"]
                    if qb == 0: o.append(f"s_add_u32 s41, s40, {4096*sp}")
                    o.append(f"buffer_store_dwordx4 v[{hi}:{hi+3}], v3, s[12:15], s41 offen offset:{1024*qb} {opt.get('sm_', 'nt')}")
                    ops += [(4 * PH + 8 * sp + 4 + qb + 6, x) for x in o]
            late = [lambda x=x: a.e(x) for x in ["v_lshlrev_b32 v9, 3, v2", "s_xor_b32 s26, s31, 1", "s_lshl_b32 s26, s26, 10", f"s_add_u32 s42, s26, {WS_MX}"]]
            late += [lambda w=w: q.v(mll[w], "ML") for w in range(2)]
            late += [lambda: a.e("v_subrev_u32 v8, 4, v1"),
                     lambda: q.l(f"ds_read2st64_b64 v[{MO}:{MO+3}], v8 offset0:0 offset1:1", "MLo")]
            late += [lambda x=x: a.e(x) for x in ["v_and_b32 v1, 15, v2", "v_lshlrev_b32 v1, 2, v1", "s_xor_b32 s40, s40, 0x10000", "s_mov_b32 s43, 0xffff0000", "v_mov_b32 v0, 1"]]
            na = 0
            for i, m in enumerate(mf):
                a.e(m)
                for f in fill.get(i, []): a.e(f)
                if i == 12:
                    fs(1)
                    a.e("s_barrier")
                    fs(2)
                    q.l("ds_read2st64_b32 v[8:9], v1 offset0:0 offset1:2", "lsum")
                if i == 17:
                    q.wait("lsum")
                    for x in guard(8): a.e(x)
                if i > 12:
                    n = 0
                    while ops and ops[0][0] <= i and n < 3:
                        x = ops.pop(0)[1]; n += 1
                        if x.startswith("buffer"): q.v(x, "Ost")
                        else: a.e(x)
                    if n and not ops: fp(1)
                    if n == 0:
                        if not ops and late: late.pop(0)()
                        else: a.e("s_nop 0")
            assert not ops
            while late: late.pop(0)()
            fs(3)
            pvq.append((q, na))
            return
        if par == 0:
            fill.setdefault(5 if opt.get("sw") else 2, []).extend([f"v_xor_b32 v{VV}, 0x10000, v{VV}", "v_xor_b32 v11, 0x10000, v11"])
        if opt.get("sw"):
            for g, x in zip((60, 60, 61, 61), ["s_cmp_eq_u32 s17, 4", "s_cselect_b64 s[8:9], s[98:99], s[8:9]", "s_cselect_b32 s10, s100, s10"]):
                fill.setdefault(g, []).append(x)
        else:
            for g, x in enumerate(["s_cmp_eq_u32 s17, 3", "s_cselect_b64 s[8:9], s[98:99], s[8:9]", "s_cselect_b32 s10, s100, s10"]):
                fill.setdefault(3 + g, []).append(x)
        for i in range(32):
            fill.setdefault(rg[i], []).append(vread(par, i // 2, i % 2))
        if opt.get("ps", 0) == 0:
            place_dma(fill, opt.get("dg", [10 + 3 * i for i in range(16)]))
        else:
            dg = opt["dg"]
            for g in range(4):
                fill.setdefault(opt["mg"][g], []).append("s_and_b32 m0, s18, 0x1ffff" if g == 0 else "s_add_u32 m0, m0, 4096")
                for j in range(4):
                    fill.setdefault(dg[4 * g + j], []).append(f"buffer_load_dwordx4 v{3 if g == 0 else 4 + g}, s[8:11], s18 offen offset:{1024*j} sc1 lds")
            fill.setdefault(opt["mg"][4], []).append("s_add_u32 s18, s18, 32768")
        if opt.get("xr", 1):
            for g, x in zip((58, 59, 59), ["s_cmp_eq_u32 s17, 1", "s_cselect_b64 s[8:9], s[96:97], s[8:9]", "s_cselect_b32 s10, s3, s10"]):
                fill.setdefault(g, []).append(x)
        if opt.get("xe"):
            fill.setdefault(6, []).append("s_sub_u32 s17, s17, 1")
            fill.setdefault(61, []).append("s_cmp_eq_u32 s17, 0")
            fill.setdefault(62, []).append(f"s_cbranch_scc1 {L('pv_exit%d' % par)}")
        else:
            fill.setdefault(62 if opt.get("sw") else 60, []).append("s_sub_u32 s17, s17, 1")
            fill.setdefault(62, []).append("s_cmp_eq_u32 s17, 0")
        fill.setdefault(63, []).extend([f"s_waitcnt vmcnt({nP}) lgkmcnt(0)", "s_barrier"])
        emit_interval(a, mf, fill, lo, hi)

    st(3); ff(11)
    PB = opt.get("pbe", 0)
    if PB:
        a.e(f"s_branch {L('pv_in')}")
        a(".p2align 6")
        a.label(L("pv_loop"))
        pv_interval(0, False, PB)
        if not opt.get("xe"): a.e(f"s_cbranch_scc1 {L('pv_last1')}")
        a.label(L("pv_in"))
        pv_interval(1)
        if not opt.get("xe"): a.e(f"s_cbranch_scc1 {L('pv_last0')}")
        pv_interval(0, False, 0, PB)
        a.e(f"s_branch {L('pv_loop')}")
    else:
        a(".p2align 6")
        a.label(L("pv_loop"))
        pv_interval(1)
        a.e(f"s_cbranch_scc1 {L('pv_last0')}")
        pv_interval(0)
        a.e(f"s_cbranch_scc0 {L('pv_loop')}")
    if opt.get("xe"):
        a.label(L("pv_exit0"))
        pv_interval(0, False, 63)
    a.label(L("pv_last1"))
    pv_interval(1, True)
    a.e(f"s_branch {L('pv_stage')}")
    if opt.get("xe"):
        a.label(L("pv_exit1"))
        pv_interval(1, False, 63)
    a.label(L("pv_last0"))
    pv_interval(0, True)
    a.label(L("pv_stage"))
    st(4); ff(13)
    q, n = pvq[0]
    assert pvq[1][0].vm == q.vm and pvq[1][0].lg == q.lg
    fp(2)
    release(a, q, L, "ro", "Ost", "buffer_store_dword v0, off, s[12:15], s56 offset:24")
    fp(3)
    poll(a, q, L, "ml", mll, [f"v_and_b32 v8, v{MR+1}, v{MR+3}", "v_cmp_gt_i32 vcc, 0, v8", "s_nop 1", "s_cmp_eq_u64 vcc, -1"], "ML", slp=1)
    q.wait("MLo")
    for x in [f"v_add_f32 v{MR+1}, v{MR+1}, v{MR+3}", f"v_add_f32 v{MO+1}, v{MO+1}, v{MO+3}",
              f"v_min_f32 v8, v{MR}, v{MO}", f"v_sub_f32 v{MR}, v8, v{MR}", f"v_sub_f32 v{MO}, v8, v{MO}",
              f"v_exp_f32 v{MR}, v{MR}", f"v_exp_f32 v{MO}, v{MO}", f"v_mul_f32 v{MR+1}, v{MR+1}, v{MR}",
              f"v_fmac_f32 v{MR+1}, v{MO+1}, v{MO}", f"v_mul_f32 v{MR+1}, {f2u(XSC)}, v{MR+1}", f"v_rcp_f32 v{MR+1}, v{MR+1}", "s_nop 0",
              f"v_mul_f32 v{MO}, v{MO}, -v{MR+1}", f"v_mul_f32 v{MR}, v{MR}, -v{MR+1}"]: a.e(x)
    for tb in range(4):
        q.l(f"ds_bpermute_b32 v{AL+2*tb}, v1, v{MO} offset:{64*tb}", "AL")
        q.l(f"ds_bpermute_b32 v{AL+2*tb+1}, v1, v{MR} offset:{64*tb}", "AL")
    q.wait("AL")
    for db in range(8, 16):
        for qb in range(4):
            r = oreg(db, qb)[1]
            for j in (0, 2):
                a.e(f"v_pk_mul_f32 v[{r+j}:{r+j+1}], v[{r+j}:{r+j+1}], v[{AL+2*qb}:{AL+2*qb+1}] op_sel_hi:[1,0]")
        if db == opt.get("od", 12): q.v(ol, "of")
        for _ in range(opt.get("an", 2)):
            if n < 4 * PF and db < opt.get("od", 12):
                aload(a, q, n // 4, n % 4); n += 1
    while n < opt.get("pa", 0):
        aload(a, q, n // 4, n % 4); n += 1
    poll(a, q, L, "o", [ol], ["v_readfirstlane_b32 s26, v11", "s_cmp_eq_u32 s26, 1"], "of", slp=1)
    acquire(a, L, "ao")
    fp(4)
    for f in range(16):
        if f % 4 == 0: a.e(f"s_add_u32 s41, s40, {1024*f}")
        q.v(f"buffer_load_dwordx4 v[{RX+4*f}:{RX+4*f+3}], v3, s[12:15], s41 offen offset:{1024*(f%4)} {opt.get('lm', 'sc1')}", f"O{f}")
    fp(5)
    fp(6)
    for f in range(16):
        sp, qb = f // 4, f % 4
        q.wait(f"O{f}")
        if f in (0, 8): fp(7 + f // 8)
        for j in range(4):
            a.e(f"v_lshlrev_b32 v{TT+2*j}, 16, v{RX+4*f+j}")
            a.e(f"v_and_b32 v{TT+2*j+1}, s43, v{RX+4*f+j}")
        for j in range(4):
            r = oreg(8 + 2 * sp + j // 2, qb)[1] + 2 * (j % 2)
            a.e(f"v_pk_fma_f32 v[{TT+2*j}:{TT+2*j+1}], v[{TT+2*j}:{TT+2*j+1}], v[{AL+2*qb}:{AL+2*qb+1}], v[{r}:{r+1}] op_sel:[0,1,0] op_sel_hi:[1,1,1]")
        for j in range(4):
            a.e(f"v_cvt_pk_bf16_f32 v{RX+4*f+j}, v{TT+2*j}, v{TT+2*j+1}")
        q.l(f"ds_write_b128 v10, v[{RX+4*f}:{RX+4*f+3}] offset:{8192*qb + 1024*sp}")
        for _ in range(2):
            if n < 4 * PF:
                aload(a, q, n // 4, n % 4); n += 1
    while n < 4 * PF:
        aload(a, q, n // 4, n % 4); n += 1
    fs(4)
    a.label(L("tail"))
    ff(14); fp(9)
    gen_tail(a, L, st, fs, opt)
    a.label(L("fin"))
    if stamp == 1:
        a.e("s_waitcnt vmcnt(0)")
        st(7)
        emit_stamps(a, 8, nw=8, off=WS_STAMP + 0x200000)
    if stamp == 5:
        a.e("s_waitcnt vmcnt(0)")
        st(7)
        a.e("s_cmp_lg_u32 s16, 0")
        a.e(f"s_cbranch_scc1 {L('end')}")
        a.e("s_mov_b64 exec, 1")
        a.e("s_cmp_lg_u32 s2, 0")
        a.e(f"s_cbranch_scc1 {L('dbg2')}")
        for k in range(1, 8):
            a.e(f"s_sub_u32 s26, s{62+4*k}, s62")
            a.e("v_mov_b32 v8, s26")
            a.e(f"buffer_store_dword v8, off, s[92:95], 0 offset:{8+4*k}")
        a.e("s_sub_u32 s26, s76, s72")
        a.e("v_mov_b32 v8, s26")
        a.e("buffer_store_dword v8, off, s[92:95], 0 offset:40")
        a.label(L("dbg2"))
        a.e("s_cmp_lg_u32 s2, 255")
        a.e(f"s_cbranch_scc1 {L('end')}")
        for k in range(1, 6):
            a.e(f"s_sub_u32 s26, s{62+4*k}, s62")
            a.e("v_mov_b32 v8, s26")
            a.e(f"buffer_store_dword v8, off, s[92:95], 0 offset:{40+4*k}")
    if stamp in (2, 3, 4, 6):
        for k in range(10, 16): fp(k)
        a.e("s_waitcnt vmcnt(0)")
        fs(15)
        ff(15)
        emit_fine(a, off=WS_STAMP + 0x300000)
    a.label(L("end"))
    a.e("s_endpgm")
    a.label(L("redo"))
    a.e("s_waitcnt vmcnt(0) lgkmcnt(0)")
    a.e("s_mov_b32 s101, 0")
    a.e(f"s_mul_i32 s28, s22, {32768 * N0}")
    a.e("s_add_u32 s28, s28, s24")
    a.e("s_lshl_b32 s26, s25, 15")
    srd_off(a, 8, 4, "s28", "s26")
    a.e("s_lshl_b32 s19, s16, 13")
    qk_setup()
    a.e("s_mov_b32 s17, s25")
    def redo_dma(slot):
        for i in range(8):
            if i % 4 == 0:
                a.e(f"s_add_u32 m0, s19, {32768*slot + 1024*i}")
                a.e(f"s_add_u32 s29, s18, {1024*i}")
            a.e(f"buffer_load_dwordx4 v3, s[8:11], s29 offen offset:{1024*(i%4)} sc1 lds")
    a.label(L("redo_loop"))
    a.e("s_sub_u32 s17, s17, 1")
    a.e("s_lshl_b32 s18, s17, 15")
    a.e("s_add_u32 s18, s18, s19")
    a.e("s_barrier")
    redo_dma(0)
    a.e("s_waitcnt vmcnt(0)")
    a.e("s_barrier")
    a.e("s_cmp_ge_u32 s16, 2")
    a.e(f"s_cbranch_scc1 {L('redo_next')}")
    for n in range(16):
        a.e(kread(0, n, 0))
        if n == 11: a.e("s_waitcnt lgkmcnt(4)")
    a.e("s_waitcnt lgkmcnt(0)")
    for qb in range(4):
        for m in chain(0, qb, "0"): a.e(m)
    a.e("s_nop 7")
    for qb in range(4):
        d = S + 4 * qb
        a.e(f"v_max3_f32 v{MX0+qb}, v{MX0+qb}, v{d}, v{d+1}")
        a.e(f"v_max3_f32 v{MX0+qb}, v{MX0+qb}, v{d+2}, v{d+3}")
    a.label(L("redo_next"))
    a.e("s_cmp_lg_u32 s17, 0")
    a.e(f"s_cbranch_scc1 {L('redo_loop')}")
    a.e("s_add_u32 s18, s19, 32768")
    redo_dma(1)
    a.e("s_mov_b32 s17, s25")
    a.e("s_cmp_ge_u32 s16, 2")
    a.e(f"s_cbranch_scc1 {L('pv')}")
    a.e(f"s_branch {L('qk_again')}")
    emit_pv_again()
    for f in OOL: f()
    emit_aux()
    kernel_desc(a, name, 512, 256)
    return f"; @launch grid=(256,1,1) block=(256,1,1) lds={LDS_ATT}"
```

```python
import sys, math
sys.path.insert(0, "gen")
from asmlib import *
from layout import *

RS = 1056
LDS_XS = 98304
LDS_MS = 163840 - 64 * RS
LDS_SC = 81920
LDS_CNT = LDS_SC + 6912
LDS_SC2 = 147456
GC1 = 2 * math.sqrt(2 / math.pi) * math.log2(math.e)
XSC = (GC1 * 0.044715) ** (1.0 / 3)
LDS_MX2 = LDS_SC + 4608
RING = 5
SS = 144
SPIN = 40000

def poll(a, q, L, name, load, cond, tag, slp=2):
    q.wait(tag)
    lab, done = L(name + "_spin"), L(name + "_ok")
    a.e(f"s_mov_b32 s30, {SPIN}")
    a.label(lab)
    for x in cond: a.e(x)
    a.e(f"s_cbranch_scc1 {done}")
    a.e(f"s_sleep {slp}")
    for x in load: a.e(x)
    a.e("s_sub_u32 s30, s30, 1")
    a.e("s_waitcnt vmcnt(0)")
    a.e(f"s_cbranch_scc0 {lab}")
    a.label(done)

OOL = []

def release(a, q, L, name, tag, store, wb=True):
    if tag: q.wait(tag)
    a.e("s_cmp_lg_u32 s21, 0")
    a.e(f"s_cbranch_scc1 {L(name + '_far')}")
    q.v(store)
    a.label(L(name + "_back"))
    def far():
        a.label(L(name + "_far"))
        if wb:
            a.e("buffer_wbl2 sc1")
            a.e("s_waitcnt vmcnt(0)")
        a.e(store + " sc1")
        a.e(f"s_branch {L(name + '_back')}")
    OOL.append(far)

def acquire(a, L, name):
    a.e("s_cmp_lg_u32 s21, 0")
    a.e(f"s_cbranch_scc1 {L(name + '_inv')}")
    a.label(L(name + "_got"))
    def far():
        a.label(L(name + "_inv"))
        a.e("buffer_inv sc1")
        a.e("s_waitcnt vmcnt(0)")
        a.e(f"s_branch {L(name + '_got')}")
    OOL.append(far)

def signal(a, L, name, wave, off, shard=True):
    a.e(f"s_cmp_lg_u32 s16, {wave}")
    a.e(f"s_cbranch_scc1 {L(name)}")
    a.e("v_mov_b32 v14, 1")
    a.e(f"s_and_b32 s26, s2, {3 if shard else 0}")
    a.e("s_lshl_b32 s26, s26, 6")
    a.e("s_mov_b64 exec, 1")
    a.e(f"buffer_atomic_add v14, off, s[92:95], s26 offset:{off}")
    a.e("s_mov_b64 exec, -1")
    a.label(L(name))

def cnt_load(off, va="v13"):
    return f"buffer_load_dword v14, {va}, s[92:95], 0 offen offset:{off} sc1"
CNT_OK = ["v_cmp_le_u32 vcc, 64, v14", "s_nop 1", "s_cmp_eq_u64 vcc, -1"]

def m_issue(a, q):
    a.e("s_lshr_b32 s17, s2, 4")
    a.e("s_lshl_b32 s17, s17, 15")
    a.e("s_and_b32 s18, s2, 15")
    a.e("s_lshl_b32 s18, s18, 15")
    a.e("s_lshl_b32 s19, s16, 13")
    a.e("s_add_u32 s17, s17, s19")
    a.e("s_add_u32 s18, s18, s19")
    a.e(f"s_mul_i32 s19, s16, {4*RS}")
    out = []
    for m, (srd, so) in enumerate(((40, "s17"), (8, "s18"))):
        for ee in range(2):
            for j in range(4):
                def f(m=m, srd=srd, so=so, ee=ee, j=j):
                    a.e(f"s_add_u32 m0, s19, {LDS_MS + (32*m + 16*ee + j)*RS - 1024*j}")
                    a.e(f"s_add_u32 {so}, {so}, 4096" if (ee == 1 and j == 0) else "s_nop 0")
                    q.v(f"buffer_load_dwordx4 v3, s[{srd}:{srd+3}], {so} offen offset:{1024*j} lds", "Mst")
                out.append(f)
    return out

def m_addr(a):
    a.e("v_and_b32 v4, 15, v2")
    a.e("v_lshrrev_b32 v5, 4, v2")
    a.e(f"v_mul_u32_u24 v6, {RS}, v4")
    a.e("v_lshl_add_u32 v6, v5, 4, v6")
    a.e(f"v_add_u32 v6, {LDS_MS}, v6")
    a.e("s_and_b32 s26, s16, 1")
    a.e("s_lshr_b32 s28, s16, 1")
    a.e(f"s_mul_i32 s29, s26, {16*RS}")
    a.e("v_add_u32 v7, s29, v6")
    a.e(f"s_mul_i32 s29, s28, {16*RS}")
    a.e("v_add_u32 v6, s29, v6")
    a.e("s_bfe_u32 s29, s2, 0x30001")
    a.e("s_lshl_b32 s29, s29, 16")
    a.e("s_lshr_b32 s30, s2, 4")
    a.e("s_lshl_b32 s30, s30, 12")
    a.e("s_add_u32 s29, s29, s30")
    a.e("s_and_b32 s30, s2, 1")
    a.e("s_lshl_b32 s30, s30, 1")
    a.e("s_add_u32 s30, s30, s28")
    a.e("s_lshl_b32 s30, s30, 10")
    a.e("s_add_u32 s29, s29, s30")
    a.e("s_lshl_b32 s30, s26, 9")
    a.e("s_add_u32 s29, s29, s30")
    a.e(f"s_add_u32 s30, s29, {WS_MI}")
    a.e("s_lshl_b32 s29, s28, 10")
    a.e("s_lshl_b32 s26, s26, 3")
    a.e("s_add_u32 s29, s29, s26")
    a.e(f"s_add_u32 s29, s29, {LDS_MX2}")
    a.e("v_add_u32 v112, s29, v3")
    a.e("s_lshl_b32 s29, s16, 9")
    a.e(f"s_add_u32 s29, s29, {LDS_MX2}")
    a.e("v_and_b32 v114, 0x1ff, v3")
    a.e("v_add_u32 v113, s29, v114")

def m_tile(a, q):
    q.wait("Mst")
    a.e("s_barrier")
    def rd(t):
        q.l(f"ds_read_b128 a[{8*t}:{8*t+3}], v7 offset:{64*t}", f"m{t}")
        q.l(f"ds_read_b128 a[{8*t+4}:{8*t+7}], v6 offset:{32*RS + 64*t}", f"m{t}")
    for t in range(7): rd(t)
    for t in range(16):
        q.e(f"{M16} v[8:11], a[{8*t}:{8*t+3}], a[{8*t+4}:{8*t+7}], {'0' if t == 0 else 'v[8:11]'}", need=(f"m{t}",))
        if t + 7 < 16: rd(t + 7)
    a.e("s_nop 7")
    sc = f2u(512 ** -0.5 * math.log2(math.e) / XSC ** 2)
    for i in range(4): a.e(f"v_mul_f32 v{8+i}, {sc}, v{8+i}")
    a.e("v_cvt_pk_bf16_f32 v8, v8, v9")
    a.e("v_cvt_pk_bf16_f32 v9, v10, v11")
    q.l("ds_write_b64 v112, v[8:9]", "mw")
    q.wait("mw")
    a.e("s_barrier")
    q.l("ds_read_b128 v[8:11], v113", "mr")
    def fin():
        q.v("buffer_store_dwordx4 v[8:11], v114, s[12:15], s30 offen sc1", "St", need=("mr",))
    return fin

def touches(a, q, L, opt):
    a.e("v_lshlrev_b32 v7, 7, v2")
    a.e("s_lshr_b32 s26, s2, 3")
    a.e("s_lshl_b32 s26, s26, 2")
    a.e("s_add_u32 s26, s26, s16")
    a.e("s_getpc_b64 s[28:29]")
    a.label(L("pc1"))
    a.e("s_mul_i32 s30, s26, 640")
    a.e("v_and_b32 v12, 7, v2")
    a.e("v_min_u32 v12, 4, v12")
    a.e("v_lshl_add_u32 v12, v12, 7, s30")
    a.e(f"v_min_u32 v12, {L('end')} - {L('pc1')}, v12")
    q.v("global_load_dword v0, v12, s[28:29]")
    if opt.get("tw"):
        a.e("s_lshl_b32 s26, s26, 13")
        q.v("buffer_load_dword v0, v7, s[96:99], s26 offen")

def touch_aux(a, q):
    for w in range(1, 4):
        a.e(f"s_cmp_eq_u32 s16, {w}")
        a.e(f"s_cselect_b32 s52, s{52+2*w}, s52")
        a.e(f"s_cselect_b32 s53, s{53+2*w}, s53")
    a.e("s_lshl_b32 s28, s2, 6")
    a.e("v_add_lshl_u32 v14, s28, v2, 5")
    a.e("v_lshlrev_b32 v13, 1, v14")
    a.e("s_cmp_eq_u32 s16, 3")
    a.e("s_cselect_b64 vcc, -1, 0")
    a.e("v_cndmask_b32 v14, v14, v13, vcc")
    q.v("global_load_dword v0, v14, s[52:53]")

def gen_front(a, q, L, st, fs, mi, clear, opt):
    X = 16; F = 128
    if opt.get("skip"):
        v0 = q.v
        def v1(text, tag="_", need=()):
            if text.startswith("buffer_store_dwordx4") and tag[0] in opt["skip"]: return
            v0(text, tag, need)
        q.v = v1
    a.e("v_lshrrev_b32 v12, 3, v2")
    a.e("v_and_b32 v13, 7, v2")
    a.e("v_and_b32 v14, 2, v12")
    a.e("v_xor_b32 v14, v13, v14")
    a.e("v_lshlrev_b32 v14, 4, v14")
    WV = 80
    a.e(f"v_lshl_add_u32 v{WV}, v12, 11, v14")
    a.e(f"v_xor_b32 v{WV+1}, 64, v{WV}")
    a.e(f"v_add_u32 v{WV+1}, {16384-1024}, v{WV+1}")
    a.e(f"v_add_u32 v{WV+2}, {2*(16384-1024)}, v{WV}")
    a.e(f"v_add_u32 v{WV+3}, {2*(16384-1024)}, v{WV+1}")
    a.e("s_lshl_b32 s26, s22, 2")
    a.e("s_add_u32 s26, s26, s16")
    a.e("s_lshl_b32 s28, s22, 1")
    a.e("s_add_u32 s28, s28, s16")
    a.e("s_add_u32 s28, s28, s23")
    a.e("s_and_b32 s28, s28, 3")
    a.e("s_lshl_b32 s3, s26, 7")
    a.e("s_lshl_b32 s29, s28, 18")
    a.e("s_add_u32 s3, s3, s29")
    a.e(f"s_mul_i32 s6, s16, {RING*4096}")
    a.e("v_and_b32 v4, 15, v2")
    a.e("v_lshrrev_b32 v5, 4, v2")
    def wdma(k, j):
        if j == 0:
            a.e(f"s_add_u32 m0, s6, {4096*(k % RING)}")
            a.e(f"s_xor_b32 s7, {'s3' if k < 16 else 's20'}, {65536*(k % 16) + (1024 if k < 16 else 0 if k < 32 else 128)}")
        q.v(f"buffer_load_dwordx4 v{WV+j}, s[96:99], s7 offen offset:{1024*j} lds", f"W{k}")
    ringf = [lambda k=k, j=j: wdma(k, j) for k in range(RING) for j in range(4)]
    EM = opt.get("early", 0)
    early = list(mi) + [clear] + (ringf if EM == 0 else [])
    late = ringf if EM else []
    SW, SR, SG, QW = 84, 85, 86, 87
    a.e("s_and_b32 s26, s16, 1")
    a.e("s_lshl_b32 s26, s26, 13")
    a.e("s_cmp_lt_u32 s16, 2")
    a.e(f"s_cselect_b32 s28, {16*SS}, 0")
    a.e("s_add_u32 s26, s26, s28")
    a.e(f"s_add_u32 s26, s26, {LDS_SC}")
    a.e(f"v_mul_u32_u24 v{SR}, {SS}, v12")
    a.e(f"v_lshl_add_u32 v{SR}, v13, 4, v{SR}")
    a.e(f"v_add_u32 v{SR}, s26, v{SR}")
    a.e(f"v_lshlrev_b32 v{SG}, 9, v12")
    a.e(f"v_lshl_add_u32 v{SG}, v13, 4, v{SG}")
    a.e(f"v_mul_u32_u24 v{SW}, {SS}, v4")
    a.e(f"v_lshl_add_u32 v{SW}, v5, 3, v{SW}")
    a.e(f"v_add_u32 v{SW}, s26, v{SW}")
    a.e("s_lshl_b32 s26, s16, 14")
    a.e(f"s_add_u32 s26, s26, {LDS_XS}")
    a.e("s_lshl_b32 s28, s22, 13")
    a.e("s_add_u32 s28, s28, s26")
    a.e("v_lshrrev_b32 v14, 2, v12")
    a.e("v_lshlrev_b32 v14, 1, v14")
    a.e("v_xor_b32 v14, v13, v14")
    a.e("v_and_b32 v14, 3, v14")
    a.e("v_lshlrev_b32 v14, 4, v14")
    a.e("v_lshl_add_u32 v14, v12, 6, v14")
    a.e("v_lshrrev_b32 v13, 2, v13")
    a.e("v_lshl_add_u32 v14, v13, 10, v14")
    a.e("v_add_u32 v12, s28, v14")
    a.e("v_xor_b32 v15, 0x2000, v12")
    a.e("s_mov_b32 s101, 0xffff0000")
    if EM == 2:
        while early: early.pop(0)()
    ZR, YO = 88, 90
    a.e("v_lshrrev_b32 v13, 1, v4")
    a.e("v_and_b32 v13, 2, v13")
    a.e("v_xor_b32 v13, v5, v13")
    a.e("v_lshlrev_b32 v13, 4, v13")
    a.e(f"v_lshl_add_u32 v{ZR}, v4, 6, v13")
    a.e("v_and_b32 v13, 0x27, v2")
    a.e("v_and_b32 v14, 8, v2")
    a.e("v_lshl_add_u32 v13, v14, 1, v13")
    a.e("v_and_b32 v14, 16, v2")
    a.e("v_lshrrev_b32 v14, 1, v14")
    a.e(f"v_add_lshl_u32 v{YO}, v13, v14, 4")
    XR_, TR = 88, 92
    a.e("s_lshr_b32 s26, s3, 18")
    a.e("s_lshl_b32 s26, s26, 12")
    a.e(f"s_add_u32 s26, s26, {LDS_XS}")
    a.e(f"v_add_u32 v{XR_}, s26, v{ZR}")
    a.e("v_lshrrev_b32 v14, 2, v4")
    a.e("v_lshl_add_u32 v14, v5, 3, v14")
    a.e("v_lshlrev_b32 v14, 7, v14")
    a.e("v_and_b32 v13, 3, v2")
    a.e("v_lshl_add_u32 v14, v13, 3, v14")
    a.e("v_and_b32 v13, 24, v2")
    a.e("v_lshl_add_u32 v14, v13, 2, v14")
    a.e(f"v_add_u32 v{TR}, s6, v14")
    for nb in range(1, 4):
        a.e(f"v_xor_b32 v{TR+nb}, {32*nb}, v{TR}")
    a.e(f"v_mov_b32 v13, {LDS_CNT}")
    a.e("v_mov_b32 v14, 0")
    q.l("ds_write_b32 v13, v14")
    m_addr(a)
    A0 = 96
    for h in range(2):
        A = A0 + 8 * h
        for i in range(8):
            s = 8 * h + i
            q.wait(f"x{s}")
            if s == 0: fs(1)
            for _ in range(opt.get("ep", [1] * 16)[s]):
                if early: early.pop(0)()
            for j in range(4):
                x = X + 4 * s + j; f = F + 8 * s + 2 * j
                a.e(f"v_lshlrev_b32 v{f}, 16, v{x}")
                a.e(f"v_and_b32 v{f+1}, s101, v{x}")
            for j in range(4):
                f = F + 8 * s + 2 * j
                if i == 0 and j == 0:
                    a.e(f"v_pk_add_f32 v[{A}:{A+1}], v[{f}:{f+1}], 0")
                    a.e(f"v_pk_mul_f32 v[{A+2}:{A+3}], v[{f}:{f+1}], v[{f}:{f+1}]")
                else:
                    a.e(f"v_pk_add_f32 v[{A}:{A+1}], v[{A}:{A+1}], v[{f}:{f+1}]")
                    a.e(f"v_pk_fma_f32 v[{A+2}:{A+3}], v[{f}:{f+1}], v[{f}:{f+1}], v[{A+2}:{A+3}]")
    while early: early.pop(0)()
    fs(2)
    R = [A0, A0 + 2, A0 + 8, A0 + 10]
    for r in R: a.e(f"v_add_f32 v{r}, v{r}, v{r+1}")
    for d in ("quad_perm:[1,0,3,2]", "quad_perm:[2,3,0,1]", "row_half_mirror"):
        for r in R: a.e(f"v_add_f32_dpp v{r}, v{r}, v{r} {d} row_mask:0xf bank_mask:0xf")
    for A in (A0, A0 + 8):
        a.e(f"v_mul_f32 v{A}, {f2u(-1.0/512)}, v{A}")
        a.e(f"v_mul_f32 v{A+2}, {f2u(1.0/512)}, v{A+2}")
    for A in (A0, A0 + 8): a.e(f"v_fma_f32 v{A+2}, -v{A}, v{A}, v{A+2}")
    for A in (A0, A0 + 8): a.e(f"v_max_f32 v{A+2}, 0, v{A+2}")
    for A in (A0, A0 + 8): a.e(f"v_add_f32 v{A+2}, {f2u(1e-5)}, v{A+2}")
    for A in (A0, A0 + 8): a.e(f"v_rsq_f32 v{A+4}, v{A+2}")
    a.e("s_nop 0")
    for A in (A0, A0 + 8): a.e(f"v_mul_f32 v{A+4}, {f2u(XSC)}, v{A+4}")
    for A in (A0, A0 + 8): a.e(f"v_mul_f32 v{A+5}, v{A}, v{A+4}")
    fs(3)
    def touch_u():
        a.e("s_lshr_b32 s26, s2, 3")
        a.e("s_lshl_b32 s26, s26, 2")
        a.e("s_add_u32 s26, s26, s16")
        a.e("s_lshl_b32 s26, s26, 13")
        a.e("v_lshlrev_b32 v14, 6, v4")
        a.e("v_lshl_add_u32 v14, v5, 11, v14")
        q.v("buffer_load_dword v0, v14, s[96:99], s26 offen")
    def norm(s):
        A = A0 + 8 * (s // 8) + 4
        for j in range(4):
            f = F + 8 * s + 2 * j
            a.e(f"v_pk_fma_f32 v[{f}:{f+1}], v[{f}:{f+1}], v[{A}:{A+1}], v[{A}:{A+1}] op_sel:[0,0,1] op_sel_hi:[1,0,1]")
        for j in range(4):
            f = F + 8 * s + 2 * j
            a.e(f"v_cvt_pk_bf16_f32 v{X+4*s+j}, v{f}, v{f+1}")
    def xw(s):
        h, i = s // 8, s % 8
        q.l(f"ds_write_b128 {'v12' if i < 4 else 'v15'}, v[{X+4*s}:{X+4*s+3}] offset:{2048*(i%4) + 512*h}", "xw")
    mfin = m_tile(a, q)
    fs(4)
    for s in range(16):
        norm(s); xw(s)
        if s == 1: mfin()
        if s == 2 and opt.get('ta', 1): touch_aux(a, q)
        if s == 3 and not opt.get("tw"): touch_u()
    srd_off(a, 8, 4, "s24", 4096000)
    a.e("s_lshr_b32 s19, s3, 18")
    a.e("s_lshl_b32 s19, s19, 12")
    a.e("s_add_u32 s19, s19, s27")
    a.e("v_and_b32 v13, 3, v2")
    q.wait("xw", "St")
    a.e("s_barrier")
    st(1)
    AR = [16 + 16 * i for i in range(4)] + [96]
    T = 112
    NQ = 5
    role = [None]
    def areg(k): return AR[(k - 16 + 2) % NQ] if (role[0] == "qk" and k >= 16) else AR[k % 2]
    def accof(k): return 128 if k < 16 else 192 if (k < 32 or role[0] == "qk") else 128
    def bread(s, tb):
        r = 64 * tb + 4 * s
        if tb == 0 and s % 4 == 0: a.e(f"v_xor_b32 v{XR_+1}, {1024*s}, v{XR_}")
        q.l(f"ds_read_b128 a[{r}:{r+3}], v{XR_+1} offset:{16384*tb + 1024*(s%4)}", f"B{s}")
    def tread(k, i):
        nb, h = i // 2, i % 2
        r = areg(k) + 4 * nb + 2 * h
        q.l(f"ds_read_b64_tr_b16 v[{r}:{r+1}], v{TR+nb} offset:{4096*(k % RING) + 512*h}", f"A{k}", need=(f"W{k}",))
    def mload(k, nb):
        if nb == 0: a.e(f"s_xor_b32 s42, s20, {4096*(k-16)}")
        r = areg(k) + 4 * nb
        q.v(f"buffer_load_dwordx4 v[{r}:{r+3}], v3, s[12:15], s42 offen offset:{1024*nb} sc1", f"A{k}")
    for tb in range(4): bread(0, tb)
    for i in range(8): tread(0, i)
    signal(a, L, "sig1", 0, 0)
    for tb in range(4): bread(1, tb)
    a.e(f"s_mov_b32 s0, {f2u(-GC1 / XSC)}")
    a.e(f"s_mov_b32 s1, {f2u(XSC)}")
    a.e("v_lshlrev_b32 v13, 6, v13")
    a.e("s_cmp_eq_u32 s16, 1")
    a.e("s_cselect_b32 s26, 0, 0x1000")
    a.e("v_add_u32 v12, s26, v13")
    a.e("s_lshl_b32 s17, s31, 16")
    a.e("s_lshl_b32 s26, s16, 7")
    a.e("s_add_u32 s17, s17, s26")
    a.e(f"s_add_u32 s17, s17, {WS_GU}")
    fx = [{}]
    def at(k, g, fn): fx[0].setdefault((k, g), []).append(fn if callable(fn) else (lambda: a.e(fn)))
    def run(ops):
        for x in ops: x() if callable(x) else a.e(x)
    def cost(x): return 2 if (isinstance(x, str) and x.split()[0] in ("v_exp_f32", "v_rcp_f32")) else 1
    def steps(k0, k1, side=(), lead=10, tailg=4):
        fixed = fx[0]
        gaps = [(k, g) for k in range(k0, k1) for g in range(16)]
        cap = [0 if (n < lead or n >= len(gaps) - tailg) else max(0, 2 - len(fixed.get(x, []))) for n, x in enumerate(gaps)]
        ops = list(side)
        C = sum(map(cost, ops)); tot = sum(cap)
        scale = min(1.0, C / tot)
        extra = max(0.0, (C - tot) / (len(gaps) - lead - tailg))
        budget = 0.0; used = 0
        for n, (k, g) in enumerate(gaps):
            if g == 0:
                if k in opt.get("fk", []): Fine(a, True)(opt["fk"].index(k))
                q.wait(f"A{k}", f"B{k}")
            nb, tb = g // 4, g % 4
            d = accof(k) + 16 * nb + 4 * tb; r = areg(k) + 4 * nb; b = 64 * tb + 4 * (k % 16)
            c = "0" if k % 16 == 0 else f"v[{d}:{d+3}]"
            a.e(f"{M16} v[{d}:{d+3}], v[{r}:{r+3}], a[{b}:{b+3}], {c}")
            for fn in fixed.pop((k, g), []): fn()
            if lead <= n < len(gaps) - tailg:
                budget += cap[n] * scale + extra
            while ops and (used + cost(ops[0]) <= budget + 1e-6 or n == len(gaps) - tailg):
                x = ops.pop(0); used += cost(x); run([x])
        assert not ops
    def raw_plan(k0, k1, kend):
        for k in range(k0, k1):
            if k + 1 < kend:
                for i in range(8): at(k, i, lambda k=k, i=i: tread(k + 1, i))
            if k + RING < kend:
                for j in range(4): at(k, 9 + 2 * j, lambda k=k, j=j: wdma(k + RING, j))
            if k + 2 < 16:
                for tb in range(4): at(k, 8 + 2 * tb, lambda k=k, tb=tb: bread(k + 2, tb))
    def gelu(acc, kind, pk, base, off):
        out = []
        P = lambda r: f"v[{r}:{r+1}]"
        def store(E, i):
            r = acc + 32 + 16 * (i % 2) + 4 * (i // 2)
            def f():
                a.e(f"s_add_u32 s29, {base}, {off + 4096*i}")
                pub = kind == "g" and i in (0, 7)
                q.v(f"buffer_store_dwordx4 v[{r}:{r+3}], v{SG}, s[12:15], s29 offen{' sc1' if pub else ''}", "St" if pub else "_", need=(f"sr{kind}{i}",))
            E(f)
        for tb in range(4):
            for h in range(2):
                o = []; E = o.append; out.append(o)
                src = [acc + 16 * (2 * h + ee) + 4 * tb + j for ee in range(2) for j in range(4)]
                if pk(2 * tb + h):
                    for i in range(0, 8, 2): E(f"v_pk_fma_f32 {P(T+i)}, {P(src[i])}, {P(src[i])}, s[0:1] op_sel_hi:[1,1,0] neg_lo:[1,0,0] neg_hi:[1,0,0]")
                    for i in range(0, 8, 2): E(f"v_pk_mul_f32 {P(T+i)}, {P(T+i)}, {P(src[i])}")
                    for i in range(8): E(f"v_exp_f32 v{T+i}, v{T+i}")
                    for i in range(0, 8, 2): E(f"v_pk_fma_f32 {P(T+i)}, {P(T+i)}, s[0:1], s[0:1] op_sel:[0,1,1] op_sel_hi:[1,1,1]")
                    for i in range(8): E(f"v_rcp_f32 v{T+i}, v{T+i}")
                    for i in range(0, 8, 2): E(f"v_pk_mul_f32 {P(src[i])}, {P(T+i)}, {P(src[i])}")
                else:
                    for i, x in enumerate(src): E(f"v_fma_f32 v{T+i}, -v{x}, v{x}, s0")
                    for i, x in enumerate(src): E(f"v_mul_f32 v{T+i}, v{T+i}, v{x}")
                    for i, x in enumerate(src): E(f"v_exp_f32 v{T+i}, v{T+i}")
                    for i, x in enumerate(src): E(f"v_fma_f32 v{T+i}, v{T+i}, s1, s1")
                    for i, x in enumerate(src): E(f"v_rcp_f32 v{T+i}, v{T+i}")
                    for i, x in enumerate(src): E(f"v_mul_f32 v{x}, v{T+i}, v{x}")
                pr = T + 8 + 4 * h
                for j in range(4): E(f"v_cvt_pk_bf16_f32 v{pr+j}, v{src[2*j]}, v{src[2*j+1]}")
                for ee in range(2):
                    E(lambda ee=ee, pr=pr, h=h: q.l(f"ds_write_b64 v{SW}, v[{pr+2*ee}:{pr+2*ee+1}] offset:{32*(2*h+ee)}"))
                if kind == "g":
                    s0, s1 = acc + 4 * tb, acc + 4 * tb + 1
                    if pk(2 * tb + h):
                        E(f"v_pk_mul_f32 {P(T)}, {P(src[0])}, {P(src[0])}")
                        E(f"v_pk_add_f32 {P(T+2)}, {P(src[0])}, {P(src[2])}")
                        for i in (2, 4, 6):
                            E(f"v_pk_fma_f32 {P(T)}, {P(src[i])}, {P(src[i])}, {P(T)}")
                            if i > 2: E(f"v_pk_add_f32 {P(T+2)}, {P(T+2)}, {P(src[i])}")
                        if h == 0:
                            E(f"v_add_f32 v{s0}, v{T+2}, v{T+3}")
                            E(f"v_add_f32 v{s1}, v{T}, v{T+1}")
                        else:
                            E(f"v_add_f32 v{T+2}, v{T+2}, v{T+3}")
                            E(f"v_add_f32 v{T+3}, v{T}, v{T+1}")
                            E(f"v_pk_add_f32 {P(s0)}, {P(s0)}, {P(T+2)}")
                    elif h == 0:
                        E(f"v_mul_f32 v{T}, v{src[0]}, v{src[0]}")
                        for x in src[1:]: E(f"v_fmac_f32 v{T}, v{x}, v{x}")
                        for x in src[1:]: E(f"v_add_f32 v{s0}, v{s0}, v{x}")
                        E(f"v_mov_b32 v{s1}, v{T}")
                    else:
                        for x in src:
                            E(f"v_add_f32 v{s0}, v{s0}, v{x}")
                            E(f"v_fmac_f32 v{s1}, v{x}, v{x}")
                if tb >= 1: store(E, 2 * (tb - 1) + h)
            for i in (2 * tb, 2 * tb + 1):
                r = acc + 32 + 16 * (i % 2) + 4 * tb
                E(lambda i=i, r=r: q.l(f"ds_read_b128 v[{r}:{r+3}], v{SR} offset:{8*SS*(i%2)}", f"sr{kind}{i}"))
        if kind == "g":
            for k in range(2):
                E(f"v_permlane16_swap_b32 v{acc+k}, v{acc+4+k}")
                E(f"v_permlane16_swap_b32 v{acc+8+k}, v{acc+12+k}")
            E("s_lshl_b32 s43, s22, 2")
            for k in range(2):
                E(f"v_add_f32 v{acc+k}, v{acc+k}, v{acc+4+k}")
                E(f"v_add_f32 v{acc+8+k}, v{acc+8+k}, v{acc+12+k}")
            E("s_add_u32 s43, s43, s16")
            E("s_lshl_b32 s43, s43, 7")
            for k in range(2): E(f"v_permlane32_swap_b32 v{acc+k}, v{acc+8+k}")
            E("s_lshr_b32 s29, s31, 1")
            E("s_add_u32 s43, s43, s29")
            for k in range(2): E(f"v_add_f32 v{T+k}, v{acc+k}, v{acc+8+k}")
            E("s_lshl_b32 s43, s43, 9")
            E(f"s_add_u32 s43, s43, {WS_ST}")
            E(f"v_lshlrev_b32 v{T+2}, 3, v2")
            E(lambda: q.v(f"buffer_store_dwordx2 v[{T}:{T+1}], v{T+2}, s[12:15], s43 offen sc1", "St"))
        store(E, 6); store(E, 7)
        return out
    flat = lambda bs: [x for b in bs for x in b]
    def stream_srd():
        a.e(f"s_mul_i32 s28, s22, {32768 * opt.get('n0', 62)}")
        a.e("s_add_u32 s28, s28, s24")
        a.e("s_lshl_b32 s26, s25, 15")
        srd_off(a, 8, 4, "s28", "s26")
    def xl():
        a.e("s_xor_b32 s26, s31, 1")
        a.e("s_lshl_b32 s26, s26, 7")
        a.e(f"s_add_u32 s26, s26, {WS_FL + 48}")
        q.v("buffer_load_dword v1, off, s[12:15], s26 sc1", "xid")
    def e0():
        q.wait("B15", "xid")
        a.e("v_readfirstlane_b32 s26, v1")
        a.e("s_getreg_b32 s21, hwreg(HW_REG_XCC_ID, 0, 4)")
        a.e("s_xor_b32 s21, s21, s26")
        if opt.get("far"): a.e("s_mov_b32 s21, 1")
        a.e("s_barrier")
    KS = 11
    raw_plan(0, KS, 16)
    at(KS - 3, 8, lambda: q.v(cnt_load(0, "v12"), "c1"))
    fs(5)
    steps(0, KS)
    assert not fx[0]
    a.e("s_cmp_ge_u32 s16, 2")
    a.e(f"s_cbranch_scc1 {L('fpv')}")
    state = (list(q.vm), list(q.lg))

    def qk_part():
        role[0] = "qk"; fx[0] = {}
        raw_plan(KS, 16, 16)
        def chk1():
            q.wait("c1")
            a.e("s_cmp_lg_u32 s16, 1")
            a.e(f"s_cbranch_scc1 {L('c1_ok')}")
            poll(a, q, L, "c1", [cnt_load(0, "v12")], CNT_OK, "c1", slp=8)
            a.e("s_barrier")
            a.e("s_lshl_b32 s26, s22, 1")
            a.e("s_add_u32 s26, s26, s16")
            a.e("s_lshl_b32 s20, s26, 17")
            a.e("s_lshr_b32 s28, s3, 18")
            a.e("s_lshl_b32 s28, s28, 14")
            a.e("s_add_u32 s20, s20, s28")
            a.e(f"s_add_u32 s20, s20, {WS_MI}")
        at(KS, 8, chk1)
        at(KS, 10, xl)
        for kk in range(16, 48):
            k = kk - NQ + 1
            for nb in range(4): at(k, (9 + 2 * nb) if k < 16 else (1 + 4 * nb), lambda kk=kk, nb=nb: mload(kk, nb))
        at(15, 8, e0)
        for g, x in enumerate(["s_lshl_b32 s40, s31, 1", "s_add_u32 s40, s40, s16", "s_lshl_b32 s40, s40, 14", f"s_add_u32 s40, s40, {WS_QP}",
                               "s_lshl_b32 s41, s31, 5", "s_add_u32 s41, s41, s16", "s_lshl_b32 s41, s41, 2", f"s_add_u32 s41, s41, {WS_FL + 16}"]):
            at(15, g, x)
        steps(KS, 16)
        fs(6)
        NA_, NB_ = opt.get("qg", (2, 2))
        gb = gelu(128, "g", lambda b: b >= NA_ + NB_, "s17", 0)
        pre = ["s_lshl_b32 s26, s16, 2", "s_add_u32 s26, s26, s22", "s_lshl_b32 s26, s26, 13", f"s_add_u32 s18, s26, {LDS_XS}", f"v_add_u32 v{QW}, s18, v3", "s_lshl_b32 s19, s16, 14"]
        steps(16, 32, pre + flat(gb[:NA_]))
        fs(7)
        def pack(p, direct):
            a.e("s_nop 3")
            for i in range(8):
                tb, half = i // 2, i % 2
                src = [192 + 16 * (2 * half + ee) + 4 * tb + j for ee in range(2) for j in range(4)]
                pr = src[0]
                for j in range(4): a.e(f"v_cvt_pk_bf16_f32 v{pr+j}, v{src[2*j]}, v{src[2*j+1]}")
                if direct: qstore(8 * p + i, pr)
                q.l(f"ds_write_b128 v{QW}, v[{pr}:{pr+3}] offset:{16384*p + 1024*i}", "qw")
        def qstore(n, r, need=()):
            if n % 4 == 0: a.e(f"s_add_u32 s7, s40, {1024*n}")
            q.v(f"buffer_store_dwordx4 v[{r}:{r+3}], v3, s[12:15], s7 offen offset:{1024*(n%4)} sc1", "Qst", need=need)
        pack(0, False)
        for i in range(8):
            k = 32 + opt.get("qsp", [0, 1, 3, 4, 6, 7, 9, 10])[i]
            r = (WV, TR)[i % 2]
            at(k, 3, lambda i=i, r=r: q.l(f"ds_read_b128 v[{r}:{r+3}], v{QW} offset:{1024*i}", f"qr{i}"))
            at(k, 15, lambda i=i, r=r: qstore(i, r, (f"qr{i}",)))
        at(41, 7, lambda: q.v(cnt_load(8), "c2"))
        at(43, 7, stream_srd)
        at(44, 0, lambda: poll(a, q, L, "c2", [cnt_load(8)], CNT_OK, "c2", slp=8))
        for i in range(16):
            def kd(i=i):
                if i % 4 == 0:
                    a.e(f"s_add_u32 m0, s19, {1024*i}")
                    a.e(f"s_add_u32 s42, s19, {1024*i}")
                q.v(f"buffer_load_dwordx4 v3, s[8:11], s42 offen offset:{1024*(i%4)} sc1 lds", "kv0")
            at(44 + i // 4, 1 + 4 * (i % 4), kd)
        steps(32, 48, flat(gb[NA_:NA_ + NB_]), lead=2)
        assert not fx[0]
        fs(8)
        pack(1, True)
        rest = gb[NA_ + NB_:]
        if rest: run(rest.pop(0))
        a.e("v_mov_b32 v14, 1")
        q.v("buffer_store_dword v14, off, s[12:15], s41 sc1", need=("Qst",))
        a.e("s_xor_b32 s41, s41, 128")
        qfl = f"buffer_load_dword v15, off, s[12:15], s41 sc1"
        if len(rest) > 1: run(rest.pop(0))
        q.v(qfl, "qf")
        fs(12)
        a.e("s_xor_b32 s40, s40, 0x8000")
        a.e("s_xor_b32 s18, s18, 0x2000")
        poll(a, q, L, "q", [qfl], ["v_readfirstlane_b32 s26, v15", "s_cmp_eq_u32 s26, 1"], "qf", slp=1)
        for i in range(16):
            if i % 4 == 0:
                a.e(f"s_add_u32 m0, s18, {16384*(i//8) + 1024*(i%8)}")
                a.e(f"s_add_u32 s7, s40, {1024*i}")
            q.v(f"buffer_load_dwordx4 v3, s[12:15], s7 offen offset:{1024*(i%4)} sc1 lds", "qd")
        run(flat(rest))
        fs(9)

    def pv_part(setup, vreads, zero):
        role[0] = "pv"; fx[0] = {}
        a.label(L("fpv"))
        q.vm, q.lg = list(state[0]), list(state[1])
        a.e("s_and_b32 s20, s3, 0xffff0000")
        a.e("s_lshl_b32 s26, s22, 1")
        a.e("s_add_u32 s26, s26, s16")
        a.e("s_sub_u32 s26, s26, 2")
        a.e("s_lshl_b32 s26, s26, 8")
        a.e("s_add_u32 s20, s20, s26")
        raw_plan(KS, 48, 48)
        at(KS, 8, "s_barrier")
        at(KS, 10, xl)
        at(15, 8, e0)
        steps(KS, 16)
        fs(6)
        N1, N2 = opt.get("pg_", (5, 3))
        gb = gelu(128, "g", lambda b: b < N1, "s17", 0)
        e1 = flat(gb[:N1])
        def pub(i):
            tb, sl = i // 4, i % 4
            q.v(f"buffer_store_dwordx4 a[{64*tb+4*sl}:{64*tb+4*sl+3}], v{YO}, s[8:11], s19 offen offset:{1024*sl} sc1", "Xst")
            if sl == 3: a.e("s_add_u32 s19, s19, 16384")
        for i in range(16): e1.insert(i * opt.get("pd", 12), lambda i=i: pub(i))
        a.e("s_nop 3")
        run(e1)
        fs(12)
        def arrive():
            a.e(f"v_mov_b32 v13, {LDS_CNT}")
            a.e("v_mov_b32 v14, 1")
            q.wait("Xst")
            a.e("s_mov_b64 exec, 1")
            q.l("ds_add_rtn_u32 v15, v13, v14", "cnt")
            a.e("s_mov_b64 exec, -1")
        def sig2():
            q.wait("cnt")
            a.e("v_readfirstlane_b32 s28, v15")
            a.e("s_and_b32 s26, s2, 3")
            a.e("s_lshl_b32 s26, s26, 6")
            a.e("s_cmp_lg_u32 s28, 1")
            a.e(f"s_cbranch_scc1 {L('sig2')}")
            a.e("s_mov_b64 exec, 1")
            a.e("buffer_atomic_add v14, off, s[92:95], s26 offset:8")
            a.e("s_mov_b64 exec, -1")
            a.label(L("sig2"))
        K2 = opt.get("k2", 19)
        at(K2, 8, arrive)
        at(K2 + 1, 8, sig2)
        steps(16, 32, flat(gb[N1:]), lead=2)
        fs(7)
        a.e("s_lshl_b32 s26, s16, 7")
        a.e("s_add_u32 s17, s17, s26")
        a.e("s_sub_u32 s17, s17, 512")
        ua = gelu(192, "ua", lambda b: b >= N2, "s17", 32768)
        steps(32, 48, flat(ua[:N2]))
        assert not fx[0]
        fs(8)
        ub = gelu(128, "ub", lambda b: True, "s17", 32768 + 128)
        rest = ua[N2:] + ub
        def dma(n0, n, lds0, tag):
            for i in range(n):
                if i % 4 == 0:
                    a.e(f"s_add_u32 m0, {lds0}, {n0 + 1024*i}")
                    a.e(f"s_add_u32 s7, {lds0}, {n0 + 1024*i}")
                q.v(f"buffer_load_dwordx4 v3, s[8:11], s7 offen offset:{1024*(i%4)} sc1 lds", tag)
        stream_srd()
        setup()
        a.e("s_lshl_b32 s6, s19, 14")
        a.e("s_lshl_b32 s20, s19, 13")
        BS, BA, BB = opt.get("pb", (7, 11, 12))
        assert (BA - len(ua[N2:])) % 2 == 0 if BA >= len(ua[N2:]) else (N2 + BA) % 2 == 0
        for n in range(len(rest) + 1):
            if n == BS:
                q.wait("St")
                a.e("s_barrier")
                st(2); fs(9)
                dma(32768, 16, "s6", "kv1")
            if n == BA:
                q.all(vm=False)
                a.e("s_barrier")
                a.e(f"s_mul_i32 s26, s19, {16*SS - 8192}")
                a.e(f"s_add_u32 s26, s26, {LDS_SC2 - LDS_SC}")
                a.e(f"v_add_u32 v{SW}, s26, v{SW}")
                a.e(f"v_add_u32 v{SR}, s26, v{SR}")
                dma(65536, 8, "s20", "kv2"); dma(81920, 8, "s20", "kv2")
            if n == BB:
                q.wait("kv1")
                a.e("s_barrier")
                fs(10)
                signal(a, L, "sig3", 2, 4)
                dma(98304, 16, "s6", "kv3")
            if n < len(rest):
                ops = list(rest[n])
                if n >= BS:
                    for i in range(0, len(ops), 4):
                        if vreads: ops.insert(i, lambda x=vreads.pop(0): q.l(x))
                run(ops)
        assert not vreads
        zero()
        q.wait("kv2")
        q.all(vm=False)
    return qk_part, pv_part
```

```python
import sys
sys.path.insert(0, "gen")
from asmlib import *
from attn2 import gen_attn
KNAME = "standalone__conformer_family_branchformer__speech_kernel"

def build(path, stamp=0, opt=None):
    a = Asm()
    a('.amdgcn_target "amdgcn-amd-amdhsa--gfx950"')
    l = gen_attn(a, KNAME, stamp=stamp, opt=opt)
    t = a.text().replace(KNAME + "_", "L_")
    open(path, "w").write(l + "\n" + t)

if __name__ == "__main__":
    build("v3.s")
    build("v3_st.s", stamp=1)
    build("v3_fs.s", stamp=2)
    build("v3f_fs.s", stamp=3)
    build("b_fs.s", stamp=2, opt={"an": 4})
    build("c_fs.s", stamp=2, opt={"an": 6, "od": 13})
    build("d_fs.s", stamp=2, opt={"an": 0})
    build("f_fs.s", stamp=6)
```

```python
import sys
sys.path.insert(0, "gen")
from asmlib import *
from layout import *
from conv import Conv
from aux import gen_aux
from front import *

RS = 1056
LDS_P = 131072
LDS_MX = 139264
LDS_FG = LDS_MX + 512
LDS_ML = LDS_MX + 1024
LDS_HALO = LDS_ML + 1024
LDS_TAP = LDS_HALO + 2048
LDS_STT = LDS_TAP + 3072
LDS_ATT = 163840
ES = 272
NA = 16
ARING = [16 * i for i in range(16)]
BIG = 2.0 ** 100
SPIN = 200000
FK = [0, 8, 16, 20, 24, 28, 30]

DROP = []
ALIGN = [0]
def emit_interval(a, mfmas, fill, lo=0, hi=None):
    for i, m in enumerate(mfmas):
        if i < lo or (hi is not None and i >= hi): continue
        if m is not None:
            if ALIGN[0]: a(".p2alignl 3, 0xbf800000")
            a.e(m)
        for f in fill.get(i, []):
            if any(f.startswith(d) for d in DROP): continue
            a.e(f)

def conv_addr(a, NR, row0):
    a.e("v_lshrrev_b32 v12, 5, v2")
    a.e(f"v_mul_u32_u24 v12, {NR}, v12")
    a.e(f"v_add_u32 v12, {row0}, v12")
    a.e("v_and_b32 v13, 31, v2")
    a.e("v_lshlrev_b32 v13, 4, v13")
    a.e("v_lshl_add_u32 v14, v12, 9, v13")
    a.e("s_and_b32 s26, s25, 3")
    a.e("s_lshl_b32 s26, s26, 15")
    a.e("v_add_u32 v4, s26, v14")
    a.e("v_add_u32 v7, s49, v14")
    a.e("v_and_b32 v14, 4, v12")
    a.e("v_lshlrev_b32 v14, 5, v14")
    a.e("v_xor_b32 v8, v7, v14")
    a.e(f"v_add_u32 v10, {LDS_TAP}, v13")
    a.e(f"v_add_u32 v13, {LDS_HALO}, v13")
    a.e("v_cmp_eq_u32 vcc, 0, v12")
    a.e("v_subrev_u32 v5, 1024, v4")
    a.e(f"v_add_u32 v6, {512*NR}, v4")
    a.e("v_cndmask_b32 v5, v5, v13, vcc")
    a.e(f"v_cmp_eq_u32 vcc, {64-NR}, v12")
    a.e("v_add_u32 v13, 1024, v13")
    a.e("v_lshlrev_b32 v9, 3, v12")
    a.e("v_cndmask_b32 v6, v6, v13, vcc")
    a.e(f"v_add_u32 v9, {LDS_STT}, v9")

def gen_tail(a, L, st, fs, opt):
    q = Seq(a)
    PF = opt.get("pf", 10)
    q.vm = [f"A{k}" for k in range(PF) for _ in range(4)]
    BF = [32, 48]; YR = 64; XR = 96
    NS = 32
    acc = lambda k: 128 if k < 16 else 192
    def bread(k, tb):
        s = k % 8
        r = BF[k % 2] + 4 * tb
        if k % 16 < 8:
            return f"ds_read_b128 v[{r}:{r+3}], v6 offset:{8192*tb + 1024*s}"
        return f"ds_read_b128 v[{r}:{r+3}], v{28 + s % 4} offset:{8192*tb + 256*(s//4)}"
    a.e("v_add_u32 v6, s48, v3")
    a.e("s_waitcnt lgkmcnt(0)")
    fs(5)
    a.e("s_barrier")
    for tb in range(4): q.l(bread(0, tb), "B0")
    a.e("v_and_b32 v4, 15, v2")
    a.e("v_lshrrev_b32 v5, 4, v2")
    a.e("v_mov_b32 v12, 1")
    a.e("s_mov_b32 s43, 0xffff0000")
    side = {}
    def at(k, g, fn): side.setdefault((k + g // 16, g % 16), []).append(fn)
    def spread(k, g, ops, per=2, skip=lambda g: False):
        n = 16 * k + g
        ops = list(ops)
        while ops:
            if not skip(n % 16):
                for _ in range(per):
                    if ops:
                        o = ops.pop(0)
                        at(n // 16, n % 16, o if callable(o) else (lambda o=o: a.e(o)))
            n += 1
    lo8 = lambda g: g < 8
    spread(0, 8, ["v_and_b32 v13, 7, v4", "v_lshlrev_b32 v13, 1, v13", "v_xor_b32 v13, v13, v5", "v_lshlrev_b32 v13, 4, v13",
                  "v_lshl_add_u32 v13, v4, 9, v13", "v_add_u32 v28, s49, v13", "v_xor_b32 v29, 64, v28", "v_xor_b32 v30, 128, v28",
                  "v_xor_b32 v31, 192, v28",
                  "s_and_b32 s26, s16, 2", "s_add_u32 s26, s26, s25", "s_and_b32 s26, s26, 3", "s_lshl_b32 s26, s26, 1",
                  "s_and_b32 s28, s16, 1", "s_add_u32 s26, s26, s28", "s_lshl_b32 s26, s26, 14",
                  "v_xor_b32 v13, v4, v5", "v_lshlrev_b32 v13, 4, v13", "v_lshl_add_u32 v13, v4, 8, v13", "v_add_u32 v8, s26, v13",
                  "v_xor_b32 v9, 64, v8", "v_xor_b32 v10, 128, v8", "v_xor_b32 v11, 192, v8",
                  "v_lshrrev_b32 v13, 3, v2", "v_and_b32 v14, 7, v2", "v_lshlrev_b32 v24, 1, v14", "v_xor_b32 v24, v24, v13",
                  "v_lshlrev_b32 v24, 4, v24", "v_lshl_add_u32 v24, v13, 8, v24", "v_add_u32 v24, s26, v24",
                  "v_xor_b32 v25, 16, v24", "v_xor_b32 v26, 128, v24", "v_xor_b32 v27, 144, v24",
                  "v_lshlrev_b32 v15, 4, v14", "v_lshl_add_u32 v15, v13, 10, v15"], skip=lo8)
    for i in range(8):
        def xl(i=i):
            a.e(f"s_add_u32 s26, s58, {8192*i}")
            q.v(f"buffer_load_dwordx4 v[{XR+4*i}:{XR+4*i+3}], v15, s[32:35], s26 offen", "X")
        at(opt.get("kx", 26), 1 + opt.get("dx", 4) * i, xl)
    YS = opt.get("ys", 2)
    for i in range(8):
        tb, h = i % 4, i // 4
        k, g0 = (16 + i // 2, 8 + 4 * (i % 2)) if YS == 2 else (16, 8 + 3 * i)
        src = [128 + 16 * (2 * h + ee) + 4 * tb + j for ee in range(2) for j in range(4)]
        for j in range(4):
            at(k, g0 + j // 2, lambda j=j, i=i, src=src: a.e(f"v_cvt_pk_bf16_f32 v{YR+4*i+j}, v{src[2*j]}, v{src[2*j+1]}"))
        at(k, g0 + 2, lambda i=i: q.v(f"buffer_store_dwordx4 v[{YR+4*i}:{YR+4*i+3}], v3, s[12:15], s{54 + i//4} offen offset:{1024*(i%4)} {opt.get('sm_', 'nt')}", "Yst"))
    KF, KL, KC = opt.get("k", (24, 27, 29))
    at(KF, 9, lambda: release(a, q, L, "ry", "Yst", "buffer_store_dword v12, off, s[12:15], s56"))
    yl = f"buffer_load_dword v14, off, s[12:15], s57 {opt.get('pm', 'sc1')}"
    at(KL, 9, lambda: q.v(yl, "yf"))
    def gety():
        poll(a, q, L, "y", [yl], ["v_readfirstlane_b32 s26, v14", "s_cmp_eq_u32 s26, 1"], "yf", slp=1)
        acquire(a, L, "ay")
        a.e("s_xor_b32 s54, s54, 0x10000")
        a.e("s_xor_b32 s55, s55, 0x10000")
    at(KC, 7, gety)
    for i in range(8):
        at(KC, 8 + i, lambda i=i: q.v(f"buffer_load_dwordx4 v[{YR+4*i}:{YR+4*i+3}], v3, s[12:15], s{54 + i//4} offen offset:{1024*(i%4)} {opt.get('lm', 'sc1')}", f"Y{i}"))
    XF = 128
    KU = opt.get("ku", 30)
    at(KU, 0, lambda: q.wait("X"))
    spread(KU, 0, [x for i in range(32) for x in (f"v_lshlrev_b32 v{XF+2*i}, 16, v{XR+i}", f"v_and_b32 v{XF+2*i+1}, s43, v{XR+i}")])
    nl = 4 * PF
    AS = opt.get("as", "4" * 16 + "0000" + "4" * 12)
    LG = opt.get("lg", (1, 5, 9, 13, 3))
    for k in range(NS):
        assert nl >= 4 * min(NS, k + 3)
        if k == 0: st(5)
        if k in FK: fs(6 + FK.index(k))
        q.wait(f"A{k}", f"B{k}")
        g = 0
        for nb in range(4):
            for tb in range(4):
                d = acc(k) + 16 * nb + 4 * tb; r = areg(k, nb); b = BF[k % 2] + 4 * tb
                c = "0" if k % 16 == 0 else f"v[{d}:{d+3}]"
                a.e(f"{M16} v[{d}:{d+3}], a[{r}:{r+3}], v[{b}:{b+3}], {c}")
                if g < 8 and g % 2 == 0 and k + 1 < NS:
                    q.l(bread(k + 1, g // 2), f"B{k+1}")
                if nl < 4 * NS and nl // 4 < k + NA and g in LG[:int(AS[k])]:
                    aload(a, q, nl // 4, nl % 4); nl += 1
                for fn in side.pop((k, g), []): fn()
                g += 1
    assert not side, side.keys()
    st(6); fs(13)
    T0 = 16
    for i in range(8):
        tb, h = i % 4, i // 4
        q.wait(f"Y{i}")
        for j in range(4):
            a.e(f"v_lshlrev_b32 v{T0+2*j}, 16, v{YR+4*i+j}")
            a.e(f"v_and_b32 v{T0+2*j+1}, s43, v{YR+4*i+j}")
        for j in range(4):
            d = 192 + 16 * (2 * h + j // 2) + 4 * tb + 2 * (j % 2)
            a.e(f"v_pk_add_f32 v[{d}:{d+1}], v[{d}:{d+1}], v[{T0+2*j}:{T0+2*j+1}]")
        for ee in range(2):
            nb = 2 * h + ee; d = 192 + 16 * nb + 4 * tb
            q.l(f"ds_write_b128 v{8+nb}, v[{d}:{d+3}] offset:{4096*tb}", "Ew")
        if h == 1:
            for ii in (2 * tb, 2 * tb + 1):
                for hh in range(2):
                    r = ER(ii) + 4 * hh
                    q.l(f"ds_read_b128 v[{r}:{r+3}], v{24 + 2*(ii%2) + hh} offset:{2048*ii}", f"E{ii}")
    fs(14)
    for i in range(8):
        q.wait(f"E{i}")
        for k in range(4):
            r = ER(i) + 2 * k
            a.e(f"v_pk_add_f32 v[{r}:{r+1}], v[{r}:{r+1}], v[{XF+8*i+2*k}:{XF+8*i+2*k+1}]")
        for k in range(4):
            r = ER(i) + 2 * k
            a.e(f"v_cvt_pk_bf16_f32 v{XF+8*i+k}, v{r}, v{r+1}")
        a.e(f"s_add_u32 s26, s58, {8192*i}")
        q.v(f"buffer_store_dwordx4 v[{XF+8*i}:{XF+8*i+3}], v15, s[36:39], s26 offen {opt.get('omod', 'nt')}")

def ER(i):
    return (96 + 8 * i) if i < 4 else (32 + 8 * (i - 4))

def areg(k, nb):
    return ARING[k % NA] + 4 * nb

def aload(a, q, k, nb):
    s = k % 8
    if nb == 0:
        if k % 16 < 8:
            a.e(f"s_add_u32 s59, {'s52' if k < 16 else 's53'}, {524288 + 32768*(s//4) + 4096*(s%4)}")
        else:
            a.e(f"s_add_u32 s59, {'s50' if k < 16 else 's51'}, {4096*s}")
    r = areg(k, nb)
    q.v(f"buffer_load_dwordx4 a[{r}:{r+3}], v3, s[12:15], s59 offen offset:{1024*nb} sc1", f"A{k}")

def gen_attn(a, name, stamp=False, opt=None):
    dg = [9 + 12 * g + 3 * j for g in range(4) for j in range(4)]
    opt = dict(dict(ps=1, xe=1, qw=62, dg=dg, mg=[8, 20, 32, 44, 60], rg=[d + e for d in dg for e in (1, 2)], rot=4,
                    kg_=list(range(8, 16)) + list(range(24, 32)), qbe=57, pbe=58), **(opt or {}))
    OOL[:] = []
    DROP[:] = opt.get('drop', [])
    ALIGN[0] = opt.get('al', 0)
    Fine.op = 's_memtime' if opt.get('cyc') else 's_memrealtime'
    nP = 16
    L = lambda s: f"{name}_{s}"
    st = Stamper(a, stamp in (1, 5))
    fs = Fine(a, stamp == 2)
    ff = Fine(a, stamp == 3)
    fp = Fine(a, stamp == 6)
    kernel_begin(a, name)
    a.e("s_cmp_ge_u32 s2, 256")
    a.e(f"s_cbranch_scc1 {L('end')}")
    a.e(f"s_load_dwordx2 s[4:5], s[0:1], {KA['ws']}")
    a.e(f"s_load_dwordx2 s[6:7], s[0:1], {KA['x']}")
    a.e(f"s_load_dwordx2 s[40:41], s[0:1], {KA['wq']}")
    a.e(f"s_load_dwordx2 s[8:9], s[0:1], {KA['wk']}")
    a.e(f"s_load_dwordx2 s[96:97], s[0:1], {KA['wup']}")
    a.e(f"s_load_dwordx2 s[44:45], s[0:1], {KA['dw']}")
    a.e(f"s_load_dwordx4 s[48:51], s[0:1], {KA['out']}")
    a.e(f"s_load_dwordx4 s[52:55], s[0:1], {KA['wv']}")
    a.e(f"s_load_dwordx4 s[56:59], s[0:1], {KA['wdn']}")
    a.e("s_and_b32 s20, s2, 7")
    a.e("s_lshl_b32 s20, s20, 5")
    a.e("s_lshr_b32 s21, s2, 3")
    a.e("s_add_u32 s31, s20, s21")
    if opt.get("map") == 1:
        a.e("s_and_b32 s20, s2, 6")
        a.e("s_lshl_b32 s20, s20, 5")
        a.e("s_lshl_b32 s21, s21, 1")
        a.e("s_add_u32 s31, s20, s21")
        a.e("s_and_b32 s20, s2, 1")
        a.e("s_add_u32 s31, s31, s20")
    a.e("s_lshr_b32 s21, s31, 7")
    a.e("s_and_b32 s22, s31, 1")
    a.e("s_bfe_u32 s23, s31, 0x60001")
    a.e("v_lshrrev_b32 v1, 6, v0")
    a.e("v_and_b32 v2, 63, v0")
    a.e("v_readfirstlane_b32 s16, v1")
    a.e("v_lshlrev_b32 v3, 4, v2")
    a.e("s_mul_i32 s24, s21, 4096000")
    N0 = opt.get("n0", 62)
    a.e(f"s_mul_i32 s25, s22, {125 - 2*N0}")
    a.e(f"s_add_i32 s25, s25, {N0}")
    a.e("s_lshl_b32 s27, s23, 16")
    a.e("s_waitcnt lgkmcnt(0)")
    st(0); ff(0)
    def fin_srd(d, n):
        a.e(f"s_and_b32 s{d+1}, s{d+1}, 0xffff")
        a.e(f"s_mov_b32 s{d+2}, {n}")
        a.e(f"s_mov_b32 s{d+3}, 0x00020000")
    q = Seq(a)
    srd_off(a, 32, 6, "s24", 4096000)
    a.e("v_lshrrev_b32 v4, 3, v2")
    a.e("v_and_b32 v5, 7, v2")
    a.e("v_lshlrev_b32 v5, 4, v5")
    a.e("v_lshl_add_u32 v4, v4, 10, v5")
    a.e("s_lshl_b32 s26, s16, 14")
    a.e("s_add_u32 s26, s26, s27")
    a.e("s_lshl_b32 s28, s22, 9")
    a.e("s_add_u32 s26, s26, s28")
    for s_ in range(16):
        if s_ % 4 == 0: a.e(f"s_xor_b32 s28, s26, {8192*(s_//8) + 512*((s_//4)%2)}")
        q.v(f"buffer_load_dwordx4 v[{16+4*s_}:{19+4*s_}], v4, s[32:35], s28 offen offset:{128*(s_%4)} {opt.get('xmod', 'nt')}", f"x{s_}")
    fin_srd(96, 1048576)
    touches(a, q, L, opt)
    fin_srd(40, 524288); fin_srd(8, 524288); fin_srd(44, 5120)
    make_srd(a, 12, 4, 0x4000000)
    make_srd(a, 92, 50, 256)
    srd_off(a, 36, 48, "s24", 4096000)
    mi = m_issue(a, q)
    def clear():
        a.e("v_mov_b32 v14, 0")
        a.e("v_lshlrev_b32 v13, 2, v2")
        a.e("s_lshl_b32 s26, s31, 2")
        a.e("s_add_u32 s26, s26, s16")
        a.e("s_lshl_b32 s28, s26, 8")
        a.e(f"s_add_u32 s28, s28, {WS_MX}")
        q.v("buffer_store_dword v14, v13, s[12:15], s28 offen sc1", "St")
        a.e("s_lshl_b32 s28, s31, 5")
        a.e("s_add_u32 s28, s28, s16")
        a.e("s_lshl_b32 s28, s28, 2")
        a.e(f"s_add_u32 s28, s28, {WS_FL}")
        a.e("v_and_b32 v13, 48, v2")
        a.e("s_getreg_b32 s26, hwreg(HW_REG_XCC_ID, 0, 4)")
        a.e("v_cmp_eq_u32 vcc, 48, v13")
        a.e("v_mov_b32 v14, s26")
        a.e("s_nop 0")
        a.e("v_cndmask_b32 v14, 0, v14, vcc")
        q.v("buffer_store_dword v14, v13, s[12:15], s28 offen sc1", "St")
    a.e("s_cmp_ge_u32 s23, 63")
    a.e(f"s_cbranch_scc1 {L('aux')}")
    def emit_aux(q0=q, vm0=list(q.vm)):
        a.label(L("aux"))
        q0.vm, q0.lg = list(vm0), []
        for f in mi: f()
        q0.v("buffer_load_dword v0, v7, s[44:47], 0 offen")
        m_addr(a)
        mfin = m_tile(a, q0)
        mfin()
        q0.all()
        a.e("s_barrier")
        signal(a, L, "sig1a", 0, 0)
        signal(a, L, "sig2a", 1, 8)
        signal(a, L, "sig3a", 2, 4)
        a.e("s_lshl_b32 s20, s21, 1")
        a.e("s_add_u32 s20, s20, s22")
        gen_aux(a, L, st, ff, opt)
        signal(a, L, "sig4a", 0, 12, shard=False)
        for k in range(5, 7): st(k)
        for k in range(15): fs(k)
        if stamp in (4, 6):
            for k in range(16): Fine(a, True)(k)
        for k in range(9, 15): ff(k)
        a.e(f"s_branch {L('fin')}")
    qk_part, pv_part = gen_front(a, q, L, st, ff, mi, clear, opt)
    qf = q
    qk_part()
    def tail_consts():
        t = Asm()
        t.e("s_lshl_b32 s26, s22, 2")
        t.e("s_add_u32 s26, s26, s16")
        t.e("s_lshl_b32 s53, s26, 16")
        t.e(f"s_add_u32 s53, s53, {WS_W3}")
        t.e("s_xor_b32 s52, s53, 0x40000")
        t.e("s_lshl_b32 s58, s26, 7")
        t.e("s_add_u32 s58, s58, s27")
        t.e("s_xor_b32 s54, s31, 1")
        t.e("s_lshl_b32 s54, s54, 3")
        t.e("s_add_u32 s54, s54, s16")
        t.e("s_lshl_b32 s54, s54, 13")
        t.e(f"s_add_u32 s54, s54, {WS_GU + 32768}")
        t.e("s_add_u32 s55, s54, 4096")
        t.e("s_lshl_b32 s26, s22, 15")
        t.e("s_add_u32 s50, s52, s26")
        t.e("s_add_u32 s51, s53, s26")
        t.e("s_lshl_b32 s26, s22, 14")
        t.e("s_add_u32 s52, s52, s26")
        t.e("s_add_u32 s53, s53, s26")
        t.e("s_add_u32 s26, s25, 3")
        t.e("s_and_b32 s26, s26, 3")
        t.e("s_lshl_b32 s48, s26, 15")
        t.e("s_add_u32 s26, s25, 1")
        t.e("s_and_b32 s26, s26, 3")
        t.e("s_lshl_b32 s49, s26, 15")
        t.e("s_lshl_b32 s56, s31, 5")
        t.e("s_add_u32 s56, s56, s16")
        t.e("s_lshl_b32 s56, s56, 2")
        t.e(f"s_add_u32 s56, s56, {WS_FL}")
        t.e("s_xor_b32 s57, s56, 128")
        return [x.strip() for x in t.lines]
    a.e("s_mov_b32 s17, s25")
    a.e(f"s_mov_b32 s101, {f2u(-BIG)}")
    def guard(r):
        return [f"v_add_f32 v{r}, v{r}, v{r+1}", f"v_cmp_nle_f32 vcc, s101, v{r}", "s_cmp_eq_u32 s101, 0", "s_cselect_b64 s[28:29], 0, vcc",
                "s_cmp_lg_u64 s[28:29], 0", f"s_cbranch_scc1 {L('redo')}"]

    def dma_group():
        return "s_and_b32 m0, s18, 0x1ffff", [f"buffer_load_dwordx4 v3, s[8:11], s18 offen offset:{1024*j} {opt.get('kvmod', 'sc1')} lds" for j in range(4)]
    def dma_tile():
        for g in range(4):
            pre, ld = dma_group()
            a.e(pre); a.e("s_nop 0")
            for x in ld: a.e(x)
            a.e(f"s_add_u32 s18, s18, {4096 if g < 3 else 32768 - 3*4096}")
    def place_dma(fill, gaps):
        k = 0
        for g in range(4):
            pre, ld = dma_group()
            fill.setdefault(gaps[k] - 1, []).append(pre)
            for j in range(4):
                fill.setdefault(gaps[k], []).append(ld[j]); k += 1
            fill.setdefault(gaps[k - 1] + 1, []).append(f"s_add_u32 s18, s18, {4096 if g < 3 else 32768 - 3*4096}")
    auxl = cnt_load(4, "v11")
    auxc = ["v_cmp_le_u32 vcc, v7, v14"] + CNT_OK[1:]

    KB = [32, 96]; S = 160; NEGM = 176; E = 192; PK = 200; LS = 204
    VK = 8; VPW = 9; TMP = 10
    MX0 = 208
    def qk_setup():
        a.e("v_and_b32 v4, 15, v2")
        a.e("v_lshrrev_b32 v5, 4, v2")
        a.e("v_and_b32 v6, 0x27, v2")
        a.e("v_and_b32 v7, 8, v2")
        a.e("v_lshl_add_u32 v6, v7, 1, v6")
        a.e("v_and_b32 v7, 16, v2")
        a.e("v_lshrrev_b32 v7, 1, v7")
        a.e("v_add_lshl_u32 v6, v6, v7, 4")
        a.e("s_lshl_b32 s29, s16, 14")
        a.e(f"v_add_u32 v{VK}, s29, v6")
        a.e("s_lshl_b32 s29, s16, 11")
        a.e(f"s_add_u32 s29, s29, {LDS_P}")
        a.e(f"v_lshl_add_u32 v{VPW}, v2, 3, s29")
        for i in range(4):
            a.e(f"v_mov_b32 v{LS+i}, 0")
        for i in range(4):
            a.e(f"v_mov_b32 v{MX0+i}, 0xff800000")
    qk_setup()
    qf.wait("kv0", "qd")
    qf.all(vm=False)
    a.e("s_barrier")
    st(2); ff(10)
    def kread(par, s, imm):
        r = KB[par] + 4 * s
        return f"ds_read_b128 v[{r}:{r+3}], v{VK} offset:{imm + 1024*s}"
    def chain(par, qb, c0):
        out = []
        for s in range(16):
            k = KB[par] + 4 * s; q = 64 * qb + 4 * s; d = S + 4 * qb
            c = c0 if s == 0 else f"v[{d}:{d+3}]"
            out.append(f"{M16} v[{d}:{d+3}], v[{k}:{k+3}], a[{q}:{q+3}], {c}")
        return out
    q = Seq(a)
    mf = [m for qb in range(4) for m in chain(0, qb, "0")]
    ST = 212
    tc = tail_consts() + [
        "s_mul_i32 s28, s16, 34", "s_lshl_b32 s29, s23, 6", "s_add_u32 s28, s28, s29", "s_sub_u32 s28, s28, 2",
        f"v_add_u32 v{ST+16}, s28, v2",
        f"v_max_i32 v{ST+17}, 0, v{ST+16}", f"v_min_i32 v{ST+17}, {T-1}, v{ST+17}", f"v_lshrrev_b32 v{ST+18}, 6, v{ST+17}", f"v_and_b32 v{ST+17}, 63, v{ST+17}",
        f"v_lshlrev_b32 v{ST+17}, 3, v{ST+17}", f"v_lshl_add_u32 v{ST+17}, v{ST+18}, 12, v{ST+17}",
        "s_lshr_b32 s6, s31, 7", "s_lshl_b32 s6, s6, 18", f"s_add_u32 s6, s6, {WS_ST}",
        "s_lshl_b32 s28, s16, 1", "s_add_u32 s28, s28, s23", "s_sub_u32 s28, s28, 1", "s_max_i32 s28, s28, 0", "s_min_i32 s28, s28, 62",
        "s_sub_u32 s28, s28, s23", "s_lshl_b32 s28, s28, 1", "s_add_u32 s28, s28, s31", "s_lshl_b32 s28, s28, 16",
        "s_xor_b32 s29, s16, 1", f"s_mul_i32 s29, s29, {62*512}", "s_add_u32 s28, s28, s29", f"s_add_u32 s7, s28, {WS_GU}",
        "s_lshl_b32 s29, s16, 10", f"s_add_u32 s42, s29, {LDS_HALO}",
        "s_xor_b32 s28, s31, 1", "s_lshl_b32 s28, s28, 1", "s_add_u32 s28, s28, s16", "s_lshl_b32 s28, s28, 9", f"s_add_u32 s28, s28, {WS_MX}",
        f"v_lshl_add_u32 v{ST+18}, v2, 3, s28", f"v_writelane_b32 v{ST+18}, s57, 1",
        f"s_mul_i32 s28, s16, {34*8}", f"s_add_u32 s28, s28, {LDS_STT}", f"v_lshl_add_u32 v{ST+19}, v2, 3, s28"]
    if opt.get("qe"):
        for n in range(12): q.l(kread(0, n, 0), f"K{n}")
        for n in range(64):
            q.e(mf[n], need=(f"K{n}",))
            if n < 4: q.l(kread(0, 12 + n, 0), f"K{12+n}")
            elif tc: a.e(tc.pop(0))
    else:
        a.e(f"v_add_u32 v7, {LDS_XS}, v3")
        rd = []
        for n in range(64):
            qb, s = n // 16, n % 16
            rd.append((f"ds_read_b128 a[{64*qb+4*s}:{64*qb+4*s+3}], v7 offset:{16384*((s%8)//2) + 8192*(s//8) + 2048*qb + 1024*(s%2)}", f"Q{n}"))
            if qb == 0: rd.append((kread(0, s, 0), f"Q{n}"))
        for _ in range(14): q.l(*rd.pop(0))
        for n in range(64):
            if n % 2 == 0: q.wait(f"Q{n+1}")
            a.e(mf[n])
            for _ in range(2 if n < 14 else 1):
                if rd: q.l(*rd.pop(0))
            for _ in range(0 if n < 14 else 1 if rd else 3):
                if tc: a.e(tc.pop(0))
        a.label(L("qk_again"))
        a.e("s_barrier")
    assert not tc
    a.e("s_nop 7")
    for qb in range(4):
        d = S + 4 * qb
        a.e(f"v_max3_f32 v{E+qb}, v{d}, v{d+1}, v{d+2}")
        a.e(f"v_max3_f32 v{E+qb}, v{E+qb}, v{d+3}, v{MX0+qb}")
    def group_reduce(r, t, op):
        for sw in ("v_permlane16_swap_b32", "v_permlane32_swap_b32"):
            for qb in range(4):
                a.e(f"v_mov_b32 v{t+qb}, v{r+qb}")
            a.e("s_nop 1")
            for qb in range(4):
                a.e(f"{sw} v{r+qb}, v{t+qb}")
            a.e("s_nop 1")
            for qb in range(4):
                a.e(f"{op} v{r+qb}, v{r+qb}, v{t+qb}")
    group_reduce(E, E + 4, "v_max_f32")
    a.e("s_lshl_b32 s29, s16, 8")
    a.e(f"s_add_u32 s29, s29, {LDS_MX}")
    a.e(f"v_lshl_add_u32 v{TMP}, v4, 4, s29")
    a.e(f"ds_write_b128 v{TMP}, v[{E}:{E+3}]")
    a.e(f"v_xor_b32 v{TMP}, 256, v{TMP}")
    a.e("s_waitcnt vmcnt(0) lgkmcnt(0)")
    a.e("s_barrier")
    a.e(f"ds_read_b128 v[{E+4}:{E+7}], v{TMP}")
    for s in range(8):
        a.e(kread(1, s, 32768))
    a.e("s_waitcnt lgkmcnt(8)")
    for qb in range(4):
        a.e(f"v_max_f32 v{E+qb}, v{E+qb}, v{E+4+qb}")
    for qb in range(4):
        for j in range(4):
            a.e(f"v_sub_f32 v{NEGM+4*qb+j}, 0, v{E+qb}")
    a.e("s_waitcnt lgkmcnt(4)")
    for s in range(8, 16):
        a.e(kread(1, s, 32768))
    for qb in range(4):
        for j in range(4):
            a.e(f"v_add_f32 v{S+4*qb+j}, v{S+4*qb+j}, v{NEGM+4*qb}")
    def softmax_ops(qb, par):
        e = E + 4 * (qb % 2); p = PK + 2 * (qb % 2); d = S + 4 * qb
        ex = [f"v_exp_f32{opt.get('e64', '')} v{e+j}, v{d+j}" for j in range(4)]
        ad = [f"v_add_f32 v{LS+qb}, v{LS+qb}, v{e+j}" for j in range(4)]
        cv = [f"v_cvt_pk_bf16_f32 v{p+j}, v{e+2*j}, v{e+2*j+1}" for j in range(2)]
        wr = f"ds_write_b64 v{VPW}, v[{p}:{p+1}] offset:{par*4096 + qb*512}"
        return ex, ad, cv, wr
    ex, ad, cv, wr = softmax_ops(0, 0)
    for x in ex + ["s_nop 0"] + cv + ad + [wr]: a.e(x)
    a.e("s_waitcnt lgkmcnt(1)")
    fill = {}
    ops = []
    for qb in range(1, 4):
        ex, ad, cv, wr = softmax_ops(qb, 0)
        ops += ex + [ad[0]] + cv + ad[1:] + [wr]
    for i, x in enumerate(ops):
        fill.setdefault(i * 15 // len(ops), []).append(x)
    ROT = opt.get("rot", 0)
    emit_interval(a, chain(1, 0, f"v[{NEGM}:{NEGM+3}]") + chain(1, 1, f"v[{NEGM+4}:{NEGM+7}]")[:ROT], fill)
    a.e("s_waitcnt lgkmcnt(0)")
    a.e("s_sub_u32 s17, s17, 1")
    a.e("s_barrier")

    XT = ["buffer_load_dword v0, v7, s[32:35], s40 offen", "s_add_u32 s40, s40, 1024"]
    def qk_interval(par, lo=0, hi=None):
        mf = []
        for c in range(5):
            qb = (c + 1) % 4
            mf += chain(par if c < 3 else par ^ 1, qb, f"v[{NEGM+4*qb}:{NEGM+4*qb+3}]")
        mf = mf[ROT:64 + ROT]
        fill = {}
        F_ = lambda g, x: fill.setdefault(g, []).append(x)
        rgaps = opt.get("kg_", [1, 2, 3, 12, 13, 14, 16, 17, 18, 28, 29, 30, 32, 33, 34, 35])
        if par == 1: F_(rgaps[0] - 1, f"v_xor_b32 v{VK}, 0x10000, v{VK}")
        imm = 32768 * (par ^ 1)
        for s in range(16):
            F_(rgaps[s], kread(par ^ 1, s, imm))
        sm = opt.get("sm", [4, 5, 6, 7, 8, 8, 9, 10, 10, 11, 11])
        for c in range(4):
            ex, ad, cv, wr = softmax_ops(c, par)
            for g, x in zip(sm, ex + cv + [wr] + ad): F_(16 * c + g - ROT, x)
        kw = 47 - ROT
        nwr = sum(1 for c in range(4) if rgaps[-1] <= 16 * c + sm[6] - ROT <= kw)
        F_(kw, f"s_waitcnt lgkmcnt({nwr})")
        F_(kw + 1, "s_sub_u32 s17, s17, 1")
        if par == 1:
            F_(kw - 3, "s_cmp_lt_u32 s17, s40")
            fill.setdefault(kw - 2, []).extend([f"s_cbranch_scc1 {L('touch')}", L("touch_ret") + ":"])
        if stamp == 7:
            F_(kw + 2, "s_mov_b32 m0, s17"); F_(kw + 3, "v_writelane_b32 v240, s60, m0"); F_(kw + 3, "s_memtime s[60:61]")
        if opt.get("kt"):
            F_(opt["kt"][1], "buffer_load_dword v0, v3, s[8:11], s41 offen sc1"); F_(46, "s_add_u32 s41, s41, 32768")
        XE = opt.get("xe", 0)
        F_(59 if XE else 62, "s_cmp_eq_u32 s17, 0")
        if XE: F_(60, f"s_cbranch_scc1 {L('qk_exit')}")
        F_(opt.get("qw", 63), "s_waitcnt lgkmcnt(0)"); F_(63, "s_barrier")
        for c in range(4):
            last, first = 16 * c - 1 - ROT, 16 * c + sm[0] - ROT
            n = first - last + sum(len([x for x in fill.get(g % 64, []) if not x.endswith(":")]) for g in range(last, first))
            g = last + 2
            while n < 8:
                F_(g % 64, "s_nop 0"); n += 1; g += 1
                assert g <= first
        emit_interval(a, mf, fill, lo, hi)

    if stamp == 7:
        a.e("v_mov_b32 v240, 0")
        a.e("s_memtime s[60:61]")
    a.e("v_and_b32 v11, 3, v2")
    a.e("v_lshlrev_b32 v11, 6, v11")
    a.e("v_mov_b32 v7, 64")
    a.e("v_writelane_b32 v11, 8, 4")
    a.e("v_writelane_b32 v7, 4, 4")
    if opt.get("kt"):
        a.e("s_lshr_b32 s41, s2, 4")
        a.e("s_lshl_b32 s41, s41, 1")
        a.e("s_add_u32 s41, s41, s16")
        a.e("s_lshl_b32 s41, s41, 10")
        a.e(f"s_add_u32 s41, s41, {32768 * opt['kt'][0]}")
    a.e("s_lshr_b32 s40, s31, 1")
    a.e(f"s_and_b32 s40, s40, {opt.get('xs', 15)}")
    a.e("s_lshl_b32 s40, s40, 1")
    a.e(f"s_add_u32 s40, s40, {opt.get('xb', 12)}")
    st(3); ff(11)
    QB = opt.get("qbe", 0)
    if QB:
        a.e(f"s_branch {L('qk_in')}")
        a(".p2align 6")
        a.label(L("qk_loop"))
        XE = opt.get("xe", 0)
        qk_interval(0, QB)
        if not XE: a.e(f"s_cbranch_scc1 {L('qk_done')}")
        a.label(L("qk_in"))
        qk_interval(1)
        if not XE: a.e(f"s_cbranch_scc1 {L('qk_done')}")
        qk_interval(0, 0, QB)
        a.e(f"s_branch {L('qk_loop')}")
        a.label(L("qk_exit"))
        a.e("s_waitcnt lgkmcnt(0)")
        a.e("s_barrier")
    else:
        a(".p2align 6")
        a.label(L("qk_loop"))
        qk_interval(1)
        a.e(f"s_cbranch_scc1 {L('qk_done')}")
        qk_interval(0)
        a.e(f"s_cbranch_scc0 {L('qk_loop')}")
    a.label(L("qk_done"))
    def tl(srd, so):
        a.e("v_lshlrev_b32 v12, 7, v2")
        a.e(f"buffer_load_dword v0, v12, s[{srd}:{srd+3}], {so} offen")
    def b_code():
        a.e("s_getpc_b64 s[28:29]")
        a.label(L("pc0"))
        a.e(f"s_sub_u32 s28, s28, {L('pc0')} - {L('qk_done')}")
        a.e("s_subb_u32 s29, s29, 0")
        a.e("s_lshr_b32 s30, s2, 3")
        a.e("s_lshl_b32 s30, s30, 1")
        a.e("s_add_u32 s30, s30, s16")
        a.e("s_lshl_b32 s30, s30, 10")
        a.e("v_lshl_add_u32 v12, v2, 4, s30")
        a.e(f"v_min_u32 v12, {L('end')} - {L('qk_done')}, v12")
        a.e("global_load_dword v0, v12, s[28:29]")
    def b_w(part):
        def f():
            a.e("s_lshr_b32 s30, s2, 3")
            a.e("s_lshl_b32 s30, s30, 1")
            a.e("s_add_u32 s30, s30, s16")
            a.e("s_lshl_b32 s30, s30, 13")
            a.e(f"s_add_u32 s30, s30, {WS_W3 + 524288*part}")
            tl(12, "s30")
        return f
    foldl = "buffer_load_dword v13, off, s[92:95], 0 offset:12 sc1"
    def b_c3():
        a.e("s_waitcnt vmcnt(0)")
        poll(a, Seq(a), L, "qk_c3", [auxl], auxc, "aux", slp=16)
    def b_c4():
        a.e("s_waitcnt vmcnt(0)")
        poll(a, Seq(a), L, "qk_c4", [foldl], ["v_readfirstlane_b32 s28, v13", "s_cmp_ge_u32 s28, 4"], "aux", slp=16)
    def b_small():
        a.e("s_mov_b32 m0, s42")
        for c in range(8):
            a.e(f"buffer_load_dwordx2 v[{ST+2*c}:{ST+2*c+1}], v{ST+17}, s[12:15], s6 offen offset:{512*c} sc1")
        a.e("buffer_load_dwordx4 v3, s[12:15], s7 offen sc1 lds")
        a.e(f"buffer_load_dword v0, v{ST+18}, s[12:15], 0 offen sc1")
    def b_stat():
        a.e("s_waitcnt vmcnt(0)")
        for ct in range(1, 8):
            a.e(f"v_pk_add_f32 v[{ST}:{ST+1}], v[{ST}:{ST+1}], v[{ST+2*ct}:{ST+2*ct+1}]")
        a.e(f"v_mul_f32 v{ST}, {f2u(1/512)}, v{ST}")
        a.e(f"v_mul_f32 v{ST+1}, {f2u(1/512)}, v{ST+1}")
        a.e(f"v_fma_f32 v{ST+1}, -v{ST}, v{ST}, v{ST+1}")
        a.e(f"v_max_f32 v{ST+1}, 0, v{ST+1}")
        a.e(f"v_add_f32 v{ST+1}, {f2u(1e-5)}, v{ST+1}")
        a.e(f"v_rsq_f32 v{ST+1}, v{ST+1}")
        a.e(f"v_cmp_gt_u32 vcc, {T}, v{ST+16}")
        a.e(f"v_mul_f32 v{ST}, v{ST}, v{ST+1}")
        a.e(f"v_sub_f32 v{ST}, 0, v{ST}")
        a.e(f"v_cndmask_b32 v{ST+2}, 0, v{ST+1}, vcc")
        a.e(f"v_cndmask_b32 v{ST+3}, 0, v{ST}, vcc")
        a.e(f"ds_write_b64 v{ST+19}, v[{ST+2}:{ST+3}]")
    def b_x(r0):
        def f():
            a.e("s_lshl_b32 s30, s22, 1")
            a.e("s_add_u32 s30, s30, s16")
            a.e("s_lshl_b32 s30, s30, 14")
            a.e("s_add_u32 s30, s30, s27")
            a.e(f"s_add_u32 s30, s30, {r0*1024}")
            tl(32, "s30")
        return f
    tb_fns = B = dict(code=b_code, l3=lambda: a.e(auxl), c3=b_c3, small=b_small, stat=b_stat, x0=b_x(0), x8=b_x(8), l4=lambda: a.e(foldl), c4=b_c4, w1=b_w(1), w0=b_w(0))
    st(4); fs(0); ff(13); fp(0)
    if stamp == 7:
        a.e("s_lshl_b32 s26, s2, 1")
        a.e("s_add_u32 s26, s26, s16")
        a.e("s_lshl_b32 s26, s26, 8")
        a.e(f"s_add_u32 s26, s26, {0x3F00000}")
        a.e("v_lshlrev_b32 v241, 2, v2")
        a.e("buffer_store_dword v240, v241, s[12:15], s26 offen")
    q = Seq(a)
    group_reduce(LS, E, "v_add_f32")
    a.e(f"v_mov_b32 v{E+2}, v{NEGM}")
    a.e(f"v_mov_b32 v{E+3}, v{LS}")
    for qb in range(1, 4):
        a.e(f"v_cmp_eq_u32 vcc, {qb}, v5")
        a.e("s_nop 1")
        a.e(f"v_cndmask_b32 v{E+2}, v{E+2}, v{NEGM+4*qb}, vcc")
        a.e(f"v_cndmask_b32 v{E+3}, v{E+3}, v{LS+qb}, vcc")
    a.e(f"v_or_b32 v{E+3}, 0x80000000, v{E+3}")
    a.e("s_lshl_b32 s28, s16, 9")
    a.e("s_lshl_b32 s30, s31, 10")
    a.e("s_add_u32 s30, s30, s28")
    a.e(f"s_add_u32 s30, s30, {WS_MX}")
    a.e(f"s_add_u32 s28, s28, {LDS_ML}")
    a.e(f"v_lshlrev_b32 v{E+4}, 3, v2")
    a.e(f"v_add_u32 v{TMP}, s28, v{E+4}")
    q.l(f"ds_write_b64 v{TMP}, v[{E+2}:{E+3}]")
    a.e(f"v_add_u32 v{TMP}, {LDS_ML + 4}, v{E+4}")
    tb_fns["stat"]()
    q.all(vm=False)
    fs(1)
    a.e("s_barrier")
    fs(2)
    q.l(f"ds_read2st64_b32 v[{E}:{E+1}], v{TMP} offset0:0 offset1:2", "lsum")
    a.e("s_lshl_b32 s28, s16, 5")
    conv_addr(a, 16, "s28")
    q.wait("lsum")
    for x in guard(E): a.e(x)
    release(a, q, L, "rm", None, f"buffer_store_dwordx2 v[{E+2}:{E+3}], v{E+4}, s[12:15], s30 offen", wb=False)
    cv = Conv(a, q, 16)
    cv.prep()
    fs(3)
    PF = opt.get("pf", 10); n = 0
    for j in range(20):
        if j in (0, 2, 4, 6, 8, 11, 14, 17): fp(1 + (0, 2, 4, 6, 8, 11, 14, 17).index(j))
        cv.row(j)
        if j >= opt.get("qa", 5):
            for _ in range(3):
                if n < 4 * PF:
                    aload(a, q, n // 4, n % 4); n += 1
    while n < 4 * PF:
        aload(a, q, n // 4, n % 4); n += 1
    fs(4)
    a.e(f"s_branch {L('tail')}")
    a.label(L("touch"))
    THR = 2 * int(opt.get("blocks", "2")[0]) + 2
    a.e(f"s_cmp_eq_u32 s40, {THR}")
    a.e(f"s_cbranch_scc1 {L('touchb')}")
    a.e(f"s_mov_b32 s40, {THR}")
    B["x0"](); B["x8"]()
    a.e(f"s_branch {L('touch_ret')}")
    a.label(L("touchb"))
    a.e("s_lshr_b32 s26, s17, 1")
    spec = opt.get("blocks", "2:l3 1:c3,small")
    blocks = {int(x.split(":")[0]): [B[y] for y in x.split(":")[1].split(",")] for x in spec.split()}
    for kx, fns in blocks.items():
        a.e(f"s_cmp_lg_u32 s26, {kx}")
        a.e(f"s_cbranch_scc1 {L('touch%d' % kx)}")
        for f in fns: f()
        a.e(f"s_branch {L('touch_ret')}")
        a.label(L("touch%d" % kx))
    a.e(f"s_branch {L('touch_ret')}")

    VB = [16, 80]; PR = [144, 160]
    VV = 8; VPR = 9; PH = opt.get('ph', 2)
    def oreg(db, qb):
        return (f"a[{4*qb}:{4*qb+3}]", None) if db == 0 else (f"v[{16*db+4*qb}:{16*db+4*qb+3}]", 16 * db + 4 * qb)
    def vread(par, db, kb):
        r = VB[par] + 4 * db + 2 * kb
        return f"ds_read_b64_tr_b16 a[{r}:{r+1}], v{VV if db < 8 else 11} offset:{32768*par + 16384*kb + 512*(db%8)}"
    def pvm(par, db, first=False):
        out = []
        for qb in range(4):
            d = oreg(db, qb)[0]; v = VB[par] + 4 * db; p = PR[par] + 4 * qb
            out.append(f"{M16} {d}, a[{v}:{v+3}], a[{p}:{p+3}], {'0' if first else d}")
        return out
    def pv_setup():
        a.e("s_sub_u32 s19, s16, 2")
        for x in tail_consts(): a.e(x)
        a.e("v_lshrrev_b32 v4, 5, v2")
        a.e("v_lshlrev_b32 v4, 8, v4")
        a.e("v_and_b32 v5, 2, v2")
        a.e("v_lshl_add_u32 v4, v5, 6, v4")
        a.e("v_and_b32 v5, 28, v2")
        a.e("v_lshl_add_u32 v4, v5, 2, v4")
        a.e("v_and_b32 v5, 1, v2")
        a.e("v_lshl_add_u32 v4, v5, 3, v4")
        a.e("s_lshl_b32 s29, s19, 13")
        a.e("s_lshl_b32 s28, s22, 12")
        a.e("s_add_u32 s28, s28, s29")
        a.e("v_add_u32 v11, s28, v4")
        a.e(f"v_xor_b32 v{VV}, 0x1000, v11")
        a.e("s_lshl_b32 s29, s19, 12")
        a.e("s_add_u32 s29, s29, s48")
        a.e("v_add_u32 v10, s29, v3")
        a.e("s_lshl_b32 s40, s31, 2")
        a.e("s_add_u32 s40, s40, s19")
        a.e("s_lshl_b32 s40, s40, 14")
        a.e(f"s_add_u32 s40, s40, {WS_GU + 32768}")
        a.e("s_lshl_b32 s28, s31, 16")
        a.e(f"s_add_u32 s28, s28, {WS_GU}")
        a.e("s_sub_u32 s28, s28, s10")
        a.e("s_add_u32 s98, s4, s28")
        a.e("s_addc_u32 s99, s5, 0")
        a.e("s_and_b32 s99, s99, 0xffff")
        a.e("s_add_u32 s100, s10, 65536")
        if opt.get("xr", 1):
            a.e("s_lshl_b32 s28, s22, 15")
            a.e("s_add_u32 s28, s28, s27")
            a.e("s_sub_u32 s3, 4096000, s28")
            a.e("s_add_u32 s3, s3, s100")
            a.e("s_add_u32 s96, s32, s28")
            a.e("s_addc_u32 s97, s33, 0")
            a.e("s_sub_u32 s96, s96, s100")
            a.e("s_subb_u32 s97, s97, 0")
        a.e(f"s_mov_b32 s29, {LDS_P}")
        a.e(f"v_lshl_add_u32 v{VPR}, v2, 3, s29")
        a.e(f"v_add_u32 v1, {LDS_ML + 4 - LDS_P}, v{VPR}")
        for g in range(1, 4): a.e(f"v_add_u32 v{4+g}, {4096*g}, v3")
    def pv_zero():
        pass
    def emit_pv_again():
        a.label(L("pv"))
        pv_setup()
        a.e("s_lshl_b32 s18, s19, 14")
        a.e("s_add_u32 s18, s18, 65536")
        dma_tile()
        pv_zero()
        a.e("s_barrier")
        a.e("s_waitcnt vmcnt(16)")
        a.e("s_barrier")
        dma_tile()
        for db in range(16):
            for kb in range(2):
                a.e(vread(0, db, kb))
            if db % 4 == 3: a.e("s_waitcnt lgkmcnt(4)")
        a.e(f"s_waitcnt vmcnt({nP}) lgkmcnt(0)")
        a.e(f"s_branch {L('pv_go')}")
    def taps():
        a.e("v_lshrrev_b32 v12, 5, v2")
        a.e("v_lshl_add_u32 v12, v12, 9, v3")
        a.e("s_lshl_b32 s28, s22, 9")
        out = []
        for i in range(3):
            a.e(f"s_mov_b32 m0, {LDS_TAP + 1024*i}")
            a.e(f"s_add_u32 s29, s28, {2048*i}")
            qf.v("buffer_load_dwordx4 v12, s[44:47], s29 offen lds")
    def setup1():
        pv_setup()
        a.e(f"s_mov_b32 s101, {f2u(-BIG)}")
    pv_part(setup1, [vread(0, db, kb) for db in range(16) for kb in range(2)], taps)
    a.label(L("pv_go"))
    a.e("s_lshl_b32 s18, s19, 14")
    a.e("s_add_u32 s18, s18, 131072")
    a.e("s_sub_u32 s17, s25, 1")
    a.e("s_barrier")

    pvq = []
    MR = 12; MO = 4; AL = 88; TT = 96; RX = 16
    mll = [f"buffer_load_dwordx2 v[{MR+2*w}:{MR+2*w+1}], v9, s[12:15], s42 offen offset:{512*w} {opt.get('pm', 'sc1')}" for w in range(2)]
    ol = f"buffer_load_dword v11, off, s[12:15], s57 offset:24 {opt.get('pm', 'sc1')}"
    def pv_interval(par, last=False, lo=0, hi=None, first=False):
        mf = [m for db in range(16 - PH, 16) for m in pvm(par, db)]
        if first:
            z = [f"v_pk_mul_f32 v[{i}:{i+1}], 0, 0" for i in range(256 - 16 * PH, 256, 2)]
            mf = [z[2 * i] + "\n    " + z[2 * i + 1] for i in range(4 * PH)]
        for db in range(16 if last else 16 - PH):
            mf += pvm(par ^ 1, db, first)
        fill = {}
        for qb in range(4):
            p = PR[par ^ 1] + 4 * qb
            fill.setdefault(opt.get('pg', [0, 0, 1, 1])[qb], []).append(f"ds_read2st64_b64 a[{p}:{p+3}], v{VPR} offset0:{8*(par^1)+qb} offset1:{8*(par^1)+4+qb}")
        rg = opt.get("rg", [8 + 3 * (i // 2) + (i % 2) for i in range(32)])
        fill.setdefault(4 * PH - 1, []).append(f"s_waitcnt lgkmcnt({0 if last else sum(1 for g in rg if g < 4 * PH - 1)})")
        if last:
            fs(0); fp(0)
            q = Seq(a)
            ops = []
            for sp in range(4):
                for qb in range(4):
                    o = []
                    if sp == 0:
                        o += [f"v_accvgpr_read_b32 v{4+j}, a{4*qb+j}" for j in range(4)]
                        lo = 4
                    else:
                        lo = oreg(2 * sp, qb)[1]
                    hi = oreg(2 * sp + 1, qb)[1]
                    o += [f"v_cvt_pk_bf16_f32 v{hi+3}, v{hi+2}, v{hi+3}", f"v_cvt_pk_bf16_f32 v{hi+2}, v{hi}, v{hi+1}",
                          f"v_cvt_pk_bf16_f32 v{hi}, v{lo}, v{lo+1}", f"v_cvt_pk_bf16_f32 v{hi+1}, v{lo+2}, v{lo+3}"]
                    if qb == 0: o.append(f"s_add_u32 s41, s40, {4096*sp}")
                    o.append(f"buffer_store_dwordx4 v[{hi}:{hi+3}], v3, s[12:15], s41 offen offset:{1024*qb} {opt.get('sm_', 'nt')}")
                    ops += [(4 * PH + 8 * sp + 4 + qb + 6, x) for x in o]
            late = [lambda x=x: a.e(x) for x in ["v_lshlrev_b32 v9, 3, v2", "s_xor_b32 s26, s31, 1", "s_lshl_b32 s26, s26, 10", f"s_add_u32 s42, s26, {WS_MX}"]]
            late += [lambda w=w: q.v(mll[w], "ML") for w in range(2)]
            late += [lambda: a.e("v_subrev_u32 v8, 4, v1"),
                     lambda: q.l(f"ds_read2st64_b64 v[{MO}:{MO+3}], v8 offset0:0 offset1:1", "MLo")]
            late += [lambda x=x: a.e(x) for x in ["v_and_b32 v1, 15, v2", "v_lshlrev_b32 v1, 2, v1", "s_xor_b32 s40, s40, 0x10000", "s_mov_b32 s43, 0xffff0000", "v_mov_b32 v0, 1"]]
            na = 0
            for i, m in enumerate(mf):
                a.e(m)
                for f in fill.get(i, []): a.e(f)
                if i == 12:
                    fs(1)
                    a.e("s_barrier")
                    fs(2)
                    q.l("ds_read2st64_b32 v[8:9], v1 offset0:0 offset1:2", "lsum")
                if i == 17:
                    q.wait("lsum")
                    for x in guard(8): a.e(x)
                if i > 12:
                    n = 0
                    while ops and ops[0][0] <= i and n < 3:
                        x = ops.pop(0)[1]; n += 1
                        if x.startswith("buffer"): q.v(x, "Ost")
                        else: a.e(x)
                    if n and not ops: fp(1)
                    if n == 0:
                        if not ops and late: late.pop(0)()
                        else: a.e("s_nop 0")
            assert not ops
            while late: late.pop(0)()
            fs(3)
            pvq.append((q, na))
            return
        if par == 0:
            fill.setdefault(5 if opt.get("sw") else 2, []).extend([f"v_xor_b32 v{VV}, 0x10000, v{VV}", "v_xor_b32 v11, 0x10000, v11"])
        if opt.get("sw"):
            for g, x in zip((60, 60, 61, 61), ["s_cmp_eq_u32 s17, 4", "s_cselect_b64 s[8:9], s[98:99], s[8:9]", "s_cselect_b32 s10, s100, s10"]):
                fill.setdefault(g, []).append(x)
        else:
            for g, x in enumerate(["s_cmp_eq_u32 s17, 3", "s_cselect_b64 s[8:9], s[98:99], s[8:9]", "s_cselect_b32 s10, s100, s10"]):
                fill.setdefault(3 + g, []).append(x)
        for i in range(32):
            fill.setdefault(rg[i], []).append(vread(par, i // 2, i % 2))
        if opt.get("ps", 0) == 0:
            place_dma(fill, opt.get("dg", [10 + 3 * i for i in range(16)]))
        else:
            dg = opt["dg"]
            for g in range(4):
                fill.setdefault(opt["mg"][g], []).append("s_and_b32 m0, s18, 0x1ffff" if g == 0 else "s_add_u32 m0, m0, 4096")
                for j in range(4):
                    fill.setdefault(dg[4 * g + j], []).append(f"buffer_load_dwordx4 v{3 if g == 0 else 4 + g}, s[8:11], s18 offen offset:{1024*j} sc1 lds")
            fill.setdefault(opt["mg"][4], []).append("s_add_u32 s18, s18, 32768")
        if opt.get("xr", 1):
            for g, x in zip((58, 59, 59), ["s_cmp_eq_u32 s17, 1", "s_cselect_b64 s[8:9], s[96:97], s[8:9]", "s_cselect_b32 s10, s3, s10"]):
                fill.setdefault(g, []).append(x)
        if opt.get("xe"):
            fill.setdefault(6, []).append("s_sub_u32 s17, s17, 1")
            fill.setdefault(61, []).append("s_cmp_eq_u32 s17, 0")
            if not first: fill.setdefault(62, []).append(f"s_cbranch_scc1 {L('pv_exit%d' % par)}")
        else:
            fill.setdefault(62 if opt.get("sw") else 60, []).append("s_sub_u32 s17, s17, 1")
            fill.setdefault(62, []).append("s_cmp_eq_u32 s17, 0")
        fill.setdefault(63, []).extend([f"s_waitcnt vmcnt({nP}) lgkmcnt(0)", "s_barrier"])
        emit_interval(a, mf, fill, lo, hi)

    st(3); ff(11)
    PB = opt.get("pbe", 0)
    if PB:
        pv_interval(1, first=True)
        a.e(f"s_branch {L('pv_in')}")
        a(".p2align 6")
        a.label(L("pv_loop"))
        pv_interval(0, False, PB)
        if not opt.get("xe"): a.e(f"s_cbranch_scc1 {L('pv_last1')}")
        pv_interval(1)
        if not opt.get("xe"): a.e(f"s_cbranch_scc1 {L('pv_last0')}")
        a.label(L("pv_in"))
        pv_interval(0, False, 0, PB)
        a.e(f"s_branch {L('pv_loop')}")
    else:
        a(".p2align 6")
        a.label(L("pv_loop"))
        pv_interval(1)
        a.e(f"s_cbranch_scc1 {L('pv_last0')}")
        pv_interval(0)
        a.e(f"s_cbranch_scc0 {L('pv_loop')}")
    if opt.get("xe"):
        a.label(L("pv_exit0"))
        pv_interval(0, False, 63)
    a.label(L("pv_last1"))
    pv_interval(1, True)
    a.e(f"s_branch {L('pv_stage')}")
    if opt.get("xe"):
        a.label(L("pv_exit1"))
        pv_interval(1, False, 63)
    a.label(L("pv_last0"))
    pv_interval(0, True)
    a.label(L("pv_stage"))
    st(4); ff(13)
    q, n = pvq[0]
    assert pvq[1][0].vm == q.vm and pvq[1][0].lg == q.lg
    fp(2)
    release(a, q, L, "ro", "Ost", "buffer_store_dword v0, off, s[12:15], s56 offset:24")
    fp(3)
    poll(a, q, L, "ml", mll, [f"v_and_b32 v8, v{MR+1}, v{MR+3}", "v_cmp_gt_i32 vcc, 0, v8", "s_nop 1", "s_cmp_eq_u64 vcc, -1"], "ML", slp=1)
    q.wait("MLo")
    for x in [f"v_add_f32 v{MR+1}, v{MR+1}, v{MR+3}", f"v_add_f32 v{MO+1}, v{MO+1}, v{MO+3}",
              f"v_min_f32 v8, v{MR}, v{MO}", f"v_sub_f32 v{MR}, v8, v{MR}", f"v_sub_f32 v{MO}, v8, v{MO}",
              f"v_exp_f32 v{MR}, v{MR}", f"v_exp_f32 v{MO}, v{MO}", f"v_mul_f32 v{MR+1}, v{MR+1}, v{MR}",
              f"v_fmac_f32 v{MR+1}, v{MO+1}, v{MO}", f"v_mul_f32 v{MR+1}, {f2u(XSC)}, v{MR+1}", f"v_rcp_f32 v{MR+1}, v{MR+1}", "s_nop 0",
              f"v_mul_f32 v{MO}, v{MO}, -v{MR+1}", f"v_mul_f32 v{MR}, v{MR}, -v{MR+1}"]: a.e(x)
    for tb in range(4):
        q.l(f"ds_bpermute_b32 v{AL+2*tb}, v1, v{MO} offset:{64*tb}", "AL")
        q.l(f"ds_bpermute_b32 v{AL+2*tb+1}, v1, v{MR} offset:{64*tb}", "AL")
    q.wait("AL")
    for db in range(8, 16):
        for qb in range(4):
            r = oreg(db, qb)[1]
            for j in (0, 2):
                a.e(f"v_pk_mul_f32 v[{r+j}:{r+j+1}], v[{r+j}:{r+j+1}], v[{AL+2*qb}:{AL+2*qb+1}] op_sel_hi:[1,0]")
        if db == opt.get("od", 12): q.v(ol, "of")
        for _ in range(opt.get("an", 2)):
            if n < 4 * PF and db < opt.get("od", 12):
                aload(a, q, n // 4, n % 4); n += 1
    while n < opt.get("pa", 0):
        aload(a, q, n // 4, n % 4); n += 1
    poll(a, q, L, "o", [ol], ["v_readfirstlane_b32 s26, v11", "s_cmp_eq_u32 s26, 1"], "of", slp=1)
    acquire(a, L, "ao")
    fp(4)
    for f in range(16):
        if f % 4 == 0: a.e(f"s_add_u32 s41, s40, {1024*f}")
        q.v(f"buffer_load_dwordx4 v[{RX+4*f}:{RX+4*f+3}], v3, s[12:15], s41 offen offset:{1024*(f%4)} {opt.get('lm', 'sc1')}", f"O{f}")
    fp(5)
    fp(6)
    for f in range(16):
        sp, qb = f // 4, f % 4
        q.wait(f"O{f}")
        if f in (0, 8): fp(7 + f // 8)
        for j in range(4):
            a.e(f"v_lshlrev_b32 v{TT+2*j}, 16, v{RX+4*f+j}")
            a.e(f"v_and_b32 v{TT+2*j+1}, s43, v{RX+4*f+j}")
        for j in range(4):
            r = oreg(8 + 2 * sp + j // 2, qb)[1] + 2 * (j % 2)
            a.e(f"v_pk_fma_f32 v[{TT+2*j}:{TT+2*j+1}], v[{TT+2*j}:{TT+2*j+1}], v[{AL+2*qb}:{AL+2*qb+1}], v[{r}:{r+1}] op_sel:[0,1,0] op_sel_hi:[1,1,1]")
        for j in range(4):
            a.e(f"v_cvt_pk_bf16_f32 v{RX+4*f+j}, v{TT+2*j}, v{TT+2*j+1}")
        q.l(f"ds_write_b128 v10, v[{RX+4*f}:{RX+4*f+3}] offset:{8192*qb + 1024*sp}")
        for _ in range(2):
            if n < 4 * PF:
                aload(a, q, n // 4, n % 4); n += 1
    while n < 4 * PF:
        aload(a, q, n // 4, n % 4); n += 1
    fs(4)
    a.label(L("tail"))
    ff(14); fp(9)
    gen_tail(a, L, st, fs, opt)
    a.label(L("fin"))
    if stamp == 1:
        a.e("s_waitcnt vmcnt(0)")
        st(7)
        emit_stamps(a, 8, nw=8, off=WS_STAMP + 0x200000)
    if stamp == 5:
        a.e("s_waitcnt vmcnt(0)")
        st(7)
        a.e("s_cmp_lg_u32 s16, 0")
        a.e(f"s_cbranch_scc1 {L('end')}")
        a.e("s_mov_b64 exec, 1")
        a.e("s_cmp_lg_u32 s2, 0")
        a.e(f"s_cbranch_scc1 {L('dbg2')}")
        for k in range(1, 8):
            a.e(f"s_sub_u32 s26, s{62+4*k}, s62")
            a.e("v_mov_b32 v8, s26")
            a.e(f"buffer_store_dword v8, off, s[92:95], 0 offset:{8+4*k}")
        a.e("s_sub_u32 s26, s76, s72")
        a.e("v_mov_b32 v8, s26")
        a.e("buffer_store_dword v8, off, s[92:95], 0 offset:40")
        a.label(L("dbg2"))
        a.e("s_cmp_lg_u32 s2, 255")
        a.e(f"s_cbranch_scc1 {L('end')}")
        for k in range(1, 6):
            a.e(f"s_sub_u32 s26, s{62+4*k}, s62")
            a.e("v_mov_b32 v8, s26")
            a.e(f"buffer_store_dword v8, off, s[92:95], 0 offset:{40+4*k}")
    if stamp in (2, 3, 4, 6):
        for k in range(10, 16): fp(k)
        a.e("s_waitcnt vmcnt(0)")
        fs(15)
        ff(15)
        emit_fine(a, off=WS_STAMP + 0x300000)
    a.label(L("end"))
    a.e("s_endpgm")
    a.label(L("redo"))
    a.e("s_waitcnt vmcnt(0) lgkmcnt(0)")
    a.e("s_mov_b32 s101, 0")
    a.e(f"s_mul_i32 s28, s22, {32768 * N0}")
    a.e("s_add_u32 s28, s28, s24")
    a.e("s_lshl_b32 s26, s25, 15")
    srd_off(a, 8, 4, "s28", "s26")
    a.e("s_lshl_b32 s19, s16, 13")
    qk_setup()
    a.e("s_mov_b32 s17, s25")
    def redo_dma(slot):
        for i in range(8):
            if i % 4 == 0:
                a.e(f"s_add_u32 m0, s19, {32768*slot + 1024*i}")
                a.e(f"s_add_u32 s29, s18, {1024*i}")
            a.e(f"buffer_load_dwordx4 v3, s[8:11], s29 offen offset:{1024*(i%4)} sc1 lds")
    a.label(L("redo_loop"))
    a.e("s_sub_u32 s17, s17, 1")
    a.e("s_lshl_b32 s18, s17, 15")
    a.e("s_add_u32 s18, s18, s19")
    a.e("s_barrier")
    redo_dma(0)
    a.e("s_waitcnt vmcnt(0)")
    a.e("s_barrier")
    a.e("s_cmp_ge_u32 s16, 2")
    a.e(f"s_cbranch_scc1 {L('redo_next')}")
    for n in range(16):
        a.e(kread(0, n, 0))
        if n == 11: a.e("s_waitcnt lgkmcnt(4)")
    a.e("s_waitcnt lgkmcnt(0)")
    for qb in range(4):
        for m in chain(0, qb, "0"): a.e(m)
    a.e("s_nop 7")
    for qb in range(4):
        d = S + 4 * qb
        a.e(f"v_max3_f32 v{MX0+qb}, v{MX0+qb}, v{d}, v{d+1}")
        a.e(f"v_max3_f32 v{MX0+qb}, v{MX0+qb}, v{d+2}, v{d+3}")
    a.label(L("redo_next"))
    a.e("s_cmp_lg_u32 s17, 0")
    a.e(f"s_cbranch_scc1 {L('redo_loop')}")
    a.e("s_add_u32 s18, s19, 32768")
    redo_dma(1)
    a.e("s_mov_b32 s17, s25")
    a.e("s_cmp_ge_u32 s16, 2")
    a.e(f"s_cbranch_scc1 {L('pv')}")
    a.e(f"s_branch {L('qk_again')}")
    emit_pv_again()
    for f in OOL: f()
    emit_aux()
    kernel_desc(a, name, 512, 256)
    return f"; @launch grid=(256,1,1) block=(256,1,1) lds={LDS_ATT}"
```

```python
import sys
sys.path.insert(0, "gen")
from asmlib import *
from layout import *
RS = 1056
SLOT = 32 * RS

def gen_aux(a, L, st, ff, opt):
    a.e(f"s_load_dwordx4 s[24:27], s[0:1], {KA['wv']}")
    a.e(f"s_load_dwordx4 s[28:31], s[0:1], {KA['wdn']}")
    a.e("s_waitcnt lgkmcnt(0)")
    ff(1)
    make_srd(a, 8, 30, 1048576)
    a.e("s_and_b32 s25, s25, 0xffff")
    a.e("s_and_b32 s27, s27, 0xffff")
    a.e("s_and_b32 s29, s29, 0xffff")
    a.e("s_lshl_b32 s17, s20, 2")
    a.e("s_add_u32 s17, s17, s16")
    a.e("s_lshl_b32 s40, s17, 6")
    a.e("s_lshl_b32 s47, s16, 15")
    a.e("v_lshrrev_b32 v4, 2, v2")
    a.e("v_and_b32 v5, 3, v2")
    a.e("v_lshlrev_b32 v6, 10, v4")
    a.e("v_lshl_add_u32 v6, v5, 4, v6")
    a.e("v_lshrrev_b32 v7, 4, v2")
    a.e("v_and_b32 v8, 3, v4")
    a.e("v_lshl_add_u32 v7, v7, 3, v8")
    a.e("v_lshlrev_b32 v7, 6, v7")
    a.e("v_lshl_add_u32 v7, v5, 4, v7")
    a.e("v_add_u32 v7, s47, v7")
    ff(2)
    q = Seq(a)
    def td(n):
        a.e(f"s_add_u32 m0, s47, {1024*(n % 32)}")
        a.e(f"s_add_u32 s41, s40, {16384*n}")
        q.v("buffer_load_dwordx4 v6, s[8:11], s41 offen lds", f"d{n//2}")
    for n in range(32): td(n)
    ff(3)
    for tt in range(32):
        part, t = tt // 16, tt % 16
        for nb in range(2):
            for h in range(2):
                r = 64 * nb + 4 * t + 2 * h
                d = f"v[{128+r}:{129+r}]" if part == 0 else f"a[{r}:{r+1}]"
                q.l(f"ds_read_b64_tr_b16 {d}, v7 offset:{2048*t + 256*h + 8*nb}", f"r{tt}", need=(f"d{tt}",))
        if 1 <= tt <= 16:
            q.wait(f"r{tt-1}")
            td(32 + 2 * (tt - 1)); td(33 + 2 * (tt - 1))
        if tt == 15: ff(4)
    q.all()
    for k in range(5, 9): ff(k)
    a.e("s_barrier")
    st(1)
    a.e("s_mov_b32 s36, s26")
    a.e("s_mov_b32 s37, s27")
    a.e("s_mov_b32 s38, 524288")
    a.e("s_mov_b32 s39, 0x00020000")
    a.e("s_lshl_b32 s45, s16, 13")
    a.e("s_lshl_b32 s41, s20, 17")
    a.e("s_add_u32 s45, s45, s41")
    a.e("s_mov_b32 s41, s45")
    a.e("s_mov_b32 s42, 0")
    a.e(f"s_mul_i32 s43, s16, {4*RS}")
    a.e(f"s_mov_b32 s44, {16*RS}")
    a.e(f"s_mul_i32 s52, s16, {8*RS}")
    def dma():
        out = []
        for ee in range(2):
            out.append("s_add_u32 s46, s42, s43" if ee == 0 else "s_add_u32 s46, s46, s44")
            for j in range(4):
                out.append(f"s_add_u32 m0, s46, {j*(RS-1024)}")
                out.append("s_nop 0")
                out.append(f"buffer_load_dwordx4 v3, s[36:39], s41 offen offset:{1024*j} {opt.get('am', '')} lds")
            out.append(f"s_add_u32 s41, s41, {4096 if ee == 0 else 32768-4096}")
        out.append("s_and_b32 s41, s41, 0x7ffff")
        out.append(f"s_add_u32 s42, s42, {SLOT}")
        out.append(f"s_cmp_eq_u32 s42, {4*SLOT}")
        out.append("s_cselect_b32 s42, 0, s42")
        return out
    for i in range(3):
        for x in dma(): a.e(x)
    a.e("v_and_b32 v4, 15, v2")
    a.e("v_lshrrev_b32 v5, 4, v2")
    a.e(f"v_mul_u32_u24 v4, {RS}, v4")
    a.e("v_lshl_add_u32 v4, v5, 4, v4")
    a.e("v_mov_b32 v9, v4")
    a.e("s_mov_b32 s48, 0")
    a.e("s_lshr_b32 s49, s17, 1")
    a.e("s_lshl_b32 s49, s49, 16")
    a.e("s_and_b32 s50, s17, 1")
    a.e("s_lshl_b32 s50, s50, 11")
    a.e("s_add_u32 s49, s49, s50")
    def rd(t):
        return [f"ds_read_b128 v[{32+8*(t%8)+4*ee}:{35+8*(t%8)+4*ee}], v9 offset:{16*ee*RS + 64*(t%16)}" for ee in range(2)]
    ACC = [16, 104]; LA = 6
    def flush(p):
        out = []
        for nb in range(2):
            for j in range(4):
                out.append(f"v_cvt_pk_bf16_f32 v{96+4*nb+j}, v{ACC[p]+8*nb+2*j}, v{ACC[p]+1+8*nb+2*j}")
            out.append(f"buffer_store_dwordx4 v[{96+4*nb}:{99+4*nb}], v3, s[12:15], s54 offen offset:{1024*nb} sc1")
        out.append("s_add_u32 s54, s55, s51")
        out.append("s_add_u32 s51, s51, 4096")
        out.append("s_and_b32 s51, s51, 0xffff")
        return out
    for i in range(16): a.e(f"v_mov_b32 v{ACC[1]+i}, 0")
    a.e("s_waitcnt vmcnt(8)")
    a.e("s_barrier")
    for t in range(LA):
        for x in rd(t): a.e(x)
    for stage in range(3):
        st(2 + stage)
        B = (lambda r: f"a[{r}:{r+3}]") if stage == 1 else (lambda r: f"v[{128+r}:{131+r}]")
        a.e(f"s_add_u32 s55, s49, {[WS_T2, WS_W3, WS_W3 + 524288][stage]}")
        a.e("s_lshl_b32 s51, s20, 14")
        a.e(f"s_add_u32 s54, s49, {WS_T2 + 524288}")
        if stage == 1:
            a.e("s_waitcnt vmcnt(0)")
            for t in range(16):
                a.e(f"s_add_u32 s50, s49, {WS_T2 + 4096*t}")
                for nb in range(2):
                    r = 128 + 64 * nb + 4 * t
                    a.e(f"buffer_load_dwordx4 v[{r}:{r+3}], v3, s[12:15], s50 offen offset:{1024*nb} sc1")
        a.e("s_mov_b32 s53, 0")
        lab = L(f"auxl{stage}")
        a.label(lab)
        for p in range(2):
            a.e("s_waitcnt vmcnt(10)")
            a.e("s_barrier")
            if p == 1 and stage < 2:
                nx = 28 if stage == 0 else 24
                a.e("s_cmp_eq_u32 s53, 6")
                a.e(f"s_cselect_b32 s36, s{nx}, s36")
                a.e(f"s_cselect_b32 s37, s{nx+1}, s37")
                a.e("s_cselect_b32 s41, s45, s41")
                if stage == 1:
                    a.e("s_cselect_b32 s43, s52, s43")
                    a.e(f"s_cselect_b32 s44, {4*RS}, s44")
            dm = [x for x in dma() if x != "s_nop 0"]
            fl = flush(p ^ 1)
            for t in range(16):
                if t % 2 == 0: a.e(f"s_waitcnt lgkmcnt({2*LA-4})")
                if t == 16 - LA:
                    a.e(f"s_add_u32 s48, s48, {SLOT}")
                    a.e(f"s_cmp_eq_u32 s48, {4*SLOT}")
                    a.e("s_cselect_b32 s48, 0, s48")
                    a.e("v_add_u32 v9, s48, v4")
                k = 0
                for ee in range(2):
                    for nb in range(2):
                        d = ACC[p] + 8 * nb + 4 * ee; r = 32 + 8 * (t % 8) + 4 * ee
                        c = "0" if t == 0 else f"v[{d}:{d+3}]"
                        a.e(f"{M16} v[{d}:{d+3}], v[{r}:{r+3}], {B(64*nb + 4*t)}, {c}")
                        if k < 2:
                            a.e(rd(t + LA)[k])
                            if t >= 2 and fl: a.e(fl.pop(0))
                        if k >= 2 and dm: a.e(dm.pop(0))
                        k += 1
            assert not dm and not fl
        a.e("s_add_u32 s53, s53, 1")
        a.e("s_cmp_lt_u32 s53, 8")
        a.e(f"s_cbranch_scc1 {lab}")
        a.e("s_nop 7")
        for x in flush(1): a.e(x)
    a.e("s_waitcnt vmcnt(0)")
    a.e("s_barrier")
```

```python
import sys, math
sys.path.insert(0, "gen")
from asmlib import *
from layout import *

RS = 1056
LDS_XS = 98304
LDS_MS = 163840 - 64 * RS
LDS_SC = 81920
LDS_CNT = LDS_SC + 6912
LDS_SC2 = 147456
GC1 = 2 * math.sqrt(2 / math.pi) * math.log2(math.e)
XSC = (GC1 * 0.044715) ** (1.0 / 3)
LDS_MX2 = LDS_SC + 4608
RING = 5
SS = 144
SPIN = 40000

def poll(a, q, L, name, load, cond, tag, slp=2):
    q.wait(tag)
    lab, done = L(name + "_spin"), L(name + "_ok")
    for x in cond: a.e(x)
    a.e(f"s_cbranch_scc0 {L(name + '_retry')}")
    a.label(done)
    def retry():
        a.label(L(name + "_retry"))
        a.e(f"s_mov_b32 s30, {SPIN}")
        a.label(lab)
        a.e(f"s_sleep {slp}")
        for x in load: a.e(x)
        a.e("s_waitcnt vmcnt(0)")
        for x in cond: a.e(x)
        a.e(f"s_cbranch_scc1 {done}")
        a.e("s_sub_u32 s30, s30, 1")
        a.e(f"s_cbranch_scc0 {lab}")
        a.e(f"s_branch {done}")
    OOL.append(retry)

OOL = []

def release(a, q, L, name, tag, store, wb=True):
    if tag: q.wait(tag)
    a.e("s_cmp_lg_u32 s21, 0")
    a.e(f"s_cbranch_scc1 {L(name + '_far')}")
    q.v(store)
    a.label(L(name + "_back"))
    def far():
        a.label(L(name + "_far"))
        if wb:
            a.e("buffer_wbl2 sc1")
            a.e("s_waitcnt vmcnt(0)")
        a.e(store + " sc1")
        a.e(f"s_branch {L(name + '_back')}")
    OOL.append(far)

def acquire(a, L, name):
    a.e("s_cmp_lg_u32 s21, 0")
    a.e(f"s_cbranch_scc1 {L(name + '_inv')}")
    a.label(L(name + "_got"))
    def far():
        a.label(L(name + "_inv"))
        a.e("buffer_inv sc1")
        a.e("s_waitcnt vmcnt(0)")
        a.e(f"s_branch {L(name + '_got')}")
    OOL.append(far)

def signal(a, L, name, wave, off, shard=True):
    a.e(f"s_cmp_lg_u32 s16, {wave}")
    a.e(f"s_cbranch_scc1 {L(name)}")
    a.e("v_mov_b32 v14, 1")
    a.e(f"s_and_b32 s26, s2, {3 if shard else 0}")
    a.e("s_lshl_b32 s26, s26, 6")
    a.e("s_mov_b64 exec, 1")
    a.e(f"buffer_atomic_add v14, off, s[92:95], s26 offset:{off}")
    a.e("s_mov_b64 exec, -1")
    a.label(L(name))

def cnt_load(off, va="v13"):
    return f"buffer_load_dword v14, {va}, s[92:95], 0 offen offset:{off} sc1"
CNT_OK = ["v_cmp_le_u32 vcc, 64, v14", "s_nop 1", "s_cmp_eq_u64 vcc, -1"]

def m_issue(a, q):
    a.e("s_lshr_b32 s17, s2, 4")
    a.e("s_lshl_b32 s17, s17, 15")
    a.e("s_and_b32 s18, s2, 15")
    a.e("s_lshl_b32 s18, s18, 15")
    a.e("s_lshl_b32 s19, s16, 13")
    a.e("s_add_u32 s17, s17, s19")
    a.e("s_add_u32 s18, s18, s19")
    a.e(f"s_mul_i32 s19, s16, {4*RS}")
    out = []
    for m, (srd, so) in enumerate(((40, "s17"), (8, "s18"))):
        for ee in range(2):
            for j in range(4):
                def f(m=m, srd=srd, so=so, ee=ee, j=j):
                    a.e(f"s_add_u32 m0, s19, {LDS_MS + (32*m + 16*ee + j)*RS - 1024*j}")
                    a.e(f"s_add_u32 {so}, {so}, 4096" if (ee == 1 and j == 0) else "s_nop 0")
                    q.v(f"buffer_load_dwordx4 v3, s[{srd}:{srd+3}], {so} offen offset:{1024*j} lds", "Mst")
                out.append(f)
    return out

def m_addr(a):
    a.e("v_and_b32 v4, 15, v2")
    a.e("v_lshrrev_b32 v5, 4, v2")
    a.e(f"v_mul_u32_u24 v6, {RS}, v4")
    a.e("v_lshl_add_u32 v6, v5, 4, v6")
    a.e(f"v_add_u32 v6, {LDS_MS}, v6")
    a.e("s_and_b32 s26, s16, 1")
    a.e("s_lshr_b32 s28, s16, 1")
    a.e(f"s_mul_i32 s29, s26, {16*RS}")
    a.e("v_add_u32 v7, s29, v6")
    a.e(f"s_mul_i32 s29, s28, {16*RS}")
    a.e("v_add_u32 v6, s29, v6")
    a.e("s_bfe_u32 s29, s2, 0x30001")
    a.e("s_lshl_b32 s29, s29, 16")
    a.e("s_lshr_b32 s30, s2, 4")
    a.e("s_lshl_b32 s30, s30, 12")
    a.e("s_add_u32 s29, s29, s30")
    a.e("s_and_b32 s30, s2, 1")
    a.e("s_lshl_b32 s30, s30, 1")
    a.e("s_add_u32 s30, s30, s28")
    a.e("s_lshl_b32 s30, s30, 10")
    a.e("s_add_u32 s29, s29, s30")
    a.e("s_lshl_b32 s30, s26, 9")
    a.e("s_add_u32 s29, s29, s30")
    a.e(f"s_add_u32 s30, s29, {WS_MI}")
    a.e("s_lshl_b32 s29, s28, 10")
    a.e("s_lshl_b32 s26, s26, 3")
    a.e("s_add_u32 s29, s29, s26")
    a.e(f"s_add_u32 s29, s29, {LDS_MX2}")
    a.e("v_add_u32 v112, s29, v3")
    a.e("s_lshl_b32 s29, s16, 9")
    a.e(f"s_add_u32 s29, s29, {LDS_MX2}")
    a.e("v_and_b32 v114, 0x1ff, v3")
    a.e("v_add_u32 v113, s29, v114")

def m_tile(a, q):
    q.wait("Mst")
    a.e("s_barrier")
    def rd(t):
        q.l(f"ds_read_b128 a[{8*t}:{8*t+3}], v7 offset:{64*t}", f"m{t}")
        q.l(f"ds_read_b128 a[{8*t+4}:{8*t+7}], v6 offset:{32*RS + 64*t}", f"m{t}")
    for t in range(7): rd(t)
    for t in range(16):
        q.e(f"{M16} v[8:11], a[{8*t}:{8*t+3}], a[{8*t+4}:{8*t+7}], {'0' if t == 0 else 'v[8:11]'}", need=(f"m{t}",))
        if t + 7 < 16: rd(t + 7)
    a.e("s_nop 7")
    sc = f2u(512 ** -0.5 * math.log2(math.e) / XSC ** 2)
    for i in range(4): a.e(f"v_mul_f32 v{8+i}, {sc}, v{8+i}")
    a.e("v_cvt_pk_bf16_f32 v8, v8, v9")
    a.e("v_cvt_pk_bf16_f32 v9, v10, v11")
    q.l("ds_write_b64 v112, v[8:9]", "mw")
    q.wait("mw")
    a.e("s_barrier")
    q.l("ds_read_b128 v[8:11], v113", "mr")
    def fin():
        q.v("buffer_store_dwordx4 v[8:11], v114, s[12:15], s30 offen sc1", "St", need=("mr",))
    return fin

def touches(a, q, L, opt):
    a.e("v_lshlrev_b32 v7, 7, v2")
    a.e("s_lshr_b32 s26, s2, 3")
    a.e("s_lshl_b32 s26, s26, 2")
    a.e("s_add_u32 s26, s26, s16")
    a.e("s_getpc_b64 s[28:29]")
    a.label(L("pc1"))
    a.e("s_mul_i32 s30, s26, 640")
    a.e("v_and_b32 v12, 7, v2")
    a.e("v_min_u32 v12, 4, v12")
    a.e("v_lshl_add_u32 v12, v12, 7, s30")
    a.e(f"v_min_u32 v12, {L('end')} - {L('pc1')}, v12")
    q.v("global_load_dword v0, v12, s[28:29]")
    if opt.get("tw"):
        a.e("s_lshl_b32 s26, s26, 13")
        q.v("buffer_load_dword v0, v7, s[96:99], s26 offen")

def touch_aux(a, q, mode=1):
    if mode == 2:
        a.e("s_lshl_b32 s28, s2, 2")
        a.e("s_add_u32 s28, s28, s16")
        a.e("s_lshl_b32 s28, s28, 10")
        a.e("v_add_u32 v14, s28, v3")
        q.v("global_load_dword v0, v14, s[58:59]")
        return
    for w in range(1, 4):
        a.e(f"s_cmp_eq_u32 s16, {w}")
        a.e(f"s_cselect_b32 s52, s{52+2*w}, s52")
        a.e(f"s_cselect_b32 s53, s{53+2*w}, s53")
    a.e("s_lshl_b32 s28, s2, 6")
    a.e("v_add_lshl_u32 v14, s28, v2, 5")
    a.e("v_lshlrev_b32 v13, 1, v14")
    a.e("s_cmp_eq_u32 s16, 3")
    a.e("s_cselect_b64 vcc, -1, 0")
    a.e("v_cndmask_b32 v14, v14, v13, vcc")
    q.v("global_load_dword v0, v14, s[52:53]")

def gen_front(a, q, L, st, fs, mi, clear, opt):
    X = 16; F = 128
    if opt.get("skip"):
        v0 = q.v
        def v1(text, tag="_", need=()):
            if text.startswith("buffer_store_dwordx4") and tag[0] in opt["skip"]: return
            v0(text, tag, need)
        q.v = v1
    a.e("v_lshrrev_b32 v12, 3, v2")
    a.e("v_and_b32 v13, 7, v2")
    a.e("v_and_b32 v14, 2, v12")
    a.e("v_xor_b32 v14, v13, v14")
    a.e("v_lshlrev_b32 v14, 4, v14")
    WV = 80
    a.e(f"v_lshl_add_u32 v{WV}, v12, 11, v14")
    a.e(f"v_xor_b32 v{WV+1}, 64, v{WV}")
    a.e(f"v_add_u32 v{WV+1}, {16384-1024}, v{WV+1}")
    a.e(f"v_add_u32 v{WV+2}, {2*(16384-1024)}, v{WV}")
    a.e(f"v_add_u32 v{WV+3}, {2*(16384-1024)}, v{WV+1}")
    a.e("s_lshl_b32 s26, s22, 2")
    a.e("s_add_u32 s26, s26, s16")
    a.e("s_lshl_b32 s28, s22, 1")
    a.e("s_add_u32 s28, s28, s16")
    a.e("s_add_u32 s28, s28, s23")
    a.e("s_and_b32 s28, s28, 3")
    a.e("s_lshl_b32 s3, s26, 7")
    a.e("s_lshl_b32 s29, s28, 18")
    a.e("s_add_u32 s3, s3, s29")
    a.e(f"s_mul_i32 s6, s16, {RING*4096}")
    a.e("v_and_b32 v4, 15, v2")
    a.e("v_lshrrev_b32 v5, 4, v2")
    def wdma(k, j):
        if j == 0:
            a.e(f"s_add_u32 m0, s6, {4096*(k % RING)}")
            a.e(f"s_xor_b32 s7, {'s3' if k < 16 else 's20'}, {65536*(k % 16) + (1024 if k < 16 else 0 if k < 32 else 128)}")
        q.v(f"buffer_load_dwordx4 v{WV+j}, s[96:99], s7 offen offset:{1024*j} lds", f"W{k}")
    ringf = [lambda k=k, j=j: wdma(k, j) for k in range(RING) for j in range(4)]
    EM = opt.get("early", 0)
    NE = opt.get("ne", 12)
    early = list(mi) + [clear] + ringf[:NE]
    if opt.get("rf"): early = ringf[:opt["rf"]] + list(mi) + [clear] + ringf[opt["rf"]:NE]
    late = ringf[NE:]
    if opt.get("te") is not None: early.insert(opt["te"], lambda: (touch_u(), touch_aux(a, q)))
    SW, SR, SG, QW = 84, 85, 86, 87
    a.e("s_and_b32 s26, s16, 1")
    a.e("s_lshl_b32 s26, s26, 13")
    a.e("s_cmp_lt_u32 s16, 2")
    a.e(f"s_cselect_b32 s28, {16*SS}, 0")
    a.e("s_add_u32 s26, s26, s28")
    a.e(f"s_add_u32 s26, s26, {LDS_SC}")
    a.e(f"v_mul_u32_u24 v{SR}, {SS}, v12")
    a.e(f"v_lshl_add_u32 v{SR}, v13, 4, v{SR}")
    a.e(f"v_add_u32 v{SR}, s26, v{SR}")
    a.e(f"v_lshlrev_b32 v{SG}, 9, v12")
    a.e(f"v_lshl_add_u32 v{SG}, v13, 4, v{SG}")
    a.e(f"v_mul_u32_u24 v{SW}, {SS}, v4")
    a.e(f"v_lshl_add_u32 v{SW}, v5, 3, v{SW}")
    a.e(f"v_add_u32 v{SW}, s26, v{SW}")
    a.e("s_lshl_b32 s26, s16, 14")
    a.e(f"s_add_u32 s26, s26, {LDS_XS}")
    a.e("s_lshl_b32 s28, s22, 13")
    a.e("s_add_u32 s28, s28, s26")
    a.e("v_lshrrev_b32 v14, 1, v12")
    a.e("v_xor_b32 v14, v13, v14")
    a.e("v_lshlrev_b32 v14, 4, v14")
    a.e("v_lshl_add_u32 v14, v12, 7, v14")
    a.e("v_add_u32 v12, s28, v14")
    a.e("v_xor_b32 v116, 0x440, v12")
    a.e("v_xor_b32 v117, 0x2440, v12")
    a.e("v_xor_b32 v15, 0x2000, v12")
    a.e("s_mov_b32 s101, 0xffff0000")
    if EM == 2:
        while early: early.pop(0)()
    ZR, YO = 88, 90
    a.e("v_lshrrev_b32 v13, 1, v4")
    a.e("v_xor_b32 v13, v5, v13")
    a.e("v_lshlrev_b32 v13, 4, v13")
    a.e(f"v_lshl_add_u32 v{ZR}, v4, 7, v13")
    a.e("v_and_b32 v13, 0x27, v2")
    a.e("v_and_b32 v14, 8, v2")
    a.e("v_lshl_add_u32 v13, v14, 1, v13")
    a.e("v_and_b32 v14, 16, v2")
    a.e("v_lshrrev_b32 v14, 1, v14")
    a.e(f"v_add_lshl_u32 v{YO}, v13, v14, 4")
    XR_, TR = 88, 92
    a.e("s_lshr_b32 s26, s3, 18")
    a.e("s_lshl_b32 s26, s26, 12")
    a.e(f"s_add_u32 s26, s26, {LDS_XS}")
    a.e(f"v_add_u32 v{XR_}, s26, v{ZR}")
    a.e("v_lshrrev_b32 v14, 2, v4")
    a.e("v_lshl_add_u32 v14, v5, 3, v14")
    a.e("v_lshlrev_b32 v14, 7, v14")
    a.e("v_and_b32 v13, 3, v2")
    a.e("v_lshl_add_u32 v14, v13, 3, v14")
    a.e("v_and_b32 v13, 24, v2")
    a.e("v_lshl_add_u32 v14, v13, 2, v14")
    a.e(f"v_add_u32 v{TR}, s6, v14")
    for nb in range(1, 4):
        a.e(f"v_xor_b32 v{TR+nb}, {32*nb}, v{TR}")
    a.e(f"v_mov_b32 v13, {LDS_CNT}")
    a.e("v_mov_b32 v14, 0")
    q.l("ds_write_b32 v13, v14")
    def touch_u():
        if opt.get("tu") == 0: return
        if opt.get("tu", 2) == 2:
            a.e("s_lshl_b32 s26, s2, 12")
            a.e("s_lshr_b32 s28, s16, 1")
            a.e("s_lshl_b32 s28, s28, 11")
            a.e("s_add_u32 s26, s26, s28")
            a.e("s_and_b32 s28, s16, 1")
            a.e("s_lshl_b32 s28, s28, 9")
            a.e("s_add_u32 s26, s26, s28")
            a.e("v_lshlrev_b32 v14, 3, v2")
            q.v("buffer_load_dword v0, v14, s[96:99], s26 offen")
            return
        a.e("s_lshr_b32 s26, s2, 3")
        a.e("s_lshl_b32 s26, s26, 2")
        a.e("s_add_u32 s26, s26, s16")
        a.e("s_lshl_b32 s26, s26, 13")
        a.e("v_lshlrev_b32 v14, 6, v4")
        a.e("v_lshl_add_u32 v14, v5, 11, v14")
        q.v("buffer_load_dword v0, v14, s[96:99], s26 offen")
    m_addr(a)
    A0 = 96
    for h in range(2):
        A = A0 + 8 * h
        for i in range(8):
            s = 8 * h + i
            q.wait(f"x{s}")
            if s == 0: fs(1)
            for _ in range(opt.get("ep", [1] * 16)[s]):
                if early: early.pop(0)()
            for j in range(4):
                x = X + 4 * s + j; f = F + 8 * s + 2 * j
                a.e(f"v_lshlrev_b32 v{f}, 16, v{x}")
                a.e(f"v_and_b32 v{f+1}, s101, v{x}")
            for j in range(4):
                f = F + 8 * s + 2 * j
                if i == 0 and j == 0:
                    a.e(f"v_pk_add_f32 v[{A}:{A+1}], v[{f}:{f+1}], 0")
                    a.e(f"v_pk_mul_f32 v[{A+2}:{A+3}], v[{f}:{f+1}], v[{f}:{f+1}]")
                else:
                    a.e(f"v_pk_add_f32 v[{A}:{A+1}], v[{A}:{A+1}], v[{f}:{f+1}]")
                    a.e(f"v_pk_fma_f32 v[{A+2}:{A+3}], v[{f}:{f+1}], v[{f}:{f+1}], v[{A+2}:{A+3}]")
    while early: early.pop(0)()
    fs(2)
    R = [A0, A0 + 2, A0 + 8, A0 + 10]
    for r in R: a.e(f"v_add_f32 v{r}, v{r}, v{r+1}")
    for d in ("quad_perm:[1,0,3,2]", "quad_perm:[2,3,0,1]", "row_half_mirror"):
        for r in R: a.e(f"v_add_f32_dpp v{r}, v{r}, v{r} {d} row_mask:0xf bank_mask:0xf")
    for A in (A0, A0 + 8):
        a.e(f"v_mul_f32 v{A}, {f2u(-1.0/512)}, v{A}")
        a.e(f"v_mul_f32 v{A+2}, {f2u(1.0/512)}, v{A+2}")
    for A in (A0, A0 + 8): a.e(f"v_fma_f32 v{A+2}, -v{A}, v{A}, v{A+2}")
    for A in (A0, A0 + 8): a.e(f"v_max_f32 v{A+2}, 0, v{A+2}")
    for A in (A0, A0 + 8): a.e(f"v_add_f32 v{A+2}, {f2u(1e-5)}, v{A+2}")
    for A in (A0, A0 + 8): a.e(f"v_rsq_f32 v{A+4}, v{A+2}")
    a.e("s_nop 0")
    for A in (A0, A0 + 8): a.e(f"v_mul_f32 v{A+4}, {f2u(XSC)}, v{A+4}")
    for A in (A0, A0 + 8): a.e(f"v_mul_f32 v{A+5}, v{A}, v{A+4}")
    fs(3)
    def norm(s):
        A = A0 + 8 * (s // 8) + 4
        for j in range(4):
            f = F + 8 * s + 2 * j
            a.e(f"v_pk_fma_f32 v[{f}:{f+1}], v[{f}:{f+1}], v[{A}:{A+1}], v[{A}:{A+1}] op_sel:[0,0,1] op_sel_hi:[1,0,1]")
        for j in range(4):
            f = F + 8 * s + 2 * j
            a.e(f"v_cvt_pk_bf16_f32 v{X+4*s+j}, v{f}, v{f+1}")
    def xw(s):
        h, i = s // 8, s % 8
        q.l(f"ds_write_b128 {(('v12', 'v15'), ('v116', 'v117'))[h][i // 4]}, v[{X+4*s}:{X+4*s+3}] offset:{2048*(i%4)}", "xw")
    mfin = m_tile(a, q)
    fs(4)
    for s in range(16):
        norm(s); xw(s)
        if s == 1: mfin()
        if s >= 1:
            for _ in range(2):
                if late: late.pop(0)()
        TT = opt.get("tt", 6)
        if opt.get("te") is not None: continue
        if s == TT and opt.get('ta', 2): touch_aux(a, q, opt.get('ta', 2))
        if s == TT + 1 and not opt.get("tw"): touch_u()
    srd_off(a, 8, 4, "s24", 4096000)
    a.e("s_lshr_b32 s19, s3, 18")
    a.e("s_lshl_b32 s19, s19, 12")
    a.e("s_add_u32 s19, s19, s27")
    a.e("v_and_b32 v13, 3, v2")
    q.wait("xw", "St")
    a.e("s_barrier")
    st(1)
    AR = [16 + 16 * i for i in range(4)] + [96]
    T = 112
    NQ = 5
    role = [None]
    def areg(k): return AR[(k - 16 + 2) % NQ] if (role[0] == "qk" and k >= 16) else AR[k % 2]
    def accof(k): return 128 if k < 16 else 192 if (k < 32 or role[0] == "qk") else 128
    def bread(s, tb):
        r = 64 * tb + 4 * s
        if tb == 0: a.e(f"v_xor_b32 v{XR_+1}, {2048*(s//2) + 64*(s%2)}, v{XR_}")
        q.l(f"ds_read_b128 a[{r}:{r+3}], v{XR_+1} offset:{16384*tb}", f"B{s}")
    def tread(k, i):
        nb, h = i // 2, i % 2
        r = areg(k) + 4 * nb + 2 * h
        q.l(f"ds_read_b64_tr_b16 v[{r}:{r+1}], v{TR+nb} offset:{4096*(k % RING) + 512*h}", f"A{k}", need=(f"W{k}",))
    def mload(k, nb):
        if nb == 0: a.e(f"s_xor_b32 s42, s20, {4096*(k-16)}")
        r = areg(k) + 4 * nb
        q.v(f"buffer_load_dwordx4 v[{r}:{r+3}], v3, s[12:15], s42 offen offset:{1024*nb} sc1", f"A{k}")
    for tb in range(4): bread(0, tb)
    for i in range(8): tread(0, i)
    signal(a, L, "sig1", 0, 0)
    for tb in range(4): bread(1, tb)
    a.e(f"s_mov_b32 s0, {f2u(-GC1 / XSC)}")
    a.e(f"s_mov_b32 s1, {f2u(XSC)}")
    a.e("v_lshlrev_b32 v13, 6, v13")
    a.e("s_cmp_eq_u32 s16, 1")
    a.e("s_cselect_b32 s26, 0, 0x1000")
    a.e("v_add_u32 v12, s26, v13")
    a.e("s_lshl_b32 s17, s31, 16")
    a.e("s_lshl_b32 s26, s16, 7")
    a.e("s_add_u32 s17, s17, s26")
    a.e(f"s_add_u32 s17, s17, {WS_GU}")
    fx = [{}]
    def at(k, g, fn): fx[0].setdefault((k, g), []).append(fn if callable(fn) else (lambda: a.e(fn)))
    def run(ops):
        for x in ops: x() if callable(x) else a.e(x)
    def cost(x): return 2 if (isinstance(x, str) and x.split()[0] in ("v_exp_f32", "v_rcp_f32")) else 1
    def steps(k0, k1, side=(), lead=10, tailg=4):
        fixed = fx[0]
        gaps = [(k, g) for k in range(k0, k1) for g in range(16)]
        cap = [0 if (n < lead or n >= len(gaps) - tailg) else max(0, 2 - len(fixed.get(x, []))) for n, x in enumerate(gaps)]
        ops = list(side)
        C = sum(map(cost, ops)); tot = sum(cap)
        scale = min(1.0, C / tot)
        extra = max(0.0, (C - tot) / (len(gaps) - lead - tailg))
        budget = 0.0; used = 0
        for n, (k, g) in enumerate(gaps):
            if g == 0:
                if k in opt.get("fk", []): Fine(a, True)(opt["fk"].index(k))
                q.wait(f"A{k}", f"B{k}")
            nb, tb = g // 4, g % 4
            d = accof(k) + 16 * nb + 4 * tb; r = areg(k) + 4 * nb; b = 64 * tb + 4 * (k % 16)
            c = "0" if k % 16 == 0 else f"v[{d}:{d+3}]"
            a.e(f"{M16} v[{d}:{d+3}], v[{r}:{r+3}], a[{b}:{b+3}], {c}")
            for fn in fixed.pop((k, g), []): fn()
            if lead <= n < len(gaps) - tailg:
                budget += cap[n] * scale + extra
            while ops and (used + cost(ops[0]) <= budget + 1e-6 or n == len(gaps) - tailg):
                x = ops.pop(0); used += cost(x); run([x])
        assert not ops
    def raw_plan(k0, k1, kend):
        for k in range(k0, k1):
            if k + 1 < kend:
                for i in range(8): at(k, i, lambda k=k, i=i: tread(k + 1, i))
            if k + RING < kend:
                for j in range(4): at(k, 9 + 2 * j, lambda k=k, j=j: wdma(k + RING, j))
            if k + 2 < 16:
                for tb in range(4): at(k, 8 + 2 * tb, lambda k=k, tb=tb: bread(k + 2, tb))
    def gelu(acc, kind, pk, base, off):
        out = []
        if opt.get("nogelu"): return [["s_nop 0"] * 40 for _ in range(8)]
        P = lambda r: f"v[{r}:{r+1}]"
        def store(E, i):
            r = acc + 32 + 16 * (i % 2) + 4 * (i // 2)
            def f():
                a.e(f"s_add_u32 s29, {base}, {off + 4096*i}")
                pub = kind == "g" and i in (0, 7)
                q.v(f"buffer_store_dwordx4 v[{r}:{r+3}], v{SG}, s[12:15], s29 offen{' sc1' if pub else ''}", "St" if pub else "_", need=(f"sr{kind}{i}",))
            E(f)
        for tb in range(4):
            for h in range(2):
                o = []; E = o.append; out.append(o)
                src = [acc + 16 * (2 * h + ee) + 4 * tb + j for ee in range(2) for j in range(4)]
                if pk(2 * tb + h):
                    for i in range(0, 8, 2): E(f"v_pk_fma_f32 {P(T+i)}, {P(src[i])}, {P(src[i])}, s[0:1] op_sel_hi:[1,1,0] neg_lo:[1,0,0] neg_hi:[1,0,0]")
                    for i in range(0, 8, 2): E(f"v_pk_mul_f32 {P(T+i)}, {P(T+i)}, {P(src[i])}")
                    for i in range(8): E(f"v_exp_f32 v{T+i}, v{T+i}")
                    for i in range(0, 8, 2): E(f"v_pk_fma_f32 {P(T+i)}, {P(T+i)}, s[0:1], s[0:1] op_sel:[0,1,1] op_sel_hi:[1,1,1]")
                    for i in range(8): E(f"v_rcp_f32 v{T+i}, v{T+i}")
                    for i in range(0, 8, 2): E(f"v_pk_mul_f32 {P(src[i])}, {P(T+i)}, {P(src[i])}")
                else:
                    for i, x in enumerate(src): E(f"v_fma_f32 v{T+i}, -v{x}, v{x}, s0")
                    for i, x in enumerate(src): E(f"v_mul_f32 v{T+i}, v{T+i}, v{x}")
                    for i, x in enumerate(src): E(f"v_exp_f32 v{T+i}, v{T+i}")
                    for i, x in enumerate(src): E(f"v_fma_f32 v{T+i}, v{T+i}, s1, s1")
                    for i, x in enumerate(src): E(f"v_rcp_f32 v{T+i}, v{T+i}")
                    for i, x in enumerate(src): E(f"v_mul_f32 v{x}, v{T+i}, v{x}")
                pr = T + 8 + 4 * h
                for j in range(4): E(f"v_cvt_pk_bf16_f32 v{pr+j}, v{src[2*j]}, v{src[2*j+1]}")
                for ee in range(2):
                    E(lambda ee=ee, pr=pr, h=h: q.l(f"ds_write_b64 v{SW}, v[{pr+2*ee}:{pr+2*ee+1}] offset:{32*(2*h+ee)}"))
                if kind == "g":
                    s0, s1 = acc + 4 * tb, acc + 4 * tb + 1
                    if pk(2 * tb + h):
                        E(f"v_pk_mul_f32 {P(T)}, {P(src[0])}, {P(src[0])}")
                        E(f"v_pk_add_f32 {P(T+2)}, {P(src[0])}, {P(src[2])}")
                        for i in (2, 4, 6):
                            E(f"v_pk_fma_f32 {P(T)}, {P(src[i])}, {P(src[i])}, {P(T)}")
                            if i > 2: E(f"v_pk_add_f32 {P(T+2)}, {P(T+2)}, {P(src[i])}")
                        if h == 0:
                            E(f"v_add_f32 v{s0}, v{T+2}, v{T+3}")
                            E(f"v_add_f32 v{s1}, v{T}, v{T+1}")
                        else:
                            E(f"v_add_f32 v{T+2}, v{T+2}, v{T+3}")
                            E(f"v_add_f32 v{T+3}, v{T}, v{T+1}")
                            E(f"v_pk_add_f32 {P(s0)}, {P(s0)}, {P(T+2)}")
                    elif h == 0:
                        E(f"v_mul_f32 v{T}, v{src[0]}, v{src[0]}")
                        for x in src[1:]: E(f"v_fmac_f32 v{T}, v{x}, v{x}")
                        for x in src[1:]: E(f"v_add_f32 v{s0}, v{s0}, v{x}")
                        E(f"v_mov_b32 v{s1}, v{T}")
                    else:
                        for x in src:
                            E(f"v_add_f32 v{s0}, v{s0}, v{x}")
                            E(f"v_fmac_f32 v{s1}, v{x}, v{x}")
                if tb >= 1: store(E, 2 * (tb - 1) + h)
            for i in (2 * tb, 2 * tb + 1):
                r = acc + 32 + 16 * (i % 2) + 4 * tb
                E(lambda i=i, r=r: q.l(f"ds_read_b128 v[{r}:{r+3}], v{SR} offset:{8*SS*(i%2)}", f"sr{kind}{i}"))
        if kind == "g":
            for k in range(2):
                E(f"v_permlane16_swap_b32 v{acc+k}, v{acc+4+k}")
                E(f"v_permlane16_swap_b32 v{acc+8+k}, v{acc+12+k}")
            E("s_lshl_b32 s43, s22, 2")
            for k in range(2):
                E(f"v_add_f32 v{acc+k}, v{acc+k}, v{acc+4+k}")
                E(f"v_add_f32 v{acc+8+k}, v{acc+8+k}, v{acc+12+k}")
            E("s_add_u32 s43, s43, s16")
            E("s_lshl_b32 s43, s43, 9")
            for k in range(2): E(f"v_permlane32_swap_b32 v{acc+k}, v{acc+8+k}")
            E(lambda: (a.e("s_lshr_b32 s29, s31, 1"), a.e("s_lshl_b32 s29, s29, 12"), a.e("s_add_u32 s43, s43, s29")))
            for k in range(2): E(f"v_add_f32 v{T+k}, v{acc+k}, v{acc+8+k}")
            E(f"s_add_u32 s43, s43, {WS_ST}")
            E(f"v_lshlrev_b32 v{T+2}, 3, v2")
            E(lambda: q.v(f"buffer_store_dwordx2 v[{T}:{T+1}], v{T+2}, s[12:15], s43 offen sc1", "St"))
        store(E, 6); store(E, 7)
        return out
    flat = lambda bs: [x for b in bs for x in b]
    def stream_srd():
        a.e(f"s_mul_i32 s28, s22, {32768 * opt.get('n0', 62)}")
        a.e("s_add_u32 s28, s28, s24")
        a.e("s_lshl_b32 s26, s25, 15")
        srd_off(a, 8, 4, "s28", "s26")
    def xl():
        a.e("s_xor_b32 s26, s31, 1")
        a.e("s_lshl_b32 s26, s26, 7")
        a.e(f"s_add_u32 s26, s26, {WS_FL + 48}")
        q.v("buffer_load_dword v1, off, s[12:15], s26 sc1", "xid")
    def e0():
        q.wait("B15", "xid")
        a.e("v_readfirstlane_b32 s26, v1")
        a.e("s_getreg_b32 s21, hwreg(HW_REG_XCC_ID, 0, 4)")
        a.e("s_xor_b32 s21, s21, s26")
        if opt.get("far"): a.e("s_mov_b32 s21, 1")
        a.e("s_barrier")
    KS = opt.get("ks", 11); KC = 11
    raw_plan(0, KS, 16)
    c1l = lambda: q.v(cnt_load(0, "v12"), "c1")
    if KS > KC - 3: at(KC - 3, 8, c1l)
    fs(5)
    steps(0, KS)
    assert not fx[0]
    a.e("s_cmp_ge_u32 s16, 2")
    a.e(f"s_cbranch_scc1 {L('fpv')}")
    state = (list(q.vm), list(q.lg))

    def qk_part():
        role[0] = "qk"; fx[0] = {}
        raw_plan(KS, 16, 16)
        def chk1():
            q.wait("c1")
            a.e("s_cmp_lg_u32 s16, 1")
            a.e(f"s_cbranch_scc1 {L('c1_ok')}")
            poll(a, q, L, "c1", [cnt_load(0, "v12")], CNT_OK, "c1", slp=8)
            a.e("s_barrier")
            a.e("s_lshl_b32 s26, s22, 1")
            a.e("s_add_u32 s26, s26, s16")
            a.e("s_lshl_b32 s20, s26, 17")
            a.e("s_lshr_b32 s28, s3, 18")
            a.e("s_lshl_b32 s28, s28, 14")
            a.e("s_add_u32 s20, s20, s28")
            a.e(f"s_add_u32 s20, s20, {WS_MI}")
        if KS <= KC - 3: at(KC - 3, 8, c1l)
        at(KC, 8, chk1)
        at(KC, 10, xl)
        for kk in range(16, 48):
            k = kk - NQ + 1
            for nb in range(4): at(k, (9 + 2 * nb) if k < 16 else (1 + 4 * nb), lambda kk=kk, nb=nb: mload(kk, nb))
        at(15, 8, e0)
        for g, x in enumerate(["s_lshl_b32 s40, s31, 1", "s_add_u32 s40, s40, s16", "s_lshl_b32 s40, s40, 14", f"s_add_u32 s40, s40, {WS_QP}",
                               "s_lshl_b32 s41, s31, 5", "s_add_u32 s41, s41, s16", "s_lshl_b32 s41, s41, 2", f"s_add_u32 s41, s41, {WS_FL + 16}"]):
            at(15, g, x)
        steps(KS, 16)
        fs(6)
        NA_, NB_ = opt.get("qg", (2, 0))
        gb = gelu(128, "g", lambda b: b >= NA_ + NB_, "s17", 0)
        pre = ["s_lshl_b32 s26, s16, 2", "s_add_u32 s26, s26, s22", "s_lshl_b32 s26, s26, 13", f"s_add_u32 s18, s26, {LDS_XS}", f"v_add_u32 v{QW}, s18, v3", "s_lshl_b32 s19, s16, 14"]
        steps(16, 32, pre + flat(gb[:NA_]))
        fs(7)
        def pack(p, direct):
            a.e("s_nop 3")
            for i in range(8):
                tb, half = i // 2, i % 2
                src = [192 + 16 * (2 * half + ee) + 4 * tb + j for ee in range(2) for j in range(4)]
                pr = src[0]
                for j in range(4): a.e(f"v_cvt_pk_bf16_f32 v{pr+j}, v{src[2*j]}, v{src[2*j+1]}")
                if direct: qstore(8 * p + i, pr)
                q.l(f"ds_write_b128 v{QW}, v[{pr}:{pr+3}] offset:{16384*p + 1024*i}", "qw")
        def qstore(n, r, need=()):
            if n % 4 == 0: a.e(f"s_add_u32 s7, s40, {1024*n}")
            q.v(f"buffer_store_dwordx4 v[{r}:{r+3}], v3, s[12:15], s7 offen offset:{1024*(n%4)} sc1", "Qst", need=need)
        pack(0, False)
        for i in range(8):
            k = 32 + opt.get("qsp", [0, 1, 3, 4, 6, 7, 9, 10])[i]
            r = (WV, TR)[i % 2]
            at(k, 3, lambda i=i, r=r: q.l(f"ds_read_b128 v[{r}:{r+3}], v{QW} offset:{1024*i}", f"qr{i}"))
            at(k, 15, lambda i=i, r=r: qstore(i, r, (f"qr{i}",)))
        at(41, 7, lambda: q.v(cnt_load(8), "c2"))
        at(43, 7, stream_srd)
        at(44, 0, lambda: poll(a, q, L, "c2", [cnt_load(8)], CNT_OK, "c2", slp=8))
        kds = []
        for i in range(16):
            def kd(i=i):
                if i % 4 == 0:
                    a.e(f"s_add_u32 m0, s19, {1024*i}")
                    a.e(f"s_add_u32 s42, s19, {1024*i}")
                q.v(f"buffer_load_dwordx4 v3, s[8:11], s42 offen offset:{1024*(i%4)} sc1 lds", "kv0")
            if opt.get("kl", 1): kds.append(kd)
            else: at(44 + i // 4, 1 + 4 * (i % 4), kd)
        steps(32, 48, flat(gb[NA_:NA_ + NB_]), lead=2)
        assert not fx[0]
        fs(8)
        pack(1, True)
        rest = gb[NA_ + NB_:]
        W1, W2 = opt.get("qw_", (2, 1))
        for _ in range(W1): run(rest.pop(0))
        a.e("v_mov_b32 v14, 1")
        q.v("buffer_store_dword v14, off, s[12:15], s41 sc1", need=("Qst",))
        a.e("s_xor_b32 s41, s41, 128")
        qfl = f"buffer_load_dword v15, off, s[12:15], s41 sc1"
        run(kds)
        for _ in range(W2): run(rest.pop(0))
        q.v(qfl, "qf")
        for _ in range(opt.get("w3", 1)): run(rest.pop(0))
        fs(12)
        a.e("s_xor_b32 s40, s40, 0x8000")
        a.e("s_xor_b32 s18, s18, 0x2000")
        poll(a, q, L, "q", [qfl], ["v_readfirstlane_b32 s26, v15", "s_cmp_eq_u32 s26, 1"], "qf", slp=1)
        for i in range(16):
            if i % 4 == 0:
                a.e(f"s_add_u32 m0, s18, {16384*(i//8) + 1024*(i%8)}")
                a.e(f"s_add_u32 s7, s40, {1024*i}")
            q.v(f"buffer_load_dwordx4 v3, s[12:15], s7 offen offset:{1024*(i%4)} sc1 lds", "qd")
        run(flat(rest))
        fs(9)

    def pv_part(setup, vreads, zero):
        role[0] = "pv"; fx[0] = {}
        a.label(L("fpv"))
        q.vm, q.lg = list(state[0]), list(state[1])
        a.e("s_and_b32 s20, s3, 0xffff0000")
        a.e("s_lshl_b32 s26, s22, 1")
        a.e("s_add_u32 s26, s26, s16")
        a.e("s_sub_u32 s26, s26, 2")
        a.e("s_lshl_b32 s26, s26, 8")
        a.e("s_add_u32 s20, s20, s26")
        raw_plan(KS, 48, 48)
        at(KC, 8, "s_barrier")
        at(KC, 10, xl)
        at(15, 8, e0)
        def pub(i):
            tb, sl = i // 4, i % 4
            q.v(f"buffer_store_dwordx4 a[{64*tb+4*sl}:{64*tb+4*sl+3}], v{YO}, s[8:11], s19 offen offset:{1024*sl} sc1", "Xst")
            if sl == 3: a.e("s_add_u32 s19, s19, 16384")
        PE = opt.get("pe", [])
        for i, k in enumerate(PE): at(k, 12 if (i and PE[i - 1] == k) else 4, lambda i=i: pub(i))
        steps(KS, 16)
        fs(6)
        N1, N2 = opt.get("pg_", (5, 3))
        gb = gelu(128, "g", lambda b: b < N1, "s17", 0)
        e1 = flat(gb[:N1])
        for i in range(len(PE), 16): e1.insert((i - len(PE)) * opt.get("pd", 12), lambda i=i: pub(i))
        a.e("s_nop 3")
        run(e1)
        fs(12)
        def arrive():
            a.e(f"v_mov_b32 v13, {LDS_CNT}")
            a.e("v_mov_b32 v14, 1")
            q.wait("Xst")
            a.e("s_mov_b64 exec, 1")
            q.l("ds_add_rtn_u32 v15, v13, v14", "cnt")
            a.e("s_mov_b64 exec, -1")
        def sig2():
            q.wait("cnt")
            a.e("v_readfirstlane_b32 s28, v15")
            a.e("s_and_b32 s26, s2, 3")
            a.e("s_lshl_b32 s26, s26, 6")
            a.e("s_cmp_lg_u32 s28, 1")
            a.e(f"s_cbranch_scc1 {L('sig2')}")
            a.e("s_mov_b64 exec, 1")
            a.e("buffer_atomic_add v14, off, s[92:95], s26 offset:8")
            a.e("s_mov_b64 exec, -1")
            a.label(L("sig2"))
        K2 = opt.get("k2", 19)
        at(K2, 8, arrive)
        at(K2 + 1, 8, sig2)
        steps(16, 32, flat(gb[N1:]), lead=2)
        fs(7)
        a.e("s_lshl_b32 s26, s16, 7")
        a.e("s_add_u32 s17, s17, s26")
        a.e("s_sub_u32 s17, s17, 512")
        ua = gelu(192, "ua", lambda b: b >= N2, "s17", 32768)
        steps(32, 48, flat(ua[:N2]))
        assert not fx[0]
        fs(8)
        ub = gelu(128, "ub", lambda b: True, "s17", 32768 + 128)
        rest = ua[N2:] + ub
        def dma(n0, n, lds0, tag):
            for i in range(n):
                if i % 4 == 0:
                    a.e(f"s_add_u32 m0, {lds0}, {n0 + 1024*i}")
                    a.e(f"s_add_u32 s7, {lds0}, {n0 + 1024*i}")
                q.v(f"buffer_load_dwordx4 v3, s[8:11], s7 offen offset:{1024*(i%4)} sc1 lds", tag)
        stream_srd()
        setup()
        a.e("s_lshl_b32 s6, s19, 14")
        a.e("s_lshl_b32 s20, s19, 13")
        BS, BA, BB = opt.get("pb", (7, 11, 12))
        assert (BA - len(ua[N2:])) % 2 == 0 if BA >= len(ua[N2:]) else (N2 + BA) % 2 == 0
        for n in range(len(rest) + 1):
            if n == BS:
                q.wait("St")
                a.e("s_barrier")
                st(2); fs(9)
                dma(32768, 16, "s6", "kv1")
            if n == BA:
                q.all(vm=False)
                a.e("s_barrier")
                a.e(f"s_mul_i32 s26, s19, {16*SS - 8192}")
                a.e(f"s_add_u32 s26, s26, {LDS_SC2 - LDS_SC}")
                a.e(f"v_add_u32 v{SW}, s26, v{SW}")
                a.e(f"v_add_u32 v{SR}, s26, v{SR}")
                dma(65536, 8, "s20", "kv2"); dma(81920, 8, "s20", "kv2")
            if n == BB:
                q.wait("kv1")
                a.e("s_barrier")
                fs(10)
                signal(a, L, "sig3", 2, 4)
                dma(98304, 16, "s6", "kv3")
            if n < len(rest):
                ops = list(rest[n])
                if n >= BS:
                    for i in range(0, len(ops), 4):
                        if vreads: ops.insert(i, lambda x=vreads.pop(0): q.l(x))
                run(ops)
        assert not vreads
        zero()
        q.wait("kv2")
        q.all(vm=False)
    return qk_part, pv_part
```

```python
import sys
sys.path.insert(0, "gen")
from asmlib import *
from attn2 import gen_attn
KNAME = "standalone__conformer_family_branchformer__speech_kernel"

def build(path, stamp=0, opt=None):
    a = Asm()
    a('.amdgcn_target "amdgcn-amd-amdhsa--gfx950"')
    l = gen_attn(a, KNAME, stamp=stamp, opt=opt)
    t = a.text().replace(KNAME + "_", "L_")
    open(path, "w").write(l + "\n" + t)

if __name__ == "__main__":
    build("v3.s")
    build("v3_st.s", stamp=1)
    build("v3_fs.s", stamp=2)
    build("v3f_fs.s", stamp=3)
    build("c_fs.s", stamp=3, opt=dict(ta=0))
```

```python
import sys
sys.path.insert(0, "gen")
from asmlib import *
from layout import *
from conv import Conv
from aux import gen_aux
from front import *

RS = 1056
LDS_P = 131072
LDS_MX = 139264
LDS_FG = LDS_MX + 512
LDS_ML = LDS_MX + 1024
LDS_HALO = LDS_ML + 1024
LDS_TAP = LDS_HALO + 2048
LDS_STT = LDS_TAP + 3072
LDS_ATT = 163840
ES = 272
NA = 16
ARING = [16 * i for i in range(16)]
BIG = 2.0 ** 100
SPIN = 200000
FK = [0, 8, 16, 20, 24, 28, 30]

DROP = []
ALIGN = [0]
def emit_interval(a, mfmas, fill, lo=0, hi=None):
    for i, m in enumerate(mfmas):
        if i < lo or (hi is not None and i >= hi): continue
        if m is not None:
            if ALIGN[0]: a(".p2alignl 3, 0xbf800000")
            a.e(m)
        for f in fill.get(i, []):
            if any(f.startswith(d) for d in DROP): continue
            a.e(f)

def conv_addr(a, NR, row0):
    a.e("v_lshrrev_b32 v12, 5, v2")
    a.e(f"v_mul_u32_u24 v12, {NR}, v12")
    a.e(f"v_add_u32 v12, {row0}, v12")
    a.e("v_and_b32 v13, 31, v2")
    a.e("v_lshlrev_b32 v13, 4, v13")
    a.e("v_lshl_add_u32 v14, v12, 9, v13")
    a.e("s_and_b32 s26, s25, 3")
    a.e("s_lshl_b32 s26, s26, 15")
    a.e("v_add_u32 v4, s26, v14")
    a.e("v_add_u32 v7, s49, v14")
    a.e("v_and_b32 v14, 4, v12")
    a.e("v_lshlrev_b32 v14, 5, v14")
    a.e("v_xor_b32 v8, v7, v14")
    a.e(f"v_add_u32 v10, {LDS_TAP}, v13")
    a.e(f"v_add_u32 v13, {LDS_HALO}, v13")
    a.e("v_cmp_eq_u32 vcc, 0, v12")
    a.e("v_subrev_u32 v5, 1024, v4")
    a.e(f"v_add_u32 v6, {512*NR}, v4")
    a.e("v_cndmask_b32 v5, v5, v13, vcc")
    a.e(f"v_cmp_eq_u32 vcc, {64-NR}, v12")
    a.e("v_add_u32 v13, 1024, v13")
    a.e("v_lshlrev_b32 v9, 3, v12")
    a.e("v_cndmask_b32 v6, v6, v13, vcc")
    a.e(f"v_add_u32 v9, {LDS_STT}, v9")

def gen_tail(a, L, st, fs, opt):
    q = Seq(a)
    PF = opt.get("pf", 10)
    q.vm = [f"A{k}" for k in range(PF) for _ in range(4)]
    BF = [32, 48]; YR = 64; XR = 96
    NS = 32
    acc = lambda k: 128 if k < 16 else 192
    def bread(k, tb):
        s = k % 8
        r = BF[k % 2] + 4 * tb
        if k % 16 < 8:
            return f"ds_read_b128 v[{r}:{r+3}], v6 offset:{8192*tb + 1024*s}"
        return f"ds_read_b128 v[{r}:{r+3}], v{28 + s % 4} offset:{8192*tb + 256*(s//4)}"
    a.e("v_add_u32 v6, s48, v3")
    a.e("s_waitcnt lgkmcnt(0)")
    fs(5)
    a.e("s_barrier")
    for tb in range(4): q.l(bread(0, tb), "B0")
    a.e("v_and_b32 v4, 15, v2")
    a.e("v_lshrrev_b32 v5, 4, v2")
    a.e("v_mov_b32 v12, 1")
    a.e("s_mov_b32 s43, 0xffff0000")
    side = {}
    def at(k, g, fn): side.setdefault((k + g // 16, g % 16), []).append(fn)
    def spread(k, g, ops, per=2, skip=lambda g: False):
        n = 16 * k + g
        ops = list(ops)
        while ops:
            if not skip(n % 16):
                for _ in range(per):
                    if ops:
                        o = ops.pop(0)
                        at(n // 16, n % 16, o if callable(o) else (lambda o=o: a.e(o)))
            n += 1
    lo8 = lambda g: g < 8
    spread(0, 8, ["v_and_b32 v13, 7, v4", "v_lshlrev_b32 v13, 1, v13", "v_xor_b32 v13, v13, v5", "v_lshlrev_b32 v13, 4, v13",
                  "v_lshl_add_u32 v13, v4, 9, v13", "v_add_u32 v28, s49, v13", "v_xor_b32 v29, 64, v28", "v_xor_b32 v30, 128, v28",
                  "v_xor_b32 v31, 192, v28",
                  "s_and_b32 s26, s16, 2", "s_add_u32 s26, s26, s25", "s_and_b32 s26, s26, 3", "s_lshl_b32 s26, s26, 1",
                  "s_and_b32 s28, s16, 1", "s_add_u32 s26, s26, s28", "s_lshl_b32 s26, s26, 14",
                  "v_xor_b32 v13, v4, v5", "v_lshlrev_b32 v13, 4, v13", "v_lshl_add_u32 v13, v4, 8, v13", "v_add_u32 v8, s26, v13",
                  "v_xor_b32 v9, 64, v8", "v_xor_b32 v10, 128, v8", "v_xor_b32 v11, 192, v8",
                  "v_lshrrev_b32 v13, 3, v2", "v_and_b32 v14, 7, v2", "v_lshlrev_b32 v24, 1, v14", "v_xor_b32 v24, v24, v13",
                  "v_lshlrev_b32 v24, 4, v24", "v_lshl_add_u32 v24, v13, 8, v24", "v_add_u32 v24, s26, v24",
                  "v_xor_b32 v25, 16, v24", "v_xor_b32 v26, 128, v24", "v_xor_b32 v27, 144, v24",
                  "v_lshlrev_b32 v15, 4, v14", "v_lshl_add_u32 v15, v13, 10, v15"], skip=lo8)
    for i in range(8):
        def xl(i=i):
            a.e(f"s_add_u32 s26, s58, {8192*i}")
            q.v(f"buffer_load_dwordx4 v[{XR+4*i}:{XR+4*i+3}], v15, s[32:35], s26 offen", "X")
        at(opt.get("kx", 26), 1 + opt.get("dx", 4) * i, xl)
    YS = opt.get("ys", 2)
    for i in range(8):
        tb, h = i % 4, i // 4
        k, g0 = (16 + i // 2, 8 + 4 * (i % 2)) if YS == 2 else (16, 8 + 3 * i)
        src = [128 + 16 * (2 * h + ee) + 4 * tb + j for ee in range(2) for j in range(4)]
        for j in range(4):
            at(k, g0 + j // 2, lambda j=j, i=i, src=src: a.e(f"v_cvt_pk_bf16_f32 v{YR+4*i+j}, v{src[2*j]}, v{src[2*j+1]}"))
        at(k, g0 + 2, lambda i=i: q.v(f"buffer_store_dwordx4 v[{YR+4*i}:{YR+4*i+3}], v3, s[44:47], s{54 + i//4} offen offset:{1024*(i%4)} {opt.get('sm_', 'nt')}", "Yst"))
    KF, KL, KC = opt.get("k", (24, 27, 29))
    at(KF, 9, lambda: release(a, q, L, "ry", "Yst", "buffer_store_dword v12, off, s[12:15], s56",
        [f"buffer_store_dwordx4 v[{YR+4*i}:{YR+4*i+3}], v3, s[12:15], s{54 + i//4} offen offset:{1024*(i%4)} sc1" for i in range(8)]))
    yl = f"buffer_load_dword v14, off, s[12:15], s57 {opt.get('pm', 'sc1')}"
    at(KL, 9, lambda: q.v(yl, "yf"))
    def gety():
        poll(a, q, L, "y", [yl], ["v_readfirstlane_b32 s26, v14", "s_cmp_eq_u32 s26, 1"], "yf", slp=1)
        a.e("s_xor_b32 s54, s54, 0x10000")
        a.e("s_xor_b32 s55, s55, 0x10000")
    at(KC, 7, gety)
    for i in range(8):
        at(KC, 8 + i, lambda i=i: q.v(f"buffer_load_dwordx4 v[{YR+4*i}:{YR+4*i+3}], v3, s[12:15], s{54 + i//4} offen offset:{1024*(i%4)} {opt.get('lm', 'sc1')}", f"Y{i}"))
    XF = 128
    KU = opt.get("ku", 30)
    at(KU, 0, lambda: q.wait("X"))
    spread(KU, 0, [x for i in range(32) for x in (f"v_lshlrev_b32 v{XF+2*i}, 16, v{XR+i}", f"v_and_b32 v{XF+2*i+1}, s43, v{XR+i}")])
    nl = 4 * PF
    AS = opt.get("as", "4" * 16 + "0000" + "4" * 12)
    LG = opt.get("lg", (1, 5, 9, 13, 3))
    for k in range(NS):
        assert nl >= 4 * min(NS, k + 3)
        if k == 0: st(5)
        if k in FK: fs(6 + FK.index(k))
        q.wait(f"A{k}", f"B{k}")
        g = 0
        for nb in range(4):
            for tb in range(4):
                d = acc(k) + 16 * nb + 4 * tb; r = areg(k, nb); b = BF[k % 2] + 4 * tb
                c = "0" if k % 16 == 0 else f"v[{d}:{d+3}]"
                a.e(f"{M16} v[{d}:{d+3}], a[{r}:{r+3}], v[{b}:{b+3}], {c}")
                if g < 8 and g % 2 == 0 and k + 1 < NS:
                    q.l(bread(k + 1, g // 2), f"B{k+1}")
                if nl < 4 * NS and nl // 4 < k + NA and g in LG[:int(AS[k])]:
                    aload(a, q, nl // 4, nl % 4); nl += 1
                for fn in side.pop((k, g), []): fn()
                g += 1
    assert not side, side.keys()
    st(6); fs(13)
    T0 = 16
    for i in range(8):
        tb, h = i % 4, i // 4
        q.wait(f"Y{i}")
        for j in range(4):
            a.e(f"v_lshlrev_b32 v{T0+2*j}, 16, v{YR+4*i+j}")
            a.e(f"v_and_b32 v{T0+2*j+1}, s43, v{YR+4*i+j}")
        for j in range(4):
            d = 192 + 16 * (2 * h + j // 2) + 4 * tb + 2 * (j % 2)
            a.e(f"v_pk_add_f32 v[{d}:{d+1}], v[{d}:{d+1}], v[{T0+2*j}:{T0+2*j+1}]")
        for ee in range(2):
            nb = 2 * h + ee; d = 192 + 16 * nb + 4 * tb
            q.l(f"ds_write_b128 v{8+nb}, v[{d}:{d+3}] offset:{4096*tb}", "Ew")
        if h == 1:
            for ii in (2 * tb, 2 * tb + 1):
                for hh in range(2):
                    r = ER(ii) + 4 * hh
                    q.l(f"ds_read_b128 v[{r}:{r+3}], v{24 + 2*(ii%2) + hh} offset:{2048*ii}", f"E{ii}")
    fs(14)
    for i in range(8):
        q.wait(f"E{i}")
        for k in range(4):
            r = ER(i) + 2 * k
            a.e(f"v_pk_add_f32 v[{r}:{r+1}], v[{r}:{r+1}], v[{XF+8*i+2*k}:{XF+8*i+2*k+1}]")
        for k in range(4):
            r = ER(i) + 2 * k
            a.e(f"v_cvt_pk_bf16_f32 v{XF+8*i+k}, v{r}, v{r+1}")
        a.e(f"s_add_u32 s26, s58, {8192*i}")
        q.v(f"buffer_store_dwordx4 v[{XF+8*i}:{XF+8*i+3}], v15, s[36:39], s26 offen {opt.get('omod', 'nt')}")

def ER(i):
    return (96 + 8 * i) if i < 4 else (32 + 8 * (i - 4))

def areg(k, nb):
    return ARING[k % NA] + 4 * nb

def aload(a, q, k, nb):
    s = k % 8
    if nb == 0:
        if k % 16 < 8:
            a.e(f"s_add_u32 s59, {'s52' if k < 16 else 's53'}, {524288 + 32768*(s//4) + 4096*(s%4)}")
        else:
            a.e(f"s_add_u32 s59, {'s50' if k < 16 else 's51'}, {4096*s}")
    r = areg(k, nb)
    q.v(f"buffer_load_dwordx4 a[{r}:{r+3}], v3, s[12:15], s59 offen offset:{1024*nb} sc1", f"A{k}")

def gen_attn(a, name, stamp=False, opt=None):
    dg = [3 + (15 * i) // 4 for i in range(16)]
    opt = dict(dict(ps=1, xe=1, qw=62, dg=dg, mg=[2, 17, 32, 47, 60], rg=[g for g in range(8, 60) if g not in dg][:32], rot=4,
                    kg_=list(range(8, 16)) + list(range(24, 32)), qbe=57, pbe=58, pvg=[4, 57, 60, 60, 60, 61, 61, 61]), **(opt or {}))
    OOL[:] = []
    DROP[:] = opt.get('drop', [])
    ALIGN[0] = opt.get('al', 0)
    Fine.op = 's_memtime' if opt.get('cyc') else 's_memrealtime'
    nP = 16
    L = lambda s: f"{name}_{s}"
    st = Stamper(a, stamp in (1, 5))
    fs = Fine(a, stamp == 2)
    ff = Fine(a, stamp == 3)
    fp = Fine(a, stamp == 6)
    kernel_begin(a, name)
    a.e("s_cmp_ge_u32 s2, 256")
    a.e(f"s_cbranch_scc1 {L('end')}")
    a.e(f"s_load_dwordx2 s[4:5], s[0:1], {KA['ws']}")
    a.e(f"s_load_dwordx2 s[6:7], s[0:1], {KA['x']}")
    a.e(f"s_load_dwordx2 s[40:41], s[0:1], {KA['wq']}")
    a.e(f"s_load_dwordx2 s[8:9], s[0:1], {KA['wk']}")
    a.e(f"s_load_dwordx2 s[96:97], s[0:1], {KA['wup']}")
    a.e(f"s_load_dwordx2 s[44:45], s[0:1], {KA['dw']}")
    a.e(f"s_load_dwordx4 s[48:51], s[0:1], {KA['out']}")
    a.e(f"s_load_dwordx4 s[52:55], s[0:1], {KA['wv']}")
    a.e(f"s_load_dwordx4 s[56:59], s[0:1], {KA['wdn']}")
    a.e("s_and_b32 s20, s2, 7")
    a.e("s_lshl_b32 s20, s20, 5")
    a.e("s_lshr_b32 s21, s2, 3")
    a.e("s_add_u32 s31, s20, s21")
    if opt.get("sw62", 1):
        a.e("s_and_b32 s20, s31, 62")
        a.e("s_cmp_eq_u32 s20, 60")
        a.e("s_cselect_b32 s20, 64, 0")
        a.e("s_xor_b32 s31, s31, s20")
    if opt.get("map") == 1:
        a.e("s_and_b32 s20, s2, 6")
        a.e("s_lshl_b32 s20, s20, 5")
        a.e("s_lshl_b32 s21, s21, 1")
        a.e("s_add_u32 s31, s20, s21")
        a.e("s_and_b32 s20, s2, 1")
        a.e("s_add_u32 s31, s31, s20")
    a.e("s_lshr_b32 s21, s31, 7")
    a.e("s_and_b32 s22, s31, 1")
    a.e("s_bfe_u32 s23, s31, 0x60001")
    a.e("v_lshrrev_b32 v1, 6, v0")
    a.e("v_and_b32 v2, 63, v0")
    a.e("v_readfirstlane_b32 s16, v1")
    a.e("v_lshlrev_b32 v3, 4, v2")
    a.e("s_mul_i32 s24, s21, 4096000")
    N0 = opt.get("n0", 62)
    a.e(f"s_mul_i32 s25, s22, {125 - 2*N0}")
    a.e(f"s_add_i32 s25, s25, {N0}")
    a.e("s_lshl_b32 s27, s23, 16")
    a.e("s_waitcnt lgkmcnt(0)")
    st(0); ff(0)
    def fin_srd(d, n):
        a.e(f"s_and_b32 s{d+1}, s{d+1}, 0xffff")
        a.e(f"s_mov_b32 s{d+2}, {n}")
        a.e(f"s_mov_b32 s{d+3}, 0x00020000")
    q = Seq(a)
    srd_off(a, 32, 6, "s24", 4096000)
    a.e("v_lshrrev_b32 v4, 3, v2")
    a.e("v_and_b32 v5, 7, v2")
    a.e("v_lshlrev_b32 v5, 4, v5")
    a.e("v_lshl_add_u32 v4, v4, 10, v5")
    a.e("s_lshl_b32 s26, s16, 14")
    a.e("s_add_u32 s26, s26, s27")
    a.e("s_lshl_b32 s28, s22, 9")
    a.e("s_add_u32 s26, s26, s28")
    a.e("v_mov_b32 v1, v4")
    a.e("s_mov_b32 s20, s26")
    def xld(s_):
        if s_ % 4 == 0: a.e(f"s_xor_b32 s7, s20, {8192*(s_//8) + 512*((s_//4)%2)}")
        q.v(f"buffer_load_dwordx4 v[{16+4*s_}:{19+4*s_}], v1, s[32:35], s7 offen offset:{128*(s_%4)} {opt.get('xmod', 'nt')}", f"x{s_}")
    NX = opt.get("nx", 16)
    for s_ in range(NX): xld(s_)
    opt["xrest"] = [lambda s_=s_: xld(s_) for s_ in range(NX, 16)]
    fin_srd(96, 1048576)
    touches(a, q, L, opt)
    fin_srd(40, 524288); fin_srd(8, 524288); fin_srd(44, 5120)
    make_srd(a, 12, 4, 0x4000000)
    make_srd(a, 92, 50, 256)
    srd_off(a, 36, 48, "s24", 4096000)
    mi = m_issue(a, q)
    def clear():
        a.e("v_mov_b32 v14, 0")
        a.e("v_lshlrev_b32 v13, 2, v2")
        a.e("s_lshl_b32 s26, s31, 2")
        a.e("s_add_u32 s26, s26, s16")
        a.e("s_lshl_b32 s28, s26, 8")
        a.e(f"s_add_u32 s28, s28, {WS_MX}")
        q.v("buffer_store_dword v14, v13, s[12:15], s28 offen sc1", "St")
        a.e("s_lshl_b32 s28, s31, 5")
        a.e("s_add_u32 s28, s28, s16")
        a.e("s_lshl_b32 s28, s28, 2")
        a.e(f"s_add_u32 s28, s28, {WS_FL}")
        a.e("v_and_b32 v13, 48, v2")
        a.e("s_getreg_b32 s26, hwreg(HW_REG_XCC_ID, 0, 4)")
        a.e("v_cmp_eq_u32 vcc, 48, v13")
        a.e("v_mov_b32 v14, s26")
        a.e("s_nop 0")
        a.e("v_cndmask_b32 v14, 0, v14, vcc")
        q.v("buffer_store_dword v14, v13, s[12:15], s28 offen sc1", "St")
    a.e("s_cmp_ge_u32 s23, 63")
    a.e(f"s_cbranch_scc1 {L('aux')}")
    def emit_aux(q0=q, vm0=list(q.vm)):
        a.label(L("aux"))
        q0.vm, q0.lg = list(vm0), []
        for f in mi: f()
        q0.v("buffer_load_dword v0, v7, s[44:47], 0 offen")
        m_addr(a)
        mfin = m_tile(a, q0)
        mfin()
        q0.all()
        a.e("s_barrier")
        signal(a, L, "sig1a", 0, 0)
        signal(a, L, "sig2a", 1, 8)
        signal(a, L, "sig3a", 2, 4)
        a.e("s_lshl_b32 s20, s21, 1")
        a.e("s_add_u32 s20, s20, s22")
        gen_aux(a, L, st, ff, opt)
        signal(a, L, "sig4a", 0, 12, shard=False)
        for k in range(5, 7): st(k)
        for k in range(15): fs(k)
        if stamp in (4, 6):
            for k in range(16): Fine(a, True)(k)
        for k in range(9, 15): ff(k)
        a.e(f"s_branch {L('fin')}")
    qk_part, pv_part = gen_front(a, q, L, st, ff, mi, clear, opt)
    qf = q
    qk_part()
    def tail_consts():
        t = Asm()
        t.e("s_lshl_b32 s26, s22, 2")
        t.e("s_add_u32 s26, s26, s16")
        t.e("s_lshl_b32 s53, s26, 16")
        t.e(f"s_add_u32 s53, s53, {WS_W3}")
        t.e("s_xor_b32 s52, s53, 0x40000")
        t.e("s_lshl_b32 s58, s26, 7")
        t.e("s_add_u32 s58, s58, s27")
        t.e("s_xor_b32 s54, s31, 1")
        t.e("s_lshl_b32 s54, s54, 3")
        t.e("s_add_u32 s54, s54, s16")
        t.e("s_lshl_b32 s54, s54, 13")
        t.e(f"s_add_u32 s54, s54, {WS_GU + 32768}")
        t.e("s_add_u32 s55, s54, 4096")
        t.e("s_lshl_b32 s26, s22, 15")
        t.e("s_add_u32 s50, s52, s26")
        t.e("s_add_u32 s51, s53, s26")
        t.e("s_lshl_b32 s26, s22, 14")
        t.e("s_add_u32 s52, s52, s26")
        t.e("s_add_u32 s53, s53, s26")
        t.e("s_add_u32 s26, s25, 3")
        t.e("s_and_b32 s26, s26, 3")
        t.e("s_lshl_b32 s48, s26, 15")
        t.e("s_add_u32 s26, s25, 1")
        t.e("s_and_b32 s26, s26, 3")
        t.e("s_lshl_b32 s49, s26, 15")
        t.e("s_lshl_b32 s56, s31, 5")
        t.e("s_add_u32 s56, s56, s16")
        t.e("s_lshl_b32 s56, s56, 2")
        t.e(f"s_add_u32 s56, s56, {WS_FL}")
        t.e("s_xor_b32 s57, s56, 128")
        return [x.strip() for x in t.lines]
    a.e("s_mov_b32 s17, s25")
    a.e(f"s_mov_b32 s101, {f2u(-BIG)}")
    NEAR = ["s_cmp_eq_u32 s21, 0", "s_cselect_b32 s46, s14, 0", "s_mov_b64 s[44:45], s[12:13]"]
    def guard(r):
        return [f"v_add_f32 v{r}, v{r}, v{r+1}", f"v_cmp_nle_f32 vcc, s101, v{r}", "s_cmp_eq_u32 s101, 0", "s_cselect_b64 s[28:29], 0, vcc",
                "s_cmp_lg_u64 s[28:29], 0", f"s_cbranch_scc1 {L('redo')}"]

    def dma_group():
        return "s_and_b32 m0, s18, 0x1ffff", [f"buffer_load_dwordx4 v3, s[8:11], s18 offen offset:{1024*j} {opt.get('kvmod', 'sc1')} lds" for j in range(4)]
    def dma_tile():
        for g in range(4):
            pre, ld = dma_group()
            a.e(pre); a.e("s_nop 0")
            for x in ld: a.e(x)
            a.e(f"s_add_u32 s18, s18, {4096 if g < 3 else 32768 - 3*4096}")
    def place_dma(fill, gaps):
        k = 0
        for g in range(4):
            pre, ld = dma_group()
            fill.setdefault(gaps[k] - 1, []).append(pre)
            for j in range(4):
                fill.setdefault(gaps[k], []).append(ld[j]); k += 1
            fill.setdefault(gaps[k - 1] + 1, []).append(f"s_add_u32 s18, s18, {4096 if g < 3 else 32768 - 3*4096}")
    auxl = cnt_load(4, "v11")
    auxc = ["v_cmp_le_u32 vcc, v7, v14"] + CNT_OK[1:]

    KB = [32, 96]; S = 160; NEGM = 176; E = 192; PK = 200; LS = 204
    VK = 8; VPW = 9; TMP = 10
    MX0 = 208
    def qk_setup():
        a.e("v_and_b32 v4, 15, v2")
        a.e("v_lshrrev_b32 v5, 4, v2")
        a.e("v_and_b32 v6, 0x27, v2")
        a.e("v_and_b32 v7, 8, v2")
        a.e("v_lshl_add_u32 v6, v7, 1, v6")
        a.e("v_and_b32 v7, 16, v2")
        a.e("v_lshrrev_b32 v7, 1, v7")
        a.e("v_add_lshl_u32 v6, v6, v7, 4")
        a.e("s_lshl_b32 s29, s16, 14")
        a.e(f"v_add_u32 v{VK}, s29, v6")
        a.e("s_lshl_b32 s29, s16, 11")
        a.e(f"s_add_u32 s29, s29, {LDS_P}")
        a.e(f"v_lshl_add_u32 v{VPW}, v2, 3, s29")
        for i in range(4):
            a.e(f"v_mov_b32 v{LS+i}, 0")
        for i in range(4):
            a.e(f"v_mov_b32 v{MX0+i}, 0xff800000")
    qk_setup()
    qf.wait("kv0", "qd")
    qf.all(vm=False)
    fy = Fine(a, opt.get("fy")); fy(9)
    a.e("s_barrier")
    fy(10)
    st(2); ff(10)
    def kread(par, s, imm):
        r = KB[par] + 4 * s
        return f"ds_read_b128 v[{r}:{r+3}], v{VK} offset:{imm + 1024*s}"
    def chain(par, qb, c0):
        out = []
        for s in range(16):
            k = KB[par] + 4 * s; q = 64 * qb + 4 * s; d = S + 4 * qb
            c = c0 if s == 0 else f"v[{d}:{d+3}]"
            out.append(f"{M16} v[{d}:{d+3}], v[{k}:{k+3}], a[{q}:{q+3}], {c}")
        return out
    q = Seq(a)
    mf = [m for qb in range(4) for m in chain(0, qb, "0")]
    ST = 212
    tc = tail_consts() + [
        "s_mul_i32 s28, s16, 34", "s_lshl_b32 s29, s23, 6", "s_add_u32 s28, s28, s29", "s_sub_u32 s28, s28, 2",
        f"v_add_u32 v{ST+16}, s28, v2",
        f"v_max_i32 v{ST+17}, 0, v{ST+16}", f"v_min_i32 v{ST+17}, {T-1}, v{ST+17}", f"v_lshrrev_b32 v{ST+18}, 6, v{ST+17}", f"v_and_b32 v{ST+17}, 63, v{ST+17}",
        f"v_lshlrev_b32 v{ST+17}, 3, v{ST+17}", f"v_lshl_add_u32 v{ST+17}, v{ST+18}, 12, v{ST+17}",
        "s_lshr_b32 s6, s31, 7", "s_lshl_b32 s6, s6, 18", f"s_add_u32 s6, s6, {WS_ST}",
        "s_lshl_b32 s28, s16, 1", "s_add_u32 s28, s28, s23", "s_sub_u32 s28, s28, 1", "s_max_i32 s28, s28, 0", "s_min_i32 s28, s28, 62",
        "s_sub_u32 s28, s28, s23", "s_lshl_b32 s28, s28, 1", "s_add_u32 s28, s28, s31", "s_lshl_b32 s28, s28, 16",
        "s_xor_b32 s29, s16, 1", f"s_mul_i32 s29, s29, {62*512}", "s_add_u32 s28, s28, s29", f"s_add_u32 s7, s28, {WS_GU}",
        "s_lshl_b32 s29, s16, 10", f"s_add_u32 s42, s29, {LDS_HALO}",
        "s_xor_b32 s28, s31, 1", "s_lshl_b32 s28, s28, 1", "s_add_u32 s28, s28, s16", "s_lshl_b32 s28, s28, 9", f"s_add_u32 s28, s28, {WS_MX}",
        f"v_lshl_add_u32 v{ST+18}, v2, 3, s28", f"v_writelane_b32 v{ST+18}, s57, 1",
        f"s_mul_i32 s28, s16, {34*8}", f"s_add_u32 s28, s28, {LDS_STT}", f"v_lshl_add_u32 v{ST+19}, v2, 3, s28"]
    if opt.get("qe"):
        for n in range(12): q.l(kread(0, n, 0), f"K{n}")
        for n in range(64):
            q.e(mf[n], need=(f"K{n}",))
            if n < 4: q.l(kread(0, 12 + n, 0), f"K{12+n}")
            elif tc: a.e(tc.pop(0))
    else:
        a.e(f"v_add_u32 v7, {LDS_XS}, v3")
        rd = []
        for n in range(64):
            qb, s = n // 16, n % 16
            rd.append((f"ds_read_b128 a[{64*qb+4*s}:{64*qb+4*s+3}], v7 offset:{16384*((s%8)//2) + 8192*(s//8) + 2048*qb + 1024*(s%2)}", f"Q{n}"))
            if qb == 0: rd.append((kread(0, s, 0), f"Q{n}"))
        for _ in range(14): q.l(*rd.pop(0))
        for n in range(64):
            if n % 2 == 0: q.wait(f"Q{n+1}")
            a.e(mf[n])
            if opt.get("q1") and n % 3 == 0 and n < 48:
                i = n // 3
                if i % 4 == 0:
                    a.e(f"s_add_u32 m0, s19, {32768 + 1024*i}")
                    a.e(f"s_add_u32 s18, s19, {32768 + 1024*i}")
                a.e(f"buffer_load_dwordx4 v3, s[8:11], s18 offen offset:{1024*(i%4)} sc1 lds")
            for _ in range(2 if n < 14 else 1):
                if rd: q.l(*rd.pop(0))
            for _ in range(0 if n < 12 else 1 if rd else 3):
                if tc: a.e(tc.pop(0))
        a.label(L("qk_again"))
        fy(11)
        a.e("s_barrier")
        fy(12)
    assert not tc
    a.e("s_nop 7")
    for qb in range(4):
        d = S + 4 * qb
        a.e(f"v_max3_f32 v{E+qb}, v{d}, v{d+1}, v{d+2}")
        a.e(f"v_max3_f32 v{E+qb}, v{E+qb}, v{d+3}, v{MX0+qb}")
    def group_reduce(r, t, op):
        for sw in ("v_permlane16_swap_b32", "v_permlane32_swap_b32"):
            for qb in range(4):
                a.e(f"v_mov_b32 v{t+qb}, v{r+qb}")
            a.e("s_nop 1")
            for qb in range(4):
                a.e(f"{sw} v{r+qb}, v{t+qb}")
            a.e("s_nop 1")
            for qb in range(4):
                a.e(f"{op} v{r+qb}, v{r+qb}, v{t+qb}")
    group_reduce(E, E + 4, "v_max_f32")
    a.e("s_lshl_b32 s29, s16, 8")
    a.e(f"s_add_u32 s29, s29, {LDS_MX}")
    a.e(f"v_lshl_add_u32 v{TMP}, v4, 4, s29")
    a.e(f"ds_write_b128 v{TMP}, v[{E}:{E+3}]")
    a.e(f"v_xor_b32 v{TMP}, 256, v{TMP}")
    a.e("s_waitcnt vmcnt(0) lgkmcnt(0)")
    fy(13)
    a.e("s_barrier")
    fy(14)
    a.e(f"ds_read_b128 v[{E+4}:{E+7}], v{TMP}")
    for s in range(8):
        a.e(kread(1, s, 32768))
    a.e("s_waitcnt lgkmcnt(8)")
    for qb in range(4):
        a.e(f"v_max_f32 v{E+qb}, v{E+qb}, v{E+4+qb}")
    for qb in range(4):
        for j in range(4):
            a.e(f"v_sub_f32 v{NEGM+4*qb+j}, 0, v{E+qb}")
    a.e("s_waitcnt lgkmcnt(4)")
    for s in range(8, 16):
        a.e(kread(1, s, 32768))
    for qb in range(4):
        for j in range(4):
            a.e(f"v_add_f32 v{S+4*qb+j}, v{S+4*qb+j}, v{NEGM+4*qb}")
    def softmax_ops(qb, par):
        e = E + 4 * (qb % 2); p = PK + 2 * (qb % 2); d = S + 4 * qb
        ex = [f"v_exp_f32{opt.get('e64', '')} v{e+j}, v{d+j}" for j in range(4)]
        ad = [f"v_add_f32 v{LS+qb}, v{LS+qb}, v{e+j}" for j in range(4)]
        cv = [f"v_cvt_pk_bf16_f32 v{p+j}, v{e+2*j}, v{e+2*j+1}" for j in range(2)]
        wr = f"ds_write_b64 v{VPW}, v[{p}:{p+1}] offset:{par*4096 + qb*512}"
        return ex, ad, cv, wr
    ex, ad, cv, wr = softmax_ops(0, 0)
    for x in ex + ["s_nop 0"] + cv + ad + [wr]: a.e(x)
    a.e("s_waitcnt lgkmcnt(1)")
    fill = {}
    ops = []
    for qb in range(1, 4):
        ex, ad, cv, wr = softmax_ops(qb, 0)
        ops += ex + [ad[0]] + cv + ad[1:] + [wr]
    for i, x in enumerate(ops):
        fill.setdefault(i * 15 // len(ops), []).append(x)
    ROT = opt.get("rot", 0)
    emit_interval(a, chain(1, 0, f"v[{NEGM}:{NEGM+3}]") + chain(1, 1, f"v[{NEGM+4}:{NEGM+7}]")[:ROT], fill)
    a.e("s_waitcnt lgkmcnt(0)")
    a.e("s_sub_u32 s17, s17, 1")
    fy(15)
    a.e("s_barrier")

    XT = ["buffer_load_dword v0, v7, s[32:35], s40 offen", "s_add_u32 s40, s40, 1024"]
    def qk_interval(par, lo=0, hi=None):
        mf = []
        for c in range(5):
            qb = (c + 1) % 4
            mf += chain(par if c < 3 else par ^ 1, qb, f"v[{NEGM+4*qb}:{NEGM+4*qb+3}]")
        mf = mf[ROT:64 + ROT]
        fill = {}
        F_ = lambda g, x: fill.setdefault(g, []).append(x)
        rgaps = opt.get("kg_", [1, 2, 3, 12, 13, 14, 16, 17, 18, 28, 29, 30, 32, 33, 34, 35])
        if par == 1: F_(rgaps[0] - 1, f"v_xor_b32 v{VK}, 0x10000, v{VK}")
        imm = 32768 * (par ^ 1)
        for s in range(16):
            F_(rgaps[s], kread(par ^ 1, s, imm))
        sm = opt.get("sm", [4, 5, 6, 7, 8, 8, 9, 10, 10, 11, 11])
        for c in range(4):
            ex, ad, cv, wr = softmax_ops(c, par)
            for g, x in zip(sm, ex + cv + [wr] + ad): F_(16 * c + g - ROT, x)
        kw = 47 - ROT
        nwr = sum(1 for c in range(4) if rgaps[-1] <= 16 * c + sm[6] - ROT <= kw)
        F_(kw, f"s_waitcnt lgkmcnt({nwr})")
        F_(kw + 1, "s_sub_u32 s17, s17, 1")
        if par == 1:
            F_(kw - 3, "s_cmp_lt_u32 s17, s40")
            fill.setdefault(kw - 2, []).extend([f"s_cbranch_scc1 {L('touch')}", L("touch_ret") + ":"])
        if stamp == 7:
            F_(kw + 2, "s_mov_b32 m0, s17"); F_(kw + 3, "v_writelane_b32 v240, s60, m0"); F_(kw + 3, "s_memtime s[60:61]")
        if opt.get("kt"):
            F_(opt["kt"][1], "buffer_load_dword v0, v3, s[8:11], s41 offen sc1"); F_(46, "s_add_u32 s41, s41, 32768")
        XE = opt.get("xe", 0)
        F_(59 if XE else 62, "s_cmp_eq_u32 s17, 0")
        if XE: F_(60, f"s_cbranch_scc1 {L('qk_exit')}")
        F_(opt.get("qw", 63), "s_waitcnt lgkmcnt(0)"); F_(63, "s_barrier")
        for c in range(4):
            last, first = 16 * c - 1 - ROT, 16 * c + sm[0] - ROT
            n = first - last + sum(len([x for x in fill.get(g % 64, []) if not x.endswith(":")]) for g in range(last, first))
            g = last + 2
            while n < 8:
                F_(g % 64, "s_nop 0"); n += 1; g += 1
                assert g <= first
        emit_interval(a, mf, fill, lo, hi)

    if stamp == 7:
        a.e("v_mov_b32 v240, 0")
        a.e("s_memtime s[60:61]")
    a.e("v_and_b32 v11, 3, v2")
    a.e("v_lshlrev_b32 v11, 6, v11")
    a.e("v_mov_b32 v7, 64")
    a.e("v_writelane_b32 v11, 8, 4")
    a.e("v_writelane_b32 v7, 4, 4")
    if opt.get("kt"):
        a.e("s_lshr_b32 s41, s2, 4")
        a.e("s_lshl_b32 s41, s41, 1")
        a.e("s_add_u32 s41, s41, s16")
        a.e("s_lshl_b32 s41, s41, 10")
        a.e(f"s_add_u32 s41, s41, {32768 * opt['kt'][0]}")
    a.e("s_lshr_b32 s40, s31, 1")
    a.e(f"s_and_b32 s40, s40, {opt.get('xs', 15)}")
    a.e("s_lshl_b32 s40, s40, 1")
    a.e(f"s_add_u32 s40, s40, {opt.get('xb', 12)}")
    st(3); ff(11)
    QB = opt.get("qbe", 0)
    if QB:
        a.e(f"s_branch {L('qk_in')}")
        a(".p2align 6")
        a.label(L("qk_loop"))
        XE = opt.get("xe", 0)
        qk_interval(0, QB)
        if not XE: a.e(f"s_cbranch_scc1 {L('qk_done')}")
        a.label(L("qk_in"))
        qk_interval(1)
        if not XE: a.e(f"s_cbranch_scc1 {L('qk_done')}")
        qk_interval(0, 0, QB)
        a.e(f"s_branch {L('qk_loop')}")
        a.label(L("qk_exit"))
        a.e("s_waitcnt lgkmcnt(0)")
        a.e("s_barrier")
    else:
        a(".p2align 6")
        a.label(L("qk_loop"))
        qk_interval(1)
        a.e(f"s_cbranch_scc1 {L('qk_done')}")
        qk_interval(0)
        a.e(f"s_cbranch_scc0 {L('qk_loop')}")
    a.label(L("qk_done"))
    def tl(srd, so):
        a.e("v_lshlrev_b32 v12, 7, v2")
        a.e(f"buffer_load_dword v0, v12, s[{srd}:{srd+3}], {so} offen")
    def b_code():
        a.e("s_getpc_b64 s[28:29]")
        a.label(L("pc0"))
        a.e(f"s_sub_u32 s28, s28, {L('pc0')} - {L('qk_done')}")
        a.e("s_subb_u32 s29, s29, 0")
        a.e("s_lshr_b32 s30, s2, 3")
        a.e("s_lshl_b32 s30, s30, 1")
        a.e("s_add_u32 s30, s30, s16")
        a.e("s_lshl_b32 s30, s30, 10")
        a.e("v_lshl_add_u32 v12, v2, 4, s30")
        a.e(f"v_min_u32 v12, {L('end')} - {L('qk_done')}, v12")
        a.e("global_load_dword v0, v12, s[28:29]")
    def b_w(part):
        def f():
            a.e("s_lshr_b32 s30, s2, 3")
            a.e("s_lshl_b32 s30, s30, 1")
            a.e("s_add_u32 s30, s30, s16")
            a.e("s_lshl_b32 s30, s30, 13")
            a.e(f"s_add_u32 s30, s30, {WS_W3 + 524288*part}")
            tl(12, "s30")
        return f
    foldl = "buffer_load_dword v13, off, s[92:95], 0 offset:12 sc1"
    def b_c3():
        a.e("s_waitcnt vmcnt(0)")
        poll(a, Seq(a), L, "qk_c3", [auxl], auxc, "aux", slp=16)
    def b_c4():
        a.e("s_waitcnt vmcnt(0)")
        poll(a, Seq(a), L, "qk_c4", [foldl], ["v_readfirstlane_b32 s28, v13", "s_cmp_ge_u32 s28, 4"], "aux", slp=16)
    def b_small():
        a.e("s_mov_b32 m0, s42")
        for c in range(8):
            a.e(f"buffer_load_dwordx2 v[{ST+2*c}:{ST+2*c+1}], v{ST+17}, s[12:15], s6 offen offset:{512*c} sc1")
        a.e("buffer_load_dwordx4 v3, s[12:15], s7 offen sc1 lds")
        a.e(f"buffer_load_dword v0, v{ST+18}, s[12:15], 0 offen sc1")
    def b_stat():
        a.e("s_waitcnt vmcnt(0)")
        for ct in range(1, 8):
            a.e(f"v_pk_add_f32 v[{ST}:{ST+1}], v[{ST}:{ST+1}], v[{ST+2*ct}:{ST+2*ct+1}]")
        a.e(f"v_mul_f32 v{ST}, {f2u(1/512)}, v{ST}")
        a.e(f"v_mul_f32 v{ST+1}, {f2u(1/512)}, v{ST+1}")
        a.e(f"v_fma_f32 v{ST+1}, -v{ST}, v{ST}, v{ST+1}")
        a.e(f"v_max_f32 v{ST+1}, 0, v{ST+1}")
        a.e(f"v_add_f32 v{ST+1}, {f2u(1e-5)}, v{ST+1}")
        a.e(f"v_rsq_f32 v{ST+1}, v{ST+1}")
        a.e(f"v_cmp_gt_u32 vcc, {T}, v{ST+16}")
        a.e(f"v_mul_f32 v{ST}, v{ST}, v{ST+1}")
        a.e(f"v_sub_f32 v{ST}, 0, v{ST}")
        a.e(f"v_cndmask_b32 v{ST+2}, 0, v{ST+1}, vcc")
        a.e(f"v_cndmask_b32 v{ST+3}, 0, v{ST}, vcc")
        a.e(f"ds_write_b64 v{ST+19}, v[{ST+2}:{ST+3}]")
    def b_x(r0):
        def f():
            a.e("s_lshl_b32 s30, s22, 1")
            a.e("s_add_u32 s30, s30, s16")
            a.e("s_lshl_b32 s30, s30, 14")
            a.e("s_add_u32 s30, s30, s27")
            a.e(f"s_add_u32 s30, s30, {r0*1024}")
            tl(32, "s30")
        return f
    tb_fns = B = dict(code=b_code, l3=lambda: a.e(auxl), c3=b_c3, small=b_small, stat=b_stat, x0=b_x(0), x8=b_x(8), l4=lambda: a.e(foldl), c4=b_c4, w1=b_w(1), w0=b_w(0))
    st(4); fs(0); ff(13); fp(0)
    if stamp == 7:
        a.e("s_lshl_b32 s26, s2, 1")
        a.e("s_add_u32 s26, s26, s16")
        a.e("s_lshl_b32 s26, s26, 8")
        a.e(f"s_add_u32 s26, s26, {0x3F00000}")
        a.e("v_lshlrev_b32 v241, 2, v2")
        a.e("buffer_store_dword v240, v241, s[12:15], s26 offen")
    q = Seq(a)
    group_reduce(LS, E, "v_add_f32")
    a.e(f"v_mov_b32 v{E+2}, v{NEGM}")
    a.e(f"v_mov_b32 v{E+3}, v{LS}")
    for qb in range(1, 4):
        a.e(f"v_cmp_eq_u32 vcc, {qb}, v5")
        a.e("s_nop 1")
        a.e(f"v_cndmask_b32 v{E+2}, v{E+2}, v{NEGM+4*qb}, vcc")
        a.e(f"v_cndmask_b32 v{E+3}, v{E+3}, v{LS+qb}, vcc")
    a.e(f"v_or_b32 v{E+3}, 0x80000000, v{E+3}")
    a.e("s_lshl_b32 s28, s16, 9")
    a.e("s_lshl_b32 s30, s31, 10")
    a.e("s_add_u32 s30, s30, s28")
    a.e(f"s_add_u32 s30, s30, {WS_MX}")
    a.e(f"s_add_u32 s28, s28, {LDS_ML}")
    a.e(f"v_lshlrev_b32 v{E+4}, 3, v2")
    a.e(f"v_add_u32 v{TMP}, s28, v{E+4}")
    q.l(f"ds_write_b64 v{TMP}, v[{E+2}:{E+3}]")
    a.e(f"v_add_u32 v{TMP}, {LDS_ML + 4}, v{E+4}")
    tb_fns["stat"]()
    q.all(vm=False)
    fs(1)
    a.e("s_barrier")
    fs(2)
    q.l(f"ds_read2st64_b32 v[{E}:{E+1}], v{TMP} offset0:0 offset1:2", "lsum")
    a.e("s_lshl_b32 s28, s16, 5")
    conv_addr(a, 16, "s28")
    q.wait("lsum")
    for x in guard(E): a.e(x)
    release(a, q, L, "rm", None, f"buffer_store_dwordx2 v[{E+2}:{E+3}], v{E+4}, s[12:15], s30 offen")
    cv = Conv(a, q, 16)
    cv.prep()
    fs(3)
    PF = opt.get("pf", 10); n = 0
    for j in range(20):
        if j in (0, 2, 4, 6, 8, 11, 14, 17): fp(1 + (0, 2, 4, 6, 8, 11, 14, 17).index(j))
        ex = []
        if j >= opt.get("qa", 6):
            for _ in range(3):
                if n < 4 * PF:
                    ex.append(lambda n=n: aload(a, q, n // 4, n % 4)); n += 1
        cv.row(j, ex)
    while n < 4 * PF:
        aload(a, q, n // 4, n % 4); n += 1
    fs(4)
    a.e(f"s_branch {L('tail')}")
    a.label(L("touch"))
    THR = 2 * int(opt.get("blocks", "2")[0]) + 2
    a.e(f"s_cmp_eq_u32 s40, {THR}")
    a.e(f"s_cbranch_scc1 {L('touchb')}")
    a.e(f"s_mov_b32 s40, {THR}")
    B["x0"](); B["x8"]()
    a.e(f"s_branch {L('touch_ret')}")
    a.label(L("touchb"))
    a.e("s_lshr_b32 s26, s17, 1")
    spec = opt.get("blocks", "2:l3 1:c3,small")
    blocks = {int(x.split(":")[0]): [B[y] for y in x.split(":")[1].split(",")] for x in spec.split()}
    for kx, fns in blocks.items():
        a.e(f"s_cmp_lg_u32 s26, {kx}")
        a.e(f"s_cbranch_scc1 {L('touch%d' % kx)}")
        for f in fns: f()
        a.e(f"s_branch {L('touch_ret')}")
        a.label(L("touch%d" % kx))
    a.e(f"s_branch {L('touch_ret')}")

    VB = [16, 80]; PR = [144, 160]
    VV = 8; VPR = 9; PH = opt.get('ph', 2)
    def oreg(db, qb):
        return (f"a[{4*qb}:{4*qb+3}]", None) if db == 0 else (f"v[{16*db+4*qb}:{16*db+4*qb+3}]", 16 * db + 4 * qb)
    def vread(par, db, kb):
        r = VB[par] + 4 * db + 2 * kb
        return f"ds_read_b64_tr_b16 a[{r}:{r+1}], v{VV if db < 8 else 11} offset:{32768*par + 16384*kb + 512*(db%8)}"
    def pvm(par, db, first=False):
        out = []
        for qb in range(4):
            d = oreg(db, qb)[0]; v = VB[par] + 4 * db; p = PR[par] + 4 * qb
            out.append(f"{M16} {d}, a[{v}:{v+3}], a[{p}:{p+3}], {'0' if first else d}")
        return out
    def pv_setup():
        a.e("s_sub_u32 s19, s16, 2")
        for x in tail_consts(): a.e(x)
        a.e("v_lshrrev_b32 v4, 5, v2")
        a.e("v_lshlrev_b32 v4, 8, v4")
        a.e("v_and_b32 v5, 2, v2")
        a.e("v_lshl_add_u32 v4, v5, 6, v4")
        a.e("v_and_b32 v5, 28, v2")
        a.e("v_lshl_add_u32 v4, v5, 2, v4")
        a.e("v_and_b32 v5, 1, v2")
        a.e("v_lshl_add_u32 v4, v5, 3, v4")
        a.e("s_lshl_b32 s29, s19, 13")
        a.e("s_lshl_b32 s28, s22, 12")
        a.e("s_add_u32 s28, s28, s29")
        a.e("v_add_u32 v11, s28, v4")
        a.e(f"v_xor_b32 v{VV}, 0x1000, v11")
        a.e("s_lshl_b32 s29, s19, 12")
        a.e("s_add_u32 s29, s29, s48")
        a.e("v_add_u32 v10, s29, v3")
        a.e("s_lshl_b32 s40, s31, 2")
        a.e("s_add_u32 s40, s40, s19")
        a.e("s_lshl_b32 s40, s40, 14")
        a.e(f"s_add_u32 s40, s40, {WS_GU + 32768}")
        a.e("s_lshl_b32 s28, s31, 16")
        a.e(f"s_add_u32 s28, s28, {WS_GU}")
        a.e("s_sub_u32 s28, s28, s10")
        a.e("s_add_u32 s98, s4, s28")
        a.e("s_addc_u32 s99, s5, 0")
        a.e("s_and_b32 s99, s99, 0xffff")
        a.e("s_add_u32 s100, s10, 65536")
        if opt.get("xr", 1) == 2:
            a.e("s_lshr_b32 s28, s2, 3")
            a.e("s_lshl_b32 s28, s28, 15")
            a.e(f"s_add_u32 s28, s28, {WS_W3}")
            a.e("s_sub_u32 s28, s28, s100")
            a.e("s_add_u32 s96, s4, s28")
            a.e("s_addc_u32 s97, s5, 0")
            a.e("s_and_b32 s97, s97, 0xffff")
            a.e("s_add_u32 s3, s100, 32768")
        else:
            a.e("s_lshl_b32 s28, s22, 15")
            a.e("s_add_u32 s28, s28, s27")
            a.e("s_sub_u32 s3, 4096000, s28")
            a.e("s_add_u32 s3, s3, s100")
            a.e("s_add_u32 s96, s32, s28")
            a.e("s_addc_u32 s97, s33, 0")
            a.e("s_sub_u32 s96, s96, s100")
            a.e("s_subb_u32 s97, s97, 0")
        a.e(f"s_mov_b32 s29, {LDS_P}")
        a.e(f"v_lshl_add_u32 v{VPR}, v2, 3, s29")
        a.e(f"v_add_u32 v1, {LDS_ML + 4 - LDS_P}, v{VPR}")
        for g in range(1, 4): a.e(f"v_add_u32 v{4+g}, {4096*g}, v3")
    def pv_zero():
        pass
    def emit_pv_again():
        a.label(L("pv"))
        pv_setup()
        a.e("s_lshl_b32 s18, s19, 14")
        a.e("s_add_u32 s18, s18, 65536")
        dma_tile()
        pv_zero()
        a.e("s_barrier")
        a.e("s_waitcnt vmcnt(16)")
        a.e("s_barrier")
        dma_tile()
        for db in range(16):
            for kb in range(2):
                a.e(vread(0, db, kb))
            if db % 4 == 3: a.e("s_waitcnt lgkmcnt(4)")
        a.e(f"s_waitcnt vmcnt({nP}) lgkmcnt(0)")
        a.e(f"s_branch {L('pv_go')}")
    def taps():
        a.e("v_lshrrev_b32 v12, 5, v2")
        a.e("v_lshl_add_u32 v12, v12, 9, v3")
        a.e("s_lshl_b32 s28, s22, 9")
        out = []
        for i in range(3):
            a.e(f"s_mov_b32 m0, {LDS_TAP + 1024*i}")
            a.e(f"s_add_u32 s29, s28, {2048*i}")
            qf.v("buffer_load_dwordx4 v12, s[44:47], s29 offen lds")
        for x in NEAR: a.e(x)
    def setup1():
        pv_setup()
        a.e(f"s_mov_b32 s101, {f2u(-BIG)}")
    pv_part(setup1, [vread(0, db, kb) for db in range(16) for kb in range(2)], taps)
    a.label(L("pv_go"))
    a.e("s_lshl_b32 s18, s19, 14")
    a.e("s_add_u32 s18, s18, 131072")
    a.e("s_sub_u32 s17, s25, 1")
    a.e("s_barrier")

    pvq = []
    MR = 12; MO = 4; AL = 88; TT = 96; RX = 16
    mll = [f"buffer_load_dwordx2 v[{MR+2*w}:{MR+2*w+1}], v9, s[12:15], s42 offen offset:{512*w} {opt.get('pm', 'sc1')}" for w in range(2)]
    ol = f"buffer_load_dword v11, off, s[12:15], s57 offset:24 {opt.get('pm', 'sc1')}"
    def pv_interval(par, last=False, lo=0, hi=None, first=False):
        mf = [m for db in range(16 - PH, 16) for m in pvm(par, db)]
        if first:
            z = [f"v_pk_mul_f32 v[{i}:{i+1}], 0, 0" for i in range(256 - 16 * PH, 256, 2)]
            mf = [z[2 * i] + "\n    " + z[2 * i + 1] for i in range(4 * PH)]
        for db in range(16 if last else 16 - PH):
            mf += pvm(par ^ 1, db, first)
        fill = {}
        for qb in range(4):
            p = PR[par ^ 1] + 4 * qb
            fill.setdefault(opt.get('pg', [0, 0, 1, 1])[qb], []).append(f"ds_read2st64_b64 a[{p}:{p+3}], v{VPR} offset0:{8*(par^1)+qb} offset1:{8*(par^1)+4+qb}")
        rg = opt.get("rg", [8 + 3 * (i // 2) + (i % 2) for i in range(32)])
        fill.setdefault(4 * PH - 1, []).append(f"s_waitcnt lgkmcnt({0 if last else sum(1 for g in rg if g < 4 * PH - 1)})")
        if last:
            fs(0); fp(0)
            q = Seq(a)
            ops = []
            for sp in range(4):
                for qb in range(4):
                    o = []
                    if sp == 0:
                        o += [f"v_accvgpr_read_b32 v{4+j}, a{4*qb+j}" for j in range(4)]
                        lo = 4
                    else:
                        lo = oreg(2 * sp, qb)[1]
                    hi = oreg(2 * sp + 1, qb)[1]
                    o += [f"v_cvt_pk_bf16_f32 v{hi+3}, v{hi+2}, v{hi+3}", f"v_cvt_pk_bf16_f32 v{hi+2}, v{hi}, v{hi+1}",
                          f"v_cvt_pk_bf16_f32 v{hi}, v{lo}, v{lo+1}", f"v_cvt_pk_bf16_f32 v{hi+1}, v{lo+2}, v{lo+3}"]
                    if qb == 0: o.append(f"s_add_u32 s41, s40, {4096*sp}")
                    o.append(f"buffer_store_dwordx4 v[{hi}:{hi+3}], v3, s[44:47], s41 offen offset:{1024*qb} {opt.get('sm_', 'nt')}")
                    ops += [(4 * PH + 8 * sp + 4 + qb + 6, x) for x in o]
            late = [lambda x=x: a.e(x) for x in ["v_lshlrev_b32 v9, 3, v2", "s_xor_b32 s26, s31, 1", "s_lshl_b32 s26, s26, 10", f"s_add_u32 s42, s26, {WS_MX}"]]
            late += [lambda w=w: q.v(mll[w], "ML") for w in range(2)]
            late += [lambda: a.e("v_subrev_u32 v8, 4, v1"),
                     lambda: q.l(f"ds_read2st64_b64 v[{MO}:{MO+3}], v8 offset0:0 offset1:1", "MLo")]
            late += [lambda x=x: a.e(x) for x in ["v_and_b32 v1, 15, v2", "v_lshlrev_b32 v1, 2, v1", "s_xor_b32 s40, s40, 0x10000", "s_mov_b32 s43, 0xffff0000", "v_mov_b32 v0, 1"]]
            na = 0
            for i, m in enumerate(mf):
                a.e(m)
                for f in fill.get(i, []): a.e(f)
                if i == 12:
                    fs(1)
                    a.e("s_barrier")
                    fs(2)
                    q.l("ds_read2st64_b32 v[8:9], v1 offset0:0 offset1:2", "lsum")
                if i == 17:
                    q.wait("lsum")
                    for x in guard(8): a.e(x)
                if i > 12:
                    n = 0
                    while ops and ops[0][0] <= i and n < 3:
                        x = ops.pop(0)[1]; n += 1
                        if x.startswith("buffer"): q.v(x, "Ost")
                        else: a.e(x)
                    if n and not ops: fp(1)
                    if n == 0:
                        if not ops and late: late.pop(0)()
                        else: a.e("s_nop 0")
            assert not ops
            while late: late.pop(0)()
            fs(3)
            pvq.append((q, na))
            return
        F_ = lambda g, x: fill.setdefault(g, []).append(x)
        G = opt["pvg"]
        if par == 0:
            F_(G[0], f"v_xor_b32 v{VV}, 0x10000, v{VV}"); F_(G[0], "v_xor_b32 v11, 0x10000, v11")
        for i in range(32): F_(rg[i], vread(par, i // 2, i % 2))
        dg = opt["dg"]
        for g in range(4):
            F_(opt["mg"][g], "s_and_b32 m0, s18, 0x1ffff" if g == 0 else "s_add_u32 m0, m0, 4096")
            for j in range(4):
                F_(dg[4 * g + j], f"buffer_load_dwordx4 v{3 if g == 0 else 4 + g}, s[8:11], s18 offen offset:{1024*j} sc1 lds")
        F_(opt["mg"][4], "s_add_u32 s18, s18, 32768")
        sw = ["s_cmp_eq_u32 s17, 3", "s_cselect_b64 s[8:9], s[98:99], s[8:9]", "s_cselect_b32 s10, s100, s10",
              "s_cmp_eq_u32 s17, 1", "s_cselect_b64 s[8:9], s[96:97], s[8:9]", "s_cselect_b32 s10, s3, s10"]
        for n in (0, 3):
            gs = G[2 + n:5 + n]
            assert (gs[2] < min(dg[0], G[1])) or (gs[0] > max(dg[-1], G[1]))
            assert not any(gs[0] < m <= gs[2] for m in opt["mg"] + [G[1]])
            for g, x in zip(gs, sw[n:n + 3]): F_(g, x)
        F_(G[1], "s_sub_u32 s17, s17, 1")
        F_(61, "s_cmp_eq_u32 s17, 0")
        if not first: F_(62, f"s_cbranch_scc1 {L('pv_exit%d' % par)}")
        fill.setdefault(63, []).extend([f"s_waitcnt vmcnt({nP}) lgkmcnt(0)", "s_barrier"])
        emit_interval(a, mf, fill, lo, hi)

    st(3); ff(11)
    PB = opt.get("pbe", 0)
    if PB:
        pv_interval(1, first=True)
        a.e(f"s_branch {L('pv_in')}")
        a(".p2align 6")
        a.label(L("pv_loop"))
        pv_interval(0, False, PB)
        if not opt.get("xe"): a.e(f"s_cbranch_scc1 {L('pv_last1')}")
        pv_interval(1)
        if not opt.get("xe"): a.e(f"s_cbranch_scc1 {L('pv_last0')}")
        a.label(L("pv_in"))
        pv_interval(0, False, 0, PB)
        a.e(f"s_branch {L('pv_loop')}")
    else:
        a(".p2align 6")
        a.label(L("pv_loop"))
        pv_interval(1)
        a.e(f"s_cbranch_scc1 {L('pv_last0')}")
        pv_interval(0)
        a.e(f"s_cbranch_scc0 {L('pv_loop')}")
    if opt.get("xe"):
        a.label(L("pv_exit0"))
        pv_interval(0, False, 63)
    a.label(L("pv_last1"))
    pv_interval(1, True)
    a.e(f"s_branch {L('pv_stage')}")
    if opt.get("xe"):
        a.label(L("pv_exit1"))
        pv_interval(1, False, 63)
    a.label(L("pv_last0"))
    pv_interval(0, True)
    a.label(L("pv_stage"))
    st(4); ff(13)
    q, n = pvq[0]
    assert pvq[1][0].vm == q.vm and pvq[1][0].lg == q.lg
    fp(2)
    release(a, q, L, "ro", "Ost", "buffer_store_dword v0, off, s[12:15], s56 offset:24",
            [x for sp in range(4) for x in [f"s_xor_b32 s41, s40, {0x10000 + 4096*sp}"] +
             [f"buffer_store_dwordx4 {oreg(2*sp+1, qb)[0]}, v3, s[12:15], s41 offen offset:{1024*qb} sc1" for qb in range(4)]])
    fp(3)
    poll(a, q, L, "ml", mll, [f"v_and_b32 v8, v{MR+1}, v{MR+3}", "v_cmp_gt_i32 vcc, 0, v8", "s_nop 1", "s_cmp_eq_u64 vcc, -1"], "ML", slp=1)
    q.wait("MLo")
    for x in [f"v_add_f32 v{MR+1}, v{MR+1}, v{MR+3}", f"v_add_f32 v{MO+1}, v{MO+1}, v{MO+3}",
              f"v_min_f32 v8, v{MR}, v{MO}", f"v_sub_f32 v{MR}, v8, v{MR}", f"v_sub_f32 v{MO}, v8, v{MO}",
              f"v_exp_f32 v{MR}, v{MR}", f"v_exp_f32 v{MO}, v{MO}", f"v_mul_f32 v{MR+1}, v{MR+1}, v{MR}",
              f"v_fmac_f32 v{MR+1}, v{MO+1}, v{MO}", f"v_mul_f32 v{MR+1}, {f2u(XSC)}, v{MR+1}", f"v_rcp_f32 v{MR+1}, v{MR+1}", "s_nop 0",
              f"v_mul_f32 v{MO}, v{MO}, -v{MR+1}", f"v_mul_f32 v{MR}, v{MR}, -v{MR+1}"]: a.e(x)
    for tb in range(4):
        q.l(f"ds_bpermute_b32 v{AL+2*tb}, v1, v{MO} offset:{64*tb}", "AL")
        q.l(f"ds_bpermute_b32 v{AL+2*tb+1}, v1, v{MR} offset:{64*tb}", "AL")
    q.wait("AL")
    for db in range(8, 16):
        for qb in range(4):
            r = oreg(db, qb)[1]
            for j in (0, 2):
                a.e(f"v_pk_mul_f32 v[{r+j}:{r+j+1}], v[{r+j}:{r+j+1}], v[{AL+2*qb}:{AL+2*qb+1}] op_sel_hi:[1,0]")
        if db == opt.get("od", 12): q.v(ol, "of")
        for _ in range(opt.get("an", 2)):
            if n < 4 * PF and db < opt.get("od", 12):
                aload(a, q, n // 4, n % 4); n += 1
    while n < opt.get("pa", 0):
        aload(a, q, n // 4, n % 4); n += 1
    poll(a, q, L, "o", [ol], ["v_readfirstlane_b32 s26, v11", "s_cmp_eq_u32 s26, 1"], "of", slp=1)
    fp(4)
    for f in range(16):
        if f % 4 == 0: a.e(f"s_add_u32 s41, s40, {1024*f}")
        q.v(f"buffer_load_dwordx4 v[{RX+4*f}:{RX+4*f+3}], v3, s[12:15], s41 offen offset:{1024*(f%4)} {opt.get('lm', 'sc1')}", f"O{f}")
    fp(5)
    fp(6)
    for f in range(16):
        sp, qb = f // 4, f % 4
        q.wait(f"O{f}")
        if f in (0, 8): fp(7 + f // 8)
        for j in range(4):
            a.e(f"v_lshlrev_b32 v{TT+2*j}, 16, v{RX+4*f+j}")
            a.e(f"v_and_b32 v{TT+2*j+1}, s43, v{RX+4*f+j}")
        for j in range(4):
            r = oreg(8 + 2 * sp + j // 2, qb)[1] + 2 * (j % 2)
            a.e(f"v_pk_fma_f32 v[{TT+2*j}:{TT+2*j+1}], v[{TT+2*j}:{TT+2*j+1}], v[{AL+2*qb}:{AL+2*qb+1}], v[{r}:{r+1}] op_sel:[0,1,0] op_sel_hi:[1,1,1]")
        for j in range(4):
            a.e(f"v_cvt_pk_bf16_f32 v{RX+4*f+j}, v{TT+2*j}, v{TT+2*j+1}")
        q.l(f"ds_write_b128 v10, v[{RX+4*f}:{RX+4*f+3}] offset:{8192*qb + 1024*sp}")
        for _ in range(2):
            if n < 4 * PF:
                aload(a, q, n // 4, n % 4); n += 1
    while n < 4 * PF:
        aload(a, q, n // 4, n % 4); n += 1
    fs(4)
    a.label(L("tail"))
    ff(14); fp(9)
    gen_tail(a, L, st, fs, opt)
    a.label(L("fin"))
    if stamp == 1:
        a.e("s_waitcnt vmcnt(0)")
        st(7)
        emit_stamps(a, 8, nw=8, off=WS_STAMP + 0x200000)
    if stamp == 5:
        a.e("s_waitcnt vmcnt(0)")
        st(7)
        a.e("s_cmp_lg_u32 s16, 0")
        a.e(f"s_cbranch_scc1 {L('end')}")
        a.e("s_mov_b64 exec, 1")
        a.e("s_cmp_lg_u32 s2, 0")
        a.e(f"s_cbranch_scc1 {L('dbg2')}")
        for k in range(1, 8):
            a.e(f"s_sub_u32 s26, s{62+4*k}, s62")
            a.e("v_mov_b32 v8, s26")
            a.e(f"buffer_store_dword v8, off, s[92:95], 0 offset:{8+4*k}")
        a.e("s_sub_u32 s26, s76, s72")
        a.e("v_mov_b32 v8, s26")
        a.e("buffer_store_dword v8, off, s[92:95], 0 offset:40")
        a.label(L("dbg2"))
        a.e("s_cmp_lg_u32 s2, 255")
        a.e(f"s_cbranch_scc1 {L('end')}")
        for k in range(1, 6):
            a.e(f"s_sub_u32 s26, s{62+4*k}, s62")
            a.e("v_mov_b32 v8, s26")
            a.e(f"buffer_store_dword v8, off, s[92:95], 0 offset:{40+4*k}")
    if stamp in (2, 3, 4, 6):
        for k in range(10, 16): fp(k)
        a.e("s_waitcnt vmcnt(0)")
        fs(15)
        ff(15)
        emit_fine(a, off=WS_STAMP + 0x300000)
    a.label(L("end"))
    a.e("s_endpgm")
    a.label(L("redo"))
    a.e("s_waitcnt vmcnt(0) lgkmcnt(0)")
    a.e("s_mov_b32 s101, 0")
    a.e(f"s_mul_i32 s28, s22, {32768 * N0}")
    a.e("s_add_u32 s28, s28, s24")
    a.e("s_lshl_b32 s26, s25, 15")
    srd_off(a, 8, 4, "s28", "s26")
    a.e("s_lshl_b32 s19, s16, 13")
    qk_setup()
    a.e("s_mov_b32 s17, s25")
    def redo_dma(slot):
        for i in range(8):
            if i % 4 == 0:
                a.e(f"s_add_u32 m0, s19, {32768*slot + 1024*i}")
                a.e(f"s_add_u32 s29, s18, {1024*i}")
            a.e(f"buffer_load_dwordx4 v3, s[8:11], s29 offen offset:{1024*(i%4)} sc1 lds")
    a.label(L("redo_loop"))
    a.e("s_sub_u32 s17, s17, 1")
    a.e("s_lshl_b32 s18, s17, 15")
    a.e("s_add_u32 s18, s18, s19")
    a.e("s_barrier")
    redo_dma(0)
    a.e("s_waitcnt vmcnt(0)")
    a.e("s_barrier")
    a.e("s_cmp_ge_u32 s16, 2")
    a.e(f"s_cbranch_scc1 {L('redo_next')}")
    for n in range(16):
        a.e(kread(0, n, 0))
        if n == 11: a.e("s_waitcnt lgkmcnt(4)")
    a.e("s_waitcnt lgkmcnt(0)")
    for qb in range(4):
        for m in chain(0, qb, "0"): a.e(m)
    a.e("s_nop 7")
    for qb in range(4):
        d = S + 4 * qb
        a.e(f"v_max3_f32 v{MX0+qb}, v{MX0+qb}, v{d}, v{d+1}")
        a.e(f"v_max3_f32 v{MX0+qb}, v{MX0+qb}, v{d+2}, v{d+3}")
    a.label(L("redo_next"))
    a.e("s_cmp_lg_u32 s17, 0")
    a.e(f"s_cbranch_scc1 {L('redo_loop')}")
    a.e("s_add_u32 s18, s19, 32768")
    redo_dma(1)
    a.e("s_mov_b32 s17, s25")
    a.e("s_cmp_ge_u32 s16, 2")
    a.e(f"s_cbranch_scc1 {L('pv')}")
    a.e(f"s_branch {L('qk_again')}")
    emit_pv_again()
    for f in OOL: f()
    emit_aux()
    kernel_desc(a, name, 512, 256)
    return f"; @launch grid=(256,1,1) block=(256,1,1) lds={LDS_ATT}"
```

```python
import sys, math
sys.path.insert(0, "gen")
from asmlib import *
from layout import *

class Conv:
    def __init__(self, a, q, NR):
        self.a, self.q, self.NR = a, q, NR
        self.W = 16
        self.GN = 56
        self.AC = 96
        self.UF = 104
        self.GR = 112
        self.UR = 128
        self.SR = 144
        self.ZP = 152
        self.LA = 3

    def fetch(self, j):
        q, NR = self.q, self.NR
        if j >= NR + 4: return
        va, off = ("v5", j) if j < 2 else ("v6", j - NR - 2) if j >= NR + 2 else ("v4", j - 2)
        r = self.GR + 4 * (j % 4)
        q.l(f"ds_read_b128 v[{r}:{r+3}], {va} offset:{512*off}", f"cg{j}")
        r = self.SR + 2 * (j % 4)
        q.l(f"ds_read_b64 v[{r}:{r+1}], v9 offset:{8*j}", f"cg{j}")
        if j >= 4:
            r = self.UR + 4 * (j % 4)
            q.l(f"ds_read_b128 v[{r}:{r+3}], v7 offset:{512*(j-4)}", f"cg{j}")

    def prep(self):
        a, q, W, GN = self.a, self.q, self.W, self.GN
        for i in range(5):
            q.l(f"ds_read_b128 v[{GN+4*i}:{GN+4*i+3}], v10 offset:{512*i}", f"ct{i}")
        for j in range(self.LA): self.fetch(j)
        a.e("s_mov_b32 s43, 0xffff0000")
        for i in range(5):
            q.wait(f"ct{i}")
            for j in range(4):
                a.e(f"v_lshlrev_b32 v{W+8*i+2*j}, 16, v{GN+4*i+j}")
                a.e(f"v_and_b32 v{W+8*i+2*j+1}, s43, v{GN+4*i+j}")

    def row(self, j, extra=()):
        a, q = self.a, self.q
        AC, GN, W, UF = self.AC, self.GN, self.W, self.UF
        gn = GN + 8 * (j % 5); gr = self.GR + 4 * (j % 4); ur = self.UR + 4 * (j % 4); sr = self.SR + 2 * (j % 4)
        P = lambda r: f"v[{r}:{r+1}]"
        unp = lambda d, r: [x for k in range(4) for x in (f"v_lshlrev_b32 v{d+2*k}, 16, v{r+k}", f"v_and_b32 v{d+2*k+1}, s43, v{r+k}")]
        ug, uu = unp(gn, gr), unp(UF, ur)
        nrm = [f"v_pk_fma_f32 {P(gn+2*k)}, {P(gn+2*k)}, {P(sr)}, {P(sr)} op_sel:[0,0,1] op_sel_hi:[1,0,1]" for k in range(4)]
        q.wait(f"cg{j}")
        if j < 4:
            self.fetch(j + self.LA)
            for x in ug + nrm: a.e(x)
            for f in extra: f()
            return
        t = j - 4
        def tap(i):
            gi = GN + 8 * ((t + i) % 5)
            return [f"v_pk_mul_f32 {P(AC+2*k)}, {P(gi+2*k)}, {P(W+2*k)}" if i == 0 else
                    f"v_pk_fma_f32 {P(AC+2*k)}, {P(gi+2*k)}, {P(W+8*i+2*k)}, {P(AC+2*k)}" for k in range(4)]
        zp = self.ZP + 4 * (t % 2)
        mul = [f"v_pk_mul_f32 {P(AC+2*k)}, {P(AC+2*k)}, {P(UF+2*k)}" for k in range(4)]
        cvt = [f"v_cvt_pk_bf16_f32 v{zp+k}, v{AC+2*k}, v{AC+2*k+1}" for k in range(4)]
        old = tap(0) + tap(1) + tap(2) + tap(3)
        extra = list(extra)
        for n in range(8):
            a.e(ug[n]); a.e(old[2 * n]); a.e(old[2 * n + 1])
            if n == 1: self.fetch(j + self.LA)
            if n in (3, 5, 7) and extra: extra.pop(0)()
        for f in extra: f()
        t4 = tap(4)
        for x in [nrm[0], uu[0], nrm[1], nrm[2], uu[1], nrm[3], t4[0], uu[2], t4[1], t4[2], uu[3], t4[3], mul[0], uu[4], mul[1], cvt[0],
                  uu[5], cvt[1], mul[2], uu[6], cvt[2], uu[7], f"v_xor_b32 v11, {32*(t & 7)}, v8", mul[3], cvt[3]]: a.e(x)
        q.l(f"ds_write_b128 v11, v[{zp}:{zp+3}] offset:{512*t}", "Zw")
```

```python
import sys, math
sys.path.insert(0, "gen")
from asmlib import *
from layout import *

RS = 1056
LDS_XS = 98304
LDS_MS = 163840 - 64 * RS
LDS_SC = 81920
LDS_CNT = LDS_SC + 6912
LDS_SC2 = 147456
GC1 = 2 * math.sqrt(2 / math.pi) * math.log2(math.e)
XSC = (GC1 * 0.044715) ** (1.0 / 3)
LDS_MX2 = LDS_SC + 4608
RING = 5
SS = 144
SPIN = 40000

def poll(a, q, L, name, load, cond, tag, slp=2):
    q.wait(tag)
    lab, done = L(name + "_spin"), L(name + "_ok")
    for x in cond: a.e(x)
    a.e(f"s_cbranch_scc0 {L(name + '_retry')}")
    a.label(done)
    def retry():
        a.label(L(name + "_retry"))
        a.e(f"s_mov_b32 s30, {SPIN}")
        a.label(lab)
        a.e(f"s_sleep {slp}")
        for x in load: a.e(x)
        a.e("s_waitcnt vmcnt(0)")
        for x in cond: a.e(x)
        a.e(f"s_cbranch_scc1 {done}")
        a.e("s_sub_u32 s30, s30, 1")
        a.e(f"s_cbranch_scc0 {lab}")
        a.e(f"s_branch {done}")
    OOL.append(retry)

OOL = []

def release(a, q, L, name, tag, store, again=()):
    if tag: q.wait(tag)
    a.e("s_cmp_lg_u32 s21, 0")
    a.e(f"s_cbranch_scc1 {L(name + '_far')}")
    q.v(store)
    a.label(L(name + "_back"))
    def far():
        a.label(L(name + "_far"))
        if again:
            for x in again: a.e(x)
            a.e("s_waitcnt vmcnt(0)")
        a.e(store + " sc1")
        a.e(f"s_branch {L(name + '_back')}")
    OOL.append(far)

def signal(a, L, name, wave, off, shard=True):
    a.e(f"s_cmp_lg_u32 s16, {wave}")
    a.e(f"s_cbranch_scc1 {L(name)}")
    a.e("v_mov_b32 v14, 1")
    a.e(f"s_and_b32 s26, s2, {3 if shard else 0}")
    a.e("s_lshl_b32 s26, s26, 6")
    a.e("s_mov_b64 exec, 1")
    a.e(f"buffer_atomic_add v14, off, s[92:95], s26 offset:{off}")
    a.e("s_mov_b64 exec, -1")
    a.label(L(name))

def cnt_load(off, va="v13"):
    return f"buffer_load_dword v14, {va}, s[92:95], 0 offen offset:{off} sc1"
CNT_OK = ["v_cmp_le_u32 vcc, 64, v14", "s_nop 1", "s_cmp_eq_u64 vcc, -1"]

def m_issue(a, q):
    a.e("s_and_b32 s17, s2, 6")
    a.e("s_lshl_b32 s17, s17, 5")
    a.e("s_and_b32 s18, s2, 24")
    a.e("s_lshl_b32 s18, s18, 1")
    a.e("s_add_u32 s17, s17, s18")
    a.e("s_and_b32 s18, s2, 1")
    a.e("s_lshl_b32 s18, s18, 3")
    a.e("s_add_u32 s17, s17, s18")
    a.e("s_lshr_b32 s18, s2, 5")
    a.e("s_add_u32 s100, s17, s18")
    a.e("s_lshr_b32 s17, s100, 4")
    a.e("s_lshl_b32 s17, s17, 15")
    a.e("s_and_b32 s18, s100, 15")
    a.e("s_lshl_b32 s18, s18, 15")
    a.e("s_lshl_b32 s19, s16, 13")
    a.e("s_add_u32 s17, s17, s19")
    a.e("s_add_u32 s18, s18, s19")
    a.e(f"s_mul_i32 s19, s16, {4*RS}")
    out = []
    for m, (srd, so) in enumerate(((40, "s17"), (8, "s18"))):
        for ee in range(2):
            for j in range(4):
                def f(m=m, srd=srd, so=so, ee=ee, j=j):
                    a.e(f"s_add_u32 m0, s19, {LDS_MS + (32*m + 16*ee + j)*RS - 1024*j}")
                    a.e(f"s_add_u32 {so}, {so}, 4096" if (ee == 1 and j == 0) else "s_nop 0")
                    q.v(f"buffer_load_dwordx4 v3, s[{srd}:{srd+3}], {so} offen offset:{1024*j} lds", "Mst")
                out.append(f)
    return out

def m_addr(a):
    a.e("v_and_b32 v4, 15, v2")
    a.e("v_lshrrev_b32 v5, 4, v2")
    a.e(f"v_mul_u32_u24 v6, {RS}, v4")
    a.e("v_lshl_add_u32 v6, v5, 4, v6")
    a.e(f"v_add_u32 v6, {LDS_MS}, v6")
    a.e("s_and_b32 s26, s16, 1")
    a.e("s_lshr_b32 s28, s16, 1")
    a.e(f"s_mul_i32 s29, s26, {16*RS}")
    a.e("v_add_u32 v7, s29, v6")
    a.e(f"s_mul_i32 s29, s28, {16*RS}")
    a.e("v_add_u32 v6, s29, v6")
    a.e("s_bfe_u32 s29, s100, 0x30001")
    a.e("s_lshl_b32 s29, s29, 16")
    a.e("s_lshr_b32 s30, s100, 4")
    a.e("s_lshl_b32 s30, s30, 12")
    a.e("s_add_u32 s29, s29, s30")
    a.e("s_and_b32 s30, s100, 1")
    a.e("s_lshl_b32 s30, s30, 1")
    a.e("s_add_u32 s30, s30, s28")
    a.e("s_lshl_b32 s30, s30, 10")
    a.e("s_add_u32 s29, s29, s30")
    a.e("s_lshl_b32 s30, s26, 9")
    a.e("s_add_u32 s29, s29, s30")
    a.e(f"s_add_u32 s30, s29, {WS_MI}")
    a.e("s_lshl_b32 s29, s28, 10")
    a.e("s_lshl_b32 s26, s26, 3")
    a.e("s_add_u32 s29, s29, s26")
    a.e(f"s_add_u32 s29, s29, {LDS_MX2}")
    a.e("v_add_u32 v112, s29, v3")
    a.e("s_lshl_b32 s29, s16, 9")
    a.e(f"s_add_u32 s29, s29, {LDS_MX2}")
    a.e("v_and_b32 v114, 0x1ff, v3")
    a.e("v_add_u32 v113, s29, v114")

def m_tile(a, q, fz=lambda k: None, fill=None):
    q.wait("Mst")
    fz(1)
    a.e("s_barrier")
    fz(2)
    def rd(t):
        q.l(f"ds_read_b128 a[{8*t}:{8*t+3}], v7 offset:{64*t}", f"m{t}")
        q.l(f"ds_read_b128 a[{8*t+4}:{8*t+7}], v6 offset:{32*RS + 64*t}", f"m{t}")
    for t in range(7): rd(t)
    if fill: fill.pop(0)()
    for t in range(16):
        q.e(f"{M16} v[8:11], a[{8*t}:{8*t+3}], a[{8*t+4}:{8*t+7}], {'0' if t == 0 else 'v[8:11]'}", need=(f"m{t}",))
        if t + 7 < 16: rd(t + 7)
    fz(3)
    if fill: fill.pop(0)()
    else: a.e("s_nop 7")
    sc = f2u(512 ** -0.5 * math.log2(math.e) / XSC ** 2)
    for i in range(4): a.e(f"v_mul_f32 v{8+i}, {sc}, v{8+i}")
    a.e("v_cvt_pk_bf16_f32 v8, v8, v9")
    a.e("v_cvt_pk_bf16_f32 v9, v10, v11")
    q.l("ds_write_b64 v112, v[8:9]", "mw")
    while fill: fill.pop(0)()
    q.wait("mw")
    a.e("s_barrier")
    q.l("ds_read_b128 v[8:11], v113", "mr")
    def fin():
        q.v("buffer_store_dwordx4 v[8:11], v114, s[12:15], s30 offen sc1", "St", need=("mr",))
    return fin

def touches(a, q, L, opt):
    a.e("v_lshlrev_b32 v7, 7, v2")
    a.e("s_lshr_b32 s26, s2, 3")
    a.e("s_lshl_b32 s26, s26, 2")
    a.e("s_add_u32 s26, s26, s16")
    a.e("s_getpc_b64 s[28:29]")
    a.label(L("pc1"))
    a.e("s_mul_i32 s30, s26, 640")
    a.e("v_and_b32 v12, 7, v2")
    a.e("v_min_u32 v12, 4, v12")
    a.e("v_lshl_add_u32 v12, v12, 7, s30")
    a.e(f"v_min_u32 v12, {L('end')} - {L('pc1')}, v12")
    q.v("global_load_dword v0, v12, s[28:29]")
    if opt.get("tg"):
        a.e("s_lshl_b32 s26, s2, 12")
        a.e("s_lshr_b32 s28, s16, 1")
        a.e("s_lshl_b32 s28, s28, 11")
        a.e("s_add_u32 s26, s26, s28")
        a.e("s_and_b32 s28, s16, 1")
        a.e("s_lshl_b32 s28, s28, 9")
        a.e("s_add_u32 s26, s26, s28")
        a.e("v_lshlrev_b32 v14, 3, v2")
        q.v("buffer_load_dword v0, v14, s[96:99], s26 offen offset:1024")
    if opt.get("tw"):
        a.e("s_lshl_b32 s26, s26, 13")
        q.v("buffer_load_dword v0, v7, s[96:99], s26 offen")

def touch_aux(a, q, mode=1):
    if mode == 2:
        a.e("s_lshl_b32 s28, s2, 2")
        a.e("s_add_u32 s28, s28, s16")
        a.e("s_lshl_b32 s28, s28, 10")
        a.e("v_add_u32 v14, s28, v3")
        q.v("global_load_dword v0, v14, s[58:59]")
        return
    for w in range(1, 4):
        a.e(f"s_cmp_eq_u32 s16, {w}")
        a.e(f"s_cselect_b32 s52, s{52+2*w}, s52")
        a.e(f"s_cselect_b32 s53, s{53+2*w}, s53")
    a.e("s_lshl_b32 s28, s2, 6")
    a.e("v_add_lshl_u32 v14, s28, v2, 5")
    a.e("v_lshlrev_b32 v13, 1, v14")
    a.e("s_cmp_eq_u32 s16, 3")
    a.e("s_cselect_b64 vcc, -1, 0")
    a.e("v_cndmask_b32 v14, v14, v13, vcc")
    q.v("global_load_dword v0, v14, s[52:53]")

def gen_front(a, q, L, st, fs, mi, clear, opt):
    X = 16; F = 128
    if opt.get("skip"):
        v0 = q.v
        def v1(text, tag="_", need=()):
            if text.startswith("buffer_store_dwordx4") and tag[0] in opt["skip"]: return
            v0(text, tag, need)
        q.v = v1
    a.e("v_lshrrev_b32 v12, 3, v2")
    a.e("v_and_b32 v13, 7, v2")
    a.e("v_and_b32 v14, 2, v12")
    a.e("v_xor_b32 v14, v13, v14")
    a.e("v_lshlrev_b32 v14, 4, v14")
    WV = 80
    a.e(f"v_lshl_add_u32 v{WV}, v12, 11, v14")
    a.e(f"v_xor_b32 v{WV+1}, 64, v{WV}")
    a.e(f"v_add_u32 v{WV+1}, {16384-1024}, v{WV+1}")
    a.e(f"v_add_u32 v{WV+2}, {2*(16384-1024)}, v{WV}")
    a.e(f"v_add_u32 v{WV+3}, {2*(16384-1024)}, v{WV+1}")
    a.e("s_lshl_b32 s26, s22, 2")
    a.e("s_add_u32 s26, s26, s16")
    a.e("s_lshl_b32 s28, s22, 1")
    a.e("s_add_u32 s28, s28, s16")
    a.e(f"s_lshl_b32 s29, s23, {opt.get('rt', 0)}")
    a.e("s_add_u32 s28, s28, s29")
    a.e("s_and_b32 s28, s28, 3")
    a.e("s_lshl_b32 s3, s26, 7")
    a.e("s_lshl_b32 s29, s28, 18")
    a.e("s_add_u32 s3, s3, s29")
    a.e(f"s_mul_i32 s6, s16, {RING*4096}")
    a.e("v_and_b32 v4, 15, v2")
    a.e("v_lshrrev_b32 v5, 4, v2")
    def wdma(k, j):
        if j == 0:
            a.e(f"s_add_u32 m0, s6, {4096*(k % RING)}")
            a.e(f"s_xor_b32 s7, {'s3' if k < 16 else 's20'}, {65536*(k % 16) + (1024 if k < 16 else 0 if k < 32 else 128)}")
        q.v(f"buffer_load_dwordx4 v{WV+j}, s[96:99], s7 offen offset:{1024*j} lds", f"W{k}")
    ringf = [lambda k=k, j=j: wdma(k, j) for k in range(RING) for j in range(4)]
    EM = opt.get("early", 0)
    NE = opt.get("ne", 12)
    early = list(mi) + [clear] + ringf[:NE]
    if opt.get("rf"): early = ringf[:opt["rf"]] + list(mi) + [clear] + ringf[opt["rf"]:NE]
    late = ringf[NE:]
    if opt.get("te") is not None: early.insert(opt["te"], lambda: (touch_u(), touch_aux(a, q)))
    SW, SR, SG, QW = 84, 85, 86, 87
    a.e("s_and_b32 s26, s16, 1")
    a.e("s_lshl_b32 s26, s26, 13")
    a.e("s_cmp_lt_u32 s16, 2")
    a.e(f"s_cselect_b32 s28, {16*SS}, 0")
    a.e("s_add_u32 s26, s26, s28")
    a.e(f"s_add_u32 s26, s26, {LDS_SC}")
    a.e(f"v_mul_u32_u24 v{SR}, {SS}, v12")
    a.e(f"v_lshl_add_u32 v{SR}, v13, 4, v{SR}")
    a.e(f"v_add_u32 v{SR}, s26, v{SR}")
    a.e(f"v_lshlrev_b32 v{SG}, 9, v12")
    a.e(f"v_lshl_add_u32 v{SG}, v13, 4, v{SG}")
    a.e(f"v_mul_u32_u24 v{SW}, {SS}, v4")
    a.e(f"v_lshl_add_u32 v{SW}, v5, 3, v{SW}")
    a.e(f"v_add_u32 v{SW}, s26, v{SW}")
    a.e("s_lshl_b32 s26, s16, 14")
    a.e(f"s_add_u32 s26, s26, {LDS_XS}")
    a.e("s_lshl_b32 s28, s22, 13")
    a.e("s_add_u32 s28, s28, s26")
    a.e("v_lshrrev_b32 v14, 1, v12")
    a.e("v_xor_b32 v14, v13, v14")
    a.e("v_lshlrev_b32 v14, 4, v14")
    a.e("v_lshl_add_u32 v14, v12, 7, v14")
    a.e("v_add_u32 v12, s28, v14")
    a.e("v_xor_b32 v116, 0x440, v12")
    a.e("v_xor_b32 v117, 0x2440, v12")
    a.e("v_xor_b32 v15, 0x2000, v12")
    a.e("s_mov_b32 s101, 0xffff0000")
    if EM == 2:
        while early: early.pop(0)()
    ZR, YO = 88, 90
    a.e("v_lshrrev_b32 v13, 1, v4")
    a.e("v_xor_b32 v13, v5, v13")
    a.e("v_lshlrev_b32 v13, 4, v13")
    a.e(f"v_lshl_add_u32 v{ZR}, v4, 7, v13")
    a.e("v_and_b32 v13, 0x27, v2")
    a.e("v_and_b32 v14, 8, v2")
    a.e("v_lshl_add_u32 v13, v14, 1, v13")
    a.e("v_and_b32 v14, 16, v2")
    a.e("v_lshrrev_b32 v14, 1, v14")
    a.e(f"v_add_lshl_u32 v{YO}, v13, v14, 4")
    XR_, TR = 88, 92
    a.e("s_lshr_b32 s26, s3, 18")
    a.e("s_lshl_b32 s26, s26, 12")
    a.e(f"s_add_u32 s26, s26, {LDS_XS}")
    a.e(f"v_add_u32 v{XR_}, s26, v{ZR}")
    a.e("v_lshrrev_b32 v14, 2, v4")
    a.e("v_lshl_add_u32 v14, v5, 3, v14")
    a.e("v_lshlrev_b32 v14, 7, v14")
    a.e("v_and_b32 v13, 3, v2")
    a.e("v_lshl_add_u32 v14, v13, 3, v14")
    a.e("v_and_b32 v13, 24, v2")
    a.e("v_lshl_add_u32 v14, v13, 2, v14")
    a.e(f"v_add_u32 v{TR}, s6, v14")
    for nb in range(1, 4):
        a.e(f"v_xor_b32 v{TR+nb}, {32*nb}, v{TR}")
    a.e(f"v_mov_b32 v13, {LDS_CNT}")
    a.e("v_mov_b32 v14, 0")
    q.l("ds_write_b32 v13, v14")
    def touch_u():
        if opt.get("tu") == 0: return
        if opt.get("tu", 2) == 2:
            a.e("s_lshl_b32 s26, s2, 12")
            a.e("s_lshr_b32 s28, s16, 1")
            a.e("s_lshl_b32 s28, s28, 11")
            a.e("s_add_u32 s26, s26, s28")
            a.e("s_and_b32 s28, s16, 1")
            a.e("s_lshl_b32 s28, s28, 9")
            a.e("s_add_u32 s26, s26, s28")
            a.e("v_lshlrev_b32 v14, 3, v2")
            q.v("buffer_load_dword v0, v14, s[96:99], s26 offen")
            return
        a.e("s_lshr_b32 s26, s2, 3")
        a.e("s_lshl_b32 s26, s26, 2")
        a.e("s_add_u32 s26, s26, s16")
        a.e("s_lshl_b32 s26, s26, 13")
        a.e("v_lshlrev_b32 v14, 6, v4")
        a.e("v_lshl_add_u32 v14, v5, 11, v14")
        q.v("buffer_load_dword v0, v14, s[96:99], s26 offen")
    m_addr(a)
    for f in opt['xrest']: f()
    for _ in range(opt.get('e0', 0)): early.pop(0)()
    A0 = 96
    def norm(s):
        A = A0 + 8 * (s // 8) + 4
        for j in range(4):
            f = F + 8 * s + 2 * j
            a.e(f"v_pk_fma_f32 v[{f}:{f+1}], v[{f}:{f+1}], v[{A}:{A+1}], v[{A}:{A+1}] op_sel:[0,0,1] op_sel_hi:[1,0,1]")
        for j in range(4):
            f = F + 8 * s + 2 * j
            a.e(f"v_cvt_pk_bf16_f32 v{X+4*s+j}, v{f}, v{f+1}")
    def stats(h):
        A = A0 + 8 * h
        for r in (A, A + 2): a.e(f"v_add_f32 v{r}, v{r}, v{r+1}")
        for d in ("quad_perm:[1,0,3,2]", "quad_perm:[2,3,0,1]", "row_half_mirror"):
            a.e("s_nop 0")
            for r in (A, A + 2): a.e(f"v_add_f32_dpp v{r}, v{r}, v{r} {d} row_mask:0xf bank_mask:0xf")
        a.e(f"v_mul_f32 v{A}, {f2u(-1.0/512)}, v{A}")
        a.e(f"v_mul_f32 v{A+2}, {f2u(1.0/512)}, v{A+2}")
        a.e(f"v_fma_f32 v{A+2}, -v{A}, v{A}, v{A+2}")
        a.e(f"v_max_f32 v{A+2}, 0, v{A+2}")
        a.e(f"v_add_f32 v{A+2}, {f2u(1e-5)}, v{A+2}")
        a.e(f"v_rsq_f32 v{A+4}, v{A+2}")
        a.e("s_nop 0")
        a.e(f"v_mul_f32 v{A+4}, {f2u(XSC)}, v{A+4}")
        a.e(f"v_mul_f32 v{A+5}, v{A}, v{A+4}")
    for h in range(2):
        A = A0 + 8 * h
        for i in range(8):
            s = 8 * h + i
            if s == 8: stats(0)
            if h == 1: norm(i)
            q.wait(f"x{s}")
            if s == 0: fs(1)
            for _ in range(opt.get("ep", [8] + [1] * 15)[s]):
                if early: early.pop(0)()
            for j in range(4):
                x = X + 4 * s + j; f = F + 8 * s + 2 * j
                a.e(f"v_lshlrev_b32 v{f}, 16, v{x}")
                a.e(f"v_and_b32 v{f+1}, s101, v{x}")
            for j in range(4):
                f = F + 8 * s + 2 * j
                if i == 0 and j == 0:
                    a.e(f"v_pk_add_f32 v[{A}:{A+1}], v[{f}:{f+1}], 0")
                    a.e(f"v_pk_mul_f32 v[{A+2}:{A+3}], v[{f}:{f+1}], v[{f}:{f+1}]")
                else:
                    a.e(f"v_pk_add_f32 v[{A}:{A+1}], v[{A}:{A+1}], v[{f}:{f+1}]")
                    a.e(f"v_pk_fma_f32 v[{A+2}:{A+3}], v[{f}:{f+1}], v[{f}:{f+1}], v[{A+2}:{A+3}]")
    fs(2)
    stats(1)
    for s in range(8, 12):
        for _ in range(2):
            if early: early.pop(0)()
        norm(s)
    while early: early.pop(0)()
    fs(3)
    def xw(s):
        h, i = s // 8, s % 8
        q.l(f"ds_write_b128 {(('v12', 'v15'), ('v116', 'v117'))[h][i // 4]}, v[{X+4*s}:{X+4*s+3}] offset:{2048*(i%4)}", "xw")
    fz = Fine(a, opt.get("fz"))
    fz(0)
    mfin = m_tile(a, q, fz, [lambda s=s: norm(s) for s in range(12, 16)])
    fs(4); fz(4)
    for s in range(16):
        xw(s)
        if s in (1, 5, 8, 12): fz(5 + (1, 5, 8, 12).index(s))
        if s == 3: mfin()
        if s >= 3:
            for _ in range(2):
                if late: late.pop(0)()
        TT = opt.get("tt", 8)
        if opt.get("te") is not None: continue
        if s == TT and opt.get('ta', 2): touch_aux(a, q, opt.get('ta', 2))
        if s == TT + 1 and not opt.get("tw"): touch_u()
    srd_off(a, 8, 4, "s24", 4096000)
    a.e("s_lshr_b32 s19, s3, 18")
    a.e("s_lshl_b32 s19, s19, 12")
    a.e("s_add_u32 s19, s19, s27")
    a.e("v_and_b32 v13, 3, v2")
    fz(9)
    q.wait("xw")
    fz(10)
    q.wait("St")
    fz(11)
    a.e("s_barrier")
    fz(12)
    st(1)
    AR = [16 + 16 * i for i in range(4)] + [96]
    T = 112
    NQ = 5
    role = [None]
    def areg(k): return AR[(k - 16 + 2) % NQ] if (role[0] == "qk" and k >= 16) else AR[k % 2]
    def accof(k): return 128 if k < 16 else 192 if (k < 32 or role[0] == "qk") else 128
    def bread(s, tb):
        r = 64 * tb + 4 * s
        if tb == 0: a.e(f"v_xor_b32 v{XR_+1}, {2048*(s//2) + 64*(s%2)}, v{XR_}")
        q.l(f"ds_read_b128 a[{r}:{r+3}], v{XR_+1} offset:{16384*tb}", f"B{s}")
    def tread(k, i):
        nb, h = i // 2, i % 2
        r = areg(k) + 4 * nb + 2 * h
        q.l(f"ds_read_b64_tr_b16 v[{r}:{r+1}], v{TR+nb} offset:{4096*(k % RING) + 512*h}", f"A{k}", need=(f"W{k}",))
    def mload(k, nb):
        if nb == 0: a.e(f"s_xor_b32 s42, s20, {4096*(k-16)}")
        r = areg(k) + 4 * nb
        q.v(f"buffer_load_dwordx4 v[{r}:{r+3}], v3, s[12:15], s42 offen offset:{1024*nb} sc1", f"A{k}")
    for tb in range(4): bread(0, tb)
    for i in range(8): tread(0, i)
    signal(a, L, "sig1", 0, 0)
    for tb in range(4): bread(1, tb)
    a.e(f"s_mov_b32 s0, {f2u(-GC1 / XSC)}")
    a.e(f"s_mov_b32 s1, {f2u(XSC)}")
    a.e("v_lshlrev_b32 v13, 6, v13")
    a.e("s_cmp_eq_u32 s16, 1")
    a.e("s_cselect_b32 s26, 0, 0x1000")
    a.e("v_add_u32 v12, s26, v13")
    a.e("s_lshl_b32 s17, s31, 16")
    a.e("s_lshl_b32 s26, s16, 7")
    a.e("s_add_u32 s17, s17, s26")
    a.e(f"s_add_u32 s17, s17, {WS_GU}")
    fx = [{}]
    def at(k, g, fn): fx[0].setdefault((k, g), []).append(fn if callable(fn) else (lambda: a.e(fn)))
    def run(ops):
        for x in ops: x() if callable(x) else a.e(x)
    def cost(x): return 2 if (isinstance(x, str) and x.split()[0] in ("v_exp_f32", "v_rcp_f32")) else 1
    def steps(k0, k1, side=(), lead=10, tailg=4):
        fixed = fx[0]
        gaps = [(k, g) for k in range(k0, k1) for g in range(16)]
        cap = [0 if (n < lead or n >= len(gaps) - tailg) else max(0, 2 - len(fixed.get(x, []))) for n, x in enumerate(gaps)]
        ops = list(side)
        C = sum(map(cost, ops)); tot = sum(cap)
        scale = min(1.0, C / tot)
        extra = max(0.0, (C - tot) / (len(gaps) - lead - tailg))
        budget = 0.0; used = 0
        for n, (k, g) in enumerate(gaps):
            if g == 0:
                if k in opt.get("fk", []): Fine(a, True)(opt["fk"].index(k))
                q.wait(f"A{k}", f"B{k}")
            nb, tb = g // 4, g % 4
            d = accof(k) + 16 * nb + 4 * tb; r = areg(k) + 4 * nb; b = 64 * tb + 4 * (k % 16)
            c = "0" if k % 16 == 0 else f"v[{d}:{d+3}]"
            a.e(f"{M16} v[{d}:{d+3}], v[{r}:{r+3}], a[{b}:{b+3}], {c}")
            for fn in fixed.pop((k, g), []): fn()
            if lead <= n < len(gaps) - tailg:
                budget += cap[n] * scale + extra
            while ops and (used + cost(ops[0]) <= budget + 1e-6 or n == len(gaps) - max(tailg, 1)):
                x = ops.pop(0); used += cost(x); run([x])
        assert not ops
    def raw_plan(k0, k1, kend):
        for k in range(k0, k1):
            if k + 1 < kend:
                for i in range(8): at(k, i, lambda k=k, i=i: tread(k + 1, i))
            if k + RING < kend:
                for j in range(4): at(k, 9 + 2 * j, lambda k=k, j=j: wdma(k + RING, j))
            if k + 2 < 16:
                for tb in range(4): at(k, 8 + 2 * tb, lambda k=k, tb=tb: bread(k + 2, tb))
    def gelu(acc, kind, pk, base, off):
        out = []
        if opt.get("nogelu"): return [["s_nop 0"] * 40 for _ in range(8)]
        P = lambda r: f"v[{r}:{r+1}]"
        def store(E, i):
            r = acc + 32 + 16 * (i % 2) + 4 * (i // 2)
            def f():
                a.e(f"s_add_u32 s29, {base}, {off + 4096*i}")
                pub = kind == "g" and i in (0, 7)
                q.v(f"buffer_store_dwordx4 v[{r}:{r+3}], v{SG}, s[12:15], s29 offen{' sc1' if pub else ''}", "St" if pub else "_", need=(f"sr{kind}{i}",))
            E(f)
        for tb in range(4):
            for h in range(2):
                o = []; E = o.append; out.append(o)
                src = [acc + 16 * (2 * h + ee) + 4 * tb + j for ee in range(2) for j in range(4)]
                if pk(2 * tb + h):
                    for i in range(0, 8, 2): E(f"v_pk_fma_f32 {P(T+i)}, {P(src[i])}, {P(src[i])}, s[0:1] op_sel_hi:[1,1,0] neg_lo:[1,0,0] neg_hi:[1,0,0]")
                    for i in range(0, 8, 2): E(f"v_pk_mul_f32 {P(T+i)}, {P(T+i)}, {P(src[i])}")
                    for i in range(8): E(f"v_exp_f32 v{T+i}, v{T+i}")
                    for i in range(0, 8, 2): E(f"v_pk_fma_f32 {P(T+i)}, {P(T+i)}, s[0:1], s[0:1] op_sel:[0,1,1] op_sel_hi:[1,1,1]")
                    for i in range(8): E(f"v_rcp_f32 v{T+i}, v{T+i}")
                    for i in range(0, 8, 2): E(f"v_pk_mul_f32 {P(src[i])}, {P(T+i)}, {P(src[i])}")
                else:
                    for i, x in enumerate(src): E(f"v_fma_f32 v{T+i}, -v{x}, v{x}, s0")
                    for i, x in enumerate(src): E(f"v_mul_f32 v{T+i}, v{T+i}, v{x}")
                    for i, x in enumerate(src): E(f"v_exp_f32 v{T+i}, v{T+i}")
                    for i, x in enumerate(src): E(f"v_fma_f32 v{T+i}, v{T+i}, s1, s1")
                    for i, x in enumerate(src): E(f"v_rcp_f32 v{T+i}, v{T+i}")
                    for i, x in enumerate(src): E(f"v_mul_f32 v{x}, v{T+i}, v{x}")
                pr = T + 8 + 4 * h
                for j in range(4): E(f"v_cvt_pk_bf16_f32 v{pr+j}, v{src[2*j]}, v{src[2*j+1]}")
                for ee in range(2):
                    E(lambda ee=ee, pr=pr, h=h: q.l(f"ds_write_b64 v{SW}, v[{pr+2*ee}:{pr+2*ee+1}] offset:{32*(2*h+ee)}"))
                if kind == "g":
                    s0, s1 = acc + 4 * tb, acc + 4 * tb + 1
                    if pk(2 * tb + h):
                        E(f"v_pk_mul_f32 {P(T)}, {P(src[0])}, {P(src[0])}")
                        E(f"v_pk_add_f32 {P(T+2)}, {P(src[0])}, {P(src[2])}")
                        for i in (2, 4, 6):
                            E(f"v_pk_fma_f32 {P(T)}, {P(src[i])}, {P(src[i])}, {P(T)}")
                            if i > 2: E(f"v_pk_add_f32 {P(T+2)}, {P(T+2)}, {P(src[i])}")
                        if h == 0:
                            E(f"v_add_f32 v{s0}, v{T+2}, v{T+3}")
                            E(f"v_add_f32 v{s1}, v{T}, v{T+1}")
                        else:
                            E(f"v_add_f32 v{T+2}, v{T+2}, v{T+3}")
                            E(f"v_add_f32 v{T+3}, v{T}, v{T+1}")
                            E(f"v_pk_add_f32 {P(s0)}, {P(s0)}, {P(T+2)}")
                    elif h == 0:
                        E(f"v_mul_f32 v{T}, v{src[0]}, v{src[0]}")
                        for x in src[1:]: E(f"v_fmac_f32 v{T}, v{x}, v{x}")
                        for x in src[1:]: E(f"v_add_f32 v{s0}, v{s0}, v{x}")
                        E(f"v_mov_b32 v{s1}, v{T}")
                    else:
                        for x in src:
                            E(f"v_add_f32 v{s0}, v{s0}, v{x}")
                            E(f"v_fmac_f32 v{s1}, v{x}, v{x}")
                if tb >= 1: store(E, 2 * (tb - 1) + h)
            for i in (2 * tb, 2 * tb + 1):
                r = acc + 32 + 16 * (i % 2) + 4 * tb
                E(lambda i=i, r=r: q.l(f"ds_read_b128 v[{r}:{r+3}], v{SR} offset:{8*SS*(i%2)}", f"sr{kind}{i}"))
        if kind == "g":
            for k in range(2):
                E(f"v_permlane16_swap_b32 v{acc+k}, v{acc+4+k}")
                E(f"v_permlane16_swap_b32 v{acc+8+k}, v{acc+12+k}")
            E("s_lshl_b32 s43, s22, 2")
            for k in range(2):
                E(f"v_add_f32 v{acc+k}, v{acc+k}, v{acc+4+k}")
                E(f"v_add_f32 v{acc+8+k}, v{acc+8+k}, v{acc+12+k}")
            E("s_add_u32 s43, s43, s16")
            E("s_lshl_b32 s43, s43, 9")
            for k in range(2): E(f"v_permlane32_swap_b32 v{acc+k}, v{acc+8+k}")
            E(lambda: (a.e("s_lshr_b32 s29, s31, 1"), a.e("s_lshl_b32 s29, s29, 12"), a.e("s_add_u32 s43, s43, s29")))
            for k in range(2): E(f"v_add_f32 v{T+k}, v{acc+k}, v{acc+8+k}")
            E(f"s_add_u32 s43, s43, {WS_ST}")
            E(f"v_lshlrev_b32 v{T+2}, 3, v2")
            E(lambda: q.v(f"buffer_store_dwordx2 v[{T}:{T+1}], v{T+2}, s[12:15], s43 offen sc1", "St"))
        store(E, 6); store(E, 7)
        return out
    flat = lambda bs: [x for b in bs for x in b]
    def stream_srd():
        a.e(f"s_mul_i32 s28, s22, {32768 * opt.get('n0', 62)}")
        a.e("s_add_u32 s28, s28, s24")
        a.e("s_lshl_b32 s26, s25, 15")
        srd_off(a, 8, 4, "s28", "s26")
    def xl():
        a.e("s_xor_b32 s26, s31, 1")
        a.e("s_lshl_b32 s26, s26, 7")
        a.e(f"s_add_u32 s26, s26, {WS_FL + 48}")
        q.v("buffer_load_dword v1, off, s[12:15], s26 sc1", "xid")
    def e0():
        q.wait("B15", "xid")
        a.e("v_readfirstlane_b32 s26, v1")
        a.e("s_getreg_b32 s21, hwreg(HW_REG_XCC_ID, 0, 4)")
        a.e("s_xor_b32 s21, s21, s26")
        if opt.get("far"): a.e("s_mov_b32 s21, 1")
        a.e("s_barrier")
    PQ = opt.get("pq", [11, 11, 12, 13, 14, 15, 16, 16, 17, 17, 18, 18, 19, 19, 20, 20])
    def pub(i):
        tb, sl = i // 4, i % 4
        q.v(f"buffer_store_dwordx4 a[{64*tb+4*sl}:{64*tb+4*sl+3}], v{YO}, s[8:11], s19 offen offset:{1024*sl} sc1", "Xst")
        if sl == 3: a.e("s_add_u32 s19, s19, 16384")
    def arrive():
        a.e(f"v_mov_b32 v1, {LDS_CNT}")
        a.e("v_mov_b32 v14, 1")
        q.wait("Xst")
        a.e("s_mov_b64 exec, 1")
        q.l("ds_add_rtn_u32 v15, v1, v14", "cnt")
        a.e("s_mov_b64 exec, -1")
    def sig2():
        q.wait("cnt")
        a.e("v_readfirstlane_b32 s28, v15")
        a.e("s_and_b32 s26, s2, 3")
        a.e("s_lshl_b32 s26, s26, 6")
        a.e("s_cmp_lg_u32 s28, 1")
        a.e(f"s_cbranch_scc1 {L('sig2')}")
        a.e("s_mov_b64 exec, 1")
        a.e("buffer_atomic_add v14, off, s[92:95], s26 offset:8")
        a.e("s_mov_b64 exec, -1")
        a.label(L("sig2"))
    KS = opt.get("ks", 11); KC = 11
    raw_plan(0, KS, 16)
    c1l = lambda: q.v(cnt_load(0, "v12"), "c1")
    if KS > KC - 3: at(KC - 3, 8, c1l)
    fs(5); fz(13)
    at(0, 1, lambda: fz(14)); at(1, 1, lambda: fz(15))
    steps(0, KS)
    assert not fx[0]
    a.e("s_cmp_ge_u32 s16, 2")
    a.e(f"s_cbranch_scc1 {L('fpv')}")
    state = (list(q.vm), list(q.lg))

    def qk_part():
        role[0] = "qk"; fx[0] = {}
        raw_plan(KS, 16, 16)
        def chk1():
            q.wait("c1")
            a.e("s_cmp_lg_u32 s16, 1")
            a.e(f"s_cbranch_scc1 {L('c1_ok')}")
            poll(a, q, L, "c1", [cnt_load(0, "v12")], CNT_OK, "c1", slp=8)
            a.e("s_barrier")
            a.e("s_lshl_b32 s26, s22, 1")
            a.e("s_add_u32 s26, s26, s16")
            a.e("s_lshl_b32 s20, s26, 17")
            a.e("s_lshr_b32 s28, s3, 18")
            a.e("s_lshl_b32 s28, s28, 14")
            a.e("s_add_u32 s20, s20, s28")
            a.e(f"s_add_u32 s20, s20, {WS_MI}")
        if KS <= KC - 3: at(KC - 3, 8, c1l)
        at(KC, 8, chk1)
        at(KC, 10, xl)
        for kk in range(16, 48):
            k = kk - NQ + 1
            for nb in range(4): at(k, (9 + 2 * nb) if k < 16 else (1 + 4 * nb), lambda kk=kk, nb=nb: mload(kk, nb))
        at(15, 8, e0)
        if PQ:
            for i, k in enumerate(PQ): at(k, 11 if (i and PQ[i - 1] == k) else 3 if k >= 16 else 14, lambda i=i: pub(i))
            at(PQ[-1] + 3, 7, arrive)
            at(PQ[-1] + 4, 7, sig2)
        for g, x in enumerate(["s_lshl_b32 s40, s31, 1", "s_add_u32 s40, s40, s16", "s_lshl_b32 s40, s40, 14", f"s_add_u32 s40, s40, {WS_QP}",
                               "s_lshl_b32 s41, s31, 5", "s_add_u32 s41, s41, s16", "s_lshl_b32 s41, s41, 2", f"s_add_u32 s41, s41, {WS_FL + 16}"]):
            at(15, g, x)
        steps(KS, 16)
        fs(6)
        NA_, NB_ = opt.get("qg", (4, 3))
        gb = gelu(128, "g", lambda b: b >= NA_ + NB_, "s17", 0)
        pre = ["s_lshl_b32 s26, s16, 2", "s_add_u32 s26, s26, s22", "s_lshl_b32 s26, s26, 13", f"s_add_u32 s18, s26, {LDS_XS}", f"v_add_u32 v{QW}, s18, v3",
               "s_xor_b32 s18, s18, 0x2000", "s_add_u32 s7, s40, 4096", "s_xor_b32 s6, s41, 128", "v_mov_b32 v12, 1",
               lambda: run(["s_cmp_eq_u32 s21, 0", "s_cselect_b32 s46, s14, 0", "s_mov_b64 s[44:45], s[12:13]"])]
        steps(16, 32, pre + flat(gb[:NA_]))
        fs(7)
        preg = lambda i: 192 + 32 * (i % 2) + 4 * (i // 2)
        def qst(i, r, srd, mod): return f"buffer_store_dwordx4 v[{r}:{r+3}], v3, s[{srd}:{srd+3}], {'s40' if i < 4 else 's7'} offen offset:{1024*(i%4)} {mod}"
        def pack(p):
            a.e("s_nop 3")
            for i in range(8):
                pr = preg(i); src = [pr + 16 * ee + j for ee in range(2) for j in range(4)]
                for j in range(4): a.e(f"v_cvt_pk_bf16_f32 v{pr+j}, v{src[2*j]}, v{src[2*j+1]}")
                if p: q.v(qst(i, pr, 44, "nt"), "Qst", need=("qa",))
                q.l(f"ds_write_b128 v{QW}, v[{pr}:{pr+3}] offset:{16384*p + 1024*i}", "qw")
        def fetch(p, i):
            if i % 4 == 0:
                a.e(f"s_add_u32 m0, s18, {16384*p + 1024*i}")
                a.e("s_nop 0")
            q.v(f"buffer_load_dwordx4 v3, s[12:15], {'s40' if i < 4 else 's7'} offen offset:{1024*(i%4)} sc1 lds", "qd" if p else "qa")
        SWAP = ["s_xor_b32 s40, s40, 0x8000", "s_xor_b32 s7, s7, 0x8000"]
        pack(0)
        for i in range(8):
            k = 32 + opt.get("qsp", [0, 0, 1, 1, 2, 2, 3, 3])[i]
            r = (WV, TR)[i % 2]
            at(k, 3, lambda i=i, r=r: q.l(f"ds_read_b128 v[{r}:{r+3}], v{QW} offset:{1024*i}", f"qr{i}"))
            at(k, 15, lambda i=i, r=r: q.v(qst(i, r, 12, "sc1"), "Qst", need=(f"qr{i}",)))
        KA_, KB_, KC_ = opt.get("qk_", (39, 43, 45))
        qok = ["v_readfirstlane_b32 s26, v15", "s_cmp_eq_u32 s26, 1"]
        at(KA_, 3, lambda: q.v("buffer_store_dword v12, off, s[12:15], s41 sc1", need=("Qst",)))
        qfa = "buffer_load_dword v15, off, s[12:15], s6 sc1"
        at(KB_, 3, lambda: q.v(qfa, "qf"))
        at(KC_, 0, lambda: (poll(a, q, L, "qa", [qfa], qok, "qf", slp=1), run(SWAP)))
        for i in range(8): at(KC_, 1 + 2 * i, lambda i=i: fetch(0, i))
        at(opt.get("kc2", 41), 7, lambda: q.v(cnt_load(8), "c2"))
        at(43, 7, lambda: (stream_srd(), a.e("s_lshl_b32 s19, s16, 14")))
        at(44, 0, lambda: poll(a, q, L, "c2", [cnt_load(8)], CNT_OK, "c2", slp=8))
        def kvt():
            n = opt.get("kt_", 6)
            a.e("s_lshr_b32 s26, s2, 4")
            a.e("s_lshl_b32 s26, s26, 1")
            a.e("s_add_u32 s26, s26, s16")
            a.e(f"s_lshl_b32 s26, s26, {n + 6}")
            a.e(f"v_lshlrev_b32 v14, {n}, v2")
            q.v("buffer_load_dword v0, v14, s[8:11], s26 offen sc1")
        if opt.get("kt_", 0): at(44, 1, kvt)
        kds = []
        for i in range(16):
            def kd(i=i):
                if i % 4 == 0:
                    a.e(f"s_add_u32 m0, s19, {1024*i}")
                    a.e(f"s_add_u32 s42, s19, {1024*i}")
                q.v(f"buffer_load_dwordx4 v3, s[8:11], s42 offen offset:{1024*(i%4)} sc1 lds", "kv0")
            if i >= opt.get("kn", 4): kds.append(kd)
            else: at(44 + i // 4 + (1 if 44 + i // 4 >= KC_ else 0), 4 + 3 * (i % 4), kd)
        steps(32, 48, flat(gb[NA_:NA_ + NB_]), lead=2)
        assert not fx[0]
        fs(8); fy = Fine(a, opt.get("fy")); fy(0)
        pack(1)
        fy(1)
        rest = gb[NA_ + NB_:]
        W1, W2 = opt.get("qw_", (0, 0))
        run(kds)
        for _ in range(W1): run(rest.pop(0))
        fy(2)
        release(a, q, L, "rq", "Qst", "buffer_store_dword v12, off, s[12:15], s41 offset:8", [qst(i, preg(i), 12, "sc1") for i in range(8)])
        fy(3)
        qfl = "buffer_load_dword v15, off, s[12:15], s6 offset:8 sc1"
        fy(4)
        for _ in range(W2): run(rest.pop(0))
        q.v(qfl, "qf")
        for _ in range(opt.get("w3", 0)): run(rest.pop(0))
        fs(12); fy(5)
        run(SWAP)
        poll(a, q, L, "q", [qfl], qok, "qf", slp=1)
        fy(6)
        for i in range(8): fetch(1, i)
        fy(7)
        run(flat(rest))
        fs(9); fy(8)

    def pv_part(setup, vreads, zero):
        role[0] = "pv"; fx[0] = {}
        a.label(L("fpv"))
        q.vm, q.lg = list(state[0]), list(state[1])
        a.e("s_and_b32 s20, s3, 0xffff0000")
        a.e("s_lshl_b32 s26, s22, 1")
        a.e("s_add_u32 s26, s26, s16")
        a.e("s_sub_u32 s26, s26, 2")
        a.e("s_lshl_b32 s26, s26, 8")
        a.e("s_add_u32 s20, s20, s26")
        raw_plan(KS, 48, 48)
        at(KC, 8, "s_barrier")
        at(KC, 10, xl)
        at(15, 8, e0)
        PE = opt.get("pe", [])
        for i, k in enumerate(PE): at(k, 12 if (i and PE[i - 1] == k) else 4, lambda i=i: pub(i))
        steps(KS, 16)
        fs(6)
        N1, N2 = opt.get("pg_", (5, 3))
        gb = gelu(128, "g", lambda b: b < N1, "s17", 0)
        e1 = flat(gb[:N1])
        for i in range(16 if PQ else len(PE), 16): e1.insert((i - len(PE)) * opt.get("pd", 12), lambda i=i: pub(i))
        a.e("s_nop 3")
        run(e1)
        fs(12)
        K2 = opt.get("k2", 19)
        if not PQ:
            at(K2, 8, arrive)
            at(K2 + 1, 8, sig2)
        steps(16, 32, flat(gb[N1:]), lead=2)
        fs(7)
        a.e("s_lshl_b32 s26, s16, 7")
        a.e("s_add_u32 s17, s17, s26")
        a.e("s_sub_u32 s17, s17, 512")
        ua = gelu(192, "ua", lambda b: b >= N2, "s17", 32768)
        n0 = len(a.lines)
        stream_srd(); setup()
        a.e("s_lshl_b32 s6, s19, 14")
        a.e("s_lshl_b32 s20, s19, 13")
        su = [x.strip() for x in a.lines[n0:]]; del a.lines[n0:]
        if opt.get("sg", 1):
            steps(32, 43, flat(ua[:N2]), tailg=0)
            steps(43, 48, su, lead=0, tailg=0)
        else:
            steps(32, 48, flat(ua[:N2])); run(su)
        assert not fx[0]
        fs(8); fy = Fine(a, opt.get("fy"))
        for k in range(9): fy(k)
        ub = gelu(128, "ub", lambda b: True, "s17", 32768 + 128)
        rest = ua[N2:] + ub
        pend = []
        def dma(n0, n, lds0, tag):
            for i in range(n):
                def f(i=i):
                    if i % 4 == 0:
                        a.e(f"s_add_u32 m0, {lds0}, {n0 + 1024*i}")
                        a.e(f"s_add_u32 s7, {lds0}, {n0 + 1024*i}")
                    q.v(f"buffer_load_dwordx4 v3, s[8:11], s7 offen offset:{1024*(i%4)} sc1 lds", tag)
                pend.append(f)
        BS, BA, BB = opt.get("pb", (6, 9, 10))
        DD = opt.get("dd", 5)
        assert (BA - len(ua[N2:])) % 2 == 0 if BA >= len(ua[N2:]) else (N2 + BA) % 2 == 0
        for n in range(len(rest) + 1):
            if n == BS:
                q.wait("St")
                fy(9)
                a.e("s_barrier")
                fy(10)
                st(2); fs(9)
                if not opt.get("q1"): dma(32768, 16, "s6", "kv1")
                if opt.get("t2", 1): dma(65536, 8, "s20", "kv2")
            if n == BA:
                q.all(vm=False)
                fy(11)
                a.e("s_barrier")
                fy(12)
                a.e(f"s_mul_i32 s26, s19, {16*SS - 8192}")
                a.e(f"s_add_u32 s26, s26, {LDS_SC2 - LDS_SC}")
                a.e(f"v_add_u32 v{SW}, s26, v{SW}")
                a.e(f"v_add_u32 v{SR}, s26, v{SR}")
                run(pend); del pend[:]
                if not opt.get("t2", 1): dma(65536, 8, "s20", "kv2")
                dma(81920, 8, "s20", "kv2"); dma(98304, 16, "s6", "kv3")
            if n == BB:
                q.wait("kv1")
                fy(13)
                a.e("s_barrier")
                fy(14)
                fs(10)
                signal(a, L, "sig3", 2, 4)
            if n < len(rest):
                for i, x in enumerate(rest[n]):
                    if n >= BS and i % 4 == 0 and vreads: q.l(vreads.pop(0))
                    if i % (DD if n < BA else opt.get("d2", 2)) == 1 and pend: pend.pop(0)()
                    run([x])
        assert not vreads
        run(pend)
        zero()
        q.wait("kv2")
        q.all(vm=False)
        fy(15)
    return qk_part, pv_part
```

```python
import sys
sys.path.insert(0, "gen")
from asmlib import *
from attn2 import gen_attn
KNAME = "standalone__conformer_family_branchformer__speech_kernel"

def build(path, stamp=0, opt=None):
    a = Asm()
    a('.amdgcn_target "amdgcn-amd-amdhsa--gfx950"')
    l = gen_attn(a, KNAME, stamp=stamp, opt=opt)
    t = a.text().replace(KNAME + "_", "L_")
    open(path, "w").write(l + "\n" + t)

if __name__ == "__main__":
    build("v3.s")
    build("v3_st.s", stamp=1)
    build("v3_fs.s", stamp=2)
    build("v3f_fs.s", stamp=3)
    build("b_fs.s", stamp=2, opt={"pf": 12, "qa": 4, "as": "4" * 16 + "0000" + "4" * 12, "kx": 24})
    build("c_fs.s", stamp=2, opt={"pf": 12, "qa": 4, "as": "43" * 8 + "0000" + "4" * 12})
    build("d_fs.s", stamp=2, opt={"pf": 14, "qa": 1, "as": "43" * 8 + "0000" + "4" * 12, "kx": 24, "an": 4})
    build("e_fs.s", stamp=2, opt={"pf": 14, "qa": 1, "as": "4" * 16 + "0000" + "4" * 12, "kx": 22, "an": 4, "k": (22, 25, 27), "ku": 28})
```

```python
import sys
sys.path.insert(0, "gen")
from asmlib import *
from layout import *
from conv import Conv
from aux import gen_aux
from front import *

RS = 1056
LDS_P = 131072
LDS_MX = 139264
LDS_FG = LDS_MX + 512
LDS_ML = LDS_MX + 1024
LDS_HALO = LDS_ML + 1024
LDS_TAP = LDS_HALO + 2048
LDS_STT = LDS_TAP + 3072
LDS_ATT = 163840
ES = 272
NA = 16
ARING = [16 * i for i in range(16)]
BIG = 2.0 ** 100
SPIN = 200000
FK = [0, 8, 16, 20, 24, 28, 30]

DROP = []
ALIGN = [0]
def emit_interval(a, mfmas, fill, lo=0, hi=None):
    for i, m in enumerate(mfmas):
        if i < lo or (hi is not None and i >= hi): continue
        if m is not None:
            if ALIGN[0]: a(".p2alignl 3, 0xbf800000")
            a.e(m)
        for f in fill.get(i, []):
            if any(f.startswith(d) for d in DROP): continue
            a.e(f)

def conv_addr(a, NR, row0):
    a.e("v_lshrrev_b32 v12, 5, v2")
    a.e(f"v_mul_u32_u24 v12, {NR}, v12")
    a.e(f"v_add_u32 v12, {row0}, v12")
    a.e("v_and_b32 v13, 31, v2")
    a.e("v_lshlrev_b32 v13, 4, v13")
    a.e("v_lshl_add_u32 v14, v12, 9, v13")
    a.e("s_and_b32 s26, s25, 3")
    a.e("s_lshl_b32 s26, s26, 15")
    a.e("v_add_u32 v4, s26, v14")
    a.e("v_add_u32 v7, s49, v14")
    a.e("v_and_b32 v14, 4, v12")
    a.e("v_lshlrev_b32 v14, 5, v14")
    a.e("v_xor_b32 v8, v7, v14")
    a.e(f"v_add_u32 v10, {LDS_TAP}, v13")
    a.e(f"v_add_u32 v13, {LDS_HALO}, v13")
    a.e("v_cmp_eq_u32 vcc, 0, v12")
    a.e("v_subrev_u32 v5, 1024, v4")
    a.e(f"v_add_u32 v6, {512*NR}, v4")
    a.e("v_cndmask_b32 v5, v5, v13, vcc")
    a.e(f"v_cmp_eq_u32 vcc, {64-NR}, v12")
    a.e("v_add_u32 v13, 1024, v13")
    a.e("v_lshlrev_b32 v9, 3, v12")
    a.e("v_cndmask_b32 v6, v6, v13, vcc")
    a.e(f"v_add_u32 v9, {LDS_STT}, v9")

def gen_tail(a, L, st, fs, opt):
    q = Seq(a)
    PF = opt.get("pf", 10)
    q.vm = [f"A{k}" for k in range(PF) for _ in range(4)]
    BF = [32, 48]; YR = 64; XR = 96
    NS = 32
    acc = lambda k: 128 if k < 16 else 192
    def bread(k, tb):
        s = k % 8
        r = BF[k % 2] + 4 * tb
        if k % 16 < 8:
            return f"ds_read_b128 v[{r}:{r+3}], v6 offset:{8192*tb + 1024*s}"
        return f"ds_read_b128 v[{r}:{r+3}], v{28 + s % 4} offset:{8192*tb + 256*(s//4)}"
    a.e("v_add_u32 v6, s48, v3")
    a.e("s_waitcnt lgkmcnt(0)")
    fs(5)
    a.e("s_barrier")
    for tb in range(4): q.l(bread(0, tb), "B0")
    a.e("v_and_b32 v4, 15, v2")
    a.e("v_lshrrev_b32 v5, 4, v2")
    a.e("v_mov_b32 v12, 1")
    a.e("s_mov_b32 s43, 0xffff0000")
    side = {}
    def at(k, g, fn): side.setdefault((k + g // 16, g % 16), []).append(fn)
    def spread(k, g, ops, per=2, skip=lambda g: False):
        n = 16 * k + g
        ops = list(ops)
        while ops:
            if not skip(n % 16):
                for _ in range(per):
                    if ops:
                        o = ops.pop(0)
                        at(n // 16, n % 16, o if callable(o) else (lambda o=o: a.e(o)))
            n += 1
    lo8 = lambda g: g < 8
    spread(0, 8, ["v_and_b32 v13, 7, v4", "v_lshlrev_b32 v13, 1, v13", "v_xor_b32 v13, v13, v5", "v_lshlrev_b32 v13, 4, v13",
                  "v_lshl_add_u32 v13, v4, 9, v13", "v_add_u32 v28, s49, v13", "v_xor_b32 v29, 64, v28", "v_xor_b32 v30, 128, v28",
                  "v_xor_b32 v31, 192, v28",
                  "s_and_b32 s26, s16, 2", "s_add_u32 s26, s26, s25", "s_and_b32 s26, s26, 3", "s_lshl_b32 s26, s26, 1",
                  "s_and_b32 s28, s16, 1", "s_add_u32 s26, s26, s28", "s_lshl_b32 s26, s26, 14",
                  "v_xor_b32 v13, v4, v5", "v_lshlrev_b32 v13, 4, v13", "v_lshl_add_u32 v13, v4, 8, v13", "v_add_u32 v8, s26, v13",
                  "v_xor_b32 v9, 64, v8", "v_xor_b32 v10, 128, v8", "v_xor_b32 v11, 192, v8",
                  "v_lshrrev_b32 v13, 3, v2", "v_and_b32 v14, 7, v2", "v_lshlrev_b32 v24, 1, v14", "v_xor_b32 v24, v24, v13",
                  "v_lshlrev_b32 v24, 4, v24", "v_lshl_add_u32 v24, v13, 8, v24", "v_add_u32 v24, s26, v24",
                  "v_xor_b32 v25, 16, v24", "v_xor_b32 v26, 128, v24", "v_xor_b32 v27, 144, v24",
                  "v_lshlrev_b32 v15, 4, v14", "v_lshl_add_u32 v15, v13, 10, v15"], skip=lo8)
    for i in range(8):
        def xl(i=i):
            a.e(f"s_add_u32 s26, s58, {8192*i}")
            q.v(f"buffer_load_dwordx4 v[{XR+4*i}:{XR+4*i+3}], v15, s[32:35], s26 offen", "X")
        at(opt.get("kx", 26), 1 + opt.get("dx", 4) * i, xl)
    YS = opt.get("ys", 2)
    for i in range(8):
        tb, h = i % 4, i // 4
        k, g0 = (16 + i // 2, 8 + 4 * (i % 2)) if YS == 2 else (16, 8 + 3 * i)
        src = [128 + 16 * (2 * h + ee) + 4 * tb + j for ee in range(2) for j in range(4)]
        for j in range(4):
            at(k, g0 + j // 2, lambda j=j, i=i, src=src: a.e(f"v_cvt_pk_bf16_f32 v{YR+4*i+j}, v{src[2*j]}, v{src[2*j+1]}"))
        at(k, g0 + 2, lambda i=i: q.v(f"buffer_store_dwordx4 v[{YR+4*i}:{YR+4*i+3}], v3, s[44:47], s{54 + i//4} offen offset:{1024*(i%4)} {opt.get('sm_', 'nt')}", "Yst"))
    KF, KL, KC = opt.get("k", (24, 27, 29))
    at(KF, 9, lambda: release(a, q, L, "ry", "Yst", "buffer_store_dword v12, off, s[12:15], s56",
        [f"buffer_store_dwordx4 v[{YR+4*i}:{YR+4*i+3}], v3, s[12:15], s{54 + i//4} offen offset:{1024*(i%4)} sc1" for i in range(8)]))
    yl = f"buffer_load_dword v14, off, s[12:15], s57 {opt.get('pm', 'sc1')}"
    at(KL, 9, lambda: q.v(yl, "yf"))
    def gety():
        poll(a, q, L, "y", [yl], ["v_readfirstlane_b32 s26, v14", "s_cmp_eq_u32 s26, 1"], "yf", slp=1)
        a.e("s_xor_b32 s54, s54, 0x10000")
        a.e("s_xor_b32 s55, s55, 0x10000")
    at(KC, 7, gety)
    for i in range(8):
        at(KC, 8 + i, lambda i=i: q.v(f"buffer_load_dwordx4 v[{YR+4*i}:{YR+4*i+3}], v3, s[12:15], s{54 + i//4} offen offset:{1024*(i%4)} {opt.get('lm', 'sc1')}", f"Y{i}"))
    XF = 128
    KU = opt.get("ku", 30)
    at(KU, 0, lambda: q.wait("X"))
    spread(KU, 0, [x for i in range(32) for x in (f"v_lshlrev_b32 v{XF+2*i}, 16, v{XR+i}", f"v_and_b32 v{XF+2*i+1}, s43, v{XR+i}")])
    nl = 4 * PF
    AS = opt.get("as", "4" * 16 + "0000" + "4" * 12)
    LG = opt.get("lg", (1, 5, 9, 13, 3))
    for k in range(NS):
        assert nl >= 4 * min(NS, k + 3)
        if k == 0: st(5)
        if k in FK: fs(6 + FK.index(k))
        q.wait(f"A{k}", f"B{k}")
        g = 0
        for nb in range(4):
            for tb in range(4):
                d = acc(k) + 16 * nb + 4 * tb; r = areg(k, nb); b = BF[k % 2] + 4 * tb
                c = "0" if k % 16 == 0 else f"v[{d}:{d+3}]"
                a.e(f"{M16} v[{d}:{d+3}], a[{r}:{r+3}], v[{b}:{b+3}], {c}")
                if g < 8 and g % 2 == 0 and k + 1 < NS:
                    q.l(bread(k + 1, g // 2), f"B{k+1}")
                if nl < 4 * NS and nl // 4 < k + NA and g in LG[:int(AS[k])]:
                    aload(a, q, nl // 4, nl % 4); nl += 1
                for fn in side.pop((k, g), []): fn()
                g += 1
    assert not side, side.keys()
    st(6); fs(13)
    T0 = 16
    for i in range(8):
        tb, h = i % 4, i // 4
        q.wait(f"Y{i}")
        for j in range(4):
            a.e(f"v_lshlrev_b32 v{T0+2*j}, 16, v{YR+4*i+j}")
            a.e(f"v_and_b32 v{T0+2*j+1}, s43, v{YR+4*i+j}")
        for j in range(4):
            d = 192 + 16 * (2 * h + j // 2) + 4 * tb + 2 * (j % 2)
            a.e(f"v_pk_add_f32 v[{d}:{d+1}], v[{d}:{d+1}], v[{T0+2*j}:{T0+2*j+1}]")
        for ee in range(2):
            nb = 2 * h + ee; d = 192 + 16 * nb + 4 * tb
            q.l(f"ds_write_b128 v{8+nb}, v[{d}:{d+3}] offset:{4096*tb}", "Ew")
        if h == 1:
            for ii in (2 * tb, 2 * tb + 1):
                for hh in range(2):
                    r = ER(ii) + 4 * hh
                    q.l(f"ds_read_b128 v[{r}:{r+3}], v{24 + 2*(ii%2) + hh} offset:{2048*ii}", f"E{ii}")
    fs(14)
    for i in range(8):
        q.wait(f"E{i}")
        for k in range(4):
            r = ER(i) + 2 * k
            a.e(f"v_pk_add_f32 v[{r}:{r+1}], v[{r}:{r+1}], v[{XF+8*i+2*k}:{XF+8*i+2*k+1}]")
        for k in range(4):
            r = ER(i) + 2 * k
            a.e(f"v_cvt_pk_bf16_f32 v{XF+8*i+k}, v{r}, v{r+1}")
        a.e(f"s_add_u32 s26, s58, {8192*i}")
        q.v(f"buffer_store_dwordx4 v[{XF+8*i}:{XF+8*i+3}], v15, s[36:39], s26 offen {opt.get('omod', 'nt')}")

def ER(i):
    return (96 + 8 * i) if i < 4 else (32 + 8 * (i - 4))

def areg(k, nb):
    return ARING[k % NA] + 4 * nb

def aload(a, q, k, nb):
    s = k % 8
    if nb == 0:
        if k % 16 < 8:
            a.e(f"s_add_u32 s59, {'s52' if k < 16 else 's53'}, {524288 + 32768*(s//4) + 4096*(s%4)}")
        else:
            a.e(f"s_add_u32 s59, {'s50' if k < 16 else 's51'}, {4096*s}")
    r = areg(k, nb)
    q.v(f"buffer_load_dwordx4 a[{r}:{r+3}], v3, s[12:15], s59 offen offset:{1024*nb} sc1", f"A{k}")

def gen_attn(a, name, stamp=False, opt=None):
    dg = [3 + (15 * i) // 4 for i in range(16)]
    opt = dict(dict(ps=1, xe=1, qw=62, dg=dg, mg=[2, 17, 32, 47, 60], rg=[g for g in range(8, 60) if g not in dg][:32], rot=4,
                    kg_=list(range(8, 16)) + list(range(24, 32)), qbe=57, pbe=58, pvg=[4, 57, 60, 60, 60, 61, 61, 61]), **(opt or {}))
    OOL[:] = []
    DROP[:] = opt.get('drop', [])
    ALIGN[0] = opt.get('al', 0)
    Fine.op = 's_memtime' if opt.get('cyc') else 's_memrealtime'
    nP = 16
    L = lambda s: f"{name}_{s}"
    st = Stamper(a, stamp in (1, 5))
    fs = Fine(a, stamp == 2)
    ff = Fine(a, stamp == 3)
    fp = Fine(a, stamp == 6)
    kernel_begin(a, name)
    a.e("s_cmp_ge_u32 s2, 256")
    a.e(f"s_cbranch_scc1 {L('end')}")
    a.e(f"s_load_dwordx2 s[4:5], s[0:1], {KA['ws']}")
    a.e(f"s_load_dwordx2 s[6:7], s[0:1], {KA['x']}")
    a.e(f"s_load_dwordx2 s[40:41], s[0:1], {KA['wq']}")
    a.e(f"s_load_dwordx2 s[8:9], s[0:1], {KA['wk']}")
    a.e(f"s_load_dwordx2 s[96:97], s[0:1], {KA['wup']}")
    a.e(f"s_load_dwordx2 s[44:45], s[0:1], {KA['dw']}")
    a.e(f"s_load_dwordx4 s[48:51], s[0:1], {KA['out']}")
    a.e(f"s_load_dwordx4 s[52:55], s[0:1], {KA['wv']}")
    a.e(f"s_load_dwordx4 s[56:59], s[0:1], {KA['wdn']}")
    a.e("s_and_b32 s20, s2, 7")
    a.e("s_lshl_b32 s20, s20, 5")
    a.e("s_lshr_b32 s21, s2, 3")
    a.e("s_add_u32 s31, s20, s21")
    if opt.get("map") == 1:
        a.e("s_and_b32 s20, s2, 6")
        a.e("s_lshl_b32 s20, s20, 5")
        a.e("s_lshl_b32 s21, s21, 1")
        a.e("s_add_u32 s31, s20, s21")
        a.e("s_and_b32 s20, s2, 1")
        a.e("s_add_u32 s31, s31, s20")
    a.e("s_lshr_b32 s21, s31, 7")
    a.e("s_and_b32 s22, s31, 1")
    a.e("s_bfe_u32 s23, s31, 0x60001")
    a.e("v_lshrrev_b32 v1, 6, v0")
    a.e("v_and_b32 v2, 63, v0")
    a.e("v_readfirstlane_b32 s16, v1")
    a.e("v_lshlrev_b32 v3, 4, v2")
    a.e("s_mul_i32 s24, s21, 4096000")
    N0 = opt.get("n0", 62)
    a.e(f"s_mul_i32 s25, s22, {125 - 2*N0}")
    a.e(f"s_add_i32 s25, s25, {N0}")
    a.e("s_lshl_b32 s27, s23, 16")
    a.e("s_waitcnt lgkmcnt(0)")
    st(0); ff(0)
    def fin_srd(d, n):
        a.e(f"s_and_b32 s{d+1}, s{d+1}, 0xffff")
        a.e(f"s_mov_b32 s{d+2}, {n}")
        a.e(f"s_mov_b32 s{d+3}, 0x00020000")
    q = Seq(a)
    srd_off(a, 32, 6, "s24", 4096000)
    a.e("v_lshrrev_b32 v4, 3, v2")
    a.e("v_and_b32 v5, 7, v2")
    a.e("v_lshlrev_b32 v5, 4, v5")
    a.e("v_lshl_add_u32 v4, v4, 10, v5")
    a.e("s_lshl_b32 s26, s16, 14")
    a.e("s_add_u32 s26, s26, s27")
    a.e("s_lshl_b32 s28, s22, 9")
    a.e("s_add_u32 s26, s26, s28")
    a.e("v_mov_b32 v1, v4")
    a.e("s_mov_b32 s20, s26")
    def xld(s_):
        if s_ % 4 == 0: a.e(f"s_xor_b32 s7, s20, {8192*(s_//8) + 512*((s_//4)%2)}")
        q.v(f"buffer_load_dwordx4 v[{16+4*s_}:{19+4*s_}], v1, s[32:35], s7 offen offset:{128*(s_%4)} {opt.get('xmod', 'nt')}", f"x{s_}")
    NX = opt.get("nx", 16)
    for s_ in range(NX): xld(s_)
    opt["xrest"] = [lambda s_=s_: xld(s_) for s_ in range(NX, 16)]
    fin_srd(96, 1048576)
    touches(a, q, L, opt)
    fin_srd(40, 524288); fin_srd(8, 524288); fin_srd(44, 5120)
    make_srd(a, 12, 4, 0x4000000)
    make_srd(a, 92, 50, 256)
    srd_off(a, 36, 48, "s24", 4096000)
    mi = m_issue(a, q)
    def clear():
        a.e("v_mov_b32 v14, 0")
        a.e("v_lshlrev_b32 v13, 2, v2")
        a.e("s_lshl_b32 s26, s31, 2")
        a.e("s_add_u32 s26, s26, s16")
        a.e("s_lshl_b32 s28, s26, 8")
        a.e(f"s_add_u32 s28, s28, {WS_MX}")
        q.v("buffer_store_dword v14, v13, s[12:15], s28 offen sc1", "St")
        a.e("s_lshl_b32 s28, s31, 5")
        a.e("s_add_u32 s28, s28, s16")
        a.e("s_lshl_b32 s28, s28, 2")
        a.e(f"s_add_u32 s28, s28, {WS_FL}")
        a.e("v_and_b32 v13, 48, v2")
        a.e("s_getreg_b32 s26, hwreg(HW_REG_XCC_ID, 0, 4)")
        a.e("v_cmp_eq_u32 vcc, 48, v13")
        a.e("v_mov_b32 v14, s26")
        a.e("s_nop 0")
        a.e("v_cndmask_b32 v14, 0, v14, vcc")
        q.v("buffer_store_dword v14, v13, s[12:15], s28 offen sc1", "St")
    a.e("s_cmp_ge_u32 s23, 63")
    a.e(f"s_cbranch_scc1 {L('aux')}")
    def emit_aux(q0=q, vm0=list(q.vm)):
        a.label(L("aux"))
        q0.vm, q0.lg = list(vm0), []
        for f in mi: f()
        q0.v("buffer_load_dword v0, v7, s[44:47], 0 offen")
        m_addr(a)
        mfin = m_tile(a, q0)
        mfin()
        q0.all()
        a.e("s_barrier")
        signal(a, L, "sig1a", 0, 0)
        signal(a, L, "sig2a", 1, 8)
        signal(a, L, "sig3a", 2, 4)
        a.e("s_lshl_b32 s20, s21, 1")
        a.e("s_add_u32 s20, s20, s22")
        gen_aux(a, L, st, ff, opt)
        signal(a, L, "sig4a", 0, 12, shard=False)
        for k in range(5, 7): st(k)
        for k in range(15): fs(k)
        if stamp in (4, 6):
            for k in range(16): Fine(a, True)(k)
        for k in range(9, 15): ff(k)
        a.e(f"s_branch {L('fin')}")
    qk_part, pv_part = gen_front(a, q, L, st, ff, mi, clear, opt)
    qf = q
    qk_part()
    def tail_consts():
        t = Asm()
        t.e("s_lshl_b32 s26, s22, 2")
        t.e("s_add_u32 s26, s26, s16")
        t.e("s_lshl_b32 s53, s26, 16")
        t.e(f"s_add_u32 s53, s53, {WS_W3}")
        t.e("s_xor_b32 s52, s53, 0x40000")
        t.e("s_lshl_b32 s58, s26, 7")
        t.e("s_add_u32 s58, s58, s27")
        t.e("s_xor_b32 s54, s31, 1")
        t.e("s_lshl_b32 s54, s54, 3")
        t.e("s_add_u32 s54, s54, s16")
        t.e("s_lshl_b32 s54, s54, 13")
        t.e(f"s_add_u32 s54, s54, {WS_GU + 32768}")
        t.e("s_add_u32 s55, s54, 4096")
        t.e("s_lshl_b32 s26, s22, 15")
        t.e("s_add_u32 s50, s52, s26")
        t.e("s_add_u32 s51, s53, s26")
        t.e("s_lshl_b32 s26, s22, 14")
        t.e("s_add_u32 s52, s52, s26")
        t.e("s_add_u32 s53, s53, s26")
        t.e("s_add_u32 s26, s25, 3")
        t.e("s_and_b32 s26, s26, 3")
        t.e("s_lshl_b32 s48, s26, 15")
        t.e("s_add_u32 s26, s25, 1")
        t.e("s_and_b32 s26, s26, 3")
        t.e("s_lshl_b32 s49, s26, 15")
        t.e("s_lshl_b32 s56, s31, 5")
        t.e("s_add_u32 s56, s56, s16")
        t.e("s_lshl_b32 s56, s56, 2")
        t.e(f"s_add_u32 s56, s56, {WS_FL}")
        t.e("s_xor_b32 s57, s56, 128")
        return [x.strip() for x in t.lines]
    a.e("s_mov_b32 s17, s25")
    a.e(f"s_mov_b32 s101, {f2u(-BIG)}")
    NEAR = ["s_cmp_eq_u32 s21, 0", "s_cselect_b32 s46, s14, 0", "s_mov_b64 s[44:45], s[12:13]"]
    def guard(r):
        return [f"v_add_f32 v{r}, v{r}, v{r+1}", f"v_cmp_nle_f32 vcc, s101, v{r}", "s_cmp_eq_u32 s101, 0", "s_cselect_b64 s[28:29], 0, vcc",
                "s_cmp_lg_u64 s[28:29], 0", f"s_cbranch_scc1 {L('redo')}"]

    def dma_group():
        return "s_and_b32 m0, s18, 0x1ffff", [f"buffer_load_dwordx4 v3, s[8:11], s18 offen offset:{1024*j} {opt.get('kvmod', 'sc1')} lds" for j in range(4)]
    def dma_tile():
        for g in range(4):
            pre, ld = dma_group()
            a.e(pre); a.e("s_nop 0")
            for x in ld: a.e(x)
            a.e(f"s_add_u32 s18, s18, {4096 if g < 3 else 32768 - 3*4096}")
    def place_dma(fill, gaps):
        k = 0
        for g in range(4):
            pre, ld = dma_group()
            fill.setdefault(gaps[k] - 1, []).append(pre)
            for j in range(4):
                fill.setdefault(gaps[k], []).append(ld[j]); k += 1
            fill.setdefault(gaps[k - 1] + 1, []).append(f"s_add_u32 s18, s18, {4096 if g < 3 else 32768 - 3*4096}")
    auxl = cnt_load(4, "v11")
    auxc = ["v_cmp_le_u32 vcc, v7, v14"] + CNT_OK[1:]

    KB = [32, 96]; S = 160; NEGM = 176; E = 192; PK = 200; LS = 204
    VK = 8; VPW = 9; TMP = 10
    MX0 = 208
    def qk_setup():
        a.e("v_and_b32 v4, 15, v2")
        a.e("v_lshrrev_b32 v5, 4, v2")
        a.e("v_and_b32 v6, 0x27, v2")
        a.e("v_and_b32 v7, 8, v2")
        a.e("v_lshl_add_u32 v6, v7, 1, v6")
        a.e("v_and_b32 v7, 16, v2")
        a.e("v_lshrrev_b32 v7, 1, v7")
        a.e("v_add_lshl_u32 v6, v6, v7, 4")
        a.e("s_lshl_b32 s29, s16, 14")
        a.e(f"v_add_u32 v{VK}, s29, v6")
        a.e("s_lshl_b32 s29, s16, 11")
        a.e(f"s_add_u32 s29, s29, {LDS_P}")
        a.e(f"v_lshl_add_u32 v{VPW}, v2, 3, s29")
        for i in range(4):
            a.e(f"v_mov_b32 v{LS+i}, 0")
        for i in range(4):
            a.e(f"v_mov_b32 v{MX0+i}, 0xff800000")
    qk_setup()
    qf.wait("kv0", "qd")
    qf.all(vm=False)
    a.e("s_barrier")
    st(2); ff(10)
    def kread(par, s, imm):
        r = KB[par] + 4 * s
        return f"ds_read_b128 v[{r}:{r+3}], v{VK} offset:{imm + 1024*s}"
    def chain(par, qb, c0):
        out = []
        for s in range(16):
            k = KB[par] + 4 * s; q = 64 * qb + 4 * s; d = S + 4 * qb
            c = c0 if s == 0 else f"v[{d}:{d+3}]"
            out.append(f"{M16} v[{d}:{d+3}], v[{k}:{k+3}], a[{q}:{q+3}], {c}")
        return out
    q = Seq(a)
    mf = [m for qb in range(4) for m in chain(0, qb, "0")]
    ST = 212
    tc = tail_consts() + NEAR + [
        "s_mul_i32 s28, s16, 34", "s_lshl_b32 s29, s23, 6", "s_add_u32 s28, s28, s29", "s_sub_u32 s28, s28, 2",
        f"v_add_u32 v{ST+16}, s28, v2",
        f"v_max_i32 v{ST+17}, 0, v{ST+16}", f"v_min_i32 v{ST+17}, {T-1}, v{ST+17}", f"v_lshrrev_b32 v{ST+18}, 6, v{ST+17}", f"v_and_b32 v{ST+17}, 63, v{ST+17}",
        f"v_lshlrev_b32 v{ST+17}, 3, v{ST+17}", f"v_lshl_add_u32 v{ST+17}, v{ST+18}, 12, v{ST+17}",
        "s_lshr_b32 s6, s31, 7", "s_lshl_b32 s6, s6, 18", f"s_add_u32 s6, s6, {WS_ST}",
        "s_lshl_b32 s28, s16, 1", "s_add_u32 s28, s28, s23", "s_sub_u32 s28, s28, 1", "s_max_i32 s28, s28, 0", "s_min_i32 s28, s28, 62",
        "s_sub_u32 s28, s28, s23", "s_lshl_b32 s28, s28, 1", "s_add_u32 s28, s28, s31", "s_lshl_b32 s28, s28, 16",
        "s_xor_b32 s29, s16, 1", f"s_mul_i32 s29, s29, {62*512}", "s_add_u32 s28, s28, s29", f"s_add_u32 s7, s28, {WS_GU}",
        "s_lshl_b32 s29, s16, 10", f"s_add_u32 s42, s29, {LDS_HALO}",
        "s_xor_b32 s28, s31, 1", "s_lshl_b32 s28, s28, 1", "s_add_u32 s28, s28, s16", "s_lshl_b32 s28, s28, 9", f"s_add_u32 s28, s28, {WS_MX}",
        f"v_lshl_add_u32 v{ST+18}, v2, 3, s28", f"v_writelane_b32 v{ST+18}, s57, 1",
        f"s_mul_i32 s28, s16, {34*8}", f"s_add_u32 s28, s28, {LDS_STT}", f"v_lshl_add_u32 v{ST+19}, v2, 3, s28"]
    if opt.get("qe"):
        for n in range(12): q.l(kread(0, n, 0), f"K{n}")
        for n in range(64):
            q.e(mf[n], need=(f"K{n}",))
            if n < 4: q.l(kread(0, 12 + n, 0), f"K{12+n}")
            elif tc: a.e(tc.pop(0))
    else:
        a.e(f"v_add_u32 v7, {LDS_XS}, v3")
        rd = []
        for n in range(64):
            qb, s = n // 16, n % 16
            rd.append((f"ds_read_b128 a[{64*qb+4*s}:{64*qb+4*s+3}], v7 offset:{16384*((s%8)//2) + 8192*(s//8) + 2048*qb + 1024*(s%2)}", f"Q{n}"))
            if qb == 0: rd.append((kread(0, s, 0), f"Q{n}"))
        for _ in range(14): q.l(*rd.pop(0))
        for n in range(64):
            if n % 2 == 0: q.wait(f"Q{n+1}")
            a.e(mf[n])
            for _ in range(2 if n < 14 else 1):
                if rd: q.l(*rd.pop(0))
            for _ in range(0 if n < 12 else 1 if rd else 3):
                if tc: a.e(tc.pop(0))
        a.label(L("qk_again"))
        a.e("s_barrier")
    assert not tc
    a.e("s_nop 7")
    for qb in range(4):
        d = S + 4 * qb
        a.e(f"v_max3_f32 v{E+qb}, v{d}, v{d+1}, v{d+2}")
        a.e(f"v_max3_f32 v{E+qb}, v{E+qb}, v{d+3}, v{MX0+qb}")
    def group_reduce(r, t, op):
        for sw in ("v_permlane16_swap_b32", "v_permlane32_swap_b32"):
            for qb in range(4):
                a.e(f"v_mov_b32 v{t+qb}, v{r+qb}")
            a.e("s_nop 1")
            for qb in range(4):
                a.e(f"{sw} v{r+qb}, v{t+qb}")
            a.e("s_nop 1")
            for qb in range(4):
                a.e(f"{op} v{r+qb}, v{r+qb}, v{t+qb}")
    group_reduce(E, E + 4, "v_max_f32")
    a.e("s_lshl_b32 s29, s16, 8")
    a.e(f"s_add_u32 s29, s29, {LDS_MX}")
    a.e(f"v_lshl_add_u32 v{TMP}, v4, 4, s29")
    a.e(f"ds_write_b128 v{TMP}, v[{E}:{E+3}]")
    a.e(f"v_xor_b32 v{TMP}, 256, v{TMP}")
    a.e("s_waitcnt vmcnt(0) lgkmcnt(0)")
    a.e("s_barrier")
    a.e(f"ds_read_b128 v[{E+4}:{E+7}], v{TMP}")
    for s in range(8):
        a.e(kread(1, s, 32768))
    a.e("s_waitcnt lgkmcnt(8)")
    for qb in range(4):
        a.e(f"v_max_f32 v{E+qb}, v{E+qb}, v{E+4+qb}")
    for qb in range(4):
        for j in range(4):
            a.e(f"v_sub_f32 v{NEGM+4*qb+j}, 0, v{E+qb}")
    a.e("s_waitcnt lgkmcnt(4)")
    for s in range(8, 16):
        a.e(kread(1, s, 32768))
    for qb in range(4):
        for j in range(4):
            a.e(f"v_add_f32 v{S+4*qb+j}, v{S+4*qb+j}, v{NEGM+4*qb}")
    def softmax_ops(qb, par):
        e = E + 4 * (qb % 2); p = PK + 2 * (qb % 2); d = S + 4 * qb
        ex = [f"v_exp_f32{opt.get('e64', '')} v{e+j}, v{d+j}" for j in range(4)]
        ad = [f"v_add_f32 v{LS+qb}, v{LS+qb}, v{e+j}" for j in range(4)]
        cv = [f"v_cvt_pk_bf16_f32 v{p+j}, v{e+2*j}, v{e+2*j+1}" for j in range(2)]
        wr = f"ds_write_b64 v{VPW}, v[{p}:{p+1}] offset:{par*4096 + qb*512}"
        return ex, ad, cv, wr
    ex, ad, cv, wr = softmax_ops(0, 0)
    for x in ex + ["s_nop 0"] + cv + ad + [wr]: a.e(x)
    a.e("s_waitcnt lgkmcnt(1)")
    fill = {}
    ops = []
    for qb in range(1, 4):
        ex, ad, cv, wr = softmax_ops(qb, 0)
        ops += ex + [ad[0]] + cv + ad[1:] + [wr]
    for i, x in enumerate(ops):
        fill.setdefault(i * 15 // len(ops), []).append(x)
    ROT = opt.get("rot", 0)
    emit_interval(a, chain(1, 0, f"v[{NEGM}:{NEGM+3}]") + chain(1, 1, f"v[{NEGM+4}:{NEGM+7}]")[:ROT], fill)
    a.e("s_waitcnt lgkmcnt(0)")
    a.e("s_sub_u32 s17, s17, 1")
    a.e("s_barrier")

    XT = ["buffer_load_dword v0, v7, s[32:35], s40 offen", "s_add_u32 s40, s40, 1024"]
    def qk_interval(par, lo=0, hi=None):
        mf = []
        for c in range(5):
            qb = (c + 1) % 4
            mf += chain(par if c < 3 else par ^ 1, qb, f"v[{NEGM+4*qb}:{NEGM+4*qb+3}]")
        mf = mf[ROT:64 + ROT]
        fill = {}
        F_ = lambda g, x: fill.setdefault(g, []).append(x)
        rgaps = opt.get("kg_", [1, 2, 3, 12, 13, 14, 16, 17, 18, 28, 29, 30, 32, 33, 34, 35])
        if par == 1: F_(rgaps[0] - 1, f"v_xor_b32 v{VK}, 0x10000, v{VK}")
        imm = 32768 * (par ^ 1)
        for s in range(16):
            F_(rgaps[s], kread(par ^ 1, s, imm))
        sm = opt.get("sm", [4, 5, 6, 7, 8, 8, 9, 10, 10, 11, 11])
        for c in range(4):
            ex, ad, cv, wr = softmax_ops(c, par)
            for g, x in zip(sm, ex + cv + [wr] + ad): F_(16 * c + g - ROT, x)
        kw = 47 - ROT
        nwr = sum(1 for c in range(4) if rgaps[-1] <= 16 * c + sm[6] - ROT <= kw)
        F_(kw, f"s_waitcnt lgkmcnt({nwr})")
        F_(kw + 1, "s_sub_u32 s17, s17, 1")
        if par == 1:
            F_(kw - 3, "s_cmp_lt_u32 s17, s40")
            fill.setdefault(kw - 2, []).extend([f"s_cbranch_scc1 {L('touch')}", L("touch_ret") + ":"])
        if stamp == 7:
            F_(kw + 2, "s_mov_b32 m0, s17"); F_(kw + 3, "v_writelane_b32 v240, s60, m0"); F_(kw + 3, "s_memtime s[60:61]")
        if opt.get("kt"):
            F_(opt["kt"][1], "buffer_load_dword v0, v3, s[8:11], s41 offen sc1"); F_(46, "s_add_u32 s41, s41, 32768")
        XE = opt.get("xe", 0)
        F_(59 if XE else 62, "s_cmp_eq_u32 s17, 0")
        if XE: F_(60, f"s_cbranch_scc1 {L('qk_exit')}")
        F_(opt.get("qw", 63), "s_waitcnt lgkmcnt(0)"); F_(63, "s_barrier")
        for c in range(4):
            last, first = 16 * c - 1 - ROT, 16 * c + sm[0] - ROT
            n = first - last + sum(len([x for x in fill.get(g % 64, []) if not x.endswith(":")]) for g in range(last, first))
            g = last + 2
            while n < 8:
                F_(g % 64, "s_nop 0"); n += 1; g += 1
                assert g <= first
        emit_interval(a, mf, fill, lo, hi)

    if stamp == 7:
        a.e("v_mov_b32 v240, 0")
        a.e("s_memtime s[60:61]")
    a.e("v_and_b32 v11, 3, v2")
    a.e("v_lshlrev_b32 v11, 6, v11")
    a.e("v_mov_b32 v7, 64")
    a.e("v_writelane_b32 v11, 8, 4")
    a.e("v_writelane_b32 v7, 4, 4")
    if opt.get("kt"):
        a.e("s_lshr_b32 s41, s2, 4")
        a.e("s_lshl_b32 s41, s41, 1")
        a.e("s_add_u32 s41, s41, s16")
        a.e("s_lshl_b32 s41, s41, 10")
        a.e(f"s_add_u32 s41, s41, {32768 * opt['kt'][0]}")
    a.e("s_lshr_b32 s40, s31, 1")
    a.e(f"s_and_b32 s40, s40, {opt.get('xs', 15)}")
    a.e("s_lshl_b32 s40, s40, 1")
    a.e(f"s_add_u32 s40, s40, {opt.get('xb', 12)}")
    st(3); ff(11)
    QB = opt.get("qbe", 0)
    if QB:
        a.e(f"s_branch {L('qk_in')}")
        a(".p2align 6")
        a.label(L("qk_loop"))
        XE = opt.get("xe", 0)
        qk_interval(0, QB)
        if not XE: a.e(f"s_cbranch_scc1 {L('qk_done')}")
        a.label(L("qk_in"))
        qk_interval(1)
        if not XE: a.e(f"s_cbranch_scc1 {L('qk_done')}")
        qk_interval(0, 0, QB)
        a.e(f"s_branch {L('qk_loop')}")
        a.label(L("qk_exit"))
        a.e("s_waitcnt lgkmcnt(0)")
        a.e("s_barrier")
    else:
        a(".p2align 6")
        a.label(L("qk_loop"))
        qk_interval(1)
        a.e(f"s_cbranch_scc1 {L('qk_done')}")
        qk_interval(0)
        a.e(f"s_cbranch_scc0 {L('qk_loop')}")
    a.label(L("qk_done"))
    def tl(srd, so):
        a.e("v_lshlrev_b32 v12, 7, v2")
        a.e(f"buffer_load_dword v0, v12, s[{srd}:{srd+3}], {so} offen")
    def b_code():
        a.e("s_getpc_b64 s[28:29]")
        a.label(L("pc0"))
        a.e(f"s_sub_u32 s28, s28, {L('pc0')} - {L('qk_done')}")
        a.e("s_subb_u32 s29, s29, 0")
        a.e("s_lshr_b32 s30, s2, 3")
        a.e("s_lshl_b32 s30, s30, 1")
        a.e("s_add_u32 s30, s30, s16")
        a.e("s_lshl_b32 s30, s30, 10")
        a.e("v_lshl_add_u32 v12, v2, 4, s30")
        a.e(f"v_min_u32 v12, {L('end')} - {L('qk_done')}, v12")
        a.e("global_load_dword v0, v12, s[28:29]")
    def b_w(part):
        def f():
            a.e("s_lshr_b32 s30, s2, 3")
            a.e("s_lshl_b32 s30, s30, 1")
            a.e("s_add_u32 s30, s30, s16")
            a.e("s_lshl_b32 s30, s30, 13")
            a.e(f"s_add_u32 s30, s30, {WS_W3 + 524288*part}")
            tl(12, "s30")
        return f
    foldl = "buffer_load_dword v13, off, s[92:95], 0 offset:12 sc1"
    def b_c3():
        a.e("s_waitcnt vmcnt(0)")
        poll(a, Seq(a), L, "qk_c3", [auxl], auxc, "aux", slp=16)
    def b_c4():
        a.e("s_waitcnt vmcnt(0)")
        poll(a, Seq(a), L, "qk_c4", [foldl], ["v_readfirstlane_b32 s28, v13", "s_cmp_ge_u32 s28, 4"], "aux", slp=16)
    def b_small():
        a.e("s_mov_b32 m0, s42")
        for c in range(8):
            a.e(f"buffer_load_dwordx2 v[{ST+2*c}:{ST+2*c+1}], v{ST+17}, s[12:15], s6 offen offset:{512*c} sc1")
        a.e("buffer_load_dwordx4 v3, s[12:15], s7 offen sc1 lds")
        a.e(f"buffer_load_dword v0, v{ST+18}, s[12:15], 0 offen sc1")
    def b_stat():
        a.e("s_waitcnt vmcnt(0)")
        for ct in range(1, 8):
            a.e(f"v_pk_add_f32 v[{ST}:{ST+1}], v[{ST}:{ST+1}], v[{ST+2*ct}:{ST+2*ct+1}]")
        a.e(f"v_mul_f32 v{ST}, {f2u(1/512)}, v{ST}")
        a.e(f"v_mul_f32 v{ST+1}, {f2u(1/512)}, v{ST+1}")
        a.e(f"v_fma_f32 v{ST+1}, -v{ST}, v{ST}, v{ST+1}")
        a.e(f"v_max_f32 v{ST+1}, 0, v{ST+1}")
        a.e(f"v_add_f32 v{ST+1}, {f2u(1e-5)}, v{ST+1}")
        a.e(f"v_rsq_f32 v{ST+1}, v{ST+1}")
        a.e(f"v_cmp_gt_u32 vcc, {T}, v{ST+16}")
        a.e(f"v_mul_f32 v{ST}, v{ST}, v{ST+1}")
        a.e(f"v_sub_f32 v{ST}, 0, v{ST}")
        a.e(f"v_cndmask_b32 v{ST+2}, 0, v{ST+1}, vcc")
        a.e(f"v_cndmask_b32 v{ST+3}, 0, v{ST}, vcc")
        a.e(f"ds_write_b64 v{ST+19}, v[{ST+2}:{ST+3}]")
    def b_x(r0):
        def f():
            a.e("s_lshl_b32 s30, s22, 1")
            a.e("s_add_u32 s30, s30, s16")
            a.e("s_lshl_b32 s30, s30, 14")
            a.e("s_add_u32 s30, s30, s27")
            a.e(f"s_add_u32 s30, s30, {r0*1024}")
            tl(32, "s30")
        return f
    tb_fns = B = dict(code=b_code, l3=lambda: a.e(auxl), c3=b_c3, small=b_small, stat=b_stat, x0=b_x(0), x8=b_x(8), l4=lambda: a.e(foldl), c4=b_c4, w1=b_w(1), w0=b_w(0))
    st(4); fs(0); ff(13); fp(0)
    if stamp == 7:
        a.e("s_lshl_b32 s26, s2, 1")
        a.e("s_add_u32 s26, s26, s16")
        a.e("s_lshl_b32 s26, s26, 8")
        a.e(f"s_add_u32 s26, s26, {0x3F00000}")
        a.e("v_lshlrev_b32 v241, 2, v2")
        a.e("buffer_store_dword v240, v241, s[12:15], s26 offen")
    q = Seq(a)
    group_reduce(LS, E, "v_add_f32")
    a.e(f"v_mov_b32 v{E+2}, v{NEGM}")
    a.e(f"v_mov_b32 v{E+3}, v{LS}")
    for qb in range(1, 4):
        a.e(f"v_cmp_eq_u32 vcc, {qb}, v5")
        a.e("s_nop 1")
        a.e(f"v_cndmask_b32 v{E+2}, v{E+2}, v{NEGM+4*qb}, vcc")
        a.e(f"v_cndmask_b32 v{E+3}, v{E+3}, v{LS+qb}, vcc")
    a.e(f"v_or_b32 v{E+3}, 0x80000000, v{E+3}")
    a.e("s_lshl_b32 s28, s16, 9")
    a.e("s_lshl_b32 s30, s31, 10")
    a.e("s_add_u32 s30, s30, s28")
    a.e(f"s_add_u32 s30, s30, {WS_MX}")
    a.e(f"s_add_u32 s28, s28, {LDS_ML}")
    a.e(f"v_lshlrev_b32 v{E+4}, 3, v2")
    a.e(f"v_add_u32 v{TMP}, s28, v{E+4}")
    q.l(f"ds_write_b64 v{TMP}, v[{E+2}:{E+3}]")
    a.e(f"v_add_u32 v{TMP}, {LDS_ML + 4}, v{E+4}")
    tb_fns["stat"]()
    q.all(vm=False)
    fs(1)
    a.e("s_barrier")
    fs(2)
    q.l(f"ds_read2st64_b32 v[{E}:{E+1}], v{TMP} offset0:0 offset1:2", "lsum")
    a.e("s_lshl_b32 s28, s16, 5")
    conv_addr(a, 16, "s28")
    q.wait("lsum")
    for x in guard(E): a.e(x)
    release(a, q, L, "rm", None, f"buffer_store_dwordx2 v[{E+2}:{E+3}], v{E+4}, s[12:15], s30 offen")
    cv = Conv(a, q, 16)
    cv.prep()
    fs(3)
    PF = opt.get("pf", 10); n = 0
    for j in range(20):
        if j in (0, 2, 4, 6, 8, 11, 14, 17): fp(1 + (0, 2, 4, 6, 8, 11, 14, 17).index(j))
        cv.row(j)
        if j >= opt.get("qa", 5):
            for _ in range(3):
                if n < 4 * PF:
                    aload(a, q, n // 4, n % 4); n += 1
    while n < 4 * PF:
        aload(a, q, n // 4, n % 4); n += 1
    fs(4)
    a.e(f"s_branch {L('tail')}")
    a.label(L("touch"))
    THR = 2 * int(opt.get("blocks", "2")[0]) + 2
    a.e(f"s_cmp_eq_u32 s40, {THR}")
    a.e(f"s_cbranch_scc1 {L('touchb')}")
    a.e(f"s_mov_b32 s40, {THR}")
    B["x0"](); B["x8"]()
    a.e(f"s_branch {L('touch_ret')}")
    a.label(L("touchb"))
    a.e("s_lshr_b32 s26, s17, 1")
    spec = opt.get("blocks", "2:l3 1:c3,small")
    blocks = {int(x.split(":")[0]): [B[y] for y in x.split(":")[1].split(",")] for x in spec.split()}
    for kx, fns in blocks.items():
        a.e(f"s_cmp_lg_u32 s26, {kx}")
        a.e(f"s_cbranch_scc1 {L('touch%d' % kx)}")
        for f in fns: f()
        a.e(f"s_branch {L('touch_ret')}")
        a.label(L("touch%d" % kx))
    a.e(f"s_branch {L('touch_ret')}")

    VB = [16, 80]; PR = [144, 160]
    VV = 8; VPR = 9; PH = opt.get('ph', 2)
    def oreg(db, qb):
        return (f"a[{4*qb}:{4*qb+3}]", None) if db == 0 else (f"v[{16*db+4*qb}:{16*db+4*qb+3}]", 16 * db + 4 * qb)
    def vread(par, db, kb):
        r = VB[par] + 4 * db + 2 * kb
        return f"ds_read_b64_tr_b16 a[{r}:{r+1}], v{VV if db < 8 else 11} offset:{32768*par + 16384*kb + 512*(db%8)}"
    def pvm(par, db, first=False):
        out = []
        for qb in range(4):
            d = oreg(db, qb)[0]; v = VB[par] + 4 * db; p = PR[par] + 4 * qb
            out.append(f"{M16} {d}, a[{v}:{v+3}], a[{p}:{p+3}], {'0' if first else d}")
        return out
    def pv_setup():
        a.e("s_sub_u32 s19, s16, 2")
        for x in tail_consts(): a.e(x)
        a.e("v_lshrrev_b32 v4, 5, v2")
        a.e("v_lshlrev_b32 v4, 8, v4")
        a.e("v_and_b32 v5, 2, v2")
        a.e("v_lshl_add_u32 v4, v5, 6, v4")
        a.e("v_and_b32 v5, 28, v2")
        a.e("v_lshl_add_u32 v4, v5, 2, v4")
        a.e("v_and_b32 v5, 1, v2")
        a.e("v_lshl_add_u32 v4, v5, 3, v4")
        a.e("s_lshl_b32 s29, s19, 13")
        a.e("s_lshl_b32 s28, s22, 12")
        a.e("s_add_u32 s28, s28, s29")
        a.e("v_add_u32 v11, s28, v4")
        a.e(f"v_xor_b32 v{VV}, 0x1000, v11")
        a.e("s_lshl_b32 s29, s19, 12")
        a.e("s_add_u32 s29, s29, s48")
        a.e("v_add_u32 v10, s29, v3")
        a.e("s_lshl_b32 s40, s31, 2")
        a.e("s_add_u32 s40, s40, s19")
        a.e("s_lshl_b32 s40, s40, 14")
        a.e(f"s_add_u32 s40, s40, {WS_GU + 32768}")
        a.e("s_lshl_b32 s28, s31, 16")
        a.e(f"s_add_u32 s28, s28, {WS_GU}")
        a.e("s_sub_u32 s28, s28, s10")
        a.e("s_add_u32 s98, s4, s28")
        a.e("s_addc_u32 s99, s5, 0")
        a.e("s_and_b32 s99, s99, 0xffff")
        a.e("s_add_u32 s100, s10, 65536")
        if opt.get("xr", 1):
            a.e("s_lshl_b32 s28, s22, 15")
            a.e("s_add_u32 s28, s28, s27")
            a.e("s_sub_u32 s3, 4096000, s28")
            a.e("s_add_u32 s3, s3, s100")
            a.e("s_add_u32 s96, s32, s28")
            a.e("s_addc_u32 s97, s33, 0")
            a.e("s_sub_u32 s96, s96, s100")
            a.e("s_subb_u32 s97, s97, 0")
        a.e(f"s_mov_b32 s29, {LDS_P}")
        a.e(f"v_lshl_add_u32 v{VPR}, v2, 3, s29")
        a.e(f"v_add_u32 v1, {LDS_ML + 4 - LDS_P}, v{VPR}")
        for g in range(1, 4): a.e(f"v_add_u32 v{4+g}, {4096*g}, v3")
    def pv_zero():
        pass
    def emit_pv_again():
        a.label(L("pv"))
        pv_setup()
        a.e("s_lshl_b32 s18, s19, 14")
        a.e("s_add_u32 s18, s18, 65536")
        dma_tile()
        pv_zero()
        a.e("s_barrier")
        a.e("s_waitcnt vmcnt(16)")
        a.e("s_barrier")
        dma_tile()
        for db in range(16):
            for kb in range(2):
                a.e(vread(0, db, kb))
            if db % 4 == 3: a.e("s_waitcnt lgkmcnt(4)")
        a.e(f"s_waitcnt vmcnt({nP}) lgkmcnt(0)")
        a.e(f"s_branch {L('pv_go')}")
    def taps():
        a.e("v_lshrrev_b32 v12, 5, v2")
        a.e("v_lshl_add_u32 v12, v12, 9, v3")
        a.e("s_lshl_b32 s28, s22, 9")
        out = []
        for i in range(3):
            a.e(f"s_mov_b32 m0, {LDS_TAP + 1024*i}")
            a.e(f"s_add_u32 s29, s28, {2048*i}")
            qf.v("buffer_load_dwordx4 v12, s[44:47], s29 offen lds")
        for x in NEAR: a.e(x)
    def setup1():
        pv_setup()
        a.e(f"s_mov_b32 s101, {f2u(-BIG)}")
    pv_part(setup1, [vread(0, db, kb) for db in range(16) for kb in range(2)], taps)
    a.label(L("pv_go"))
    a.e("s_lshl_b32 s18, s19, 14")
    a.e("s_add_u32 s18, s18, 131072")
    a.e("s_sub_u32 s17, s25, 1")
    a.e("s_barrier")

    pvq = []
    MR = 12; MO = 4; AL = 88; TT = 96; RX = 16
    mll = [f"buffer_load_dwordx2 v[{MR+2*w}:{MR+2*w+1}], v9, s[12:15], s42 offen offset:{512*w} {opt.get('pm', 'sc1')}" for w in range(2)]
    ol = f"buffer_load_dword v11, off, s[12:15], s57 offset:24 {opt.get('pm', 'sc1')}"
    def pv_interval(par, last=False, lo=0, hi=None, first=False):
        mf = [m for db in range(16 - PH, 16) for m in pvm(par, db)]
        if first:
            z = [f"v_pk_mul_f32 v[{i}:{i+1}], 0, 0" for i in range(256 - 16 * PH, 256, 2)]
            mf = [z[2 * i] + "\n    " + z[2 * i + 1] for i in range(4 * PH)]
        for db in range(16 if last else 16 - PH):
            mf += pvm(par ^ 1, db, first)
        fill = {}
        for qb in range(4):
            p = PR[par ^ 1] + 4 * qb
            fill.setdefault(opt.get('pg', [0, 0, 1, 1])[qb], []).append(f"ds_read2st64_b64 a[{p}:{p+3}], v{VPR} offset0:{8*(par^1)+qb} offset1:{8*(par^1)+4+qb}")
        rg = opt.get("rg", [8 + 3 * (i // 2) + (i % 2) for i in range(32)])
        fill.setdefault(4 * PH - 1, []).append(f"s_waitcnt lgkmcnt({0 if last else sum(1 for g in rg if g < 4 * PH - 1)})")
        if last:
            fs(0); fp(0)
            q = Seq(a)
            ops = []
            for sp in range(4):
                for qb in range(4):
                    o = []
                    if sp == 0:
                        o += [f"v_accvgpr_read_b32 v{4+j}, a{4*qb+j}" for j in range(4)]
                        lo = 4
                    else:
                        lo = oreg(2 * sp, qb)[1]
                    hi = oreg(2 * sp + 1, qb)[1]
                    o += [f"v_cvt_pk_bf16_f32 v{hi+3}, v{hi+2}, v{hi+3}", f"v_cvt_pk_bf16_f32 v{hi+2}, v{hi}, v{hi+1}",
                          f"v_cvt_pk_bf16_f32 v{hi}, v{lo}, v{lo+1}", f"v_cvt_pk_bf16_f32 v{hi+1}, v{lo+2}, v{lo+3}"]
                    if qb == 0: o.append(f"s_add_u32 s41, s40, {4096*sp}")
                    o.append(f"buffer_store_dwordx4 v[{hi}:{hi+3}], v3, s[44:47], s41 offen offset:{1024*qb} {opt.get('sm_', 'nt')}")
                    ops += [(4 * PH + 8 * sp + 4 + qb + 6, x) for x in o]
            late = [lambda x=x: a.e(x) for x in ["v_lshlrev_b32 v9, 3, v2", "s_xor_b32 s26, s31, 1", "s_lshl_b32 s26, s26, 10", f"s_add_u32 s42, s26, {WS_MX}"]]
            late += [lambda w=w: q.v(mll[w], "ML") for w in range(2)]
            late += [lambda: a.e("v_subrev_u32 v8, 4, v1"),
                     lambda: q.l(f"ds_read2st64_b64 v[{MO}:{MO+3}], v8 offset0:0 offset1:1", "MLo")]
            late += [lambda x=x: a.e(x) for x in ["v_and_b32 v1, 15, v2", "v_lshlrev_b32 v1, 2, v1", "s_xor_b32 s40, s40, 0x10000", "s_mov_b32 s43, 0xffff0000", "v_mov_b32 v0, 1"]]
            na = 0
            for i, m in enumerate(mf):
                a.e(m)
                for f in fill.get(i, []): a.e(f)
                if i == 12:
                    fs(1)
                    a.e("s_barrier")
                    fs(2)
                    q.l("ds_read2st64_b32 v[8:9], v1 offset0:0 offset1:2", "lsum")
                if i == 17:
                    q.wait("lsum")
                    for x in guard(8): a.e(x)
                if i > 12:
                    n = 0
                    while ops and ops[0][0] <= i and n < 3:
                        x = ops.pop(0)[1]; n += 1
                        if x.startswith("buffer"): q.v(x, "Ost")
                        else: a.e(x)
                    if n and not ops: fp(1)
                    if n == 0:
                        if not ops and late: late.pop(0)()
                        else: a.e("s_nop 0")
            assert not ops
            while late: late.pop(0)()
            fs(3)
            pvq.append((q, na))
            return
        F_ = lambda g, x: fill.setdefault(g, []).append(x)
        G = opt["pvg"]
        if par == 0:
            F_(G[0], f"v_xor_b32 v{VV}, 0x10000, v{VV}"); F_(G[0], "v_xor_b32 v11, 0x10000, v11")
        for i in range(32): F_(rg[i], vread(par, i // 2, i % 2))
        dg = opt["dg"]
        for g in range(4):
            F_(opt["mg"][g], "s_and_b32 m0, s18, 0x1ffff" if g == 0 else "s_add_u32 m0, m0, 4096")
            for j in range(4):
                F_(dg[4 * g + j], f"buffer_load_dwordx4 v{3 if g == 0 else 4 + g}, s[8:11], s18 offen offset:{1024*j} sc1 lds")
        F_(opt["mg"][4], "s_add_u32 s18, s18, 32768")
        sw = ["s_cmp_eq_u32 s17, 3", "s_cselect_b64 s[8:9], s[98:99], s[8:9]", "s_cselect_b32 s10, s100, s10",
              "s_cmp_eq_u32 s17, 1", "s_cselect_b64 s[8:9], s[96:97], s[8:9]", "s_cselect_b32 s10, s3, s10"]
        for n in (0, 3):
            gs = G[2 + n:5 + n]
            assert (gs[2] < min(dg[0], G[1])) or (gs[0] > max(dg[-1], G[1]))
            assert not any(gs[0] < m <= gs[2] for m in opt["mg"] + [G[1]])
            for g, x in zip(gs, sw[n:n + 3]): F_(g, x)
        F_(G[1], "s_sub_u32 s17, s17, 1")
        F_(61, "s_cmp_eq_u32 s17, 0")
        if not first: F_(62, f"s_cbranch_scc1 {L('pv_exit%d' % par)}")
        fill.setdefault(63, []).extend([f"s_waitcnt vmcnt({nP}) lgkmcnt(0)", "s_barrier"])
        emit_interval(a, mf, fill, lo, hi)

    st(3); ff(11)
    PB = opt.get("pbe", 0)
    if PB:
        pv_interval(1, first=True)
        a.e(f"s_branch {L('pv_in')}")
        a(".p2align 6")
        a.label(L("pv_loop"))
        pv_interval(0, False, PB)
        if not opt.get("xe"): a.e(f"s_cbranch_scc1 {L('pv_last1')}")
        pv_interval(1)
        if not opt.get("xe"): a.e(f"s_cbranch_scc1 {L('pv_last0')}")
        a.label(L("pv_in"))
        pv_interval(0, False, 0, PB)
        a.e(f"s_branch {L('pv_loop')}")
    else:
        a(".p2align 6")
        a.label(L("pv_loop"))
        pv_interval(1)
        a.e(f"s_cbranch_scc1 {L('pv_last0')}")
        pv_interval(0)
        a.e(f"s_cbranch_scc0 {L('pv_loop')}")
    if opt.get("xe"):
        a.label(L("pv_exit0"))
        pv_interval(0, False, 63)
    a.label(L("pv_last1"))
    pv_interval(1, True)
    a.e(f"s_branch {L('pv_stage')}")
    if opt.get("xe"):
        a.label(L("pv_exit1"))
        pv_interval(1, False, 63)
    a.label(L("pv_last0"))
    pv_interval(0, True)
    a.label(L("pv_stage"))
    st(4); ff(13)
    q, n = pvq[0]
    assert pvq[1][0].vm == q.vm and pvq[1][0].lg == q.lg
    fp(2)
    release(a, q, L, "ro", "Ost", "buffer_store_dword v0, off, s[12:15], s56 offset:24",
            [x for sp in range(4) for x in [f"s_xor_b32 s41, s40, {0x10000 + 4096*sp}"] +
             [f"buffer_store_dwordx4 {oreg(2*sp+1, qb)[0]}, v3, s[12:15], s41 offen offset:{1024*qb} sc1" for qb in range(4)]])
    fp(3)
    poll(a, q, L, "ml", mll, [f"v_and_b32 v8, v{MR+1}, v{MR+3}", "v_cmp_gt_i32 vcc, 0, v8", "s_nop 1", "s_cmp_eq_u64 vcc, -1"], "ML", slp=1)
    q.wait("MLo")
    for x in [f"v_add_f32 v{MR+1}, v{MR+1}, v{MR+3}", f"v_add_f32 v{MO+1}, v{MO+1}, v{MO+3}",
              f"v_min_f32 v8, v{MR}, v{MO}", f"v_sub_f32 v{MR}, v8, v{MR}", f"v_sub_f32 v{MO}, v8, v{MO}",
              f"v_exp_f32 v{MR}, v{MR}", f"v_exp_f32 v{MO}, v{MO}", f"v_mul_f32 v{MR+1}, v{MR+1}, v{MR}",
              f"v_fmac_f32 v{MR+1}, v{MO+1}, v{MO}", f"v_mul_f32 v{MR+1}, {f2u(XSC)}, v{MR+1}", f"v_rcp_f32 v{MR+1}, v{MR+1}", "s_nop 0",
              f"v_mul_f32 v{MO}, v{MO}, -v{MR+1}", f"v_mul_f32 v{MR}, v{MR}, -v{MR+1}"]: a.e(x)
    for tb in range(4):
        q.l(f"ds_bpermute_b32 v{AL+2*tb}, v1, v{MO} offset:{64*tb}", "AL")
        q.l(f"ds_bpermute_b32 v{AL+2*tb+1}, v1, v{MR} offset:{64*tb}", "AL")
    q.wait("AL")
    for db in range(8, 16):
        for qb in range(4):
            r = oreg(db, qb)[1]
            for j in (0, 2):
                a.e(f"v_pk_mul_f32 v[{r+j}:{r+j+1}], v[{r+j}:{r+j+1}], v[{AL+2*qb}:{AL+2*qb+1}] op_sel_hi:[1,0]")
        if db == opt.get("od", 12): q.v(ol, "of")
        for _ in range(opt.get("an", 2)):
            if n < 4 * PF and db < opt.get("od", 12):
                aload(a, q, n // 4, n % 4); n += 1
    while n < opt.get("pa", 0):
        aload(a, q, n // 4, n % 4); n += 1
    poll(a, q, L, "o", [ol], ["v_readfirstlane_b32 s26, v11", "s_cmp_eq_u32 s26, 1"], "of", slp=1)
    fp(4)
    for f in range(16):
        if f % 4 == 0: a.e(f"s_add_u32 s41, s40, {1024*f}")
        q.v(f"buffer_load_dwordx4 v[{RX+4*f}:{RX+4*f+3}], v3, s[12:15], s41 offen offset:{1024*(f%4)} {opt.get('lm', 'sc1')}", f"O{f}")
    fp(5)
    fp(6)
    for f in range(16):
        sp, qb = f // 4, f % 4
        q.wait(f"O{f}")
        if f in (0, 8): fp(7 + f // 8)
        for j in range(4):
            a.e(f"v_lshlrev_b32 v{TT+2*j}, 16, v{RX+4*f+j}")
            a.e(f"v_and_b32 v{TT+2*j+1}, s43, v{RX+4*f+j}")
        for j in range(4):
            r = oreg(8 + 2 * sp + j // 2, qb)[1] + 2 * (j % 2)
            a.e(f"v_pk_fma_f32 v[{TT+2*j}:{TT+2*j+1}], v[{TT+2*j}:{TT+2*j+1}], v[{AL+2*qb}:{AL+2*qb+1}], v[{r}:{r+1}] op_sel:[0,1,0] op_sel_hi:[1,1,1]")
        for j in range(4):
            a.e(f"v_cvt_pk_bf16_f32 v{RX+4*f+j}, v{TT+2*j}, v{TT+2*j+1}")
        q.l(f"ds_write_b128 v10, v[{RX+4*f}:{RX+4*f+3}] offset:{8192*qb + 1024*sp}")
        for _ in range(2):
            if n < 4 * PF:
                aload(a, q, n // 4, n % 4); n += 1
    while n < 4 * PF:
        aload(a, q, n // 4, n % 4); n += 1
    fs(4)
    a.label(L("tail"))
    ff(14); fp(9)
    gen_tail(a, L, st, fs, opt)
    a.label(L("fin"))
    if stamp == 1:
        a.e("s_waitcnt vmcnt(0)")
        st(7)
        emit_stamps(a, 8, nw=8, off=WS_STAMP + 0x200000)
    if stamp == 5:
        a.e("s_waitcnt vmcnt(0)")
        st(7)
        a.e("s_cmp_lg_u32 s16, 0")
        a.e(f"s_cbranch_scc1 {L('end')}")
        a.e("s_mov_b64 exec, 1")
        a.e("s_cmp_lg_u32 s2, 0")
        a.e(f"s_cbranch_scc1 {L('dbg2')}")
        for k in range(1, 8):
            a.e(f"s_sub_u32 s26, s{62+4*k}, s62")
            a.e("v_mov_b32 v8, s26")
            a.e(f"buffer_store_dword v8, off, s[92:95], 0 offset:{8+4*k}")
        a.e("s_sub_u32 s26, s76, s72")
        a.e("v_mov_b32 v8, s26")
        a.e("buffer_store_dword v8, off, s[92:95], 0 offset:40")
        a.label(L("dbg2"))
        a.e("s_cmp_lg_u32 s2, 255")
        a.e(f"s_cbranch_scc1 {L('end')}")
        for k in range(1, 6):
            a.e(f"s_sub_u32 s26, s{62+4*k}, s62")
            a.e("v_mov_b32 v8, s26")
            a.e(f"buffer_store_dword v8, off, s[92:95], 0 offset:{40+4*k}")
    if stamp in (2, 3, 4, 6):
        for k in range(10, 16): fp(k)
        a.e("s_waitcnt vmcnt(0)")
        fs(15)
        ff(15)
        emit_fine(a, off=WS_STAMP + 0x300000)
    a.label(L("end"))
    a.e("s_endpgm")
    a.label(L("redo"))
    a.e("s_waitcnt vmcnt(0) lgkmcnt(0)")
    a.e("s_mov_b32 s101, 0")
    a.e(f"s_mul_i32 s28, s22, {32768 * N0}")
    a.e("s_add_u32 s28, s28, s24")
    a.e("s_lshl_b32 s26, s25, 15")
    srd_off(a, 8, 4, "s28", "s26")
    a.e("s_lshl_b32 s19, s16, 13")
    qk_setup()
    a.e("s_mov_b32 s17, s25")
    def redo_dma(slot):
        for i in range(8):
            if i % 4 == 0:
                a.e(f"s_add_u32 m0, s19, {32768*slot + 1024*i}")
                a.e(f"s_add_u32 s29, s18, {1024*i}")
            a.e(f"buffer_load_dwordx4 v3, s[8:11], s29 offen offset:{1024*(i%4)} sc1 lds")
    a.label(L("redo_loop"))
    a.e("s_sub_u32 s17, s17, 1")
    a.e("s_lshl_b32 s18, s17, 15")
    a.e("s_add_u32 s18, s18, s19")
    a.e("s_barrier")
    redo_dma(0)
    a.e("s_waitcnt vmcnt(0)")
    a.e("s_barrier")
    a.e("s_cmp_ge_u32 s16, 2")
    a.e(f"s_cbranch_scc1 {L('redo_next')}")
    for n in range(16):
        a.e(kread(0, n, 0))
        if n == 11: a.e("s_waitcnt lgkmcnt(4)")
    a.e("s_waitcnt lgkmcnt(0)")
    for qb in range(4):
        for m in chain(0, qb, "0"): a.e(m)
    a.e("s_nop 7")
    for qb in range(4):
        d = S + 4 * qb
        a.e(f"v_max3_f32 v{MX0+qb}, v{MX0+qb}, v{d}, v{d+1}")
        a.e(f"v_max3_f32 v{MX0+qb}, v{MX0+qb}, v{d+2}, v{d+3}")
    a.label(L("redo_next"))
    a.e("s_cmp_lg_u32 s17, 0")
    a.e(f"s_cbranch_scc1 {L('redo_loop')}")
    a.e("s_add_u32 s18, s19, 32768")
    redo_dma(1)
    a.e("s_mov_b32 s17, s25")
    a.e("s_cmp_ge_u32 s16, 2")
    a.e(f"s_cbranch_scc1 {L('pv')}")
    a.e(f"s_branch {L('qk_again')}")
    emit_pv_again()
    for f in OOL: f()
    emit_aux()
    kernel_desc(a, name, 512, 256)
    return f"; @launch grid=(256,1,1) block=(256,1,1) lds={LDS_ATT}"
```

```python
import sys, math
sys.path.insert(0, "gen")
from asmlib import *
from layout import *

RS = 1056
LDS_XS = 98304
LDS_MS = 163840 - 64 * RS
LDS_SC = 81920
LDS_CNT = LDS_SC + 6912
LDS_SC2 = 147456
GC1 = 2 * math.sqrt(2 / math.pi) * math.log2(math.e)
XSC = (GC1 * 0.044715) ** (1.0 / 3)
LDS_MX2 = LDS_SC + 4608
RING = 5
SS = 144
SPIN = 40000

def poll(a, q, L, name, load, cond, tag, slp=2):
    q.wait(tag)
    lab, done = L(name + "_spin"), L(name + "_ok")
    for x in cond: a.e(x)
    a.e(f"s_cbranch_scc0 {L(name + '_retry')}")
    a.label(done)
    def retry():
        a.label(L(name + "_retry"))
        a.e(f"s_mov_b32 s30, {SPIN}")
        a.label(lab)
        a.e(f"s_sleep {slp}")
        for x in load: a.e(x)
        a.e("s_waitcnt vmcnt(0)")
        for x in cond: a.e(x)
        a.e(f"s_cbranch_scc1 {done}")
        a.e("s_sub_u32 s30, s30, 1")
        a.e(f"s_cbranch_scc0 {lab}")
        a.e(f"s_branch {done}")
    OOL.append(retry)

OOL = []

def release(a, q, L, name, tag, store, again=()):
    if tag: q.wait(tag)
    a.e("s_cmp_lg_u32 s21, 0")
    a.e(f"s_cbranch_scc1 {L(name + '_far')}")
    q.v(store)
    a.label(L(name + "_back"))
    def far():
        a.label(L(name + "_far"))
        if again:
            for x in again: a.e(x)
            a.e("s_waitcnt vmcnt(0)")
        a.e(store + " sc1")
        a.e(f"s_branch {L(name + '_back')}")
    OOL.append(far)

def signal(a, L, name, wave, off, shard=True):
    a.e(f"s_cmp_lg_u32 s16, {wave}")
    a.e(f"s_cbranch_scc1 {L(name)}")
    a.e("v_mov_b32 v14, 1")
    a.e(f"s_and_b32 s26, s2, {3 if shard else 0}")
    a.e("s_lshl_b32 s26, s26, 6")
    a.e("s_mov_b64 exec, 1")
    a.e(f"buffer_atomic_add v14, off, s[92:95], s26 offset:{off}")
    a.e("s_mov_b64 exec, -1")
    a.label(L(name))

def cnt_load(off, va="v13"):
    return f"buffer_load_dword v14, {va}, s[92:95], 0 offen offset:{off} sc1"
CNT_OK = ["v_cmp_le_u32 vcc, 64, v14", "s_nop 1", "s_cmp_eq_u64 vcc, -1"]

def m_issue(a, q):
    a.e("s_and_b32 s17, s2, 6")
    a.e("s_lshl_b32 s17, s17, 5")
    a.e("s_and_b32 s18, s2, 24")
    a.e("s_lshl_b32 s18, s18, 1")
    a.e("s_add_u32 s17, s17, s18")
    a.e("s_and_b32 s18, s2, 1")
    a.e("s_lshl_b32 s18, s18, 3")
    a.e("s_add_u32 s17, s17, s18")
    a.e("s_lshr_b32 s18, s2, 5")
    a.e("s_add_u32 s100, s17, s18")
    a.e("s_lshr_b32 s17, s100, 4")
    a.e("s_lshl_b32 s17, s17, 15")
    a.e("s_and_b32 s18, s100, 15")
    a.e("s_lshl_b32 s18, s18, 15")
    a.e("s_lshl_b32 s19, s16, 13")
    a.e("s_add_u32 s17, s17, s19")
    a.e("s_add_u32 s18, s18, s19")
    a.e(f"s_mul_i32 s19, s16, {4*RS}")
    out = []
    for m, (srd, so) in enumerate(((40, "s17"), (8, "s18"))):
        for ee in range(2):
            for j in range(4):
                def f(m=m, srd=srd, so=so, ee=ee, j=j):
                    a.e(f"s_add_u32 m0, s19, {LDS_MS + (32*m + 16*ee + j)*RS - 1024*j}")
                    a.e(f"s_add_u32 {so}, {so}, 4096" if (ee == 1 and j == 0) else "s_nop 0")
                    q.v(f"buffer_load_dwordx4 v3, s[{srd}:{srd+3}], {so} offen offset:{1024*j} lds", "Mst")
                out.append(f)
    return out

def m_addr(a):
    a.e("v_and_b32 v4, 15, v2")
    a.e("v_lshrrev_b32 v5, 4, v2")
    a.e(f"v_mul_u32_u24 v6, {RS}, v4")
    a.e("v_lshl_add_u32 v6, v5, 4, v6")
    a.e(f"v_add_u32 v6, {LDS_MS}, v6")
    a.e("s_and_b32 s26, s16, 1")
    a.e("s_lshr_b32 s28, s16, 1")
    a.e(f"s_mul_i32 s29, s26, {16*RS}")
    a.e("v_add_u32 v7, s29, v6")
    a.e(f"s_mul_i32 s29, s28, {16*RS}")
    a.e("v_add_u32 v6, s29, v6")
    a.e("s_bfe_u32 s29, s100, 0x30001")
    a.e("s_lshl_b32 s29, s29, 16")
    a.e("s_lshr_b32 s30, s100, 4")
    a.e("s_lshl_b32 s30, s30, 12")
    a.e("s_add_u32 s29, s29, s30")
    a.e("s_and_b32 s30, s100, 1")
    a.e("s_lshl_b32 s30, s30, 1")
    a.e("s_add_u32 s30, s30, s28")
    a.e("s_lshl_b32 s30, s30, 10")
    a.e("s_add_u32 s29, s29, s30")
    a.e("s_lshl_b32 s30, s26, 9")
    a.e("s_add_u32 s29, s29, s30")
    a.e(f"s_add_u32 s30, s29, {WS_MI}")
    a.e("s_lshl_b32 s29, s28, 10")
    a.e("s_lshl_b32 s26, s26, 3")
    a.e("s_add_u32 s29, s29, s26")
    a.e(f"s_add_u32 s29, s29, {LDS_MX2}")
    a.e("v_add_u32 v112, s29, v3")
    a.e("s_lshl_b32 s29, s16, 9")
    a.e(f"s_add_u32 s29, s29, {LDS_MX2}")
    a.e("v_and_b32 v114, 0x1ff, v3")
    a.e("v_add_u32 v113, s29, v114")

def m_tile(a, q, fz=lambda k: None, fill=None):
    q.wait("Mst")
    fz(1)
    a.e("s_barrier")
    fz(2)
    def rd(t):
        q.l(f"ds_read_b128 a[{8*t}:{8*t+3}], v7 offset:{64*t}", f"m{t}")
        q.l(f"ds_read_b128 a[{8*t+4}:{8*t+7}], v6 offset:{32*RS + 64*t}", f"m{t}")
    for t in range(7): rd(t)
    if fill: fill.pop(0)()
    for t in range(16):
        q.e(f"{M16} v[8:11], a[{8*t}:{8*t+3}], a[{8*t+4}:{8*t+7}], {'0' if t == 0 else 'v[8:11]'}", need=(f"m{t}",))
        if t + 7 < 16: rd(t + 7)
    fz(3)
    if fill: fill.pop(0)()
    else: a.e("s_nop 7")
    sc = f2u(512 ** -0.5 * math.log2(math.e) / XSC ** 2)
    for i in range(4): a.e(f"v_mul_f32 v{8+i}, {sc}, v{8+i}")
    a.e("v_cvt_pk_bf16_f32 v8, v8, v9")
    a.e("v_cvt_pk_bf16_f32 v9, v10, v11")
    q.l("ds_write_b64 v112, v[8:9]", "mw")
    while fill: fill.pop(0)()
    q.wait("mw")
    a.e("s_barrier")
    q.l("ds_read_b128 v[8:11], v113", "mr")
    def fin():
        q.v("buffer_store_dwordx4 v[8:11], v114, s[12:15], s30 offen sc1", "St", need=("mr",))
    return fin

def touches(a, q, L, opt):
    a.e("v_lshlrev_b32 v7, 7, v2")
    a.e("s_lshr_b32 s26, s2, 3")
    a.e("s_lshl_b32 s26, s26, 2")
    a.e("s_add_u32 s26, s26, s16")
    a.e("s_getpc_b64 s[28:29]")
    a.label(L("pc1"))
    a.e("s_mul_i32 s30, s26, 640")
    a.e("v_and_b32 v12, 7, v2")
    a.e("v_min_u32 v12, 4, v12")
    a.e("v_lshl_add_u32 v12, v12, 7, s30")
    a.e(f"v_min_u32 v12, {L('end')} - {L('pc1')}, v12")
    q.v("global_load_dword v0, v12, s[28:29]")
    if opt.get("tg"):
        a.e("s_lshl_b32 s26, s2, 12")
        a.e("s_lshr_b32 s28, s16, 1")
        a.e("s_lshl_b32 s28, s28, 11")
        a.e("s_add_u32 s26, s26, s28")
        a.e("s_and_b32 s28, s16, 1")
        a.e("s_lshl_b32 s28, s28, 9")
        a.e("s_add_u32 s26, s26, s28")
        a.e("v_lshlrev_b32 v14, 3, v2")
        q.v("buffer_load_dword v0, v14, s[96:99], s26 offen offset:1024")
    if opt.get("tw"):
        a.e("s_lshl_b32 s26, s26, 13")
        q.v("buffer_load_dword v0, v7, s[96:99], s26 offen")

def touch_aux(a, q, mode=1):
    if mode == 2:
        a.e("s_lshl_b32 s28, s2, 2")
        a.e("s_add_u32 s28, s28, s16")
        a.e("s_lshl_b32 s28, s28, 10")
        a.e("v_add_u32 v14, s28, v3")
        q.v("global_load_dword v0, v14, s[58:59]")
        return
    for w in range(1, 4):
        a.e(f"s_cmp_eq_u32 s16, {w}")
        a.e(f"s_cselect_b32 s52, s{52+2*w}, s52")
        a.e(f"s_cselect_b32 s53, s{53+2*w}, s53")
    a.e("s_lshl_b32 s28, s2, 6")
    a.e("v_add_lshl_u32 v14, s28, v2, 5")
    a.e("v_lshlrev_b32 v13, 1, v14")
    a.e("s_cmp_eq_u32 s16, 3")
    a.e("s_cselect_b64 vcc, -1, 0")
    a.e("v_cndmask_b32 v14, v14, v13, vcc")
    q.v("global_load_dword v0, v14, s[52:53]")

def gen_front(a, q, L, st, fs, mi, clear, opt):
    X = 16; F = 128
    if opt.get("skip"):
        v0 = q.v
        def v1(text, tag="_", need=()):
            if text.startswith("buffer_store_dwordx4") and tag[0] in opt["skip"]: return
            v0(text, tag, need)
        q.v = v1
    a.e("v_lshrrev_b32 v12, 3, v2")
    a.e("v_and_b32 v13, 7, v2")
    a.e("v_and_b32 v14, 2, v12")
    a.e("v_xor_b32 v14, v13, v14")
    a.e("v_lshlrev_b32 v14, 4, v14")
    WV = 80
    a.e(f"v_lshl_add_u32 v{WV}, v12, 11, v14")
    a.e(f"v_xor_b32 v{WV+1}, 64, v{WV}")
    a.e(f"v_add_u32 v{WV+1}, {16384-1024}, v{WV+1}")
    a.e(f"v_add_u32 v{WV+2}, {2*(16384-1024)}, v{WV}")
    a.e(f"v_add_u32 v{WV+3}, {2*(16384-1024)}, v{WV+1}")
    a.e("s_lshl_b32 s26, s22, 2")
    a.e("s_add_u32 s26, s26, s16")
    a.e("s_lshl_b32 s28, s22, 1")
    a.e("s_add_u32 s28, s28, s16")
    a.e(f"s_lshl_b32 s29, s23, {opt.get('rt', 0)}")
    a.e("s_add_u32 s28, s28, s29")
    a.e("s_and_b32 s28, s28, 3")
    a.e("s_lshl_b32 s3, s26, 7")
    a.e("s_lshl_b32 s29, s28, 18")
    a.e("s_add_u32 s3, s3, s29")
    a.e(f"s_mul_i32 s6, s16, {RING*4096}")
    a.e("v_and_b32 v4, 15, v2")
    a.e("v_lshrrev_b32 v5, 4, v2")
    def wdma(k, j):
        if j == 0:
            a.e(f"s_add_u32 m0, s6, {4096*(k % RING)}")
            a.e(f"s_xor_b32 s7, {'s3' if k < 16 else 's20'}, {65536*(k % 16) + (1024 if k < 16 else 0 if k < 32 else 128)}")
        q.v(f"buffer_load_dwordx4 v{WV+j}, s[96:99], s7 offen offset:{1024*j} lds", f"W{k}")
    ringf = [lambda k=k, j=j: wdma(k, j) for k in range(RING) for j in range(4)]
    EM = opt.get("early", 0)
    NE = opt.get("ne", 12)
    early = list(mi) + [clear] + ringf[:NE]
    if opt.get("rf"): early = ringf[:opt["rf"]] + list(mi) + [clear] + ringf[opt["rf"]:NE]
    late = ringf[NE:]
    if opt.get("te") is not None: early.insert(opt["te"], lambda: (touch_u(), touch_aux(a, q)))
    SW, SR, SG, QW = 84, 85, 86, 87
    a.e("s_and_b32 s26, s16, 1")
    a.e("s_lshl_b32 s26, s26, 13")
    a.e("s_cmp_lt_u32 s16, 2")
    a.e(f"s_cselect_b32 s28, {16*SS}, 0")
    a.e("s_add_u32 s26, s26, s28")
    a.e(f"s_add_u32 s26, s26, {LDS_SC}")
    a.e(f"v_mul_u32_u24 v{SR}, {SS}, v12")
    a.e(f"v_lshl_add_u32 v{SR}, v13, 4, v{SR}")
    a.e(f"v_add_u32 v{SR}, s26, v{SR}")
    a.e(f"v_lshlrev_b32 v{SG}, 9, v12")
    a.e(f"v_lshl_add_u32 v{SG}, v13, 4, v{SG}")
    a.e(f"v_mul_u32_u24 v{SW}, {SS}, v4")
    a.e(f"v_lshl_add_u32 v{SW}, v5, 3, v{SW}")
    a.e(f"v_add_u32 v{SW}, s26, v{SW}")
    a.e("s_lshl_b32 s26, s16, 14")
    a.e(f"s_add_u32 s26, s26, {LDS_XS}")
    a.e("s_lshl_b32 s28, s22, 13")
    a.e("s_add_u32 s28, s28, s26")
    a.e("v_lshrrev_b32 v14, 1, v12")
    a.e("v_xor_b32 v14, v13, v14")
    a.e("v_lshlrev_b32 v14, 4, v14")
    a.e("v_lshl_add_u32 v14, v12, 7, v14")
    a.e("v_add_u32 v12, s28, v14")
    a.e("v_xor_b32 v116, 0x440, v12")
    a.e("v_xor_b32 v117, 0x2440, v12")
    a.e("v_xor_b32 v15, 0x2000, v12")
    a.e("s_mov_b32 s101, 0xffff0000")
    if EM == 2:
        while early: early.pop(0)()
    ZR, YO = 88, 90
    a.e("v_lshrrev_b32 v13, 1, v4")
    a.e("v_xor_b32 v13, v5, v13")
    a.e("v_lshlrev_b32 v13, 4, v13")
    a.e(f"v_lshl_add_u32 v{ZR}, v4, 7, v13")
    a.e("v_and_b32 v13, 0x27, v2")
    a.e("v_and_b32 v14, 8, v2")
    a.e("v_lshl_add_u32 v13, v14, 1, v13")
    a.e("v_and_b32 v14, 16, v2")
    a.e("v_lshrrev_b32 v14, 1, v14")
    a.e(f"v_add_lshl_u32 v{YO}, v13, v14, 4")
    XR_, TR = 88, 92
    a.e("s_lshr_b32 s26, s3, 18")
    a.e("s_lshl_b32 s26, s26, 12")
    a.e(f"s_add_u32 s26, s26, {LDS_XS}")
    a.e(f"v_add_u32 v{XR_}, s26, v{ZR}")
    a.e("v_lshrrev_b32 v14, 2, v4")
    a.e("v_lshl_add_u32 v14, v5, 3, v14")
    a.e("v_lshlrev_b32 v14, 7, v14")
    a.e("v_and_b32 v13, 3, v2")
    a.e("v_lshl_add_u32 v14, v13, 3, v14")
    a.e("v_and_b32 v13, 24, v2")
    a.e("v_lshl_add_u32 v14, v13, 2, v14")
    a.e(f"v_add_u32 v{TR}, s6, v14")
    for nb in range(1, 4):
        a.e(f"v_xor_b32 v{TR+nb}, {32*nb}, v{TR}")
    a.e(f"v_mov_b32 v13, {LDS_CNT}")
    a.e("v_mov_b32 v14, 0")
    q.l("ds_write_b32 v13, v14")
    def touch_u():
        if opt.get("tu") == 0: return
        if opt.get("tu", 2) == 2:
            a.e("s_lshl_b32 s26, s2, 12")
            a.e("s_lshr_b32 s28, s16, 1")
            a.e("s_lshl_b32 s28, s28, 11")
            a.e("s_add_u32 s26, s26, s28")
            a.e("s_and_b32 s28, s16, 1")
            a.e("s_lshl_b32 s28, s28, 9")
            a.e("s_add_u32 s26, s26, s28")
            a.e("v_lshlrev_b32 v14, 3, v2")
            q.v("buffer_load_dword v0, v14, s[96:99], s26 offen")
            return
        a.e("s_lshr_b32 s26, s2, 3")
        a.e("s_lshl_b32 s26, s26, 2")
        a.e("s_add_u32 s26, s26, s16")
        a.e("s_lshl_b32 s26, s26, 13")
        a.e("v_lshlrev_b32 v14, 6, v4")
        a.e("v_lshl_add_u32 v14, v5, 11, v14")
        q.v("buffer_load_dword v0, v14, s[96:99], s26 offen")
    m_addr(a)
    for f in opt['xrest']: f()
    for _ in range(opt.get('e0', 0)): early.pop(0)()
    A0 = 96
    def norm(s):
        A = A0 + 8 * (s // 8) + 4
        for j in range(4):
            f = F + 8 * s + 2 * j
            a.e(f"v_pk_fma_f32 v[{f}:{f+1}], v[{f}:{f+1}], v[{A}:{A+1}], v[{A}:{A+1}] op_sel:[0,0,1] op_sel_hi:[1,0,1]")
        for j in range(4):
            f = F + 8 * s + 2 * j
            a.e(f"v_cvt_pk_bf16_f32 v{X+4*s+j}, v{f}, v{f+1}")
    def stats(h):
        A = A0 + 8 * h
        for r in (A, A + 2): a.e(f"v_add_f32 v{r}, v{r}, v{r+1}")
        for d in ("quad_perm:[1,0,3,2]", "quad_perm:[2,3,0,1]", "row_half_mirror"):
            a.e("s_nop 0")
            for r in (A, A + 2): a.e(f"v_add_f32_dpp v{r}, v{r}, v{r} {d} row_mask:0xf bank_mask:0xf")
        a.e(f"v_mul_f32 v{A}, {f2u(-1.0/512)}, v{A}")
        a.e(f"v_mul_f32 v{A+2}, {f2u(1.0/512)}, v{A+2}")
        a.e(f"v_fma_f32 v{A+2}, -v{A}, v{A}, v{A+2}")
        a.e(f"v_max_f32 v{A+2}, 0, v{A+2}")
        a.e(f"v_add_f32 v{A+2}, {f2u(1e-5)}, v{A+2}")
        a.e(f"v_rsq_f32 v{A+4}, v{A+2}")
        a.e("s_nop 0")
        a.e(f"v_mul_f32 v{A+4}, {f2u(XSC)}, v{A+4}")
        a.e(f"v_mul_f32 v{A+5}, v{A}, v{A+4}")
    for h in range(2):
        A = A0 + 8 * h
        for i in range(8):
            s = 8 * h + i
            if s == 8: stats(0)
            if h == 1: norm(i)
            q.wait(f"x{s}")
            if s == 0: fs(1)
            for _ in range(opt.get("ep", [8] + [1] * 15)[s]):
                if early: early.pop(0)()
            for j in range(4):
                x = X + 4 * s + j; f = F + 8 * s + 2 * j
                a.e(f"v_lshlrev_b32 v{f}, 16, v{x}")
                a.e(f"v_and_b32 v{f+1}, s101, v{x}")
            for j in range(4):
                f = F + 8 * s + 2 * j
                if i == 0 and j == 0:
                    a.e(f"v_pk_add_f32 v[{A}:{A+1}], v[{f}:{f+1}], 0")
                    a.e(f"v_pk_mul_f32 v[{A+2}:{A+3}], v[{f}:{f+1}], v[{f}:{f+1}]")
                else:
                    a.e(f"v_pk_add_f32 v[{A}:{A+1}], v[{A}:{A+1}], v[{f}:{f+1}]")
                    a.e(f"v_pk_fma_f32 v[{A+2}:{A+3}], v[{f}:{f+1}], v[{f}:{f+1}], v[{A+2}:{A+3}]")
    fs(2)
    stats(1)
    for s in range(8, 12):
        for _ in range(2):
            if early: early.pop(0)()
        norm(s)
    while early: early.pop(0)()
    fs(3)
    def xw(s):
        h, i = s // 8, s % 8
        q.l(f"ds_write_b128 {(('v12', 'v15'), ('v116', 'v117'))[h][i // 4]}, v[{X+4*s}:{X+4*s+3}] offset:{2048*(i%4)}", "xw")
    fz = Fine(a, opt.get("fz"))
    fz(0)
    mfin = m_tile(a, q, fz, [lambda s=s: norm(s) for s in range(12, 16)])
    fs(4); fz(4)
    for s in range(16):
        xw(s)
        if s in (1, 5, 8, 12): fz(5 + (1, 5, 8, 12).index(s))
        if s == 3: mfin()
        if s >= 3:
            for _ in range(2):
                if late: late.pop(0)()
        TT = opt.get("tt", 8)
        if opt.get("te") is not None: continue
        if s == TT and opt.get('ta', 2): touch_aux(a, q, opt.get('ta', 2))
        if s == TT + 1 and not opt.get("tw"): touch_u()
    srd_off(a, 8, 4, "s24", 4096000)
    a.e("s_lshr_b32 s19, s3, 18")
    a.e("s_lshl_b32 s19, s19, 12")
    a.e("s_add_u32 s19, s19, s27")
    a.e("v_and_b32 v13, 3, v2")
    fz(9)
    q.wait("xw")
    fz(10)
    q.wait("St")
    fz(11)
    a.e("s_barrier")
    fz(12)
    st(1)
    AR = [16 + 16 * i for i in range(4)] + [96]
    T = 112
    NQ = 5
    role = [None]
    def areg(k): return AR[(k - 16 + 2) % NQ] if (role[0] == "qk" and k >= 16) else AR[k % 2]
    def accof(k): return 128 if k < 16 else 192 if (k < 32 or role[0] == "qk") else 128
    def bread(s, tb):
        r = 64 * tb + 4 * s
        if tb == 0: a.e(f"v_xor_b32 v{XR_+1}, {2048*(s//2) + 64*(s%2)}, v{XR_}")
        q.l(f"ds_read_b128 a[{r}:{r+3}], v{XR_+1} offset:{16384*tb}", f"B{s}")
    def tread(k, i):
        nb, h = i // 2, i % 2
        r = areg(k) + 4 * nb + 2 * h
        q.l(f"ds_read_b64_tr_b16 v[{r}:{r+1}], v{TR+nb} offset:{4096*(k % RING) + 512*h}", f"A{k}", need=(f"W{k}",))
    def mload(k, nb):
        if nb == 0: a.e(f"s_xor_b32 s42, s20, {4096*(k-16)}")
        r = areg(k) + 4 * nb
        q.v(f"buffer_load_dwordx4 v[{r}:{r+3}], v3, s[12:15], s42 offen offset:{1024*nb} sc1", f"A{k}")
    for tb in range(4): bread(0, tb)
    for i in range(8): tread(0, i)
    signal(a, L, "sig1", 0, 0)
    for tb in range(4): bread(1, tb)
    a.e(f"s_mov_b32 s0, {f2u(-GC1 / XSC)}")
    a.e(f"s_mov_b32 s1, {f2u(XSC)}")
    a.e("v_lshlrev_b32 v13, 6, v13")
    a.e("s_cmp_eq_u32 s16, 1")
    a.e("s_cselect_b32 s26, 0, 0x1000")
    a.e("v_add_u32 v12, s26, v13")
    a.e("s_lshl_b32 s17, s31, 16")
    a.e("s_lshl_b32 s26, s16, 7")
    a.e("s_add_u32 s17, s17, s26")
    a.e(f"s_add_u32 s17, s17, {WS_GU}")
    fx = [{}]
    def at(k, g, fn): fx[0].setdefault((k, g), []).append(fn if callable(fn) else (lambda: a.e(fn)))
    def run(ops):
        for x in ops: x() if callable(x) else a.e(x)
    def cost(x): return 2 if (isinstance(x, str) and x.split()[0] in ("v_exp_f32", "v_rcp_f32")) else 1
    def steps(k0, k1, side=(), lead=10, tailg=4):
        fixed = fx[0]
        gaps = [(k, g) for k in range(k0, k1) for g in range(16)]
        cap = [0 if (n < lead or n >= len(gaps) - tailg) else max(0, 2 - len(fixed.get(x, []))) for n, x in enumerate(gaps)]
        ops = list(side)
        C = sum(map(cost, ops)); tot = sum(cap)
        scale = min(1.0, C / tot)
        extra = max(0.0, (C - tot) / (len(gaps) - lead - tailg))
        budget = 0.0; used = 0
        for n, (k, g) in enumerate(gaps):
            if g == 0:
                if k in opt.get("fk", []): Fine(a, True)(opt["fk"].index(k))
                q.wait(f"A{k}", f"B{k}")
            nb, tb = g // 4, g % 4
            d = accof(k) + 16 * nb + 4 * tb; r = areg(k) + 4 * nb; b = 64 * tb + 4 * (k % 16)
            c = "0" if k % 16 == 0 else f"v[{d}:{d+3}]"
            a.e(f"{M16} v[{d}:{d+3}], v[{r}:{r+3}], a[{b}:{b+3}], {c}")
            for fn in fixed.pop((k, g), []): fn()
            if lead <= n < len(gaps) - tailg:
                budget += cap[n] * scale + extra
            while ops and (used + cost(ops[0]) <= budget + 1e-6 or n == len(gaps) - tailg):
                x = ops.pop(0); used += cost(x); run([x])
        assert not ops
    def raw_plan(k0, k1, kend):
        for k in range(k0, k1):
            if k + 1 < kend:
                for i in range(8): at(k, i, lambda k=k, i=i: tread(k + 1, i))
            if k + RING < kend:
                for j in range(4): at(k, 9 + 2 * j, lambda k=k, j=j: wdma(k + RING, j))
            if k + 2 < 16:
                for tb in range(4): at(k, 8 + 2 * tb, lambda k=k, tb=tb: bread(k + 2, tb))
    def gelu(acc, kind, pk, base, off):
        out = []
        if opt.get("nogelu"): return [["s_nop 0"] * 40 for _ in range(8)]
        P = lambda r: f"v[{r}:{r+1}]"
        def store(E, i):
            r = acc + 32 + 16 * (i % 2) + 4 * (i // 2)
            def f():
                a.e(f"s_add_u32 s29, {base}, {off + 4096*i}")
                pub = kind == "g" and i in (0, 7)
                q.v(f"buffer_store_dwordx4 v[{r}:{r+3}], v{SG}, s[12:15], s29 offen{' sc1' if pub else ''}", "St" if pub else "_", need=(f"sr{kind}{i}",))
            E(f)
        for tb in range(4):
            for h in range(2):
                o = []; E = o.append; out.append(o)
                src = [acc + 16 * (2 * h + ee) + 4 * tb + j for ee in range(2) for j in range(4)]
                if pk(2 * tb + h):
                    for i in range(0, 8, 2): E(f"v_pk_fma_f32 {P(T+i)}, {P(src[i])}, {P(src[i])}, s[0:1] op_sel_hi:[1,1,0] neg_lo:[1,0,0] neg_hi:[1,0,0]")
                    for i in range(0, 8, 2): E(f"v_pk_mul_f32 {P(T+i)}, {P(T+i)}, {P(src[i])}")
                    for i in range(8): E(f"v_exp_f32 v{T+i}, v{T+i}")
                    for i in range(0, 8, 2): E(f"v_pk_fma_f32 {P(T+i)}, {P(T+i)}, s[0:1], s[0:1] op_sel:[0,1,1] op_sel_hi:[1,1,1]")
                    for i in range(8): E(f"v_rcp_f32 v{T+i}, v{T+i}")
                    for i in range(0, 8, 2): E(f"v_pk_mul_f32 {P(src[i])}, {P(T+i)}, {P(src[i])}")
                else:
                    for i, x in enumerate(src): E(f"v_fma_f32 v{T+i}, -v{x}, v{x}, s0")
                    for i, x in enumerate(src): E(f"v_mul_f32 v{T+i}, v{T+i}, v{x}")
                    for i, x in enumerate(src): E(f"v_exp_f32 v{T+i}, v{T+i}")
                    for i, x in enumerate(src): E(f"v_fma_f32 v{T+i}, v{T+i}, s1, s1")
                    for i, x in enumerate(src): E(f"v_rcp_f32 v{T+i}, v{T+i}")
                    for i, x in enumerate(src): E(f"v_mul_f32 v{x}, v{T+i}, v{x}")
                pr = T + 8 + 4 * h
                for j in range(4): E(f"v_cvt_pk_bf16_f32 v{pr+j}, v{src[2*j]}, v{src[2*j+1]}")
                for ee in range(2):
                    E(lambda ee=ee, pr=pr, h=h: q.l(f"ds_write_b64 v{SW}, v[{pr+2*ee}:{pr+2*ee+1}] offset:{32*(2*h+ee)}"))
                if kind == "g":
                    s0, s1 = acc + 4 * tb, acc + 4 * tb + 1
                    if pk(2 * tb + h):
                        E(f"v_pk_mul_f32 {P(T)}, {P(src[0])}, {P(src[0])}")
                        E(f"v_pk_add_f32 {P(T+2)}, {P(src[0])}, {P(src[2])}")
                        for i in (2, 4, 6):
                            E(f"v_pk_fma_f32 {P(T)}, {P(src[i])}, {P(src[i])}, {P(T)}")
                            if i > 2: E(f"v_pk_add_f32 {P(T+2)}, {P(T+2)}, {P(src[i])}")
                        if h == 0:
                            E(f"v_add_f32 v{s0}, v{T+2}, v{T+3}")
                            E(f"v_add_f32 v{s1}, v{T}, v{T+1}")
                        else:
                            E(f"v_add_f32 v{T+2}, v{T+2}, v{T+3}")
                            E(f"v_add_f32 v{T+3}, v{T}, v{T+1}")
                            E(f"v_pk_add_f32 {P(s0)}, {P(s0)}, {P(T+2)}")
                    elif h == 0:
                        E(f"v_mul_f32 v{T}, v{src[0]}, v{src[0]}")
                        for x in src[1:]: E(f"v_fmac_f32 v{T}, v{x}, v{x}")
                        for x in src[1:]: E(f"v_add_f32 v{s0}, v{s0}, v{x}")
                        E(f"v_mov_b32 v{s1}, v{T}")
                    else:
                        for x in src:
                            E(f"v_add_f32 v{s0}, v{s0}, v{x}")
                            E(f"v_fmac_f32 v{s1}, v{x}, v{x}")
                if tb >= 1: store(E, 2 * (tb - 1) + h)
            for i in (2 * tb, 2 * tb + 1):
                r = acc + 32 + 16 * (i % 2) + 4 * tb
                E(lambda i=i, r=r: q.l(f"ds_read_b128 v[{r}:{r+3}], v{SR} offset:{8*SS*(i%2)}", f"sr{kind}{i}"))
        if kind == "g":
            for k in range(2):
                E(f"v_permlane16_swap_b32 v{acc+k}, v{acc+4+k}")
                E(f"v_permlane16_swap_b32 v{acc+8+k}, v{acc+12+k}")
            E("s_lshl_b32 s43, s22, 2")
            for k in range(2):
                E(f"v_add_f32 v{acc+k}, v{acc+k}, v{acc+4+k}")
                E(f"v_add_f32 v{acc+8+k}, v{acc+8+k}, v{acc+12+k}")
            E("s_add_u32 s43, s43, s16")
            E("s_lshl_b32 s43, s43, 9")
            for k in range(2): E(f"v_permlane32_swap_b32 v{acc+k}, v{acc+8+k}")
            E(lambda: (a.e("s_lshr_b32 s29, s31, 1"), a.e("s_lshl_b32 s29, s29, 12"), a.e("s_add_u32 s43, s43, s29")))
            for k in range(2): E(f"v_add_f32 v{T+k}, v{acc+k}, v{acc+8+k}")
            E(f"s_add_u32 s43, s43, {WS_ST}")
            E(f"v_lshlrev_b32 v{T+2}, 3, v2")
            E(lambda: q.v(f"buffer_store_dwordx2 v[{T}:{T+1}], v{T+2}, s[12:15], s43 offen sc1", "St"))
        store(E, 6); store(E, 7)
        return out
    flat = lambda bs: [x for b in bs for x in b]
    def stream_srd():
        a.e(f"s_mul_i32 s28, s22, {32768 * opt.get('n0', 62)}")
        a.e("s_add_u32 s28, s28, s24")
        a.e("s_lshl_b32 s26, s25, 15")
        srd_off(a, 8, 4, "s28", "s26")
    def xl():
        a.e("s_xor_b32 s26, s31, 1")
        a.e("s_lshl_b32 s26, s26, 7")
        a.e(f"s_add_u32 s26, s26, {WS_FL + 48}")
        q.v("buffer_load_dword v1, off, s[12:15], s26 sc1", "xid")
    def e0():
        q.wait("B15", "xid")
        a.e("v_readfirstlane_b32 s26, v1")
        a.e("s_getreg_b32 s21, hwreg(HW_REG_XCC_ID, 0, 4)")
        a.e("s_xor_b32 s21, s21, s26")
        if opt.get("far"): a.e("s_mov_b32 s21, 1")
        a.e("s_barrier")
    KS = opt.get("ks", 11); KC = 11
    raw_plan(0, KS, 16)
    c1l = lambda: q.v(cnt_load(0, "v12"), "c1")
    if KS > KC - 3: at(KC - 3, 8, c1l)
    fs(5); fz(13)
    at(0, 1, lambda: fz(14)); at(1, 1, lambda: fz(15))
    steps(0, KS)
    assert not fx[0]
    a.e("s_cmp_ge_u32 s16, 2")
    a.e(f"s_cbranch_scc1 {L('fpv')}")
    state = (list(q.vm), list(q.lg))

    def qk_part():
        role[0] = "qk"; fx[0] = {}
        raw_plan(KS, 16, 16)
        def chk1():
            q.wait("c1")
            a.e("s_cmp_lg_u32 s16, 1")
            a.e(f"s_cbranch_scc1 {L('c1_ok')}")
            poll(a, q, L, "c1", [cnt_load(0, "v12")], CNT_OK, "c1", slp=8)
            a.e("s_barrier")
            a.e("s_lshl_b32 s26, s22, 1")
            a.e("s_add_u32 s26, s26, s16")
            a.e("s_lshl_b32 s20, s26, 17")
            a.e("s_lshr_b32 s28, s3, 18")
            a.e("s_lshl_b32 s28, s28, 14")
            a.e("s_add_u32 s20, s20, s28")
            a.e(f"s_add_u32 s20, s20, {WS_MI}")
        if KS <= KC - 3: at(KC - 3, 8, c1l)
        at(KC, 8, chk1)
        at(KC, 10, xl)
        for kk in range(16, 48):
            k = kk - NQ + 1
            for nb in range(4): at(k, (9 + 2 * nb) if k < 16 else (1 + 4 * nb), lambda kk=kk, nb=nb: mload(kk, nb))
        at(15, 8, e0)
        for g, x in enumerate(["s_lshl_b32 s40, s31, 1", "s_add_u32 s40, s40, s16", "s_lshl_b32 s40, s40, 14", f"s_add_u32 s40, s40, {WS_QP}",
                               "s_lshl_b32 s41, s31, 5", "s_add_u32 s41, s41, s16", "s_lshl_b32 s41, s41, 2", f"s_add_u32 s41, s41, {WS_FL + 16}"]):
            at(15, g, x)
        steps(KS, 16)
        fs(6)
        NA_, NB_ = opt.get("qg", (2, 0))
        gb = gelu(128, "g", lambda b: b >= NA_ + NB_, "s17", 0)
        pre = ["s_lshl_b32 s26, s16, 2", "s_add_u32 s26, s26, s22", "s_lshl_b32 s26, s26, 13", f"s_add_u32 s18, s26, {LDS_XS}", f"v_add_u32 v{QW}, s18, v3", "s_lshl_b32 s19, s16, 14"]
        steps(16, 32, pre + flat(gb[:NA_]))
        fs(7)
        def pack(p, direct):
            a.e("s_nop 3")
            for i in range(8):
                tb, half = i // 2, i % 2
                src = [192 + 16 * (2 * half + ee) + 4 * tb + j for ee in range(2) for j in range(4)]
                pr = src[0]
                for j in range(4): a.e(f"v_cvt_pk_bf16_f32 v{pr+j}, v{src[2*j]}, v{src[2*j+1]}")
                if direct: qstore(8 * p + i, pr)
                q.l(f"ds_write_b128 v{QW}, v[{pr}:{pr+3}] offset:{16384*p + 1024*i}", "qw")
        def qstore(n, r, need=()):
            if n % 4 == 0: a.e(f"s_add_u32 s7, s40, {1024*n}")
            q.v(f"buffer_store_dwordx4 v[{r}:{r+3}], v3, s[12:15], s7 offen offset:{1024*(n%4)} sc1", "Qst", need=need)
        pack(0, False)
        for i in range(8):
            k = 32 + opt.get("qsp", [0, 1, 3, 4, 6, 7, 9, 10])[i]
            r = (WV, TR)[i % 2]
            at(k, 3, lambda i=i, r=r: q.l(f"ds_read_b128 v[{r}:{r+3}], v{QW} offset:{1024*i}", f"qr{i}"))
            at(k, 15, lambda i=i, r=r: qstore(i, r, (f"qr{i}",)))
        at(41, 7, lambda: q.v(cnt_load(8), "c2"))
        at(43, 7, stream_srd)
        at(44, 0, lambda: poll(a, q, L, "c2", [cnt_load(8)], CNT_OK, "c2", slp=8))
        kds = []
        for i in range(16):
            def kd(i=i):
                if i % 4 == 0:
                    a.e(f"s_add_u32 m0, s19, {1024*i}")
                    a.e(f"s_add_u32 s42, s19, {1024*i}")
                q.v(f"buffer_load_dwordx4 v3, s[8:11], s42 offen offset:{1024*(i%4)} sc1 lds", "kv0")
            if opt.get("kl", 1): kds.append(kd)
            else: at(44 + i // 4, 1 + 4 * (i % 4), kd)
        steps(32, 48, flat(gb[NA_:NA_ + NB_]), lead=2)
        assert not fx[0]
        fs(8)
        pack(1, True)
        rest = gb[NA_ + NB_:]
        W1, W2 = opt.get("qw_", (2, 1))
        for _ in range(W1): run(rest.pop(0))
        a.e("v_mov_b32 v14, 1")
        q.v("buffer_store_dword v14, off, s[12:15], s41 sc1", need=("Qst",))
        a.e("s_xor_b32 s41, s41, 128")
        qfl = f"buffer_load_dword v15, off, s[12:15], s41 sc1"
        run(kds)
        for _ in range(W2): run(rest.pop(0))
        q.v(qfl, "qf")
        for _ in range(opt.get("w3", 1)): run(rest.pop(0))
        fs(12)
        a.e("s_xor_b32 s40, s40, 0x8000")
        a.e("s_xor_b32 s18, s18, 0x2000")
        poll(a, q, L, "q", [qfl], ["v_readfirstlane_b32 s26, v15", "s_cmp_eq_u32 s26, 1"], "qf", slp=1)
        for i in range(16):
            if i % 4 == 0:
                a.e(f"s_add_u32 m0, s18, {16384*(i//8) + 1024*(i%8)}")
                a.e(f"s_add_u32 s7, s40, {1024*i}")
            q.v(f"buffer_load_dwordx4 v3, s[12:15], s7 offen offset:{1024*(i%4)} sc1 lds", "qd")
        run(flat(rest))
        fs(9)

    def pv_part(setup, vreads, zero):
        role[0] = "pv"; fx[0] = {}
        a.label(L("fpv"))
        q.vm, q.lg = list(state[0]), list(state[1])
        a.e("s_and_b32 s20, s3, 0xffff0000")
        a.e("s_lshl_b32 s26, s22, 1")
        a.e("s_add_u32 s26, s26, s16")
        a.e("s_sub_u32 s26, s26, 2")
        a.e("s_lshl_b32 s26, s26, 8")
        a.e("s_add_u32 s20, s20, s26")
        raw_plan(KS, 48, 48)
        at(KC, 8, "s_barrier")
        at(KC, 10, xl)
        at(15, 8, e0)
        def pub(i):
            tb, sl = i // 4, i % 4
            q.v(f"buffer_store_dwordx4 a[{64*tb+4*sl}:{64*tb+4*sl+3}], v{YO}, s[8:11], s19 offen offset:{1024*sl} sc1", "Xst")
            if sl == 3: a.e("s_add_u32 s19, s19, 16384")
        PE = opt.get("pe", [])
        for i, k in enumerate(PE): at(k, 12 if (i and PE[i - 1] == k) else 4, lambda i=i: pub(i))
        steps(KS, 16)
        fs(6)
        N1, N2 = opt.get("pg_", (5, 3))
        gb = gelu(128, "g", lambda b: b < N1, "s17", 0)
        e1 = flat(gb[:N1])
        for i in range(len(PE), 16): e1.insert((i - len(PE)) * opt.get("pd", 12), lambda i=i: pub(i))
        a.e("s_nop 3")
        run(e1)
        fs(12)
        def arrive():
            a.e(f"v_mov_b32 v13, {LDS_CNT}")
            a.e("v_mov_b32 v14, 1")
            q.wait("Xst")
            a.e("s_mov_b64 exec, 1")
            q.l("ds_add_rtn_u32 v15, v13, v14", "cnt")
            a.e("s_mov_b64 exec, -1")
        def sig2():
            q.wait("cnt")
            a.e("v_readfirstlane_b32 s28, v15")
            a.e("s_and_b32 s26, s2, 3")
            a.e("s_lshl_b32 s26, s26, 6")
            a.e("s_cmp_lg_u32 s28, 1")
            a.e(f"s_cbranch_scc1 {L('sig2')}")
            a.e("s_mov_b64 exec, 1")
            a.e("buffer_atomic_add v14, off, s[92:95], s26 offset:8")
            a.e("s_mov_b64 exec, -1")
            a.label(L("sig2"))
        K2 = opt.get("k2", 19)
        at(K2, 8, arrive)
        at(K2 + 1, 8, sig2)
        steps(16, 32, flat(gb[N1:]), lead=2)
        fs(7)
        a.e("s_lshl_b32 s26, s16, 7")
        a.e("s_add_u32 s17, s17, s26")
        a.e("s_sub_u32 s17, s17, 512")
        ua = gelu(192, "ua", lambda b: b >= N2, "s17", 32768)
        steps(32, 48, flat(ua[:N2]))
        assert not fx[0]
        fs(8)
        ub = gelu(128, "ub", lambda b: True, "s17", 32768 + 128)
        rest = ua[N2:] + ub
        def dma(n0, n, lds0, tag):
            for i in range(n):
                if i % 4 == 0:
                    a.e(f"s_add_u32 m0, {lds0}, {n0 + 1024*i}")
                    a.e(f"s_add_u32 s7, {lds0}, {n0 + 1024*i}")
                q.v(f"buffer_load_dwordx4 v3, s[8:11], s7 offen offset:{1024*(i%4)} sc1 lds", tag)
        stream_srd()
        setup()
        a.e("s_lshl_b32 s6, s19, 14")
        a.e("s_lshl_b32 s20, s19, 13")
        BS, BA, BB = opt.get("pb", (7, 11, 12))
        assert (BA - len(ua[N2:])) % 2 == 0 if BA >= len(ua[N2:]) else (N2 + BA) % 2 == 0
        for n in range(len(rest) + 1):
            if n == BS:
                q.wait("St")
                a.e("s_barrier")
                st(2); fs(9)
                dma(32768, 16, "s6", "kv1")
            if n == BA:
                q.all(vm=False)
                a.e("s_barrier")
                a.e(f"s_mul_i32 s26, s19, {16*SS - 8192}")
                a.e(f"s_add_u32 s26, s26, {LDS_SC2 - LDS_SC}")
                a.e(f"v_add_u32 v{SW}, s26, v{SW}")
                a.e(f"v_add_u32 v{SR}, s26, v{SR}")
                dma(65536, 8, "s20", "kv2"); dma(81920, 8, "s20", "kv2")
            if n == BB:
                q.wait("kv1")
                a.e("s_barrier")
                fs(10)
                signal(a, L, "sig3", 2, 4)
                dma(98304, 16, "s6", "kv3")
            if n < len(rest):
                ops = list(rest[n])
                if n >= BS:
                    for i in range(0, len(ops), 4):
                        if vreads: ops.insert(i, lambda x=vreads.pop(0): q.l(x))
                run(ops)
        assert not vreads
        zero()
        q.wait("kv2")
        q.all(vm=False)
    return qk_part, pv_part
```

```python
import sys
sys.path.insert(0, "gen")
from asmlib import *
from attn2 import gen_attn
KNAME = "standalone__conformer_family_branchformer__speech_kernel"

def build(path, stamp=0, opt=None):
    a = Asm()
    a('.amdgcn_target "amdgcn-amd-amdhsa--gfx950"')
    l = gen_attn(a, KNAME, stamp=stamp, opt=opt)
    t = a.text().replace(KNAME + "_", "L_")
    open(path, "w").write(l + "\n" + t)

if __name__ == "__main__":
    build("v3.s")
    build("v3_st.s", stamp=1)
    build("v3_fs.s", stamp=2)
    build("v3f_fs.s", stamp=3)
    build("b_fs.s", stamp=3, opt=dict(far=1))
    build("map1_fs.s", stamp=3, opt=dict(map=1))
```

```python
import sys
sys.path.insert(0, "gen")
from asmlib import *
from attn2 import gen_attn
KNAME = "standalone__conformer_family_branchformer__speech_kernel"

def build(path, stamp=0, opt=None):
    a = Asm()
    a('.amdgcn_target "amdgcn-amd-amdhsa--gfx950"')
    l = gen_attn(a, KNAME, stamp=stamp, opt=opt)
    t = a.text().replace(KNAME + "_", "L_")
    open(path, "w").write(l + "\n" + t)

if __name__ == "__main__":
    build("v3.s")
    build("v3_st.s", stamp=1)
    build("v3_fs.s", stamp=2)
    build("v3f_fs.s", stamp=3)
    build("h1.s", opt=dict(xmod="", xs=0, xb=6))
    build("h2.s", opt=dict(xs=0, xb=6))
    build("h3.s", opt=dict(ta=0, tu=0))
    build("h4.s", opt=dict(omod="sc1"))
```

```python
import sys
sys.path.insert(0, "gen")
from asmlib import *
from layout import *
from conv import Conv
from aux import gen_aux
from front import *

RS = 1056
LDS_P = 131072
LDS_MX = 139264
LDS_FG = LDS_MX + 512
LDS_ML = LDS_MX + 1024
LDS_HALO = LDS_ML + 1024
LDS_TAP = LDS_HALO + 2048
LDS_STT = LDS_TAP + 3072
LDS_ATT = 163840
ES = 272
NA = 16
ARING = [16 * i for i in range(16)]
BIG = 2.0 ** 100
SPIN = 200000
FK = [0, 8, 16, 20, 24, 28, 30]

DROP = []
ALIGN = [0]
def emit_interval(a, mfmas, fill, lo=0, hi=None):
    for i, m in enumerate(mfmas):
        if i < lo or (hi is not None and i >= hi): continue
        if m is not None:
            if ALIGN[0]: a(".p2alignl 3, 0xbf800000")
            a.e(m)
        for f in fill.get(i, []):
            if any(f.startswith(d) for d in DROP): continue
            a.e(f)

def conv_addr(a, NR, row0):
    a.e("v_lshrrev_b32 v12, 5, v2")
    a.e(f"v_mul_u32_u24 v12, {NR}, v12")
    a.e(f"v_add_u32 v12, {row0}, v12")
    a.e("v_and_b32 v13, 31, v2")
    a.e("v_lshlrev_b32 v13, 4, v13")
    a.e("v_lshl_add_u32 v14, v12, 9, v13")
    a.e("s_and_b32 s26, s25, 3")
    a.e("s_lshl_b32 s26, s26, 15")
    a.e("v_add_u32 v232, s26, v14")
    a.e("v_add_u32 v235, s49, v14")
    a.e("v_and_b32 v14, 4, v12")
    a.e("v_lshlrev_b32 v14, 5, v14")
    a.e("v_xor_b32 v236, v235, v14")
    a.e(f"v_add_u32 v238, {LDS_TAP}, v13")
    a.e(f"v_add_u32 v13, {LDS_HALO}, v13")
    a.e("v_cmp_eq_u32 vcc, 0, v12")
    a.e("v_subrev_u32 v233, 1024, v232")
    a.e(f"v_add_u32 v234, {512*NR}, v232")
    a.e("v_cndmask_b32 v233, v233, v13, vcc")
    a.e(f"v_cmp_eq_u32 vcc, {64-NR}, v12")
    a.e("v_add_u32 v13, 1024, v13")
    a.e("v_lshlrev_b32 v237, 3, v12")
    a.e("v_cndmask_b32 v234, v234, v13, vcc")
    a.e(f"v_add_u32 v237, {LDS_STT}, v237")

def gen_tail(a, L, st, fs, opt):
    q = Seq(a)
    PF = opt.get("pf", 10)
    q.vm = [f"A{k}" for k in range(PF) for _ in range(4)]
    BF = [32, 48]; YR = 64; XR = 96
    NS = 32
    acc = lambda k: 128 if k < 16 else 192
    def bread(k, tb):
        s = k % 8
        r = BF[k % 2] + 4 * tb
        if k % 16 < 8:
            return f"ds_read_b128 v[{r}:{r+3}], v6 offset:{8192*tb + 1024*s}"
        return f"ds_read_b128 v[{r}:{r+3}], v{28 + s % 4} offset:{8192*tb + 256*(s//4)}"
    a.e("v_add_u32 v6, s48, v3")
    a.e("s_waitcnt lgkmcnt(0)")
    fs(5)
    a.e("s_barrier")
    for tb in range(4): q.l(bread(0, tb), "B0")
    a.e("v_and_b32 v4, 15, v2")
    a.e("v_lshrrev_b32 v5, 4, v2")
    a.e("v_mov_b32 v12, 1")
    a.e("v_mov_b32 v15, 0x3f80")
    SEL = 16
    side = {}
    def at(k, g, fn): side.setdefault((k + g // 16, g % 16), []).append(fn)
    def spread(k, g, ops, per=2, skip=lambda g: False):
        n = 16 * k + g
        ops = list(ops)
        while ops:
            if not skip(n % 16):
                for _ in range(per):
                    if ops:
                        o = ops.pop(0)
                        at(n // 16, n % 16, o if callable(o) else (lambda o=o: a.e(o)))
            n += 1
    lo8 = lambda g: g < 8
    spread(0, 8, ["v_and_b32 v13, 7, v4", "v_lshlrev_b32 v13, 1, v13", "v_xor_b32 v13, v13, v5", "v_lshlrev_b32 v13, 4, v13",
                  "v_lshl_add_u32 v13, v4, 9, v13", "v_add_u32 v28, s49, v13", "v_xor_b32 v29, 64, v28", "v_xor_b32 v30, 128, v28",
                  "v_xor_b32 v31, 192, v28",
                  "s_and_b32 s26, s16, 2", "s_add_u32 s26, s26, s25", "s_and_b32 s26, s26, 3", "s_lshl_b32 s26, s26, 1",
                  "s_and_b32 s28, s16, 1", "s_add_u32 s26, s26, s28", "s_lshl_b32 s42, s26, 14",
                  "v_lshrrev_b32 v13, 1, v4", "v_xor_b32 v13, v13, v5", "v_lshlrev_b32 v13, 4, v13", "v_lshl_add_u32 v13, v4, 7, v13",
                  "v_add_u32 v8, s42, v13", "v_xor_b32 v9, 64, v8", "v_add_u32 v7, s42, v3",
                  "v_lshrrev_b32 v13, 3, v2", "v_lshrrev_b32 v14, 4, v2", "v_xor_b32 v14, v14, v2", "v_and_b32 v14, 7, v14",
                  "v_lshlrev_b32 v14, 4, v14", "v_lshl_add_u32 v10, v13, 10, v14", "v_xor_b32 v11, 64, v10",
                  "v_lshrrev_b32 v13, 2, v4", "v_cmp_eq_u32 vcc, v13, v5", "v_and_b32 v13, 1, v4", "v_lshlrev_b32 v13, 4, v13",
                  "v_lshlrev_b32 v13, v13, v15", "v_cndmask_b32 v13, 0, v13, vcc", "v_and_b32 v14, 2, v4", "v_cmp_eq_u32 vcc, 0, v14",
                  f"v_mov_b32 v{SEL+2}, 0", f"v_mov_b32 v{SEL+3}, 0", f"v_cndmask_b32 v{SEL}, 0, v13, vcc", f"v_sub_u32 v{SEL+1}, v13, v{SEL}",
                  f"v_mov_b32 v{SEL+4}, v{SEL}", f"v_mov_b32 v{SEL+5}, v{SEL+1}"], skip=lo8)
    KX = opt.get("kx", 26)
    for i in range(8):
        def xl(i=i):
            a.e(f"s_add_u32 m0, s42, {1024*i}")
            a.e(f"s_add_u32 s26, s58, {8192*i}")
            q.v(f"buffer_load_dwordx4 v{10 + i%2}, s[32:35], s26 offen lds", "X")
        at(KX, 1 + opt.get("dx", 4) * i, xl)
        at(opt.get("ku", 30), 8 + i, lambda i=i: q.l(f"ds_read_b128 v[{XR+4*i}:{XR+4*i+3}], v{8 + i%2} offset:{2048*(i//2)}", "XF", need=("X",)))
    YS = opt.get("ys", 2)
    for i in range(8):
        tb, h = i // 2, i % 2
        k, g0 = (16 + i // 2, 8 + 4 * (i % 2)) if YS == 2 else (16, 8 + 3 * i)
        src = [128 + 16 * (2 * h + ee) + 4 * tb + j for ee in range(2) for j in range(4)]
        for j in range(4):
            at(k, g0 + j // 2, lambda j=j, i=i, src=src: a.e(f"v_cvt_pk_bf16_f32 v{YR+4*i+j}, v{src[2*j]}, v{src[2*j+1]}"))
        at(k, g0 + 2, lambda i=i: q.v(f"buffer_store_dwordx4 v[{YR+4*i}:{YR+4*i+3}], v3, s[44:47], s{54 + i//4} offen offset:{1024*(i%4)} {opt.get('sm_', 'nt')}", "Yst"))
    KF, KL, KC = opt.get("k", (24, 27, 29))
    at(KF, 9, lambda: release(a, q, L, "ry", "Yst", "buffer_store_dword v12, off, s[12:15], s56",
        [f"buffer_store_dwordx4 v[{YR+4*i}:{YR+4*i+3}], v3, s[12:15], s{54 + i//4} offen offset:{1024*(i%4)} sc1" for i in range(8)]))
    yl = f"buffer_load_dword v14, off, s[12:15], s57 {opt.get('pm', 'sc1')}"
    at(KL, 9, lambda: q.v(yl, "yf"))
    def gety():
        poll(a, q, L, "y", [yl], ["v_readfirstlane_b32 s26, v14", "s_cmp_eq_u32 s26, 1"], "yf", slp=1)
        a.e("s_xor_b32 s54, s54, 0x10000")
        a.e("s_xor_b32 s55, s55, 0x10000")
    at(KC, 7, gety)
    for i in range(8):
        at(KC, 8 + i, lambda i=i: q.v(f"buffer_load_dwordx4 v[{YR+4*i}:{YR+4*i+3}], v3, s[12:15], s{54 + i//4} offen offset:{1024*(i%4)} {opt.get('lm', 'sc1')}", f"Y{i}"))
    nl = 4 * PF
    AS = opt.get("as", "4" * 16 + "0000" + "4" * 12)
    LG = opt.get("lg", (1, 5, 9, 13, 3))
    for k in range(NS):
        assert nl >= 4 * min(NS, k + 3)
        if k == 0: st(5)
        if k in FK: fs(6 + FK.index(k))
        q.wait(f"A{k}", f"B{k}")
        g = 0
        for nb_ in range(4):
            for tb_ in range(4):
                nb, tb = ORD16[g] if opt.get("o2", 1) else (nb_, tb_)
                d = acc(k) + 16 * nb + 4 * tb; r = areg(k, nb); b = BF[k % 2] + 4 * tb
                c = "0" if k % 16 == 0 else f"v[{d}:{d+3}]"
                a.e(f"{M16} v[{d}:{d+3}], a[{r}:{r+3}], v[{b}:{b+3}], {c}")
                if g < 8 and g % 2 == 0 and k + 1 < NS:
                    q.l(bread(k + 1, g // 2), f"B{k+1}")
                if nl < 4 * NS and nl // 4 < k + NA and g in LG[:int(AS[k])]:
                    aload(a, q, nl // 4, nl % 4); nl += 1
                for fn in side.pop((k, g), []): fn()
                g += 1
    assert not side, side.keys()
    st(6); fs(13)
    def sel(i, R, tag):
        tb, h = i // 2, i % 2
        out = []
        for ee in range(2):
            d = 192 + 16 * (2 * h + ee) + 4 * tb
            out.append(lambda d=d, ee=ee: q.e(f"{M16} v[{d}:{d+3}], v[{SEL+2*ee}:{SEL+2*ee+3}], v[{R+4*i}:{R+4*i+3}], v[{d}:{d+3}]", need=(tag,)))
        return out
    for i in range(8):
        for f in sel(i, XR, "XF"): f()
    PK = 128
    post = []
    for i in range(8):
        tb, h = i // 2, i % 2
        src = [192 + 16 * (2 * h + ee) + 4 * tb + j for ee in range(2) for j in range(4)]
        o = [f"v_cvt_pk_bf16_f32 v{PK+4*i+j}, v{src[2*j]}, v{src[2*j+1]}" for j in range(4)]
        o.append(lambda i=i, tb=tb, h=h: q.l(f"ds_write_b128 v{8+h}, v[{PK+4*i}:{PK+4*i+3}] offset:{8192 + 2048*tb}"))
        if h:
            o += [lambda ii=ii: q.l(f"ds_read_b128 v[{160+4*ii}:{163+4*ii}], v7 offset:{8192 + 1024*ii}", f"E{ii}") for ii in (i - 1, i)]
        post.append(o)
    def out(ii):
        a.e(f"s_add_u32 s26, s58, {8192*ii}")
        q.v(f"buffer_store_dwordx4 v[{160+4*ii}:{163+4*ii}], v{10 + ii%2}, s[36:39], s26 offen {opt.get('omod', 'nt')}", need=(f"E{ii}",))
    R_ = lambda ops: [x() if callable(x) else a.e(x) for x in ops]
    for i in range(8):
        m = sel(i, YR, f"Y{i}")
        o = post[i - 4] if i >= 4 else []
        m[0](); R_(o[:2]); m[1](); R_(o[2:])
    fs(14)
    for i in range(4, 8):
        R_(post[i])
        out(i - 4)
    for ii in range(4, 8): out(ii)

def ER(i):
    return (96 + 8 * i) if i < 4 else (32 + 8 * (i - 4))

def areg(k, nb):
    return ARING[k % NA] + 4 * nb

def aload(a, q, k, nb):
    s = k % 8
    if nb == 0:
        if k % 16 < 8:
            a.e(f"s_add_u32 s59, {'s52' if k < 16 else 's53'}, {524288 + 32768*(s//4) + 4096*(s%4)}")
        else:
            a.e(f"s_add_u32 s59, {'s50' if k < 16 else 's51'}, {4096*s}")
    r = areg(k, nb)
    q.v(f"buffer_load_dwordx4 a[{r}:{r+3}], v3, s[12:15], s59 offen offset:{1024*nb} sc1", f"A{k}")

def gen_attn(a, name, stamp=False, opt=None):
    dg = [3 + (15 * i) // 4 for i in range(16)]
    opt = dict(dict(ps=1, xe=1, qw=62, dg=dg, mg=[2, 17, 32, 47, 60], rg=[g for g in range(8, 60) if g not in dg][:32], rot=4,
                    kg_=list(range(8, 16)) + list(range(24, 32)), qbe=57, pbe=58, pvg=[4, 57, 60, 60, 60, 61, 61, 61]), **(opt or {}))
    OOL[:] = []
    DROP[:] = opt.get('drop', [])
    ALIGN[0] = opt.get('al', 0)
    Fine.op = 's_memtime' if opt.get('cyc') else 's_memrealtime'
    nP = 16
    L = lambda s: f"{name}_{s}"
    st = Stamper(a, stamp in (1, 5))
    fs = Fine(a, stamp == 2)
    ff = Fine(a, stamp == 3)
    fp = Fine(a, stamp == 6)
    kernel_begin(a, name)
    a.e("s_cmp_ge_u32 s2, 256")
    a.e(f"s_cbranch_scc1 {L('end')}")
    a.e(f"s_load_dwordx2 s[4:5], s[0:1], {KA['ws']}")
    a.e(f"s_load_dwordx2 s[6:7], s[0:1], {KA['x']}")
    a.e(f"s_load_dwordx2 s[40:41], s[0:1], {KA['wq']}")
    a.e(f"s_load_dwordx2 s[8:9], s[0:1], {KA['wk']}")
    a.e(f"s_load_dwordx2 s[96:97], s[0:1], {KA['wup']}")
    a.e(f"s_load_dwordx2 s[44:45], s[0:1], {KA['dw']}")
    a.e(f"s_load_dwordx4 s[48:51], s[0:1], {KA['out']}")
    a.e(f"s_load_dwordx4 s[52:55], s[0:1], {KA['wv']}")
    a.e(f"s_load_dwordx4 s[56:59], s[0:1], {KA['wdn']}")
    a.e("s_and_b32 s20, s2, 7")
    a.e("s_lshl_b32 s20, s20, 5")
    a.e("s_lshr_b32 s21, s2, 3")
    a.e("s_add_u32 s31, s20, s21")
    if opt.get("sw62", 1):
        a.e("s_and_b32 s20, s31, 62")
        a.e("s_cmp_eq_u32 s20, 60")
        a.e("s_cselect_b32 s20, 64, 0")
        a.e("s_xor_b32 s31, s31, s20")
    if opt.get("map") == 1:
        a.e("s_and_b32 s20, s2, 6")
        a.e("s_lshl_b32 s20, s20, 5")
        a.e("s_lshl_b32 s21, s21, 1")
        a.e("s_add_u32 s31, s20, s21")
        a.e("s_and_b32 s20, s2, 1")
        a.e("s_add_u32 s31, s31, s20")
    a.e("s_lshr_b32 s21, s31, 7")
    a.e("s_and_b32 s22, s31, 1")
    a.e("s_bfe_u32 s23, s31, 0x60001")
    a.e("v_lshrrev_b32 v1, 6, v0")
    a.e("v_and_b32 v2, 63, v0")
    a.e("v_readfirstlane_b32 s16, v1")
    a.e("v_lshlrev_b32 v3, 4, v2")
    a.e("s_mul_i32 s24, s21, 4096000")
    N0 = opt.get("n0", 62)
    a.e(f"s_mul_i32 s25, s22, {125 - 2*N0}")
    a.e(f"s_add_i32 s25, s25, {N0}")
    a.e("s_lshl_b32 s27, s23, 16")
    a.e("s_waitcnt lgkmcnt(0)")
    st(0); ff(0)
    def fin_srd(d, n):
        a.e(f"s_and_b32 s{d+1}, s{d+1}, 0xffff")
        a.e(f"s_mov_b32 s{d+2}, {n}")
        a.e(f"s_mov_b32 s{d+3}, 0x00020000")
    q = Seq(a)
    srd_off(a, 32, 6, "s24", 4096000)
    a.e("v_lshrrev_b32 v4, 3, v2")
    a.e("v_and_b32 v5, 7, v2")
    a.e("v_lshlrev_b32 v5, 4, v5")
    a.e("v_lshl_add_u32 v4, v4, 10, v5")
    a.e("s_lshl_b32 s26, s16, 14")
    a.e("s_add_u32 s26, s26, s27")
    a.e("s_lshl_b32 s28, s22, 9")
    a.e("s_add_u32 s26, s26, s28")
    a.e("v_mov_b32 v1, v4")
    a.e("s_mov_b32 s20, s26")
    def xld(s_):
        if s_ % 4 == 0: a.e(f"s_xor_b32 s7, s20, {8192*(s_//8) + 512*((s_//4)%2)}")
        q.v(f"buffer_load_dwordx4 v[{16+4*s_}:{19+4*s_}], v1, s[32:35], s7 offen offset:{128*(s_%4)} {opt.get('xmod', 'nt')}", f"x{s_}")
    NX = opt.get("nx", 16)
    for s_ in range(NX): xld(s_)
    opt["xrest"] = [lambda s_=s_: xld(s_) for s_ in range(NX, 16)]
    fin_srd(96, 1048576)
    touches(a, q, L, opt)
    fin_srd(40, 524288); fin_srd(8, 524288); fin_srd(44, 5120)
    make_srd(a, 12, 4, 0x4000000)
    make_srd(a, 92, 50, 256)
    srd_off(a, 36, 48, "s24", 4096000)
    mi = m_issue(a, q)
    def clear():
        a.e("v_mov_b32 v14, 0")
        a.e("v_lshlrev_b32 v13, 2, v2")
        a.e("s_lshl_b32 s26, s31, 2")
        a.e("s_add_u32 s26, s26, s16")
        a.e("s_lshl_b32 s28, s26, 8")
        a.e(f"s_add_u32 s28, s28, {WS_MX}")
        q.v("buffer_store_dword v14, v13, s[12:15], s28 offen sc1", "St")
        a.e("s_lshl_b32 s28, s31, 5")
        a.e("s_add_u32 s28, s28, s16")
        a.e("s_lshl_b32 s28, s28, 2")
        a.e(f"s_add_u32 s28, s28, {WS_FL}")
        a.e("v_and_b32 v13, 48, v2")
        a.e("s_getreg_b32 s26, hwreg(HW_REG_XCC_ID, 0, 4)")
        a.e("v_cmp_eq_u32 vcc, 48, v13")
        a.e("v_mov_b32 v14, s26")
        a.e("s_nop 0")
        a.e("v_cndmask_b32 v14, 0, v14, vcc")
        q.v("buffer_store_dword v14, v13, s[12:15], s28 offen sc1", "St")
    a.e("s_cmp_ge_u32 s23, 63")
    a.e(f"s_cbranch_scc1 {L('aux')}")
    def emit_aux(q0=q, vm0=list(q.vm)):
        a.label(L("aux"))
        q0.vm, q0.lg = list(vm0), []
        for f in mi: f()
        q0.v("buffer_load_dword v0, v7, s[44:47], 0 offen")
        m_addr(a)
        mfin = m_tile(a, q0)
        mfin()
        q0.all()
        a.e("s_barrier")
        signal(a, L, "sig1a", 0, 0)
        signal(a, L, "sig2a", 1, 8)
        signal(a, L, "sig3a", 2, 4)
        a.e("s_lshl_b32 s20, s21, 1")
        a.e("s_add_u32 s20, s20, s22")
        gen_aux(a, L, st, ff, opt)
        signal(a, L, "sig4a", 0, 12, shard=False)
        for k in range(5, 7): st(k)
        for k in range(15): fs(k)
        if stamp in (4, 6):
            for k in range(16): Fine(a, True)(k)
        for k in range(9, 15): ff(k)
        a.e(f"s_branch {L('fin')}")
    qk_part, pv_part = gen_front(a, q, L, st, ff, mi, clear, opt)
    qf = q
    qk_part()
    def tail_consts():
        t = Asm()
        t.e("s_lshl_b32 s26, s22, 2")
        t.e("s_add_u32 s26, s26, s16")
        t.e("s_lshl_b32 s53, s26, 16")
        t.e(f"s_add_u32 s53, s53, {WS_W3}")
        t.e("s_xor_b32 s52, s53, 0x40000")
        t.e("s_lshl_b32 s58, s26, 7")
        t.e("s_add_u32 s58, s58, s27")
        t.e("s_xor_b32 s54, s31, 1")
        t.e("s_lshl_b32 s54, s54, 3")
        t.e("s_add_u32 s54, s54, s16")
        t.e("s_lshl_b32 s54, s54, 13")
        t.e(f"s_add_u32 s54, s54, {WS_GU + 32768}")
        t.e("s_add_u32 s55, s54, 4096")
        t.e("s_lshl_b32 s26, s22, 15")
        t.e("s_add_u32 s50, s52, s26")
        t.e("s_add_u32 s51, s53, s26")
        t.e("s_lshl_b32 s26, s22, 14")
        t.e("s_add_u32 s52, s52, s26")
        t.e("s_add_u32 s53, s53, s26")
        t.e("s_add_u32 s26, s25, 3")
        t.e("s_and_b32 s26, s26, 3")
        t.e("s_lshl_b32 s48, s26, 15")
        t.e("s_add_u32 s26, s25, 1")
        t.e("s_and_b32 s26, s26, 3")
        t.e("s_lshl_b32 s49, s26, 15")
        t.e("s_lshl_b32 s56, s31, 5")
        t.e("s_add_u32 s56, s56, s16")
        t.e("s_lshl_b32 s56, s56, 2")
        t.e(f"s_add_u32 s56, s56, {WS_FL}")
        t.e("s_xor_b32 s57, s56, 128")
        return [x.strip() for x in t.lines]
    a.e("s_mov_b32 s17, s25")
    a.e(f"s_mov_b32 s101, {f2u(-BIG)}")
    NEAR = ["s_cmp_eq_u32 s21, 0", "s_cselect_b32 s46, s14, 0", "s_mov_b64 s[44:45], s[12:13]"]
    def guard(r):
        return [f"v_add_f32 v{r}, v{r}, v{r+1}", f"v_cmp_nle_f32 vcc, s101, v{r}", "s_cmp_eq_u32 s101, 0", "s_cselect_b64 s[28:29], 0, vcc",
                "s_cmp_lg_u64 s[28:29], 0", f"s_cbranch_scc1 {L('redo')}"]

    def dma_group():
        return "s_and_b32 m0, s18, 0x1ffff", [f"buffer_load_dwordx4 v3, s[8:11], s18 offen offset:{1024*j} {opt.get('kvmod', 'sc1')} lds" for j in range(4)]
    def dma_tile():
        for g in range(4):
            pre, ld = dma_group()
            a.e(pre); a.e("s_nop 0")
            for x in ld: a.e(x)
            a.e(f"s_add_u32 s18, s18, {4096 if g < 3 else 32768 - 3*4096}")
    def place_dma(fill, gaps):
        k = 0
        for g in range(4):
            pre, ld = dma_group()
            fill.setdefault(gaps[k] - 1, []).append(pre)
            for j in range(4):
                fill.setdefault(gaps[k], []).append(ld[j]); k += 1
            fill.setdefault(gaps[k - 1] + 1, []).append(f"s_add_u32 s18, s18, {4096 if g < 3 else 32768 - 3*4096}")
    auxl = cnt_load(4, "v11")
    auxc = ["v_cmp_le_u32 vcc, v7, v14"] + CNT_OK[1:]

    KB = [32, 96]; S = 160; NEGM = 176; E = 192; PK = 200; LS = 204
    VK = 8; VPW = 9; TMP = 10
    MX0 = 208
    def qk_setup():
        a.e("v_and_b32 v4, 15, v2")
        a.e("v_lshrrev_b32 v5, 4, v2")
        a.e("v_and_b32 v6, 0x27, v2")
        a.e("v_and_b32 v7, 8, v2")
        a.e("v_lshl_add_u32 v6, v7, 1, v6")
        a.e("v_and_b32 v7, 16, v2")
        a.e("v_lshrrev_b32 v7, 1, v7")
        a.e("v_add_lshl_u32 v6, v6, v7, 4")
        a.e("s_lshl_b32 s29, s16, 14")
        a.e(f"v_add_u32 v{VK}, s29, v6")
        a.e("s_lshl_b32 s29, s16, 11")
        a.e(f"s_add_u32 s29, s29, {LDS_P}")
        a.e(f"v_lshl_add_u32 v{VPW}, v2, 3, s29")
        for i in range(4):
            a.e(f"v_mov_b32 v{LS+i}, 0")
        for i in range(4):
            a.e(f"v_mov_b32 v{MX0+i}, 0xff800000")
    qk_setup()
    def kread(par, s, imm):
        r = KB[par] + 4 * s
        return f"ds_read_b128 v[{r}:{r+3}], v{VK} offset:{imm + 1024*s}"
    def chain(par, qb, c0):
        out = []
        for s in range(16):
            k = KB[par] + 4 * s; q = 64 * qb + 4 * s; d = S + 4 * qb
            c = c0 if s == 0 else f"v[{d}:{d+3}]"
            out.append(f"{M16} v[{d}:{d+3}], v[{k}:{k+3}], a[{q}:{q+3}], {c}")
        return out
    q = Seq(a)
    mf = [m for qb in range(4) for m in chain(0, qb, "0")]
    ST = 212
    tc = tail_consts() + [
        "s_mul_i32 s28, s16, 34", "s_lshl_b32 s29, s23, 6", "s_add_u32 s28, s28, s29", "s_sub_u32 s28, s28, 2",
        f"v_add_u32 v{ST+16}, s28, v2",
        f"v_max_i32 v{ST+17}, 0, v{ST+16}", f"v_min_i32 v{ST+17}, {T-1}, v{ST+17}", f"v_lshrrev_b32 v{ST+18}, 6, v{ST+17}", f"v_and_b32 v{ST+17}, 63, v{ST+17}",
        f"v_lshlrev_b32 v{ST+17}, 3, v{ST+17}", f"v_lshl_add_u32 v{ST+17}, v{ST+18}, 12, v{ST+17}",
        "s_lshr_b32 s6, s31, 7", "s_lshl_b32 s6, s6, 18", f"s_add_u32 s6, s6, {WS_ST}",
        "s_lshl_b32 s28, s16, 1", "s_add_u32 s28, s28, s23", "s_sub_u32 s28, s28, 1", "s_max_i32 s28, s28, 0", "s_min_i32 s28, s28, 62",
        "s_sub_u32 s28, s28, s23", "s_lshl_b32 s28, s28, 1", "s_add_u32 s28, s28, s31", "s_lshl_b32 s28, s28, 16",
        "s_xor_b32 s29, s16, 1", f"s_mul_i32 s29, s29, {62*512}", "s_add_u32 s28, s28, s29", f"s_add_u32 s7, s28, {WS_GU}",
        "s_lshl_b32 s29, s16, 10", f"s_add_u32 s42, s29, {LDS_HALO}",
        "s_xor_b32 s28, s31, 1", "s_lshl_b32 s28, s28, 1", "s_add_u32 s28, s28, s16", "s_lshl_b32 s28, s28, 9", f"s_add_u32 s28, s28, {WS_MX}",
        f"v_lshl_add_u32 v{ST+18}, v2, 3, s28", f"v_writelane_b32 v{ST+18}, s57, 1",
        f"s_mul_i32 s28, s16, {34*8}", f"s_add_u32 s28, s28, {LDS_STT}", f"v_lshl_add_u32 v{ST+19}, v2, 3, s28"]
    t_ = Asm()
    t_.e("s_lshl_b32 s28, s16, 5")
    conv_addr(t_, 16, "s28")
    for x in ["s_lshl_b32 s28, s16, 9", "s_lshl_b32 s41, s31, 10", "s_add_u32 s41, s41, s28", f"s_add_u32 s41, s41, {WS_MX}",
              f"s_add_u32 s28, s28, {LDS_ML}", "v_lshlrev_b32 v244, 3, v2", "v_add_u32 v245, s28, v244", f"v_add_u32 v246, {LDS_ML + 4}, v244",
              "s_mov_b32 s43, 0xffff0000"]: t_.e(x)
    tc += [x.strip() for x in t_.lines]
    qf.wait("kv0", "qd")
    qf.all(vm=False)
    fy = Fine(a, opt.get("fy")); fy(9)
    a.e("s_barrier")
    fy(10)
    st(2); ff(10)
    if opt.get("qe"):
        for n in range(12): q.l(kread(0, n, 0), f"K{n}")
        for n in range(64):
            q.e(mf[n], need=(f"K{n}",))
            if n < 4: q.l(kread(0, 12 + n, 0), f"K{12+n}")
            elif tc: a.e(tc.pop(0))
    else:
        a.e(f"v_add_u32 v7, {LDS_XS}, v3")
        rd = []
        for n in range(64):
            qb, s = n // 16, n % 16
            rd.append((f"ds_read_b128 a[{64*qb+4*s}:{64*qb+4*s+3}], v7 offset:{16384*((s%8)//2) + 8192*(s//8) + 2048*qb + 1024*(s%2)}", f"Q{n}"))
            if qb == 0: rd.append((kread(0, s, 0), f"Q{n}"))
        for _ in range(14): q.l(*rd.pop(0))
        for n in range(64):
            if n % 2 == 0: q.wait(f"Q{n+1}")
            a.e(mf[n])
            if opt.get("q1") and n % 3 == 0 and n < 48:
                i = n // 3
                if i % 4 == 0:
                    a.e(f"s_add_u32 m0, s19, {32768 + 1024*i}")
                    a.e(f"s_add_u32 s18, s19, {32768 + 1024*i}")
                a.e(f"buffer_load_dwordx4 v3, s[8:11], s18 offen offset:{1024*(i%4)} sc1 lds")
            for _ in range(2 if n < 14 else 1):
                if rd: q.l(*rd.pop(0))
            for _ in range(0 if n < 14 else 2 if rd else 3):
                if tc: a.e(tc.pop(0))
        a.label(L("qk_again"))
        fy(11)
        a.e("s_barrier")
        fy(12)
    assert not tc
    n0_ = len(a.lines)
    a.e("s_nop 7")
    for qb in range(4):
        d = S + 4 * qb
        a.e(f"v_max3_f32 v{E+qb}, v{d}, v{d+1}, v{d+2}")
        a.e(f"v_max3_f32 v{E+qb}, v{E+qb}, v{d+3}, v{MX0+qb}")
    def group_reduce(r, t, op):
        for sw in ("v_permlane16_swap_b32", "v_permlane32_swap_b32"):
            for qb in range(4):
                a.e(f"v_mov_b32 v{t+qb}, v{r+qb}")
            a.e("s_nop 1")
            for qb in range(4):
                a.e(f"{sw} v{r+qb}, v{t+qb}")
            a.e("s_nop 1")
            for qb in range(4):
                a.e(f"{op} v{r+qb}, v{r+qb}, v{t+qb}")
    group_reduce(E, E + 4, "v_max_f32")
    a.e("s_lshl_b32 s29, s16, 8")
    a.e(f"s_add_u32 s29, s29, {LDS_MX}")
    a.e(f"v_lshl_add_u32 v{TMP}, v4, 4, s29")
    a.e(f"ds_write_b128 v{TMP}, v[{E}:{E+3}]")
    a.e(f"v_xor_b32 v{TMP}, 256, v{TMP}")
    if opt.get("q3", 1):
        mx = a.lines[n0_:]; del a.lines[n0_:]
        a.e("s_lshl_b32 s19, s16, 14")
        for n, x in enumerate(mx):
            if n % 2 == 0 and n < 32:
                i = n // 2
                if i % 4 == 0:
                    a.e(f"s_add_u32 m0, s19, {98304 + 1024*i}")
                    a.e(f"s_add_u32 s18, s19, {98304 + 1024*i}")
                a.e(f"buffer_load_dwordx4 v3, s[8:11], s18 offen offset:{1024*(i%4)} sc1 lds")
            a("    s_nop 2" if n == 0 else x)
    a.e(f"s_waitcnt vmcnt({16 if opt.get('q3', 1) else 0}) lgkmcnt(0)")
    fy(13)
    a.e("s_barrier")
    fy(14)
    a.e(f"ds_read_b128 v[{E+4}:{E+7}], v{TMP}")
    for s in range(8):
        a.e(kread(1, s, 32768))
    a.e("s_waitcnt lgkmcnt(8)")
    for qb in range(4):
        a.e(f"v_max_f32 v{E+qb}, v{E+qb}, v{E+4+qb}")
    for qb in range(4):
        for j in range(4):
            a.e(f"v_sub_f32 v{NEGM+4*qb+j}, 0, v{E+qb}")
    a.e(f"v_mov_b32 v242, v{NEGM}")
    a.e("s_waitcnt lgkmcnt(4)")
    for s in range(8, 16):
        a.e(kread(1, s, 32768))
        if s in (9, 11, 13):
            qb = (s - 7) // 2
            a.e(f"v_mov_b32_dpp v242, v{NEGM+4*qb} quad_perm:[0,1,2,3] row_mask:{1 << qb:#x} bank_mask:0xf")
    for qb in range(4):
        for j in range(4):
            a.e(f"v_add_f32 v{S+4*qb+j}, v{S+4*qb+j}, v{NEGM+4*qb}")
    def softmax_ops(qb, par):
        e = E + 4 * (qb % 2); p = PK + 2 * (qb % 2); d = S + 4 * qb
        ex = [f"v_exp_f32{opt.get('e64', '')} v{e+j}, v{d+j}" for j in range(4)]
        ad = [f"v_add_f32 v{LS+qb}, v{LS+qb}, v{e+j}" for j in range(4)]
        cv = [f"v_cvt_pk_bf16_f32 v{p+j}, v{e+2*j}, v{e+2*j+1}" for j in range(2)]
        wr = f"ds_write_b64 v{VPW}, v[{p}:{p+1}] offset:{par*4096 + qb*512}"
        return ex, ad, cv, wr
    ex, ad, cv, wr = softmax_ops(0, 0)
    for x in ex + ["s_nop 0"] + cv + ad + [wr]: a.e(x)
    a.e("s_waitcnt lgkmcnt(1)")
    fill = {}
    ops = []
    for qb in range(1, 4):
        ex, ad, cv, wr = softmax_ops(qb, 0)
        ops += ex + [ad[0]] + cv + ad[1:] + [wr]
    for i, x in enumerate(ops):
        fill.setdefault(i * 15 // len(ops), []).append(x)
    ROT = opt.get("rot", 0)
    emit_interval(a, chain(1, 0, f"v[{NEGM}:{NEGM+3}]") + chain(1, 1, f"v[{NEGM+4}:{NEGM+7}]")[:ROT], fill)
    a.e("s_waitcnt vmcnt(0) lgkmcnt(0)")
    a.e("s_sub_u32 s17, s17, 1")
    fy(15)
    a.e("s_barrier")

    XT = ["buffer_load_dword v0, v7, s[32:35], s40 offen", "s_add_u32 s40, s40, 1024"]
    def qk_interval(par, lo=0, hi=None):
        mf = []
        for c in range(5):
            qb = (c + 1) % 4
            mf += chain(par if c < 3 else par ^ 1, qb, f"v[{NEGM+4*qb}:{NEGM+4*qb+3}]")
        mf = mf[ROT:64 + ROT]
        fill = {}
        F_ = lambda g, x: fill.setdefault(g, []).append(x)
        rgaps = opt.get("kg_", [1, 2, 3, 12, 13, 14, 16, 17, 18, 28, 29, 30, 32, 33, 34, 35])
        if par == 1: F_(rgaps[0] - 1, f"v_xor_b32 v{VK}, 0x10000, v{VK}")
        imm = 32768 * (par ^ 1)
        for s in range(16):
            F_(rgaps[s], kread(par ^ 1, s, imm))
        sm = opt.get("sm", [4, 5, 6, 7, 8, 8, 9, 10, 10, 11, 11])
        for c in range(4):
            ex, ad, cv, wr = softmax_ops(c, par)
            for g, x in zip(sm, ex + cv + [wr] + ad): F_(16 * c + g - ROT, x)
        kw = 47 - ROT
        nwr = sum(1 for c in range(4) if rgaps[-1] <= 16 * c + sm[6] - ROT <= kw)
        F_(kw, f"s_waitcnt lgkmcnt({nwr})")
        F_(kw + 1, "s_sub_u32 s17, s17, 1")
        if par == 1:
            F_(kw - 3, "s_cmp_lt_u32 s17, s40")
            fill.setdefault(kw - 2, []).extend([f"s_cbranch_scc1 {L('touch')}", L("touch_ret") + ":"])
        if stamp == 7:
            F_(kw + 2, "s_mov_b32 m0, s17"); F_(kw + 3, "v_writelane_b32 v240, s60, m0"); F_(kw + 3, "s_memtime s[60:61]")
        if opt.get("kt"):
            F_(opt["kt"][1], "buffer_load_dword v0, v3, s[8:11], s41 offen sc1"); F_(46, "s_add_u32 s41, s41, 32768")
        XE = opt.get("xe", 0)
        F_(opt.get("xg", 57) - 1, "s_cmp_eq_u32 s17, 0")
        F_(opt.get("xg", 57), f"s_cbranch_scc1 {L('qk_exit')}")
        F_(opt.get("qw", 63), "s_waitcnt lgkmcnt(0)"); F_(63, "s_barrier")
        for c in range(4):
            last, first = 16 * c - 1 - ROT, 16 * c + sm[0] - ROT
            n = first - last + sum(len([x for x in fill.get(g % 64, []) if not x.endswith(":")]) for g in range(last, first))
            g = last + 2
            while n < 8:
                F_(g % 64, "s_nop 0"); n += 1; g += 1
                assert g <= first
        emit_interval(a, mf, fill, lo, hi)

    if stamp == 7:
        a.e("v_mov_b32 v240, 0")
        a.e("s_memtime s[60:61]")
    a.e("v_and_b32 v11, 3, v2")
    a.e("v_lshlrev_b32 v11, 6, v11")
    a.e("v_mov_b32 v7, 64")
    a.e("v_writelane_b32 v11, 8, 4")
    a.e("v_writelane_b32 v7, 4, 4")
    if opt.get("kt"):
        a.e("s_lshr_b32 s41, s2, 4")
        a.e("s_lshl_b32 s41, s41, 1")
        a.e("s_add_u32 s41, s41, s16")
        a.e("s_lshl_b32 s41, s41, 10")
        a.e(f"s_add_u32 s41, s41, {32768 * opt['kt'][0]}")
    a.e("s_lshr_b32 s40, s31, 1")
    a.e(f"s_and_b32 s40, s40, {opt.get('xs', 15)}")
    a.e("s_lshl_b32 s40, s40, 1")
    a.e(f"s_add_u32 s40, s40, {opt.get('xb', 12)}")
    st(3); ff(11)
    QB = opt.get("qbe", 0)
    if QB:
        a.e(f"s_branch {L('qk_in')}")
        a(".p2align 6")
        a.label(L("qk_loop"))
        XE = opt.get("xe", 0)
        qk_interval(0, QB)
        if not XE: a.e(f"s_cbranch_scc1 {L('qk_done')}")
        a.label(L("qk_in"))
        qk_interval(1)
        if not XE: a.e(f"s_cbranch_scc1 {L('qk_done')}")
        qk_interval(0, 0, QB)
        a.e(f"s_branch {L('qk_loop')}")
        a.label(L("qk_exit"))
    else:
        a(".p2align 6")
        a.label(L("qk_loop"))
        qk_interval(1)
        a.e(f"s_cbranch_scc1 {L('qk_done')}")
        qk_interval(0)
        a.e(f"s_cbranch_scc0 {L('qk_loop')}")
    a.label(L("qk_done"))
    def tl(srd, so):
        a.e("v_lshlrev_b32 v12, 7, v2")
        a.e(f"buffer_load_dword v0, v12, s[{srd}:{srd+3}], {so} offen")
    def b_code():
        a.e("s_getpc_b64 s[28:29]")
        a.label(L("pc0"))
        a.e(f"s_sub_u32 s28, s28, {L('pc0')} - {L('qk_done')}")
        a.e("s_subb_u32 s29, s29, 0")
        a.e("s_lshr_b32 s30, s2, 3")
        a.e("s_lshl_b32 s30, s30, 1")
        a.e("s_add_u32 s30, s30, s16")
        a.e("s_lshl_b32 s30, s30, 10")
        a.e("v_lshl_add_u32 v12, v2, 4, s30")
        a.e(f"v_min_u32 v12, {L('end')} - {L('qk_done')}, v12")
        a.e("global_load_dword v0, v12, s[28:29]")
    def b_w(part):
        def f():
            a.e("s_lshr_b32 s30, s2, 3")
            a.e("s_lshl_b32 s30, s30, 1")
            a.e("s_add_u32 s30, s30, s16")
            a.e("s_lshl_b32 s30, s30, 13")
            a.e(f"s_add_u32 s30, s30, {WS_W3 + 524288*part}")
            tl(12, "s30")
        return f
    foldl = "buffer_load_dword v13, off, s[92:95], 0 offset:12 sc1"
    def b_c3():
        a.e("s_waitcnt vmcnt(0)")
        poll(a, Seq(a), L, "qk_c3", [auxl], auxc, "aux", slp=16)
    def b_c4():
        a.e("s_waitcnt vmcnt(0)")
        poll(a, Seq(a), L, "qk_c4", [foldl], ["v_readfirstlane_b32 s28, v13", "s_cmp_ge_u32 s28, 4"], "aux", slp=16)
    def b_small():
        a.e("s_mov_b32 m0, s42")
        for c in range(8):
            a.e(f"buffer_load_dwordx2 v[{ST+2*c}:{ST+2*c+1}], v{ST+17}, s[12:15], s6 offen offset:{512*c} sc1")
        a.e("buffer_load_dwordx4 v3, s[12:15], s7 offen sc1 lds")
        a.e(f"buffer_load_dword v0, v{ST+18}, s[12:15], 0 offen sc1")
    def b_stat():
        a.e("s_waitcnt vmcnt(0)")
        for ct in range(1, 8):
            a.e(f"v_pk_add_f32 v[{ST}:{ST+1}], v[{ST}:{ST+1}], v[{ST+2*ct}:{ST+2*ct+1}]")
        a.e(f"v_mul_f32 v{ST}, {f2u(1/512)}, v{ST}")
        a.e(f"v_mul_f32 v{ST+1}, {f2u(1/512)}, v{ST+1}")
        a.e(f"v_fma_f32 v{ST+1}, -v{ST}, v{ST}, v{ST+1}")
        a.e(f"v_max_f32 v{ST+1}, 0, v{ST+1}")
        a.e(f"v_add_f32 v{ST+1}, {f2u(1e-5)}, v{ST+1}")
        a.e(f"v_rsq_f32 v{ST+1}, v{ST+1}")
        a.e(f"v_cmp_gt_u32 vcc, {T}, v{ST+16}")
        a.e(f"v_mul_f32 v{ST}, v{ST}, v{ST+1}")
        a.e(f"v_sub_f32 v{ST}, 0, v{ST}")
        a.e(f"v_cndmask_b32 v{ST+2}, 0, v{ST+1}, vcc")
        a.e(f"v_cndmask_b32 v{ST+3}, 0, v{ST}, vcc")
        a.e(f"ds_write_b64 v{ST+19}, v[{ST+2}:{ST+3}]")
    def b_x(r0):
        def f():
            a.e("s_lshl_b32 s30, s22, 1")
            a.e("s_add_u32 s30, s30, s16")
            a.e("s_lshl_b32 s30, s30, 14")
            a.e("s_add_u32 s30, s30, s27")
            a.e(f"s_add_u32 s30, s30, {r0*1024}")
            tl(32, "s30")
        return f
    tb_fns = B = dict(code=b_code, l3=lambda: a.e(auxl), c3=b_c3, small=b_small, stat=b_stat, x0=b_x(0), x8=b_x(8), l4=lambda: a.e(foldl), c4=b_c4, w1=b_w(1), w0=b_w(0))
    st(4); fs(0); ff(13); fp(0)
    if stamp == 7:
        a.e("s_lshl_b32 s26, s2, 1")
        a.e("s_add_u32 s26, s26, s16")
        a.e("s_lshl_b32 s26, s26, 8")
        a.e(f"s_add_u32 s26, s26, {0x3F00000}")
        a.e("v_lshlrev_b32 v241, 2, v2")
        a.e("buffer_store_dword v240, v241, s[12:15], s26 offen")
    q = Seq(a)
    cv = Conv(a, q, 16)
    a.e(f"v_permlane16_swap_b32 v{LS}, v{LS+1}")
    a.e(f"v_permlane16_swap_b32 v{LS+2}, v{LS+3}")
    cv.taps()
    a.e(f"v_add_f32 v{LS}, v{LS}, v{LS+1}")
    a.e(f"v_add_f32 v{LS+2}, v{LS+2}, v{LS+3}")
    tb_fns["stat"]()
    a.e(f"v_permlane32_swap_b32 v{LS}, v{LS+2}")
    a.e("s_nop 0")
    a.e(f"v_add_f32 v243, v{LS}, v{LS+2}")
    a.e("v_or_b32 v243, 0x80000000, v243")
    q.l("ds_write_b64 v245, v[242:243]")
    q.all(vm=False)
    fs(1)
    a.e("s_barrier")
    fs(2)
    q.l(f"ds_read2st64_b32 v[{E}:{E+1}], v246 offset0:0 offset1:2", "lsum")
    cv.prep()
    q.wait("lsum")
    for x in guard(E): a.e(x)
    release(a, q, L, "rm", None, "buffer_store_dwordx2 v[242:243], v244, s[12:15], s41 offen")
    fs(3)
    PF = opt.get("pf", 10); n = 0
    for j in range(20):
        if j in (0, 2, 4, 6, 8, 11, 14, 17): fp(1 + (0, 2, 4, 6, 8, 11, 14, 17).index(j))
        ex = []
        if j >= opt.get("qa", 6):
            for _ in range(3):
                if n < 4 * PF:
                    ex.append(lambda n=n: aload(a, q, n // 4, n % 4)); n += 1
        cv.row(j, ex)
    while n < 4 * PF:
        aload(a, q, n // 4, n % 4); n += 1
    fs(4)
    a.e(f"s_branch {L('tail')}")
    a.label(L("touch"))
    THR = 2 * int(opt.get("blocks", "2")[0]) + 2
    a.e(f"s_cmp_eq_u32 s40, {THR}")
    a.e(f"s_cbranch_scc1 {L('touchb')}")
    a.e(f"s_mov_b32 s40, {THR}")
    B["x0"](); B["x8"]()
    a.e(f"s_branch {L('touch_ret')}")
    a.label(L("touchb"))
    a.e("s_lshr_b32 s26, s17, 1")
    spec = opt.get("blocks", "2:l3 1:c3,small")
    blocks = {int(x.split(":")[0]): [B[y] for y in x.split(":")[1].split(",")] for x in spec.split()}
    for kx, fns in blocks.items():
        a.e(f"s_cmp_lg_u32 s26, {kx}")
        a.e(f"s_cbranch_scc1 {L('touch%d' % kx)}")
        for f in fns: f()
        a.e(f"s_branch {L('touch_ret')}")
        a.label(L("touch%d" % kx))
    a.e(f"s_branch {L('touch_ret')}")

    VB = [16, 80]; PR = [144, 160]
    VV = 8; VPR = 9; PH = opt.get('ph', 2)
    def oreg(db, qb):
        return (f"a[{4*qb}:{4*qb+3}]", None) if db == 0 else (f"v[{16*db+4*qb}:{16*db+4*qb+3}]", 16 * db + 4 * qb)
    def vread(par, db, kb):
        r = VB[par] + 4 * db + 2 * kb
        return f"ds_read_b64_tr_b16 a[{r}:{r+1}], v{VV if db < 8 else 11} offset:{32768*par + 16384*kb + 512*(db%8)}"
    def pvo(pair): return a2s(pair) if opt.get("o1", 1) else [(e, t) for e in range(2) for t in range(4)]
    def pvm(par, pair, first=False):
        out = []
        for e, qb in pvo(pair):
            db = 2 * pair + e
            d = oreg(db, qb)[0]; v = VB[par] + 4 * db; p = PR[par] + 4 * qb
            out.append(f"{M16} {d}, a[{v}:{v+3}], a[{p}:{p+3}], {'0' if first else d}")
        return out
    def pv_setup():
        a.e("s_sub_u32 s19, s16, 2")
        for x in tail_consts(): a.e(x)
        a.e("v_lshrrev_b32 v4, 5, v2")
        a.e("v_lshlrev_b32 v4, 8, v4")
        a.e("v_and_b32 v5, 2, v2")
        a.e("v_lshl_add_u32 v4, v5, 6, v4")
        a.e("v_and_b32 v5, 28, v2")
        a.e("v_lshl_add_u32 v4, v5, 2, v4")
        a.e("v_and_b32 v5, 1, v2")
        a.e("v_lshl_add_u32 v4, v5, 3, v4")
        a.e("s_lshl_b32 s29, s19, 13")
        a.e("s_lshl_b32 s28, s22, 12")
        a.e("s_add_u32 s28, s28, s29")
        a.e("v_add_u32 v11, s28, v4")
        a.e(f"v_xor_b32 v{VV}, 0x1000, v11")
        a.e("s_lshl_b32 s29, s19, 12")
        a.e("s_add_u32 s29, s29, s48")
        a.e("v_add_u32 v10, s29, v3")
        a.e("s_lshl_b32 s40, s31, 2")
        a.e("s_add_u32 s40, s40, s19")
        a.e("s_lshl_b32 s40, s40, 14")
        a.e(f"s_add_u32 s40, s40, {WS_GU + 32768}")
        a.e("s_lshl_b32 s28, s31, 16")
        a.e(f"s_add_u32 s28, s28, {WS_GU}")
        a.e("s_sub_u32 s28, s28, s10")
        a.e("s_add_u32 s98, s4, s28")
        a.e("s_addc_u32 s99, s5, 0")
        a.e("s_and_b32 s99, s99, 0xffff")
        a.e("s_add_u32 s100, s10, 65536")
        if opt.get("xr", 1) == 2:
            a.e("s_lshr_b32 s28, s2, 3")
            a.e("s_lshl_b32 s28, s28, 15")
            a.e(f"s_add_u32 s28, s28, {WS_W3}")
            a.e("s_sub_u32 s28, s28, s100")
            a.e("s_add_u32 s96, s4, s28")
            a.e("s_addc_u32 s97, s5, 0")
            a.e("s_and_b32 s97, s97, 0xffff")
            a.e("s_add_u32 s3, s100, 32768")
        else:
            a.e("s_lshl_b32 s28, s22, 15")
            a.e("s_add_u32 s28, s28, s27")
            a.e("s_sub_u32 s3, 4096000, s28")
            a.e("s_add_u32 s3, s3, s100")
            a.e("s_add_u32 s96, s32, s28")
            a.e("s_addc_u32 s97, s33, 0")
            a.e("s_sub_u32 s96, s96, s100")
            a.e("s_subb_u32 s97, s97, 0")
        a.e(f"s_mov_b32 s29, {LDS_P}")
        a.e(f"v_lshl_add_u32 v{VPR}, v2, 3, s29")
        a.e(f"v_add_u32 v1, {LDS_ML + 4 - LDS_P}, v{VPR}")
        for g in range(1, 4): a.e(f"v_add_u32 v{4+g}, {4096*g}, v3")
    def pv_zero():
        pass
    def emit_pv_again():
        a.label(L("pv"))
        pv_setup()
        a.e("s_lshl_b32 s18, s19, 14")
        a.e("s_add_u32 s18, s18, 65536")
        dma_tile()
        pv_zero()
        a.e("s_barrier")
        a.e("s_waitcnt vmcnt(16)")
        a.e("s_barrier")
        if not opt.get("q3", 1): dma_tile()
        for db in range(16):
            for kb in range(2):
                a.e(vread(0, db, kb))
            if db % 4 == 3: a.e("s_waitcnt lgkmcnt(4)")
        a.e("s_waitcnt vmcnt(0) lgkmcnt(0)")
        a.e(f"s_branch {L('pv_go')}")
    def taps():
        a.e("v_lshrrev_b32 v12, 5, v2")
        a.e("v_lshl_add_u32 v12, v12, 9, v3")
        a.e("s_lshl_b32 s28, s22, 9")
        out = []
        for i in range(3):
            a.e(f"s_mov_b32 m0, {LDS_TAP + 1024*i}")
            a.e(f"s_add_u32 s29, s28, {2048*i}")
            qf.v("buffer_load_dwordx4 v12, s[44:47], s29 offen lds")
        for x in NEAR: a.e(x)
    def setup1():
        pv_setup()
        a.e(f"s_mov_b32 s101, {f2u(-BIG)}")
    pv_part(setup1, [vread(0, db, kb) for db in range(16) for kb in range(2)], taps)
    a.label(L("pv_go"))
    a.e("s_lshl_b32 s18, s19, 14")
    a.e("s_add_u32 s18, s18, 131072")
    a.e("s_sub_u32 s17, s25, 1")
    a.e("s_barrier")

    pvq = []
    MR = 12; MO = 4; AL = 88; TT = 96; RX = 16
    mll = [f"buffer_load_dwordx2 v[{MR+2*w}:{MR+2*w+1}], v9, s[12:15], s42 offen offset:{512*w} {opt.get('pm', 'sc1')}" for w in range(2)]
    ol = f"buffer_load_dword v11, off, s[12:15], s57 offset:24 {opt.get('pm', 'sc1')}"
    def pv_interval(par, last=False, lo=0, hi=None, first=False):
        mf = pvm(par, 7)
        if first:
            z = [f"v_pk_mul_f32 v[{i}:{i+1}], 0, 0" for i in range(256 - 16 * PH, 256, 2)]
            mf = [z[2 * i] + "\n    " + z[2 * i + 1] for i in range(4 * PH)]
        for pr in range(8 if last else 7):
            mf += pvm(par ^ 1, pr, first)
        fill = {}
        for qb in range(4):
            p = PR[par ^ 1] + 4 * qb
            fill.setdefault(opt.get('pg', [0, 0, 1, 1])[qb], []).append(f"ds_read2st64_b64 a[{p}:{p+3}], v{VPR} offset0:{8*(par^1)+qb} offset1:{8*(par^1)+4+qb}")
        rg = opt.get("rg", [8 + 3 * (i // 2) + (i % 2) for i in range(32)])
        fill.setdefault(4 * PH - 1, []).append(f"s_waitcnt lgkmcnt({0 if last else sum(1 for g in rg if g < 4 * PH - 1)})")
        if last:
            fs(0); fp(0)
            q = Seq(a)
            ops = []
            for sp in range(4):
                for nq, qb in enumerate([t for e, t in pvo(sp) if e]):
                    o = []
                    if sp == 0:
                        o += [f"v_accvgpr_read_b32 v{4+j}, a{4*qb+j}" for j in range(4)]
                        lo = 4
                    else:
                        lo = oreg(2 * sp, qb)[1]
                    hi = oreg(2 * sp + 1, qb)[1]
                    o += [f"v_cvt_pk_bf16_f32 v{hi+3}, v{hi+2}, v{hi+3}", f"v_cvt_pk_bf16_f32 v{hi+2}, v{hi}, v{hi+1}",
                          f"v_cvt_pk_bf16_f32 v{hi}, v{lo}, v{lo+1}", f"v_cvt_pk_bf16_f32 v{hi+1}, v{lo+2}, v{lo+3}"]
                    if nq == 0: o.append(f"s_add_u32 s41, s40, {4096*sp}")
                    o.append(f"buffer_store_dwordx4 v[{hi}:{hi+3}], v3, s[44:47], s41 offen offset:{1024*qb} {opt.get('sm_', 'nt')}")
                    ops += [(8 + 8 * sp + pvo(sp).index((1, qb)) + 6, x) for x in o]
            late = [lambda x=x: a.e(x) for x in ["v_lshlrev_b32 v9, 3, v2", "s_xor_b32 s26, s31, 1", "s_lshl_b32 s26, s26, 10", f"s_add_u32 s42, s26, {WS_MX}"]]
            late += [lambda w=w: q.v(mll[w], "ML") for w in range(2)]
            late += [lambda: a.e("v_subrev_u32 v8, 4, v1"),
                     lambda: q.l(f"ds_read2st64_b64 v[{MO}:{MO+3}], v8 offset0:0 offset1:1", "MLo")]
            late += [lambda x=x: a.e(x) for x in ["v_and_b32 v1, 15, v2", "v_lshlrev_b32 v1, 2, v1", "s_xor_b32 s40, s40, 0x10000", "s_mov_b32 s43, 0xffff0000", "v_mov_b32 v0, 1"]]
            na = 0
            for i, m in enumerate(mf):
                a.e(m)
                for f in fill.get(i, []): a.e(f)
                if i == 2: q.l("ds_read2st64_b32 v[4:5], v1 offset0:0 offset1:2", "lsum")
                if i == 9:
                    fs(1); fs(2)
                    q.wait("lsum")
                    for x in guard(4): a.e(x)
                if i > 12:
                    n = 0
                    while ops and ops[0][0] <= i and n < 3:
                        x = ops.pop(0)[1]; n += 1
                        if x.startswith("buffer"): q.v(x, "Ost")
                        else: a.e(x)
                    if n and not ops: fp(1)
                    if n == 0:
                        if not ops and late: late.pop(0)()
                        else: a.e("s_nop 0")
            assert not ops
            while late: late.pop(0)()
            fs(3)
            pvq.append((q, na))
            return
        F_ = lambda g, x: fill.setdefault(g, []).append(x)
        G = opt["pvg"]
        if par == 0:
            F_(G[0], f"v_xor_b32 v{VV}, 0x10000, v{VV}"); F_(G[0], "v_xor_b32 v11, 0x10000, v11")
        for i in range(32): F_(rg[i], vread(par, i // 2, i % 2))
        dg = opt["dg"]
        for g in range(4):
            F_(opt["mg"][g], "s_and_b32 m0, s18, 0x1ffff" if g == 0 else "s_add_u32 m0, m0, 4096")
            for j in range(4):
                F_(dg[4 * g + j], f"buffer_load_dwordx4 v{3 if g == 0 else 4 + g}, s[8:11], s18 offen offset:{1024*j} sc1 lds")
        F_(opt["mg"][4], "s_add_u32 s18, s18, 32768")
        sw = ["s_cmp_eq_u32 s17, 3", "s_cselect_b64 s[8:9], s[98:99], s[8:9]", "s_cselect_b32 s10, s100, s10",
              "s_cmp_eq_u32 s17, 1", "s_cselect_b64 s[8:9], s[96:97], s[8:9]", "s_cselect_b32 s10, s3, s10"]
        for n in (0, 3):
            gs = G[2 + n:5 + n]
            assert (gs[2] < min(dg[0], G[1])) or (gs[0] > max(dg[-1], G[1]))
            assert not any(gs[0] < m <= gs[2] for m in opt["mg"] + [G[1]])
            for g, x in zip(gs, sw[n:n + 3]): F_(g, x)
        F_(G[1], "s_sub_u32 s17, s17, 1")
        F_(61, "s_cmp_eq_u32 s17, 0")
        if not first: F_(62, f"s_cbranch_scc1 {L('pv_exit%d' % par)}")
        fill.setdefault(63, []).extend([f"s_waitcnt vmcnt({nP}) lgkmcnt(0)", "s_barrier"])
        emit_interval(a, mf, fill, lo, hi)

    st(3); ff(11)
    PB = opt.get("pbe", 0)
    if PB:
        pv_interval(1, first=True)
        a.e(f"s_branch {L('pv_in')}")
        a(".p2align 6")
        a.label(L("pv_loop"))
        pv_interval(0, False, PB)
        if not opt.get("xe"): a.e(f"s_cbranch_scc1 {L('pv_last1')}")
        pv_interval(1)
        if not opt.get("xe"): a.e(f"s_cbranch_scc1 {L('pv_last0')}")
        a.label(L("pv_in"))
        pv_interval(0, False, 0, PB)
        a.e(f"s_branch {L('pv_loop')}")
    else:
        a(".p2align 6")
        a.label(L("pv_loop"))
        pv_interval(1)
        a.e(f"s_cbranch_scc1 {L('pv_last0')}")
        pv_interval(0)
        a.e(f"s_cbranch_scc0 {L('pv_loop')}")
    if opt.get("xe"):
        a.label(L("pv_exit0"))
        pv_interval(0, False, 63)
    a.label(L("pv_last1"))
    pv_interval(1, True)
    a.e(f"s_branch {L('pv_stage')}")
    if opt.get("xe"):
        a.label(L("pv_exit1"))
        pv_interval(1, False, 63)
    a.label(L("pv_last0"))
    pv_interval(0, True)
    a.label(L("pv_stage"))
    st(4); ff(13)
    q, n = pvq[0]
    assert pvq[1][0].vm == q.vm and pvq[1][0].lg == q.lg
    fp(2)
    release(a, q, L, "ro", "Ost", "buffer_store_dword v0, off, s[12:15], s56 offset:24",
            [x for sp in range(4) for x in [f"s_xor_b32 s41, s40, {0x10000 + 4096*sp}"] +
             [f"buffer_store_dwordx4 {oreg(2*sp+1, qb)[0]}, v3, s[12:15], s41 offen offset:{1024*qb} sc1" for qb in range(4)]])
    fp(3)
    poll(a, q, L, "ml", mll, [f"v_and_b32 v8, v{MR+1}, v{MR+3}", "v_cmp_gt_i32 vcc, 0, v8", "s_nop 1", "s_cmp_eq_u64 vcc, -1"], "ML", slp=1)
    q.wait("MLo")
    for x in [f"v_add_f32 v{MR+1}, v{MR+1}, v{MR+3}", f"v_add_f32 v{MO+1}, v{MO+1}, v{MO+3}",
              f"v_min_f32 v8, v{MR}, v{MO}", f"v_sub_f32 v{MR}, v8, v{MR}", f"v_sub_f32 v{MO}, v8, v{MO}",
              f"v_exp_f32 v{MR}, v{MR}", f"v_exp_f32 v{MO}, v{MO}", f"v_mul_f32 v{MR+1}, v{MR+1}, v{MR}",
              f"v_fmac_f32 v{MR+1}, v{MO+1}, v{MO}", f"v_mul_f32 v{MR+1}, {f2u(XSC)}, v{MR+1}", f"v_rcp_f32 v{MR+1}, v{MR+1}", "s_nop 0",
              f"v_mul_f32 v{MO}, v{MO}, -v{MR+1}", f"v_mul_f32 v{MR}, v{MR}, -v{MR+1}"]: a.e(x)
    for tb in range(4):
        q.l(f"ds_bpermute_b32 v{AL+2*tb}, v1, v{MO} offset:{64*tb}", "AL")
        q.l(f"ds_bpermute_b32 v{AL+2*tb+1}, v1, v{MR} offset:{64*tb}", "AL")
    q.wait("AL")
    for db in range(8, 16):
        for qb in range(4):
            r = oreg(db, qb)[1]
            for j in (0, 2):
                a.e(f"v_pk_mul_f32 v[{r+j}:{r+j+1}], v[{r+j}:{r+j+1}], v[{AL+2*qb}:{AL+2*qb+1}] op_sel_hi:[1,0]")
        if db == opt.get("od", 12): q.v(ol, "of")
        for _ in range(opt.get("an", 2)):
            if n < 4 * PF and db < opt.get("od", 12):
                aload(a, q, n // 4, n % 4); n += 1
    while n < opt.get("pa", 0):
        aload(a, q, n // 4, n % 4); n += 1
    poll(a, q, L, "o", [ol], ["v_readfirstlane_b32 s26, v11", "s_cmp_eq_u32 s26, 1"], "of", slp=1)
    fp(4)
    for f in range(16):
        if f % 4 == 0: a.e(f"s_add_u32 s41, s40, {1024*f}")
        q.v(f"buffer_load_dwordx4 v[{RX+4*f}:{RX+4*f+3}], v3, s[12:15], s41 offen offset:{1024*(f%4)} {opt.get('lm', 'sc1')}", f"O{f}")
    fp(5)
    fp(6)
    for f in range(16):
        sp, qb = f // 4, f % 4
        q.wait(f"O{f}")
        if f in (0, 8): fp(7 + f // 8)
        for j in range(4):
            a.e(f"v_lshlrev_b32 v{TT+2*j}, 16, v{RX+4*f+j}")
            a.e(f"v_and_b32 v{TT+2*j+1}, s43, v{RX+4*f+j}")
        for j in range(4):
            r = oreg(8 + 2 * sp + j // 2, qb)[1] + 2 * (j % 2)
            a.e(f"v_pk_fma_f32 v[{TT+2*j}:{TT+2*j+1}], v[{TT+2*j}:{TT+2*j+1}], v[{AL+2*qb}:{AL+2*qb+1}], v[{r}:{r+1}] op_sel:[0,1,0] op_sel_hi:[1,1,1]")
        for j in range(4):
            a.e(f"v_cvt_pk_bf16_f32 v{RX+4*f+j}, v{TT+2*j}, v{TT+2*j+1}")
        q.l(f"ds_write_b128 v10, v[{RX+4*f}:{RX+4*f+3}] offset:{8192*qb + 1024*sp}")
        for _ in range(2):
            if n < 4 * PF:
                aload(a, q, n // 4, n % 4); n += 1
    while n < 4 * PF:
        aload(a, q, n // 4, n % 4); n += 1
    fs(4)
    a.label(L("tail"))
    ff(14); fp(9)
    gen_tail(a, L, st, fs, opt)
    a.label(L("fin"))
    if stamp == 1:
        a.e("s_waitcnt vmcnt(0)")
        st(7)
        emit_stamps(a, 8, nw=8, off=WS_STAMP + 0x200000)
    if stamp == 5:
        a.e("s_waitcnt vmcnt(0)")
        st(7)
        a.e("s_cmp_lg_u32 s16, 0")
        a.e(f"s_cbranch_scc1 {L('end')}")
        a.e("s_mov_b64 exec, 1")
        a.e("s_cmp_lg_u32 s2, 0")
        a.e(f"s_cbranch_scc1 {L('dbg2')}")
        for k in range(1, 8):
            a.e(f"s_sub_u32 s26, s{62+4*k}, s62")
            a.e("v_mov_b32 v8, s26")
            a.e(f"buffer_store_dword v8, off, s[92:95], 0 offset:{8+4*k}")
        a.e("s_sub_u32 s26, s76, s72")
        a.e("v_mov_b32 v8, s26")
        a.e("buffer_store_dword v8, off, s[92:95], 0 offset:40")
        a.label(L("dbg2"))
        a.e("s_cmp_lg_u32 s2, 255")
        a.e(f"s_cbranch_scc1 {L('end')}")
        for k in range(1, 6):
            a.e(f"s_sub_u32 s26, s{62+4*k}, s62")
            a.e("v_mov_b32 v8, s26")
            a.e(f"buffer_store_dword v8, off, s[92:95], 0 offset:{40+4*k}")
    if stamp in (2, 3, 4, 6):
        for k in range(10, 16): fp(k)
        a.e("s_waitcnt vmcnt(0)")
        fs(15)
        ff(15)
        emit_fine(a, off=WS_STAMP + 0x300000)
    a.label(L("end"))
    a.e("s_endpgm")
    a.label(L("redo"))
    a.e("s_waitcnt vmcnt(0) lgkmcnt(0)")
    a.e("s_mov_b32 s101, 0")
    a.e(f"s_mul_i32 s28, s22, {32768 * N0}")
    a.e("s_add_u32 s28, s28, s24")
    a.e("s_lshl_b32 s26, s25, 15")
    srd_off(a, 8, 4, "s28", "s26")
    a.e("s_lshl_b32 s19, s16, 13")
    qk_setup()
    a.e("s_mov_b32 s17, s25")
    def redo_dma(slot):
        for i in range(8):
            if i % 4 == 0:
                a.e(f"s_add_u32 m0, s19, {32768*slot + 1024*i}")
                a.e(f"s_add_u32 s29, s18, {1024*i}")
            a.e(f"buffer_load_dwordx4 v3, s[8:11], s29 offen offset:{1024*(i%4)} sc1 lds")
    a.label(L("redo_loop"))
    a.e("s_sub_u32 s17, s17, 1")
    a.e("s_lshl_b32 s18, s17, 15")
    a.e("s_add_u32 s18, s18, s19")
    a.e("s_barrier")
    redo_dma(0)
    a.e("s_waitcnt vmcnt(0)")
    a.e("s_barrier")
    a.e("s_cmp_ge_u32 s16, 2")
    a.e(f"s_cbranch_scc1 {L('redo_next')}")
    for n in range(16):
        a.e(kread(0, n, 0))
        if n == 11: a.e("s_waitcnt lgkmcnt(4)")
    a.e("s_waitcnt lgkmcnt(0)")
    for qb in range(4):
        for m in chain(0, qb, "0"): a.e(m)
    a.e("s_nop 7")
    for qb in range(4):
        d = S + 4 * qb
        a.e(f"v_max3_f32 v{MX0+qb}, v{MX0+qb}, v{d}, v{d+1}")
        a.e(f"v_max3_f32 v{MX0+qb}, v{MX0+qb}, v{d+2}, v{d+3}")
    a.label(L("redo_next"))
    a.e("s_cmp_lg_u32 s17, 0")
    a.e(f"s_cbranch_scc1 {L('redo_loop')}")
    a.e("s_add_u32 s18, s19, 32768")
    redo_dma(1)
    a.e("s_mov_b32 s17, s25")
    a.e("s_cmp_ge_u32 s16, 2")
    a.e(f"s_cbranch_scc1 {L('pv')}")
    a.e(f"s_branch {L('qk_again')}")
    emit_pv_again()
    for f in OOL: f()
    emit_aux()
    kernel_desc(a, name, 512, 256)
    return f"; @launch grid=(256,1,1) block=(256,1,1) lds={LDS_ATT}"
```

```python
import sys, math
sys.path.insert(0, "gen")
from asmlib import *
from layout import *

class Conv:
    def __init__(self, a, q, NR):
        self.a, self.q, self.NR = a, q, NR
        self.W = 16
        self.GN = 56
        self.AC = 96
        self.UF = 104
        self.GR = 112
        self.UR = 128
        self.SR = 144
        self.ZP = 152
        self.LA = 3

    def fetch(self, j):
        q, NR = self.q, self.NR
        if j >= NR + 4: return
        va, off = ("v233", j) if j < 2 else ("v234", j - NR - 2) if j >= NR + 2 else ("v232", j - 2)
        r = self.GR + 4 * (j % 4)
        q.l(f"ds_read_b128 v[{r}:{r+3}], {va} offset:{512*off}", f"cg{j}")
        r = self.SR + 2 * (j % 4)
        q.l(f"ds_read_b64 v[{r}:{r+1}], v237 offset:{8*j}", f"cg{j}")
        if j >= 4:
            r = self.UR + 4 * (j % 4)
            q.l(f"ds_read_b128 v[{r}:{r+3}], v235 offset:{512*(j-4)}", f"cg{j}")

    def taps(self):
        for i in range(5):
            self.q.l(f"ds_read_b128 v[{self.GN+4*i}:{self.GN+4*i+3}], v238 offset:{512*i}", "ct")

    def prep(self):
        a, q, W, GN = self.a, self.q, self.W, self.GN
        for j in range(self.LA): self.fetch(j)
        q.wait("ct")
        for i in range(5):
            for j in range(4):
                a.e(f"v_lshlrev_b32 v{W+8*i+2*j}, 16, v{GN+4*i+j}")
                a.e(f"v_and_b32 v{W+8*i+2*j+1}, s43, v{GN+4*i+j}")

    def row(self, j, extra=()):
        a, q = self.a, self.q
        AC, GN, W, UF = self.AC, self.GN, self.W, self.UF
        gn = GN + 8 * (j % 5); gr = self.GR + 4 * (j % 4); ur = self.UR + 4 * (j % 4); sr = self.SR + 2 * (j % 4)
        P = lambda r: f"v[{r}:{r+1}]"
        unp = lambda d, r: [x for k in range(4) for x in (f"v_lshlrev_b32 v{d+2*k}, 16, v{r+k}", f"v_and_b32 v{d+2*k+1}, s43, v{r+k}")]
        ug, uu = unp(gn, gr), unp(UF, ur)
        nrm = [f"v_pk_fma_f32 {P(gn+2*k)}, {P(gn+2*k)}, {P(sr)}, {P(sr)} op_sel:[0,0,1] op_sel_hi:[1,0,1]" for k in range(4)]
        q.wait(f"cg{j}")
        if j < 4:
            self.fetch(j + self.LA)
            for x in ug + nrm: a.e(x)
            for f in extra: f()
            return
        t = j - 4
        def tap(i):
            gi = GN + 8 * ((t + i) % 5)
            return [f"v_pk_mul_f32 {P(AC+2*k)}, {P(gi+2*k)}, {P(W+2*k)}" if i == 0 else
                    f"v_pk_fma_f32 {P(AC+2*k)}, {P(gi+2*k)}, {P(W+8*i+2*k)}, {P(AC+2*k)}" for k in range(4)]
        zp = self.ZP + 4 * (t % 2)
        mul = [f"v_pk_mul_f32 {P(AC+2*k)}, {P(AC+2*k)}, {P(UF+2*k)}" for k in range(4)]
        cvt = [f"v_cvt_pk_bf16_f32 v{zp+k}, v{AC+2*k}, v{AC+2*k+1}" for k in range(4)]
        old = tap(0) + tap(1) + tap(2) + tap(3)
        extra = list(extra)
        for n in range(8):
            a.e(ug[n]); a.e(old[2 * n]); a.e(old[2 * n + 1])
            if n == 1: self.fetch(j + self.LA)
            if n in (3, 5, 7) and extra: extra.pop(0)()
        for f in extra: f()
        t4 = tap(4)
        for x in [nrm[0], uu[0], nrm[1], nrm[2], uu[1], nrm[3], t4[0], uu[2], t4[1], t4[2], uu[3], t4[3], mul[0], uu[4], mul[1], cvt[0],
                  uu[5], cvt[1], mul[2], uu[6], cvt[2], uu[7], f"v_xor_b32 v11, {32*(t & 7)}, v236", mul[3], cvt[3]]: a.e(x)
        q.l(f"ds_write_b128 v11, v[{zp}:{zp+3}] offset:{512*t}", "Zw")
```

```python
import sys, math
sys.path.insert(0, "gen")
from asmlib import *
from layout import *

RS = 1056
LDS_XS = 98304
LDS_MS = 163840 - 64 * RS
LDS_SC = 81920
LDS_CNT = LDS_SC + 6912
LDS_SC2 = 147456
GC1 = 2 * math.sqrt(2 / math.pi) * math.log2(math.e)
XSC = (GC1 * 0.044715) ** (1.0 / 3)
LDS_MX2 = LDS_SC + 4608
RING = 5
SS = 144
SPIN = 40000

def poll(a, q, L, name, load, cond, tag, slp=2):
    q.wait(tag)
    lab, done = L(name + "_spin"), L(name + "_ok")
    for x in cond: a.e(x)
    a.e(f"s_cbranch_scc0 {L(name + '_retry')}")
    a.label(done)
    def retry():
        a.label(L(name + "_retry"))
        a.e(f"s_mov_b32 s30, {SPIN}")
        a.label(lab)
        a.e(f"s_sleep {slp}")
        for x in load: a.e(x)
        a.e("s_waitcnt vmcnt(0)")
        for x in cond: a.e(x)
        a.e(f"s_cbranch_scc1 {done}")
        a.e("s_sub_u32 s30, s30, 1")
        a.e(f"s_cbranch_scc0 {lab}")
        a.e(f"s_branch {done}")
    OOL.append(retry)

OOL = []

def release(a, q, L, name, tag, store, again=()):
    if tag: q.wait(tag)
    a.e("s_cmp_lg_u32 s21, 0")
    a.e(f"s_cbranch_scc1 {L(name + '_far')}")
    q.v(store)
    a.label(L(name + "_back"))
    def far():
        a.label(L(name + "_far"))
        if again:
            for x in again: a.e(x)
            a.e("s_waitcnt vmcnt(0)")
        a.e(store + " sc1")
        a.e(f"s_branch {L(name + '_back')}")
    OOL.append(far)

def signal(a, L, name, wave, off, shard=True):
    a.e(f"s_cmp_lg_u32 s16, {wave}")
    a.e(f"s_cbranch_scc1 {L(name)}")
    a.e("v_mov_b32 v14, 1")
    a.e(f"s_and_b32 s26, s2, {3 if shard else 0}")
    a.e("s_lshl_b32 s26, s26, 6")
    a.e("s_mov_b64 exec, 1")
    a.e(f"buffer_atomic_add v14, off, s[92:95], s26 offset:{off}")
    a.e("s_mov_b64 exec, -1")
    a.label(L(name))

def cnt_load(off, va="v13"):
    return f"buffer_load_dword v14, {va}, s[92:95], 0 offen offset:{off} sc1"
CNT_OK = ["v_cmp_le_u32 vcc, 64, v14", "s_nop 1", "s_cmp_eq_u64 vcc, -1"]

def m_issue(a, q):
    a.e("s_and_b32 s17, s2, 6")
    a.e("s_lshl_b32 s17, s17, 5")
    a.e("s_and_b32 s18, s2, 24")
    a.e("s_lshl_b32 s18, s18, 1")
    a.e("s_add_u32 s17, s17, s18")
    a.e("s_and_b32 s18, s2, 1")
    a.e("s_lshl_b32 s18, s18, 3")
    a.e("s_add_u32 s17, s17, s18")
    a.e("s_lshr_b32 s18, s2, 5")
    a.e("s_add_u32 s100, s17, s18")
    a.e("s_lshr_b32 s17, s100, 4")
    a.e("s_lshl_b32 s17, s17, 15")
    a.e("s_and_b32 s18, s100, 15")
    a.e("s_lshl_b32 s18, s18, 15")
    a.e("s_lshl_b32 s19, s16, 13")
    a.e("s_add_u32 s17, s17, s19")
    a.e("s_add_u32 s18, s18, s19")
    a.e(f"s_mul_i32 s19, s16, {4*RS}")
    out = []
    for m, (srd, so) in enumerate(((40, "s17"), (8, "s18"))):
        for ee in range(2):
            for j in range(4):
                def f(m=m, srd=srd, so=so, ee=ee, j=j):
                    a.e(f"s_add_u32 m0, s19, {LDS_MS + (32*m + 16*ee + j)*RS - 1024*j}")
                    a.e(f"s_add_u32 {so}, {so}, 4096" if (ee == 1 and j == 0) else "s_nop 0")
                    q.v(f"buffer_load_dwordx4 v3, s[{srd}:{srd+3}], {so} offen offset:{1024*j} lds", "Mst")
                out.append(f)
    return out

def m_addr(a):
    a.e("v_and_b32 v4, 15, v2")
    a.e("v_lshrrev_b32 v5, 4, v2")
    a.e(f"v_mul_u32_u24 v6, {RS}, v4")
    a.e("v_lshl_add_u32 v6, v5, 4, v6")
    a.e(f"v_add_u32 v6, {LDS_MS}, v6")
    a.e("s_and_b32 s26, s16, 1")
    a.e("s_lshr_b32 s28, s16, 1")
    a.e(f"s_mul_i32 s29, s26, {16*RS}")
    a.e("v_add_u32 v7, s29, v6")
    a.e(f"s_mul_i32 s29, s28, {16*RS}")
    a.e("v_add_u32 v6, s29, v6")
    a.e("s_bfe_u32 s29, s100, 0x30001")
    a.e("s_lshl_b32 s29, s29, 16")
    a.e("s_lshr_b32 s30, s100, 4")
    a.e("s_lshl_b32 s30, s30, 12")
    a.e("s_add_u32 s29, s29, s30")
    a.e("s_and_b32 s30, s100, 1")
    a.e("s_lshl_b32 s30, s30, 1")
    a.e("s_add_u32 s30, s30, s28")
    a.e("s_lshl_b32 s30, s30, 10")
    a.e("s_add_u32 s29, s29, s30")
    a.e("s_lshl_b32 s30, s26, 9")
    a.e("s_add_u32 s29, s29, s30")
    a.e(f"s_add_u32 s30, s29, {WS_MI}")
    a.e("s_lshl_b32 s29, s28, 10")
    a.e("s_lshl_b32 s26, s26, 3")
    a.e("s_add_u32 s29, s29, s26")
    a.e(f"s_add_u32 s29, s29, {LDS_MX2}")
    a.e("v_add_u32 v112, s29, v3")
    a.e("s_lshl_b32 s29, s16, 9")
    a.e(f"s_add_u32 s29, s29, {LDS_MX2}")
    a.e("v_and_b32 v114, 0x1ff, v3")
    a.e("v_add_u32 v113, s29, v114")

def m_tile(a, q, fz=lambda k: None, fill=None):
    q.wait("Mst")
    fz(1)
    a.e("s_barrier")
    fz(2)
    def rd(t):
        q.l(f"ds_read_b128 a[{8*t}:{8*t+3}], v7 offset:{64*t}", f"m{t}")
        q.l(f"ds_read_b128 a[{8*t+4}:{8*t+7}], v6 offset:{32*RS + 64*t}", f"m{t}")
    for t in range(7): rd(t)
    if fill: fill.pop(0)()
    for t in range(16):
        q.e(f"{M16} v[8:11], a[{8*t}:{8*t+3}], a[{8*t+4}:{8*t+7}], {'0' if t == 0 else 'v[8:11]'}", need=(f"m{t}",))
        if t + 7 < 16: rd(t + 7)
    fz(3)
    if fill: fill.pop(0)()
    else: a.e("s_nop 7")
    sc = f2u(512 ** -0.5 * math.log2(math.e) / XSC ** 2)
    for i in range(4): a.e(f"v_mul_f32 v{8+i}, {sc}, v{8+i}")
    a.e("v_cvt_pk_bf16_f32 v8, v8, v9")
    a.e("v_cvt_pk_bf16_f32 v9, v10, v11")
    q.l("ds_write_b64 v112, v[8:9]", "mw")
    while fill: fill.pop(0)()
    q.wait("mw")
    a.e("s_barrier")
    q.l("ds_read_b128 v[8:11], v113", "mr")
    def fin():
        q.v("buffer_store_dwordx4 v[8:11], v114, s[12:15], s30 offen sc1", "St", need=("mr",))
    return fin

def touches(a, q, L, opt):
    a.e("v_lshlrev_b32 v7, 7, v2")
    a.e("s_lshr_b32 s26, s2, 3")
    a.e("s_lshl_b32 s26, s26, 2")
    a.e("s_add_u32 s26, s26, s16")
    a.e("s_getpc_b64 s[28:29]")
    a.label(L("pc1"))
    a.e("s_mul_i32 s30, s26, 640")
    a.e("v_and_b32 v12, 7, v2")
    a.e("v_min_u32 v12, 4, v12")
    a.e("v_lshl_add_u32 v12, v12, 7, s30")
    a.e(f"v_min_u32 v12, {L('end')} - {L('pc1')}, v12")
    q.v("global_load_dword v0, v12, s[28:29]")
    if opt.get("tg"):
        a.e("s_lshl_b32 s26, s2, 12")
        a.e("s_lshr_b32 s28, s16, 1")
        a.e("s_lshl_b32 s28, s28, 11")
        a.e("s_add_u32 s26, s26, s28")
        a.e("s_and_b32 s28, s16, 1")
        a.e("s_lshl_b32 s28, s28, 9")
        a.e("s_add_u32 s26, s26, s28")
        a.e("v_lshlrev_b32 v14, 3, v2")
        q.v("buffer_load_dword v0, v14, s[96:99], s26 offen offset:1024")
    if opt.get("tw"):
        a.e("s_lshl_b32 s26, s26, 13")
        q.v("buffer_load_dword v0, v7, s[96:99], s26 offen")

def touch_aux(a, q, mode=1):
    if mode == 2:
        a.e("s_lshl_b32 s28, s2, 2")
        a.e("s_add_u32 s28, s28, s16")
        a.e("s_lshl_b32 s28, s28, 10")
        a.e("v_add_u32 v14, s28, v3")
        q.v("global_load_dword v0, v14, s[58:59]")
        return
    for w in range(1, 4):
        a.e(f"s_cmp_eq_u32 s16, {w}")
        a.e(f"s_cselect_b32 s52, s{52+2*w}, s52")
        a.e(f"s_cselect_b32 s53, s{53+2*w}, s53")
    a.e("s_lshl_b32 s28, s2, 6")
    a.e("v_add_lshl_u32 v14, s28, v2, 5")
    a.e("v_lshlrev_b32 v13, 1, v14")
    a.e("s_cmp_eq_u32 s16, 3")
    a.e("s_cselect_b64 vcc, -1, 0")
    a.e("v_cndmask_b32 v14, v14, v13, vcc")
    q.v("global_load_dword v0, v14, s[52:53]")

def gen_front(a, q, L, st, fs, mi, clear, opt):
    X = 16; F = 128
    if opt.get("skip"):
        v0 = q.v
        def v1(text, tag="_", need=()):
            if text.startswith("buffer_store_dwordx4") and tag[0] in opt["skip"]: return
            v0(text, tag, need)
        q.v = v1
    a.e("v_lshrrev_b32 v12, 3, v2")
    a.e("v_and_b32 v13, 7, v2")
    a.e("v_and_b32 v14, 2, v12")
    a.e("v_xor_b32 v14, v13, v14")
    a.e("v_lshlrev_b32 v14, 4, v14")
    WV = 80
    a.e(f"v_lshl_add_u32 v{WV}, v12, 11, v14")
    a.e(f"v_xor_b32 v{WV+1}, 64, v{WV}")
    a.e(f"v_add_u32 v{WV+1}, {16384-1024}, v{WV+1}")
    a.e(f"v_add_u32 v{WV+2}, {2*(16384-1024)}, v{WV}")
    a.e(f"v_add_u32 v{WV+3}, {2*(16384-1024)}, v{WV+1}")
    a.e("s_lshl_b32 s26, s22, 2")
    a.e("s_add_u32 s26, s26, s16")
    a.e("s_lshl_b32 s28, s22, 1")
    a.e("s_add_u32 s28, s28, s16")
    a.e(f"s_lshl_b32 s29, s23, {opt.get('rt', 0)}")
    a.e("s_add_u32 s28, s28, s29")
    a.e("s_and_b32 s28, s28, 3")
    a.e("s_lshl_b32 s3, s26, 7")
    a.e("s_lshl_b32 s29, s28, 18")
    a.e("s_add_u32 s3, s3, s29")
    a.e(f"s_mul_i32 s6, s16, {RING*4096}")
    a.e("v_and_b32 v4, 15, v2")
    a.e("v_lshrrev_b32 v5, 4, v2")
    def wdma(k, j):
        if j == 0:
            a.e(f"s_add_u32 m0, s6, {4096*(k % RING)}")
            a.e(f"s_xor_b32 s7, {'s3' if k < 16 else 's20'}, {65536*(k % 16) + (1024 if k < 16 else 0 if k < 32 else 128)}")
        q.v(f"buffer_load_dwordx4 v{WV+j}, s[96:99], s7 offen offset:{1024*j} lds", f"W{k}")
    ringf = [lambda k=k, j=j: wdma(k, j) for k in range(RING) for j in range(4)]
    EM = opt.get("early", 0)
    NE = opt.get("ne", 12)
    early = list(mi) + [clear] + ringf[:NE]
    if opt.get("rf"): early = ringf[:opt["rf"]] + list(mi) + [clear] + ringf[opt["rf"]:NE]
    late = ringf[NE:]
    if opt.get("te") is not None: early.insert(opt["te"], lambda: (touch_u(), touch_aux(a, q)))
    SW, SR, SG, QW = 84, 85, 86, 87
    a.e("s_and_b32 s26, s16, 1")
    a.e("s_lshl_b32 s26, s26, 13")
    a.e("s_cmp_lt_u32 s16, 2")
    a.e(f"s_cselect_b32 s28, {16*SS}, 0")
    a.e("s_add_u32 s26, s26, s28")
    a.e(f"s_add_u32 s26, s26, {LDS_SC}")
    a.e(f"v_mul_u32_u24 v{SR}, {SS}, v12")
    a.e(f"v_lshl_add_u32 v{SR}, v13, 4, v{SR}")
    a.e(f"v_add_u32 v{SR}, s26, v{SR}")
    a.e(f"v_lshlrev_b32 v{SG}, 9, v12")
    a.e(f"v_lshl_add_u32 v{SG}, v13, 4, v{SG}")
    a.e(f"v_mul_u32_u24 v{SW}, {SS}, v4")
    a.e(f"v_lshl_add_u32 v{SW}, v5, 3, v{SW}")
    a.e(f"v_add_u32 v{SW}, s26, v{SW}")
    a.e("s_lshl_b32 s26, s16, 14")
    a.e(f"s_add_u32 s26, s26, {LDS_XS}")
    a.e("s_lshl_b32 s28, s22, 13")
    a.e("s_add_u32 s28, s28, s26")
    a.e("v_lshrrev_b32 v14, 1, v12")
    a.e("v_xor_b32 v14, v13, v14")
    a.e("v_lshlrev_b32 v14, 4, v14")
    a.e("v_lshl_add_u32 v14, v12, 7, v14")
    a.e("v_add_u32 v12, s28, v14")
    a.e("v_xor_b32 v116, 0x440, v12")
    a.e("v_xor_b32 v117, 0x2440, v12")
    a.e("v_xor_b32 v15, 0x2000, v12")
    a.e("s_mov_b32 s101, 0xffff0000")
    if EM == 2:
        while early: early.pop(0)()
    ZR, YO = 88, 90
    a.e("v_lshrrev_b32 v13, 1, v4")
    a.e("v_xor_b32 v13, v5, v13")
    a.e("v_lshlrev_b32 v13, 4, v13")
    a.e(f"v_lshl_add_u32 v{ZR}, v4, 7, v13")
    a.e("v_and_b32 v13, 0x27, v2")
    a.e("v_and_b32 v14, 8, v2")
    a.e("v_lshl_add_u32 v13, v14, 1, v13")
    a.e("v_and_b32 v14, 16, v2")
    a.e("v_lshrrev_b32 v14, 1, v14")
    a.e(f"v_add_lshl_u32 v{YO}, v13, v14, 4")
    XR_, TR = 88, 92
    a.e("s_lshr_b32 s26, s3, 18")
    a.e("s_lshl_b32 s26, s26, 12")
    a.e(f"s_add_u32 s26, s26, {LDS_XS}")
    a.e(f"v_add_u32 v{XR_}, s26, v{ZR}")
    a.e("v_lshrrev_b32 v14, 2, v4")
    a.e("v_lshl_add_u32 v14, v5, 3, v14")
    a.e("v_lshlrev_b32 v14, 7, v14")
    a.e("v_and_b32 v13, 3, v2")
    a.e("v_lshl_add_u32 v14, v13, 3, v14")
    a.e("v_and_b32 v13, 24, v2")
    a.e("v_lshl_add_u32 v14, v13, 2, v14")
    a.e(f"v_add_u32 v{TR}, s6, v14")
    for nb in range(1, 4):
        a.e(f"v_xor_b32 v{TR+nb}, {32*nb}, v{TR}")
    a.e(f"v_mov_b32 v13, {LDS_CNT}")
    a.e("v_mov_b32 v14, 0")
    q.l("ds_write_b32 v13, v14")
    def touch_u():
        if opt.get("tu") == 0: return
        if opt.get("tu", 2) == 2:
            a.e("s_lshl_b32 s26, s2, 12")
            a.e("s_lshr_b32 s28, s16, 1")
            a.e("s_lshl_b32 s28, s28, 11")
            a.e("s_add_u32 s26, s26, s28")
            a.e("s_and_b32 s28, s16, 1")
            a.e("s_lshl_b32 s28, s28, 9")
            a.e("s_add_u32 s26, s26, s28")
            a.e("v_lshlrev_b32 v14, 3, v2")
            q.v("buffer_load_dword v0, v14, s[96:99], s26 offen")
            return
        a.e("s_lshr_b32 s26, s2, 3")
        a.e("s_lshl_b32 s26, s26, 2")
        a.e("s_add_u32 s26, s26, s16")
        a.e("s_lshl_b32 s26, s26, 13")
        a.e("v_lshlrev_b32 v14, 6, v4")
        a.e("v_lshl_add_u32 v14, v5, 11, v14")
        q.v("buffer_load_dword v0, v14, s[96:99], s26 offen")
    m_addr(a)
    for f in opt['xrest']: f()
    for _ in range(opt.get('e0', 0)): early.pop(0)()
    A0 = 96
    def norm(s):
        A = A0 + 8 * (s // 8) + 4
        for j in range(4):
            f = F + 8 * s + 2 * j
            a.e(f"v_pk_fma_f32 v[{f}:{f+1}], v[{f}:{f+1}], v[{A}:{A+1}], v[{A}:{A+1}] op_sel:[0,0,1] op_sel_hi:[1,0,1]")
        for j in range(4):
            f = F + 8 * s + 2 * j
            a.e(f"v_cvt_pk_bf16_f32 v{X+4*s+j}, v{f}, v{f+1}")
    def stats(h):
        A = A0 + 8 * h
        for r in (A, A + 2): a.e(f"v_add_f32 v{r}, v{r}, v{r+1}")
        for d in ("quad_perm:[1,0,3,2]", "quad_perm:[2,3,0,1]", "row_half_mirror"):
            a.e("s_nop 0")
            for r in (A, A + 2): a.e(f"v_add_f32_dpp v{r}, v{r}, v{r} {d} row_mask:0xf bank_mask:0xf")
        a.e(f"v_mul_f32 v{A}, {f2u(-1.0/512)}, v{A}")
        a.e(f"v_mul_f32 v{A+2}, {f2u(1.0/512)}, v{A+2}")
        a.e(f"v_fma_f32 v{A+2}, -v{A}, v{A}, v{A+2}")
        a.e(f"v_max_f32 v{A+2}, 0, v{A+2}")
        a.e(f"v_add_f32 v{A+2}, {f2u(1e-5)}, v{A+2}")
        a.e(f"v_rsq_f32 v{A+4}, v{A+2}")
        a.e("s_nop 0")
        a.e(f"v_mul_f32 v{A+4}, {f2u(XSC)}, v{A+4}")
        a.e(f"v_mul_f32 v{A+5}, v{A}, v{A+4}")
    for h in range(2):
        A = A0 + 8 * h
        for i in range(8):
            s = 8 * h + i
            if s == 8: stats(0)
            if h == 1: norm(i)
            q.wait(f"x{s}")
            if s == 0: fs(1)
            for _ in range(opt.get("ep", [8] + [1] * 15)[s]):
                if early: early.pop(0)()
            for j in range(4):
                x = X + 4 * s + j; f = F + 8 * s + 2 * j
                a.e(f"v_lshlrev_b32 v{f}, 16, v{x}")
                a.e(f"v_and_b32 v{f+1}, s101, v{x}")
            for j in range(4):
                f = F + 8 * s + 2 * j
                if i == 0 and j == 0:
                    a.e(f"v_pk_add_f32 v[{A}:{A+1}], v[{f}:{f+1}], 0")
                    a.e(f"v_pk_mul_f32 v[{A+2}:{A+3}], v[{f}:{f+1}], v[{f}:{f+1}]")
                else:
                    a.e(f"v_pk_add_f32 v[{A}:{A+1}], v[{A}:{A+1}], v[{f}:{f+1}]")
                    a.e(f"v_pk_fma_f32 v[{A+2}:{A+3}], v[{f}:{f+1}], v[{f}:{f+1}], v[{A+2}:{A+3}]")
    fs(2)
    stats(1)
    for s in range(8, 12):
        for _ in range(2):
            if early: early.pop(0)()
        norm(s)
    while early: early.pop(0)()
    fs(3)
    def xw(s):
        h, i = s // 8, s % 8
        q.l(f"ds_write_b128 {(('v12', 'v15'), ('v116', 'v117'))[h][i // 4]}, v[{X+4*s}:{X+4*s+3}] offset:{2048*(i%4)}", "xw")
    fz = Fine(a, opt.get("fz"))
    fz(0)
    mfin = m_tile(a, q, fz, [lambda s=s: norm(s) for s in range(12, 16)])
    fs(4); fz(4)
    for s in range(16):
        xw(s)
        if s in (1, 5, 8, 12): fz(5 + (1, 5, 8, 12).index(s))
        if s == 3: mfin()
        if s >= 3:
            for _ in range(2):
                if late: late.pop(0)()
        TT = opt.get("tt", 8)
        if opt.get("te") is not None: continue
        if s == TT and opt.get('ta', 2): touch_aux(a, q, opt.get('ta', 2))
        if s == TT + 1 and not opt.get("tw"): touch_u()
    srd_off(a, 8, 4, "s24", 4096000)
    a.e("s_lshr_b32 s19, s3, 18")
    a.e("s_lshl_b32 s19, s19, 12")
    a.e("s_add_u32 s19, s19, s27")
    a.e("v_and_b32 v13, 3, v2")
    fz(9)
    q.wait("xw")
    fz(10)
    q.wait("St")
    fz(11)
    a.e("s_barrier")
    fz(12)
    st(1)
    AR = [16 + 16 * i for i in range(4)] + [96]
    T = 112
    NQ = 5
    role = [None]
    def areg(k): return AR[(k - 16 + 2) % NQ] if (role[0] == "qk" and k >= 16) else AR[k % 2]
    def accof(k): return 128 if k < 16 else 192 if (k < 32 or role[0] == "qk") else 128
    def bread(s, tb):
        r = 64 * tb + 4 * s
        if tb == 0: a.e(f"v_xor_b32 v{XR_+1}, {2048*(s//2) + 64*(s%2)}, v{XR_}")
        q.l(f"ds_read_b128 a[{r}:{r+3}], v{XR_+1} offset:{16384*tb}", f"B{s}")
    def tread(k, i):
        nb, h = i // 2, i % 2
        r = areg(k) + 4 * nb + 2 * h
        q.l(f"ds_read_b64_tr_b16 v[{r}:{r+1}], v{TR+nb} offset:{4096*(k % RING) + 512*h}", f"A{k}", need=(f"W{k}",))
    def mload(k, nb):
        if nb == 0: a.e(f"s_xor_b32 s42, s20, {4096*(k-16)}")
        r = areg(k) + 4 * nb
        q.v(f"buffer_load_dwordx4 v[{r}:{r+3}], v3, s[12:15], s42 offen offset:{1024*nb} sc1", f"A{k}")
    for tb in range(4): bread(0, tb)
    for i in range(8): tread(0, i)
    signal(a, L, "sig1", 0, 0)
    for tb in range(4): bread(1, tb)
    a.e(f"s_mov_b32 s0, {f2u(-GC1 / XSC)}")
    a.e(f"s_mov_b32 s1, {f2u(XSC)}")
    a.e("v_lshlrev_b32 v13, 6, v13")
    a.e("s_cmp_eq_u32 s16, 1")
    a.e("s_cselect_b32 s26, 0, 0x1000")
    a.e("v_add_u32 v12, s26, v13")
    a.e("s_lshl_b32 s17, s31, 16")
    a.e("s_lshl_b32 s26, s16, 7")
    a.e("s_add_u32 s17, s17, s26")
    a.e(f"s_add_u32 s17, s17, {WS_GU}")
    fx = [{}]
    def at(k, g, fn): fx[0].setdefault((k, g), []).append(fn if callable(fn) else (lambda: a.e(fn)))
    def run(ops):
        for x in ops: x() if callable(x) else a.e(x)
    def cost(x): return 2 if (isinstance(x, str) and x.split()[0] in ("v_exp_f32", "v_rcp_f32")) else 1
    def steps(k0, k1, side=(), lead=10, tailg=4):
        fixed = fx[0]
        gaps = [(k, g) for k in range(k0, k1) for g in range(16)]
        cap = [0 if (n < lead or n >= len(gaps) - tailg) else max(0, 2 - len(fixed.get(x, []))) for n, x in enumerate(gaps)]
        ops = list(side)
        C = sum(map(cost, ops)); tot = sum(cap)
        scale = min(1.0, C / tot)
        extra = max(0.0, (C - tot) / (len(gaps) - lead - tailg))
        budget = 0.0; used = 0
        for n, (k, g) in enumerate(gaps):
            if g == 0:
                if k in opt.get("fk", []): Fine(a, True)(opt["fk"].index(k))
                q.wait(f"A{k}", f"B{k}")
            nb, tb = ORD16[g] if opt.get('o2', 1) else (g // 4, g % 4)
            d = accof(k) + 16 * nb + 4 * tb; r = areg(k) + 4 * nb; b = 64 * tb + 4 * (k % 16)
            c = "0" if k % 16 == 0 else f"v[{d}:{d+3}]"
            a.e(f"{M16} v[{d}:{d+3}], v[{r}:{r+3}], a[{b}:{b+3}], {c}")
            for fn in fixed.pop((k, g), []): fn()
            if lead <= n < len(gaps) - tailg:
                budget += cap[n] * scale + extra
            while ops and (used + cost(ops[0]) <= budget + 1e-6 or n == len(gaps) - max(tailg, 1)):
                x = ops.pop(0); used += cost(x); run([x])
        assert not ops
    def raw_plan(k0, k1, kend):
        for k in range(k0, k1):
            if k + 1 < kend:
                for i in range(8): at(k, i, lambda k=k, i=i: tread(k + 1, i))
            if k + RING < kend:
                for j in range(4): at(k, 9 + 2 * j, lambda k=k, j=j: wdma(k + RING, j))
            if k + 2 < 16:
                for tb in range(4): at(k, 8 + 2 * tb, lambda k=k, tb=tb: bread(k + 2, tb))
    def gelu(acc, kind, pk, base, off):
        out = []
        if opt.get("nogelu"): return [["s_nop 0"] * 40 for _ in range(8)]
        P = lambda r: f"v[{r}:{r+1}]"
        def store(E, i):
            r = acc + 32 + 16 * (i % 2) + 4 * (i // 2)
            def f():
                a.e(f"s_add_u32 s29, {base}, {off + 4096*i}")
                pub = kind == "g" and i in (0, 7)
                q.v(f"buffer_store_dwordx4 v[{r}:{r+3}], v{SG}, s[12:15], s29 offen{' sc1' if pub else ''}", "St" if pub else "_", need=(f"sr{kind}{i}",))
            E(f)
        for tb in range(4):
            for h in range(2):
                o = []; E = o.append; out.append(o)
                src = [acc + 16 * (2 * h + ee) + 4 * tb + j for ee in range(2) for j in range(4)]
                if pk(2 * tb + h):
                    for i in range(0, 8, 2): E(f"v_pk_fma_f32 {P(T+i)}, {P(src[i])}, {P(src[i])}, s[0:1] op_sel_hi:[1,1,0] neg_lo:[1,0,0] neg_hi:[1,0,0]")
                    for i in range(0, 8, 2): E(f"v_pk_mul_f32 {P(T+i)}, {P(T+i)}, {P(src[i])}")
                    for i in range(8): E(f"v_exp_f32 v{T+i}, v{T+i}")
                    for i in range(0, 8, 2): E(f"v_pk_fma_f32 {P(T+i)}, {P(T+i)}, s[0:1], s[0:1] op_sel:[0,1,1] op_sel_hi:[1,1,1]")
                    for i in range(8): E(f"v_rcp_f32 v{T+i}, v{T+i}")
                    for i in range(0, 8, 2): E(f"v_pk_mul_f32 {P(src[i])}, {P(T+i)}, {P(src[i])}")
                else:
                    for i, x in enumerate(src): E(f"v_fma_f32 v{T+i}, -v{x}, v{x}, s0")
                    for i, x in enumerate(src): E(f"v_mul_f32 v{T+i}, v{T+i}, v{x}")
                    for i, x in enumerate(src): E(f"v_exp_f32 v{T+i}, v{T+i}")
                    for i, x in enumerate(src): E(f"v_fma_f32 v{T+i}, v{T+i}, s1, s1")
                    for i, x in enumerate(src): E(f"v_rcp_f32 v{T+i}, v{T+i}")
                    for i, x in enumerate(src): E(f"v_mul_f32 v{x}, v{T+i}, v{x}")
                pr = T + 8 + 4 * h
                for j in range(4): E(f"v_cvt_pk_bf16_f32 v{pr+j}, v{src[2*j]}, v{src[2*j+1]}")
                for ee in range(2):
                    E(lambda ee=ee, pr=pr, h=h: q.l(f"ds_write_b64 v{SW}, v[{pr+2*ee}:{pr+2*ee+1}] offset:{32*(2*h+ee)}"))
                if kind == "g":
                    s0, s1 = acc + 4 * tb, acc + 4 * tb + 1
                    if pk(2 * tb + h):
                        E(f"v_pk_mul_f32 {P(T)}, {P(src[0])}, {P(src[0])}")
                        E(f"v_pk_add_f32 {P(T+2)}, {P(src[0])}, {P(src[2])}")
                        for i in (2, 4, 6):
                            E(f"v_pk_fma_f32 {P(T)}, {P(src[i])}, {P(src[i])}, {P(T)}")
                            if i > 2: E(f"v_pk_add_f32 {P(T+2)}, {P(T+2)}, {P(src[i])}")
                        if h == 0:
                            E(f"v_add_f32 v{s0}, v{T+2}, v{T+3}")
                            E(f"v_add_f32 v{s1}, v{T}, v{T+1}")
                        else:
                            E(f"v_add_f32 v{T+2}, v{T+2}, v{T+3}")
                            E(f"v_add_f32 v{T+3}, v{T}, v{T+1}")
                            E(f"v_pk_add_f32 {P(s0)}, {P(s0)}, {P(T+2)}")
                    elif h == 0:
                        E(f"v_mul_f32 v{T}, v{src[0]}, v{src[0]}")
                        for x in src[1:]: E(f"v_fmac_f32 v{T}, v{x}, v{x}")
                        for x in src[1:]: E(f"v_add_f32 v{s0}, v{s0}, v{x}")
                        E(f"v_mov_b32 v{s1}, v{T}")
                    else:
                        for x in src:
                            E(f"v_add_f32 v{s0}, v{s0}, v{x}")
                            E(f"v_fmac_f32 v{s1}, v{x}, v{x}")
                if tb >= 1: store(E, 2 * (tb - 1) + h)
            for i in (2 * tb, 2 * tb + 1):
                r = acc + 32 + 16 * (i % 2) + 4 * tb
                E(lambda i=i, r=r: q.l(f"ds_read_b128 v[{r}:{r+3}], v{SR} offset:{8*SS*(i%2)}", f"sr{kind}{i}"))
        if kind == "g":
            for k in range(2):
                E(f"v_permlane16_swap_b32 v{acc+k}, v{acc+4+k}")
                E(f"v_permlane16_swap_b32 v{acc+8+k}, v{acc+12+k}")
            E("s_lshl_b32 s43, s22, 2")
            for k in range(2):
                E(f"v_add_f32 v{acc+k}, v{acc+k}, v{acc+4+k}")
                E(f"v_add_f32 v{acc+8+k}, v{acc+8+k}, v{acc+12+k}")
            E("s_add_u32 s43, s43, s16")
            E("s_lshl_b32 s43, s43, 9")
            for k in range(2): E(f"v_permlane32_swap_b32 v{acc+k}, v{acc+8+k}")
            E(lambda: (a.e("s_lshr_b32 s29, s31, 1"), a.e("s_lshl_b32 s29, s29, 12"), a.e("s_add_u32 s43, s43, s29")))
            for k in range(2): E(f"v_add_f32 v{T+k}, v{acc+k}, v{acc+8+k}")
            E(f"s_add_u32 s43, s43, {WS_ST}")
            E(f"v_lshlrev_b32 v{T+2}, 3, v2")
            E(lambda: q.v(f"buffer_store_dwordx2 v[{T}:{T+1}], v{T+2}, s[12:15], s43 offen sc1", "St"))
        store(E, 6); store(E, 7)
        return out
    flat = lambda bs: [x for b in bs for x in b]
    def stream_srd():
        a.e(f"s_mul_i32 s28, s22, {32768 * opt.get('n0', 62)}")
        a.e("s_add_u32 s28, s28, s24")
        a.e("s_lshl_b32 s26, s25, 15")
        srd_off(a, 8, 4, "s28", "s26")
    def xl():
        a.e("s_xor_b32 s26, s31, 1")
        a.e("s_lshl_b32 s26, s26, 7")
        a.e(f"s_add_u32 s26, s26, {WS_FL + 48}")
        q.v("buffer_load_dword v1, off, s[12:15], s26 sc1", "xid")
    def e0():
        q.wait("B15", "xid")
        a.e("v_readfirstlane_b32 s26, v1")
        a.e("s_getreg_b32 s21, hwreg(HW_REG_XCC_ID, 0, 4)")
        a.e("s_xor_b32 s21, s21, s26")
        if opt.get("far"): a.e("s_mov_b32 s21, 1")
        a.e("s_barrier")
    PQ = opt.get("pq", [11, 11, 12, 13, 14, 15, 16, 16, 17, 17, 18, 18, 19, 19, 20, 20])
    def pub(i):
        tb, sl = i // 4, i % 4
        q.v(f"buffer_store_dwordx4 a[{64*tb+4*sl}:{64*tb+4*sl+3}], v{YO}, s[8:11], s19 offen offset:{1024*sl} sc1", "Xst")
        if sl == 3: a.e("s_add_u32 s19, s19, 16384")
    def arrive():
        a.e(f"v_mov_b32 v1, {LDS_CNT}")
        a.e("v_mov_b32 v14, 1")
        q.wait("Xst")
        a.e("s_mov_b64 exec, 1")
        q.l("ds_add_rtn_u32 v15, v1, v14", "cnt")
        a.e("s_mov_b64 exec, -1")
    def sig2():
        q.wait("cnt")
        a.e("v_readfirstlane_b32 s28, v15")
        a.e("s_and_b32 s26, s2, 3")
        a.e("s_lshl_b32 s26, s26, 6")
        a.e("s_cmp_lg_u32 s28, 1")
        a.e(f"s_cbranch_scc1 {L('sig2')}")
        a.e("s_mov_b64 exec, 1")
        a.e("buffer_atomic_add v14, off, s[92:95], s26 offset:8")
        a.e("s_mov_b64 exec, -1")
        a.label(L("sig2"))
    KS = opt.get("ks", 11); KC = 11
    raw_plan(0, KS, 16)
    c1l = lambda: q.v(cnt_load(0, "v12"), "c1")
    if KS > KC - 3: at(KC - 3, 8, c1l)
    fs(5); fz(13)
    at(0, 1, lambda: fz(14)); at(1, 1, lambda: fz(15))
    steps(0, KS)
    assert not fx[0]
    a.e("s_cmp_ge_u32 s16, 2")
    a.e(f"s_cbranch_scc1 {L('fpv')}")
    state = (list(q.vm), list(q.lg))

    def qk_part():
        role[0] = "qk"; fx[0] = {}
        raw_plan(KS, 16, 16)
        def chk1():
            q.wait("c1")
            a.e("s_cmp_lg_u32 s16, 1")
            a.e(f"s_cbranch_scc1 {L('c1_ok')}")
            poll(a, q, L, "c1", [cnt_load(0, "v12")], CNT_OK, "c1", slp=8)
            a.e("s_barrier")
            a.e("s_lshl_b32 s26, s22, 1")
            a.e("s_add_u32 s26, s26, s16")
            a.e("s_lshl_b32 s20, s26, 17")
            a.e("s_lshr_b32 s28, s3, 18")
            a.e("s_lshl_b32 s28, s28, 14")
            a.e("s_add_u32 s20, s20, s28")
            a.e(f"s_add_u32 s20, s20, {WS_MI}")
        if KS <= KC - 3: at(KC - 3, 8, c1l)
        at(KC, 8, chk1)
        at(KC, 10, xl)
        for kk in range(16, 48):
            k = kk - NQ + 1
            for nb in range(4): at(k, (9 + 2 * nb) if k < 16 else (1 + 4 * nb), lambda kk=kk, nb=nb: mload(kk, nb))
        at(15, 8, e0)
        if PQ:
            for i, k in enumerate(PQ): at(k, 11 if (i and PQ[i - 1] == k) else 3 if k >= 16 else 14, lambda i=i: pub(i))
            at(PQ[-1] + 3, 7, arrive)
            at(PQ[-1] + 4, 7, sig2)
        for g, x in enumerate(["s_lshl_b32 s40, s31, 1", "s_add_u32 s40, s40, s16", "s_lshl_b32 s40, s40, 14", f"s_add_u32 s40, s40, {WS_QP}",
                               "s_lshl_b32 s41, s31, 5", "s_add_u32 s41, s41, s16", "s_lshl_b32 s41, s41, 2", f"s_add_u32 s41, s41, {WS_FL + 16}"]):
            at(15, g, x)
        steps(KS, 16)
        fs(6)
        NA_, NB_ = opt.get("qg", (4, 4))
        gb = gelu(128, "g", lambda b: b >= NA_ + NB_, "s17", 0)
        pre = ["s_lshl_b32 s26, s16, 2", "s_add_u32 s26, s26, s22", "s_lshl_b32 s26, s26, 13", f"s_add_u32 s18, s26, {LDS_XS}", f"v_add_u32 v{QW}, s18, v3",
               "s_xor_b32 s18, s18, 0x2000", "s_add_u32 s7, s40, 4096", "s_xor_b32 s6, s41, 128", "v_mov_b32 v12, 1",
               lambda: run(["s_cmp_eq_u32 s21, 0", "s_cselect_b32 s46, s14, 0", "s_mov_b64 s[44:45], s[12:13]"])]
        steps(16, 32, pre + flat(gb[:NA_]))
        fs(7)
        preg = lambda i: 192 + 32 * (i % 2) + 4 * (i // 2)
        def qst(i, r, srd, mod): return f"buffer_store_dwordx4 v[{r}:{r+3}], v3, s[{srd}:{srd+3}], {'s40' if i < 4 else 's7'} offen offset:{1024*(i%4)} {mod}"
        def pack(p):
            a.e("s_nop 3")
            for i in ((0, 2, 4, 6, 7, 5, 3, 1) if opt.get('o2', 1) else range(8)):
                pr = preg(i); src = [pr + 16 * ee + j for ee in range(2) for j in range(4)]
                for j in range(4): a.e(f"v_cvt_pk_bf16_f32 v{pr+j}, v{src[2*j]}, v{src[2*j+1]}")
                if p: q.v(qst(i, pr, 44, "nt"), "Qst", need=("qa",))
                q.l(f"ds_write_b128 v{QW}, v[{pr}:{pr+3}] offset:{16384*p + 1024*i}", "qw")
        def fetch(p, i):
            if i % 4 == 0:
                a.e(f"s_add_u32 m0, s18, {16384*p + 1024*i}")
                a.e("s_nop 0")
            q.v(f"buffer_load_dwordx4 v3, s[12:15], {'s40' if i < 4 else 's7'} offen offset:{1024*(i%4)} sc1 lds", "qd" if p else "qa")
        SWAP = ["s_xor_b32 s40, s40, 0x8000", "s_xor_b32 s7, s7, 0x8000"]
        pack(0)
        for i in range(8):
            k = 32 + opt.get("qsp", [0, 0, 1, 1, 2, 2, 3, 3])[i]
            r = (WV, TR)[i % 2]
            at(k, 3, lambda i=i, r=r: q.l(f"ds_read_b128 v[{r}:{r+3}], v{QW} offset:{1024*i}", f"qr{i}"))
            at(k, 15, lambda i=i, r=r: q.v(qst(i, r, 12, "sc1"), "Qst", need=(f"qr{i}",)))
        KA_, KB_, KC_ = opt.get("qk_", (39, 43, 45))
        qok = ["v_readfirstlane_b32 s26, v15", "s_cmp_eq_u32 s26, 1"]
        at(KA_, 3, lambda: q.v("buffer_store_dword v12, off, s[12:15], s41 sc1", need=("Qst",)))
        qfa = "buffer_load_dword v15, off, s[12:15], s6 sc1"
        at(KB_, 3, lambda: q.v(qfa, "qf"))
        at(KC_, 0, lambda: (poll(a, q, L, "qa", [qfa], qok, "qf", slp=1), run(SWAP)))
        for i in range(8): at(KC_, 1 + 2 * i, lambda i=i: fetch(0, i))
        at(opt.get("kc2", 41), 7, lambda: q.v(cnt_load(8), "c2"))
        at(43, 7, lambda: (stream_srd(), a.e("s_lshl_b32 s19, s16, 14")))
        at(44, 0, lambda: poll(a, q, L, "c2", [cnt_load(8)], CNT_OK, "c2", slp=8))
        def kvt():
            n = opt.get("kt_", 6)
            a.e("s_lshr_b32 s26, s2, 4")
            a.e("s_lshl_b32 s26, s26, 1")
            a.e("s_add_u32 s26, s26, s16")
            a.e(f"s_lshl_b32 s26, s26, {n + 6}")
            a.e(f"v_lshlrev_b32 v14, {n}, v2")
            q.v("buffer_load_dword v0, v14, s[8:11], s26 offen sc1")
        if opt.get("kt_", 0): at(44, 1, kvt)
        kds = []
        for i in range(16):
            def kd(i=i):
                if i % 4 == 0:
                    a.e(f"s_add_u32 m0, s19, {1024*i}")
                    a.e(f"s_add_u32 s42, s19, {1024*i}")
                q.v(f"buffer_load_dwordx4 v3, s[8:11], s42 offen offset:{1024*(i%4)} sc1 lds", "kv0")
            if i >= opt.get("kn", 4): kds.append(kd)
            else: at(44 + i // 4 + (1 if 44 + i // 4 >= KC_ else 0), 4 + 3 * (i % 4), kd)
        steps(32, 48, flat(gb[NA_:NA_ + NB_]), lead=2)
        assert not fx[0]
        fs(8); fy = Fine(a, opt.get("fy")); fy(0)
        pack(1)
        fy(1)
        rest = gb[NA_ + NB_:]
        W1, W2 = opt.get("qw_", (0, 0))
        run(kds)
        for _ in range(W1): run(rest.pop(0))
        fy(2)
        release(a, q, L, "rq", "Qst", "buffer_store_dword v12, off, s[12:15], s41 offset:8", [qst(i, preg(i), 12, "sc1") for i in range(8)])
        fy(3)
        qfl = "buffer_load_dword v15, off, s[12:15], s6 offset:8 sc1"
        fy(4)
        for _ in range(W2): run(rest.pop(0))
        q.v(qfl, "qf")
        for _ in range(opt.get("w3", 0)): run(rest.pop(0))
        fs(12); fy(5)
        run(SWAP)
        poll(a, q, L, "q", [qfl], qok, "qf", slp=1)
        fy(6)
        for i in range(8): fetch(1, i)
        fy(7)
        run(flat(rest))
        fs(9); fy(8)

    def pv_part(setup, vreads, zero):
        role[0] = "pv"; fx[0] = {}
        a.label(L("fpv"))
        q.vm, q.lg = list(state[0]), list(state[1])
        a.e("s_and_b32 s20, s3, 0xffff0000")
        a.e("s_lshl_b32 s26, s22, 1")
        a.e("s_add_u32 s26, s26, s16")
        a.e("s_sub_u32 s26, s26, 2")
        a.e("s_lshl_b32 s26, s26, 8")
        a.e("s_add_u32 s20, s20, s26")
        raw_plan(KS, 48, 48)
        at(KC, 8, "s_barrier")
        at(KC, 10, xl)
        at(15, 8, e0)
        PE = opt.get("pe", [])
        for i, k in enumerate(PE): at(k, 12 if (i and PE[i - 1] == k) else 4, lambda i=i: pub(i))
        steps(KS, 16)
        fs(6)
        N1, N2 = opt.get("pg_", (5, 3))
        gb = gelu(128, "g", lambda b: b < N1, "s17", 0)
        e1 = flat(gb[:N1])
        for i in range(16 if PQ else len(PE), 16): e1.insert((i - len(PE)) * opt.get("pd", 12), lambda i=i: pub(i))
        a.e("s_nop 3")
        run(e1)
        fs(12)
        K2 = opt.get("k2", 19)
        if not PQ:
            at(K2, 8, arrive)
            at(K2 + 1, 8, sig2)
        steps(16, 32, flat(gb[N1:]), lead=2)
        fs(7)
        a.e("s_lshl_b32 s26, s16, 7")
        a.e("s_add_u32 s17, s17, s26")
        a.e("s_sub_u32 s17, s17, 512")
        ua = gelu(192, "ua", lambda b: b >= N2, "s17", 32768)
        n0 = len(a.lines)
        stream_srd(); setup()
        a.e("s_lshl_b32 s6, s19, 14")
        a.e("s_lshl_b32 s20, s19, 13")
        su = [x.strip() for x in a.lines[n0:]]; del a.lines[n0:]
        if opt.get("sg", 1):
            steps(32, 43, flat(ua[:N2]), tailg=0)
            steps(43, 48, su, lead=0, tailg=0)
        else:
            steps(32, 48, flat(ua[:N2])); run(su)
        assert not fx[0]
        fs(8); fy = Fine(a, opt.get("fy"))
        for k in range(9): fy(k)
        ub = gelu(128, "ub", lambda b: True, "s17", 32768 + 128)
        rest = ua[N2:] + ub
        pend = []
        def dma(n0, n, lds0, tag):
            for i in range(n):
                def f(i=i):
                    if i % 4 == 0:
                        a.e(f"s_add_u32 m0, {lds0}, {n0 + 1024*i}")
                        a.e(f"s_add_u32 s7, {lds0}, {n0 + 1024*i}")
                    q.v(f"buffer_load_dwordx4 v3, s[8:11], s7 offen offset:{1024*(i%4)} sc1 lds", tag)
                pend.append(f)
        BS, BA, BB = opt.get("pb", (6, 9, 11))
        DD = opt.get("dd", 5)
        assert (BA - len(ua[N2:])) % 2 == 0 if BA >= len(ua[N2:]) else (N2 + BA) % 2 == 0
        for n in range(len(rest) + 1):
            if n == BS:
                q.wait("St")
                fy(9)
                a.e("s_barrier")
                fy(10)
                st(2); fs(9)
                if not opt.get("q1"): dma(32768, 16, "s6", "kv1")
                if opt.get("t2", 1): dma(65536, 8, "s20", "kv2")
            if n == BA:
                q.all(vm=False)
                fy(11)
                a.e("s_barrier")
                fy(12)
                a.e(f"s_mul_i32 s26, s19, {16*SS - 8192}")
                a.e(f"s_add_u32 s26, s26, {LDS_SC2 - LDS_SC}")
                a.e(f"v_add_u32 v{SW}, s26, v{SW}")
                a.e(f"v_add_u32 v{SR}, s26, v{SR}")
                run(pend); del pend[:]
                if not opt.get("t2", 1): dma(65536, 8, "s20", "kv2")
                dma(81920, 8, "s20", "kv2")
                if not opt.get("q3", 1): dma(98304, 16, "s6", "kv3")
            if n == BB:
                q.wait("kv1")
                fy(13)
                a.e("s_barrier")
                fy(14)
                fs(10)
                signal(a, L, "sig3", 2, 4)
            if n < len(rest):
                for i, x in enumerate(rest[n]):
                    if n >= BS and i % 4 == 0 and vreads: q.l(vreads.pop(0))
                    if i % (DD if n < BA else opt.get("d2", 4)) == 1 and pend: pend.pop(0)()
                    run([x])
        assert not vreads
        run(pend)
        zero()
        q.wait("kv2")
        q.all(vm=False)
        fy(15)
    return qk_part, pv_part
```

```python
import sys
sys.path.insert(0, "gen")
from asmlib import *
from attn2 import gen_attn
KNAME = "standalone__conformer_family_branchformer__speech_kernel"

def build(path, stamp=0, opt=None):
    a = Asm()
    a('.amdgcn_target "amdgcn-amd-amdhsa--gfx950"')
    l = gen_attn(a, KNAME, stamp=stamp, opt=opt)
    t = a.text().replace(KNAME + "_", "L_")
    open(path, "w").write(l + "\n" + t)

if __name__ == "__main__":
    build("v3.s")
    build("v3_st.s", stamp=1)
    build("v3_fs.s", stamp=2)
    build("v3f_fs.s", stamp=3)
    build("a_fs.s", stamp=3, opt=dict(o1=0, o2=0))
    build("b_fs.s", stamp=3, opt=dict(o2=0))
```

```python
import sys
sys.path.insert(0, "gen")
from asmlib import *
from layout import *
from conv import Conv
from aux import gen_aux
from front import *

RS = 1056
LDS_P = 131072
LDS_MX = 139264
LDS_FG = LDS_MX + 512
LDS_ML = LDS_MX + 1024
LDS_HALO = LDS_ML + 1024
LDS_TAP = LDS_HALO + 2048
LDS_STT = LDS_TAP + 3072
LDS_ATT = 163840
ES = 272
NA = 16
ARING = [16 * i for i in range(16)]
BIG = 2.0 ** 100
SPIN = 200000
FK = [0, 8, 16, 20, 24, 28, 30]

DROP = []
ALIGN = [0]
def emit_interval(a, mfmas, fill, lo=0, hi=None):
    for i, m in enumerate(mfmas):
        if i < lo or (hi is not None and i >= hi): continue
        if m is not None:
            if ALIGN[0]: a(".p2alignl 3, 0xbf800000")
            a.e(m)
        for f in fill.get(i, []):
            if any(f.startswith(d) for d in DROP): continue
            a.e(f)

def conv_addr(a, NR, row0):
    a.e("v_lshrrev_b32 v12, 5, v2")
    a.e(f"v_mul_u32_u24 v12, {NR}, v12")
    a.e(f"v_add_u32 v12, {row0}, v12")
    a.e("v_and_b32 v13, 31, v2")
    a.e("v_lshlrev_b32 v13, 4, v13")
    a.e("v_lshl_add_u32 v14, v12, 9, v13")
    a.e("s_and_b32 s26, s25, 3")
    a.e("s_lshl_b32 s26, s26, 15")
    a.e("v_add_u32 v232, s26, v14")
    a.e("v_add_u32 v235, s49, v14")
    a.e("v_and_b32 v14, 4, v12")
    a.e("v_lshlrev_b32 v14, 5, v14")
    a.e("v_xor_b32 v236, v235, v14")
    a.e(f"v_add_u32 v238, {LDS_TAP}, v13")
    a.e(f"v_add_u32 v13, {LDS_HALO}, v13")
    a.e("v_cmp_eq_u32 vcc, 0, v12")
    a.e("v_subrev_u32 v233, 1024, v232")
    a.e(f"v_add_u32 v234, {512*NR}, v232")
    a.e("v_cndmask_b32 v233, v233, v13, vcc")
    a.e(f"v_cmp_eq_u32 vcc, {64-NR}, v12")
    a.e("v_add_u32 v13, 1024, v13")
    a.e("v_lshlrev_b32 v237, 3, v12")
    a.e("v_cndmask_b32 v234, v234, v13, vcc")
    a.e(f"v_add_u32 v237, {LDS_STT}, v237")

def gen_tail(a, L, st, fs, opt):
    q = Seq(a)
    PF = opt.get("pf", 10)
    q.vm = [f"A{k}" for k in range(PF) for _ in range(4)]
    BF = [32, 48]; YR = 64; XR = 96
    NS = 32
    acc = lambda k: 128 if k < 16 else 192
    def bread(k, tb):
        s = k % 8
        r = BF[k % 2] + 4 * tb
        if k % 16 < 8:
            return f"ds_read_b128 v[{r}:{r+3}], v6 offset:{8192*tb + 1024*s}"
        return f"ds_read_b128 v[{r}:{r+3}], v{28 + s % 4} offset:{8192*tb + 256*(s//4)}"
    a.e("v_add_u32 v6, s48, v3")
    a.e("s_waitcnt lgkmcnt(0)")
    fs(5)
    a.e("s_barrier")
    for tb in range(4): q.l(bread(0, tb), "B0")
    a.e("v_and_b32 v4, 15, v2")
    a.e("v_lshrrev_b32 v5, 4, v2")
    a.e("v_mov_b32 v12, 1")
    a.e("v_mov_b32 v15, 0x3f80")
    SEL = 16
    side = {}
    def at(k, g, fn): side.setdefault((k + g // 16, g % 16), []).append(fn)
    def spread(k, g, ops, per=2, skip=lambda g: False):
        n = 16 * k + g
        ops = list(ops)
        while ops:
            if not skip(n % 16):
                for _ in range(per):
                    if ops:
                        o = ops.pop(0)
                        at(n // 16, n % 16, o if callable(o) else (lambda o=o: a.e(o)))
            n += 1
    lo8 = lambda g: g < 8
    spread(0, 8, ["v_and_b32 v13, 7, v4", "v_lshlrev_b32 v13, 1, v13", "v_xor_b32 v13, v13, v5", "v_lshlrev_b32 v13, 4, v13",
                  "v_lshl_add_u32 v13, v4, 9, v13", "v_add_u32 v28, s49, v13", "v_xor_b32 v29, 64, v28", "v_xor_b32 v30, 128, v28",
                  "v_xor_b32 v31, 192, v28",
                  "s_and_b32 s26, s16, 2", "s_add_u32 s26, s26, s25", "s_and_b32 s26, s26, 3", "s_lshl_b32 s26, s26, 1",
                  "s_and_b32 s28, s16, 1", "s_add_u32 s26, s26, s28", "s_lshl_b32 s42, s26, 14",
                  "v_lshrrev_b32 v13, 1, v4", "v_xor_b32 v13, v13, v5", "v_lshlrev_b32 v13, 4, v13", "v_lshl_add_u32 v13, v4, 7, v13",
                  "v_add_u32 v8, s42, v13", "v_xor_b32 v9, 64, v8", "v_add_u32 v7, s42, v3",
                  "v_lshrrev_b32 v13, 3, v2", "v_lshrrev_b32 v14, 4, v2", "v_xor_b32 v14, v14, v2", "v_and_b32 v14, 7, v14",
                  "v_lshlrev_b32 v14, 4, v14", "v_lshl_add_u32 v10, v13, 10, v14", "v_xor_b32 v11, 64, v10",
                  "v_lshrrev_b32 v13, 2, v4", "v_cmp_eq_u32 vcc, v13, v5", "v_and_b32 v13, 1, v4", "v_lshlrev_b32 v13, 4, v13",
                  "v_lshlrev_b32 v13, v13, v15", "v_cndmask_b32 v13, 0, v13, vcc", "v_and_b32 v14, 2, v4", "v_cmp_eq_u32 vcc, 0, v14",
                  f"v_mov_b32 v{SEL+2}, 0", f"v_mov_b32 v{SEL+3}, 0", f"v_cndmask_b32 v{SEL}, 0, v13, vcc", f"v_sub_u32 v{SEL+1}, v13, v{SEL}",
                  f"v_mov_b32 v{SEL+4}, v{SEL}", f"v_mov_b32 v{SEL+5}, v{SEL+1}"], skip=lo8)
    KX = opt.get("kx", 26)
    for i in range(8):
        def xl(i=i):
            a.e(f"s_add_u32 m0, s42, {1024*i}")
            a.e(f"s_add_u32 s26, s58, {8192*i}")
            q.v(f"buffer_load_dwordx4 v{10 + i%2}, s[32:35], s26 offen lds", "X")
        at(KX, 1 + opt.get("dx", 4) * i, xl)
        at(opt.get("ku", 30), 8 + i, lambda i=i: q.l(f"ds_read_b128 v[{XR+4*i}:{XR+4*i+3}], v{8 + i%2} offset:{2048*(i//2)}", "XF", need=("X",)))
    YS = opt.get("ys", 2)
    for i in range(8):
        tb, h = i // 2, i % 2
        k, g0 = (16 + i // 2, 8 + 4 * (i % 2)) if YS == 2 else (16, 8 + 3 * i)
        src = [128 + 16 * (2 * h + ee) + 4 * tb + j for ee in range(2) for j in range(4)]
        for j in range(4):
            at(k, g0 + j // 2, lambda j=j, i=i, src=src: a.e(f"v_cvt_pk_bf16_f32 v{YR+4*i+j}, v{src[2*j]}, v{src[2*j+1]}"))
        at(k, g0 + 2, lambda i=i: q.v(f"buffer_store_dwordx4 v[{YR+4*i}:{YR+4*i+3}], v3, s[44:47], s{54 + i//4} offen offset:{1024*(i%4)} {opt.get('sm_', 'nt')}", "Yst"))
    KF, KL, KC = opt.get("k", (24, 27, 29))
    at(KF, 9, lambda: release(a, q, L, "ry", "Yst", "buffer_store_dword v12, off, s[12:15], s56",
        [f"buffer_store_dwordx4 v[{YR+4*i}:{YR+4*i+3}], v3, s[12:15], s{54 + i//4} offen offset:{1024*(i%4)} sc1" for i in range(8)]))
    yl = f"buffer_load_dword v14, off, s[12:15], s57 {opt.get('pm', 'sc1')}"
    at(KL, 9, lambda: q.v(yl, "yf"))
    def gety():
        poll(a, q, L, "y", [yl], ["v_readfirstlane_b32 s26, v14", "s_cmp_eq_u32 s26, 1"], "yf", slp=1)
        a.e("s_xor_b32 s54, s54, 0x10000")
        a.e("s_xor_b32 s55, s55, 0x10000")
    at(KC, 7, gety)
    for i in range(8):
        at(KC, 8 + i, lambda i=i: q.v(f"buffer_load_dwordx4 v[{YR+4*i}:{YR+4*i+3}], v3, s[12:15], s{54 + i//4} offen offset:{1024*(i%4)} {opt.get('lm', 'sc1')}", f"Y{i}"))
    nl = 4 * PF
    AS = opt.get("as", "4" * 16 + "0000" + "4" * 12)
    LG = opt.get("lg", (1, 5, 9, 13, 3))
    for k in range(NS):
        assert nl >= 4 * min(NS, k + 3)
        if k == 0: st(5)
        if k in FK: fs(6 + FK.index(k))
        q.wait(f"A{k}", f"B{k}")
        g = 0
        for nb_ in range(4):
            for tb_ in range(4):
                nb, tb = ORD16[g] if opt.get("o2", 1) else (nb_, tb_)
                d = acc(k) + 16 * nb + 4 * tb; r = areg(k, nb); b = BF[k % 2] + 4 * tb
                c = "0" if k % 16 == 0 else f"v[{d}:{d+3}]"
                a.e(f"{M16} v[{d}:{d+3}], a[{r}:{r+3}], v[{b}:{b+3}], {c}")
                if g < 8 and g % 2 == 0 and k + 1 < NS:
                    q.l(bread(k + 1, g // 2), f"B{k+1}")
                if nl < 4 * NS and nl // 4 < k + NA and g in LG[:int(AS[k])]:
                    aload(a, q, nl // 4, nl % 4); nl += 1
                for fn in side.pop((k, g), []): fn()
                g += 1
    assert not side, side.keys()
    st(6); fs(13)
    def sel(i, R, tag):
        tb, h = i // 2, i % 2
        out = []
        for ee in range(2):
            d = 192 + 16 * (2 * h + ee) + 4 * tb
            out.append(lambda d=d, ee=ee: q.e(f"{M16} v[{d}:{d+3}], v[{SEL+2*ee}:{SEL+2*ee+3}], v[{R+4*i}:{R+4*i+3}], v[{d}:{d+3}]", need=(tag,)))
        return out
    for i in range(8):
        for f in sel(i, XR, "XF"): f()
    PK = 128
    post = []
    for i in range(8):
        tb, h = i // 2, i % 2
        src = [192 + 16 * (2 * h + ee) + 4 * tb + j for ee in range(2) for j in range(4)]
        o = [f"v_cvt_pk_bf16_f32 v{PK+4*i+j}, v{src[2*j]}, v{src[2*j+1]}" for j in range(4)]
        o.append(lambda i=i, tb=tb, h=h: q.l(f"ds_write_b128 v{8+h}, v[{PK+4*i}:{PK+4*i+3}] offset:{8192 + 2048*tb}"))
        if h:
            o += [lambda ii=ii: q.l(f"ds_read_b128 v[{160+4*ii}:{163+4*ii}], v7 offset:{8192 + 1024*ii}", f"E{ii}") for ii in (i - 1, i)]
        post.append(o)
    def out(ii):
        a.e(f"s_add_u32 s26, s58, {8192*ii}")
        q.v(f"buffer_store_dwordx4 v[{160+4*ii}:{163+4*ii}], v{10 + ii%2}, s[36:39], s26 offen {opt.get('omod', 'nt')}", need=(f"E{ii}",))
    R_ = lambda ops: [x() if callable(x) else a.e(x) for x in ops]
    for i in range(8):
        m = sel(i, YR, f"Y{i}")
        o = post[i - 4] if i >= 4 else []
        m[0](); R_(o[:2]); m[1](); R_(o[2:])
    fs(14)
    for i in range(4, 8):
        R_(post[i])
        out(i - 4)
    for ii in range(4, 8): out(ii)

def ER(i):
    return (96 + 8 * i) if i < 4 else (32 + 8 * (i - 4))

def areg(k, nb):
    return ARING[k % NA] + 4 * nb

def aload(a, q, k, nb):
    s = k % 8
    if nb == 0:
        if k % 16 < 8:
            a.e(f"s_add_u32 s59, {'s52' if k < 16 else 's53'}, {524288 + 32768*(s//4) + 4096*(s%4)}")
        else:
            a.e(f"s_add_u32 s59, {'s50' if k < 16 else 's51'}, {4096*s}")
    r = areg(k, nb)
    q.v(f"buffer_load_dwordx4 a[{r}:{r+3}], v3, s[12:15], s59 offen offset:{1024*nb} sc1", f"A{k}")

def gen_attn(a, name, stamp=False, opt=None):
    dg = [3 + (15 * i) // 4 for i in range(16)]
    opt = dict(dict(ps=1, xe=1, qw=62, dg=dg, mg=[2, 17, 32, 47, 60], rg=[g for g in range(8, 60) if g not in dg][:32], rot=4,
                    kg_=list(range(8, 16)) + list(range(24, 32)), qbe=57, pbe=58, pvg=[4, 57, 60, 60, 60, 61, 61, 61]), **(opt or {}))
    OOL[:] = []
    DROP[:] = opt.get('drop', [])
    ALIGN[0] = opt.get('al', 0)
    Fine.op = 's_memtime' if opt.get('cyc') else 's_memrealtime'
    nP = 16
    L = lambda s: f"{name}_{s}"
    st = Stamper(a, stamp in (1, 5))
    fs = Fine(a, stamp == 2)
    ff = Fine(a, stamp == 3)
    fp = Fine(a, stamp == 6)
    kernel_begin(a, name)
    a.e("s_cmp_ge_u32 s2, 256")
    a.e(f"s_cbranch_scc1 {L('end')}")
    a.e(f"s_load_dwordx2 s[4:5], s[0:1], {KA['ws']}")
    a.e(f"s_load_dwordx2 s[6:7], s[0:1], {KA['x']}")
    a.e(f"s_load_dwordx2 s[40:41], s[0:1], {KA['wq']}")
    a.e(f"s_load_dwordx2 s[8:9], s[0:1], {KA['wk']}")
    a.e(f"s_load_dwordx2 s[96:97], s[0:1], {KA['wup']}")
    a.e(f"s_load_dwordx2 s[44:45], s[0:1], {KA['dw']}")
    a.e(f"s_load_dwordx4 s[48:51], s[0:1], {KA['out']}")
    a.e(f"s_load_dwordx4 s[52:55], s[0:1], {KA['wv']}")
    a.e(f"s_load_dwordx4 s[56:59], s[0:1], {KA['wdn']}")
    a.e("s_and_b32 s20, s2, 7")
    a.e("s_lshl_b32 s20, s20, 5")
    a.e("s_lshr_b32 s21, s2, 3")
    a.e("s_add_u32 s31, s20, s21")
    if opt.get("sw62", 1):
        a.e("s_and_b32 s20, s31, 62")
        a.e("s_cmp_eq_u32 s20, 60")
        a.e("s_cselect_b32 s20, 64, 0")
        a.e("s_xor_b32 s31, s31, s20")
    if opt.get("map") == 1:
        a.e("s_and_b32 s20, s2, 6")
        a.e("s_lshl_b32 s20, s20, 5")
        a.e("s_lshl_b32 s21, s21, 1")
        a.e("s_add_u32 s31, s20, s21")
        a.e("s_and_b32 s20, s2, 1")
        a.e("s_add_u32 s31, s31, s20")
    a.e("s_lshr_b32 s21, s31, 7")
    a.e("s_and_b32 s22, s31, 1")
    a.e("s_bfe_u32 s23, s31, 0x60001")
    a.e("v_lshrrev_b32 v1, 6, v0")
    a.e("v_and_b32 v2, 63, v0")
    a.e("v_readfirstlane_b32 s16, v1")
    a.e("v_lshlrev_b32 v3, 4, v2")
    a.e("s_mul_i32 s24, s21, 4096000")
    N0 = opt.get("n0", 62)
    a.e(f"s_mul_i32 s25, s22, {125 - 2*N0}")
    a.e(f"s_add_i32 s25, s25, {N0}")
    a.e("s_lshl_b32 s27, s23, 16")
    a.e("s_waitcnt lgkmcnt(0)")
    st(0); ff(0)
    def fin_srd(d, n):
        a.e(f"s_and_b32 s{d+1}, s{d+1}, 0xffff")
        a.e(f"s_mov_b32 s{d+2}, {n}")
        a.e(f"s_mov_b32 s{d+3}, 0x00020000")
    q = Seq(a)
    srd_off(a, 32, 6, "s24", 4096000)
    a.e("v_lshrrev_b32 v4, 3, v2")
    a.e("v_and_b32 v5, 7, v2")
    a.e("v_lshlrev_b32 v5, 4, v5")
    a.e("v_lshl_add_u32 v4, v4, 10, v5")
    a.e("s_lshl_b32 s26, s16, 14")
    a.e("s_add_u32 s26, s26, s27")
    a.e("s_lshl_b32 s28, s22, 9")
    a.e("s_add_u32 s26, s26, s28")
    a.e("v_mov_b32 v1, v4")
    a.e("s_mov_b32 s20, s26")
    def xld(s_):
        if s_ % 4 == 0: a.e(f"s_xor_b32 s7, s20, {8192*(s_//8) + 512*((s_//4)%2)}")
        q.v(f"buffer_load_dwordx4 v[{16+4*s_}:{19+4*s_}], v1, s[32:35], s7 offen offset:{128*(s_%4)} {opt.get('xmod', 'nt')}", f"x{s_}")
    NX = opt.get("nx", 16)
    for s_ in range(NX): xld(s_)
    opt["xrest"] = [lambda s_=s_: xld(s_) for s_ in range(NX, 16)]
    fin_srd(96, 1048576)
    touches(a, q, L, opt)
    fin_srd(40, 524288); fin_srd(8, 524288); fin_srd(44, 5120)
    make_srd(a, 12, 4, 0x4000000)
    make_srd(a, 92, 50, 256)
    srd_off(a, 36, 48, "s24", 4096000)
    mi = m_issue(a, q)
    def clear():
        a.e("v_mov_b32 v14, 0")
        a.e("v_lshlrev_b32 v13, 2, v2")
        a.e("s_lshl_b32 s26, s31, 2")
        a.e("s_add_u32 s26, s26, s16")
        a.e("s_lshl_b32 s28, s26, 8")
        a.e(f"s_add_u32 s28, s28, {WS_MX}")
        q.v("buffer_store_dword v14, v13, s[12:15], s28 offen sc1", "St")
        a.e("s_lshl_b32 s28, s31, 5")
        a.e("s_add_u32 s28, s28, s16")
        a.e("s_lshl_b32 s28, s28, 2")
        a.e(f"s_add_u32 s28, s28, {WS_FL}")
        a.e("v_and_b32 v13, 48, v2")
        a.e("s_getreg_b32 s26, hwreg(HW_REG_XCC_ID, 0, 4)")
        a.e("v_cmp_eq_u32 vcc, 48, v13")
        a.e("v_mov_b32 v14, s26")
        a.e("s_nop 0")
        a.e("v_cndmask_b32 v14, 0, v14, vcc")
        q.v("buffer_store_dword v14, v13, s[12:15], s28 offen sc1", "St")
    a.e("s_cmp_ge_u32 s23, 63")
    a.e(f"s_cbranch_scc1 {L('aux')}")
    def emit_aux(q0=q, vm0=list(q.vm)):
        a.label(L("aux"))
        q0.vm, q0.lg = list(vm0), []
        for f in mi: f()
        q0.v("buffer_load_dword v0, v7, s[44:47], 0 offen")
        m_addr(a)
        mfin = m_tile(a, q0)
        mfin()
        q0.all()
        a.e("s_barrier")
        signal(a, L, "sig1a", 0, 0)
        signal(a, L, "sig2a", 1, 8)
        signal(a, L, "sig3a", 2, 4)
        a.e("s_lshl_b32 s20, s21, 1")
        a.e("s_add_u32 s20, s20, s22")
        gen_aux(a, L, st, ff, opt)
        signal(a, L, "sig4a", 0, 12, shard=False)
        for k in range(5, 7): st(k)
        for k in range(15): fs(k)
        if stamp in (4, 6):
            for k in range(16): Fine(a, True)(k)
        for k in range(9, 15): ff(k)
        a.e(f"s_branch {L('fin')}")
    qk_part, pv_part = gen_front(a, q, L, st, ff, mi, clear, opt)
    qf = q
    qk_part()
    def tail_consts():
        t = Asm()
        t.e("s_lshl_b32 s26, s22, 2")
        t.e("s_add_u32 s26, s26, s16")
        t.e("s_lshl_b32 s53, s26, 16")
        t.e(f"s_add_u32 s53, s53, {WS_W3}")
        t.e("s_xor_b32 s52, s53, 0x40000")
        t.e("s_lshl_b32 s58, s26, 7")
        t.e("s_add_u32 s58, s58, s27")
        t.e("s_xor_b32 s54, s31, 1")
        t.e("s_lshl_b32 s54, s54, 3")
        t.e("s_add_u32 s54, s54, s16")
        t.e("s_lshl_b32 s54, s54, 13")
        t.e(f"s_add_u32 s54, s54, {WS_GU + 32768}")
        t.e("s_add_u32 s55, s54, 4096")
        t.e("s_lshl_b32 s26, s22, 15")
        t.e("s_add_u32 s50, s52, s26")
        t.e("s_add_u32 s51, s53, s26")
        t.e("s_lshl_b32 s26, s22, 14")
        t.e("s_add_u32 s52, s52, s26")
        t.e("s_add_u32 s53, s53, s26")
        t.e("s_add_u32 s26, s25, 3")
        t.e("s_and_b32 s26, s26, 3")
        t.e("s_lshl_b32 s48, s26, 15")
        t.e("s_add_u32 s26, s25, 1")
        t.e("s_and_b32 s26, s26, 3")
        t.e("s_lshl_b32 s49, s26, 15")
        t.e("s_lshl_b32 s56, s31, 5")
        t.e("s_add_u32 s56, s56, s16")
        t.e("s_lshl_b32 s56, s56, 2")
        t.e(f"s_add_u32 s56, s56, {WS_FL}")
        t.e("s_xor_b32 s57, s56, 128")
        return [x.strip() for x in t.lines]
    a.e("s_mov_b32 s17, s25")
    a.e(f"s_mov_b32 s101, {f2u(-BIG)}")
    NEAR = ["s_cmp_eq_u32 s21, 0", "s_cselect_b32 s46, s14, 0", "s_mov_b64 s[44:45], s[12:13]"]
    def guard(r):
        return [f"v_add_f32 v{r}, v{r}, v{r+1}", f"v_cmp_nle_f32 vcc, s101, v{r}", "s_cmp_eq_u32 s101, 0", "s_cselect_b64 s[28:29], 0, vcc",
                "s_cmp_lg_u64 s[28:29], 0", f"s_cbranch_scc1 {L('redo')}"]

    def dma_group():
        return "s_and_b32 m0, s18, 0x1ffff", [f"buffer_load_dwordx4 v3, s[8:11], s18 offen offset:{1024*j} {opt.get('kvmod', 'sc1')} lds" for j in range(4)]
    def dma_tile():
        for g in range(4):
            pre, ld = dma_group()
            a.e(pre); a.e("s_nop 0")
            for x in ld: a.e(x)
            a.e(f"s_add_u32 s18, s18, {4096 if g < 3 else 32768 - 3*4096}")
    def place_dma(fill, gaps):
        k = 0
        for g in range(4):
            pre, ld = dma_group()
            fill.setdefault(gaps[k] - 1, []).append(pre)
            for j in range(4):
                fill.setdefault(gaps[k], []).append(ld[j]); k += 1
            fill.setdefault(gaps[k - 1] + 1, []).append(f"s_add_u32 s18, s18, {4096 if g < 3 else 32768 - 3*4096}")
    auxl = cnt_load(4, "v11")
    auxc = ["v_cmp_le_u32 vcc, v7, v14"] + CNT_OK[1:]

    KB = [32, 96]; S = 160; NEGM = 176; E = 192; PK = 200; LS = 204
    VK = 8; VPW = 9; TMP = 10
    MX0 = 208
    def qk_setup():
        a.e("v_and_b32 v4, 15, v2")
        a.e("v_lshrrev_b32 v5, 4, v2")
        a.e("v_and_b32 v6, 0x27, v2")
        a.e("v_and_b32 v7, 8, v2")
        a.e("v_lshl_add_u32 v6, v7, 1, v6")
        a.e("v_and_b32 v7, 16, v2")
        a.e("v_lshrrev_b32 v7, 1, v7")
        a.e("v_add_lshl_u32 v6, v6, v7, 4")
        a.e("s_lshl_b32 s29, s16, 14")
        a.e(f"v_add_u32 v{VK}, s29, v6")
        a.e("s_lshl_b32 s29, s16, 11")
        a.e(f"s_add_u32 s29, s29, {LDS_P}")
        a.e(f"v_lshl_add_u32 v{VPW}, v2, 3, s29")
        for i in range(4):
            a.e(f"v_mov_b32 v{LS+i}, 0")
        for i in range(4):
            a.e(f"v_mov_b32 v{MX0+i}, 0xff800000")
    qk_setup()
    def kread(par, s, imm):
        r = KB[par] + 4 * s
        return f"ds_read_b128 v[{r}:{r+3}], v{VK} offset:{imm + 1024*s}"
    def chain(par, qb, c0):
        out = []
        for n in range(16):
            s = 15 - n if (qb % 2 and c0 != "0" and opt.get("zz", 1)) else n
            k = KB[par] + 4 * s; q = 64 * qb + 4 * s; d = S + 4 * qb
            c = c0 if n == 0 else f"v[{d}:{d+3}]"
            out.append(f"{M16} v[{d}:{d+3}], v[{k}:{k+3}], a[{q}:{q+3}], {c}")
        return out
    q = Seq(a)
    mf = [m for qb in range(4) for m in chain(0, qb, "0")]
    ST = 212
    tc = tail_consts() + [
        "s_mul_i32 s28, s16, 34", "s_lshl_b32 s29, s23, 6", "s_add_u32 s28, s28, s29", "s_sub_u32 s28, s28, 2",
        f"v_add_u32 v{ST+16}, s28, v2",
        f"v_max_i32 v{ST+17}, 0, v{ST+16}", f"v_min_i32 v{ST+17}, {T-1}, v{ST+17}", f"v_lshrrev_b32 v{ST+18}, 6, v{ST+17}", f"v_and_b32 v{ST+17}, 63, v{ST+17}",
        f"v_lshlrev_b32 v{ST+17}, 3, v{ST+17}", f"v_lshl_add_u32 v{ST+17}, v{ST+18}, 12, v{ST+17}",
        "s_lshr_b32 s6, s31, 7", "s_lshl_b32 s6, s6, 18", f"s_add_u32 s6, s6, {WS_ST}",
        "s_lshl_b32 s28, s16, 1", "s_add_u32 s28, s28, s23", "s_sub_u32 s28, s28, 1", "s_max_i32 s28, s28, 0", "s_min_i32 s28, s28, 62",
        "s_sub_u32 s28, s28, s23", "s_lshl_b32 s28, s28, 1", "s_add_u32 s28, s28, s31", "s_lshl_b32 s28, s28, 16",
        "s_xor_b32 s29, s16, 1", f"s_mul_i32 s29, s29, {62*512}", "s_add_u32 s28, s28, s29", f"s_add_u32 s7, s28, {WS_GU}",
        "s_lshl_b32 s29, s16, 10", f"s_add_u32 s42, s29, {LDS_HALO}",
        "s_xor_b32 s28, s31, 1", "s_lshl_b32 s28, s28, 1", "s_add_u32 s28, s28, s16", "s_lshl_b32 s28, s28, 9", f"s_add_u32 s28, s28, {WS_MX}",
        f"v_lshl_add_u32 v{ST+18}, v2, 3, s28", f"v_writelane_b32 v{ST+18}, s57, 1",
        f"s_mul_i32 s28, s16, {34*8}", f"s_add_u32 s28, s28, {LDS_STT}", f"v_lshl_add_u32 v{ST+19}, v2, 3, s28"]
    t_ = Asm()
    t_.e("s_lshl_b32 s28, s16, 5")
    conv_addr(t_, 16, "s28")
    for x in ["s_lshl_b32 s28, s16, 9", "s_lshl_b32 s41, s31, 10", "s_add_u32 s41, s41, s28", f"s_add_u32 s41, s41, {WS_MX}",
              f"s_add_u32 s28, s28, {LDS_ML}", "v_lshlrev_b32 v244, 3, v2", "v_add_u32 v245, s28, v244", f"v_add_u32 v246, {LDS_ML + 4}, v244",
              "s_mov_b32 s43, 0xffff0000"]: t_.e(x)
    tc += [x.strip() for x in t_.lines]
    qf.wait("kv0", "qd")
    qf.all(vm=False)
    fy = Fine(a, opt.get("fy")); fy(9)
    a.e("s_barrier")
    fy(10)
    st(2); ff(10)
    if opt.get("qe"):
        for n in range(12): q.l(kread(0, n, 0), f"K{n}")
        for n in range(64):
            q.e(mf[n], need=(f"K{n}",))
            if n < 4: q.l(kread(0, 12 + n, 0), f"K{12+n}")
            elif tc: a.e(tc.pop(0))
    else:
        a.e(f"v_add_u32 v7, {LDS_XS}, v3")
        rd = []
        for n in range(64):
            qb, s = n // 16, n % 16
            rd.append((f"ds_read_b128 a[{64*qb+4*s}:{64*qb+4*s+3}], v7 offset:{16384*((s%8)//2) + 8192*(s//8) + 2048*qb + 1024*(s%2)}", f"Q{n}"))
            if qb == 0: rd.append((kread(0, s, 0), f"Q{n}"))
        for _ in range(14): q.l(*rd.pop(0))
        for n in range(64):
            if n % 2 == 0: q.wait(f"Q{n+1}")
            a.e(mf[n])
            if opt.get("q1") and n % 3 == 0 and n < 48:
                i = n // 3
                if i % 4 == 0:
                    a.e(f"s_add_u32 m0, s19, {32768 + 1024*i}")
                    a.e(f"s_add_u32 s18, s19, {32768 + 1024*i}")
                a.e(f"buffer_load_dwordx4 v3, s[8:11], s18 offen offset:{1024*(i%4)} sc1 lds")
            for _ in range(2 if n < 14 else 1):
                if rd: q.l(*rd.pop(0))
            for _ in range(0 if n < 14 else 2 if rd else 3):
                if tc: a.e(tc.pop(0))
        a.label(L("qk_again"))
        fy(11)
        a.e("s_barrier")
        fy(12)
    assert not tc
    n0_ = len(a.lines)
    a.e("s_nop 7")
    for qb in range(4):
        d = S + 4 * qb
        a.e(f"v_max3_f32 v{E+qb}, v{d}, v{d+1}, v{d+2}")
        a.e(f"v_max3_f32 v{E+qb}, v{E+qb}, v{d+3}, v{MX0+qb}")
    def group_reduce(r, t, op):
        for sw in ("v_permlane16_swap_b32", "v_permlane32_swap_b32"):
            for qb in range(4):
                a.e(f"v_mov_b32 v{t+qb}, v{r+qb}")
            a.e("s_nop 1")
            for qb in range(4):
                a.e(f"{sw} v{r+qb}, v{t+qb}")
            a.e("s_nop 1")
            for qb in range(4):
                a.e(f"{op} v{r+qb}, v{r+qb}, v{t+qb}")
    group_reduce(E, E + 4, "v_max_f32")
    a.e("s_lshl_b32 s29, s16, 8")
    a.e(f"s_add_u32 s29, s29, {LDS_MX}")
    a.e(f"v_lshl_add_u32 v{TMP}, v4, 4, s29")
    a.e(f"ds_write_b128 v{TMP}, v[{E}:{E+3}]")
    a.e(f"v_xor_b32 v{TMP}, 256, v{TMP}")
    if opt.get("q3", 1):
        mx = a.lines[n0_:]; del a.lines[n0_:]
        a.e("s_lshl_b32 s19, s16, 14")
        for n, x in enumerate(mx):
            if n % 2 == 0 and n < 32:
                i = n // 2
                if i % 4 == 0:
                    a.e(f"s_add_u32 m0, s19, {98304 + 1024*i}")
                    a.e(f"s_add_u32 s18, s19, {98304 + 1024*i}")
                a.e(f"buffer_load_dwordx4 v3, s[8:11], s18 offen offset:{1024*(i%4)} sc1 lds")
            a("    s_nop 2" if n == 0 else x)
    a.e(f"s_waitcnt vmcnt({16 if opt.get('q3', 1) else 0}) lgkmcnt(0)")
    fy(13)
    a.e("s_barrier")
    fy(14)
    a.e(f"ds_read_b128 v[{E+4}:{E+7}], v{TMP}")
    for s in range(8):
        a.e(kread(1, s, 32768))
    a.e("s_waitcnt lgkmcnt(8)")
    for qb in range(4):
        a.e(f"v_max_f32 v{E+qb}, v{E+qb}, v{E+4+qb}")
    for qb in range(4):
        for j in range(4):
            a.e(f"v_sub_f32 v{NEGM+4*qb+j}, 0, v{E+qb}")
    a.e(f"v_mov_b32 v242, v{NEGM}")
    a.e("s_waitcnt lgkmcnt(4)")
    for s in range(8, 16):
        a.e(kread(1, s, 32768))
        if s in (9, 11, 13):
            qb = (s - 7) // 2
            a.e(f"v_mov_b32_dpp v242, v{NEGM+4*qb} quad_perm:[0,1,2,3] row_mask:{1 << qb:#x} bank_mask:0xf")
    for qb in range(4):
        for j in range(4):
            a.e(f"v_add_f32 v{S+4*qb+j}, v{S+4*qb+j}, v{NEGM+4*qb}")
    def softmax_ops(qb, par):
        e = E + 4 * (qb % 2); p = PK + 2 * (qb % 2); d = S + 4 * qb
        ex = [f"v_exp_f32{opt.get('e64', '')} v{e+j}, v{d+j}" for j in range(4)]
        ad = [f"v_add_f32 v{LS+qb}, v{LS+qb}, v{e+j}" for j in range(4)]
        cv = [f"v_cvt_pk_bf16_f32 v{p+j}, v{e+2*j}, v{e+2*j+1}" for j in range(2)]
        wr = f"ds_write_b64 v{VPW}, v[{p}:{p+1}] offset:{par*4096 + qb*512}"
        return ex, ad, cv, wr
    ex, ad, cv, wr = softmax_ops(0, 0)
    for x in ex + ["s_nop 0"] + cv + ad + [wr]: a.e(x)
    a.e("s_waitcnt lgkmcnt(1)")
    fill = {}
    ops = []
    for qb in range(1, 4):
        ex, ad, cv, wr = softmax_ops(qb, 0)
        ops += ex + [ad[0]] + cv + ad[1:] + [wr]
    for i, x in enumerate(ops):
        fill.setdefault(i * 15 // len(ops), []).append(x)
    ROT = opt.get("rot", 0)
    emit_interval(a, chain(1, 0, f"v[{NEGM}:{NEGM+3}]") + chain(1, 1, f"v[{NEGM+4}:{NEGM+7}]")[:ROT], fill)
    a.e("s_waitcnt vmcnt(0) lgkmcnt(0)")
    a.e("s_sub_u32 s17, s17, 1")
    fy(15)
    a.e("s_barrier")

    XT = ["buffer_load_dword v0, v7, s[32:35], s40 offen", "s_add_u32 s40, s40, 1024"]
    def qk_interval(par, lo=0, hi=None):
        mf = []
        for c in range(5):
            qb = (c + 1) % 4
            mf += chain(par if c < 3 else par ^ 1, qb, f"v[{NEGM+4*qb}:{NEGM+4*qb+3}]")
        mf = mf[ROT:64 + ROT]
        fill = {}
        F_ = lambda g, x: fill.setdefault(g, []).append(x)
        rgaps = opt.get("kg_", [1, 2, 3, 12, 13, 14, 16, 17, 18, 28, 29, 30, 32, 33, 34, 35])
        if par == 1: F_(rgaps[0] - 1, f"v_xor_b32 v{VK}, 0x10000, v{VK}")
        imm = 32768 * (par ^ 1)
        for s in range(16):
            F_(rgaps[s], kread(par ^ 1, s, imm))
        sm = opt.get("sm", [4, 5, 6, 7, 8, 8, 9, 10, 10, 11, 11])
        for c in range(4):
            ex, ad, cv, wr = softmax_ops(c, par)
            for g, x in zip(sm, ex + cv + [wr] + ad): F_(16 * c + g - ROT, x)
        kw = 47 - ROT
        nwr = sum(1 for c in range(4) if rgaps[-1] <= 16 * c + sm[6] - ROT <= kw)
        F_(kw, f"s_waitcnt lgkmcnt({nwr})")
        F_(kw + 1, "s_sub_u32 s17, s17, 1")
        if par == 1:
            F_(kw - 3, "s_cmp_lt_u32 s17, s40")
            fill.setdefault(kw - 2, []).extend([f"s_cbranch_scc1 {L('touch')}", L("touch_ret") + ":"])
        if stamp == 7:
            F_(kw + 2, "s_mov_b32 m0, s17"); F_(kw + 3, "v_writelane_b32 v240, s60, m0"); F_(kw + 3, "s_memtime s[60:61]")
        if opt.get("kt"):
            F_(opt["kt"][1], "buffer_load_dword v0, v3, s[8:11], s41 offen sc1"); F_(46, "s_add_u32 s41, s41, 32768")
        XE = opt.get("xe", 0)
        F_(opt.get("xg", 57) - 1, "s_cmp_eq_u32 s17, 0")
        F_(opt.get("xg", 57), f"s_cbranch_scc1 {L('qk_exit')}")
        F_(opt.get("qw", 63), "s_waitcnt lgkmcnt(0)"); F_(63, "s_barrier")
        for c in range(4):
            last, first = 16 * c - 1 - ROT, 16 * c + sm[0] - ROT
            n = first - last + sum(len([x for x in fill.get(g % 64, []) if not x.endswith(":")]) for g in range(last, first))
            g = last + 2
            while n < 8:
                F_(g % 64, "s_nop 0"); n += 1; g += 1
                assert g <= first
        emit_interval(a, mf, fill, lo, hi)

    if stamp == 7:
        a.e("v_mov_b32 v240, 0")
        a.e("s_memtime s[60:61]")
    a.e("v_and_b32 v11, 3, v2")
    a.e("v_lshlrev_b32 v11, 6, v11")
    a.e("v_mov_b32 v7, 64")
    a.e("v_writelane_b32 v11, 8, 4")
    a.e("v_writelane_b32 v7, 4, 4")
    if opt.get("kt"):
        a.e("s_lshr_b32 s41, s2, 4")
        a.e("s_lshl_b32 s41, s41, 1")
        a.e("s_add_u32 s41, s41, s16")
        a.e("s_lshl_b32 s41, s41, 10")
        a.e(f"s_add_u32 s41, s41, {32768 * opt['kt'][0]}")
    a.e("s_lshr_b32 s40, s31, 1")
    a.e(f"s_and_b32 s40, s40, {opt.get('xs', 15)}")
    a.e("s_lshl_b32 s40, s40, 1")
    a.e(f"s_add_u32 s40, s40, {opt.get('xb', 12)}")
    st(3); ff(11)
    QB = opt.get("qbe", 0)
    if QB:
        a.e(f"s_branch {L('qk_in')}")
        a(".p2align 6")
        a.label(L("qk_loop"))
        XE = opt.get("xe", 0)
        qk_interval(0, QB)
        if not XE: a.e(f"s_cbranch_scc1 {L('qk_done')}")
        a.label(L("qk_in"))
        qk_interval(1)
        if not XE: a.e(f"s_cbranch_scc1 {L('qk_done')}")
        qk_interval(0, 0, QB)
        a.e(f"s_branch {L('qk_loop')}")
        a.label(L("qk_exit"))
    else:
        a(".p2align 6")
        a.label(L("qk_loop"))
        qk_interval(1)
        a.e(f"s_cbranch_scc1 {L('qk_done')}")
        qk_interval(0)
        a.e(f"s_cbranch_scc0 {L('qk_loop')}")
    a.label(L("qk_done"))
    def tl(srd, so):
        a.e("v_lshlrev_b32 v12, 7, v2")
        a.e(f"buffer_load_dword v0, v12, s[{srd}:{srd+3}], {so} offen")
    def b_code():
        a.e("s_getpc_b64 s[28:29]")
        a.label(L("pc0"))
        a.e(f"s_sub_u32 s28, s28, {L('pc0')} - {L('qk_done')}")
        a.e("s_subb_u32 s29, s29, 0")
        a.e("s_lshr_b32 s30, s2, 3")
        a.e("s_lshl_b32 s30, s30, 1")
        a.e("s_add_u32 s30, s30, s16")
        a.e("s_lshl_b32 s30, s30, 10")
        a.e("v_lshl_add_u32 v12, v2, 4, s30")
        a.e(f"v_min_u32 v12, {L('end')} - {L('qk_done')}, v12")
        a.e("global_load_dword v0, v12, s[28:29]")
    def b_w(part):
        def f():
            a.e("s_lshr_b32 s30, s2, 3")
            a.e("s_lshl_b32 s30, s30, 1")
            a.e("s_add_u32 s30, s30, s16")
            a.e("s_lshl_b32 s30, s30, 13")
            a.e(f"s_add_u32 s30, s30, {WS_W3 + 524288*part}")
            tl(12, "s30")
        return f
    foldl = "buffer_load_dword v13, off, s[92:95], 0 offset:12 sc1"
    def b_c3():
        a.e("s_waitcnt vmcnt(0)")
        poll(a, Seq(a), L, "qk_c3", [auxl], auxc, "aux", slp=16)
    def b_c4():
        a.e("s_waitcnt vmcnt(0)")
        poll(a, Seq(a), L, "qk_c4", [foldl], ["v_readfirstlane_b32 s28, v13", "s_cmp_ge_u32 s28, 4"], "aux", slp=16)
    def b_small():
        a.e("s_mov_b32 m0, s42")
        for c in range(8):
            a.e(f"buffer_load_dwordx2 v[{ST+2*c}:{ST+2*c+1}], v{ST+17}, s[12:15], s6 offen offset:{512*c} sc1")
        a.e("buffer_load_dwordx4 v3, s[12:15], s7 offen sc1 lds")
        a.e(f"buffer_load_dword v0, v{ST+18}, s[12:15], 0 offen sc1")
    def b_stat():
        a.e("s_waitcnt vmcnt(0)")
        for ct in range(1, 8):
            a.e(f"v_pk_add_f32 v[{ST}:{ST+1}], v[{ST}:{ST+1}], v[{ST+2*ct}:{ST+2*ct+1}]")
        a.e(f"v_mul_f32 v{ST}, {f2u(1/512)}, v{ST}")
        a.e(f"v_mul_f32 v{ST+1}, {f2u(1/512)}, v{ST+1}")
        a.e(f"v_fma_f32 v{ST+1}, -v{ST}, v{ST}, v{ST+1}")
        a.e(f"v_max_f32 v{ST+1}, 0, v{ST+1}")
        a.e(f"v_add_f32 v{ST+1}, {f2u(1e-5)}, v{ST+1}")
        a.e(f"v_rsq_f32 v{ST+1}, v{ST+1}")
        a.e(f"v_cmp_gt_u32 vcc, {T}, v{ST+16}")
        a.e(f"v_mul_f32 v{ST}, v{ST}, v{ST+1}")
        a.e(f"v_sub_f32 v{ST}, 0, v{ST}")
        a.e(f"v_cndmask_b32 v{ST+2}, 0, v{ST+1}, vcc")
        a.e(f"v_cndmask_b32 v{ST+3}, 0, v{ST}, vcc")
        a.e(f"ds_write_b64 v{ST+19}, v[{ST+2}:{ST+3}]")
    def b_x(r0):
        def f():
            a.e("s_lshl_b32 s30, s22, 1")
            a.e("s_add_u32 s30, s30, s16")
            a.e("s_lshl_b32 s30, s30, 14")
            a.e("s_add_u32 s30, s30, s27")
            a.e(f"s_add_u32 s30, s30, {r0*1024}")
            tl(32, "s30")
        return f
    tb_fns = B = dict(code=b_code, l3=lambda: a.e(auxl), c3=b_c3, small=b_small, stat=b_stat, x0=b_x(0), x8=b_x(8), l4=lambda: a.e(foldl), c4=b_c4, w1=b_w(1), w0=b_w(0))
    st(4); fs(0); ff(13); fp(0)
    if stamp == 7:
        a.e("s_lshl_b32 s26, s2, 1")
        a.e("s_add_u32 s26, s26, s16")
        a.e("s_lshl_b32 s26, s26, 8")
        a.e(f"s_add_u32 s26, s26, {0x3F00000}")
        a.e("v_lshlrev_b32 v241, 2, v2")
        a.e("buffer_store_dword v240, v241, s[12:15], s26 offen")
    q = Seq(a)
    cv = Conv(a, q, 16)
    a.e(f"v_permlane16_swap_b32 v{LS}, v{LS+1}")
    a.e(f"v_permlane16_swap_b32 v{LS+2}, v{LS+3}")
    cv.taps()
    a.e(f"v_add_f32 v{LS}, v{LS}, v{LS+1}")
    a.e(f"v_add_f32 v{LS+2}, v{LS+2}, v{LS+3}")
    tb_fns["stat"]()
    a.e(f"v_permlane32_swap_b32 v{LS}, v{LS+2}")
    a.e("s_nop 0")
    a.e(f"v_add_f32 v243, v{LS}, v{LS+2}")
    a.e("v_or_b32 v243, 0x80000000, v243")
    q.l("ds_write_b64 v245, v[242:243]")
    q.all(vm=False)
    fs(1)
    a.e("s_barrier")
    fs(2)
    q.l(f"ds_read2st64_b32 v[{E}:{E+1}], v246 offset0:0 offset1:2", "lsum")
    cv.prep()
    q.wait("lsum")
    for x in guard(E): a.e(x)
    release(a, q, L, "rm", None, "buffer_store_dwordx2 v[242:243], v244, s[12:15], s41 offen")
    fs(3)
    PF = opt.get("pf", 10); n = 0
    for j in range(20):
        if j in (0, 2, 4, 6, 8, 11, 14, 17): fp(1 + (0, 2, 4, 6, 8, 11, 14, 17).index(j))
        ex = []
        if j >= opt.get("qa", 6):
            for _ in range(3):
                if n < 4 * PF:
                    ex.append(lambda n=n: aload(a, q, n // 4, n % 4)); n += 1
        cv.row(j, ex)
    while n < 4 * PF:
        aload(a, q, n // 4, n % 4); n += 1
    fs(4)
    a.e(f"s_branch {L('tail')}")
    a.label(L("touch"))
    THR = 2 * int(opt.get("blocks", "2")[0]) + 2
    a.e(f"s_cmp_eq_u32 s40, {THR}")
    a.e(f"s_cbranch_scc1 {L('touchb')}")
    a.e(f"s_mov_b32 s40, {THR}")
    B["x0"](); B["x8"]()
    a.e(f"s_branch {L('touch_ret')}")
    a.label(L("touchb"))
    a.e("s_lshr_b32 s26, s17, 1")
    spec = opt.get("blocks", "2:l3 1:c3,small")
    blocks = {int(x.split(":")[0]): [B[y] for y in x.split(":")[1].split(",")] for x in spec.split()}
    for kx, fns in blocks.items():
        a.e(f"s_cmp_lg_u32 s26, {kx}")
        a.e(f"s_cbranch_scc1 {L('touch%d' % kx)}")
        for f in fns: f()
        a.e(f"s_branch {L('touch_ret')}")
        a.label(L("touch%d" % kx))
    a.e(f"s_branch {L('touch_ret')}")

    VB = [16, 80]; PR = [144, 160]
    VV = 8; VPR = 9; PH = opt.get('ph', 2)
    def oreg(db, qb):
        return (f"a[{4*qb}:{4*qb+3}]", None) if db == 0 else (f"v[{16*db+4*qb}:{16*db+4*qb+3}]", 16 * db + 4 * qb)
    def vread(par, db, kb):
        r = VB[par] + 4 * db + 2 * kb
        return f"ds_read_b64_tr_b16 a[{r}:{r+1}], v{VV if db < 8 else 11} offset:{32768*par + 16384*kb + 512*(db%8)}"
    def pvo(pair): return a2s(pair) if opt.get("o1", 1) else [(e, t) for e in range(2) for t in range(4)]
    def pvm(par, pair, first=False):
        out = []
        for e, qb in pvo(pair):
            db = 2 * pair + e
            d = oreg(db, qb)[0]; v = VB[par] + 4 * db; p = PR[par] + 4 * qb
            out.append(f"{M16} {d}, a[{v}:{v+3}], a[{p}:{p+3}], {'0' if first else d}")
        return out
    def pv_setup():
        a.e("s_sub_u32 s19, s16, 2")
        for x in tail_consts(): a.e(x)
        a.e("v_lshrrev_b32 v4, 5, v2")
        a.e("v_lshlrev_b32 v4, 8, v4")
        a.e("v_and_b32 v5, 2, v2")
        a.e("v_lshl_add_u32 v4, v5, 6, v4")
        a.e("v_and_b32 v5, 28, v2")
        a.e("v_lshl_add_u32 v4, v5, 2, v4")
        a.e("v_and_b32 v5, 1, v2")
        a.e("v_lshl_add_u32 v4, v5, 3, v4")
        a.e("s_lshl_b32 s29, s19, 13")
        a.e("s_lshl_b32 s28, s22, 12")
        a.e("s_add_u32 s28, s28, s29")
        a.e("v_add_u32 v11, s28, v4")
        a.e(f"v_xor_b32 v{VV}, 0x1000, v11")
        a.e("s_lshl_b32 s29, s19, 12")
        a.e("s_add_u32 s29, s29, s48")
        a.e("v_add_u32 v10, s29, v3")
        a.e("s_lshl_b32 s40, s31, 2")
        a.e("s_add_u32 s40, s40, s19")
        a.e("s_lshl_b32 s40, s40, 14")
        a.e(f"s_add_u32 s40, s40, {WS_GU + 32768}")
        a.e("s_lshl_b32 s28, s31, 16")
        a.e(f"s_add_u32 s28, s28, {WS_GU}")
        a.e("s_sub_u32 s28, s28, s10")
        a.e("s_add_u32 s98, s4, s28")
        a.e("s_addc_u32 s99, s5, 0")
        a.e("s_and_b32 s99, s99, 0xffff")
        a.e("s_add_u32 s100, s10, 65536")
        if opt.get("xr", 1) == 2:
            a.e("s_lshr_b32 s28, s2, 3")
            a.e("s_lshl_b32 s28, s28, 15")
            a.e(f"s_add_u32 s28, s28, {WS_W3}")
            a.e("s_sub_u32 s28, s28, s100")
            a.e("s_add_u32 s96, s4, s28")
            a.e("s_addc_u32 s97, s5, 0")
            a.e("s_and_b32 s97, s97, 0xffff")
            a.e("s_add_u32 s3, s100, 32768")
        else:
            a.e("s_lshl_b32 s28, s22, 15")
            a.e("s_add_u32 s28, s28, s27")
            a.e("s_sub_u32 s3, 4096000, s28")
            a.e("s_add_u32 s3, s3, s100")
            a.e("s_add_u32 s96, s32, s28")
            a.e("s_addc_u32 s97, s33, 0")
            a.e("s_sub_u32 s96, s96, s100")
            a.e("s_subb_u32 s97, s97, 0")
        a.e(f"s_mov_b32 s29, {LDS_P}")
        a.e(f"v_lshl_add_u32 v{VPR}, v2, 3, s29")
        a.e(f"v_add_u32 v1, {LDS_ML + 4 - LDS_P}, v{VPR}")
        for g in range(1, 4): a.e(f"v_add_u32 v{4+g}, {4096*g}, v3")
    def pv_zero():
        pass
    def emit_pv_again():
        a.label(L("pv"))
        pv_setup()
        a.e("s_lshl_b32 s18, s19, 14")
        a.e("s_add_u32 s18, s18, 65536")
        dma_tile()
        pv_zero()
        a.e("s_barrier")
        a.e("s_waitcnt vmcnt(16)")
        a.e("s_barrier")
        if not opt.get("q3", 1): dma_tile()
        for db in range(16):
            for kb in range(2):
                a.e(vread(0, db, kb))
            if db % 4 == 3: a.e("s_waitcnt lgkmcnt(4)")
        a.e("s_waitcnt vmcnt(0) lgkmcnt(0)")
        a.e(f"s_branch {L('pv_go')}")
    def taps():
        a.e("v_lshrrev_b32 v12, 5, v2")
        a.e("v_lshl_add_u32 v12, v12, 9, v3")
        a.e("s_lshl_b32 s28, s22, 9")
        out = []
        for i in range(3):
            a.e(f"s_mov_b32 m0, {LDS_TAP + 1024*i}")
            a.e(f"s_add_u32 s29, s28, {2048*i}")
            qf.v("buffer_load_dwordx4 v12, s[44:47], s29 offen lds")
        for x in NEAR: a.e(x)
    def setup1():
        pv_setup()
        a.e(f"s_mov_b32 s101, {f2u(-BIG)}")
    pv_part(setup1, [vread(0, db, kb) for db in range(16) for kb in range(2)], taps)
    a.label(L("pv_go"))
    a.e("s_lshl_b32 s18, s19, 14")
    a.e("s_add_u32 s18, s18, 131072")
    a.e("s_sub_u32 s17, s25, 1")
    a.e("s_barrier")

    pvq = []
    MR = 12; MO = 4; AL = 88; TT = 96; RX = 16
    mll = [f"buffer_load_dwordx2 v[{MR+2*w}:{MR+2*w+1}], v9, s[12:15], s42 offen offset:{512*w} {opt.get('pm', 'sc1')}" for w in range(2)]
    ol = f"buffer_load_dword v11, off, s[12:15], s57 offset:24 {opt.get('pm', 'sc1')}"
    def pv_interval(par, last=False, lo=0, hi=None, first=False):
        mf = pvm(par, 7)
        if first:
            z = [f"v_pk_mul_f32 v[{i}:{i+1}], 0, 0" for i in range(256 - 16 * PH, 256, 2)]
            mf = [z[2 * i] + "\n    " + z[2 * i + 1] for i in range(4 * PH)]
        for pr in range(8 if last else 7):
            mf += pvm(par ^ 1, pr, first)
        fill = {}
        for qb in range(4):
            p = PR[par ^ 1] + 4 * qb
            fill.setdefault(opt.get('pg', [0, 0, 1, 1])[qb], []).append(f"ds_read2st64_b64 a[{p}:{p+3}], v{VPR} offset0:{8*(par^1)+qb} offset1:{8*(par^1)+4+qb}")
        rg = opt.get("rg", [8 + 3 * (i // 2) + (i % 2) for i in range(32)])
        fill.setdefault(4 * PH - 1, []).append(f"s_waitcnt lgkmcnt({0 if last else sum(1 for g in rg if g < 4 * PH - 1)})")
        if last:
            fs(0); fp(0)
            q = Seq(a)
            ops = []
            for sp in range(4):
                for nq, qb in enumerate([t for e, t in pvo(sp) if e]):
                    o = []
                    if sp == 0:
                        o += [f"v_accvgpr_read_b32 v{4+j}, a{4*qb+j}" for j in range(4)]
                        lo = 4
                    else:
                        lo = oreg(2 * sp, qb)[1]
                    hi = oreg(2 * sp + 1, qb)[1]
                    o += [f"v_cvt_pk_bf16_f32 v{hi+3}, v{hi+2}, v{hi+3}", f"v_cvt_pk_bf16_f32 v{hi+2}, v{hi}, v{hi+1}",
                          f"v_cvt_pk_bf16_f32 v{hi}, v{lo}, v{lo+1}", f"v_cvt_pk_bf16_f32 v{hi+1}, v{lo+2}, v{lo+3}"]
                    if nq == 0: o.append(f"s_add_u32 s41, s40, {4096*sp}")
                    o.append(f"buffer_store_dwordx4 v[{hi}:{hi+3}], v3, s[44:47], s41 offen offset:{1024*qb} {opt.get('sm_', 'nt')}")
                    ops += [(8 + 8 * sp + pvo(sp).index((1, qb)) + 6, x) for x in o]
            late = [lambda x=x: a.e(x) for x in ["v_lshlrev_b32 v9, 3, v2", "s_xor_b32 s26, s31, 1", "s_lshl_b32 s26, s26, 10", f"s_add_u32 s42, s26, {WS_MX}"]]
            late += [lambda w=w: q.v(mll[w], "ML") for w in range(2)]
            late += [lambda: a.e("v_subrev_u32 v8, 4, v1"),
                     lambda: q.l(f"ds_read2st64_b64 v[{MO}:{MO+3}], v8 offset0:0 offset1:1", "MLo")]
            late += [lambda x=x: a.e(x) for x in ["v_and_b32 v1, 15, v2", "v_lshlrev_b32 v1, 2, v1", "s_xor_b32 s40, s40, 0x10000", "s_mov_b32 s43, 0xffff0000", "v_mov_b32 v0, 1"]]
            na = 0
            for i, m in enumerate(mf):
                a.e(m)
                for f in fill.get(i, []): a.e(f)
                if i == 2: q.l("ds_read2st64_b32 v[4:5], v1 offset0:0 offset1:2", "lsum")
                if i == 9:
                    fs(1); fs(2)
                    q.wait("lsum")
                    for x in guard(4): a.e(x)
                if i > 12:
                    n = 0
                    while ops and ops[0][0] <= i and n < 3:
                        x = ops.pop(0)[1]; n += 1
                        if x.startswith("buffer"): q.v(x, "Ost")
                        else: a.e(x)
                    if n and not ops: fp(1)
                    if n == 0:
                        if not ops and late: late.pop(0)()
                        else: a.e("s_nop 0")
            assert not ops
            while late: late.pop(0)()
            fs(3)
            pvq.append((q, na))
            return
        F_ = lambda g, x: fill.setdefault(g, []).append(x)
        G = opt["pvg"]
        if par == 0:
            F_(G[0], f"v_xor_b32 v{VV}, 0x10000, v{VV}"); F_(G[0], "v_xor_b32 v11, 0x10000, v11")
        for i in range(32): F_(rg[i], vread(par, i // 2, i % 2))
        dg = opt["dg"]
        for g in range(4):
            F_(opt["mg"][g], "s_and_b32 m0, s18, 0x1ffff" if g == 0 else "s_add_u32 m0, m0, 4096")
            for j in range(4):
                F_(dg[4 * g + j], f"buffer_load_dwordx4 v{3 if g == 0 else 4 + g}, s[8:11], s18 offen offset:{1024*j} sc1 lds")
        F_(opt["mg"][4], "s_add_u32 s18, s18, 32768")
        sw = ["s_cmp_eq_u32 s17, 3", "s_cselect_b64 s[8:9], s[98:99], s[8:9]", "s_cselect_b32 s10, s100, s10",
              "s_cmp_eq_u32 s17, 1", "s_cselect_b64 s[8:9], s[96:97], s[8:9]", "s_cselect_b32 s10, s3, s10"]
        for n in (0, 3):
            gs = G[2 + n:5 + n]
            assert (gs[2] < min(dg[0], G[1])) or (gs[0] > max(dg[-1], G[1]))
            assert not any(gs[0] < m <= gs[2] for m in opt["mg"] + [G[1]])
            for g, x in zip(gs, sw[n:n + 3]): F_(g, x)
        F_(G[1], "s_sub_u32 s17, s17, 1")
        F_(61, "s_cmp_eq_u32 s17, 0")
        if not first: F_(62, f"s_cbranch_scc1 {L('pv_exit%d' % par)}")
        fill.setdefault(63, []).extend([f"s_waitcnt vmcnt({nP}) lgkmcnt(0)", "s_barrier"])
        emit_interval(a, mf, fill, lo, hi)

    st(3); ff(11)
    PB = opt.get("pbe", 0)
    if PB:
        pv_interval(1, first=True)
        a.e(f"s_branch {L('pv_in')}")
        a(".p2align 6")
        a.label(L("pv_loop"))
        pv_interval(0, False, PB)
        if not opt.get("xe"): a.e(f"s_cbranch_scc1 {L('pv_last1')}")
        pv_interval(1)
        if not opt.get("xe"): a.e(f"s_cbranch_scc1 {L('pv_last0')}")
        a.label(L("pv_in"))
        pv_interval(0, False, 0, PB)
        a.e(f"s_branch {L('pv_loop')}")
    else:
        a(".p2align 6")
        a.label(L("pv_loop"))
        pv_interval(1)
        a.e(f"s_cbranch_scc1 {L('pv_last0')}")
        pv_interval(0)
        a.e(f"s_cbranch_scc0 {L('pv_loop')}")
    if opt.get("xe"):
        a.label(L("pv_exit0"))
        pv_interval(0, False, 63)
    a.label(L("pv_last1"))
    pv_interval(1, True)
    a.e(f"s_branch {L('pv_stage')}")
    if opt.get("xe"):
        a.label(L("pv_exit1"))
        pv_interval(1, False, 63)
    a.label(L("pv_last0"))
    pv_interval(0, True)
    a.label(L("pv_stage"))
    st(4); ff(13)
    q, n = pvq[0]
    assert pvq[1][0].vm == q.vm and pvq[1][0].lg == q.lg
    fp(2)
    release(a, q, L, "ro", "Ost", "buffer_store_dword v0, off, s[12:15], s56 offset:24",
            [x for sp in range(4) for x in [f"s_xor_b32 s41, s40, {0x10000 + 4096*sp}"] +
             [f"buffer_store_dwordx4 {oreg(2*sp+1, qb)[0]}, v3, s[12:15], s41 offen offset:{1024*qb} sc1" for qb in range(4)]])
    fp(3)
    poll(a, q, L, "ml", mll, [f"v_and_b32 v8, v{MR+1}, v{MR+3}", "v_cmp_gt_i32 vcc, 0, v8", "s_nop 1", "s_cmp_eq_u64 vcc, -1"], "ML", slp=1)
    q.wait("MLo")
    for x in [f"v_add_f32 v{MR+1}, v{MR+1}, v{MR+3}", f"v_add_f32 v{MO+1}, v{MO+1}, v{MO+3}",
              f"v_min_f32 v8, v{MR}, v{MO}", f"v_sub_f32 v{MR}, v8, v{MR}", f"v_sub_f32 v{MO}, v8, v{MO}",
              f"v_exp_f32 v{MR}, v{MR}", f"v_exp_f32 v{MO}, v{MO}", f"v_mul_f32 v{MR+1}, v{MR+1}, v{MR}",
              f"v_fmac_f32 v{MR+1}, v{MO+1}, v{MO}", f"v_mul_f32 v{MR+1}, {f2u(XSC)}, v{MR+1}", f"v_rcp_f32 v{MR+1}, v{MR+1}", "s_nop 0",
              f"v_mul_f32 v{MO}, v{MO}, -v{MR+1}", f"v_mul_f32 v{MR}, v{MR}, -v{MR+1}"]: a.e(x)
    for tb in range(4):
        q.l(f"ds_bpermute_b32 v{AL+2*tb}, v1, v{MO} offset:{64*tb}", "AL")
        q.l(f"ds_bpermute_b32 v{AL+2*tb+1}, v1, v{MR} offset:{64*tb}", "AL")
    q.wait("AL")
    for db in range(8, 16):
        for qb in range(4):
            r = oreg(db, qb)[1]
            for j in (0, 2):
                a.e(f"v_pk_mul_f32 v[{r+j}:{r+j+1}], v[{r+j}:{r+j+1}], v[{AL+2*qb}:{AL+2*qb+1}] op_sel_hi:[1,0]")
        if db == opt.get("od", 12): q.v(ol, "of")
        for _ in range(opt.get("an", 2)):
            if n < 4 * PF and db < opt.get("od", 12):
                aload(a, q, n // 4, n % 4); n += 1
    while n < opt.get("pa", 0):
        aload(a, q, n // 4, n % 4); n += 1
    poll(a, q, L, "o", [ol], ["v_readfirstlane_b32 s26, v11", "s_cmp_eq_u32 s26, 1"], "of", slp=1)
    fp(4)
    for f in range(16):
        if f % 4 == 0: a.e(f"s_add_u32 s41, s40, {1024*f}")
        q.v(f"buffer_load_dwordx4 v[{RX+4*f}:{RX+4*f+3}], v3, s[12:15], s41 offen offset:{1024*(f%4)} {opt.get('lm', 'sc1')}", f"O{f}")
    fp(5)
    fp(6)
    for f in range(16):
        sp, qb = f // 4, f % 4
        q.wait(f"O{f}")
        if f in (0, 8): fp(7 + f // 8)
        for j in range(4):
            a.e(f"v_lshlrev_b32 v{TT+2*j}, 16, v{RX+4*f+j}")
            a.e(f"v_and_b32 v{TT+2*j+1}, s43, v{RX+4*f+j}")
        for j in range(4):
            r = oreg(8 + 2 * sp + j // 2, qb)[1] + 2 * (j % 2)
            a.e(f"v_pk_fma_f32 v[{TT+2*j}:{TT+2*j+1}], v[{TT+2*j}:{TT+2*j+1}], v[{AL+2*qb}:{AL+2*qb+1}], v[{r}:{r+1}] op_sel:[0,1,0] op_sel_hi:[1,1,1]")
        for j in range(4):
            a.e(f"v_cvt_pk_bf16_f32 v{RX+4*f+j}, v{TT+2*j}, v{TT+2*j+1}")
        q.l(f"ds_write_b128 v10, v[{RX+4*f}:{RX+4*f+3}] offset:{8192*qb + 1024*sp}")
        for _ in range(2):
            if n < 4 * PF:
                aload(a, q, n // 4, n % 4); n += 1
    while n < 4 * PF:
        aload(a, q, n // 4, n % 4); n += 1
    fs(4)
    a.label(L("tail"))
    ff(14); fp(9)
    gen_tail(a, L, st, fs, opt)
    a.label(L("fin"))
    if stamp == 1:
        a.e("s_waitcnt vmcnt(0)")
        st(7)
        emit_stamps(a, 8, nw=8, off=WS_STAMP + 0x200000)
    if stamp == 5:
        a.e("s_waitcnt vmcnt(0)")
        st(7)
        a.e("s_cmp_lg_u32 s16, 0")
        a.e(f"s_cbranch_scc1 {L('end')}")
        a.e("s_mov_b64 exec, 1")
        a.e("s_cmp_lg_u32 s2, 0")
        a.e(f"s_cbranch_scc1 {L('dbg2')}")
        for k in range(1, 8):
            a.e(f"s_sub_u32 s26, s{62+4*k}, s62")
            a.e("v_mov_b32 v8, s26")
            a.e(f"buffer_store_dword v8, off, s[92:95], 0 offset:{8+4*k}")
        a.e("s_sub_u32 s26, s76, s72")
        a.e("v_mov_b32 v8, s26")
        a.e("buffer_store_dword v8, off, s[92:95], 0 offset:40")
        a.label(L("dbg2"))
        a.e("s_cmp_lg_u32 s2, 255")
        a.e(f"s_cbranch_scc1 {L('end')}")
        for k in range(1, 6):
            a.e(f"s_sub_u32 s26, s{62+4*k}, s62")
            a.e("v_mov_b32 v8, s26")
            a.e(f"buffer_store_dword v8, off, s[92:95], 0 offset:{40+4*k}")
    if stamp in (2, 3, 4, 6):
        for k in range(10, 16): fp(k)
        a.e("s_waitcnt vmcnt(0)")
        fs(15)
        ff(15)
        emit_fine(a, off=WS_STAMP + 0x300000)
    a.label(L("end"))
    a.e("s_endpgm")
    a.label(L("redo"))
    a.e("s_waitcnt vmcnt(0) lgkmcnt(0)")
    a.e("s_mov_b32 s101, 0")
    a.e(f"s_mul_i32 s28, s22, {32768 * N0}")
    a.e("s_add_u32 s28, s28, s24")
    a.e("s_lshl_b32 s26, s25, 15")
    srd_off(a, 8, 4, "s28", "s26")
    a.e("s_lshl_b32 s19, s16, 13")
    qk_setup()
    a.e("s_mov_b32 s17, s25")
    def redo_dma(slot):
        for i in range(8):
            if i % 4 == 0:
                a.e(f"s_add_u32 m0, s19, {32768*slot + 1024*i}")
                a.e(f"s_add_u32 s29, s18, {1024*i}")
            a.e(f"buffer_load_dwordx4 v3, s[8:11], s29 offen offset:{1024*(i%4)} sc1 lds")
    a.label(L("redo_loop"))
    a.e("s_sub_u32 s17, s17, 1")
    a.e("s_lshl_b32 s18, s17, 15")
    a.e("s_add_u32 s18, s18, s19")
    a.e("s_barrier")
    redo_dma(0)
    a.e("s_waitcnt vmcnt(0)")
    a.e("s_barrier")
    a.e("s_cmp_ge_u32 s16, 2")
    a.e(f"s_cbranch_scc1 {L('redo_next')}")
    for n in range(16):
        a.e(kread(0, n, 0))
        if n == 11: a.e("s_waitcnt lgkmcnt(4)")
    a.e("s_waitcnt lgkmcnt(0)")
    for qb in range(4):
        for m in chain(0, qb, "0"): a.e(m)
    a.e("s_nop 7")
    for qb in range(4):
        d = S + 4 * qb
        a.e(f"v_max3_f32 v{MX0+qb}, v{MX0+qb}, v{d}, v{d+1}")
        a.e(f"v_max3_f32 v{MX0+qb}, v{MX0+qb}, v{d+2}, v{d+3}")
    a.label(L("redo_next"))
    a.e("s_cmp_lg_u32 s17, 0")
    a.e(f"s_cbranch_scc1 {L('redo_loop')}")
    a.e("s_add_u32 s18, s19, 32768")
    redo_dma(1)
    a.e("s_mov_b32 s17, s25")
    a.e("s_cmp_ge_u32 s16, 2")
    a.e(f"s_cbranch_scc1 {L('pv')}")
    a.e(f"s_branch {L('qk_again')}")
    emit_pv_again()
    for f in OOL: f()
    emit_aux()
    kernel_desc(a, name, 512, 256)
    return f"; @launch grid=(256,1,1) block=(256,1,1) lds={LDS_ATT}"
```

```python
import sys, math
sys.path.insert(0, "gen")
from asmlib import *
from layout import *

RS = 1056
LDS_XS = 98304
LDS_MS = 163840 - 64 * RS
LDS_SC = 81920
LDS_CNT = LDS_SC + 6912
LDS_SC2 = 147456
GC1 = 2 * math.sqrt(2 / math.pi) * math.log2(math.e)
XSC = (GC1 * 0.044715) ** (1.0 / 3)
LDS_MX2 = LDS_SC + 4608
RING = 5
SS = 144
SPIN = 40000

def poll(a, q, L, name, load, cond, tag, slp=2):
    q.wait(tag)
    lab, done = L(name + "_spin"), L(name + "_ok")
    for x in cond: a.e(x)
    a.e(f"s_cbranch_scc0 {L(name + '_retry')}")
    a.label(done)
    def retry():
        a.label(L(name + "_retry"))
        a.e(f"s_mov_b32 s30, {SPIN}")
        a.label(lab)
        a.e(f"s_sleep {slp}")
        for x in load: a.e(x)
        a.e("s_waitcnt vmcnt(0)")
        for x in cond: a.e(x)
        a.e(f"s_cbranch_scc1 {done}")
        a.e("s_sub_u32 s30, s30, 1")
        a.e(f"s_cbranch_scc0 {lab}")
        a.e(f"s_branch {done}")
    OOL.append(retry)

OOL = []

def release(a, q, L, name, tag, store, again=()):
    if tag: q.wait(tag)
    a.e("s_cmp_lg_u32 s21, 0")
    a.e(f"s_cbranch_scc1 {L(name + '_far')}")
    q.v(store)
    a.label(L(name + "_back"))
    def far():
        a.label(L(name + "_far"))
        if again:
            for x in again: a.e(x)
            a.e("s_waitcnt vmcnt(0)")
        a.e(store + " sc1")
        a.e(f"s_branch {L(name + '_back')}")
    OOL.append(far)

def signal(a, L, name, wave, off, shard=True):
    a.e(f"s_cmp_lg_u32 s16, {wave}")
    a.e(f"s_cbranch_scc1 {L(name)}")
    a.e("v_mov_b32 v14, 1")
    a.e(f"s_and_b32 s26, s2, {3 if shard else 0}")
    a.e("s_lshl_b32 s26, s26, 6")
    a.e("s_mov_b64 exec, 1")
    a.e(f"buffer_atomic_add v14, off, s[92:95], s26 offset:{off}")
    a.e("s_mov_b64 exec, -1")
    a.label(L(name))

def cnt_load(off, va="v13"):
    return f"buffer_load_dword v14, {va}, s[92:95], 0 offen offset:{off} sc1"
CNT_OK = ["v_cmp_le_u32 vcc, 64, v14", "s_nop 1", "s_cmp_eq_u64 vcc, -1"]

def m_issue(a, q):
    a.e("s_and_b32 s17, s2, 6")
    a.e("s_lshl_b32 s17, s17, 5")
    a.e("s_and_b32 s18, s2, 24")
    a.e("s_lshl_b32 s18, s18, 1")
    a.e("s_add_u32 s17, s17, s18")
    a.e("s_and_b32 s18, s2, 1")
    a.e("s_lshl_b32 s18, s18, 3")
    a.e("s_add_u32 s17, s17, s18")
    a.e("s_lshr_b32 s18, s2, 5")
    a.e("s_add_u32 s100, s17, s18")
    a.e("s_lshr_b32 s17, s100, 4")
    a.e("s_lshl_b32 s17, s17, 15")
    a.e("s_and_b32 s18, s100, 15")
    a.e("s_lshl_b32 s18, s18, 15")
    a.e("s_lshl_b32 s19, s16, 13")
    a.e("s_add_u32 s17, s17, s19")
    a.e("s_add_u32 s18, s18, s19")
    a.e(f"s_mul_i32 s19, s16, {4*RS}")
    out = []
    for m, (srd, so) in enumerate(((40, "s17"), (8, "s18"))):
        for ee in range(2):
            for j in range(4):
                def f(m=m, srd=srd, so=so, ee=ee, j=j):
                    a.e(f"s_add_u32 m0, s19, {LDS_MS + (32*m + 16*ee + j)*RS - 1024*j}")
                    a.e(f"s_add_u32 {so}, {so}, 4096" if (ee == 1 and j == 0) else "s_nop 0")
                    q.v(f"buffer_load_dwordx4 v3, s[{srd}:{srd+3}], {so} offen offset:{1024*j} lds", "Mst")
                out.append(f)
    return out

def m_addr(a):
    a.e("v_and_b32 v4, 15, v2")
    a.e("v_lshrrev_b32 v5, 4, v2")
    a.e(f"v_mul_u32_u24 v6, {RS}, v4")
    a.e("v_lshl_add_u32 v6, v5, 4, v6")
    a.e(f"v_add_u32 v6, {LDS_MS}, v6")
    a.e("s_and_b32 s26, s16, 1")
    a.e("s_lshr_b32 s28, s16, 1")
    a.e(f"s_mul_i32 s29, s26, {16*RS}")
    a.e("v_add_u32 v7, s29, v6")
    a.e(f"s_mul_i32 s29, s28, {16*RS}")
    a.e("v_add_u32 v6, s29, v6")
    a.e("s_bfe_u32 s29, s100, 0x30001")
    a.e("s_lshl_b32 s29, s29, 16")
    a.e("s_lshr_b32 s30, s100, 4")
    a.e("s_lshl_b32 s30, s30, 12")
    a.e("s_add_u32 s29, s29, s30")
    a.e("s_and_b32 s30, s100, 1")
    a.e("s_lshl_b32 s30, s30, 1")
    a.e("s_add_u32 s30, s30, s28")
    a.e("s_lshl_b32 s30, s30, 10")
    a.e("s_add_u32 s29, s29, s30")
    a.e("s_lshl_b32 s30, s26, 9")
    a.e("s_add_u32 s29, s29, s30")
    a.e(f"s_add_u32 s30, s29, {WS_MI}")
    a.e("s_lshl_b32 s29, s28, 10")
    a.e("s_lshl_b32 s26, s26, 3")
    a.e("s_add_u32 s29, s29, s26")
    a.e(f"s_add_u32 s29, s29, {LDS_MX2}")
    a.e("v_add_u32 v112, s29, v3")
    a.e("s_lshl_b32 s29, s16, 9")
    a.e(f"s_add_u32 s29, s29, {LDS_MX2}")
    a.e("v_and_b32 v114, 0x1ff, v3")
    a.e("v_add_u32 v113, s29, v114")

def m_tile(a, q, fz=lambda k: None, fill=None):
    q.wait("Mst")
    fz(1)
    a.e("s_barrier")
    fz(2)
    def rd(t):
        q.l(f"ds_read_b128 a[{8*t}:{8*t+3}], v7 offset:{64*t}", f"m{t}")
        q.l(f"ds_read_b128 a[{8*t+4}:{8*t+7}], v6 offset:{32*RS + 64*t}", f"m{t}")
    for t in range(7): rd(t)
    if fill: fill.pop(0)()
    for t in range(16):
        q.e(f"{M16} v[8:11], a[{8*t}:{8*t+3}], a[{8*t+4}:{8*t+7}], {'0' if t == 0 else 'v[8:11]'}", need=(f"m{t}",))
        if t + 7 < 16: rd(t + 7)
    fz(3)
    if fill: fill.pop(0)()
    else: a.e("s_nop 7")
    sc = f2u(512 ** -0.5 * math.log2(math.e) / XSC ** 2)
    for i in range(4): a.e(f"v_mul_f32 v{8+i}, {sc}, v{8+i}")
    a.e("v_cvt_pk_bf16_f32 v8, v8, v9")
    a.e("v_cvt_pk_bf16_f32 v9, v10, v11")
    q.l("ds_write_b64 v112, v[8:9]", "mw")
    while fill: fill.pop(0)()
    q.wait("mw")
    a.e("s_barrier")
    q.l("ds_read_b128 v[8:11], v113", "mr")
    def fin():
        q.v("buffer_store_dwordx4 v[8:11], v114, s[12:15], s30 offen sc1", "St", need=("mr",))
    return fin

def touches(a, q, L, opt):
    a.e("v_lshlrev_b32 v7, 7, v2")
    a.e("s_lshr_b32 s26, s2, 3")
    a.e("s_lshl_b32 s26, s26, 2")
    a.e("s_add_u32 s26, s26, s16")
    a.e("s_getpc_b64 s[28:29]")
    a.label(L("pc1"))
    a.e("s_mul_i32 s30, s26, 640")
    a.e("v_and_b32 v12, 7, v2")
    a.e("v_min_u32 v12, 4, v12")
    a.e("v_lshl_add_u32 v12, v12, 7, s30")
    a.e(f"v_min_u32 v12, {L('end')} - {L('pc1')}, v12")
    q.v("global_load_dword v0, v12, s[28:29]")
    if opt.get("tg"):
        a.e("s_lshl_b32 s26, s2, 12")
        a.e("s_lshr_b32 s28, s16, 1")
        a.e("s_lshl_b32 s28, s28, 11")
        a.e("s_add_u32 s26, s26, s28")
        a.e("s_and_b32 s28, s16, 1")
        a.e("s_lshl_b32 s28, s28, 9")
        a.e("s_add_u32 s26, s26, s28")
        a.e("v_lshlrev_b32 v14, 3, v2")
        q.v("buffer_load_dword v0, v14, s[96:99], s26 offen offset:1024")
    if opt.get("tw"):
        a.e("s_lshl_b32 s26, s26, 13")
        q.v("buffer_load_dword v0, v7, s[96:99], s26 offen")

def touch_aux(a, q, mode=1):
    if mode == 2:
        a.e("s_lshl_b32 s28, s2, 2")
        a.e("s_add_u32 s28, s28, s16")
        a.e("s_lshl_b32 s28, s28, 10")
        a.e("v_add_u32 v14, s28, v3")
        q.v("global_load_dword v0, v14, s[58:59]")
        return
    for w in range(1, 4):
        a.e(f"s_cmp_eq_u32 s16, {w}")
        a.e(f"s_cselect_b32 s52, s{52+2*w}, s52")
        a.e(f"s_cselect_b32 s53, s{53+2*w}, s53")
    a.e("s_lshl_b32 s28, s2, 6")
    a.e("v_add_lshl_u32 v14, s28, v2, 5")
    a.e("v_lshlrev_b32 v13, 1, v14")
    a.e("s_cmp_eq_u32 s16, 3")
    a.e("s_cselect_b64 vcc, -1, 0")
    a.e("v_cndmask_b32 v14, v14, v13, vcc")
    q.v("global_load_dword v0, v14, s[52:53]")

def gen_front(a, q, L, st, fs, mi, clear, opt):
    X = 16; F = 128
    if opt.get("skip"):
        v0 = q.v
        def v1(text, tag="_", need=()):
            if text.startswith("buffer_store_dwordx4") and tag[0] in opt["skip"]: return
            v0(text, tag, need)
        q.v = v1
    a.e("v_lshrrev_b32 v12, 3, v2")
    a.e("v_and_b32 v13, 7, v2")
    a.e("v_and_b32 v14, 2, v12")
    a.e("v_xor_b32 v14, v13, v14")
    a.e("v_lshlrev_b32 v14, 4, v14")
    WV = 80
    a.e(f"v_lshl_add_u32 v{WV}, v12, 11, v14")
    a.e(f"v_xor_b32 v{WV+1}, 64, v{WV}")
    a.e(f"v_add_u32 v{WV+1}, {16384-1024}, v{WV+1}")
    a.e(f"v_add_u32 v{WV+2}, {2*(16384-1024)}, v{WV}")
    a.e(f"v_add_u32 v{WV+3}, {2*(16384-1024)}, v{WV+1}")
    a.e("s_lshl_b32 s26, s22, 2")
    a.e("s_add_u32 s26, s26, s16")
    a.e("s_lshl_b32 s28, s22, 1")
    a.e("s_add_u32 s28, s28, s16")
    a.e(f"s_lshl_b32 s29, s23, {opt.get('rt', 0)}")
    a.e("s_add_u32 s28, s28, s29")
    a.e("s_and_b32 s28, s28, 3")
    a.e("s_lshl_b32 s3, s26, 7")
    a.e("s_lshl_b32 s29, s28, 18")
    a.e("s_add_u32 s3, s3, s29")
    a.e(f"s_mul_i32 s6, s16, {RING*4096}")
    a.e("v_and_b32 v4, 15, v2")
    a.e("v_lshrrev_b32 v5, 4, v2")
    def wdma(k, j):
        if j == 0:
            a.e(f"s_add_u32 m0, s6, {4096*(k % RING)}")
            a.e(f"s_xor_b32 s7, {'s3' if k < 16 else 's20'}, {65536*(k % 16) + (1024 if k < 16 else 0 if k < 32 else 128)}")
        q.v(f"buffer_load_dwordx4 v{WV+j}, s[96:99], s7 offen offset:{1024*j} lds", f"W{k}")
    ringf = [lambda k=k, j=j: wdma(k, j) for k in range(RING) for j in range(4)]
    EM = opt.get("early", 0)
    NE = opt.get("ne", 12)
    early = list(mi) + [clear] + ringf[:NE]
    if opt.get("rf"): early = ringf[:opt["rf"]] + list(mi) + [clear] + ringf[opt["rf"]:NE]
    late = ringf[NE:]
    if opt.get("te") is not None: early.insert(opt["te"], lambda: (touch_u(), touch_aux(a, q)))
    SW, SR, SG, QW = 84, 85, 86, 87
    a.e("s_and_b32 s26, s16, 1")
    a.e("s_lshl_b32 s26, s26, 13")
    a.e("s_cmp_lt_u32 s16, 2")
    a.e(f"s_cselect_b32 s28, {16*SS}, 0")
    a.e("s_add_u32 s26, s26, s28")
    a.e(f"s_add_u32 s26, s26, {LDS_SC}")
    a.e(f"v_mul_u32_u24 v{SR}, {SS}, v12")
    a.e(f"v_lshl_add_u32 v{SR}, v13, 4, v{SR}")
    a.e(f"v_add_u32 v{SR}, s26, v{SR}")
    a.e(f"v_lshlrev_b32 v{SG}, 9, v12")
    a.e(f"v_lshl_add_u32 v{SG}, v13, 4, v{SG}")
    a.e(f"v_mul_u32_u24 v{SW}, {SS}, v4")
    a.e(f"v_lshl_add_u32 v{SW}, v5, 3, v{SW}")
    a.e(f"v_add_u32 v{SW}, s26, v{SW}")
    a.e("s_lshl_b32 s26, s16, 14")
    a.e(f"s_add_u32 s26, s26, {LDS_XS}")
    a.e("s_lshl_b32 s28, s22, 13")
    a.e("s_add_u32 s28, s28, s26")
    a.e("v_lshrrev_b32 v14, 1, v12")
    a.e("v_xor_b32 v14, v13, v14")
    a.e("v_lshlrev_b32 v14, 4, v14")
    a.e("v_lshl_add_u32 v14, v12, 7, v14")
    a.e("v_add_u32 v12, s28, v14")
    a.e("v_xor_b32 v116, 0x440, v12")
    a.e("v_xor_b32 v117, 0x2440, v12")
    a.e("v_xor_b32 v15, 0x2000, v12")
    a.e("s_mov_b32 s101, 0xffff0000")
    if EM == 2:
        while early: early.pop(0)()
    ZR, YO = 88, 90
    a.e("v_lshrrev_b32 v13, 1, v4")
    a.e("v_xor_b32 v13, v5, v13")
    a.e("v_lshlrev_b32 v13, 4, v13")
    a.e(f"v_lshl_add_u32 v{ZR}, v4, 7, v13")
    a.e("v_and_b32 v13, 0x27, v2")
    a.e("v_and_b32 v14, 8, v2")
    a.e("v_lshl_add_u32 v13, v14, 1, v13")
    a.e("v_and_b32 v14, 16, v2")
    a.e("v_lshrrev_b32 v14, 1, v14")
    a.e(f"v_add_lshl_u32 v{YO}, v13, v14, 4")
    XR_, TR = 88, 92
    a.e("s_lshr_b32 s26, s3, 18")
    a.e("s_lshl_b32 s26, s26, 12")
    a.e(f"s_add_u32 s26, s26, {LDS_XS}")
    a.e(f"v_add_u32 v{XR_}, s26, v{ZR}")
    a.e("v_lshrrev_b32 v14, 2, v4")
    a.e("v_lshl_add_u32 v14, v5, 3, v14")
    a.e("v_lshlrev_b32 v14, 7, v14")
    a.e("v_and_b32 v13, 3, v2")
    a.e("v_lshl_add_u32 v14, v13, 3, v14")
    a.e("v_and_b32 v13, 24, v2")
    a.e("v_lshl_add_u32 v14, v13, 2, v14")
    a.e(f"v_add_u32 v{TR}, s6, v14")
    for nb in range(1, 4):
        a.e(f"v_xor_b32 v{TR+nb}, {32*nb}, v{TR}")
    a.e(f"v_mov_b32 v13, {LDS_CNT}")
    a.e("v_mov_b32 v14, 0")
    q.l("ds_write_b32 v13, v14")
    def touch_u():
        if opt.get("tu") == 0: return
        if opt.get("tu", 2) == 2:
            a.e("s_lshl_b32 s26, s2, 12")
            a.e("s_lshr_b32 s28, s16, 1")
            a.e("s_lshl_b32 s28, s28, 11")
            a.e("s_add_u32 s26, s26, s28")
            a.e("s_and_b32 s28, s16, 1")
            a.e("s_lshl_b32 s28, s28, 9")
            a.e("s_add_u32 s26, s26, s28")
            a.e("v_lshlrev_b32 v14, 3, v2")
            q.v("buffer_load_dword v0, v14, s[96:99], s26 offen")
            return
        a.e("s_lshr_b32 s26, s2, 3")
        a.e("s_lshl_b32 s26, s26, 2")
        a.e("s_add_u32 s26, s26, s16")
        a.e("s_lshl_b32 s26, s26, 13")
        a.e("v_lshlrev_b32 v14, 6, v4")
        a.e("v_lshl_add_u32 v14, v5, 11, v14")
        q.v("buffer_load_dword v0, v14, s[96:99], s26 offen")
    m_addr(a)
    for f in opt['xrest']: f()
    for _ in range(opt.get('e0', 0)): early.pop(0)()
    A0 = 96
    def norm(s):
        A = A0 + 8 * (s // 8) + 4
        for j in range(4):
            f = F + 8 * s + 2 * j
            a.e(f"v_pk_fma_f32 v[{f}:{f+1}], v[{f}:{f+1}], v[{A}:{A+1}], v[{A}:{A+1}] op_sel:[0,0,1] op_sel_hi:[1,0,1]")
        for j in range(4):
            f = F + 8 * s + 2 * j
            a.e(f"v_cvt_pk_bf16_f32 v{X+4*s+j}, v{f}, v{f+1}")
    def stats(h):
        A = A0 + 8 * h
        for r in (A, A + 2): a.e(f"v_add_f32 v{r}, v{r}, v{r+1}")
        for d in ("quad_perm:[1,0,3,2]", "quad_perm:[2,3,0,1]", "row_half_mirror"):
            a.e("s_nop 0")
            for r in (A, A + 2): a.e(f"v_add_f32_dpp v{r}, v{r}, v{r} {d} row_mask:0xf bank_mask:0xf")
        a.e(f"v_mul_f32 v{A}, {f2u(-1.0/512)}, v{A}")
        a.e(f"v_mul_f32 v{A+2}, {f2u(1.0/512)}, v{A+2}")
        a.e(f"v_fma_f32 v{A+2}, -v{A}, v{A}, v{A+2}")
        a.e(f"v_max_f32 v{A+2}, 0, v{A+2}")
        a.e(f"v_add_f32 v{A+2}, {f2u(1e-5)}, v{A+2}")
        a.e(f"v_rsq_f32 v{A+4}, v{A+2}")
        a.e("s_nop 0")
        a.e(f"v_mul_f32 v{A+4}, {f2u(XSC)}, v{A+4}")
        a.e(f"v_mul_f32 v{A+5}, v{A}, v{A+4}")
    for h in range(2):
        A = A0 + 8 * h
        for i in range(8):
            s = 8 * h + i
            if s == 8: stats(0)
            if h == 1: norm(i)
            q.wait(f"x{s}")
            if s == 0: fs(1)
            for _ in range(opt.get("ep", [8] + [1] * 15)[s]):
                if early: early.pop(0)()
            for j in range(4):
                x = X + 4 * s + j; f = F + 8 * s + 2 * j
                a.e(f"v_lshlrev_b32 v{f}, 16, v{x}")
                a.e(f"v_and_b32 v{f+1}, s101, v{x}")
            for j in range(4):
                f = F + 8 * s + 2 * j
                if i == 0 and j == 0:
                    a.e(f"v_pk_add_f32 v[{A}:{A+1}], v[{f}:{f+1}], 0")
                    a.e(f"v_pk_mul_f32 v[{A+2}:{A+3}], v[{f}:{f+1}], v[{f}:{f+1}]")
                else:
                    a.e(f"v_pk_add_f32 v[{A}:{A+1}], v[{A}:{A+1}], v[{f}:{f+1}]")
                    a.e(f"v_pk_fma_f32 v[{A+2}:{A+3}], v[{f}:{f+1}], v[{f}:{f+1}], v[{A+2}:{A+3}]")
    fs(2)
    stats(1)
    for s in range(8, 12):
        for _ in range(2):
            if early: early.pop(0)()
        norm(s)
    while early: early.pop(0)()
    fs(3)
    def xw(s):
        h, i = s // 8, s % 8
        q.l(f"ds_write_b128 {(('v12', 'v15'), ('v116', 'v117'))[h][i // 4]}, v[{X+4*s}:{X+4*s+3}] offset:{2048*(i%4)}", "xw")
    fz = Fine(a, opt.get("fz"))
    fz(0)
    mfin = m_tile(a, q, fz, [lambda s=s: norm(s) for s in range(12, 16)])
    fs(4); fz(4)
    for s in range(16):
        xw(s)
        if s in (1, 5, 8, 12): fz(5 + (1, 5, 8, 12).index(s))
        if s == 3: mfin()
        if s >= 3:
            for _ in range(2):
                if late: late.pop(0)()
        TT = opt.get("tt", 8)
        if opt.get("te") is not None: continue
        if s == TT and opt.get('ta', 2): touch_aux(a, q, opt.get('ta', 2))
        if s == TT + 1 and not opt.get("tw"): touch_u()
    srd_off(a, 8, 4, "s24", 4096000)
    a.e("s_lshr_b32 s19, s3, 18")
    a.e("s_lshl_b32 s19, s19, 12")
    a.e("s_add_u32 s19, s19, s27")
    a.e("v_and_b32 v13, 3, v2")
    fz(9)
    q.wait("xw")
    fz(10)
    q.wait("St")
    fz(11)
    a.e("s_barrier")
    fz(12)
    st(1)
    AR = [16 + 16 * i for i in range(4)] + [96]
    T = 112
    NQ = 5
    role = [None]
    def areg(k): return AR[(k - 16 + 2) % NQ] if (role[0] == "qk" and k >= 16) else AR[k % 2]
    def accof(k): return 128 if k < 16 else 192 if (k < 32 or role[0] == "qk") else 128
    def bread(s, tb):
        r = 64 * tb + 4 * s
        if tb == 0: a.e(f"v_xor_b32 v{XR_+1}, {2048*(s//2) + 64*(s%2)}, v{XR_}")
        q.l(f"ds_read_b128 a[{r}:{r+3}], v{XR_+1} offset:{16384*tb}", f"B{s}")
    def tread(k, i):
        nb, h = i // 2, i % 2
        r = areg(k) + 4 * nb + 2 * h
        q.l(f"ds_read_b64_tr_b16 v[{r}:{r+1}], v{TR+nb} offset:{4096*(k % RING) + 512*h}", f"A{k}", need=(f"W{k}",))
    def mload(k, nb):
        if nb == 0: a.e(f"s_xor_b32 s42, s20, {4096*(k-16)}")
        r = areg(k) + 4 * nb
        q.v(f"buffer_load_dwordx4 v[{r}:{r+3}], v3, s[12:15], s42 offen offset:{1024*nb} sc1", f"A{k}")
    for tb in range(4): bread(0, tb)
    for i in range(8): tread(0, i)
    signal(a, L, "sig1", 0, 0)
    for tb in range(4): bread(1, tb)
    a.e(f"s_mov_b32 s0, {f2u(-GC1 / XSC)}")
    a.e(f"s_mov_b32 s1, {f2u(XSC)}")
    a.e("v_lshlrev_b32 v13, 6, v13")
    NB1 = opt.get("nb1", 0)
    a.e("s_cmp_lt_u32 s16, 2" if NB1 else "s_cmp_eq_u32 s16, 1")
    a.e("s_cselect_b32 s26, 0, 0x1000")
    a.e("v_add_u32 v12, s26, v13")
    a.e("s_lshl_b32 s17, s31, 16")
    a.e("s_lshl_b32 s26, s16, 7")
    a.e("s_add_u32 s17, s17, s26")
    a.e(f"s_add_u32 s17, s17, {WS_GU}")
    fx = [{}]
    def at(k, g, fn): fx[0].setdefault((k, g), []).append(fn if callable(fn) else (lambda: a.e(fn)))
    def run(ops):
        for x in ops: x() if callable(x) else a.e(x)
    def cost(x): return 2 if (isinstance(x, str) and x.split()[0] in ("v_exp_f32", "v_rcp_f32")) else 1
    def steps(k0, k1, side=(), lead=10, tailg=4):
        fixed = fx[0]
        gaps = [(k, g) for k in range(k0, k1) for g in range(16)]
        cap = [0 if (n < lead or n >= len(gaps) - tailg) else max(0, 2 - len(fixed.get(x, []))) for n, x in enumerate(gaps)]
        ops = list(side)
        C = sum(map(cost, ops)); tot = sum(cap)
        scale = min(1.0, C / tot)
        extra = max(0.0, (C - tot) / (len(gaps) - lead - tailg))
        budget = 0.0; used = 0
        for n, (k, g) in enumerate(gaps):
            if g == 0:
                if k in opt.get("fk", []): Fine(a, True)(opt["fk"].index(k))
                q.wait(f"A{k}", f"B{k}")
            nb, tb = ORD16[g] if opt.get('o2', 1) else (g // 4, g % 4)
            d = accof(k) + 16 * nb + 4 * tb; r = areg(k) + 4 * nb; b = 64 * tb + 4 * (k % 16)
            c = "0" if k % 16 == 0 else f"v[{d}:{d+3}]"
            a.e(f"{M16} v[{d}:{d+3}], v[{r}:{r+3}], a[{b}:{b+3}], {c}")
            for fn in fixed.pop((k, g), []): fn()
            if lead <= n < len(gaps) - tailg:
                budget += cap[n] * scale + extra
            while ops and (used + cost(ops[0]) <= budget + 1e-6 or n == len(gaps) - max(tailg, 1)):
                x = ops.pop(0); used += cost(x); run([x])
        assert not ops
    def raw_plan(k0, k1, kend):
        for k in range(k0, k1):
            if k + 1 < kend:
                for i in range(8): at(k, i, lambda k=k, i=i: tread(k + 1, i))
            if k + RING < kend:
                for j in range(4): at(k, 9 + 2 * j, lambda k=k, j=j: wdma(k + RING, j))
            if k + 2 < 16:
                for tb in range(4): at(k, 8 + 2 * tb, lambda k=k, tb=tb: bread(k + 2, tb))
    def gelu(acc, kind, pk, base, off):
        out = []
        if opt.get("nogelu"): return [["s_nop 0"] * 40 for _ in range(8)]
        P = lambda r: f"v[{r}:{r+1}]"
        def store(E, i):
            r = acc + 32 + 16 * (i % 2) + 4 * (i // 2)
            def f():
                a.e(f"s_add_u32 s29, {base}, {off + 4096*i}")
                pub = kind == "g" and i in (0, 7)
                q.v(f"buffer_store_dwordx4 v[{r}:{r+3}], v{SG}, s[12:15], s29 offen{' sc1' if pub else ''}", "St" if pub else "_", need=(f"sr{kind}{i}",))
            E(f)
        for tb in range(4):
            for h in range(2):
                o = []; E = o.append; out.append(o)
                src = [acc + 16 * (2 * h + ee) + 4 * tb + j for ee in range(2) for j in range(4)]
                if pk(2 * tb + h):
                    for i in range(0, 8, 2): E(f"v_pk_fma_f32 {P(T+i)}, {P(src[i])}, {P(src[i])}, s[0:1] op_sel_hi:[1,1,0] neg_lo:[1,0,0] neg_hi:[1,0,0]")
                    for i in range(0, 8, 2): E(f"v_pk_mul_f32 {P(T+i)}, {P(T+i)}, {P(src[i])}")
                    for i in range(8): E(f"v_exp_f32 v{T+i}, v{T+i}")
                    for i in range(0, 8, 2): E(f"v_pk_fma_f32 {P(T+i)}, {P(T+i)}, s[0:1], s[0:1] op_sel:[0,1,1] op_sel_hi:[1,1,1]")
                    for i in range(8): E(f"v_rcp_f32 v{T+i}, v{T+i}")
                    for i in range(0, 8, 2): E(f"v_pk_mul_f32 {P(src[i])}, {P(T+i)}, {P(src[i])}")
                else:
                    for i, x in enumerate(src): E(f"v_fma_f32 v{T+i}, -v{x}, v{x}, s0")
                    for i, x in enumerate(src): E(f"v_mul_f32 v{T+i}, v{T+i}, v{x}")
                    for i, x in enumerate(src): E(f"v_exp_f32 v{T+i}, v{T+i}")
                    for i, x in enumerate(src): E(f"v_fma_f32 v{T+i}, v{T+i}, s1, s1")
                    for i, x in enumerate(src): E(f"v_rcp_f32 v{T+i}, v{T+i}")
                    for i, x in enumerate(src): E(f"v_mul_f32 v{x}, v{T+i}, v{x}")
                pr = T + 8 + 4 * h
                for j in range(4): E(f"v_cvt_pk_bf16_f32 v{pr+j}, v{src[2*j]}, v{src[2*j+1]}")
                for ee in range(2):
                    E(lambda ee=ee, pr=pr, h=h: q.l(f"ds_write_b64 v{SW}, v[{pr+2*ee}:{pr+2*ee+1}] offset:{32*(2*h+ee)}"))
                if kind == "g":
                    s0, s1 = acc + 4 * tb, acc + 4 * tb + 1
                    if pk(2 * tb + h):
                        E(f"v_pk_mul_f32 {P(T)}, {P(src[0])}, {P(src[0])}")
                        E(f"v_pk_add_f32 {P(T+2)}, {P(src[0])}, {P(src[2])}")
                        for i in (2, 4, 6):
                            E(f"v_pk_fma_f32 {P(T)}, {P(src[i])}, {P(src[i])}, {P(T)}")
                            if i > 2: E(f"v_pk_add_f32 {P(T+2)}, {P(T+2)}, {P(src[i])}")
                        if h == 0:
                            E(f"v_add_f32 v{s0}, v{T+2}, v{T+3}")
                            E(f"v_add_f32 v{s1}, v{T}, v{T+1}")
                        else:
                            E(f"v_add_f32 v{T+2}, v{T+2}, v{T+3}")
                            E(f"v_add_f32 v{T+3}, v{T}, v{T+1}")
                            E(f"v_pk_add_f32 {P(s0)}, {P(s0)}, {P(T+2)}")
                    elif h == 0:
                        E(f"v_mul_f32 v{T}, v{src[0]}, v{src[0]}")
                        for x in src[1:]: E(f"v_fmac_f32 v{T}, v{x}, v{x}")
                        for x in src[1:]: E(f"v_add_f32 v{s0}, v{s0}, v{x}")
                        E(f"v_mov_b32 v{s1}, v{T}")
                    else:
                        for x in src:
                            E(f"v_add_f32 v{s0}, v{s0}, v{x}")
                            E(f"v_fmac_f32 v{s1}, v{x}, v{x}")
                if tb >= 1: store(E, 2 * (tb - 1) + h)
            for i in (2 * tb, 2 * tb + 1):
                r = acc + 32 + 16 * (i % 2) + 4 * tb
                E(lambda i=i, r=r: q.l(f"ds_read_b128 v[{r}:{r+3}], v{SR} offset:{8*SS*(i%2)}", f"sr{kind}{i}"))
        if kind == "g":
            for k in range(2):
                E(f"v_permlane16_swap_b32 v{acc+k}, v{acc+4+k}")
                E(f"v_permlane16_swap_b32 v{acc+8+k}, v{acc+12+k}")
            E("s_lshl_b32 s43, s22, 2")
            for k in range(2):
                E(f"v_add_f32 v{acc+k}, v{acc+k}, v{acc+4+k}")
                E(f"v_add_f32 v{acc+8+k}, v{acc+8+k}, v{acc+12+k}")
            E("s_add_u32 s43, s43, s16")
            E("s_lshl_b32 s43, s43, 9")
            for k in range(2): E(f"v_permlane32_swap_b32 v{acc+k}, v{acc+8+k}")
            E(lambda: (a.e("s_lshr_b32 s29, s31, 1"), a.e("s_lshl_b32 s29, s29, 12"), a.e("s_add_u32 s43, s43, s29")))
            for k in range(2): E(f"v_add_f32 v{T+k}, v{acc+k}, v{acc+8+k}")
            E(f"s_add_u32 s43, s43, {WS_ST}")
            E(f"v_lshlrev_b32 v{T+2}, 3, v2")
            E(lambda: q.v(f"buffer_store_dwordx2 v[{T}:{T+1}], v{T+2}, s[12:15], s43 offen sc1", "St"))
        store(E, 6); store(E, 7)
        return out
    flat = lambda bs: [x for b in bs for x in b]
    def stream_srd():
        a.e(f"s_mul_i32 s28, s22, {32768 * opt.get('n0', 62)}")
        a.e("s_add_u32 s28, s28, s24")
        a.e("s_lshl_b32 s26, s25, 15")
        srd_off(a, 8, 4, "s28", "s26")
    def xl():
        a.e("s_xor_b32 s26, s31, 1")
        a.e("s_lshl_b32 s26, s26, 7")
        a.e(f"s_add_u32 s26, s26, {WS_FL + 48}")
        q.v("buffer_load_dword v1, off, s[12:15], s26 sc1", "xid")
    def xc():
        q.wait("xid")
        a.e("v_readfirstlane_b32 s26, v1")
        a.e("s_getreg_b32 s21, hwreg(HW_REG_XCC_ID, 0, 4)")
        a.e("s_xor_b32 s21, s21, s26")
        if opt.get("far"): a.e("s_mov_b32 s21, 1")
    def e0():
        if role[0] == "qk" or not NB1: xc()
        q.wait("B15")
        a.e("s_barrier")
        if role[0] == "pv" and NB1: xl()
    PQ = opt.get("pq", [11, 11, 12, 13, 14, 15, 16, 16, 17, 17, 18, 18, 19, 19, 20, 20])
    def pub(i):
        tb, sl = i // 4, i % 4
        q.v(f"buffer_store_dwordx4 a[{64*tb+4*sl}:{64*tb+4*sl+3}], v{YO}, s[8:11], s19 offen offset:{1024*sl} sc1", "Xst")
        if sl == 3: a.e("s_add_u32 s19, s19, 16384")
    def arrive():
        a.e(f"v_mov_b32 v1, {LDS_CNT}")
        a.e("v_mov_b32 v14, 1")
        q.wait("Xst")
        a.e("s_mov_b64 exec, 1")
        q.l("ds_add_rtn_u32 v15, v1, v14", "cnt")
        a.e("s_mov_b64 exec, -1")
    def sig2():
        q.wait("cnt")
        a.e("v_readfirstlane_b32 s28, v15")
        a.e("s_and_b32 s26, s2, 3")
        a.e("s_lshl_b32 s26, s26, 6")
        a.e("s_cmp_lg_u32 s28, 1")
        a.e(f"s_cbranch_scc1 {L('sig2')}")
        a.e("s_mov_b64 exec, 1")
        a.e("buffer_atomic_add v14, off, s[92:95], s26 offset:8")
        a.e("s_mov_b64 exec, -1")
        a.label(L("sig2"))
    KS = opt.get("ks", 11); KC = 11
    raw_plan(0, KS, 16)
    c1l = lambda: q.v(cnt_load(0, "v12"), "c1")
    if KS > KC - 3: at(*opt.get('c1p', (KC - 3, 8)), c1l)
    fs(5); fz(13)
    at(0, 1, lambda: fz(14)); at(1, 1, lambda: fz(15))
    steps(0, KS)
    assert not fx[0]
    a.e("s_cmp_ge_u32 s16, 2")
    a.e(f"s_cbranch_scc1 {L('fpv')}")
    state = (list(q.vm), list(q.lg))

    def qk_part():
        role[0] = "qk"; fx[0] = {}
        raw_plan(KS, 16, 16)
        def chk1():
            q.wait("c1")
            if not NB1:
                a.e("s_cmp_lg_u32 s16, 1")
                a.e(f"s_cbranch_scc1 {L('c1_ok')}")
            poll(a, q, L, "c1", [cnt_load(0, "v12")], CNT_OK, "c1", slp=8)
            if not NB1: a.e("s_barrier")
            a.e("s_lshl_b32 s26, s22, 1")
            a.e("s_add_u32 s26, s26, s16")
            a.e("s_lshl_b32 s20, s26, 17")
            a.e("s_lshr_b32 s28, s3, 18")
            a.e("s_lshl_b32 s28, s28, 14")
            a.e("s_add_u32 s20, s20, s28")
            a.e(f"s_add_u32 s20, s20, {WS_MI}")
        if KS <= KC - 3: at(KC - 3, 8, c1l)
        at(KC, 8, chk1)
        at(KC, 10, xl)
        for kk in range(16, 48):
            k = kk - NQ + 1
            for nb in range(4): at(k, (9 + 2 * nb) if k < 16 else (1 + 4 * nb), lambda kk=kk, nb=nb: mload(kk, nb))
        at(15, 8, e0)
        if PQ:
            for i, k in enumerate(PQ): at(k, 11 if (i and PQ[i - 1] == k) else 3 if k >= 16 else 14, lambda i=i: pub(i))
            at(PQ[-1] + 3, 7, arrive)
            at(PQ[-1] + 4, 7, sig2)
        for g, x in enumerate(["s_lshl_b32 s40, s31, 1", "s_add_u32 s40, s40, s16", "s_lshl_b32 s40, s40, 14", f"s_add_u32 s40, s40, {WS_QP}",
                               "s_lshl_b32 s41, s31, 5", "s_add_u32 s41, s41, s16", "s_lshl_b32 s41, s41, 2", f"s_add_u32 s41, s41, {WS_FL + 16}"]):
            at(15, g, x)
        steps(KS, 16)
        fs(6)
        NA_, NB_ = opt.get("qg", (4, 4))
        gb = gelu(128, "g", lambda b: b >= NA_ + NB_, "s17", 0)
        pre = ["s_lshl_b32 s26, s16, 2", "s_add_u32 s26, s26, s22", "s_lshl_b32 s26, s26, 13", f"s_add_u32 s18, s26, {LDS_XS}", f"v_add_u32 v{QW}, s18, v3",
               "s_xor_b32 s18, s18, 0x2000", "s_add_u32 s7, s40, 4096", "s_xor_b32 s6, s41, 128", "v_mov_b32 v12, 1",
               lambda: run(["s_cmp_eq_u32 s21, 0", "s_cselect_b32 s46, s14, 0", "s_mov_b64 s[44:45], s[12:13]"])]
        steps(16, 32, pre + flat(gb[:NA_]))
        fs(7)
        preg = lambda i: 192 + 32 * (i % 2) + 4 * (i // 2)
        def qst(i, r, srd, mod): return f"buffer_store_dwordx4 v[{r}:{r+3}], v3, s[{srd}:{srd+3}], {'s40' if i < 4 else 's7'} offen offset:{1024*(i%4)} {mod}"
        def pack(p):
            a.e("s_nop 3")
            for i in ((0, 2, 4, 6, 7, 5, 3, 1) if opt.get('o2', 1) else range(8)):
                pr = preg(i); src = [pr + 16 * ee + j for ee in range(2) for j in range(4)]
                for j in range(4): a.e(f"v_cvt_pk_bf16_f32 v{pr+j}, v{src[2*j]}, v{src[2*j+1]}")
                if p: q.v(qst(i, pr, 44, "nt"), "Qst", need=("qa",))
                q.l(f"ds_write_b128 v{QW}, v[{pr}:{pr+3}] offset:{16384*p + 1024*i}", "qw")
        def fetch(p, i):
            if i % 4 == 0:
                a.e(f"s_add_u32 m0, s18, {16384*p + 1024*i}")
                a.e("s_nop 0")
            q.v(f"buffer_load_dwordx4 v3, s[12:15], {'s40' if i < 4 else 's7'} offen offset:{1024*(i%4)} sc1 lds", "qd" if p else "qa")
        SWAP = ["s_xor_b32 s40, s40, 0x8000", "s_xor_b32 s7, s7, 0x8000"]
        pack(0)
        for i in range(8):
            k = 32 + opt.get("qsp", [0, 0, 1, 1, 2, 2, 3, 3])[i]
            r = (WV, TR)[i % 2]
            at(k, 3, lambda i=i, r=r: q.l(f"ds_read_b128 v[{r}:{r+3}], v{QW} offset:{1024*i}", f"qr{i}"))
            at(k, 15, lambda i=i, r=r: q.v(qst(i, r, 12, "sc1"), "Qst", need=(f"qr{i}",)))
        KA_, KB_, KC_ = opt.get("qk_", (39, 43, 45))
        qok = ["v_readfirstlane_b32 s26, v15", "s_cmp_eq_u32 s26, 1"]
        at(KA_, 3, lambda: q.v("buffer_store_dword v12, off, s[12:15], s41 sc1", need=("Qst",)))
        qfa = "buffer_load_dword v15, off, s[12:15], s6 sc1"
        at(KB_, 3, lambda: q.v(qfa, "qf"))
        at(KC_, 0, lambda: (poll(a, q, L, "qa", [qfa], qok, "qf", slp=1), run(SWAP)))
        for i in range(8): at(KC_, 1 + 2 * i, lambda i=i: fetch(0, i))
        at(opt.get("kc2", 41), 7, lambda: q.v(cnt_load(8), "c2"))
        at(43, 7, lambda: (stream_srd(), a.e("s_lshl_b32 s19, s16, 14")))
        at(44, 0, lambda: poll(a, q, L, "c2", [cnt_load(8)], CNT_OK, "c2", slp=8))
        def kvt():
            n = opt.get("kt_", 6)
            a.e("s_lshr_b32 s26, s2, 4")
            a.e("s_lshl_b32 s26, s26, 1")
            a.e("s_add_u32 s26, s26, s16")
            a.e(f"s_lshl_b32 s26, s26, {n + 6}")
            a.e(f"v_lshlrev_b32 v14, {n}, v2")
            q.v("buffer_load_dword v0, v14, s[8:11], s26 offen sc1")
        if opt.get("kt_", 0): at(44, 1, kvt)
        kds = []
        for i in range(16):
            def kd(i=i):
                if i % 4 == 0:
                    a.e(f"s_add_u32 m0, s19, {1024*i}")
                    a.e(f"s_add_u32 s42, s19, {1024*i}")
                q.v(f"buffer_load_dwordx4 v3, s[8:11], s42 offen offset:{1024*(i%4)} sc1 lds", "kv0")
            if i >= opt.get("kn", 4): kds.append(kd)
            else: at(44 + i // 4 + (1 if 44 + i // 4 >= KC_ else 0), 4 + 3 * (i % 4), kd)
        steps(32, 48, flat(gb[NA_:NA_ + NB_]), lead=2)
        assert not fx[0]
        fs(8); fy = Fine(a, opt.get("fy")); fy(0)
        pack(1)
        fy(1)
        rest = gb[NA_ + NB_:]
        W1, W2 = opt.get("qw_", (0, 0))
        run(kds)
        for _ in range(W1): run(rest.pop(0))
        fy(2)
        release(a, q, L, "rq", "Qst", "buffer_store_dword v12, off, s[12:15], s41 offset:8", [qst(i, preg(i), 12, "sc1") for i in range(8)])
        fy(3)
        qfl = "buffer_load_dword v15, off, s[12:15], s6 offset:8 sc1"
        fy(4)
        for _ in range(W2): run(rest.pop(0))
        q.v(qfl, "qf")
        for _ in range(opt.get("w3", 0)): run(rest.pop(0))
        fs(12); fy(5)
        run(SWAP)
        poll(a, q, L, "q", [qfl], qok, "qf", slp=1)
        fy(6)
        for i in range(8): fetch(1, i)
        fy(7)
        run(flat(rest))
        fs(9); fy(8)

    def pv_part(setup, vreads, zero):
        role[0] = "pv"; fx[0] = {}
        a.label(L("fpv"))
        q.vm, q.lg = list(state[0]), list(state[1])
        a.e("s_and_b32 s20, s3, 0xffff0000")
        a.e("s_lshl_b32 s26, s22, 1")
        a.e("s_add_u32 s26, s26, s16")
        a.e("s_sub_u32 s26, s26, 2")
        a.e("s_lshl_b32 s26, s26, 8")
        a.e("s_add_u32 s20, s20, s26")
        raw_plan(KS, 48, 48)
        if not NB1:
            at(KC, 8, "s_barrier")
            at(KC, 10, xl)
        at(15, 8, e0)
        PE = opt.get("pe", [])
        for i, k in enumerate(PE): at(k, 12 if (i and PE[i - 1] == k) else 4, lambda i=i: pub(i))
        steps(KS, 16)
        fs(6)
        N1, N2 = opt.get("pg_", (5, 3))
        gb = gelu(128, "g", lambda b: b < N1, "s17", 0)
        e1 = flat(gb[:N1])
        for i in range(16 if PQ else len(PE), 16): e1.insert((i - len(PE)) * opt.get("pd", 12), lambda i=i: pub(i))
        a.e("s_nop 3")
        run(e1)
        if NB1: xc()
        fs(12)
        K2 = opt.get("k2", 19)
        if not PQ:
            at(K2, 8, arrive)
            at(K2 + 1, 8, sig2)
        steps(16, 32, flat(gb[N1:]), lead=2)
        fs(7)
        a.e("s_lshl_b32 s26, s16, 7")
        a.e("s_add_u32 s17, s17, s26")
        a.e("s_sub_u32 s17, s17, 512")
        ua = gelu(192, "ua", lambda b: b >= N2, "s17", 32768)
        n0 = len(a.lines)
        stream_srd(); setup()
        a.e("s_lshl_b32 s6, s19, 14")
        a.e("s_lshl_b32 s20, s19, 13")
        su = [x.strip() for x in a.lines[n0:]]; del a.lines[n0:]
        if opt.get("sg", 1):
            steps(32, 43, flat(ua[:N2]), tailg=0)
            steps(43, 48, su, lead=0, tailg=0)
        else:
            steps(32, 48, flat(ua[:N2])); run(su)
        assert not fx[0]
        fs(8); fy = Fine(a, opt.get("fy"))
        for k in range(9): fy(k)
        ub = gelu(128, "ub", lambda b: True, "s17", 32768 + 128)
        rest = ua[N2:] + ub
        pend = []
        def dma(n0, n, lds0, tag):
            for i in range(n):
                def f(i=i):
                    if i % 4 == 0:
                        a.e(f"s_add_u32 m0, {lds0}, {n0 + 1024*i}")
                        a.e(f"s_add_u32 s7, {lds0}, {n0 + 1024*i}")
                    q.v(f"buffer_load_dwordx4 v3, s[8:11], s7 offen offset:{1024*(i%4)} sc1 lds", tag)
                pend.append(f)
        BS, BA, BB = opt.get("pb", (6, 9, 11))
        DD = opt.get("dd", 5)
        assert (BA - len(ua[N2:])) % 2 == 0 if BA >= len(ua[N2:]) else (N2 + BA) % 2 == 0
        for n in range(len(rest) + 1):
            if n == BS:
                q.wait("St")
                fy(9)
                a.e("s_barrier")
                fy(10)
                st(2); fs(9)
                if not opt.get("q1"): dma(32768, 16, "s6", "kv1")
                if opt.get("t2", 1): dma(65536, 8, "s20", "kv2")
            if n == BA:
                q.all(vm=False)
                fy(11)
                a.e("s_barrier")
                fy(12)
                a.e(f"s_mul_i32 s26, s19, {16*SS - 8192}")
                a.e(f"s_add_u32 s26, s26, {LDS_SC2 - LDS_SC}")
                a.e(f"v_add_u32 v{SW}, s26, v{SW}")
                a.e(f"v_add_u32 v{SR}, s26, v{SR}")
                run(pend); del pend[:]
                if not opt.get("t2", 1): dma(65536, 8, "s20", "kv2")
                dma(81920, 8, "s20", "kv2")
                if not opt.get("q3", 1): dma(98304, 16, "s6", "kv3")
            if n == BB:
                q.wait("kv1")
                fy(13)
                a.e("s_barrier")
                fy(14)
                fs(10)
                signal(a, L, "sig3", 2, 4)
            if n < len(rest):
                for i, x in enumerate(rest[n]):
                    if n >= BS and i % 4 == 0 and vreads: q.l(vreads.pop(0))
                    if i % (DD if n < BA else opt.get("d2", 4)) == 1 and pend: pend.pop(0)()
                    run([x])
        assert not vreads
        run(pend)
        zero()
        q.wait("kv2")
        q.all(vm=False)
        fy(15)
    return qk_part, pv_part
```

```python
import sys
sys.path.insert(0, "gen")
from asmlib import *
from attn2 import gen_attn
KNAME = "standalone__conformer_family_branchformer__speech_kernel"

HEAD = """; Branchformer block (attention branch + cgMLP branch + merge), B=2 T=4000 D=512, one persistent launch, 256 workgroups x 4 waves.
;
;
; the safe range the workgroup takes the true row maxima over all its keys and runs the loop again (label L_redo).
"""

def build(path, stamp=0, opt=None):
    a = Asm()
    a('.amdgcn_target "amdgcn-amd-amdhsa--gfx950"')
    l = gen_attn(a, KNAME, stamp=stamp, opt=opt)
    t = a.text().replace(KNAME + "_", "L_")
    open(path, "w").write(HEAD + l + "\n" + t)

if __name__ == "__main__":
    build("v3.s")
    build("v3_st.s", stamp=1)
    build("v3_fs.s", stamp=2)
    build("v3f_fs.s", stamp=3)
```

```python
import sys
sys.path.insert(0, "gen")
from asmlib import *
from layout import *
from conv import Conv
from aux import gen_aux
from front import *

RS = 1056
LDS_P = 131072
LDS_MX = 139264
LDS_FG = LDS_MX + 512
LDS_ML = LDS_MX + 1024
LDS_HALO = LDS_ML + 1024
LDS_TAP = LDS_HALO + 2048
LDS_STT = LDS_TAP + 3072
LDS_ATT = 163840
ES = 272
NA = 16
ARING = [16 * ((i + 11) % 16) for i in range(16)]
BIG = 2.0 ** 100
SPIN = 200000
FK = [0, 8, 16, 20, 24, 28, 30]

DROP = []
ALIGN = [0]
def emit_interval(a, mfmas, fill, lo=0, hi=None):
    for i, m in enumerate(mfmas):
        if i < lo or (hi is not None and i >= hi): continue
        if m is not None:
            if ALIGN[0]: a(".p2alignl 3, 0xbf800000")
            a.e(m)
        for f in fill.get(i, []):
            if any(f.startswith(d) for d in DROP): continue
            a.e(f)

def conv_addr(a, NR, row0):
    a.e("v_lshrrev_b32 v12, 5, v2")
    a.e(f"v_mul_u32_u24 v12, {NR}, v12")
    a.e(f"v_add_u32 v12, {row0}, v12")
    a.e("v_and_b32 v13, 31, v2")
    a.e("v_lshlrev_b32 v13, 4, v13")
    a.e("v_lshl_add_u32 v14, v12, 9, v13")
    a.e("s_and_b32 s26, s25, 3")
    a.e("s_lshl_b32 s26, s26, 15")
    a.e("v_add_u32 v232, s26, v14")
    a.e("v_add_u32 v235, s49, v14")
    a.e("v_and_b32 v14, 4, v12")
    a.e("v_lshlrev_b32 v14, 5, v14")
    a.e("v_xor_b32 v236, v235, v14")
    a.e(f"v_add_u32 v238, {LDS_TAP}, v13")
    a.e(f"v_add_u32 v13, {LDS_HALO}, v13")
    a.e("v_cmp_eq_u32 vcc, 0, v12")
    a.e("v_subrev_u32 v233, 1024, v232")
    a.e(f"v_add_u32 v234, {512*NR}, v232")
    a.e("v_cndmask_b32 v233, v233, v13, vcc")
    a.e(f"v_cmp_eq_u32 vcc, {64-NR}, v12")
    a.e("v_add_u32 v13, 1024, v13")
    a.e("v_lshlrev_b32 v237, 3, v12")
    a.e("v_cndmask_b32 v234, v234, v13, vcc")
    a.e(f"v_add_u32 v237, {LDS_STT}, v237")

def gen_tail(a, L, st, fs, opt):
    q = Seq(a)
    PF = opt.get("pf", 10)
    q.vm = [f"A{k}" for k in range(PF) for _ in range(4)]
    BF = [32, 48]; YR = 64; XR = 96
    NS = 32
    acc = lambda k: 128 if k < 16 else 192
    def bread(k, tb):
        s = k % 8
        r = BF[k % 2] + 4 * tb
        if k % 16 < 8:
            return f"ds_read_b128 v[{r}:{r+3}], v6 offset:{8192*tb + 1024*s}"
        return f"ds_read_b128 v[{r}:{r+3}], v{28 + s % 4} offset:{8192*tb + 256*(s//4)}"
    a.e("v_add_u32 v6, s48, v3")
    a.e("s_waitcnt lgkmcnt(0)")
    fs(5)
    a.e("s_barrier")
    for tb in range(4): q.l(bread(0, tb), "B0")
    a.e("v_and_b32 v4, 15, v2")
    a.e("v_lshrrev_b32 v5, 4, v2")
    a.e("v_mov_b32 v12, 1")
    a.e("v_mov_b32 v15, 0x3f80")
    SEL = 16
    side = {}
    def at(k, g, fn): side.setdefault((k + g // 16, g % 16), []).append(fn)
    def spread(k, g, ops, per=2, skip=lambda g: False):
        n = 16 * k + g
        ops = list(ops)
        while ops:
            if not skip(n % 16):
                for _ in range(per):
                    if ops:
                        o = ops.pop(0)
                        at(n // 16, n % 16, o if callable(o) else (lambda o=o: a.e(o)))
            n += 1
    lo8 = lambda g: g < 8
    spread(0, 8, ["v_and_b32 v13, 7, v4", "v_lshlrev_b32 v13, 1, v13", "v_xor_b32 v13, v13, v5", "v_lshlrev_b32 v13, 4, v13",
                  "v_lshl_add_u32 v13, v4, 9, v13", "v_add_u32 v28, s49, v13", "v_xor_b32 v29, 64, v28", "v_xor_b32 v30, 128, v28",
                  "v_xor_b32 v31, 192, v28",
                  "s_and_b32 s26, s16, 2", "s_add_u32 s26, s26, s25", "s_and_b32 s26, s26, 3", "s_lshl_b32 s26, s26, 1",
                  "s_and_b32 s28, s16, 1", "s_add_u32 s26, s26, s28", "s_lshl_b32 s42, s26, 14",
                  "v_lshrrev_b32 v13, 1, v4", "v_xor_b32 v13, v13, v5", "v_lshlrev_b32 v13, 4, v13", "v_lshl_add_u32 v13, v4, 7, v13",
                  "v_add_u32 v8, s42, v13", "v_xor_b32 v9, 64, v8", "v_add_u32 v7, s42, v3",
                  "v_lshrrev_b32 v13, 3, v2", "v_lshrrev_b32 v14, 4, v2", "v_xor_b32 v14, v14, v2", "v_and_b32 v14, 7, v14",
                  "v_lshlrev_b32 v14, 4, v14", "v_lshl_add_u32 v10, v13, 10, v14", "v_xor_b32 v11, 64, v10",
                  "v_lshrrev_b32 v13, 2, v4", "v_cmp_eq_u32 vcc, v13, v5", "v_and_b32 v13, 1, v4", "v_lshlrev_b32 v13, 4, v13",
                  "v_lshlrev_b32 v13, v13, v15", "v_cndmask_b32 v13, 0, v13, vcc", "v_and_b32 v14, 2, v4", "v_cmp_eq_u32 vcc, 0, v14",
                  f"v_mov_b32 v{SEL+2}, 0", f"v_mov_b32 v{SEL+3}, 0", f"v_cndmask_b32 v{SEL}, 0, v13, vcc", f"v_sub_u32 v{SEL+1}, v13, v{SEL}",
                  f"v_mov_b32 v{SEL+4}, v{SEL}", f"v_mov_b32 v{SEL+5}, v{SEL+1}"], skip=lo8)
    KX = opt.get("kx", 26)
    for i in range(8):
        def xl(i=i):
            a.e(f"s_add_u32 m0, s42, {1024*i}")
            a.e(f"s_add_u32 s26, s58, {8192*i}")
            q.v(f"buffer_load_dwordx4 v{10 + i%2}, s[32:35], s26 offen lds", "X")
        at(KX, 1 + opt.get("dx", 4) * i, xl)
        at(opt.get("ku", 30), 8 + i, lambda i=i: q.l(f"ds_read_b128 v[{XR+4*i}:{XR+4*i+3}], v{8 + i%2} offset:{2048*(i//2)}", "XF", need=("X",)))
    YS = opt.get("ys", 2)
    for i in range(8):
        tb, h = i // 2, i % 2
        k, g0 = (16 + i // 2, 8 + 4 * (i % 2)) if YS == 2 else (16, 8 + 3 * i)
        src = [128 + 16 * (2 * h + ee) + 4 * tb + j for ee in range(2) for j in range(4)]
        for j in range(4):
            at(k, g0 + j // 2, lambda j=j, i=i, src=src: a.e(f"v_cvt_pk_bf16_f32 v{YR+4*i+j}, v{src[2*j]}, v{src[2*j+1]}"))
        at(k, g0 + 2, lambda i=i: q.v(f"buffer_store_dwordx4 v[{YR+4*i}:{YR+4*i+3}], v3, s[44:47], s{54 + i//4} offen offset:{1024*(i%4)} {opt.get('sm_', 'nt')}", "Yst"))
    KF, KL, KC = opt.get("k", (24, 27, 29))
    at(KF, 9, lambda: release(a, q, L, "ry", "Yst", "buffer_store_dword v12, off, s[12:15], s56",
        [f"buffer_store_dwordx4 v[{YR+4*i}:{YR+4*i+3}], v3, s[12:15], s{54 + i//4} offen offset:{1024*(i%4)} sc1" for i in range(8)]))
    yl = f"buffer_load_dword v14, off, s[12:15], s57 {opt.get('pm', 'sc1')}"
    at(KL, 9, lambda: q.v(yl, "yf"))
    def gety():
        poll(a, q, L, "y", [yl], ["v_readfirstlane_b32 s26, v14", "s_cmp_eq_u32 s26, 1"], "yf", slp=1)
        a.e("s_xor_b32 s54, s54, 0x10000")
        a.e("s_xor_b32 s55, s55, 0x10000")
    at(KC, 7, gety)
    for i in range(8):
        at(KC, 8 + i, lambda i=i: q.v(f"buffer_load_dwordx4 v[{YR+4*i}:{YR+4*i+3}], v3, s[12:15], s{54 + i//4} offen offset:{1024*(i%4)} {opt.get('lm', 'sc1')}", f"Y{i}"))
    nl = 4 * PF
    AS = opt.get("as", "4" * 16 + "0000" + "4" * 12)
    LG = opt.get("lg", (1, 5, 9, 13, 3))
    for k in range(NS):
        assert nl >= 4 * min(NS, k + 3)
        if k == 0: st(5)
        if k in FK: fs(6 + FK.index(k))
        q.wait(f"A{k}", f"B{k}")
        g = 0
        for nb_ in range(4):
            for tb_ in range(4):
                nb, tb = ORD16[g] if opt.get("o2", 1) else (nb_, tb_)
                d = acc(k) + 16 * nb + 4 * tb; r = areg(k, nb); b = BF[k % 2] + 4 * tb
                c = "0" if k % 16 == 0 else f"v[{d}:{d+3}]"
                a.e(f"{M16} v[{d}:{d+3}], a[{r}:{r+3}], v[{b}:{b+3}], {c}")
                if g < 8 and g % 2 == 0 and k + 1 < NS:
                    q.l(bread(k + 1, g // 2), f"B{k+1}")
                if nl < 4 * NS and nl // 4 < k + NA and g in LG[:int(AS[k])]:
                    aload(a, q, nl // 4, nl % 4); nl += 1
                for fn in side.pop((k, g), []): fn()
                g += 1
    assert not side, side.keys()
    st(6); fs(13)
    def sel(i, R, tag):
        tb, h = i // 2, i % 2
        out = []
        for ee in range(2):
            d = 192 + 16 * (2 * h + ee) + 4 * tb
            out.append(lambda d=d, ee=ee: q.e(f"{M16} v[{d}:{d+3}], v[{SEL+2*ee}:{SEL+2*ee+3}], v[{R+4*i}:{R+4*i+3}], v[{d}:{d+3}]", need=(tag,)))
        return out
    for i in range(8):
        for f in sel(i, XR, "XF"): f()
    PK = 128
    post = []
    for i in range(8):
        tb, h = i // 2, i % 2
        src = [192 + 16 * (2 * h + ee) + 4 * tb + j for ee in range(2) for j in range(4)]
        o = [f"v_cvt_pk_bf16_f32 v{PK+4*i+j}, v{src[2*j]}, v{src[2*j+1]}" for j in range(4)]
        o.append(lambda i=i, tb=tb, h=h: q.l(f"ds_write_b128 v{8+h}, v[{PK+4*i}:{PK+4*i+3}] offset:{8192 + 2048*tb}"))
        if h:
            o += [lambda ii=ii: q.l(f"ds_read_b128 v[{160+4*ii}:{163+4*ii}], v7 offset:{8192 + 1024*ii}", f"E{ii}") for ii in (i - 1, i)]
        post.append(o)
    def out(ii):
        a.e(f"s_add_u32 s26, s58, {8192*ii}")
        q.v(f"buffer_store_dwordx4 v[{160+4*ii}:{163+4*ii}], v{10 + ii%2}, s[36:39], s26 offen {opt.get('omod', 'nt')}", need=(f"E{ii}",))
    R_ = lambda ops: [x() if callable(x) else a.e(x) for x in ops]
    for i in range(8):
        m = sel(i, YR, f"Y{i}")
        o = post[i - 4] if i >= 4 else []
        m[0](); R_(o[:2]); m[1](); R_(o[2:])
    fs(14)
    for i in range(4, 8):
        R_(post[i])
        out(i - 4)
    for ii in range(4, 8): out(ii)

def ER(i):
    return (96 + 8 * i) if i < 4 else (32 + 8 * (i - 4))

def areg(k, nb):
    return ARING[k % NA] + 4 * nb

def aload(a, q, k, nb):
    s = k % 8
    if nb == 0:
        if k % 16 < 8:
            a.e(f"s_add_u32 s59, {'s52' if k < 16 else 's53'}, {524288 + 32768*(s//4) + 4096*(s%4)}")
        else:
            a.e(f"s_add_u32 s59, {'s50' if k < 16 else 's51'}, {4096*s}")
    r = areg(k, nb)
    q.v(f"buffer_load_dwordx4 a[{r}:{r+3}], v3, s[12:15], s59 offen offset:{1024*nb} sc1", f"A{k}")

def gen_attn(a, name, stamp=False, opt=None):
    dg = [3 + (15 * i) // 4 for i in range(16)]
    opt = dict(dict(ps=1, xe=1, qw=62, dg=dg, mg=[2, 17, 32, 47, 60], rg=[g for g in range(8, 60) if g not in dg][:32], rot=4,
                    kg_=list(range(8, 16)) + list(range(24, 32)), qbe=57, pbe=58, pvg=[4, 57, 60, 60, 60, 61, 61, 61]), **(opt or {}))
    OOL[:] = []
    DROP[:] = opt.get('drop', [])
    ALIGN[0] = opt.get('al', 0)
    Fine.op = 's_memtime' if opt.get('cyc') else 's_memrealtime'
    nP = 16
    L = lambda s: f"{name}_{s}"
    st = Stamper(a, stamp in (1, 5))
    fs = Fine(a, stamp == 2)
    ff = Fine(a, stamp == 3)
    fp = Fine(a, stamp == 6)
    kernel_begin(a, name)
    a.e("s_cmp_ge_u32 s2, 256")
    a.e(f"s_cbranch_scc1 {L('end')}")
    a.e(f"s_load_dwordx2 s[4:5], s[0:1], {KA['ws']}")
    a.e(f"s_load_dwordx2 s[6:7], s[0:1], {KA['x']}")
    a.e(f"s_load_dwordx2 s[40:41], s[0:1], {KA['wq']}")
    a.e(f"s_load_dwordx2 s[8:9], s[0:1], {KA['wk']}")
    a.e(f"s_load_dwordx2 s[96:97], s[0:1], {KA['wup']}")
    a.e(f"s_load_dwordx2 s[44:45], s[0:1], {KA['dw']}")
    a.e(f"s_load_dwordx4 s[48:51], s[0:1], {KA['out']}")
    a.e(f"s_load_dwordx4 s[52:55], s[0:1], {KA['wv']}")
    a.e(f"s_load_dwordx4 s[56:59], s[0:1], {KA['wdn']}")
    a.e("s_and_b32 s20, s2, 7")
    a.e("s_lshl_b32 s20, s20, 5")
    a.e("s_lshr_b32 s21, s2, 3")
    a.e("s_add_u32 s31, s20, s21")
    if opt.get("sw62", 1):
        a.e("s_and_b32 s20, s31, 62")
        a.e("s_cmp_eq_u32 s20, 60")
        a.e("s_cselect_b32 s20, 64, 0")
        a.e("s_xor_b32 s31, s31, s20")
    if opt.get("map") == 1:
        a.e("s_and_b32 s20, s2, 6")
        a.e("s_lshl_b32 s20, s20, 5")
        a.e("s_lshl_b32 s21, s21, 1")
        a.e("s_add_u32 s31, s20, s21")
        a.e("s_and_b32 s20, s2, 1")
        a.e("s_add_u32 s31, s31, s20")
    a.e("s_lshr_b32 s21, s31, 7")
    a.e("s_and_b32 s22, s31, 1")
    a.e("s_bfe_u32 s23, s31, 0x60001")
    a.e("v_lshrrev_b32 v1, 6, v0")
    a.e("v_and_b32 v2, 63, v0")
    a.e("v_readfirstlane_b32 s16, v1")
    a.e("v_lshlrev_b32 v3, 4, v2")
    a.e("s_mul_i32 s24, s21, 4096000")
    N0 = opt.get("n0", 62)
    a.e(f"s_mul_i32 s25, s22, {125 - 2*N0}")
    a.e(f"s_add_i32 s25, s25, {N0}")
    a.e("s_lshl_b32 s27, s23, 16")
    a.e("s_waitcnt lgkmcnt(0)")
    st(0); ff(0)
    def fin_srd(d, n):
        a.e(f"s_and_b32 s{d+1}, s{d+1}, 0xffff")
        a.e(f"s_mov_b32 s{d+2}, {n}")
        a.e(f"s_mov_b32 s{d+3}, 0x00020000")
    q = Seq(a)
    srd_off(a, 32, 6, "s24", 4096000)
    a.e("v_lshrrev_b32 v4, 3, v2")
    a.e("v_and_b32 v5, 7, v2")
    a.e("v_lshlrev_b32 v5, 4, v5")
    a.e("v_lshl_add_u32 v4, v4, 10, v5")
    a.e("s_lshl_b32 s26, s16, 14")
    a.e("s_add_u32 s26, s26, s27")
    a.e("s_lshl_b32 s28, s22, 9")
    a.e("s_add_u32 s26, s26, s28")
    a.e("v_mov_b32 v1, v4")
    a.e("s_mov_b32 s20, s26")
    def xld(s_):
        if s_ % 4 == 0: a.e(f"s_xor_b32 s7, s20, {8192*(s_//8) + 512*((s_//4)%2)}")
        q.v(f"buffer_load_dwordx4 v[{16+4*s_}:{19+4*s_}], v1, s[32:35], s7 offen offset:{128*(s_%4)} {opt.get('xmod', 'nt')}", f"x{s_}")
    NX = opt.get("nx", 16)
    for s_ in range(NX): xld(s_)
    opt["xrest"] = [lambda s_=s_: xld(s_) for s_ in range(NX, 16)]
    fin_srd(96, 1048576)
    touches(a, q, L, opt)
    fin_srd(40, 524288); fin_srd(8, 524288); fin_srd(44, 5120)
    make_srd(a, 12, 4, 0x4000000)
    make_srd(a, 92, 50, 256)
    srd_off(a, 36, 48, "s24", 4096000)
    mi = m_issue(a, q)
    def clear():
        a.e("v_mov_b32 v14, 0")
        a.e("v_lshlrev_b32 v13, 2, v2")
        a.e("s_lshl_b32 s26, s31, 2")
        a.e("s_add_u32 s26, s26, s16")
        a.e("s_lshl_b32 s28, s26, 8")
        a.e(f"s_add_u32 s28, s28, {WS_MX}")
        q.v("buffer_store_dword v14, v13, s[12:15], s28 offen sc1", "St")
        a.e("s_lshl_b32 s28, s31, 5")
        a.e("s_add_u32 s28, s28, s16")
        a.e("s_lshl_b32 s28, s28, 2")
        a.e(f"s_add_u32 s28, s28, {WS_FL}")
        a.e("v_and_b32 v13, 48, v2")
        a.e("s_getreg_b32 s26, hwreg(HW_REG_XCC_ID, 0, 4)")
        a.e("v_cmp_eq_u32 vcc, 48, v13")
        a.e("v_mov_b32 v14, s26")
        a.e("s_nop 0")
        a.e("v_cndmask_b32 v14, 0, v14, vcc")
        q.v("buffer_store_dword v14, v13, s[12:15], s28 offen sc1", "St")
    a.e("s_cmp_ge_u32 s23, 63")
    a.e(f"s_cbranch_scc1 {L('aux')}")
    def emit_aux(q0=q, vm0=list(q.vm)):
        a.label(L("aux"))
        q0.vm, q0.lg = list(vm0), []
        for f in mi: f()
        q0.v("buffer_load_dword v0, v7, s[44:47], 0 offen")
        m_addr(a)
        mfin = m_tile(a, q0)
        mfin()
        q0.all()
        a.e("s_barrier")
        signal(a, L, "sig1a", 0, 0)
        signal(a, L, "sig2a", 1, 8)
        signal(a, L, "sig3a", 2, 4)
        a.e("s_lshl_b32 s20, s21, 1")
        a.e("s_add_u32 s20, s20, s22")
        gen_aux(a, L, st, ff, opt)
        signal(a, L, "sig4a", 0, 12, shard=False)
        for k in range(5, 7): st(k)
        for k in range(15): fs(k)
        if stamp in (4, 6):
            for k in range(16): Fine(a, True)(k)
        for k in range(9, 15): ff(k)
        a.e(f"s_branch {L('fin')}")
    qk_part, pv_part = gen_front(a, q, L, st, ff, mi, clear, opt)
    qf = q
    qk_part()
    def tail_consts():
        t = Asm()
        t.e("s_lshl_b32 s26, s22, 2")
        t.e("s_add_u32 s26, s26, s16")
        t.e("s_lshl_b32 s53, s26, 16")
        t.e(f"s_add_u32 s53, s53, {WS_W3}")
        t.e("s_xor_b32 s52, s53, 0x40000")
        t.e("s_lshl_b32 s58, s26, 7")
        t.e("s_add_u32 s58, s58, s27")
        t.e("s_xor_b32 s54, s31, 1")
        t.e("s_lshl_b32 s54, s54, 3")
        t.e("s_add_u32 s54, s54, s16")
        t.e("s_lshl_b32 s54, s54, 13")
        t.e(f"s_add_u32 s54, s54, {WS_GU + 32768}")
        t.e("s_add_u32 s55, s54, 4096")
        t.e("s_lshl_b32 s26, s22, 15")
        t.e("s_add_u32 s50, s52, s26")
        t.e("s_add_u32 s51, s53, s26")
        t.e("s_lshl_b32 s26, s22, 14")
        t.e("s_add_u32 s52, s52, s26")
        t.e("s_add_u32 s53, s53, s26")
        t.e("s_add_u32 s26, s25, 3")
        t.e("s_and_b32 s26, s26, 3")
        t.e("s_lshl_b32 s48, s26, 15")
        t.e("s_add_u32 s26, s25, 1")
        t.e("s_and_b32 s26, s26, 3")
        t.e("s_lshl_b32 s49, s26, 15")
        t.e("s_lshl_b32 s56, s31, 5")
        t.e("s_add_u32 s56, s56, s16")
        t.e("s_lshl_b32 s56, s56, 2")
        t.e(f"s_add_u32 s56, s56, {WS_FL}")
        t.e("s_xor_b32 s57, s56, 128")
        return [x.strip() for x in t.lines]
    a.e("s_mov_b32 s17, s25")
    a.e(f"s_mov_b32 s101, {f2u(-BIG)}")
    NEAR = ["s_cmp_eq_u32 s21, 0", "s_cselect_b32 s46, s14, 0", "s_mov_b64 s[44:45], s[12:13]"]
    def guard(r):
        return [f"v_add_f32 v{r}, v{r}, v{r+1}", f"v_cmp_nle_f32 vcc, s101, v{r}", "s_cmp_eq_u32 s101, 0", "s_cselect_b64 s[28:29], 0, vcc",
                "s_cmp_lg_u64 s[28:29], 0", f"s_cbranch_scc1 {L('redo')}"]

    def dma_group():
        return "s_and_b32 m0, s18, 0x1ffff", [f"buffer_load_dwordx4 v3, s[8:11], s18 offen offset:{1024*j} {opt.get('kvmod', 'sc1')} lds" for j in range(4)]
    def dma_tile():
        for g in range(4):
            pre, ld = dma_group()
            a.e(pre); a.e("s_nop 0")
            for x in ld: a.e(x)
            a.e(f"s_add_u32 s18, s18, {4096 if g < 3 else 32768 - 3*4096}")
    def place_dma(fill, gaps):
        k = 0
        for g in range(4):
            pre, ld = dma_group()
            fill.setdefault(gaps[k] - 1, []).append(pre)
            for j in range(4):
                fill.setdefault(gaps[k], []).append(ld[j]); k += 1
            fill.setdefault(gaps[k - 1] + 1, []).append(f"s_add_u32 s18, s18, {4096 if g < 3 else 32768 - 3*4096}")
    auxl = cnt_load(4, "v11")
    auxc = ["v_cmp_le_u32 vcc, v7, v14"] + CNT_OK[1:]

    KB = [32, 96]; S = 160; NEGM = 176; E = 192; PK = 200; LS = 204
    VK = 8; VPW = 9; TMP = 10
    MX0 = 208
    def qk_setup():
        a.e("v_and_b32 v4, 15, v2")
        a.e("v_lshrrev_b32 v5, 4, v2")
        a.e("v_and_b32 v6, 0x27, v2")
        a.e("v_and_b32 v7, 8, v2")
        a.e("v_lshl_add_u32 v6, v7, 1, v6")
        a.e("v_and_b32 v7, 16, v2")
        a.e("v_lshrrev_b32 v7, 1, v7")
        a.e("v_add_lshl_u32 v6, v6, v7, 4")
        a.e("s_lshl_b32 s29, s16, 14")
        a.e(f"v_add_u32 v{VK}, s29, v6")
        a.e("s_lshl_b32 s29, s16, 11")
        a.e(f"s_add_u32 s29, s29, {LDS_P}")
        a.e(f"v_lshl_add_u32 v{VPW}, v2, 3, s29")
        for i in range(4):
            a.e(f"v_mov_b32 v{LS+i}, 0")
        for i in range(4):
            a.e(f"v_mov_b32 v{MX0+i}, 0xff800000")
    qk_setup()
    def kread(par, s, imm):
        r = KB[par] + 4 * s
        return f"ds_read_b128 v[{r}:{r+3}], v{VK} offset:{imm + 1024*s}"
    def chain(par, qb, c0):
        out = []
        for n in range(16):
            s = 15 - n if (qb % 2 and c0 != "0" and opt.get("zz", 1)) else n
            k = KB[par] + 4 * s; q = 64 * qb + 4 * s; d = S + 4 * qb
            c = c0 if n == 0 else f"v[{d}:{d+3}]"
            out.append(f"{M16} v[{d}:{d+3}], v[{k}:{k+3}], a[{q}:{q+3}], {c}")
        return out
    q = Seq(a)
    mf = [m for qb in range(4) for m in chain(0, qb, "0")]
    ST = 212
    tc = tail_consts() + [
        "s_mul_i32 s28, s16, 34", "s_lshl_b32 s29, s23, 6", "s_add_u32 s28, s28, s29", "s_sub_u32 s28, s28, 2",
        f"v_add_u32 v{ST+16}, s28, v2",
        f"v_max_i32 v{ST+17}, 0, v{ST+16}", f"v_min_i32 v{ST+17}, {T-1}, v{ST+17}", f"v_lshrrev_b32 v{ST+18}, 6, v{ST+17}", f"v_and_b32 v{ST+17}, 63, v{ST+17}",
        f"v_lshlrev_b32 v{ST+17}, 3, v{ST+17}", f"v_lshl_add_u32 v{ST+17}, v{ST+18}, 12, v{ST+17}",
        "s_lshr_b32 s6, s31, 7", "s_lshl_b32 s6, s6, 18", f"s_add_u32 s6, s6, {WS_ST}",
        "s_lshl_b32 s28, s16, 1", "s_add_u32 s28, s28, s23", "s_sub_u32 s28, s28, 1", "s_max_i32 s28, s28, 0", "s_min_i32 s28, s28, 62",
        "s_sub_u32 s28, s28, s23", "s_lshl_b32 s28, s28, 1", "s_add_u32 s28, s28, s31", "s_lshl_b32 s28, s28, 16",
        "s_xor_b32 s29, s16, 1", f"s_mul_i32 s29, s29, {62*512}", "s_add_u32 s28, s28, s29", f"s_add_u32 s7, s28, {WS_GU}",
        "s_lshl_b32 s29, s16, 10", f"s_add_u32 s42, s29, {LDS_HALO}",
        "s_xor_b32 s28, s31, 1", "s_lshl_b32 s28, s28, 1", "s_add_u32 s28, s28, s16", "s_lshl_b32 s28, s28, 9", f"s_add_u32 s28, s28, {WS_MX}",
        f"v_lshl_add_u32 v{ST+18}, v2, 3, s28", f"v_writelane_b32 v{ST+18}, s57, 1",
        f"s_mul_i32 s28, s16, {34*8}", f"s_add_u32 s28, s28, {LDS_STT}", f"v_lshl_add_u32 v{ST+19}, v2, 3, s28"]
    t_ = Asm()
    t_.e("s_lshl_b32 s28, s16, 5")
    conv_addr(t_, 16, "s28")
    for x in ["s_lshl_b32 s28, s16, 9", "s_lshl_b32 s41, s31, 10", "s_add_u32 s41, s41, s28", f"s_add_u32 s41, s41, {WS_MX}",
              f"s_add_u32 s28, s28, {LDS_ML}", "v_lshlrev_b32 v244, 3, v2", "v_add_u32 v245, s28, v244", f"v_add_u32 v246, {LDS_ML + 4}, v244",
              "s_mov_b32 s43, 0xffff0000"]: t_.e(x)
    tc += [x.strip() for x in t_.lines]
    qf.wait("kv0", "qd")
    qf.all(vm=False)
    fy = Fine(a, opt.get("fy")); fy(9)
    a.e("s_barrier")
    fy(10)
    st(2); ff(10)
    if opt.get("qe"):
        for n in range(12): q.l(kread(0, n, 0), f"K{n}")
        for n in range(64):
            q.e(mf[n], need=(f"K{n}",))
            if n < 4: q.l(kread(0, 12 + n, 0), f"K{12+n}")
            elif tc: a.e(tc.pop(0))
    else:
        a.e(f"v_add_u32 v7, {LDS_XS}, v3")
        rd = []
        for n in range(64):
            qb, s = n // 16, n % 16
            rd.append((f"ds_read_b128 a[{64*qb+4*s}:{64*qb+4*s+3}], v7 offset:{16384*((s%8)//2) + 8192*(s//8) + 2048*qb + 1024*(s%2)}", f"Q{n}"))
            if qb == 0: rd.append((kread(0, s, 0), f"Q{n}"))
        for _ in range(14): q.l(*rd.pop(0))
        for n in range(64):
            if n % 2 == 0: q.wait(f"Q{n+1}")
            a.e(mf[n])
            if opt.get("q1") and n % 3 == 0 and n < 48:
                i = n // 3
                if i % 4 == 0:
                    a.e(f"s_add_u32 m0, s19, {32768 + 1024*i}")
                    a.e(f"s_add_u32 s18, s19, {32768 + 1024*i}")
                a.e(f"buffer_load_dwordx4 v3, s[8:11], s18 offen offset:{1024*(i%4)} sc1 lds")
            for _ in range(2 if n < 14 else 1):
                if rd: q.l(*rd.pop(0))
            for _ in range(0 if n < 14 else 2 if rd else 3):
                if tc: a.e(tc.pop(0))
        a.label(L("qk_again"))
        fy(11)
        a.e("s_barrier")
        fy(12)
    assert not tc
    n0_ = len(a.lines)
    a.e("s_nop 7")
    for qb in range(4):
        d = S + 4 * qb
        a.e(f"v_max3_f32 v{E+qb}, v{d}, v{d+1}, v{d+2}")
        a.e(f"v_max3_f32 v{E+qb}, v{E+qb}, v{d+3}, v{MX0+qb}")
    def group_reduce(r, t, op):
        for sw in ("v_permlane16_swap_b32", "v_permlane32_swap_b32"):
            for qb in range(4):
                a.e(f"v_mov_b32 v{t+qb}, v{r+qb}")
            a.e("s_nop 1")
            for qb in range(4):
                a.e(f"{sw} v{r+qb}, v{t+qb}")
            a.e("s_nop 1")
            for qb in range(4):
                a.e(f"{op} v{r+qb}, v{r+qb}, v{t+qb}")
    group_reduce(E, E + 4, "v_max_f32")
    a.e("s_lshl_b32 s29, s16, 8")
    a.e(f"s_add_u32 s29, s29, {LDS_MX}")
    a.e(f"v_lshl_add_u32 v{TMP}, v4, 4, s29")
    a.e(f"ds_write_b128 v{TMP}, v[{E}:{E+3}]")
    a.e(f"v_xor_b32 v{TMP}, 256, v{TMP}")
    if opt.get("q3", 0):
        mx = a.lines[n0_:]; del a.lines[n0_:]
        a.e("s_lshl_b32 s19, s16, 14")
        for n, x in enumerate(mx):
            if n in (0, 13, 27, len(mx) - 1):
                i = 4 * (0, 13, 27, len(mx) - 1).index(n)
                a.e(f"s_add_u32 m0, s19, {98304 + 1024*i}")
                a.e(f"s_add_u32 s18, s19, {98304 + 1024*i}")
                for j in range(4): a.e(f"buffer_load_dwordx4 v3, s[8:11], s18 offen offset:{1024*j} sc1 lds")
            a("    s_nop 2" if n == 0 else x)
    a.e(f"s_waitcnt vmcnt({16 if opt.get('q3', 0) else 0}) lgkmcnt(0)")
    fy(13)
    a.e("s_barrier")
    fy(14)
    a.e(f"ds_read_b128 v[{E+4}:{E+7}], v{TMP}")
    for s in range(8):
        a.e(kread(1, s, 32768))
    a.e("s_waitcnt lgkmcnt(8)")
    for qb in range(4):
        a.e(f"v_max_f32 v{E+qb}, v{E+qb}, v{E+4+qb}")
    for qb in range(4):
        for j in range(4):
            a.e(f"v_sub_f32 v{NEGM+4*qb+j}, 0, v{E+qb}")
    a.e(f"v_mov_b32 v242, v{NEGM}")
    a.e("s_waitcnt lgkmcnt(4)")
    for s in range(8, 16):
        a.e(kread(1, s, 32768))
        if s in (9, 11, 13):
            qb = (s - 7) // 2
            a.e(f"v_mov_b32_dpp v242, v{NEGM+4*qb} quad_perm:[0,1,2,3] row_mask:{1 << qb:#x} bank_mask:0xf")
    for qb in range(4):
        for j in range(4):
            a.e(f"v_add_f32 v{S+4*qb+j}, v{S+4*qb+j}, v{NEGM+4*qb}")
    def softmax_ops(qb, par):
        e = E + 4 * (qb % 2); p = PK + 2 * (qb % 2); d = S + 4 * qb
        ex = [f"v_exp_f32{opt.get('e64', '')} v{e+j}, v{d+j}" for j in range(4)]
        ad = [f"v_add_f32 v{LS+qb}, v{LS+qb}, v{e+j}" for j in range(4)]
        cv = [f"v_cvt_pk_bf16_f32 v{p+j}, v{e+2*j}, v{e+2*j+1}" for j in range(2)]
        wr = f"ds_write_b64 v{VPW}, v[{p}:{p+1}] offset:{par*4096 + qb*512}"
        return ex, ad, cv, wr
    ex, ad, cv, wr = softmax_ops(0, 0)
    for x in ex + ["s_nop 0"] + cv + ad + [wr]: a.e(x)
    a.e("s_waitcnt lgkmcnt(1)")
    fill = {}
    ops = []
    for qb in range(1, 4):
        ex, ad, cv, wr = softmax_ops(qb, 0)
        ops += ex + [ad[0]] + cv + ad[1:] + [wr]
    for i, x in enumerate(ops):
        fill.setdefault(i * 15 // len(ops), []).append(x)
    ROT = opt.get("rot", 0)
    emit_interval(a, chain(1, 0, f"v[{NEGM}:{NEGM+3}]") + chain(1, 1, f"v[{NEGM+4}:{NEGM+7}]")[:ROT], fill)
    a.e("s_waitcnt vmcnt(0) lgkmcnt(0)")
    a.e("s_sub_u32 s17, s17, 1")
    fy(15)
    a.e("s_barrier")

    XT = ["buffer_load_dword v0, v7, s[32:35], s40 offen", "s_add_u32 s40, s40, 1024"]
    def qk_interval(par, lo=0, hi=None):
        mf = []
        for c in range(5):
            qb = (c + 1) % 4
            mf += chain(par if c < 3 else par ^ 1, qb, f"v[{NEGM+4*qb}:{NEGM+4*qb+3}]")
        mf = mf[ROT:64 + ROT]
        fill = {}
        F_ = lambda g, x: fill.setdefault(g, []).append(x)
        rgaps = opt.get("kg_", [1, 2, 3, 12, 13, 14, 16, 17, 18, 28, 29, 30, 32, 33, 34, 35])
        if par == 1: F_(rgaps[0] - 1, f"v_xor_b32 v{VK}, 0x10000, v{VK}")
        imm = 32768 * (par ^ 1)
        for s in range(16):
            F_(rgaps[s], kread(par ^ 1, s, imm))
        sm = opt.get("sm", [4, 5, 6, 7, 8, 8, 9, 10, 10, 11, 11])
        for c in range(4):
            ex, ad, cv, wr = softmax_ops(c, par)
            for g, x in zip(sm, ex + cv + [wr] + ad): F_(16 * c + g - ROT, x)
        kw = 47 - ROT
        nwr = sum(1 for c in range(4) if rgaps[-1] <= 16 * c + sm[6] - ROT <= kw)
        F_(kw, f"s_waitcnt lgkmcnt({nwr})")
        F_(kw + 1, "s_sub_u32 s17, s17, 1")
        if par == 1:
            F_(kw - 3, "s_cmp_lt_u32 s17, s40")
            fill.setdefault(kw - 2, []).extend([f"s_cbranch_scc1 {L('touch')}", L("touch_ret") + ":"])
        if stamp == 7:
            F_(kw + 2, "s_mov_b32 m0, s17"); F_(kw + 3, "v_writelane_b32 v240, s60, m0"); F_(kw + 3, "s_memtime s[60:61]")
        if opt.get("kt"):
            F_(opt["kt"][1], "buffer_load_dword v0, v3, s[8:11], s41 offen sc1"); F_(46, "s_add_u32 s41, s41, 32768")
        XE = opt.get("xe", 0)
        F_(opt.get("xg", 57) - 1, "s_cmp_eq_u32 s17, 0")
        F_(opt.get("xg", 57), f"s_cbranch_scc1 {L('qk_exit')}")
        F_(opt.get("qw", 63), "s_waitcnt lgkmcnt(0)"); F_(63, "s_barrier")
        for c in range(4):
            last, first = 16 * c - 1 - ROT, 16 * c + sm[0] - ROT
            n = first - last + sum(len([x for x in fill.get(g % 64, []) if not x.endswith(":")]) for g in range(last, first))
            g = last + 2
            while n < 8:
                F_(g % 64, "s_nop 0"); n += 1; g += 1
                assert g <= first
        emit_interval(a, mf, fill, lo, hi)

    if stamp == 7:
        a.e("v_mov_b32 v240, 0")
        a.e("s_memtime s[60:61]")
    a.e("v_and_b32 v11, 3, v2")
    a.e("v_lshlrev_b32 v11, 6, v11")
    a.e("v_mov_b32 v7, 64")
    a.e("v_writelane_b32 v11, 8, 4")
    a.e("v_writelane_b32 v7, 4, 4")
    if opt.get("kt"):
        a.e("s_lshr_b32 s41, s2, 4")
        a.e("s_lshl_b32 s41, s41, 1")
        a.e("s_add_u32 s41, s41, s16")
        a.e("s_lshl_b32 s41, s41, 10")
        a.e(f"s_add_u32 s41, s41, {32768 * opt['kt'][0]}")
    a.e("s_lshr_b32 s40, s31, 1")
    a.e(f"s_and_b32 s40, s40, {opt.get('xs', 15)}")
    a.e("s_lshl_b32 s40, s40, 1")
    a.e(f"s_add_u32 s40, s40, {opt.get('xb', 12)}")
    st(3); ff(11)
    QB = opt.get("qbe", 0)
    if QB:
        a.e(f"s_branch {L('qk_in')}")
        a(".p2align 6")
        a.label(L("qk_loop"))
        XE = opt.get("xe", 0)
        qk_interval(0, QB)
        if not XE: a.e(f"s_cbranch_scc1 {L('qk_done')}")
        a.label(L("qk_in"))
        qk_interval(1)
        if not XE: a.e(f"s_cbranch_scc1 {L('qk_done')}")
        qk_interval(0, 0, QB)
        a.e(f"s_branch {L('qk_loop')}")
        a.label(L("qk_exit"))
    else:
        a(".p2align 6")
        a.label(L("qk_loop"))
        qk_interval(1)
        a.e(f"s_cbranch_scc1 {L('qk_done')}")
        qk_interval(0)
        a.e(f"s_cbranch_scc0 {L('qk_loop')}")
    a.label(L("qk_done"))
    def tl(srd, so):
        a.e("v_lshlrev_b32 v12, 7, v2")
        a.e(f"buffer_load_dword v0, v12, s[{srd}:{srd+3}], {so} offen")
    def b_code():
        a.e("s_getpc_b64 s[28:29]")
        a.label(L("pc0"))
        a.e(f"s_sub_u32 s28, s28, {L('pc0')} - {L('qk_done')}")
        a.e("s_subb_u32 s29, s29, 0")
        a.e("s_lshr_b32 s30, s2, 3")
        a.e("s_lshl_b32 s30, s30, 1")
        a.e("s_add_u32 s30, s30, s16")
        a.e("s_lshl_b32 s30, s30, 10")
        a.e("v_lshl_add_u32 v12, v2, 4, s30")
        a.e(f"v_min_u32 v12, {L('end')} - {L('qk_done')}, v12")
        a.e("global_load_dword v0, v12, s[28:29]")
    def b_w(part):
        def f():
            a.e("s_lshr_b32 s30, s2, 3")
            a.e("s_lshl_b32 s30, s30, 1")
            a.e("s_add_u32 s30, s30, s16")
            a.e("s_lshl_b32 s30, s30, 13")
            a.e(f"s_add_u32 s30, s30, {WS_W3 + 524288*part}")
            tl(12, "s30")
        return f
    foldl = "buffer_load_dword v13, off, s[92:95], 0 offset:12 sc1"
    def b_c3():
        a.e("s_waitcnt vmcnt(0)")
        poll(a, Seq(a), L, "qk_c3", [auxl], auxc, "aux", slp=16)
    def b_c4():
        a.e("s_waitcnt vmcnt(0)")
        poll(a, Seq(a), L, "qk_c4", [foldl], ["v_readfirstlane_b32 s28, v13", "s_cmp_ge_u32 s28, 4"], "aux", slp=16)
    def b_small():
        a.e("s_mov_b32 m0, s42")
        for c in range(8):
            a.e(f"buffer_load_dwordx2 v[{ST+2*c}:{ST+2*c+1}], v{ST+17}, s[12:15], s6 offen offset:{512*c} sc1")
        a.e("buffer_load_dwordx4 v3, s[12:15], s7 offen sc1 lds")
        a.e(f"buffer_load_dword v0, v{ST+18}, s[12:15], 0 offen sc1")
    def b_stat():
        a.e("s_waitcnt vmcnt(0)")
        for ct in range(1, 8):
            a.e(f"v_pk_add_f32 v[{ST}:{ST+1}], v[{ST}:{ST+1}], v[{ST+2*ct}:{ST+2*ct+1}]")
        a.e(f"v_mul_f32 v{ST}, {f2u(1/512)}, v{ST}")
        a.e(f"v_mul_f32 v{ST+1}, {f2u(1/512)}, v{ST+1}")
        a.e(f"v_fma_f32 v{ST+1}, -v{ST}, v{ST}, v{ST+1}")
        a.e(f"v_max_f32 v{ST+1}, 0, v{ST+1}")
        a.e(f"v_add_f32 v{ST+1}, {f2u(1e-5)}, v{ST+1}")
        a.e(f"v_rsq_f32 v{ST+1}, v{ST+1}")
        a.e(f"v_cmp_gt_u32 vcc, {T}, v{ST+16}")
        a.e(f"v_mul_f32 v{ST}, v{ST}, v{ST+1}")
        a.e(f"v_sub_f32 v{ST}, 0, v{ST}")
        a.e(f"v_cndmask_b32 v{ST+2}, 0, v{ST+1}, vcc")
        a.e(f"v_cndmask_b32 v{ST+3}, 0, v{ST}, vcc")
        a.e(f"ds_write_b64 v{ST+19}, v[{ST+2}:{ST+3}]")
    def b_x(r0):
        def f():
            a.e("s_lshl_b32 s30, s22, 1")
            a.e("s_add_u32 s30, s30, s16")
            a.e("s_lshl_b32 s30, s30, 14")
            a.e("s_add_u32 s30, s30, s27")
            a.e(f"s_add_u32 s30, s30, {r0*1024}")
            tl(32, "s30")
        return f
    tb_fns = B = dict(code=b_code, l3=lambda: a.e(auxl), c3=b_c3, small=b_small, stat=b_stat, x0=b_x(0), x8=b_x(8), l4=lambda: a.e(foldl), c4=b_c4, w1=b_w(1), w0=b_w(0))
    st(4); fs(0); ff(13); fp(0)
    if stamp == 7:
        a.e("s_lshl_b32 s26, s2, 1")
        a.e("s_add_u32 s26, s26, s16")
        a.e("s_lshl_b32 s26, s26, 8")
        a.e(f"s_add_u32 s26, s26, {0x3F00000}")
        a.e("v_lshlrev_b32 v241, 2, v2")
        a.e("buffer_store_dword v240, v241, s[12:15], s26 offen")
    q = Seq(a)
    cv = Conv(a, q, 16)
    a.e(f"v_permlane16_swap_b32 v{LS}, v{LS+1}")
    a.e(f"v_permlane16_swap_b32 v{LS+2}, v{LS+3}")
    cv.taps()
    a.e(f"v_add_f32 v{LS}, v{LS}, v{LS+1}")
    a.e(f"v_add_f32 v{LS+2}, v{LS+2}, v{LS+3}")
    tb_fns["stat"]()
    a.e(f"v_permlane32_swap_b32 v{LS}, v{LS+2}")
    a.e("s_nop 0")
    a.e(f"v_add_f32 v243, v{LS}, v{LS+2}")
    a.e("v_or_b32 v243, 0x80000000, v243")
    q.l("ds_write_b64 v245, v[242:243]")
    q.all(vm=False)
    fs(1)
    a.e("s_barrier")
    fs(2)
    q.l(f"ds_read2st64_b32 v[{E}:{E+1}], v246 offset0:0 offset1:2", "lsum")
    cv.prep()
    q.wait("lsum")
    for x in guard(E): a.e(x)
    release(a, q, L, "rm", None, "buffer_store_dwordx2 v[242:243], v244, s[12:15], s41 offen")
    fs(3)
    PF = opt.get("pf", 10); n = 0
    for j in range(20):
        if j in (0, 2, 4, 6, 8, 11, 14, 17): fp(1 + (0, 2, 4, 6, 8, 11, 14, 17).index(j))
        ex = []
        if j >= opt.get("qa", 6):
            for _ in range(3):
                if n < 4 * PF:
                    ex.append(lambda n=n: aload(a, q, n // 4, n % 4)); n += 1
        cv.row(j, ex)
    while n < 4 * PF:
        aload(a, q, n // 4, n % 4); n += 1
    fs(4)
    a.e(f"s_branch {L('tail')}")
    a.label(L("touch"))
    THR = 2 * int(opt.get("blocks", "2")[0]) + 2
    a.e(f"s_cmp_eq_u32 s40, {THR}")
    a.e(f"s_cbranch_scc1 {L('touchb')}")
    a.e(f"s_mov_b32 s40, {THR}")
    B["x0"](); B["x8"]()
    a.e(f"s_branch {L('touch_ret')}")
    a.label(L("touchb"))
    a.e("s_lshr_b32 s26, s17, 1")
    spec = opt.get("blocks", "2:l3 1:c3,small")
    blocks = {int(x.split(":")[0]): [B[y] for y in x.split(":")[1].split(",")] for x in spec.split()}
    for kx, fns in blocks.items():
        a.e(f"s_cmp_lg_u32 s26, {kx}")
        a.e(f"s_cbranch_scc1 {L('touch%d' % kx)}")
        for f in fns: f()
        a.e(f"s_branch {L('touch_ret')}")
        a.label(L("touch%d" % kx))
    a.e(f"s_branch {L('touch_ret')}")

    VB = [16, 80]; PR = [144, 160]
    VV = 8; VPR = 9; PH = opt.get('ph', 2)
    def oreg(db, qb):
        return (f"a[{4*qb}:{4*qb+3}]", None) if db == 0 else (f"v[{16*db+4*qb}:{16*db+4*qb+3}]", 16 * db + 4 * qb)
    def vread(par, db, kb):
        r = VB[par] + 4 * db + 2 * kb
        return f"ds_read_b64_tr_b16 a[{r}:{r+1}], v{VV if db < 8 else 11} offset:{32768*par + 16384*kb + 512*(db%8)}"
    def pvo(pair): return a2s(pair) if opt.get("o1", 1) else [(e, t) for e in range(2) for t in range(4)]
    def pvm(par, pair, first=False):
        out = []
        for e, qb in pvo(pair):
            db = 2 * pair + e
            d = oreg(db, qb)[0]; v = VB[par] + 4 * db; p = PR[par] + 4 * qb
            out.append(f"{M16} {d}, a[{v}:{v+3}], a[{p}:{p+3}], {'0' if first else d}")
        return out
    def pv_setup():
        a.e("s_sub_u32 s19, s16, 2")
        for x in tail_consts(): a.e(x)
        a.e("v_lshrrev_b32 v4, 5, v2")
        a.e("v_lshlrev_b32 v4, 8, v4")
        a.e("v_and_b32 v5, 2, v2")
        a.e("v_lshl_add_u32 v4, v5, 6, v4")
        a.e("v_and_b32 v5, 28, v2")
        a.e("v_lshl_add_u32 v4, v5, 2, v4")
        a.e("v_and_b32 v5, 1, v2")
        a.e("v_lshl_add_u32 v4, v5, 3, v4")
        a.e("s_lshl_b32 s29, s19, 13")
        a.e("s_lshl_b32 s28, s22, 12")
        a.e("s_add_u32 s28, s28, s29")
        a.e("v_add_u32 v11, s28, v4")
        a.e(f"v_xor_b32 v{VV}, 0x1000, v11")
        a.e("s_lshl_b32 s29, s19, 12")
        a.e("s_add_u32 s29, s29, s48")
        a.e("v_add_u32 v10, s29, v3")
        a.e("s_lshl_b32 s40, s31, 2")
        a.e("s_add_u32 s40, s40, s19")
        a.e("s_lshl_b32 s40, s40, 14")
        a.e(f"s_add_u32 s40, s40, {WS_GU + 32768}")
        a.e("s_lshl_b32 s28, s31, 16")
        a.e(f"s_add_u32 s28, s28, {WS_GU}")
        a.e("s_sub_u32 s28, s28, s10")
        a.e("s_add_u32 s98, s4, s28")
        a.e("s_addc_u32 s99, s5, 0")
        a.e("s_and_b32 s99, s99, 0xffff")
        a.e("s_add_u32 s100, s10, 65536")
        if opt.get("xr", 1) == 2:
            a.e("s_lshr_b32 s28, s2, 3")
            a.e("s_lshl_b32 s28, s28, 15")
            a.e(f"s_add_u32 s28, s28, {WS_W3}")
            a.e("s_sub_u32 s28, s28, s100")
            a.e("s_add_u32 s96, s4, s28")
            a.e("s_addc_u32 s97, s5, 0")
            a.e("s_and_b32 s97, s97, 0xffff")
            a.e("s_add_u32 s3, s100, 32768")
        else:
            a.e("s_lshl_b32 s28, s22, 15")
            a.e("s_add_u32 s28, s28, s27")
            a.e("s_sub_u32 s3, 4096000, s28")
            a.e("s_add_u32 s3, s3, s100")
            a.e("s_add_u32 s96, s32, s28")
            a.e("s_addc_u32 s97, s33, 0")
            a.e("s_sub_u32 s96, s96, s100")
            a.e("s_subb_u32 s97, s97, 0")
        a.e(f"s_mov_b32 s29, {LDS_P}")
        a.e(f"v_lshl_add_u32 v{VPR}, v2, 3, s29")
        a.e(f"v_add_u32 v1, {LDS_ML + 4 - LDS_P}, v{VPR}")
        for g in range(1, 4): a.e(f"v_add_u32 v{4+g}, {4096*g}, v3")
    def pv_zero():
        pass
    def emit_pv_again():
        a.label(L("pv"))
        pv_setup()
        a.e("s_lshl_b32 s18, s19, 14")
        a.e("s_add_u32 s18, s18, 65536")
        dma_tile()
        pv_zero()
        a.e("s_barrier")
        a.e("s_waitcnt vmcnt(16)")
        a.e("s_barrier")
        if not opt.get("q3", 0): dma_tile()
        for db in range(16):
            for kb in range(2):
                a.e(vread(0, db, kb))
            if db % 4 == 3: a.e("s_waitcnt lgkmcnt(4)")
        a.e("s_waitcnt vmcnt(0) lgkmcnt(0)")
        a.e(f"s_branch {L('pv_go')}")
    def taps():
        a.e("v_lshrrev_b32 v12, 5, v2")
        a.e("v_lshl_add_u32 v12, v12, 9, v3")
        a.e("s_lshl_b32 s28, s22, 9")
        out = []
        for i in range(3):
            a.e(f"s_mov_b32 m0, {LDS_TAP + 1024*i}")
            a.e(f"s_add_u32 s29, s28, {2048*i}")
            qf.v("buffer_load_dwordx4 v12, s[44:47], s29 offen lds")
        for x in NEAR: a.e(x)
    def setup1():
        pv_setup()
        a.e(f"s_mov_b32 s101, {f2u(-BIG)}")
    pv_part(setup1, [vread(0, db, kb) for db in range(16) for kb in range(2)], taps)
    a.label(L("pv_go"))
    a.e("s_lshl_b32 s18, s19, 14")
    a.e("s_add_u32 s18, s18, 131072")
    a.e("s_sub_u32 s17, s25, 1")
    a.e("s_barrier")

    pvq = []
    MR = 12; MO = 4; AL = 88; TT = 96; RX = 16
    mll = [f"buffer_load_dwordx2 v[{MR+2*w}:{MR+2*w+1}], v9, s[12:15], s42 offen offset:{512*w} {opt.get('pm', 'sc1')}" for w in range(2)]
    ol = f"buffer_load_dword v11, off, s[12:15], s57 offset:24 {opt.get('pm', 'sc1')}"
    def pv_interval(par, last=False, lo=0, hi=None, first=False):
        mf = pvm(par, 7)
        if first:
            z = [f"v_pk_mul_f32 v[{i}:{i+1}], 0, 0" for i in range(256 - 16 * PH, 256, 2)]
            mf = [z[2 * i] + "\n    " + z[2 * i + 1] for i in range(4 * PH)]
        for pr in range(8 if last else 7):
            mf += pvm(par ^ 1, pr, first)
        fill = {}
        for qb in range(4):
            p = PR[par ^ 1] + 4 * qb
            fill.setdefault(opt.get('pg', [0, 0, 1, 1])[qb], []).append(f"ds_read2st64_b64 a[{p}:{p+3}], v{VPR} offset0:{8*(par^1)+qb} offset1:{8*(par^1)+4+qb}")
        rg = opt.get("rg", [8 + 3 * (i // 2) + (i % 2) for i in range(32)])
        fill.setdefault(4 * PH - 1, []).append(f"s_waitcnt lgkmcnt({0 if last else sum(1 for g in rg if g < 4 * PH - 1)})")
        if last:
            fs(0); fp(0)
            q = Seq(a)
            ops = []
            for sp in range(4):
                for nq, qb in enumerate([t for e, t in pvo(sp) if e]):
                    o = []
                    if sp == 0:
                        o += [f"v_accvgpr_read_b32 v{4+j}, a{4*qb+j}" for j in range(4)]
                        lo = 4
                    else:
                        lo = oreg(2 * sp, qb)[1]
                    hi = oreg(2 * sp + 1, qb)[1]
                    o += [f"v_cvt_pk_bf16_f32 v{hi+3}, v{hi+2}, v{hi+3}", f"v_cvt_pk_bf16_f32 v{hi+2}, v{hi}, v{hi+1}",
                          f"v_cvt_pk_bf16_f32 v{hi}, v{lo}, v{lo+1}", f"v_cvt_pk_bf16_f32 v{hi+1}, v{lo+2}, v{lo+3}"]
                    if nq == 0: o.append(f"s_add_u32 s41, s40, {4096*sp}")
                    o.append(f"buffer_store_dwordx4 v[{hi}:{hi+3}], v3, s[44:47], s41 offen offset:{1024*qb} {opt.get('sm_', 'nt')}")
                    ops += [(8 + 8 * sp + pvo(sp).index((1, qb)) + 6, x) for x in o]
            late = [lambda x=x: a.e(x) for x in ["v_lshlrev_b32 v9, 3, v2", "s_xor_b32 s26, s31, 1", "s_lshl_b32 s26, s26, 10", f"s_add_u32 s42, s26, {WS_MX}"]]
            late += [lambda w=w: q.v(mll[w], "ML") for w in range(2)]
            late += [lambda: a.e("v_subrev_u32 v8, 4, v1"),
                     lambda: q.l(f"ds_read2st64_b64 v[{MO}:{MO+3}], v8 offset0:0 offset1:1", "MLo")]
            late += [lambda x=x: a.e(x) for x in ["v_and_b32 v1, 15, v2", "v_lshlrev_b32 v1, 2, v1", "s_xor_b32 s40, s40, 0x10000", "s_mov_b32 s43, 0xffff0000", "v_mov_b32 v0, 1"]]
            na = 0
            for i, m in enumerate(mf):
                a.e(m)
                for f in fill.get(i, []): a.e(f)
                if i == 2: q.l("ds_read2st64_b32 v[4:5], v1 offset0:0 offset1:2", "lsum")
                if i == 9:
                    fs(1); fs(2)
                    q.wait("lsum")
                    for x in guard(4): a.e(x)
                if i in opt.get("ea", ()):
                    aload(a, q, na // 4, na % 4); na += 1
                if i > 12:
                    n = 0
                    while ops and ops[0][0] <= i and n < opt.get("lp", 3):
                        if opt.get("ls", 1) and n and ops[0][1].startswith("buffer"): break
                        x = ops.pop(0)[1]; n += 1
                        if x.startswith("buffer"): q.v(x, "Ost")
                        else: a.e(x)
                    if n and not ops: fp(1)
                    if n == 0:
                        if not ops and late: late.pop(0)()
                        else: a.e("s_nop 0")
            assert not ops
            while late: late.pop(0)()
            fs(3)
            pvq.append((q, na))
            return
        F_ = lambda g, x: fill.setdefault(g, []).append(x)
        G = opt["pvg"]
        if par == 0:
            F_(G[0], f"v_xor_b32 v{VV}, 0x10000, v{VV}"); F_(G[0], "v_xor_b32 v11, 0x10000, v11")
        for i in range(32): F_(rg[i], vread(par, i // 2, i % 2))
        dg = opt["dg"]
        for g in range(4):
            F_(opt["mg"][g], "s_and_b32 m0, s18, 0x1ffff" if g == 0 else "s_add_u32 m0, m0, 4096")
            for j in range(4):
                F_(dg[4 * g + j], f"buffer_load_dwordx4 v{3 if g == 0 else 4 + g}, s[8:11], s18 offen offset:{1024*j} sc1 lds")
        F_(opt["mg"][4], "s_add_u32 s18, s18, 32768")
        sw = ["s_cmp_eq_u32 s17, 3", "s_cselect_b64 s[8:9], s[98:99], s[8:9]", "s_cselect_b32 s10, s100, s10",
              "s_cmp_eq_u32 s17, 1", "s_cselect_b64 s[8:9], s[96:97], s[8:9]", "s_cselect_b32 s10, s3, s10"]
        for n in (0, 3):
            gs = G[2 + n:5 + n]
            assert (gs[2] < min(dg[0], G[1])) or (gs[0] > max(dg[-1], G[1]))
            assert not any(gs[0] < m <= gs[2] for m in opt["mg"] + [G[1]])
            for g, x in zip(gs, sw[n:n + 3]): F_(g, x)
        F_(G[1], "s_sub_u32 s17, s17, 1")
        F_(61, "s_cmp_eq_u32 s17, 0")
        if not first: F_(62, f"s_cbranch_scc1 {L('pv_exit%d' % par)}")
        fill.setdefault(63, []).extend([f"s_waitcnt vmcnt({nP}) lgkmcnt(0)", "s_barrier"])
        emit_interval(a, mf, fill, lo, hi)

    st(3); ff(11)
    PB = opt.get("pbe", 0)
    if PB:
        pv_interval(1, first=True)
        a.e(f"s_branch {L('pv_in')}")
        a(".p2align 6")
        a.label(L("pv_loop"))
        pv_interval(0, False, PB)
        if not opt.get("xe"): a.e(f"s_cbranch_scc1 {L('pv_last1')}")
        pv_interval(1)
        if not opt.get("xe"): a.e(f"s_cbranch_scc1 {L('pv_last0')}")
        a.label(L("pv_in"))
        pv_interval(0, False, 0, PB)
        a.e(f"s_branch {L('pv_loop')}")
    else:
        a(".p2align 6")
        a.label(L("pv_loop"))
        pv_interval(1)
        a.e(f"s_cbranch_scc1 {L('pv_last0')}")
        pv_interval(0)
        a.e(f"s_cbranch_scc0 {L('pv_loop')}")
    if opt.get("xe"):
        a.label(L("pv_exit0"))
        pv_interval(0, False, 63)
    a.label(L("pv_last1"))
    pv_interval(1, True)
    a.e(f"s_branch {L('pv_stage')}")
    if opt.get("xe"):
        a.label(L("pv_exit1"))
        pv_interval(1, False, 63)
    a.label(L("pv_last0"))
    pv_interval(0, True)
    a.label(L("pv_stage"))
    st(4); ff(13)
    q, n = pvq[0]
    assert pvq[1][0].vm == q.vm and pvq[1][0].lg == q.lg
    fp(2)
    release(a, q, L, "ro", "Ost", "buffer_store_dword v0, off, s[12:15], s56 offset:24",
            [x for sp in range(4) for x in [f"s_xor_b32 s41, s40, {0x10000 + 4096*sp}"] +
             [f"buffer_store_dwordx4 {oreg(2*sp+1, qb)[0]}, v3, s[12:15], s41 offen offset:{1024*qb} sc1" for qb in range(4)]])
    fp(3)
    poll(a, q, L, "ml", mll, [f"v_and_b32 v8, v{MR+1}, v{MR+3}", "v_cmp_gt_i32 vcc, 0, v8", "s_nop 1", "s_cmp_eq_u64 vcc, -1"], "ML", slp=1)
    q.wait("MLo")
    for x in [f"v_add_f32 v{MR+1}, v{MR+1}, v{MR+3}", f"v_add_f32 v{MO+1}, v{MO+1}, v{MO+3}",
              f"v_min_f32 v8, v{MR}, v{MO}", f"v_sub_f32 v{MR}, v8, v{MR}", f"v_sub_f32 v{MO}, v8, v{MO}",
              f"v_exp_f32 v{MR}, v{MR}", f"v_exp_f32 v{MO}, v{MO}", f"v_mul_f32 v{MR+1}, v{MR+1}, v{MR}",
              f"v_fmac_f32 v{MR+1}, v{MO+1}, v{MO}", f"v_mul_f32 v{MR+1}, {f2u(XSC)}, v{MR+1}", f"v_rcp_f32 v{MR+1}, v{MR+1}", "s_nop 0",
              f"v_mul_f32 v{MO}, v{MO}, -v{MR+1}", f"v_mul_f32 v{MR}, v{MR}, -v{MR+1}"]: a.e(x)
    for tb in range(4):
        q.l(f"ds_bpermute_b32 v{AL+2*tb}, v1, v{MO} offset:{64*tb}", "AL")
        q.l(f"ds_bpermute_b32 v{AL+2*tb+1}, v1, v{MR} offset:{64*tb}", "AL")
    q.wait("AL")
    for db in range(8, 16):
        for qb in range(4):
            r = oreg(db, qb)[1]
            for j in (0, 2):
                a.e(f"v_pk_mul_f32 v[{r+j}:{r+j+1}], v[{r+j}:{r+j+1}], v[{AL+2*qb}:{AL+2*qb+1}] op_sel_hi:[1,0]")
        if db == opt.get("od", 12): q.v(ol, "of")
        for _ in range(opt.get("an", 2)):
            if n < 4 * PF and db < opt.get("od", 12):
                aload(a, q, n // 4, n % 4); n += 1
    while n < opt.get("pa", 0):
        aload(a, q, n // 4, n % 4); n += 1
    poll(a, q, L, "o", [ol], ["v_readfirstlane_b32 s26, v11", "s_cmp_eq_u32 s26, 1"], "of", slp=1)
    fp(4)
    for f in range(16):
        if f % 4 == 0: a.e(f"s_add_u32 s41, s40, {1024*f}")
        q.v(f"buffer_load_dwordx4 v[{RX+4*f}:{RX+4*f+3}], v3, s[12:15], s41 offen offset:{1024*(f%4)} {opt.get('lm', 'sc1')}", f"O{f}")
    fp(5)
    fp(6)
    for f in range(16):
        sp, qb = f // 4, f % 4
        q.wait(f"O{f}")
        if f in (0, 8): fp(7 + f // 8)
        for j in range(4):
            a.e(f"v_lshlrev_b32 v{TT+2*j}, 16, v{RX+4*f+j}")
            a.e(f"v_and_b32 v{TT+2*j+1}, s43, v{RX+4*f+j}")
        for j in range(4):
            r = oreg(8 + 2 * sp + j // 2, qb)[1] + 2 * (j % 2)
            a.e(f"v_pk_fma_f32 v[{TT+2*j}:{TT+2*j+1}], v[{TT+2*j}:{TT+2*j+1}], v[{AL+2*qb}:{AL+2*qb+1}], v[{r}:{r+1}] op_sel:[0,1,0] op_sel_hi:[1,1,1]")
        for j in range(4):
            a.e(f"v_cvt_pk_bf16_f32 v{RX+4*f+j}, v{TT+2*j}, v{TT+2*j+1}")
        q.l(f"ds_write_b128 v10, v[{RX+4*f}:{RX+4*f+3}] offset:{8192*qb + 1024*sp}")
        for _ in range(2):
            if n < 4 * PF:
                aload(a, q, n // 4, n % 4); n += 1
    while n < 4 * PF:
        aload(a, q, n // 4, n % 4); n += 1
    fs(4)
    a.label(L("tail"))
    ff(14); fp(9)
    gen_tail(a, L, st, fs, opt)
    a.label(L("fin"))
    if stamp == 1:
        a.e("s_waitcnt vmcnt(0)")
        st(7)
        emit_stamps(a, 8, nw=8, off=WS_STAMP + 0x200000)
    if stamp == 5:
        a.e("s_waitcnt vmcnt(0)")
        st(7)
        a.e("s_cmp_lg_u32 s16, 0")
        a.e(f"s_cbranch_scc1 {L('end')}")
        a.e("s_mov_b64 exec, 1")
        a.e("s_cmp_lg_u32 s2, 0")
        a.e(f"s_cbranch_scc1 {L('dbg2')}")
        for k in range(1, 8):
            a.e(f"s_sub_u32 s26, s{62+4*k}, s62")
            a.e("v_mov_b32 v8, s26")
            a.e(f"buffer_store_dword v8, off, s[92:95], 0 offset:{8+4*k}")
        a.e("s_sub_u32 s26, s76, s72")
        a.e("v_mov_b32 v8, s26")
        a.e("buffer_store_dword v8, off, s[92:95], 0 offset:40")
        a.label(L("dbg2"))
        a.e("s_cmp_lg_u32 s2, 255")
        a.e(f"s_cbranch_scc1 {L('end')}")
        for k in range(1, 6):
            a.e(f"s_sub_u32 s26, s{62+4*k}, s62")
            a.e("v_mov_b32 v8, s26")
            a.e(f"buffer_store_dword v8, off, s[92:95], 0 offset:{40+4*k}")
    if stamp in (2, 3, 4, 6):
        for k in range(10, 16): fp(k)
        a.e("s_waitcnt vmcnt(0)")
        fs(15)
        ff(15)
        emit_fine(a, off=WS_STAMP + 0x300000)
    a.label(L("end"))
    a.e("s_endpgm")
    a.label(L("redo"))
    a.e("s_waitcnt vmcnt(0) lgkmcnt(0)")
    a.e("s_mov_b32 s101, 0")
    a.e(f"s_mul_i32 s28, s22, {32768 * N0}")
    a.e("s_add_u32 s28, s28, s24")
    a.e("s_lshl_b32 s26, s25, 15")
    srd_off(a, 8, 4, "s28", "s26")
    a.e("s_lshl_b32 s19, s16, 13")
    qk_setup()
    a.e("s_mov_b32 s17, s25")
    def redo_dma(slot):
        for i in range(8):
            if i % 4 == 0:
                a.e(f"s_add_u32 m0, s19, {32768*slot + 1024*i}")
                a.e(f"s_add_u32 s29, s18, {1024*i}")
            a.e(f"buffer_load_dwordx4 v3, s[8:11], s29 offen offset:{1024*(i%4)} sc1 lds")
    a.label(L("redo_loop"))
    a.e("s_sub_u32 s17, s17, 1")
    a.e("s_lshl_b32 s18, s17, 15")
    a.e("s_add_u32 s18, s18, s19")
    a.e("s_barrier")
    redo_dma(0)
    a.e("s_waitcnt vmcnt(0)")
    a.e("s_barrier")
    a.e("s_cmp_ge_u32 s16, 2")
    a.e(f"s_cbranch_scc1 {L('redo_next')}")
    for n in range(16):
        a.e(kread(0, n, 0))
        if n == 11: a.e("s_waitcnt lgkmcnt(4)")
    a.e("s_waitcnt lgkmcnt(0)")
    for qb in range(4):
        for m in chain(0, qb, "0"): a.e(m)
    a.e("s_nop 7")
    for qb in range(4):
        d = S + 4 * qb
        a.e(f"v_max3_f32 v{MX0+qb}, v{MX0+qb}, v{d}, v{d+1}")
        a.e(f"v_max3_f32 v{MX0+qb}, v{MX0+qb}, v{d+2}, v{d+3}")
    a.label(L("redo_next"))
    a.e("s_cmp_lg_u32 s17, 0")
    a.e(f"s_cbranch_scc1 {L('redo_loop')}")
    a.e("s_add_u32 s18, s19, 32768")
    redo_dma(1)
    a.e("s_mov_b32 s17, s25")
    a.e("s_cmp_ge_u32 s16, 2")
    a.e(f"s_cbranch_scc1 {L('pv')}")
    a.e(f"s_branch {L('qk_again')}")
    emit_pv_again()
    for f in OOL: f()
    emit_aux()
    kernel_desc(a, name, 512, 256)
    return f"; @launch grid=(256,1,1) block=(256,1,1) lds={LDS_ATT}"
```

```python
import sys, math
sys.path.insert(0, "gen")
from asmlib import *
from layout import *

class Conv:
    def __init__(self, a, q, NR):
        self.a, self.q, self.NR = a, q, NR
        self.W = 16
        self.GN = 56
        self.AC = 96
        self.UF = 104
        self.GR = 112
        self.UR = 128
        self.SR = 144
        self.ZP = 152
        self.LA = 3

    def fetch(self, j):
        q, NR = self.q, self.NR
        if j >= NR + 4: return
        va, off = ("v233", j) if j < 2 else ("v234", j - NR - 2) if j >= NR + 2 else ("v232", j - 2)
        r = self.GR + 4 * (j % 4)
        q.l(f"ds_read_b128 v[{r}:{r+3}], {va} offset:{512*off}", f"cg{j}")
        r = self.SR + 2 * (j % 4)
        q.l(f"ds_read_b64 v[{r}:{r+1}], v237 offset:{8*j}", f"cg{j}")
        if j >= 4:
            r = self.UR + 4 * (j % 4)
            q.l(f"ds_read_b128 v[{r}:{r+3}], v235 offset:{512*(j-4)}", f"cg{j}")

    def taps(self):
        for i in range(5):
            self.q.l(f"ds_read_b128 v[{self.GN+4*i}:{self.GN+4*i+3}], v238 offset:{512*i}", "ct")

    def prep(self):
        a, q, W, GN = self.a, self.q, self.W, self.GN
        for j in range(self.LA): self.fetch(j)
        q.wait("ct")
        for i in range(5):
            for j in range(4):
                a.e(f"v_lshlrev_b32 v{W+8*i+2*j}, 16, v{GN+4*i+j}")
                a.e(f"v_and_b32 v{W+8*i+2*j+1}, s43, v{GN+4*i+j}")

    def row(self, j, extra=()):
        a, q = self.a, self.q
        AC, GN, W, UF = self.AC, self.GN, self.W, self.UF
        gn = GN + 8 * (j % 5); gr = self.GR + 4 * (j % 4); ur = self.UR + 4 * (j % 4); sr = self.SR + 2 * (j % 4)
        P = lambda r: f"v[{r}:{r+1}]"
        unp = lambda d, r: [x for k in range(4) for x in (f"v_lshlrev_b32 v{d+2*k}, 16, v{r+k}", f"v_and_b32 v{d+2*k+1}, s43, v{r+k}")]
        ug, uu = unp(gn, gr), unp(UF, ur)
        nrm = [f"v_pk_fma_f32 {P(gn+2*k)}, {P(gn+2*k)}, {P(sr)}, {P(sr)} op_sel:[0,0,1] op_sel_hi:[1,0,1]" for k in range(4)]
        self.fetch(j + self.LA)
        for f in extra: f()
        q.wait(f"cg{j}")
        if j < 4:
            for x in ug + nrm: a.e(x)
            return
        t = j - 4
        def tap(i):
            gi = GN + 8 * ((t + i) % 5)
            return [f"v_pk_mul_f32 {P(AC+2*k)}, {P(gi+2*k)}, {P(W+2*k)}" if i == 0 else
                    f"v_pk_fma_f32 {P(AC+2*k)}, {P(gi+2*k)}, {P(W+8*i+2*k)}, {P(AC+2*k)}" for k in range(4)]
        zp = self.ZP + 4 * (t % 2)
        mul = [f"v_pk_mul_f32 {P(AC+2*k)}, {P(AC+2*k)}, {P(UF+2*k)}" for k in range(4)]
        cvt = [f"v_cvt_pk_bf16_f32 v{zp+k}, v{AC+2*k}, v{AC+2*k+1}" for k in range(4)]
        old = tap(0) + tap(1) + tap(2) + tap(3)
        for n in range(8):
            a.e(ug[n]); a.e(old[2 * n]); a.e(old[2 * n + 1])
        t4 = tap(4)
        for x in [nrm[0], uu[0], nrm[1], nrm[2], uu[1], nrm[3], t4[0], uu[2], t4[1], t4[2], uu[3], t4[3], mul[0], uu[4], mul[1], cvt[0],
                  uu[5], cvt[1], mul[2], uu[6], cvt[2], uu[7], f"v_xor_b32 v11, {32*(t & 7)}, v236", mul[3], cvt[3]]: a.e(x)
        q.l(f"ds_write_b128 v11, v[{zp}:{zp+3}] offset:{512*t}", "Zw")
```

```python
import sys, math
sys.path.insert(0, "gen")
from asmlib import *
from layout import *

RS = 1056
LDS_XS = 98304
LDS_MS = 163840 - 64 * RS
LDS_SC = 81920
LDS_CNT = LDS_SC + 6912
LDS_SC2 = 147456
GC1 = 2 * math.sqrt(2 / math.pi) * math.log2(math.e)
XSC = (GC1 * 0.044715) ** (1.0 / 3)
LDS_MX2 = LDS_SC + 4608
RING = 5
SS = 144
SPIN = 40000

def poll(a, q, L, name, load, cond, tag, slp=2):
    q.wait(tag)
    lab, done = L(name + "_spin"), L(name + "_ok")
    for x in cond: a.e(x)
    a.e(f"s_cbranch_scc0 {L(name + '_retry')}")
    a.label(done)
    def retry():
        a.label(L(name + "_retry"))
        a.e(f"s_mov_b32 s30, {SPIN}")
        a.label(lab)
        a.e(f"s_sleep {slp}")
        for x in load: a.e(x)
        a.e("s_waitcnt vmcnt(0)")
        for x in cond: a.e(x)
        a.e(f"s_cbranch_scc1 {done}")
        a.e("s_sub_u32 s30, s30, 1")
        a.e(f"s_cbranch_scc0 {lab}")
        a.e(f"s_branch {done}")
    OOL.append(retry)

OOL = []

def release(a, q, L, name, tag, store, again=()):
    if tag: q.wait(tag)
    a.e("s_cmp_lg_u32 s21, 0")
    a.e(f"s_cbranch_scc1 {L(name + '_far')}")
    q.v(store)
    a.label(L(name + "_back"))
    def far():
        a.label(L(name + "_far"))
        if again:
            for x in again: a.e(x)
            a.e("s_waitcnt vmcnt(0)")
        a.e(store + " sc1")
        a.e(f"s_branch {L(name + '_back')}")
    OOL.append(far)

def signal(a, L, name, wave, off, shard=True):
    a.e(f"s_cmp_lg_u32 s16, {wave}")
    a.e(f"s_cbranch_scc1 {L(name)}")
    a.e("v_mov_b32 v14, 1")
    a.e(f"s_and_b32 s26, s2, {3 if shard else 0}")
    a.e("s_lshl_b32 s26, s26, 6")
    a.e("s_mov_b64 exec, 1")
    a.e(f"buffer_atomic_add v14, off, s[92:95], s26 offset:{off}")
    a.e("s_mov_b64 exec, -1")
    a.label(L(name))

def cnt_load(off, va="v13"):
    return f"buffer_load_dword v14, {va}, s[92:95], 0 offen offset:{off} sc1"
CNT_OK = ["v_cmp_le_u32 vcc, 64, v14", "s_nop 1", "s_cmp_eq_u64 vcc, -1"]

def m_issue(a, q):
    a.e("s_and_b32 s17, s2, 6")
    a.e("s_lshl_b32 s17, s17, 5")
    a.e("s_and_b32 s18, s2, 24")
    a.e("s_lshl_b32 s18, s18, 1")
    a.e("s_add_u32 s17, s17, s18")
    a.e("s_and_b32 s18, s2, 1")
    a.e("s_lshl_b32 s18, s18, 3")
    a.e("s_add_u32 s17, s17, s18")
    a.e("s_lshr_b32 s18, s2, 5")
    a.e("s_add_u32 s100, s17, s18")
    a.e("s_lshr_b32 s17, s100, 4")
    a.e("s_lshl_b32 s17, s17, 15")
    a.e("s_and_b32 s18, s100, 15")
    a.e("s_lshl_b32 s18, s18, 15")
    a.e("s_lshl_b32 s19, s16, 13")
    a.e("s_add_u32 s17, s17, s19")
    a.e("s_add_u32 s18, s18, s19")
    a.e(f"s_mul_i32 s19, s16, {4*RS}")
    out = []
    for m, (srd, so) in enumerate(((40, "s17"), (8, "s18"))):
        for ee in range(2):
            for j in range(4):
                def f(m=m, srd=srd, so=so, ee=ee, j=j):
                    a.e(f"s_add_u32 m0, s19, {LDS_MS + (32*m + 16*ee + j)*RS - 1024*j}")
                    a.e(f"s_add_u32 {so}, {so}, 4096" if (ee == 1 and j == 0) else "s_nop 0")
                    q.v(f"buffer_load_dwordx4 v3, s[{srd}:{srd+3}], {so} offen offset:{1024*j} lds", "Mst")
                out.append(f)
    return out

def m_addr(a):
    a.e("v_and_b32 v4, 15, v2")
    a.e("v_lshrrev_b32 v5, 4, v2")
    a.e(f"v_mul_u32_u24 v6, {RS}, v4")
    a.e("v_lshl_add_u32 v6, v5, 4, v6")
    a.e(f"v_add_u32 v6, {LDS_MS}, v6")
    a.e("s_and_b32 s26, s16, 1")
    a.e("s_lshr_b32 s28, s16, 1")
    a.e(f"s_mul_i32 s29, s26, {16*RS}")
    a.e("v_add_u32 v7, s29, v6")
    a.e(f"s_mul_i32 s29, s28, {16*RS}")
    a.e("v_add_u32 v6, s29, v6")
    a.e("s_bfe_u32 s29, s100, 0x30001")
    a.e("s_lshl_b32 s29, s29, 16")
    a.e("s_lshr_b32 s30, s100, 4")
    a.e("s_lshl_b32 s30, s30, 12")
    a.e("s_add_u32 s29, s29, s30")
    a.e("s_and_b32 s30, s100, 1")
    a.e("s_lshl_b32 s30, s30, 1")
    a.e("s_add_u32 s30, s30, s28")
    a.e("s_lshl_b32 s30, s30, 10")
    a.e("s_add_u32 s29, s29, s30")
    a.e("s_lshl_b32 s30, s26, 9")
    a.e("s_add_u32 s29, s29, s30")
    a.e(f"s_add_u32 s30, s29, {WS_MI}")
    a.e("s_lshl_b32 s29, s28, 10")
    a.e("s_lshl_b32 s26, s26, 3")
    a.e("s_add_u32 s29, s29, s26")
    a.e(f"s_add_u32 s29, s29, {LDS_MX2}")
    a.e("v_add_u32 v112, s29, v3")
    a.e("s_lshl_b32 s29, s16, 9")
    a.e(f"s_add_u32 s29, s29, {LDS_MX2}")
    a.e("v_and_b32 v114, 0x1ff, v3")
    a.e("v_add_u32 v113, s29, v114")

def m_tile(a, q, fz=lambda k: None, fill=None):
    q.wait("Mst")
    fz(1)
    a.e("s_barrier")
    fz(2)
    def rd(t):
        q.l(f"ds_read_b128 a[{8*t}:{8*t+3}], v7 offset:{64*t}", f"m{t}")
        q.l(f"ds_read_b128 a[{8*t+4}:{8*t+7}], v6 offset:{32*RS + 64*t}", f"m{t}")
    for t in range(7): rd(t)
    if fill: fill.pop(0)()
    for t in range(16):
        q.e(f"{M16} v[8:11], a[{8*t}:{8*t+3}], a[{8*t+4}:{8*t+7}], {'0' if t == 0 else 'v[8:11]'}", need=(f"m{t}",))
        if t + 7 < 16: rd(t + 7)
    fz(3)
    if fill: fill.pop(0)()
    else: a.e("s_nop 7")
    sc = f2u(512 ** -0.5 * math.log2(math.e) / XSC ** 2)
    for i in range(4): a.e(f"v_mul_f32 v{8+i}, {sc}, v{8+i}")
    a.e("v_cvt_pk_bf16_f32 v8, v8, v9")
    a.e("v_cvt_pk_bf16_f32 v9, v10, v11")
    q.l("ds_write_b64 v112, v[8:9]", "mw")
    while fill: fill.pop(0)()
    q.wait("mw")
    a.e("s_barrier")
    q.l("ds_read_b128 v[8:11], v113", "mr")
    def fin():
        q.v("buffer_store_dwordx4 v[8:11], v114, s[12:15], s30 offen sc1", "St", need=("mr",))
    return fin

def touches(a, q, L, opt):
    a.e("v_lshlrev_b32 v7, 7, v2")
    a.e("s_lshr_b32 s26, s2, 3")
    a.e("s_lshl_b32 s26, s26, 2")
    a.e("s_add_u32 s26, s26, s16")
    a.e("s_getpc_b64 s[28:29]")
    a.label(L("pc1"))
    a.e("s_mul_i32 s30, s26, 640")
    a.e("v_and_b32 v12, 7, v2")
    a.e("v_min_u32 v12, 4, v12")
    a.e("v_lshl_add_u32 v12, v12, 7, s30")
    a.e(f"v_min_u32 v12, {L('end')} - {L('pc1')}, v12")
    q.v("global_load_dword v0, v12, s[28:29]")
    if opt.get("tg"):
        a.e("s_lshl_b32 s26, s2, 12")
        a.e("s_lshr_b32 s28, s16, 1")
        a.e("s_lshl_b32 s28, s28, 11")
        a.e("s_add_u32 s26, s26, s28")
        a.e("s_and_b32 s28, s16, 1")
        a.e("s_lshl_b32 s28, s28, 9")
        a.e("s_add_u32 s26, s26, s28")
        a.e("v_lshlrev_b32 v14, 3, v2")
        q.v("buffer_load_dword v0, v14, s[96:99], s26 offen offset:1024")
    if opt.get("tw"):
        a.e("s_lshl_b32 s26, s26, 13")
        q.v("buffer_load_dword v0, v7, s[96:99], s26 offen")

def touch_aux(a, q, mode=1):
    if mode == 2:
        a.e("s_lshl_b32 s28, s2, 2")
        a.e("s_add_u32 s28, s28, s16")
        a.e("s_lshl_b32 s28, s28, 10")
        a.e("v_add_u32 v14, s28, v3")
        q.v("global_load_dword v0, v14, s[58:59]")
        return
    for w in range(1, 4):
        a.e(f"s_cmp_eq_u32 s16, {w}")
        a.e(f"s_cselect_b32 s52, s{52+2*w}, s52")
        a.e(f"s_cselect_b32 s53, s{53+2*w}, s53")
    a.e("s_lshl_b32 s28, s2, 6")
    a.e("v_add_lshl_u32 v14, s28, v2, 5")
    a.e("v_lshlrev_b32 v13, 1, v14")
    a.e("s_cmp_eq_u32 s16, 3")
    a.e("s_cselect_b64 vcc, -1, 0")
    a.e("v_cndmask_b32 v14, v14, v13, vcc")
    q.v("global_load_dword v0, v14, s[52:53]")

def gen_front(a, q, L, st, fs, mi, clear, opt):
    X = 16; F = 128
    if opt.get("skip"):
        v0 = q.v
        def v1(text, tag="_", need=()):
            if text.startswith("buffer_store_dwordx4") and tag[0] in opt["skip"]: return
            v0(text, tag, need)
        q.v = v1
    a.e("v_lshrrev_b32 v12, 3, v2")
    a.e("v_and_b32 v13, 7, v2")
    a.e("v_and_b32 v14, 2, v12")
    a.e("v_xor_b32 v14, v13, v14")
    a.e("v_lshlrev_b32 v14, 4, v14")
    WV = 80
    a.e(f"v_lshl_add_u32 v{WV}, v12, 11, v14")
    a.e(f"v_xor_b32 v{WV+1}, 64, v{WV}")
    a.e(f"v_add_u32 v{WV+1}, {16384-1024}, v{WV+1}")
    a.e(f"v_add_u32 v{WV+2}, {2*(16384-1024)}, v{WV}")
    a.e(f"v_add_u32 v{WV+3}, {2*(16384-1024)}, v{WV+1}")
    a.e("s_lshl_b32 s26, s22, 2")
    a.e("s_add_u32 s26, s26, s16")
    a.e("s_lshl_b32 s28, s22, 1")
    a.e("s_add_u32 s28, s28, s16")
    a.e(f"s_lshl_b32 s29, s23, {opt.get('rt', 0)}")
    a.e("s_add_u32 s28, s28, s29")
    a.e("s_and_b32 s28, s28, 3")
    a.e("s_lshl_b32 s3, s26, 7")
    a.e("s_lshl_b32 s29, s28, 18")
    a.e("s_add_u32 s3, s3, s29")
    a.e(f"s_mul_i32 s6, s16, {RING*4096}")
    a.e("v_and_b32 v4, 15, v2")
    a.e("v_lshrrev_b32 v5, 4, v2")
    def wdma(k, j):
        if j == 0:
            a.e(f"s_add_u32 m0, s6, {4096*(k % RING)}")
            a.e(f"s_xor_b32 s7, {'s3' if k < 16 else 's20'}, {65536*(k % 16) + (1024 if k < 16 else 0 if k < 32 else 128)}")
        q.v(f"buffer_load_dwordx4 v{WV+j}, s[96:99], s7 offen offset:{1024*j} lds", f"W{k}")
    ringf = [lambda k=k, j=j: wdma(k, j) for k in range(RING) for j in range(4)]
    EM = opt.get("early", 0)
    NE = opt.get("ne", 12)
    early = list(mi) + [clear] + ringf[:NE]
    if opt.get("rf"): early = ringf[:opt["rf"]] + list(mi) + [clear] + ringf[opt["rf"]:NE]
    late = ringf[NE:]
    if opt.get("te") is not None: early.insert(opt["te"], lambda: (touch_u(), touch_aux(a, q)))
    SW, SR, SG, QW = 84, 85, 86, 87
    a.e("s_and_b32 s26, s16, 1")
    a.e("s_lshl_b32 s26, s26, 13")
    a.e("s_cmp_lt_u32 s16, 2")
    a.e(f"s_cselect_b32 s28, {16*SS}, 0")
    a.e("s_add_u32 s26, s26, s28")
    a.e(f"s_add_u32 s26, s26, {LDS_SC}")
    a.e(f"v_mul_u32_u24 v{SR}, {SS}, v12")
    a.e(f"v_lshl_add_u32 v{SR}, v13, 4, v{SR}")
    a.e(f"v_add_u32 v{SR}, s26, v{SR}")
    a.e(f"v_lshlrev_b32 v{SG}, 9, v12")
    a.e(f"v_lshl_add_u32 v{SG}, v13, 4, v{SG}")
    a.e(f"v_mul_u32_u24 v{SW}, {SS}, v4")
    a.e(f"v_lshl_add_u32 v{SW}, v5, 3, v{SW}")
    a.e(f"v_add_u32 v{SW}, s26, v{SW}")
    a.e("s_lshl_b32 s26, s16, 14")
    a.e(f"s_add_u32 s26, s26, {LDS_XS}")
    a.e("s_lshl_b32 s28, s22, 13")
    a.e("s_add_u32 s28, s28, s26")
    a.e("v_lshrrev_b32 v14, 1, v12")
    a.e("v_xor_b32 v14, v13, v14")
    a.e("v_lshlrev_b32 v14, 4, v14")
    a.e("v_lshl_add_u32 v14, v12, 7, v14")
    a.e("v_add_u32 v12, s28, v14")
    a.e("v_xor_b32 v116, 0x440, v12")
    a.e("v_xor_b32 v117, 0x2440, v12")
    a.e("v_xor_b32 v15, 0x2000, v12")
    a.e("s_mov_b32 s101, 0xffff0000")
    if EM == 2:
        while early: early.pop(0)()
    ZR, YO = 88, 90
    a.e("v_lshrrev_b32 v13, 1, v4")
    a.e("v_xor_b32 v13, v5, v13")
    a.e("v_lshlrev_b32 v13, 4, v13")
    a.e(f"v_lshl_add_u32 v{ZR}, v4, 7, v13")
    a.e("v_and_b32 v13, 0x27, v2")
    a.e("v_and_b32 v14, 8, v2")
    a.e("v_lshl_add_u32 v13, v14, 1, v13")
    a.e("v_and_b32 v14, 16, v2")
    a.e("v_lshrrev_b32 v14, 1, v14")
    a.e(f"v_add_lshl_u32 v{YO}, v13, v14, 4")
    XR_, TR = 88, 92
    a.e("s_lshr_b32 s26, s3, 18")
    a.e("s_lshl_b32 s26, s26, 12")
    a.e(f"s_add_u32 s26, s26, {LDS_XS}")
    a.e(f"v_add_u32 v{XR_}, s26, v{ZR}")
    a.e("v_lshrrev_b32 v14, 2, v4")
    a.e("v_lshl_add_u32 v14, v5, 3, v14")
    a.e("v_lshlrev_b32 v14, 7, v14")
    a.e("v_and_b32 v13, 3, v2")
    a.e("v_lshl_add_u32 v14, v13, 3, v14")
    a.e("v_and_b32 v13, 24, v2")
    a.e("v_lshl_add_u32 v14, v13, 2, v14")
    a.e(f"v_add_u32 v{TR}, s6, v14")
    for nb in range(1, 4):
        a.e(f"v_xor_b32 v{TR+nb}, {32*nb}, v{TR}")
    a.e(f"v_mov_b32 v13, {LDS_CNT}")
    a.e("v_mov_b32 v14, 0")
    q.l("ds_write_b32 v13, v14")
    def touch_u():
        if opt.get("tu") == 0: return
        if opt.get("tu", 2) == 2:
            a.e("s_lshl_b32 s26, s2, 12")
            a.e("s_lshr_b32 s28, s16, 1")
            a.e("s_lshl_b32 s28, s28, 11")
            a.e("s_add_u32 s26, s26, s28")
            a.e("s_and_b32 s28, s16, 1")
            a.e("s_lshl_b32 s28, s28, 9")
            a.e("s_add_u32 s26, s26, s28")
            a.e("v_lshlrev_b32 v14, 3, v2")
            q.v("buffer_load_dword v0, v14, s[96:99], s26 offen")
            return
        a.e("s_lshr_b32 s26, s2, 3")
        a.e("s_lshl_b32 s26, s26, 2")
        a.e("s_add_u32 s26, s26, s16")
        a.e("s_lshl_b32 s26, s26, 13")
        a.e("v_lshlrev_b32 v14, 6, v4")
        a.e("v_lshl_add_u32 v14, v5, 11, v14")
        q.v("buffer_load_dword v0, v14, s[96:99], s26 offen")
    m_addr(a)
    for f in opt['xrest']: f()
    for _ in range(opt.get('e0', 0)): early.pop(0)()
    A0 = 96
    def norm(s):
        A = A0 + 8 * (s // 8) + 4
        for j in range(4):
            f = F + 8 * s + 2 * j
            a.e(f"v_pk_fma_f32 v[{f}:{f+1}], v[{f}:{f+1}], v[{A}:{A+1}], v[{A}:{A+1}] op_sel:[0,0,1] op_sel_hi:[1,0,1]")
        for j in range(4):
            f = F + 8 * s + 2 * j
            a.e(f"v_cvt_pk_bf16_f32 v{X+4*s+j}, v{f}, v{f+1}")
    def stats(h):
        A = A0 + 8 * h
        for r in (A, A + 2): a.e(f"v_add_f32 v{r}, v{r}, v{r+1}")
        for d in ("quad_perm:[1,0,3,2]", "quad_perm:[2,3,0,1]", "row_half_mirror"):
            a.e("s_nop 0")
            for r in (A, A + 2): a.e(f"v_add_f32_dpp v{r}, v{r}, v{r} {d} row_mask:0xf bank_mask:0xf")
        a.e(f"v_mul_f32 v{A}, {f2u(-1.0/512)}, v{A}")
        a.e(f"v_mul_f32 v{A+2}, {f2u(1.0/512)}, v{A+2}")
        a.e(f"v_fma_f32 v{A+2}, -v{A}, v{A}, v{A+2}")
        a.e(f"v_max_f32 v{A+2}, 0, v{A+2}")
        a.e(f"v_add_f32 v{A+2}, {f2u(1e-5)}, v{A+2}")
        a.e(f"v_rsq_f32 v{A+4}, v{A+2}")
        a.e("s_nop 0")
        a.e(f"v_mul_f32 v{A+4}, {f2u(XSC)}, v{A+4}")
        a.e(f"v_mul_f32 v{A+5}, v{A}, v{A+4}")
    for h in range(2):
        A = A0 + 8 * h
        for i in range(8):
            s = 8 * h + i
            if s == 8: stats(0)
            if h == 1: norm(i)
            q.wait(f"x{s}")
            if s == 0: fs(1)
            for _ in range(opt.get("ep", [8] + [1] * 15)[s]):
                if early: early.pop(0)()
            for j in range(4):
                x = X + 4 * s + j; f = F + 8 * s + 2 * j
                a.e(f"v_lshlrev_b32 v{f}, 16, v{x}")
                a.e(f"v_and_b32 v{f+1}, s101, v{x}")
            for j in range(4):
                f = F + 8 * s + 2 * j
                if i == 0 and j == 0:
                    a.e(f"v_pk_add_f32 v[{A}:{A+1}], v[{f}:{f+1}], 0")
                    a.e(f"v_pk_mul_f32 v[{A+2}:{A+3}], v[{f}:{f+1}], v[{f}:{f+1}]")
                else:
                    a.e(f"v_pk_add_f32 v[{A}:{A+1}], v[{A}:{A+1}], v[{f}:{f+1}]")
                    a.e(f"v_pk_fma_f32 v[{A+2}:{A+3}], v[{f}:{f+1}], v[{f}:{f+1}], v[{A+2}:{A+3}]")
    fs(2)
    stats(1)
    for s in range(8, 12):
        for _ in range(2):
            if early: early.pop(0)()
        norm(s)
    while early: early.pop(0)()
    fs(3)
    def xw(s):
        h, i = s // 8, s % 8
        q.l(f"ds_write_b128 {(('v12', 'v15'), ('v116', 'v117'))[h][i // 4]}, v[{X+4*s}:{X+4*s+3}] offset:{2048*(i%4)}", "xw")
    fz = Fine(a, opt.get("fz"))
    fz(0)
    mfin = m_tile(a, q, fz, [lambda s=s: norm(s) for s in range(12, 16)])
    fs(4); fz(4)
    for s in range(16):
        xw(s)
        if s in (1, 5, 8, 12): fz(5 + (1, 5, 8, 12).index(s))
        if s == 3: mfin()
        if s >= 3:
            for _ in range(2):
                if late: late.pop(0)()
        TT = opt.get("tt", 8)
        if opt.get("te") is not None: continue
        if s == TT and opt.get('ta', 2): touch_aux(a, q, opt.get('ta', 2))
        if s == TT + 1 and not opt.get("tw"): touch_u()
    srd_off(a, 8, 4, "s24", 4096000)
    a.e("s_lshr_b32 s19, s3, 18")
    a.e("s_lshl_b32 s19, s19, 12")
    a.e("s_add_u32 s19, s19, s27")
    a.e("v_and_b32 v13, 3, v2")
    fz(9)
    q.wait("xw")
    fz(10)
    q.wait("St")
    fz(11)
    a.e("s_barrier")
    fz(12)
    st(1)
    AR = [16 + 16 * i for i in range(4)] + [96]
    T = 112
    NQ = 5
    role = [None]
    def areg(k): return AR[(k - 16 + 2) % NQ] if (role[0] == "qk" and k >= 16) else AR[k % 2]
    def accof(k): return 128 if k < 16 else 192 if (k < 32 or role[0] == "qk") else 128
    def bread(s, tb):
        r = 64 * tb + 4 * s
        if tb == 0: a.e(f"v_xor_b32 v{XR_+1}, {2048*(s//2) + 64*(s%2)}, v{XR_}")
        q.l(f"ds_read_b128 a[{r}:{r+3}], v{XR_+1} offset:{16384*tb}", f"B{s}")
    def tread(k, i):
        nb, h = i // 2, i % 2
        r = areg(k) + 4 * nb + 2 * h
        q.l(f"ds_read_b64_tr_b16 v[{r}:{r+1}], v{TR+nb} offset:{4096*(k % RING) + 512*h}", f"A{k}", need=(f"W{k}",))
    def mload(k, nb):
        if nb == 0: a.e(f"s_xor_b32 s42, s20, {4096*(k-16)}")
        r = areg(k) + 4 * nb
        q.v(f"buffer_load_dwordx4 v[{r}:{r+3}], v3, s[12:15], s42 offen offset:{1024*nb} sc1", f"A{k}")
    for tb in range(4): bread(0, tb)
    for i in range(8): tread(0, i)
    signal(a, L, "sig1", 0, 0)
    for tb in range(4): bread(1, tb)
    a.e(f"s_mov_b32 s0, {f2u(-GC1 / XSC)}")
    a.e(f"s_mov_b32 s1, {f2u(XSC)}")
    a.e("v_lshlrev_b32 v13, 6, v13")
    NB1 = opt.get("nb1", 0)
    a.e("s_cmp_lt_u32 s16, 2" if NB1 else "s_cmp_eq_u32 s16, 1")
    a.e("s_cselect_b32 s26, 0, 0x1000")
    a.e("v_add_u32 v12, s26, v13")
    a.e("s_lshl_b32 s17, s31, 16")
    a.e("s_lshl_b32 s26, s16, 7")
    a.e("s_add_u32 s17, s17, s26")
    a.e(f"s_add_u32 s17, s17, {WS_GU}")
    fx = [{}]
    def at(k, g, fn): fx[0].setdefault((k, g), []).append(fn if callable(fn) else (lambda: a.e(fn)))
    def run(ops):
        for x in ops: x() if callable(x) else a.e(x)
    def cost(x): return 2 if (isinstance(x, str) and x.split()[0] in ("v_exp_f32", "v_rcp_f32")) else 1
    def steps(k0, k1, side=(), lead=10, tailg=4):
        fixed = fx[0]
        gaps = [(k, g) for k in range(k0, k1) for g in range(16)]
        cap = [0 if (n < lead or n >= len(gaps) - tailg) else max(0, 2 - len(fixed.get(x, []))) for n, x in enumerate(gaps)]
        ops = list(side)
        C = sum(map(cost, ops)); tot = sum(cap)
        scale = min(1.0, C / tot)
        extra = max(0.0, (C - tot) / (len(gaps) - lead - tailg))
        budget = 0.0; used = 0
        for n, (k, g) in enumerate(gaps):
            if g == 0:
                if k in opt.get("fk", []): Fine(a, True)(opt["fk"].index(k))
                q.wait(f"A{k}", f"B{k}")
            nb, tb = ORD16[g] if opt.get('o2', 1) else (g // 4, g % 4)
            d = accof(k) + 16 * nb + 4 * tb; r = areg(k) + 4 * nb; b = 64 * tb + 4 * (k % 16)
            c = "0" if k % 16 == 0 else f"v[{d}:{d+3}]"
            a.e(f"{M16} v[{d}:{d+3}], v[{r}:{r+3}], a[{b}:{b+3}], {c}")
            for fn in fixed.pop((k, g), []): fn()
            if lead <= n < len(gaps) - tailg:
                budget += cap[n] * scale + extra
            while ops and (used + cost(ops[0]) <= budget + 1e-6 or n == len(gaps) - max(tailg, 1)):
                x = ops.pop(0); used += cost(x); run([x])
        assert not ops
    def raw_plan(k0, k1, kend):
        for k in range(k0, k1):
            if k + 1 < kend:
                for i in range(8): at(k, i, lambda k=k, i=i: tread(k + 1, i))
            if k + RING < kend:
                for j in range(4): at(k, 9 + 2 * j, lambda k=k, j=j: wdma(k + RING, j))
            if k + 2 < 16:
                for tb in range(4): at(k, 8 + 2 * tb, lambda k=k, tb=tb: bread(k + 2, tb))
    def gelu(acc, kind, pk, base, off):
        out = []
        if opt.get("nogelu"): return [["s_nop 0"] * 40 for _ in range(8)]
        P = lambda r: f"v[{r}:{r+1}]"
        def store(E, i):
            r = acc + 32 + 16 * (i % 2) + 4 * (i // 2)
            def f():
                a.e(f"s_add_u32 s29, {base}, {off + 4096*i}")
                pub = kind == "g" and i in (0, 7)
                q.v(f"buffer_store_dwordx4 v[{r}:{r+3}], v{SG}, s[12:15], s29 offen{' sc1' if pub else ''}", "St" if pub else "_", need=(f"sr{kind}{i}",))
            E(f)
        for tb in range(4):
            for h in range(2):
                o = []; E = o.append; out.append(o)
                src = [acc + 16 * (2 * h + ee) + 4 * tb + j for ee in range(2) for j in range(4)]
                if pk(2 * tb + h):
                    for i in range(0, 8, 2): E(f"v_pk_fma_f32 {P(T+i)}, {P(src[i])}, {P(src[i])}, s[0:1] op_sel_hi:[1,1,0] neg_lo:[1,0,0] neg_hi:[1,0,0]")
                    for i in range(0, 8, 2): E(f"v_pk_mul_f32 {P(T+i)}, {P(T+i)}, {P(src[i])}")
                    for i in range(8): E(f"v_exp_f32 v{T+i}, v{T+i}")
                    for i in range(0, 8, 2): E(f"v_pk_fma_f32 {P(T+i)}, {P(T+i)}, s[0:1], s[0:1] op_sel:[0,1,1] op_sel_hi:[1,1,1]")
                    for i in range(8): E(f"v_rcp_f32 v{T+i}, v{T+i}")
                    for i in range(0, 8, 2): E(f"v_pk_mul_f32 {P(src[i])}, {P(T+i)}, {P(src[i])}")
                else:
                    for i, x in enumerate(src): E(f"v_fma_f32 v{T+i}, -v{x}, v{x}, s0")
                    for i, x in enumerate(src): E(f"v_mul_f32 v{T+i}, v{T+i}, v{x}")
                    for i, x in enumerate(src): E(f"v_exp_f32 v{T+i}, v{T+i}")
                    for i, x in enumerate(src): E(f"v_fma_f32 v{T+i}, v{T+i}, s1, s1")
                    for i, x in enumerate(src): E(f"v_rcp_f32 v{T+i}, v{T+i}")
                    for i, x in enumerate(src): E(f"v_mul_f32 v{x}, v{T+i}, v{x}")
                pr = T + 8 + 4 * h
                for j in range(4): E(f"v_cvt_pk_bf16_f32 v{pr+j}, v{src[2*j]}, v{src[2*j+1]}")
                if kind == "g":
                    s0, s1 = acc + 4 * tb, acc + 4 * tb + 1
                    if pk(2 * tb + h):
                        E(f"v_pk_mul_f32 {P(T)}, {P(src[0])}, {P(src[0])}")
                        E(f"v_pk_add_f32 {P(T+2)}, {P(src[0])}, {P(src[2])}")
                        for i in (2, 4, 6):
                            E(f"v_pk_fma_f32 {P(T)}, {P(src[i])}, {P(src[i])}, {P(T)}")
                            if i > 2: E(f"v_pk_add_f32 {P(T+2)}, {P(T+2)}, {P(src[i])}")
                        if h == 0:
                            E(f"v_add_f32 v{s0}, v{T+2}, v{T+3}")
                            E(f"v_add_f32 v{s1}, v{T}, v{T+1}")
                        else:
                            E(f"v_add_f32 v{T+2}, v{T+2}, v{T+3}")
                            E(f"v_add_f32 v{T+3}, v{T}, v{T+1}")
                            E(f"v_pk_add_f32 {P(s0)}, {P(s0)}, {P(T+2)}")
                    elif h == 0:
                        E(f"v_mul_f32 v{T}, v{src[0]}, v{src[0]}")
                        for x in src[1:]: E(f"v_fmac_f32 v{T}, v{x}, v{x}")
                        for x in src[1:]: E(f"v_add_f32 v{s0}, v{s0}, v{x}")
                        E(f"v_mov_b32 v{s1}, v{T}")
                    else:
                        for x in src:
                            E(f"v_add_f32 v{s0}, v{s0}, v{x}")
                            E(f"v_fmac_f32 v{s1}, v{x}, v{x}")
                for ee in range(2):
                    E(lambda ee=ee, pr=pr, h=h: q.l(f"ds_write_b64 v{SW}, v[{pr+2*ee}:{pr+2*ee+1}] offset:{32*(2*h+ee)}"))
                if tb >= 1: store(E, 2 * (tb - 1) + h)
            for i in (2 * tb, 2 * tb + 1):
                r = acc + 32 + 16 * (i % 2) + 4 * tb
                E(lambda i=i, r=r: q.l(f"ds_read_b128 v[{r}:{r+3}], v{SR} offset:{8*SS*(i%2)}", f"sr{kind}{i}"))
        if kind == "g":
            for k in range(2):
                E(f"v_permlane16_swap_b32 v{acc+k}, v{acc+4+k}")
                E(f"v_permlane16_swap_b32 v{acc+8+k}, v{acc+12+k}")
            E("s_lshl_b32 s43, s22, 2")
            for k in range(2):
                E(f"v_add_f32 v{acc+k}, v{acc+k}, v{acc+4+k}")
                E(f"v_add_f32 v{acc+8+k}, v{acc+8+k}, v{acc+12+k}")
            E("s_add_u32 s43, s43, s16")
            E("s_lshl_b32 s43, s43, 9")
            for k in range(2): E(f"v_permlane32_swap_b32 v{acc+k}, v{acc+8+k}")
            E(lambda: (a.e("s_lshr_b32 s29, s31, 1"), a.e("s_lshl_b32 s29, s29, 12"), a.e("s_add_u32 s43, s43, s29")))
            for k in range(2): E(f"v_add_f32 v{T+k}, v{acc+k}, v{acc+8+k}")
            E(f"s_add_u32 s43, s43, {WS_ST}")
            E(f"v_lshlrev_b32 v{T+2}, 3, v2")
            E(lambda: q.v(f"buffer_store_dwordx2 v[{T}:{T+1}], v{T+2}, s[12:15], s43 offen sc1", "St"))
        store(E, 6); store(E, 7)
        return out
    flat = lambda bs: [x for b in bs for x in b]
    def stream_srd():
        a.e(f"s_mul_i32 s28, s22, {32768 * opt.get('n0', 62)}")
        a.e("s_add_u32 s28, s28, s24")
        a.e("s_lshl_b32 s26, s25, 15")
        srd_off(a, 8, 4, "s28", "s26")
    def xl():
        a.e("s_xor_b32 s26, s31, 1")
        a.e("s_lshl_b32 s26, s26, 7")
        a.e(f"s_add_u32 s26, s26, {WS_FL + 48}")
        q.v("buffer_load_dword v1, off, s[12:15], s26 sc1", "xid")
    def xc():
        q.wait("xid")
        a.e("v_readfirstlane_b32 s26, v1")
        a.e("s_getreg_b32 s21, hwreg(HW_REG_XCC_ID, 0, 4)")
        a.e("s_xor_b32 s21, s21, s26")
        if opt.get("far"): a.e("s_mov_b32 s21, 1")
    def e0():
        if role[0] == "qk" or not NB1: xc()
        q.wait("B15")
        a.e("s_barrier")
        if role[0] == "pv" and NB1: xl()
    PQ = opt.get("pq", [11, 11, 12, 13, 14, 15, 16, 16, 17, 17, 18, 18, 19, 19, 20, 20])
    def pub(i):
        tb, sl = i // 4, i % 4
        q.v(f"buffer_store_dwordx4 a[{64*tb+4*sl}:{64*tb+4*sl+3}], v{YO}, s[8:11], s19 offen offset:{1024*sl} sc1", "Xst")
        if sl == 3: a.e("s_add_u32 s19, s19, 16384")
    def arrive():
        a.e(f"v_mov_b32 v1, {LDS_CNT}")
        a.e("v_mov_b32 v14, 1")
        q.wait("Xst")
        a.e("s_mov_b64 exec, 1")
        q.l("ds_add_rtn_u32 v15, v1, v14", "cnt")
        a.e("s_mov_b64 exec, -1")
    def sig2():
        q.wait("cnt")
        a.e("v_readfirstlane_b32 s28, v15")
        a.e("s_and_b32 s26, s2, 3")
        a.e("s_lshl_b32 s26, s26, 6")
        a.e("s_cmp_lg_u32 s28, 1")
        a.e(f"s_cbranch_scc1 {L('sig2')}")
        a.e("s_mov_b64 exec, 1")
        a.e("buffer_atomic_add v14, off, s[92:95], s26 offset:8")
        a.e("s_mov_b64 exec, -1")
        a.label(L("sig2"))
    KS = opt.get("ks", 11); KC = 11
    raw_plan(0, KS, 16)
    c1l = lambda: q.v(cnt_load(0, "v12"), "c1")
    if KS > KC - 3: at(*opt.get('c1p', (KC - 3, 8)), c1l)
    fs(5); fz(13)
    at(0, 1, lambda: fz(14)); at(1, 1, lambda: fz(15))
    steps(0, KS)
    assert not fx[0]
    a.e("s_cmp_ge_u32 s16, 2")
    a.e(f"s_cbranch_scc1 {L('fpv')}")
    state = (list(q.vm), list(q.lg))

    def qk_part():
        role[0] = "qk"; fx[0] = {}
        raw_plan(KS, 16, 16)
        def chk1():
            q.wait("c1")
            if not NB1:
                a.e("s_cmp_lg_u32 s16, 1")
                a.e(f"s_cbranch_scc1 {L('c1_ok')}")
            poll(a, q, L, "c1", [cnt_load(0, "v12")], CNT_OK, "c1", slp=8)
            if not NB1: a.e("s_barrier")
            a.e("s_lshl_b32 s26, s22, 1")
            a.e("s_add_u32 s26, s26, s16")
            a.e("s_lshl_b32 s20, s26, 17")
            a.e("s_lshr_b32 s28, s3, 18")
            a.e("s_lshl_b32 s28, s28, 14")
            a.e("s_add_u32 s20, s20, s28")
            a.e(f"s_add_u32 s20, s20, {WS_MI}")
        if KS <= KC - 3: at(KC - 3, 8, c1l)
        at(KC, 8, chk1)
        at(KC, 10, xl)
        for kk in range(16, 48):
            k = kk - NQ + 1
            for nb in range(4): at(k, (9 + 2 * nb) if k < 16 else (1 + 4 * nb), lambda kk=kk, nb=nb: mload(kk, nb))
        at(15, 8, e0)
        if PQ:
            for i, k in enumerate(PQ): at(k, 11 if (i and PQ[i - 1] == k) else 3 if k >= 16 else 14, lambda i=i: pub(i))
            at(PQ[-1] + 3, 7, arrive)
            at(PQ[-1] + 4, 7, sig2)
        for g, x in enumerate(["s_lshl_b32 s40, s31, 1", "s_add_u32 s40, s40, s16", "s_lshl_b32 s40, s40, 14", f"s_add_u32 s40, s40, {WS_QP}",
                               "s_lshl_b32 s41, s31, 5", "s_add_u32 s41, s41, s16", "s_lshl_b32 s41, s41, 2", f"s_add_u32 s41, s41, {WS_FL + 16}"]):
            at(15, g, x)
        steps(KS, 16)
        fs(6)
        NA_, NB_ = opt.get("qg", (4, 4))
        gb = gelu(128, "g", lambda b: b >= NA_ + NB_, "s17", 0)
        pre = ["s_lshl_b32 s26, s16, 2", "s_add_u32 s26, s26, s22", "s_lshl_b32 s26, s26, 13", f"s_add_u32 s18, s26, {LDS_XS}", f"v_add_u32 v{QW}, s18, v3",
               "s_xor_b32 s18, s18, 0x2000", "s_add_u32 s7, s40, 4096", "s_xor_b32 s6, s41, 128", "v_mov_b32 v12, 1",
               lambda: run(["s_cmp_eq_u32 s21, 0", "s_cselect_b32 s46, s14, 0", "s_mov_b64 s[44:45], s[12:13]"])]
        steps(16, 32, pre + flat(gb[:NA_]))
        fs(7)
        preg = lambda i: 192 + 32 * (i % 2) + 4 * (i // 2)
        def qst(i, r, srd, mod): return f"buffer_store_dwordx4 v[{r}:{r+3}], v3, s[{srd}:{srd+3}], {'s40' if i < 4 else 's7'} offen offset:{1024*(i%4)} {mod}"
        def pack(p):
            a.e("s_nop 3")
            for i in ((0, 2, 4, 6, 7, 5, 3, 1) if opt.get('o2', 1) else range(8)):
                pr = preg(i); src = [pr + 16 * ee + j for ee in range(2) for j in range(4)]
                for j in range(4): a.e(f"v_cvt_pk_bf16_f32 v{pr+j}, v{src[2*j]}, v{src[2*j+1]}")
                if p: q.v(qst(i, pr, 44, "nt"), "Qst", need=("qa",))
                q.l(f"ds_write_b128 v{QW}, v[{pr}:{pr+3}] offset:{16384*p + 1024*i}", "qw")
        def fetch(p, i):
            if i % 4 == 0:
                a.e(f"s_add_u32 m0, s18, {16384*p + 1024*i}")
                a.e("s_nop 0")
            q.v(f"buffer_load_dwordx4 v3, s[12:15], {'s40' if i < 4 else 's7'} offen offset:{1024*(i%4)} sc1 lds", "qd" if p else "qa")
        SWAP = ["s_xor_b32 s40, s40, 0x8000", "s_xor_b32 s7, s7, 0x8000"]
        pack(0)
        for i in range(8):
            k = 32 + opt.get("qsp", [0, 0, 1, 1, 2, 2, 3, 3])[i]
            r = (WV, TR)[i % 2]
            at(k, 3, lambda i=i, r=r: q.l(f"ds_read_b128 v[{r}:{r+3}], v{QW} offset:{1024*i}", f"qr{i}"))
            at(k, 15, lambda i=i, r=r: q.v(qst(i, r, 12, "sc1"), "Qst", need=(f"qr{i}",)))
        KA_, KB_, KC_ = opt.get("qk_", (39, 43, 45))
        qok = ["v_readfirstlane_b32 s26, v15", "s_cmp_eq_u32 s26, 1"]
        at(KA_, 3, lambda: q.v("buffer_store_dword v12, off, s[12:15], s41 sc1", need=("Qst",)))
        qfa = "buffer_load_dword v15, off, s[12:15], s6 sc1"
        at(KB_, 3, lambda: q.v(qfa, "qf"))
        at(KC_, 0, lambda: (poll(a, q, L, "qa", [qfa], qok, "qf", slp=1), run(SWAP)))
        for i in range(8): at(KC_, 1 + 2 * i, lambda i=i: fetch(0, i))
        at(opt.get("kc2", 41), 7, lambda: q.v(cnt_load(8), "c2"))
        at(43, 7, lambda: (stream_srd(), a.e("s_lshl_b32 s19, s16, 14")))
        at(44, 0, lambda: poll(a, q, L, "c2", [cnt_load(8)], CNT_OK, "c2", slp=8))
        def kvt():
            n = opt.get("kt_", 6)
            a.e("s_lshr_b32 s26, s2, 4")
            a.e("s_lshl_b32 s26, s26, 1")
            a.e("s_add_u32 s26, s26, s16")
            a.e(f"s_lshl_b32 s26, s26, {n + 6}")
            a.e(f"v_lshlrev_b32 v14, {n}, v2")
            q.v("buffer_load_dword v0, v14, s[8:11], s26 offen sc1")
        if opt.get("kt_", 0): at(44, 1, kvt)
        kds = []
        for i in range(16):
            def kd(i=i):
                if i % 4 == 0:
                    a.e(f"s_add_u32 m0, s19, {1024*i}")
                    a.e(f"s_add_u32 s42, s19, {1024*i}")
                q.v(f"buffer_load_dwordx4 v3, s[8:11], s42 offen offset:{1024*(i%4)} sc1 lds", "kv0")
            if i >= opt.get("kn", 4): kds.append(kd)
            else: at(44 + i // 4 + (1 if 44 + i // 4 >= KC_ else 0), 4 + 3 * (i % 4), kd)
        steps(32, 48, flat(gb[NA_:NA_ + NB_]), lead=2)
        assert not fx[0]
        fs(8); fy = Fine(a, opt.get("fy")); fy(0)
        pack(1)
        fy(1)
        rest = gb[NA_ + NB_:]
        W1, W2 = opt.get("qw_", (0, 0))
        run(kds)
        for _ in range(W1): run(rest.pop(0))
        fy(2)
        release(a, q, L, "rq", "Qst", "buffer_store_dword v12, off, s[12:15], s41 offset:8", [qst(i, preg(i), 12, "sc1") for i in range(8)])
        fy(3)
        qfl = "buffer_load_dword v15, off, s[12:15], s6 offset:8 sc1"
        fy(4)
        for _ in range(W2): run(rest.pop(0))
        q.v(qfl, "qf")
        for _ in range(opt.get("w3", 0)): run(rest.pop(0))
        fs(12); fy(5)
        run(SWAP)
        poll(a, q, L, "q", [qfl], qok, "qf", slp=1)
        fy(6)
        for i in range(8): fetch(1, i)
        fy(7)
        run(flat(rest))
        fs(9); fy(8)

    def pv_part(setup, vreads, zero):
        role[0] = "pv"; fx[0] = {}
        a.label(L("fpv"))
        q.vm, q.lg = list(state[0]), list(state[1])
        a.e("s_and_b32 s20, s3, 0xffff0000")
        a.e("s_lshl_b32 s26, s22, 1")
        a.e("s_add_u32 s26, s26, s16")
        a.e("s_sub_u32 s26, s26, 2")
        a.e("s_lshl_b32 s26, s26, 8")
        a.e("s_add_u32 s20, s20, s26")
        raw_plan(KS, 48, 48)
        if not NB1:
            at(KC, 8, "s_barrier")
            at(KC, 10, xl)
        at(15, 8, e0)
        PE = opt.get("pe", [])
        for i, k in enumerate(PE): at(k, 12 if (i and PE[i - 1] == k) else 4, lambda i=i: pub(i))
        steps(KS, 16)
        fs(6)
        N1, N2 = opt.get("pg_", (5, 3))
        gb = gelu(128, "g", lambda b: b < N1, "s17", 0)
        e1 = flat(gb[:N1])
        for i in range(16 if PQ else len(PE), 16): e1.insert((i - len(PE)) * opt.get("pd", 12), lambda i=i: pub(i))
        a.e("s_nop 3")
        run(e1)
        if NB1: xc()
        fs(12)
        K2 = opt.get("k2", 19)
        if not PQ:
            at(K2, 8, arrive)
            at(K2 + 1, 8, sig2)
        steps(16, 32, flat(gb[N1:]), lead=2)
        fs(7)
        a.e("s_lshl_b32 s26, s16, 7")
        a.e("s_add_u32 s17, s17, s26")
        a.e("s_sub_u32 s17, s17, 512")
        ua = gelu(192, "ua", lambda b: b >= N2, "s17", 32768)
        n0 = len(a.lines)
        stream_srd(); setup()
        a.e("s_lshl_b32 s6, s19, 14")
        a.e("s_lshl_b32 s20, s19, 13")
        su = [x.strip() for x in a.lines[n0:]]; del a.lines[n0:]
        if opt.get("sg", 1):
            steps(32, 43, flat(ua[:N2]), tailg=0)
            steps(43, 48, su, lead=0, tailg=0)
        else:
            steps(32, 48, flat(ua[:N2])); run(su)
        assert not fx[0]
        fs(8); fy = Fine(a, opt.get("fy"))
        for k in range(9): fy(k)
        ub = gelu(128, "ub", lambda b: True, "s17", 32768 + 128)
        rest = ua[N2:] + ub
        pend = []
        def dma(n0, n, lds0, tag):
            for i in range(n):
                def f(i=i):
                    if i % 4 == 0:
                        a.e(f"s_add_u32 m0, {lds0}, {n0 + 1024*i}")
                        a.e(f"s_add_u32 s7, {lds0}, {n0 + 1024*i}")
                    q.v(f"buffer_load_dwordx4 v3, s[8:11], s7 offen offset:{1024*(i%4)} sc1 lds", tag)
                pend.append(f)
        BS, BA, BB = opt.get("pb", (6, 9, 11))
        DD = opt.get("dd", 5)
        assert (BA - len(ua[N2:])) % 2 == 0 if BA >= len(ua[N2:]) else (N2 + BA) % 2 == 0
        for n in range(len(rest) + 1):
            if n == BS:
                q.wait("St")
                fy(9)
                a.e("s_barrier")
                fy(10)
                st(2); fs(9)
                if not opt.get("q1"): dma(32768, 16, "s6", "kv1")
                if opt.get("t2", 1): dma(65536, 8, "s20", "kv2")
            if n == BA:
                q.all(vm=False)
                fy(11)
                a.e("s_barrier")
                fy(12)
                a.e(f"s_mul_i32 s26, s19, {16*SS - 8192}")
                a.e(f"s_add_u32 s26, s26, {LDS_SC2 - LDS_SC}")
                a.e(f"v_add_u32 v{SW}, s26, v{SW}")
                a.e(f"v_add_u32 v{SR}, s26, v{SR}")
                run(pend); del pend[:]
                if not opt.get("t2", 1): dma(65536, 8, "s20", "kv2")
                dma(81920, 8, "s20", "kv2")
                if not opt.get("q3", 0): dma(98304, 16, "s6", "kv3")
            if n == BB:
                q.wait("kv1")
                fy(13)
                a.e("s_barrier")
                fy(14)
                fs(10)
                signal(a, L, "sig3", 2, 4)
            if n < len(rest):
                for i, x in enumerate(rest[n]):
                    if opt.get("gr", 1):
                        if i in (0, 16) and n >= BS:
                            for _ in range(opt.get("gd", 4)):
                                if pend: pend.pop(0)()
                            for _ in range(opt.get("gv", 4)):
                                if vreads: q.l(vreads.pop(0))
                    else:
                        if n >= BS and i % 4 == 0 and vreads: q.l(vreads.pop(0))
                        if i % (DD if n < BA else opt.get("d2", 4)) == 1 and pend: pend.pop(0)()
                    run([x])
        assert not vreads
        run(pend)
        zero()
        q.wait("kv2")
        q.all(vm=False)
        fy(15)
    return qk_part, pv_part
```

```python
import sys
sys.path.insert(0, "gen")
from asmlib import *
from layout import *
from conv import Conv
from aux import gen_aux
from front import *

RS = 1056
LDS_P = 131072
LDS_MX = 139264
LDS_FG = LDS_MX + 512
LDS_ML = LDS_MX + 1024
LDS_HALO = LDS_ML + 1024
LDS_TAP = LDS_HALO + 2048
LDS_STT = LDS_TAP + 3072
LDS_ATT = 163840
ES = 272
NA = 16
ARING = [16 * ((i + 11) % 16) for i in range(16)]
BIG = 2.0 ** 100
FK = [0, 8, 16, 20, 24, 28, 30]

DROP = []
ALIGN = [0]
def emit_interval(a, mfmas, fill, lo=0, hi=None):
    for i, m in enumerate(mfmas):
        if i < lo or (hi is not None and i >= hi): continue
        if m is not None:
            if ALIGN[0]: a(".p2alignl 3, 0xbf800000")
            a.e(m)
        for f in fill.get(i, []):
            if any(f.startswith(d) for d in DROP): continue
            a.e(f)

def conv_addr(a, NR, row0):
    a.e("v_lshrrev_b32 v12, 5, v2")
    a.e(f"v_mul_u32_u24 v12, {NR}, v12")
    a.e(f"v_add_u32 v12, {row0}, v12")
    a.e("v_and_b32 v13, 31, v2")
    a.e("v_lshlrev_b32 v13, 4, v13")
    a.e("v_lshl_add_u32 v14, v12, 9, v13")
    a.e("s_and_b32 s26, s25, 3")
    a.e("s_lshl_b32 s26, s26, 15")
    a.e("v_add_u32 v232, s26, v14")
    a.e("v_add_u32 v235, s49, v14")
    a.e("v_and_b32 v14, 4, v12")
    a.e("v_lshlrev_b32 v14, 5, v14")
    a.e("v_xor_b32 v236, v235, v14")
    a.e(f"v_add_u32 v238, {LDS_TAP}, v13")
    a.e(f"v_add_u32 v13, {LDS_HALO}, v13")
    a.e("v_cmp_eq_u32 vcc, 0, v12")
    a.e("v_subrev_u32 v233, 1024, v232")
    a.e(f"v_add_u32 v234, {512*NR}, v232")
    a.e("v_cndmask_b32 v233, v233, v13, vcc")
    a.e(f"v_cmp_eq_u32 vcc, {64-NR}, v12")
    a.e("v_add_u32 v13, 1024, v13")
    a.e("v_lshlrev_b32 v237, 3, v12")
    a.e("v_cndmask_b32 v234, v234, v13, vcc")
    a.e(f"v_add_u32 v237, {LDS_STT}, v237")

def gen_tail(a, L, st, fs, opt):
    q = Seq(a)
    PF = opt.get("pf", 10)
    q.vm = [f"A{k}" for k in range(PF) for _ in range(4)]
    BF = [32, 48]; YR = 64; XR = 96
    NS = 32
    acc = lambda k: 128 if k < 16 else 192
    def bread(k, tb):
        s = k % 8
        r = BF[k % 2] + 4 * tb
        if k % 16 < 8:
            return f"ds_read_b128 v[{r}:{r+3}], v6 offset:{8192*tb + 1024*s}"
        return f"ds_read_b128 v[{r}:{r+3}], v{28 + s % 4} offset:{8192*tb + 256*(s//4)}"
    a.e("v_add_u32 v6, s48, v3")
    a.e("s_waitcnt lgkmcnt(0)")
    fs(5)
    a.e("s_barrier")
    for tb in range(4): q.l(bread(0, tb), "B0")
    a.e("v_and_b32 v4, 15, v2")
    a.e("v_lshrrev_b32 v5, 4, v2")
    a.e("v_mov_b32 v12, 1")
    a.e("v_mov_b32 v15, 0x3f80")
    SEL = 16
    side = {}
    def at(k, g, fn): side.setdefault((k + g // 16, g % 16), []).append(fn)
    def spread(k, g, ops, per=2, skip=lambda g: False):
        n = 16 * k + g
        ops = list(ops)
        while ops:
            if not skip(n % 16):
                for _ in range(per):
                    if ops:
                        o = ops.pop(0)
                        at(n // 16, n % 16, o if callable(o) else (lambda o=o: a.e(o)))
            n += 1
    lo8 = lambda g: g < 8
    spread(0, 8, ["v_and_b32 v13, 7, v4", "v_lshlrev_b32 v13, 1, v13", "v_xor_b32 v13, v13, v5", "v_lshlrev_b32 v13, 4, v13",
                  "v_lshl_add_u32 v13, v4, 9, v13", "v_add_u32 v28, s49, v13", "v_xor_b32 v29, 64, v28", "v_xor_b32 v30, 128, v28",
                  "v_xor_b32 v31, 192, v28",
                  "s_and_b32 s26, s16, 2", "s_add_u32 s26, s26, s25", "s_and_b32 s26, s26, 3", "s_lshl_b32 s26, s26, 1",
                  "s_and_b32 s28, s16, 1", "s_add_u32 s26, s26, s28", "s_lshl_b32 s42, s26, 14",
                  "v_lshrrev_b32 v13, 1, v4", "v_xor_b32 v13, v13, v5", "v_lshlrev_b32 v13, 4, v13", "v_lshl_add_u32 v13, v4, 7, v13",
                  "v_add_u32 v8, s42, v13", "v_xor_b32 v9, 64, v8", "v_add_u32 v7, s42, v3",
                  "v_lshrrev_b32 v13, 3, v2", "v_lshrrev_b32 v14, 4, v2", "v_xor_b32 v14, v14, v2", "v_and_b32 v14, 7, v14",
                  "v_lshlrev_b32 v14, 4, v14", "v_lshl_add_u32 v10, v13, 10, v14", "v_xor_b32 v11, 64, v10",
                  "v_lshrrev_b32 v13, 2, v4", "v_cmp_eq_u32 vcc, v13, v5", "v_and_b32 v13, 1, v4", "v_lshlrev_b32 v13, 4, v13",
                  "v_lshlrev_b32 v13, v13, v15", "v_cndmask_b32 v13, 0, v13, vcc", "v_and_b32 v14, 2, v4", "v_cmp_eq_u32 vcc, 0, v14",
                  f"v_mov_b32 v{SEL+2}, 0", f"v_mov_b32 v{SEL+3}, 0", f"v_cndmask_b32 v{SEL}, 0, v13, vcc", f"v_sub_u32 v{SEL+1}, v13, v{SEL}",
                  f"v_mov_b32 v{SEL+4}, v{SEL}", f"v_mov_b32 v{SEL+5}, v{SEL+1}"], skip=lo8)
    KX = opt.get("kx", 26)
    for i in range(8):
        def xl(i=i):
            a.e(f"s_add_u32 m0, s42, {1024*i}")
            a.e(f"s_add_u32 s26, s58, {8192*i}")
            q.v(f"buffer_load_dwordx4 v{10 + i%2}, s[32:35], s26 offen lds", "X")
        at(KX, 1 + opt.get("dx", 4) * i, xl)
        at(opt.get("ku", 30), 8 + i, lambda i=i: q.l(f"ds_read_b128 v[{XR+4*i}:{XR+4*i+3}], v{8 + i%2} offset:{2048*(i//2)}", "XF", need=("X",)))
    YS = opt.get("ys", 2)
    for i in range(8):
        tb, h = i // 2, i % 2
        k, g0 = (16 + i // 2, 8 + 4 * (i % 2)) if YS == 2 else (16, 8 + 3 * i)
        src = [128 + 16 * (2 * h + ee) + 4 * tb + j for ee in range(2) for j in range(4)]
        for j in range(4):
            at(k, g0 + j // 2, lambda j=j, i=i, src=src: a.e(f"v_cvt_pk_bf16_f32 v{YR+4*i+j}, v{src[2*j]}, v{src[2*j+1]}"))
        at(k, g0 + 2, lambda i=i: q.v(f"buffer_store_dwordx4 v[{YR+4*i}:{YR+4*i+3}], v3, s[44:47], s{54 + i//4} offen offset:{1024*(i%4)} {opt.get('sm_', 'nt')}", "Yst"))
    KF, KL, KC = opt.get("k", (24, 27, 29))
    at(KF, 9, lambda: release(a, q, L, "ry", "Yst", "buffer_store_dword v12, off, s[12:15], s56",
        [f"buffer_store_dwordx4 v[{YR+4*i}:{YR+4*i+3}], v3, s[12:15], s{54 + i//4} offen offset:{1024*(i%4)} sc1" for i in range(8)]))
    yl = f"buffer_load_dword v14, off, s[12:15], s57 {opt.get('pm', 'sc1')}"
    at(KL, 9, lambda: q.v(yl, "yf"))
    def gety():
        poll(a, q, L, "y", [yl], ["v_readfirstlane_b32 s26, v14", "s_cmp_eq_u32 s26, 1"], "yf", slp=1)
        a.e("s_xor_b32 s54, s54, 0x10000")
        a.e("s_xor_b32 s55, s55, 0x10000")
    at(KC, 7, gety)
    for i in range(8):
        at(KC, 8 + i, lambda i=i: q.v(f"buffer_load_dwordx4 v[{YR+4*i}:{YR+4*i+3}], v3, s[12:15], s{54 + i//4} offen offset:{1024*(i%4)} {opt.get('lm', 'sc1')}", f"Y{i}"))
    nl = 4 * PF
    AS = opt.get("as", "4" * 16 + "0000" + "4" * 12)
    LG = opt.get("lg", (1, 5, 9, 13, 3))
    for k in range(NS):
        assert nl >= 4 * min(NS, k + 3)
        if k == 0: st(5)
        if k in FK: fs(6 + FK.index(k))
        q.wait(f"A{k}", f"B{k}")
        g = 0
        for nb_ in range(4):
            for tb_ in range(4):
                nb, tb = ORD16[g] if opt.get("o2", 1) else (nb_, tb_)
                d = acc(k) + 16 * nb + 4 * tb; r = areg(k, nb); b = BF[k % 2] + 4 * tb
                c = "0" if k % 16 == 0 else f"v[{d}:{d+3}]"
                a.e(f"{M16} v[{d}:{d+3}], a[{r}:{r+3}], v[{b}:{b+3}], {c}")
                if g < 8 and g % 2 == 0 and k + 1 < NS:
                    q.l(bread(k + 1, g // 2), f"B{k+1}")
                if nl < 4 * NS and nl // 4 < k + NA and g in LG[:int(AS[k])]:
                    aload(a, q, nl // 4, nl % 4); nl += 1
                for fn in side.pop((k, g), []): fn()
                g += 1
    assert not side, side.keys()
    st(6); fs(13)
    def sel(i, R, tag):
        tb, h = i // 2, i % 2
        out = []
        for ee in range(2):
            d = 192 + 16 * (2 * h + ee) + 4 * tb
            out.append(lambda d=d, ee=ee: q.e(f"{M16} v[{d}:{d+3}], v[{SEL+2*ee}:{SEL+2*ee+3}], v[{R+4*i}:{R+4*i+3}], v[{d}:{d+3}]", need=(tag,)))
        return out
    for i in range(8):
        for f in sel(i, XR, "XF"): f()
    PK = 128
    post = []
    for i in range(8):
        tb, h = i // 2, i % 2
        src = [192 + 16 * (2 * h + ee) + 4 * tb + j for ee in range(2) for j in range(4)]
        o = [f"v_cvt_pk_bf16_f32 v{PK+4*i+j}, v{src[2*j]}, v{src[2*j+1]}" for j in range(4)]
        o.append(lambda i=i, tb=tb, h=h: q.l(f"ds_write_b128 v{8+h}, v[{PK+4*i}:{PK+4*i+3}] offset:{8192 + 2048*tb}"))
        if h:
            o += [lambda ii=ii: q.l(f"ds_read_b128 v[{160+4*ii}:{163+4*ii}], v7 offset:{8192 + 1024*ii}", f"E{ii}") for ii in (i - 1, i)]
        post.append(o)
    def out(ii):
        a.e(f"s_add_u32 s26, s58, {8192*ii}")
        q.v(f"buffer_store_dwordx4 v[{160+4*ii}:{163+4*ii}], v{10 + ii%2}, s[36:39], s26 offen {opt.get('omod', 'nt')}", need=(f"E{ii}",))
    R_ = lambda ops: [x() if callable(x) else a.e(x) for x in ops]
    for i in range(8):
        m = sel(i, YR, f"Y{i}")
        o = post[i - 4] if i >= 4 else []
        m[0](); R_(o[:2]); m[1](); R_(o[2:])
    fs(14)
    for i in range(4, 8):
        R_(post[i])
        out(i - 4)
    for ii in range(4, 8): out(ii)

def ER(i):
    return (96 + 8 * i) if i < 4 else (32 + 8 * (i - 4))

def areg(k, nb):
    return ARING[k % NA] + 4 * nb

def aload(a, q, k, nb):
    s = k % 8
    if nb == 0:
        if k % 16 < 8:
            a.e(f"s_add_u32 s59, {'s52' if k < 16 else 's53'}, {524288 + 32768*(s//4) + 4096*(s%4)}")
        else:
            a.e(f"s_add_u32 s59, {'s50' if k < 16 else 's51'}, {4096*s}")
    r = areg(k, nb)
    q.v(f"buffer_load_dwordx4 a[{r}:{r+3}], v3, s[12:15], s59 offen offset:{1024*nb} sc1", f"A{k}")

def gen_attn(a, name, stamp=False, opt=None):
    dg = [3 + (15 * i) // 4 for i in range(16)]
    opt = dict(dict(ps=1, xe=1, qw=62, dg=dg, mg=[2, 17, 32, 47, 60], rg=[g for g in range(8, 60) if g not in dg][:32], rot=4,
                    kg_=list(range(8, 16)) + list(range(24, 32)), qbe=57, pbe=58, pvg=[4, 57, 60, 60, 60, 61, 61, 61]), **(opt or {}))
    OOL[:] = []
    DROP[:] = opt.get('drop', [])
    ALIGN[0] = opt.get('al', 0)
    Fine.op = 's_memtime' if opt.get('cyc') else 's_memrealtime'
    nP = 16
    L = lambda s: f"{name}_{s}"
    st = Stamper(a, stamp in (1, 5))
    fs = Fine(a, stamp == 2)
    ff = Fine(a, stamp == 3)
    fp = Fine(a, stamp == 6)
    kernel_begin(a, name)
    a.e("s_cmp_ge_u32 s2, 256")
    a.e(f"s_cbranch_scc1 {L('end')}")
    a.e(f"s_load_dwordx2 s[4:5], s[0:1], {KA['ws']}")
    a.e(f"s_load_dwordx2 s[6:7], s[0:1], {KA['x']}")
    a.e(f"s_load_dwordx2 s[40:41], s[0:1], {KA['wq']}")
    a.e(f"s_load_dwordx2 s[8:9], s[0:1], {KA['wk']}")
    a.e(f"s_load_dwordx2 s[96:97], s[0:1], {KA['wup']}")
    a.e(f"s_load_dwordx2 s[44:45], s[0:1], {KA['dw']}")
    a.e(f"s_load_dwordx4 s[48:51], s[0:1], {KA['out']}")
    a.e(f"s_load_dwordx4 s[52:55], s[0:1], {KA['wv']}")
    a.e(f"s_load_dwordx4 s[56:59], s[0:1], {KA['wdn']}")
    a.e("s_and_b32 s20, s2, 7")
    a.e("s_lshl_b32 s20, s20, 5")
    a.e("s_lshr_b32 s21, s2, 3")
    a.e("s_add_u32 s31, s20, s21")
    if opt.get("sw62", 1):
        a.e("s_and_b32 s20, s31, 62")
        a.e("s_cmp_eq_u32 s20, 60")
        a.e("s_cselect_b32 s20, 64, 0")
        a.e("s_xor_b32 s31, s31, s20")
    if opt.get("map") == 1:
        a.e("s_and_b32 s20, s2, 6")
        a.e("s_lshl_b32 s20, s20, 5")
        a.e("s_lshl_b32 s21, s21, 1")
        a.e("s_add_u32 s31, s20, s21")
        a.e("s_and_b32 s20, s2, 1")
        a.e("s_add_u32 s31, s31, s20")
    a.e("s_lshr_b32 s21, s31, 7")
    a.e("s_and_b32 s22, s31, 1")
    a.e("s_bfe_u32 s23, s31, 0x60001")
    a.e("v_lshrrev_b32 v1, 6, v0")
    a.e("v_and_b32 v2, 63, v0")
    a.e("v_readfirstlane_b32 s16, v1")
    a.e("v_lshlrev_b32 v3, 4, v2")
    a.e("s_mul_i32 s24, s21, 4096000")
    N0 = opt.get("n0", 62)
    a.e(f"s_mul_i32 s25, s22, {125 - 2*N0}")
    a.e(f"s_add_i32 s25, s25, {N0}")
    a.e("s_lshl_b32 s27, s23, 16")
    a.e("s_waitcnt lgkmcnt(0)")
    st(0); ff(0)
    def fin_srd(d, n):
        a.e(f"s_and_b32 s{d+1}, s{d+1}, 0xffff")
        a.e(f"s_mov_b32 s{d+2}, {n}")
        a.e(f"s_mov_b32 s{d+3}, 0x00020000")
    q = Seq(a)
    srd_off(a, 32, 6, "s24", 4096000)
    a.e("v_lshrrev_b32 v4, 3, v2")
    a.e("v_and_b32 v5, 7, v2")
    a.e("v_lshlrev_b32 v5, 4, v5")
    a.e("v_lshl_add_u32 v4, v4, 10, v5")
    a.e("s_lshl_b32 s26, s16, 14")
    a.e("s_add_u32 s26, s26, s27")
    a.e("s_lshl_b32 s28, s22, 9")
    a.e("s_add_u32 s26, s26, s28")
    a.e("v_mov_b32 v1, v4")
    a.e("s_mov_b32 s20, s26")
    def xld(s_):
        if s_ % 4 == 0: a.e(f"s_xor_b32 s7, s20, {8192*(s_//8) + 512*((s_//4)%2)}")
        q.v(f"buffer_load_dwordx4 v[{16+4*s_}:{19+4*s_}], v1, s[32:35], s7 offen offset:{128*(s_%4)} {opt.get('xmod', 'nt')}", f"x{s_}")
    NX = opt.get("nx", 16)
    MF = opt.get("mf", 0)
    if MF:
        fin_srd(40, 524288); fin_srd(8, 524288)
        mi = m_issue(a, q)
        for s_ in range(opt.get("mx0", 0)): xld(s_)
        for f in mi: f()
        mi = []
    for s_ in range(opt.get("mx0", 0) if MF else 0, NX): xld(s_)
    opt["xrest"] = [lambda s_=s_: xld(s_) for s_ in range(NX, 16)]
    fin_srd(96, 1048576)
    touches(a, q, L, opt)
    if not MF: fin_srd(40, 524288); fin_srd(8, 524288)
    fin_srd(44, 5120)
    make_srd(a, 12, 4, 0x4000000)
    make_srd(a, 92, 50, 256)
    srd_off(a, 36, 48, "s24", 4096000)
    if not MF: mi = m_issue(a, q)
    def clear():
        a.e("v_mov_b32 v14, 0")
        a.e("v_lshlrev_b32 v13, 2, v2")
        a.e("s_lshl_b32 s26, s31, 2")
        a.e("s_add_u32 s26, s26, s16")
        a.e("s_lshl_b32 s28, s26, 8")
        a.e(f"s_add_u32 s28, s28, {WS_MX}")
        q.v("buffer_store_dword v14, v13, s[12:15], s28 offen sc1", "St")
        a.e("s_lshl_b32 s28, s31, 5")
        a.e("s_add_u32 s28, s28, s16")
        a.e("s_lshl_b32 s28, s28, 2")
        a.e(f"s_add_u32 s28, s28, {WS_FL}")
        a.e("v_and_b32 v13, 48, v2")
        a.e("s_getreg_b32 s26, hwreg(HW_REG_XCC_ID, 0, 4)")
        a.e("v_cmp_eq_u32 vcc, 48, v13")
        a.e("v_mov_b32 v14, s26")
        a.e("s_nop 0")
        a.e("v_cndmask_b32 v14, 0, v14, vcc")
        q.v("buffer_store_dword v14, v13, s[12:15], s28 offen sc1", "St")
    a.e("s_cmp_ge_u32 s23, 63")
    a.e(f"s_cbranch_scc1 {L('aux')}")
    def emit_aux(q0=q, vm0=list(q.vm)):
        a.label(L("aux"))
        q0.vm, q0.lg = list(vm0), []
        for f in mi: f()
        q0.v("buffer_load_dword v0, v7, s[44:47], 0 offen")
        m_addr(a)
        mfin = m_tile(a, q0)
        mfin()
        q0.all()
        a.e("s_barrier")
        signal(a, L, "sig1a", 0, 0)
        signal(a, L, "sig2a", 1, 8)
        signal(a, L, "sig3a", 2, 4)
        a.e("s_lshl_b32 s20, s21, 1")
        a.e("s_add_u32 s20, s20, s22")
        gen_aux(a, L, st, ff, opt)
        signal(a, L, "sig4a", 0, 12, shard=False)
        for k in range(5, 7): st(k)
        for k in range(15): fs(k)
        if stamp in (4, 6):
            for k in range(16): Fine(a, True)(k)
        for k in range(9, 15): ff(k)
        a.e(f"s_branch {L('fin')}")
    qk_part, pv_part = gen_front(a, q, L, st, ff, mi, clear, opt)
    qf = q
    qk_part()
    def tail_consts():
        t = Asm()
        t.e("s_lshl_b32 s26, s22, 2")
        t.e("s_add_u32 s26, s26, s16")
        t.e("s_lshl_b32 s53, s26, 16")
        t.e(f"s_add_u32 s53, s53, {WS_W3}")
        t.e("s_xor_b32 s52, s53, 0x40000")
        t.e("s_lshl_b32 s58, s26, 7")
        t.e("s_add_u32 s58, s58, s27")
        t.e("s_xor_b32 s54, s31, 1")
        t.e("s_lshl_b32 s54, s54, 3")
        t.e("s_add_u32 s54, s54, s16")
        t.e("s_lshl_b32 s54, s54, 13")
        t.e(f"s_add_u32 s54, s54, {WS_GU + 32768}")
        t.e("s_add_u32 s55, s54, 4096")
        t.e("s_lshl_b32 s26, s22, 15")
        t.e("s_add_u32 s50, s52, s26")
        t.e("s_add_u32 s51, s53, s26")
        t.e("s_lshl_b32 s26, s22, 14")
        t.e("s_add_u32 s52, s52, s26")
        t.e("s_add_u32 s53, s53, s26")
        t.e("s_add_u32 s26, s25, 3")
        t.e("s_and_b32 s26, s26, 3")
        t.e("s_lshl_b32 s48, s26, 15")
        t.e("s_add_u32 s26, s25, 1")
        t.e("s_and_b32 s26, s26, 3")
        t.e("s_lshl_b32 s49, s26, 15")
        t.e("s_lshl_b32 s56, s31, 5")
        t.e("s_add_u32 s56, s56, s16")
        t.e("s_lshl_b32 s56, s56, 2")
        t.e(f"s_add_u32 s56, s56, {WS_FL}")
        t.e("s_xor_b32 s57, s56, 128")
        return [x.strip() for x in t.lines]
    a.e("s_mov_b32 s17, s25")
    a.e(f"s_mov_b32 s101, {f2u(-BIG)}")
    NEAR = ["s_cmp_eq_u32 s21, 0", "s_cselect_b32 s46, s14, 0", "s_mov_b64 s[44:45], s[12:13]"]
    def guard(r):
        return [f"v_add_f32 v{r}, v{r}, v{r+1}", f"v_cmp_nle_f32 vcc, s101, v{r}", "s_cmp_eq_u32 s101, 0", "s_cselect_b64 s[28:29], 0, vcc",
                "s_cmp_lg_u64 s[28:29], 0", f"s_cbranch_scc1 {L('redo')}"]

    def dma_group():
        return "s_and_b32 m0, s18, 0x1ffff", [f"buffer_load_dwordx4 v3, s[8:11], s18 offen offset:{1024*j} {opt.get('kvmod', 'sc1')} lds" for j in range(4)]
    def dma_tile():
        for g in range(4):
            pre, ld = dma_group()
            a.e(pre); a.e("s_nop 0")
            for x in ld: a.e(x)
            a.e(f"s_add_u32 s18, s18, {4096 if g < 3 else 32768 - 3*4096}")
    def place_dma(fill, gaps):
        k = 0
        for g in range(4):
            pre, ld = dma_group()
            fill.setdefault(gaps[k] - 1, []).append(pre)
            for j in range(4):
                fill.setdefault(gaps[k], []).append(ld[j]); k += 1
            fill.setdefault(gaps[k - 1] + 1, []).append(f"s_add_u32 s18, s18, {4096 if g < 3 else 32768 - 3*4096}")
    auxl = cnt_load(4, "v11")
    auxc = ["v_cmp_le_u32 vcc, v7, v14"] + CNT_OK[1:]

    KB = [32, 96]; S = 160; NEGM = 176; E = 192; PK = 200; LS = 204
    VK = 8; VPW = 9; TMP = 10
    MX0 = 208
    def qk_setup():
        a.e("v_and_b32 v4, 15, v2")
        a.e("v_lshrrev_b32 v5, 4, v2")
        a.e("v_and_b32 v6, 0x27, v2")
        a.e("v_and_b32 v7, 8, v2")
        a.e("v_lshl_add_u32 v6, v7, 1, v6")
        a.e("v_and_b32 v7, 16, v2")
        a.e("v_lshrrev_b32 v7, 1, v7")
        a.e("v_add_lshl_u32 v6, v6, v7, 4")
        a.e("s_lshl_b32 s29, s16, 14")
        a.e(f"v_add_u32 v{VK}, s29, v6")
        a.e("s_lshl_b32 s29, s16, 11")
        a.e(f"s_add_u32 s29, s29, {LDS_P}")
        a.e(f"v_lshl_add_u32 v{VPW}, v2, 3, s29")
        for i in range(4):
            a.e(f"v_mov_b32 v{LS+i}, 0")
        for i in range(4):
            a.e(f"v_mov_b32 v{MX0+i}, 0xff800000")
    qk_setup()
    def kread(par, s, imm):
        r = KB[par] + 4 * s
        return f"ds_read_b128 v[{r}:{r+3}], v{VK} offset:{imm + 1024*s}"
    def chain(par, qb, c0):
        out = []
        for n in range(16):
            s = 15 - n if (qb % 2 and c0 != "0" and opt.get("zz", 1)) else n
            k = KB[par] + 4 * s; q = 64 * qb + 4 * s; d = S + 4 * qb
            c = c0 if n == 0 else f"v[{d}:{d+3}]"
            out.append(f"{M16} v[{d}:{d+3}], v[{k}:{k+3}], a[{q}:{q+3}], {c}")
        return out
    q = Seq(a)
    mf = [m for qb in range(4) for m in chain(0, qb, "0")]
    ST = 212
    tc = tail_consts() + [
        "s_mul_i32 s28, s16, 34", "s_lshl_b32 s29, s23, 6", "s_add_u32 s28, s28, s29", "s_sub_u32 s28, s28, 2",
        f"v_add_u32 v{ST+16}, s28, v2",
        f"v_max_i32 v{ST+17}, 0, v{ST+16}", f"v_min_i32 v{ST+17}, {T-1}, v{ST+17}", f"v_lshrrev_b32 v{ST+18}, 6, v{ST+17}", f"v_and_b32 v{ST+17}, 63, v{ST+17}",
        f"v_lshlrev_b32 v{ST+17}, 3, v{ST+17}", f"v_lshl_add_u32 v{ST+17}, v{ST+18}, 12, v{ST+17}",
        "s_lshr_b32 s6, s31, 7", "s_lshl_b32 s6, s6, 18", f"s_add_u32 s6, s6, {WS_ST}",
        "s_lshl_b32 s28, s16, 1", "s_add_u32 s28, s28, s23", "s_sub_u32 s28, s28, 1", "s_max_i32 s28, s28, 0", "s_min_i32 s28, s28, 62",
        "s_sub_u32 s28, s28, s23", "s_lshl_b32 s28, s28, 1", "s_add_u32 s28, s28, s31", "s_lshl_b32 s28, s28, 16",
        "s_xor_b32 s29, s16, 1", f"s_mul_i32 s29, s29, {62*512}", "s_add_u32 s28, s28, s29", f"s_add_u32 s7, s28, {WS_GU}",
        "s_lshl_b32 s29, s16, 10", f"s_add_u32 s42, s29, {LDS_HALO}",
        "s_xor_b32 s28, s31, 1", "s_lshl_b32 s28, s28, 1", "s_add_u32 s28, s28, s16", "s_lshl_b32 s28, s28, 9", f"s_add_u32 s28, s28, {WS_MX}",
        f"v_lshl_add_u32 v{ST+18}, v2, 3, s28", f"v_writelane_b32 v{ST+18}, s57, 1",
        f"s_mul_i32 s28, s16, {34*8}", f"s_add_u32 s28, s28, {LDS_STT}", f"v_lshl_add_u32 v{ST+19}, v2, 3, s28"]
    t_ = Asm()
    t_.e("s_lshl_b32 s28, s16, 5")
    conv_addr(t_, 16, "s28")
    for x in ["s_lshl_b32 s28, s16, 9", "s_lshl_b32 s41, s31, 10", "s_add_u32 s41, s41, s28", f"s_add_u32 s41, s41, {WS_MX}",
              f"s_add_u32 s28, s28, {LDS_ML}", "v_lshlrev_b32 v244, 3, v2", "v_add_u32 v245, s28, v244", f"v_add_u32 v246, {LDS_ML + 4}, v244",
              "s_mov_b32 s43, 0xffff0000"]: t_.e(x)
    tc += [x.strip() for x in t_.lines]
    qf.wait("kv0", "qd")
    qf.all(vm=False)
    fy = Fine(a, opt.get("fy")); fy(9)
    a.e("s_barrier")
    fy(10)
    st(2); ff(10)
    if opt.get("qe"):
        for n in range(12): q.l(kread(0, n, 0), f"K{n}")
        for n in range(64):
            q.e(mf[n], need=(f"K{n}",))
            if n < 4: q.l(kread(0, 12 + n, 0), f"K{12+n}")
            elif tc: a.e(tc.pop(0))
    else:
        a.e(f"v_add_u32 v7, {LDS_XS}, v3")
        rd = []
        for n in range(64):
            qb, s = n // 16, n % 16
            rd.append((f"ds_read_b128 a[{64*qb+4*s}:{64*qb+4*s+3}], v7 offset:{16384*((s%8)//2) + 8192*(s//8) + 2048*qb + 1024*(s%2)}", f"Q{n}"))
            if qb == 0: rd.append((kread(0, s, 0), f"Q{n}"))
        for _ in range(14): q.l(*rd.pop(0))
        for n in range(64):
            if n % 2 == 0: q.wait(f"Q{n+1}")
            a.e(mf[n])
            if opt.get("q1") and n % 3 == 0 and n < 48:
                i = n // 3
                if i % 4 == 0:
                    a.e(f"s_add_u32 m0, s19, {32768 + 1024*i}")
                    a.e(f"s_add_u32 s18, s19, {32768 + 1024*i}")
                a.e(f"buffer_load_dwordx4 v3, s[8:11], s18 offen offset:{1024*(i%4)} sc1 lds")
            for _ in range(2 if n < 14 else 1):
                if rd: q.l(*rd.pop(0))
            for _ in range(0 if n < 14 else 2 if rd else 3):
                if tc: a.e(tc.pop(0))
        a.label(L("qk_again"))
        fy(11)
        a.e("s_barrier")
        fy(12)
    assert not tc
    n0_ = len(a.lines)
    a.e("s_nop 7")
    for qb in range(4):
        d = S + 4 * qb
        a.e(f"v_max3_f32 v{E+qb}, v{d}, v{d+1}, v{d+2}")
        a.e(f"v_max3_f32 v{E+qb}, v{E+qb}, v{d+3}, v{MX0+qb}")
    def group_reduce(r, t, op):
        for sw in ("v_permlane16_swap_b32", "v_permlane32_swap_b32"):
            for qb in range(4):
                a.e(f"v_mov_b32 v{t+qb}, v{r+qb}")
            a.e("s_nop 1")
            for qb in range(4):
                a.e(f"{sw} v{r+qb}, v{t+qb}")
            a.e("s_nop 1")
            for qb in range(4):
                a.e(f"{op} v{r+qb}, v{r+qb}, v{t+qb}")
    group_reduce(E, E + 4, "v_max_f32")
    a.e("s_lshl_b32 s29, s16, 8")
    a.e(f"s_add_u32 s29, s29, {LDS_MX}")
    a.e(f"v_lshl_add_u32 v{TMP}, v4, 4, s29")
    a.e(f"ds_write_b128 v{TMP}, v[{E}:{E+3}]")
    a.e(f"v_xor_b32 v{TMP}, 256, v{TMP}")
    if opt.get("q3", 0):
        mx = a.lines[n0_:]; del a.lines[n0_:]
        a.e("s_lshl_b32 s19, s16, 14")
        for n, x in enumerate(mx):
            if n in (0, 13, 27, len(mx) - 1):
                i = 4 * (0, 13, 27, len(mx) - 1).index(n)
                a.e(f"s_add_u32 m0, s19, {98304 + 1024*i}")
                a.e(f"s_add_u32 s18, s19, {98304 + 1024*i}")
                for j in range(4): a.e(f"buffer_load_dwordx4 v3, s[8:11], s18 offen offset:{1024*j} sc1 lds")
            a("    s_nop 2" if n == 0 else x)
    a.e(f"s_waitcnt vmcnt({16 if opt.get('q3', 0) else 0}) lgkmcnt(0)")
    fy(13)
    a.e("s_barrier")
    fy(14)
    a.e(f"ds_read_b128 v[{E+4}:{E+7}], v{TMP}")
    for s in range(8):
        a.e(kread(1, s, 32768))
    a.e("s_waitcnt lgkmcnt(8)")
    for qb in range(4):
        a.e(f"v_max_f32 v{E+qb}, v{E+qb}, v{E+4+qb}")
    for qb in range(4):
        for j in range(4):
            a.e(f"v_sub_f32 v{NEGM+4*qb+j}, 0, v{E+qb}")
    a.e(f"v_mov_b32 v242, v{NEGM}")
    a.e("s_waitcnt lgkmcnt(4)")
    for s in range(8, 16):
        a.e(kread(1, s, 32768))
        if s in (9, 11, 13):
            qb = (s - 7) // 2
            a.e(f"v_mov_b32_dpp v242, v{NEGM+4*qb} quad_perm:[0,1,2,3] row_mask:{1 << qb:#x} bank_mask:0xf")
    for qb in range(4):
        for j in range(4):
            a.e(f"v_add_f32 v{S+4*qb+j}, v{S+4*qb+j}, v{NEGM+4*qb}")
    def softmax_ops(qb, par):
        e = E + 4 * (qb % 2); p = PK + 2 * (qb % 2); d = S + 4 * qb
        ex = [f"v_exp_f32{opt.get('e64', '')} v{e+j}, v{d+j}" for j in range(4)]
        ad = [f"v_add_f32 v{LS+qb}, v{LS+qb}, v{e+j}" for j in range(4)]
        cv = [f"v_cvt_pk_bf16_f32 v{p+j}, v{e+2*j}, v{e+2*j+1}" for j in range(2)]
        wr = f"ds_write_b64 v{VPW}, v[{p}:{p+1}] offset:{par*4096 + qb*512}"
        return ex, ad, cv, wr
    ex, ad, cv, wr = softmax_ops(0, 0)
    for x in ex + ["s_nop 0"] + cv + ad + [wr]: a.e(x)
    a.e("s_waitcnt lgkmcnt(1)")
    fill = {}
    ops = []
    for qb in range(1, 4):
        ex, ad, cv, wr = softmax_ops(qb, 0)
        ops += ex + [ad[0]] + cv + ad[1:] + [wr]
    for i, x in enumerate(ops):
        fill.setdefault(i * 15 // len(ops), []).append(x)
    ROT = opt.get("rot", 0)
    emit_interval(a, chain(1, 0, f"v[{NEGM}:{NEGM+3}]") + chain(1, 1, f"v[{NEGM+4}:{NEGM+7}]")[:ROT], fill)
    a.e("s_waitcnt vmcnt(0) lgkmcnt(0)")
    a.e("s_sub_u32 s17, s17, 1")
    fy(15)
    a.e("s_barrier")

    XT = ["buffer_load_dword v0, v7, s[32:35], s40 offen", "s_add_u32 s40, s40, 1024"]
    def qk_interval(par, lo=0, hi=None):
        mf = []
        for c in range(5):
            qb = (c + 1) % 4
            mf += chain(par if c < 3 else par ^ 1, qb, f"v[{NEGM+4*qb}:{NEGM+4*qb+3}]")
        mf = mf[ROT:64 + ROT]
        fill = {}
        F_ = lambda g, x: fill.setdefault(g, []).append(x)
        rgaps = opt.get("kg_", [1, 2, 3, 12, 13, 14, 16, 17, 18, 28, 29, 30, 32, 33, 34, 35])
        if par == 1: F_(rgaps[0] - 1, f"v_xor_b32 v{VK}, 0x10000, v{VK}")
        imm = 32768 * (par ^ 1)
        for s in range(16):
            F_(rgaps[s], kread(par ^ 1, s, imm))
        sm = opt.get("sm", [4, 5, 6, 7, 8, 8, 9, 10, 10, 11, 11])
        for c in range(4):
            ex, ad, cv, wr = softmax_ops(c, par)
            for g, x in zip(sm, ex + cv + [wr] + ad): F_(16 * c + g - ROT, x)
        kw = 47 - ROT
        nwr = sum(1 for c in range(4) if rgaps[-1] <= 16 * c + sm[6] - ROT <= kw)
        F_(kw, f"s_waitcnt lgkmcnt({nwr})")
        F_(kw + 1, "s_sub_u32 s17, s17, 1")
        if par == 1:
            F_(kw - 3, "s_cmp_lt_u32 s17, s40")
            fill.setdefault(kw - 2, []).extend([f"s_cbranch_scc1 {L('touch')}", L("touch_ret") + ":"])
        if stamp == 7:
            F_(kw + 2, "s_mov_b32 m0, s17"); F_(kw + 3, "v_writelane_b32 v240, s60, m0"); F_(kw + 3, "s_memtime s[60:61]")
        if opt.get("kt"):
            F_(opt["kt"][1], "buffer_load_dword v0, v3, s[8:11], s41 offen sc1"); F_(46, "s_add_u32 s41, s41, 32768")
        XE = opt.get("xe", 0)
        F_(opt.get("xg", 57) - 1, "s_cmp_eq_u32 s17, 0")
        F_(opt.get("xg", 57), f"s_cbranch_scc1 {L('qk_exit')}")
        F_(opt.get("qw", 63), "s_waitcnt lgkmcnt(0)"); F_(63, "s_barrier")
        for c in range(4):
            last, first = 16 * c - 1 - ROT, 16 * c + sm[0] - ROT
            n = first - last + sum(len([x for x in fill.get(g % 64, []) if not x.endswith(":")]) for g in range(last, first))
            g = last + 2
            while n < 8:
                F_(g % 64, "s_nop 0"); n += 1; g += 1
                assert g <= first
        emit_interval(a, mf, fill, lo, hi)

    if stamp == 7:
        a.e("v_mov_b32 v240, 0")
        a.e("s_memtime s[60:61]")
    a.e("v_and_b32 v11, 3, v2")
    a.e("v_lshlrev_b32 v11, 6, v11")
    a.e("v_mov_b32 v7, 64")
    a.e("v_writelane_b32 v11, 8, 4")
    a.e("v_writelane_b32 v7, 4, 4")
    if opt.get("kt"):
        a.e("s_lshr_b32 s41, s2, 4")
        a.e("s_lshl_b32 s41, s41, 1")
        a.e("s_add_u32 s41, s41, s16")
        a.e("s_lshl_b32 s41, s41, 10")
        a.e(f"s_add_u32 s41, s41, {32768 * opt['kt'][0]}")
    a.e("s_lshr_b32 s40, s31, 1")
    a.e(f"s_and_b32 s40, s40, {opt.get('xs', 15)}")
    a.e("s_lshl_b32 s40, s40, 1")
    a.e(f"s_add_u32 s40, s40, {opt.get('xb', 12)}")
    st(3); ff(11)
    QB = opt.get("qbe", 0)
    if QB:
        a.e(f"s_branch {L('qk_in')}")
        a(".p2align 6")
        a.label(L("qk_loop"))
        XE = opt.get("xe", 0)
        qk_interval(0, QB)
        if not XE: a.e(f"s_cbranch_scc1 {L('qk_done')}")
        a.label(L("qk_in"))
        qk_interval(1)
        if not XE: a.e(f"s_cbranch_scc1 {L('qk_done')}")
        qk_interval(0, 0, QB)
        a.e(f"s_branch {L('qk_loop')}")
        a.label(L("qk_exit"))
    else:
        a(".p2align 6")
        a.label(L("qk_loop"))
        qk_interval(1)
        a.e(f"s_cbranch_scc1 {L('qk_done')}")
        qk_interval(0)
        a.e(f"s_cbranch_scc0 {L('qk_loop')}")
    a.label(L("qk_done"))
    def tl(srd, so):
        a.e("v_lshlrev_b32 v12, 7, v2")
        a.e(f"buffer_load_dword v0, v12, s[{srd}:{srd+3}], {so} offen")
    def b_code():
        a.e("s_getpc_b64 s[28:29]")
        a.label(L("pc0"))
        a.e(f"s_sub_u32 s28, s28, {L('pc0')} - {L('qk_done')}")
        a.e("s_subb_u32 s29, s29, 0")
        a.e("s_lshr_b32 s30, s2, 3")
        a.e("s_lshl_b32 s30, s30, 1")
        a.e("s_add_u32 s30, s30, s16")
        a.e("s_lshl_b32 s30, s30, 10")
        a.e("v_lshl_add_u32 v12, v2, 4, s30")
        a.e(f"v_min_u32 v12, {L('end')} - {L('qk_done')}, v12")
        a.e("global_load_dword v0, v12, s[28:29]")
    def b_w(part):
        def f():
            a.e("s_lshr_b32 s30, s2, 3")
            a.e("s_lshl_b32 s30, s30, 1")
            a.e("s_add_u32 s30, s30, s16")
            a.e("s_lshl_b32 s30, s30, 13")
            a.e(f"s_add_u32 s30, s30, {WS_W3 + 524288*part}")
            tl(12, "s30")
        return f
    foldl = "buffer_load_dword v13, off, s[92:95], 0 offset:12 sc1"
    def b_c3():
        a.e("s_waitcnt vmcnt(0)")
        poll(a, Seq(a), L, "qk_c3", [auxl], auxc, "aux", slp=16)
    def b_c4():
        a.e("s_waitcnt vmcnt(0)")
        poll(a, Seq(a), L, "qk_c4", [foldl], ["v_readfirstlane_b32 s28, v13", "s_cmp_ge_u32 s28, 4"], "aux", slp=16)
    def b_small():
        a.e("s_mov_b32 m0, s42")
        for c in range(8):
            a.e(f"buffer_load_dwordx2 v[{ST+2*c}:{ST+2*c+1}], v{ST+17}, s[12:15], s6 offen offset:{512*c} sc1")
        a.e("buffer_load_dwordx4 v3, s[12:15], s7 offen sc1 lds")
        a.e(f"buffer_load_dword v0, v{ST+18}, s[12:15], 0 offen sc1")
    def b_stat():
        a.e("s_waitcnt vmcnt(0)")
        for ct in range(1, 8):
            a.e(f"v_pk_add_f32 v[{ST}:{ST+1}], v[{ST}:{ST+1}], v[{ST+2*ct}:{ST+2*ct+1}]")
        a.e(f"v_mul_f32 v{ST}, {f2u(1/512)}, v{ST}")
        a.e(f"v_mul_f32 v{ST+1}, {f2u(1/512)}, v{ST+1}")
        a.e(f"v_fma_f32 v{ST+1}, -v{ST}, v{ST}, v{ST+1}")
        a.e(f"v_max_f32 v{ST+1}, 0, v{ST+1}")
        a.e(f"v_add_f32 v{ST+1}, {f2u(1e-5)}, v{ST+1}")
        a.e(f"v_rsq_f32 v{ST+1}, v{ST+1}")
        a.e(f"v_cmp_gt_u32 vcc, {T}, v{ST+16}")
        a.e(f"v_mul_f32 v{ST}, v{ST}, v{ST+1}")
        a.e(f"v_sub_f32 v{ST}, 0, v{ST}")
        a.e(f"v_cndmask_b32 v{ST+2}, 0, v{ST+1}, vcc")
        a.e(f"v_cndmask_b32 v{ST+3}, 0, v{ST}, vcc")
        a.e(f"ds_write_b64 v{ST+19}, v[{ST+2}:{ST+3}]")
    def b_x(r0):
        def f():
            a.e("s_lshl_b32 s30, s22, 1")
            a.e("s_add_u32 s30, s30, s16")
            a.e("s_lshl_b32 s30, s30, 14")
            a.e("s_add_u32 s30, s30, s27")
            a.e(f"s_add_u32 s30, s30, {r0*1024}")
            tl(32, "s30")
        return f
    tb_fns = B = dict(code=b_code, l3=lambda: a.e(auxl), c3=b_c3, small=b_small, stat=b_stat, x0=b_x(0), x8=b_x(8), l4=lambda: a.e(foldl), c4=b_c4, w1=b_w(1), w0=b_w(0))
    st(4); fs(0); ff(13); fp(0)
    if stamp == 7:
        a.e("s_lshl_b32 s26, s2, 1")
        a.e("s_add_u32 s26, s26, s16")
        a.e("s_lshl_b32 s26, s26, 8")
        a.e(f"s_add_u32 s26, s26, {0x3F00000}")
        a.e("v_lshlrev_b32 v241, 2, v2")
        a.e("buffer_store_dword v240, v241, s[12:15], s26 offen")
    q = Seq(a)
    cv = Conv(a, q, 16)
    a.e(f"v_permlane16_swap_b32 v{LS}, v{LS+1}")
    a.e(f"v_permlane16_swap_b32 v{LS+2}, v{LS+3}")
    cv.taps()
    a.e(f"v_add_f32 v{LS}, v{LS}, v{LS+1}")
    a.e(f"v_add_f32 v{LS+2}, v{LS+2}, v{LS+3}")
    tb_fns["stat"]()
    a.e(f"v_permlane32_swap_b32 v{LS}, v{LS+2}")
    a.e("s_nop 0")
    a.e(f"v_add_f32 v243, v{LS}, v{LS+2}")
    a.e("v_or_b32 v243, 0x80000000, v243")
    q.l("ds_write_b64 v245, v[242:243]")
    q.all(vm=False)
    fs(1)
    a.e("s_barrier")
    fs(2)
    q.l(f"ds_read2st64_b32 v[{E}:{E+1}], v246 offset0:0 offset1:2", "lsum")
    cv.prep()
    q.wait("lsum")
    for x in guard(E): a.e(x)
    release(a, q, L, "rm", None, "buffer_store_dwordx2 v[242:243], v244, s[12:15], s41 offen")
    fs(3)
    PF = opt.get("pf", 10); n = 0
    for j in range(20):
        if j in (0, 2, 4, 6, 8, 11, 14, 17): fp(1 + (0, 2, 4, 6, 8, 11, 14, 17).index(j))
        ex = []
        if j >= opt.get("qa", 6):
            for _ in range(3):
                if n < 4 * PF:
                    ex.append(lambda n=n: aload(a, q, n // 4, n % 4)); n += 1
        cv.row(j, ex)
    while n < 4 * PF:
        aload(a, q, n // 4, n % 4); n += 1
    fs(4)
    a.e(f"s_branch {L('tail')}")
    a.label(L("touch"))
    THR = 2 * int(opt.get("blocks", "2")[0]) + 2
    a.e(f"s_cmp_eq_u32 s40, {THR}")
    a.e(f"s_cbranch_scc1 {L('touchb')}")
    a.e(f"s_mov_b32 s40, {THR}")
    B["x0"](); B["x8"]()
    a.e(f"s_branch {L('touch_ret')}")
    a.label(L("touchb"))
    a.e("s_lshr_b32 s26, s17, 1")
    spec = opt.get("blocks", "2:l3 1:c3,small")
    blocks = {int(x.split(":")[0]): [B[y] for y in x.split(":")[1].split(",")] for x in spec.split()}
    for kx, fns in blocks.items():
        a.e(f"s_cmp_lg_u32 s26, {kx}")
        a.e(f"s_cbranch_scc1 {L('touch%d' % kx)}")
        for f in fns: f()
        a.e(f"s_branch {L('touch_ret')}")
        a.label(L("touch%d" % kx))
    a.e(f"s_branch {L('touch_ret')}")

    VB = [16, 80]; PR = [144, 160]
    VV = 8; VPR = 9; PH = opt.get('ph', 2)
    def oreg(db, qb):
        return (f"a[{4*qb}:{4*qb+3}]", None) if db == 0 else (f"v[{16*db+4*qb}:{16*db+4*qb+3}]", 16 * db + 4 * qb)
    def vread(par, db, kb):
        r = VB[par] + 4 * db + 2 * kb
        return f"ds_read_b64_tr_b16 a[{r}:{r+1}], v{VV if db < 8 else 11} offset:{32768*par + 16384*kb + 512*(db%8)}"
    def pvo(pair): return a2s(pair) if opt.get("o1", 1) else [(e, t) for e in range(2) for t in range(4)]
    def pvm(par, pair, first=False):
        out = []
        for e, qb in pvo(pair):
            db = 2 * pair + e
            d = oreg(db, qb)[0]; v = VB[par] + 4 * db; p = PR[par] + 4 * qb
            out.append(f"{M16} {d}, a[{v}:{v+3}], a[{p}:{p+3}], {'0' if first else d}")
        return out
    def pv_setup():
        a.e("s_sub_u32 s19, s16, 2")
        for x in tail_consts(): a.e(x)
        a.e("v_lshrrev_b32 v4, 5, v2")
        a.e("v_lshlrev_b32 v4, 8, v4")
        a.e("v_and_b32 v5, 2, v2")
        a.e("v_lshl_add_u32 v4, v5, 6, v4")
        a.e("v_and_b32 v5, 28, v2")
        a.e("v_lshl_add_u32 v4, v5, 2, v4")
        a.e("v_and_b32 v5, 1, v2")
        a.e("v_lshl_add_u32 v4, v5, 3, v4")
        a.e("s_lshl_b32 s29, s19, 13")
        a.e("s_lshl_b32 s28, s22, 12")
        a.e("s_add_u32 s28, s28, s29")
        a.e("v_add_u32 v11, s28, v4")
        a.e(f"v_xor_b32 v{VV}, 0x1000, v11")
        a.e("s_lshl_b32 s29, s19, 12")
        a.e("s_add_u32 s29, s29, s48")
        a.e("v_add_u32 v10, s29, v3")
        a.e("s_lshl_b32 s40, s31, 2")
        a.e("s_add_u32 s40, s40, s19")
        a.e("s_lshl_b32 s40, s40, 14")
        a.e(f"s_add_u32 s40, s40, {WS_GU + 32768}")
        a.e("s_lshl_b32 s28, s31, 16")
        a.e(f"s_add_u32 s28, s28, {WS_GU}")
        a.e("s_sub_u32 s28, s28, s10")
        a.e("s_add_u32 s98, s4, s28")
        a.e("s_addc_u32 s99, s5, 0")
        a.e("s_and_b32 s99, s99, 0xffff")
        a.e("s_add_u32 s100, s10, 65536")
        if opt.get("xr", 1) == 2:
            a.e("s_lshr_b32 s28, s2, 3")
            a.e("s_lshl_b32 s28, s28, 15")
            a.e(f"s_add_u32 s28, s28, {WS_W3}")
            a.e("s_sub_u32 s28, s28, s100")
            a.e("s_add_u32 s96, s4, s28")
            a.e("s_addc_u32 s97, s5, 0")
            a.e("s_and_b32 s97, s97, 0xffff")
            a.e("s_add_u32 s3, s100, 32768")
        else:
            a.e("s_lshl_b32 s28, s22, 15")
            a.e("s_add_u32 s28, s28, s27")
            a.e("s_sub_u32 s3, 4096000, s28")
            a.e("s_add_u32 s3, s3, s100")
            a.e("s_add_u32 s96, s32, s28")
            a.e("s_addc_u32 s97, s33, 0")
            a.e("s_sub_u32 s96, s96, s100")
            a.e("s_subb_u32 s97, s97, 0")
        a.e(f"s_mov_b32 s29, {LDS_P}")
        a.e(f"v_lshl_add_u32 v{VPR}, v2, 3, s29")
        a.e(f"v_add_u32 v1, {LDS_ML + 4 - LDS_P}, v{VPR}")
        for g in range(1, 4): a.e(f"v_add_u32 v{4+g}, {4096*g}, v3")
    def pv_zero():
        pass
    def emit_pv_again():
        a.label(L("pv"))
        pv_setup()
        a.e("s_lshl_b32 s18, s19, 14")
        a.e("s_add_u32 s18, s18, 65536")
        dma_tile()
        pv_zero()
        a.e("s_barrier")
        a.e("s_waitcnt vmcnt(16)")
        a.e("s_barrier")
        if not opt.get("q3", 0): dma_tile()
        for db in range(16):
            for kb in range(2):
                a.e(vread(0, db, kb))
            if db % 4 == 3: a.e("s_waitcnt lgkmcnt(4)")
        a.e("s_waitcnt vmcnt(0) lgkmcnt(0)")
        a.e(f"s_branch {L('pv_go')}")
    def taps():
        a.e("v_lshrrev_b32 v12, 5, v2")
        a.e("v_lshl_add_u32 v12, v12, 9, v3")
        a.e("s_lshl_b32 s28, s22, 9")
        out = []
        for i in range(3):
            a.e(f"s_mov_b32 m0, {LDS_TAP + 1024*i}")
            a.e(f"s_add_u32 s29, s28, {2048*i}")
            qf.v("buffer_load_dwordx4 v12, s[44:47], s29 offen lds")
        for x in NEAR: a.e(x)
    def setup1():
        pv_setup()
        a.e(f"s_mov_b32 s101, {f2u(-BIG)}")
    pv_part(setup1, [vread(0, db, kb) for db in range(16) for kb in range(2)], taps)
    a.label(L("pv_go"))
    a.e("s_lshl_b32 s18, s19, 14")
    a.e("s_add_u32 s18, s18, 131072")
    a.e("s_sub_u32 s17, s25, 1")
    a.e("s_barrier")

    pvq = []
    MR = 12; MO = 4; AL = 88; TT = 96; RX = 16
    mll = [f"buffer_load_dwordx2 v[{MR+2*w}:{MR+2*w+1}], v9, s[12:15], s42 offen offset:{512*w} {opt.get('pm', 'sc1')}" for w in range(2)]
    ol = f"buffer_load_dword v11, off, s[12:15], s57 offset:24 {opt.get('pm', 'sc1')}"
    def pv_interval(par, last=False, lo=0, hi=None, first=False):
        mf = pvm(par, 7)
        if first:
            z = [f"v_pk_mul_f32 v[{i}:{i+1}], 0, 0" for i in range(256 - 16 * PH, 256, 2)]
            mf = [z[2 * i] + "\n    " + z[2 * i + 1] for i in range(4 * PH)]
        for pr in range(8 if last else 7):
            mf += pvm(par ^ 1, pr, first)
        fill = {}
        for qb in range(4):
            p = PR[par ^ 1] + 4 * qb
            fill.setdefault(opt.get('pg', [0, 0, 1, 1])[qb], []).append(f"ds_read2st64_b64 a[{p}:{p+3}], v{VPR} offset0:{8*(par^1)+qb} offset1:{8*(par^1)+4+qb}")
        rg = opt.get("rg", [8 + 3 * (i // 2) + (i % 2) for i in range(32)])
        fill.setdefault(4 * PH - 1, []).append(f"s_waitcnt lgkmcnt({0 if last else sum(1 for g in rg if g < 4 * PH - 1)})")
        if last:
            fs(0); fp(0)
            q = Seq(a)
            ops = []
            for sp in range(4):
                for nq, qb in enumerate([t for e, t in pvo(sp) if e]):
                    o = []
                    if sp == 0:
                        o += [f"v_accvgpr_read_b32 v{4+j}, a{4*qb+j}" for j in range(4)]
                        lo = 4
                    else:
                        lo = oreg(2 * sp, qb)[1]
                    hi = oreg(2 * sp + 1, qb)[1]
                    o += [f"v_cvt_pk_bf16_f32 v{hi+3}, v{hi+2}, v{hi+3}", f"v_cvt_pk_bf16_f32 v{hi+2}, v{hi}, v{hi+1}",
                          f"v_cvt_pk_bf16_f32 v{hi}, v{lo}, v{lo+1}", f"v_cvt_pk_bf16_f32 v{hi+1}, v{lo+2}, v{lo+3}"]
                    if nq == 0: o.append(f"s_add_u32 s41, s40, {4096*sp}")
                    o.append(f"buffer_store_dwordx4 v[{hi}:{hi+3}], v3, s[44:47], s41 offen offset:{1024*qb} {opt.get('sm_', 'nt')}")
                    ops += [(8 + 8 * sp + pvo(sp).index((1, qb)) + 6, x) for x in o]
            late = [lambda x=x: a.e(x) for x in ["v_lshlrev_b32 v9, 3, v2", "s_xor_b32 s26, s31, 1", "s_lshl_b32 s26, s26, 10", f"s_add_u32 s42, s26, {WS_MX}"]]
            late += [lambda w=w: q.v(mll[w], "ML") for w in range(2)]
            late += [lambda: a.e("v_subrev_u32 v8, 4, v1"),
                     lambda: q.l(f"ds_read2st64_b64 v[{MO}:{MO+3}], v8 offset0:0 offset1:1", "MLo")]
            late += [lambda x=x: a.e(x) for x in ["v_and_b32 v1, 15, v2", "v_lshlrev_b32 v1, 2, v1", "s_xor_b32 s40, s40, 0x10000", "s_mov_b32 s43, 0xffff0000", "v_mov_b32 v0, 1"]]
            na = 0
            for i, m in enumerate(mf):
                a.e(m)
                for f in fill.get(i, []): a.e(f)
                if i == 2: q.l("ds_read2st64_b32 v[4:5], v1 offset0:0 offset1:2", "lsum")
                if i == 9:
                    fs(1); fs(2)
                    q.wait("lsum")
                    for x in guard(4): a.e(x)
                if i in opt.get("ea", ()):
                    aload(a, q, na // 4, na % 4); na += 1
                if i > 12:
                    n = 0
                    while ops and ops[0][0] <= i and n < opt.get("lp", 3):
                        if opt.get("ls", 1) and n and ops[0][1].startswith("buffer"): break
                        x = ops.pop(0)[1]; n += 1
                        if x.startswith("buffer"): q.v(x, "Ost")
                        else: a.e(x)
                    if n and not ops: fp(1)
                    if n == 0:
                        if not ops and late: late.pop(0)()
                        else: a.e("s_nop 0")
            assert not ops
            while late: late.pop(0)()
            fs(3)
            pvq.append((q, na))
            return
        F_ = lambda g, x: fill.setdefault(g, []).append(x)
        G = opt["pvg"]
        if par == 0:
            F_(G[0], f"v_xor_b32 v{VV}, 0x10000, v{VV}"); F_(G[0], "v_xor_b32 v11, 0x10000, v11")
        for i in range(32): F_(rg[i], vread(par, i // 2, i % 2))
        dg = opt["dg"]
        for g in range(4):
            F_(opt["mg"][g], "s_and_b32 m0, s18, 0x1ffff" if g == 0 else "s_add_u32 m0, m0, 4096")
            for j in range(4):
                F_(dg[4 * g + j], f"buffer_load_dwordx4 v{3 if g == 0 else 4 + g}, s[8:11], s18 offen offset:{1024*j} sc1 lds")
        F_(opt["mg"][4], "s_add_u32 s18, s18, 32768")
        sw = ["s_cmp_eq_u32 s17, 3", "s_cselect_b64 s[8:9], s[98:99], s[8:9]", "s_cselect_b32 s10, s100, s10",
              "s_cmp_eq_u32 s17, 1", "s_cselect_b64 s[8:9], s[96:97], s[8:9]", "s_cselect_b32 s10, s3, s10"]
        for n in (0, 3):
            gs = G[2 + n:5 + n]
            assert (gs[2] < min(dg[0], G[1])) or (gs[0] > max(dg[-1], G[1]))
            assert not any(gs[0] < m <= gs[2] for m in opt["mg"] + [G[1]])
            for g, x in zip(gs, sw[n:n + 3]): F_(g, x)
        F_(G[1], "s_sub_u32 s17, s17, 1")
        F_(61, "s_cmp_eq_u32 s17, 0")
        if not first: F_(62, f"s_cbranch_scc1 {L('pv_exit%d' % par)}")
        fill.setdefault(63, []).extend([f"s_waitcnt vmcnt({nP}) lgkmcnt(0)", "s_barrier"])
        emit_interval(a, mf, fill, lo, hi)

    st(3); ff(11)
    PB = opt.get("pbe", 0)
    if PB:
        pv_interval(1, first=True)
        a.e(f"s_branch {L('pv_in')}")
        a(".p2align 6")
        a.label(L("pv_loop"))
        pv_interval(0, False, PB)
        if not opt.get("xe"): a.e(f"s_cbranch_scc1 {L('pv_last1')}")
        pv_interval(1)
        if not opt.get("xe"): a.e(f"s_cbranch_scc1 {L('pv_last0')}")
        a.label(L("pv_in"))
        pv_interval(0, False, 0, PB)
        a.e(f"s_branch {L('pv_loop')}")
    else:
        a(".p2align 6")
        a.label(L("pv_loop"))
        pv_interval(1)
        a.e(f"s_cbranch_scc1 {L('pv_last0')}")
        pv_interval(0)
        a.e(f"s_cbranch_scc0 {L('pv_loop')}")
    if opt.get("xe"):
        a.label(L("pv_exit0"))
        pv_interval(0, False, 63)
    a.label(L("pv_last1"))
    pv_interval(1, True)
    a.e(f"s_branch {L('pv_stage')}")
    if opt.get("xe"):
        a.label(L("pv_exit1"))
        pv_interval(1, False, 63)
    a.label(L("pv_last0"))
    pv_interval(0, True)
    a.label(L("pv_stage"))
    st(4); ff(13)
    q, n = pvq[0]
    assert pvq[1][0].vm == q.vm and pvq[1][0].lg == q.lg
    fp(2)
    release(a, q, L, "ro", "Ost", "buffer_store_dword v0, off, s[12:15], s56 offset:24",
            [x for sp in range(4) for x in [f"s_xor_b32 s41, s40, {0x10000 + 4096*sp}"] +
             [f"buffer_store_dwordx4 {oreg(2*sp+1, qb)[0]}, v3, s[12:15], s41 offen offset:{1024*qb} sc1" for qb in range(4)]])
    fp(3)
    poll(a, q, L, "ml", mll, [f"v_and_b32 v8, v{MR+1}, v{MR+3}", "v_cmp_gt_i32 vcc, 0, v8", "s_nop 1", "s_cmp_eq_u64 vcc, -1"], "ML", slp=1)
    q.wait("MLo")
    for x in [f"v_add_f32 v{MR+1}, v{MR+1}, v{MR+3}", f"v_add_f32 v{MO+1}, v{MO+1}, v{MO+3}",
              f"v_min_f32 v8, v{MR}, v{MO}", f"v_sub_f32 v{MR}, v8, v{MR}", f"v_sub_f32 v{MO}, v8, v{MO}",
              f"v_exp_f32 v{MR}, v{MR}", f"v_exp_f32 v{MO}, v{MO}", f"v_mul_f32 v{MR+1}, v{MR+1}, v{MR}",
              f"v_fmac_f32 v{MR+1}, v{MO+1}, v{MO}", f"v_mul_f32 v{MR+1}, {f2u(XSC)}, v{MR+1}", f"v_rcp_f32 v{MR+1}, v{MR+1}", "s_nop 0",
              f"v_mul_f32 v{MO}, v{MO}, -v{MR+1}", f"v_mul_f32 v{MR}, v{MR}, -v{MR+1}"]: a.e(x)
    for tb in range(4):
        q.l(f"ds_bpermute_b32 v{AL+2*tb}, v1, v{MO} offset:{64*tb}", "AL")
        q.l(f"ds_bpermute_b32 v{AL+2*tb+1}, v1, v{MR} offset:{64*tb}", "AL")
    q.wait("AL")
    for db in range(8, 16):
        for qb in range(4):
            r = oreg(db, qb)[1]
            for j in (0, 2):
                a.e(f"v_pk_mul_f32 v[{r+j}:{r+j+1}], v[{r+j}:{r+j+1}], v[{AL+2*qb}:{AL+2*qb+1}] op_sel_hi:[1,0]")
        if db == opt.get("od", 12): q.v(ol, "of")
        for _ in range(opt.get("an", 2)):
            if n < 4 * PF and db < opt.get("od", 12):
                aload(a, q, n // 4, n % 4); n += 1
    while n < opt.get("pa", 0):
        aload(a, q, n // 4, n % 4); n += 1
    poll(a, q, L, "o", [ol], ["v_readfirstlane_b32 s26, v11", "s_cmp_eq_u32 s26, 1"], "of", slp=1)
    fp(4)
    for f in range(16):
        if f % 4 == 0: a.e(f"s_add_u32 s41, s40, {1024*f}")
        q.v(f"buffer_load_dwordx4 v[{RX+4*f}:{RX+4*f+3}], v3, s[12:15], s41 offen offset:{1024*(f%4)} {opt.get('lm', 'sc1')}", f"O{f}")
    fp(5)
    fp(6)
    for f in range(16):
        sp, qb = f // 4, f % 4
        q.wait(f"O{f}")
        if f in (0, 8): fp(7 + f // 8)
        for j in range(4):
            a.e(f"v_lshlrev_b32 v{TT+2*j}, 16, v{RX+4*f+j}")
            a.e(f"v_and_b32 v{TT+2*j+1}, s43, v{RX+4*f+j}")
        for j in range(4):
            r = oreg(8 + 2 * sp + j // 2, qb)[1] + 2 * (j % 2)
            a.e(f"v_pk_fma_f32 v[{TT+2*j}:{TT+2*j+1}], v[{TT+2*j}:{TT+2*j+1}], v[{AL+2*qb}:{AL+2*qb+1}], v[{r}:{r+1}] op_sel:[0,1,0] op_sel_hi:[1,1,1]")
        for j in range(4):
            a.e(f"v_cvt_pk_bf16_f32 v{RX+4*f+j}, v{TT+2*j}, v{TT+2*j+1}")
        q.l(f"ds_write_b128 v10, v[{RX+4*f}:{RX+4*f+3}] offset:{8192*qb + 1024*sp}")
        for _ in range(2):
            if n < 4 * PF:
                aload(a, q, n // 4, n % 4); n += 1
    while n < 4 * PF:
        aload(a, q, n // 4, n % 4); n += 1
    fs(4)
    a.label(L("tail"))
    ff(14); fp(9)
    gen_tail(a, L, st, fs, opt)
    a.label(L("fin"))
    if stamp == 1:
        a.e("s_waitcnt vmcnt(0)")
        st(7)
        emit_stamps(a, 8, nw=8, off=WS_STAMP + 0x200000)
    if stamp == 5:
        a.e("s_waitcnt vmcnt(0)")
        st(7)
        a.e("s_cmp_lg_u32 s16, 0")
        a.e(f"s_cbranch_scc1 {L('end')}")
        a.e("s_mov_b64 exec, 1")
        a.e("s_cmp_lg_u32 s2, 0")
        a.e(f"s_cbranch_scc1 {L('dbg2')}")
        for k in range(1, 8):
            a.e(f"s_sub_u32 s26, s{62+4*k}, s62")
            a.e("v_mov_b32 v8, s26")
            a.e(f"buffer_store_dword v8, off, s[92:95], 0 offset:{8+4*k}")
        a.e("s_sub_u32 s26, s76, s72")
        a.e("v_mov_b32 v8, s26")
        a.e("buffer_store_dword v8, off, s[92:95], 0 offset:40")
        a.label(L("dbg2"))
        a.e("s_cmp_lg_u32 s2, 255")
        a.e(f"s_cbranch_scc1 {L('end')}")
        for k in range(1, 6):
            a.e(f"s_sub_u32 s26, s{62+4*k}, s62")
            a.e("v_mov_b32 v8, s26")
            a.e(f"buffer_store_dword v8, off, s[92:95], 0 offset:{40+4*k}")
    if stamp in (2, 3, 4, 6):
        for k in range(10, 16): fp(k)
        a.e("s_waitcnt vmcnt(0)")
        fs(15)
        ff(15)
        emit_fine(a, off=WS_STAMP + 0x300000)
    a.label(L("end"))
    a.e("s_endpgm")
    a.label(L("redo"))
    a.e("s_waitcnt vmcnt(0) lgkmcnt(0)")
    a.e("s_mov_b32 s101, 0")
    a.e(f"s_mul_i32 s28, s22, {32768 * N0}")
    a.e("s_add_u32 s28, s28, s24")
    a.e("s_lshl_b32 s26, s25, 15")
    srd_off(a, 8, 4, "s28", "s26")
    a.e("s_lshl_b32 s19, s16, 13")
    qk_setup()
    a.e("s_mov_b32 s17, s25")
    def redo_dma(slot):
        for i in range(8):
            if i % 4 == 0:
                a.e(f"s_add_u32 m0, s19, {32768*slot + 1024*i}")
                a.e(f"s_add_u32 s29, s18, {1024*i}")
            a.e(f"buffer_load_dwordx4 v3, s[8:11], s29 offen offset:{1024*(i%4)} sc1 lds")
    a.label(L("redo_loop"))
    a.e("s_sub_u32 s17, s17, 1")
    a.e("s_lshl_b32 s18, s17, 15")
    a.e("s_add_u32 s18, s18, s19")
    a.e("s_barrier")
    redo_dma(0)
    a.e("s_waitcnt vmcnt(0)")
    a.e("s_barrier")
    a.e("s_cmp_ge_u32 s16, 2")
    a.e(f"s_cbranch_scc1 {L('redo_next')}")
    for n in range(16):
        a.e(kread(0, n, 0))
        if n == 11: a.e("s_waitcnt lgkmcnt(4)")
    a.e("s_waitcnt lgkmcnt(0)")
    for qb in range(4):
        for m in chain(0, qb, "0"): a.e(m)
    a.e("s_nop 7")
    for qb in range(4):
        d = S + 4 * qb
        a.e(f"v_max3_f32 v{MX0+qb}, v{MX0+qb}, v{d}, v{d+1}")
        a.e(f"v_max3_f32 v{MX0+qb}, v{MX0+qb}, v{d+2}, v{d+3}")
    a.label(L("redo_next"))
    a.e("s_cmp_lg_u32 s17, 0")
    a.e(f"s_cbranch_scc1 {L('redo_loop')}")
    a.e("s_add_u32 s18, s19, 32768")
    redo_dma(1)
    a.e("s_mov_b32 s17, s25")
    a.e("s_cmp_ge_u32 s16, 2")
    a.e(f"s_cbranch_scc1 {L('pv')}")
    a.e(f"s_branch {L('qk_again')}")
    emit_pv_again()
    for f in OOL: f()
    emit_aux()
    kernel_desc(a, name, 512, 256)
    return f"; @launch grid=(256,1,1) block=(256,1,1) lds={LDS_ATT}"
```

```python
import sys, math
sys.path.insert(0, "gen")
from asmlib import *
from layout import *

RS = 1056
LDS_XS = 98304
LDS_MS = 163840 - 64 * RS
LDS_SC = 81920
LDS_CNT = LDS_SC + 6912
LDS_SC2 = 147456
GC1 = 2 * math.sqrt(2 / math.pi) * math.log2(math.e)
XSC = (GC1 * 0.044715) ** (1.0 / 3)
LDS_MX2 = LDS_SC + 4608
RING = 5
SS = 144
SPIN = 400000

def poll(a, q, L, name, load, cond, tag, slp=2):
    q.wait(tag)
    lab, done = L(name + "_spin"), L(name + "_ok")
    for x in cond: a.e(x)
    a.e(f"s_cbranch_scc0 {L(name + '_retry')}")
    a.label(done)
    def retry():
        a.label(L(name + "_retry"))
        a.e(f"s_mov_b32 s30, {SPIN}")
        a.label(lab)
        a.e(f"s_sleep {slp}")
        for x in load: a.e(x)
        a.e("s_waitcnt vmcnt(0)")
        for x in cond: a.e(x)
        a.e(f"s_cbranch_scc1 {done}")
        a.e("s_sub_u32 s30, s30, 1")
        a.e(f"s_cbranch_scc0 {lab}")
        a.e(f"s_branch {done}")
    OOL.append(retry)

OOL = []

def release(a, q, L, name, tag, store, again=()):
    if tag: q.wait(tag)
    a.e("s_cmp_lg_u32 s21, 0")
    a.e(f"s_cbranch_scc1 {L(name + '_far')}")
    q.v(store)
    a.label(L(name + "_back"))
    def far():
        a.label(L(name + "_far"))
        if again:
            for x in again: a.e(x)
            a.e("s_waitcnt vmcnt(0)")
        a.e(store + " sc1")
        a.e(f"s_branch {L(name + '_back')}")
    OOL.append(far)

def signal(a, L, name, wave, off, shard=True):
    a.e(f"s_cmp_lg_u32 s16, {wave}")
    a.e(f"s_cbranch_scc1 {L(name)}")
    a.e("v_mov_b32 v14, 1")
    a.e(f"s_and_b32 s26, s2, {3 if shard else 0}")
    a.e("s_lshl_b32 s26, s26, 6")
    a.e("s_mov_b64 exec, 1")
    a.e(f"buffer_atomic_add v14, off, s[92:95], s26 offset:{off}")
    a.e("s_mov_b64 exec, -1")
    a.label(L(name))

def cnt_load(off, va="v13"):
    return f"buffer_load_dword v14, {va}, s[92:95], 0 offen offset:{off} sc1"
CNT_OK = ["v_cmp_le_u32 vcc, 64, v14", "s_nop 1", "s_cmp_eq_u64 vcc, -1"]

def m_issue(a, q):
    a.e("s_and_b32 s17, s2, 6")
    a.e("s_lshl_b32 s17, s17, 5")
    a.e("s_and_b32 s18, s2, 24")
    a.e("s_lshl_b32 s18, s18, 1")
    a.e("s_add_u32 s17, s17, s18")
    a.e("s_and_b32 s18, s2, 1")
    a.e("s_lshl_b32 s18, s18, 3")
    a.e("s_add_u32 s17, s17, s18")
    a.e("s_lshr_b32 s18, s2, 5")
    a.e("s_add_u32 s100, s17, s18")
    a.e("s_lshr_b32 s17, s100, 4")
    a.e("s_lshl_b32 s17, s17, 15")
    a.e("s_and_b32 s18, s100, 15")
    a.e("s_lshl_b32 s18, s18, 15")
    a.e("s_lshl_b32 s19, s16, 13")
    a.e("s_add_u32 s17, s17, s19")
    a.e("s_add_u32 s18, s18, s19")
    a.e(f"s_mul_i32 s19, s16, {4*RS}")
    out = []
    for m, (srd, so) in enumerate(((40, "s17"), (8, "s18"))):
        for ee in range(2):
            for j in range(4):
                def f(m=m, srd=srd, so=so, ee=ee, j=j):
                    a.e(f"s_add_u32 m0, s19, {LDS_MS + (32*m + 16*ee + j)*RS - 1024*j}")
                    a.e(f"s_add_u32 {so}, {so}, 4096" if (ee == 1 and j == 0) else "s_nop 0")
                    q.v(f"buffer_load_dwordx4 v3, s[{srd}:{srd+3}], {so} offen offset:{1024*j} lds", "Mst")
                out.append(f)
    return out

def m_addr(a):
    a.e("v_and_b32 v4, 15, v2")
    a.e("v_lshrrev_b32 v5, 4, v2")
    a.e(f"v_mul_u32_u24 v6, {RS}, v4")
    a.e("v_lshl_add_u32 v6, v5, 4, v6")
    a.e(f"v_add_u32 v6, {LDS_MS}, v6")
    a.e("s_and_b32 s26, s16, 1")
    a.e("s_lshr_b32 s28, s16, 1")
    a.e(f"s_mul_i32 s29, s26, {16*RS}")
    a.e("v_add_u32 v7, s29, v6")
    a.e(f"s_mul_i32 s29, s28, {16*RS}")
    a.e("v_add_u32 v6, s29, v6")
    a.e("s_bfe_u32 s29, s100, 0x30001")
    a.e("s_lshl_b32 s29, s29, 16")
    a.e("s_lshr_b32 s30, s100, 4")
    a.e("s_lshl_b32 s30, s30, 12")
    a.e("s_add_u32 s29, s29, s30")
    a.e("s_and_b32 s30, s100, 1")
    a.e("s_lshl_b32 s30, s30, 1")
    a.e("s_add_u32 s30, s30, s28")
    a.e("s_lshl_b32 s30, s30, 10")
    a.e("s_add_u32 s29, s29, s30")
    a.e("s_lshl_b32 s30, s26, 9")
    a.e("s_add_u32 s29, s29, s30")
    a.e(f"s_add_u32 s30, s29, {WS_MI}")
    a.e("s_lshl_b32 s29, s28, 10")
    a.e("s_lshl_b32 s26, s26, 3")
    a.e("s_add_u32 s29, s29, s26")
    a.e(f"s_add_u32 s29, s29, {LDS_MX2}")
    a.e("v_add_u32 v112, s29, v3")
    a.e("s_lshl_b32 s29, s16, 9")
    a.e(f"s_add_u32 s29, s29, {LDS_MX2}")
    a.e("v_and_b32 v114, 0x1ff, v3")
    a.e("v_add_u32 v113, s29, v114")

def m_tile(a, q, fz=lambda k: None, fill=None):
    q.wait("Mst")
    fz(1)
    a.e("s_barrier")
    fz(2)
    def rd(t):
        q.l(f"ds_read_b128 a[{8*t}:{8*t+3}], v7 offset:{64*t}", f"m{t}")
        q.l(f"ds_read_b128 a[{8*t+4}:{8*t+7}], v6 offset:{32*RS + 64*t}", f"m{t}")
    for t in range(7): rd(t)
    if fill: fill.pop(0)()
    for t in range(16):
        q.e(f"{M16} v[8:11], a[{8*t}:{8*t+3}], a[{8*t+4}:{8*t+7}], {'0' if t == 0 else 'v[8:11]'}", need=(f"m{t}",))
        if t + 7 < 16: rd(t + 7)
    fz(3)
    if fill: fill.pop(0)()
    else: a.e("s_nop 7")
    sc = f2u(512 ** -0.5 * math.log2(math.e) / XSC ** 2)
    for i in range(4): a.e(f"v_mul_f32 v{8+i}, {sc}, v{8+i}")
    a.e("v_cvt_pk_bf16_f32 v8, v8, v9")
    a.e("v_cvt_pk_bf16_f32 v9, v10, v11")
    q.l("ds_write_b64 v112, v[8:9]", "mw")
    while fill: fill.pop(0)()
    q.wait("mw")
    a.e("s_barrier")
    q.l("ds_read_b128 v[8:11], v113", "mr")
    def fin():
        q.v("buffer_store_dwordx4 v[8:11], v114, s[12:15], s30 offen sc1", "St", need=("mr",))
    return fin

def touches(a, q, L, opt):
    a.e("v_lshlrev_b32 v7, 7, v2")
    a.e("s_lshr_b32 s26, s2, 3")
    a.e("s_lshl_b32 s26, s26, 2")
    a.e("s_add_u32 s26, s26, s16")
    a.e("s_getpc_b64 s[28:29]")
    a.label(L("pc1"))
    a.e("s_mul_i32 s30, s26, 640")
    a.e("v_and_b32 v12, 7, v2")
    a.e("v_min_u32 v12, 4, v12")
    a.e("v_lshl_add_u32 v12, v12, 7, s30")
    a.e(f"v_min_u32 v12, {L('end')} - {L('pc1')}, v12")
    q.v("global_load_dword v0, v12, s[28:29]")
    if opt.get("tg"):
        a.e("s_lshl_b32 s26, s2, 12")
        a.e("s_lshr_b32 s28, s16, 1")
        a.e("s_lshl_b32 s28, s28, 11")
        a.e("s_add_u32 s26, s26, s28")
        a.e("s_and_b32 s28, s16, 1")
        a.e("s_lshl_b32 s28, s28, 9")
        a.e("s_add_u32 s26, s26, s28")
        a.e("v_lshlrev_b32 v14, 3, v2")
        q.v("buffer_load_dword v0, v14, s[96:99], s26 offen offset:1024")
    if opt.get("tw"):
        a.e("s_lshl_b32 s26, s26, 13")
        q.v("buffer_load_dword v0, v7, s[96:99], s26 offen")

def touch_aux(a, q, mode=1):
    if mode == 2:
        a.e("s_lshl_b32 s28, s2, 2")
        a.e("s_add_u32 s28, s28, s16")
        a.e("s_lshl_b32 s28, s28, 10")
        a.e("v_add_u32 v14, s28, v3")
        q.v("global_load_dword v0, v14, s[58:59]")
        return
    for w in range(1, 4):
        a.e(f"s_cmp_eq_u32 s16, {w}")
        a.e(f"s_cselect_b32 s52, s{52+2*w}, s52")
        a.e(f"s_cselect_b32 s53, s{53+2*w}, s53")
    a.e("s_lshl_b32 s28, s2, 6")
    a.e("v_add_lshl_u32 v14, s28, v2, 5")
    a.e("v_lshlrev_b32 v13, 1, v14")
    a.e("s_cmp_eq_u32 s16, 3")
    a.e("s_cselect_b64 vcc, -1, 0")
    a.e("v_cndmask_b32 v14, v14, v13, vcc")
    q.v("global_load_dword v0, v14, s[52:53]")

def gen_front(a, q, L, st, fs, mi, clear, opt):
    X = 16; F = 128
    if opt.get("skip"):
        v0 = q.v
        def v1(text, tag="_", need=()):
            if text.startswith("buffer_store_dwordx4") and tag[0] in opt["skip"]: return
            v0(text, tag, need)
        q.v = v1
    a.e("v_lshrrev_b32 v12, 3, v2")
    a.e("v_and_b32 v13, 7, v2")
    a.e("v_and_b32 v14, 2, v12")
    a.e("v_xor_b32 v14, v13, v14")
    a.e("v_lshlrev_b32 v14, 4, v14")
    WV = 80
    a.e(f"v_lshl_add_u32 v{WV}, v12, 11, v14")
    a.e(f"v_xor_b32 v{WV+1}, 64, v{WV}")
    a.e(f"v_add_u32 v{WV+1}, {16384-1024}, v{WV+1}")
    a.e(f"v_add_u32 v{WV+2}, {2*(16384-1024)}, v{WV}")
    a.e(f"v_add_u32 v{WV+3}, {2*(16384-1024)}, v{WV+1}")
    a.e("s_lshl_b32 s26, s22, 2")
    a.e("s_add_u32 s26, s26, s16")
    a.e("s_lshl_b32 s28, s22, 1")
    a.e("s_add_u32 s28, s28, s16")
    a.e(f"s_lshl_b32 s29, s23, {opt.get('rt', 0)}")
    a.e("s_add_u32 s28, s28, s29")
    a.e("s_and_b32 s28, s28, 3")
    a.e("s_lshl_b32 s3, s26, 7")
    a.e("s_lshl_b32 s29, s28, 18")
    a.e("s_add_u32 s3, s3, s29")
    a.e(f"s_and_b32 s29, s23, {4 * opt.get('rb', 0)}")
    a.e("s_lshl_b32 s29, s29, 14")
    a.e("s_add_u32 s3, s3, s29")
    a.e(f"s_mul_i32 s6, s16, {RING*4096}")
    a.e("v_and_b32 v4, 15, v2")
    a.e("v_lshrrev_b32 v5, 4, v2")
    def wdma(k, j):
        if j == 0:
            a.e(f"s_add_u32 m0, s6, {4096*(k % RING)}")
            a.e(f"s_xor_b32 s7, {'s3' if k < 16 else 's20'}, {65536*(k % 16) + (1024 if k < 16 else 0 if k < 32 else 128)}")
        q.v(f"buffer_load_dwordx4 v{WV+j}, s[96:99], s7 offen offset:{1024*j} lds", f"W{k}")
    ringf = [lambda k=k, j=j: wdma(k, j) for k in range(RING) for j in range(4)]
    EM = opt.get("early", 0)
    NE = opt.get("ne", 12)
    early = list(mi) + [clear] + ringf[:NE]
    if opt.get("rf"): early = ringf[:opt["rf"]] + list(mi) + [clear] + ringf[opt["rf"]:NE]
    late = ringf[NE:]
    if opt.get("te", 29) is not None: early.insert(opt.get("te", 29), lambda: (touch_u(), touch_aux(a, q, opt.get('ta', 2))))
    SW, SR, SG, QW = 84, 85, 86, 87
    a.e("s_and_b32 s26, s16, 1")
    a.e("s_lshl_b32 s26, s26, 13")
    a.e("s_cmp_lt_u32 s16, 2")
    a.e(f"s_cselect_b32 s28, {16*SS}, 0")
    a.e("s_add_u32 s26, s26, s28")
    a.e(f"s_add_u32 s26, s26, {LDS_SC}")
    a.e(f"v_mul_u32_u24 v{SR}, {SS}, v12")
    a.e(f"v_lshl_add_u32 v{SR}, v13, 4, v{SR}")
    a.e(f"v_add_u32 v{SR}, s26, v{SR}")
    a.e(f"v_lshlrev_b32 v{SG}, 9, v12")
    a.e(f"v_lshl_add_u32 v{SG}, v13, 4, v{SG}")
    a.e(f"v_mul_u32_u24 v{SW}, {SS}, v4")
    a.e(f"v_lshl_add_u32 v{SW}, v5, 3, v{SW}")
    a.e(f"v_add_u32 v{SW}, s26, v{SW}")
    a.e("s_lshl_b32 s26, s16, 14")
    a.e(f"s_add_u32 s26, s26, {LDS_XS}")
    a.e("s_lshl_b32 s28, s22, 13")
    a.e("s_add_u32 s28, s28, s26")
    a.e("v_lshrrev_b32 v14, 1, v12")
    a.e("v_xor_b32 v14, v13, v14")
    a.e("v_lshlrev_b32 v14, 4, v14")
    a.e("v_lshl_add_u32 v14, v12, 7, v14")
    a.e("v_add_u32 v12, s28, v14")
    a.e("v_xor_b32 v116, 0x440, v12")
    a.e("v_xor_b32 v117, 0x2440, v12")
    a.e("v_xor_b32 v15, 0x2000, v12")
    a.e("s_mov_b32 s101, 0xffff0000")
    if EM == 2:
        while early: early.pop(0)()
    ZR, YO = 88, 90
    a.e("v_lshrrev_b32 v13, 1, v4")
    a.e("v_xor_b32 v13, v5, v13")
    a.e("v_lshlrev_b32 v13, 4, v13")
    a.e(f"v_lshl_add_u32 v{ZR}, v4, 7, v13")
    a.e("v_and_b32 v13, 0x27, v2")
    a.e("v_and_b32 v14, 8, v2")
    a.e("v_lshl_add_u32 v13, v14, 1, v13")
    a.e("v_and_b32 v14, 16, v2")
    a.e("v_lshrrev_b32 v14, 1, v14")
    a.e(f"v_add_lshl_u32 v{YO}, v13, v14, 4")
    XR_, TR = 88, 92
    a.e("s_lshr_b32 s26, s3, 17")
    a.e("s_lshl_b32 s26, s26, 11")
    a.e(f"s_add_u32 s26, s26, {LDS_XS}")
    a.e("s_bfe_u32 s28, s3, 0x10010")
    a.e("s_lshl_b32 s28, s28, 6")
    a.e("s_add_u32 s26, s26, s28")
    a.e(f"v_xor_b32 v{XR_}, s26, v{ZR}")
    a.e("v_lshrrev_b32 v14, 2, v4")
    a.e("v_lshl_add_u32 v14, v5, 3, v14")
    a.e("v_lshlrev_b32 v14, 7, v14")
    a.e("v_and_b32 v13, 3, v2")
    a.e("v_lshl_add_u32 v14, v13, 3, v14")
    a.e("v_and_b32 v13, 24, v2")
    a.e("v_lshl_add_u32 v14, v13, 2, v14")
    a.e(f"v_add_u32 v{TR}, s6, v14")
    for nb in range(1, 4):
        a.e(f"v_xor_b32 v{TR+nb}, {32*nb}, v{TR}")
    a.e(f"v_mov_b32 v13, {LDS_CNT}")
    a.e("v_mov_b32 v14, 0")
    q.l("ds_write_b32 v13, v14")
    def touch_u():
        if opt.get("tu") == 0: return
        if opt.get("tu", 2) == 2:
            a.e("s_lshl_b32 s26, s2, 12")
            a.e("s_lshr_b32 s28, s16, 1")
            a.e("s_lshl_b32 s28, s28, 11")
            a.e("s_add_u32 s26, s26, s28")
            a.e("s_and_b32 s28, s16, 1")
            a.e("s_lshl_b32 s28, s28, 9")
            a.e("s_add_u32 s26, s26, s28")
            a.e("v_lshlrev_b32 v14, 3, v2")
            q.v("buffer_load_dword v0, v14, s[96:99], s26 offen")
            return
        a.e("s_lshr_b32 s26, s2, 3")
        a.e("s_lshl_b32 s26, s26, 2")
        a.e("s_add_u32 s26, s26, s16")
        a.e("s_lshl_b32 s26, s26, 13")
        a.e("v_lshlrev_b32 v14, 6, v4")
        a.e("v_lshl_add_u32 v14, v5, 11, v14")
        q.v("buffer_load_dword v0, v14, s[96:99], s26 offen")
    m_addr(a)
    for f in opt['xrest']: f()
    MF = opt.get("mf", 0)
    if MF:
        mfin = m_tile(a, q)
        early.insert(0, mfin)
    A0 = 96
    def norm(s):
        A = A0 + 8 * (s // 8) + 4
        for j in range(4):
            f = F + 8 * s + 2 * j
            a.e(f"v_pk_fma_f32 v[{f}:{f+1}], v[{f}:{f+1}], v[{A}:{A+1}], v[{A}:{A+1}] op_sel:[0,0,1] op_sel_hi:[1,0,1]")
        for j in range(4):
            f = F + 8 * s + 2 * j
            a.e(f"v_cvt_pk_bf16_f32 v{X+4*s+j}, v{f}, v{f+1}")
    def xw(s):
        h, i = s // 8, s % 8
        q.l(f"ds_write_b128 {(('v12', 'v15'), ('v116', 'v117'))[h][i // 4]}, v[{X+4*s}:{X+4*s+3}] offset:{2048*(i%4)}", "xw")
    def stats(h):
        A = A0 + 8 * h
        for r in (A, A + 2): a.e(f"v_add_f32 v{r}, v{r}, v{r+1}")
        for d in ("quad_perm:[1,0,3,2]", "quad_perm:[2,3,0,1]", "row_half_mirror"):
            a.e("s_nop 0")
            for r in (A, A + 2): a.e(f"v_add_f32_dpp v{r}, v{r}, v{r} {d} row_mask:0xf bank_mask:0xf")
        a.e(f"v_mul_f32 v{A}, {f2u(-1.0/512)}, v{A}")
        a.e(f"v_mul_f32 v{A+2}, {f2u(1.0/512)}, v{A+2}")
        a.e(f"v_fma_f32 v{A+2}, -v{A}, v{A}, v{A+2}")
        a.e(f"v_max_f32 v{A+2}, 0, v{A+2}")
        a.e(f"v_add_f32 v{A+2}, {f2u(1e-5)}, v{A+2}")
        a.e(f"v_rsq_f32 v{A+4}, v{A+2}")
        a.e("s_nop 0")
        a.e(f"v_mul_f32 v{A+4}, {f2u(XSC)}, v{A+4}")
        a.e(f"v_mul_f32 v{A+5}, v{A}, v{A+4}")
    for h in range(2):
        A = A0 + 8 * h
        for i in range(8):
            s = 8 * h + i
            if s == 8: stats(0)
            if h == 1:
                norm(i)
                if MF: xw(i)
            q.wait(f"x{s}")
            if s == 0: fs(1)
            for _ in range(opt.get("ep", [8] + [1] * 15)[s]):
                if early: early.pop(0)()
            for j in range(4):
                x = X + 4 * s + j; f = F + 8 * s + 2 * j
                a.e(f"v_lshlrev_b32 v{f}, 16, v{x}")
                a.e(f"v_and_b32 v{f+1}, s101, v{x}")
            for j in range(4):
                f = F + 8 * s + 2 * j
                if i == 0 and j == 0:
                    a.e(f"v_pk_add_f32 v[{A}:{A+1}], v[{f}:{f+1}], 0")
                    a.e(f"v_pk_mul_f32 v[{A+2}:{A+3}], v[{f}:{f+1}], v[{f}:{f+1}]")
                else:
                    a.e(f"v_pk_add_f32 v[{A}:{A+1}], v[{A}:{A+1}], v[{f}:{f+1}]")
                    a.e(f"v_pk_fma_f32 v[{A+2}:{A+3}], v[{f}:{f+1}], v[{f}:{f+1}], v[{A+2}:{A+3}]")
    fs(2)
    stats(1)
    for s in range(8, 8 if MF else 12):
        for _ in range(2):
            if early: early.pop(0)()
        norm(s)
    while early: early.pop(0)()
    fs(3)
    fz = Fine(a, opt.get("fz"))
    fz(0)
    if not MF: mfin = m_tile(a, q, fz, [lambda s=s: norm(s) for s in range(12, 16)])
    fs(4); fz(4)
    for s in range(8 if MF else 0, 16):
        if MF: norm(s)
        xw(s)
        if s in (1, 5, 8, 12): fz(5 + (1, 5, 8, 12).index(s))
        if s == 3: mfin()
        if s >= 3:
            for _ in range(2):
                if late: late.pop(0)()
        TT = opt.get("tt", 8)
        if opt.get("te", 29) is not None: continue
        if s == TT and opt.get('ta', 2): touch_aux(a, q, opt.get('ta', 2))
        if s == TT + 1 and not opt.get("tw"): touch_u()
    srd_off(a, 8, 4, "s24", 4096000)
    a.e("s_lshr_b32 s19, s3, 16")
    a.e("s_lshl_b32 s19, s19, 10")
    a.e("s_add_u32 s19, s19, s27")
    a.e("v_and_b32 v13, 3, v2")
    fz(9)
    q.wait("xw")
    fz(10)
    q.wait("St")
    fz(11)
    a.e("s_barrier")
    fz(12)
    st(1)
    AR = [16 + 16 * i for i in range(4)] + [96]
    T = 112
    NQ = 5
    role = [None]
    def areg(k): return AR[(k - 16 + 2) % NQ] if (role[0] == "qk" and k >= 16) else AR[k % 2]
    def accof(k): return 128 if k < 16 else 192 if (k < 32 or role[0] == "qk") else 128
    def bread(s, tb):
        r = 64 * tb + 4 * s
        if tb == 0: a.e(f"v_xor_b32 v{XR_+1}, {2048*(s//2) + 64*(s%2)}, v{XR_}")
        q.l(f"ds_read_b128 a[{r}:{r+3}], v{XR_+1} offset:{16384*tb}", f"B{s}")
    def tread(k, i):
        nb, h = i // 2, i % 2
        r = areg(k) + 4 * nb + 2 * h
        q.l(f"ds_read_b64_tr_b16 v[{r}:{r+1}], v{TR+nb} offset:{4096*(k % RING) + 512*h}", f"A{k}", need=(f"W{k}",))
    def mload(k, nb):
        if nb == 0: a.e(f"s_xor_b32 s42, s20, {4096*(k-16)}")
        r = areg(k) + 4 * nb
        q.v(f"buffer_load_dwordx4 v[{r}:{r+3}], v3, s[12:15], s42 offen offset:{1024*nb} sc1", f"A{k}")
    for tb in range(4): bread(0, tb)
    for i in range(8): tread(0, i)
    signal(a, L, "sig1", 0, 0)
    for tb in range(4): bread(1, tb)
    a.e(f"s_mov_b32 s0, {f2u(-GC1 / XSC)}")
    a.e(f"s_mov_b32 s1, {f2u(XSC)}")
    a.e("v_lshlrev_b32 v13, 6, v13")
    NB1 = opt.get("nb1", 0)
    a.e("s_cmp_lt_u32 s16, 2" if NB1 else "s_cmp_eq_u32 s16, 1")
    a.e("s_cselect_b32 s26, 0, 0x1000")
    a.e("v_add_u32 v12, s26, v13")
    a.e("s_lshl_b32 s17, s31, 16")
    a.e("s_lshl_b32 s26, s16, 7")
    a.e("s_add_u32 s17, s17, s26")
    a.e(f"s_add_u32 s17, s17, {WS_GU}")
    fx = [{}]
    def at(k, g, fn): fx[0].setdefault((k, g), []).append(fn if callable(fn) else (lambda: a.e(fn)))
    def run(ops):
        for x in ops: x() if callable(x) else a.e(x)
    def cost(x): return 2 if (isinstance(x, str) and x.split()[0] in ("v_exp_f32", "v_rcp_f32")) else 1
    def steps(k0, k1, side=(), lead=10, tailg=4):
        fixed = fx[0]
        gaps = [(k, g) for k in range(k0, k1) for g in range(16)]
        cap = [0 if (n < lead or n >= len(gaps) - tailg) else max(0, 2 - len(fixed.get(x, []))) for n, x in enumerate(gaps)]
        ops = list(side)
        C = sum(map(cost, ops)); tot = sum(cap)
        scale = min(1.0, C / tot)
        extra = max(0.0, (C - tot) / (len(gaps) - lead - tailg))
        budget = 0.0; used = 0
        for n, (k, g) in enumerate(gaps):
            if g == 0:
                if k in opt.get("fk", []): Fine(a, True)(opt["fk"].index(k))
                q.wait(f"A{k}", f"B{k}")
            nb, tb = ORD16[g] if opt.get('o2', 1) else (g // 4, g % 4)
            d = accof(k) + 16 * nb + 4 * tb; r = areg(k) + 4 * nb; b = 64 * tb + 4 * (k % 16)
            c = "0" if k % 16 == 0 else f"v[{d}:{d+3}]"
            a.e(f"{M16} v[{d}:{d+3}], v[{r}:{r+3}], a[{b}:{b+3}], {c}")
            for fn in fixed.pop((k, g), []): fn()
            if lead <= n < len(gaps) - tailg:
                budget += cap[n] * scale + extra
            while ops and (used + cost(ops[0]) <= budget + 1e-6 or n == len(gaps) - max(tailg, 1)):
                x = ops.pop(0); used += cost(x); run([x])
        assert not ops
    def raw_plan(k0, k1, kend):
        for k in range(k0, k1):
            if k + 1 < kend:
                for i in range(8): at(k, i, lambda k=k, i=i: tread(k + 1, i))
            if k + RING < kend:
                for j in range(4): at(k, 9 + 2 * j, lambda k=k, j=j: wdma(k + RING, j))
            if k + 2 < 16:
                for tb in range(4): at(k, 8 + 2 * tb, lambda k=k, tb=tb: bread(k + 2, tb))
    def gelu(acc, kind, pk, base, off):
        out = []
        if opt.get("nogelu"): return [["s_nop 0"] * 40 for _ in range(8)]
        P = lambda r: f"v[{r}:{r+1}]"
        def store(E, i):
            r = acc + 32 + 16 * (i % 2) + 4 * (i // 2)
            def f():
                a.e(f"s_add_u32 s29, {base}, {off + 4096*i}")
                pub = kind == "g" and i in (0, 7)
                q.v(f"buffer_store_dwordx4 v[{r}:{r+3}], v{SG}, s[12:15], s29 offen{' sc1' if pub else ''}", "St" if pub else "_", need=(f"sr{kind}{i}",))
            E(f)
        for tb in range(4):
            for h in range(2):
                o = []; E = o.append; out.append(o)
                src = [acc + 16 * (2 * h + ee) + 4 * tb + j for ee in range(2) for j in range(4)]
                pr = T + 8 + 4 * h
                cv_ = [f"v_cvt_pk_bf16_f32 v{pr+j}, v{src[2*j]}, v{src[2*j+1]}" for j in range(4)]
                if pk(2 * tb + h):
                    f_ = [f"v_pk_fma_f32 {P(T+i)}, {P(src[i])}, {P(src[i])}, s[0:1] op_sel_hi:[1,1,0] neg_lo:[1,0,0] neg_hi:[1,0,0]" for i in range(0, 8, 2)]
                    m_ = [f"v_pk_mul_f32 {P(T+i)}, {P(T+i)}, {P(src[i])}" for i in range(0, 8, 2)]
                    e_ = [f"v_exp_f32 v{T+i}, v{T+i}" for i in range(8)]
                    d_ = [f"v_pk_fma_f32 {P(T+i)}, {P(T+i)}, s[0:1], s[0:1] op_sel:[0,1,1] op_sel_hi:[1,1,1]" for i in range(0, 8, 2)]
                    r_ = [f"v_rcp_f32 v{T+i}, v{T+i}" for i in range(8)]
                    o_ = [f"v_pk_mul_f32 {P(src[i])}, {P(T+i)}, {P(src[i])}" for i in range(0, 8, 2)]
                    if opt.get("gi", 1):
                        for x in [f_[0], m_[0], e_[0], f_[1], e_[1], m_[1], e_[2], f_[2], e_[3], m_[2], e_[4], f_[3], e_[5], m_[3], e_[6], d_[0], e_[7], d_[1],
                                  r_[0], d_[2], r_[1], d_[3], r_[2], o_[0], r_[3], cv_[0], r_[4], o_[1], r_[5], cv_[1], r_[6], o_[2], r_[7], cv_[2], o_[3], cv_[3]]: E(x)
                    else:
                        for x in f_ + m_ + e_ + d_ + r_ + o_ + cv_: E(x)
                else:
                    for i, x in enumerate(src): E(f"v_fma_f32 v{T+i}, -v{x}, v{x}, s0")
                    for i, x in enumerate(src): E(f"v_mul_f32 v{T+i}, v{T+i}, v{x}")
                    for i, x in enumerate(src): E(f"v_exp_f32 v{T+i}, v{T+i}")
                    for i, x in enumerate(src): E(f"v_fma_f32 v{T+i}, v{T+i}, s1, s1")
                    for i, x in enumerate(src): E(f"v_rcp_f32 v{T+i}, v{T+i}")
                    for i, x in enumerate(src): E(f"v_mul_f32 v{x}, v{T+i}, v{x}")
                    for x in cv_: E(x)
                if kind == "g":
                    s0, s1 = acc + 4 * tb, acc + 4 * tb + 1
                    if pk(2 * tb + h):
                        E(f"v_pk_mul_f32 {P(T)}, {P(src[0])}, {P(src[0])}")
                        E(f"v_pk_add_f32 {P(T+2)}, {P(src[0])}, {P(src[2])}")
                        for i in (2, 4, 6):
                            E(f"v_pk_fma_f32 {P(T)}, {P(src[i])}, {P(src[i])}, {P(T)}")
                            if i > 2: E(f"v_pk_add_f32 {P(T+2)}, {P(T+2)}, {P(src[i])}")
                        if h == 0:
                            E(f"v_add_f32 v{s0}, v{T+2}, v{T+3}")
                            E(f"v_add_f32 v{s1}, v{T}, v{T+1}")
                        else:
                            E(f"v_add_f32 v{T+2}, v{T+2}, v{T+3}")
                            E(f"v_add_f32 v{T+3}, v{T}, v{T+1}")
                            E(f"v_pk_add_f32 {P(s0)}, {P(s0)}, {P(T+2)}")
                    elif h == 0:
                        E(f"v_mul_f32 v{T}, v{src[0]}, v{src[0]}")
                        for x in src[1:]: E(f"v_fmac_f32 v{T}, v{x}, v{x}")
                        for x in src[1:]: E(f"v_add_f32 v{s0}, v{s0}, v{x}")
                        E(f"v_mov_b32 v{s1}, v{T}")
                    else:
                        for x in src:
                            E(f"v_add_f32 v{s0}, v{s0}, v{x}")
                            E(f"v_fmac_f32 v{s1}, v{x}, v{x}")
                for ee in range(2):
                    E(lambda ee=ee, pr=pr, h=h: q.l(f"ds_write_b64 v{SW}, v[{pr+2*ee}:{pr+2*ee+1}] offset:{32*(2*h+ee)}"))
                if tb >= 1: store(E, 2 * (tb - 1) + h)
            for i in (2 * tb, 2 * tb + 1):
                r = acc + 32 + 16 * (i % 2) + 4 * tb
                E(lambda i=i, r=r: q.l(f"ds_read_b128 v[{r}:{r+3}], v{SR} offset:{8*SS*(i%2)}", f"sr{kind}{i}"))
        if kind == "g":
            for k in range(2):
                E(f"v_permlane16_swap_b32 v{acc+k}, v{acc+4+k}")
                E(f"v_permlane16_swap_b32 v{acc+8+k}, v{acc+12+k}")
            E("s_lshl_b32 s43, s22, 2")
            for k in range(2):
                E(f"v_add_f32 v{acc+k}, v{acc+k}, v{acc+4+k}")
                E(f"v_add_f32 v{acc+8+k}, v{acc+8+k}, v{acc+12+k}")
            E("s_add_u32 s43, s43, s16")
            E("s_lshl_b32 s43, s43, 9")
            for k in range(2): E(f"v_permlane32_swap_b32 v{acc+k}, v{acc+8+k}")
            E(lambda: (a.e("s_lshr_b32 s29, s31, 1"), a.e("s_lshl_b32 s29, s29, 12"), a.e("s_add_u32 s43, s43, s29")))
            for k in range(2): E(f"v_add_f32 v{T+k}, v{acc+k}, v{acc+8+k}")
            E(f"s_add_u32 s43, s43, {WS_ST}")
            E(f"v_lshlrev_b32 v{T+2}, 3, v2")
            E(lambda: q.v(f"buffer_store_dwordx2 v[{T}:{T+1}], v{T+2}, s[12:15], s43 offen sc1", "St"))
        store(E, 6); store(E, 7)
        return out
    flat = lambda bs: [x for b in bs for x in b]
    def stream_srd():
        a.e(f"s_mul_i32 s28, s22, {32768 * opt.get('n0', 62)}")
        a.e("s_add_u32 s28, s28, s24")
        a.e("s_lshl_b32 s26, s25, 15")
        srd_off(a, 8, 4, "s28", "s26")
    def xl():
        a.e("s_xor_b32 s26, s31, 1")
        a.e("s_lshl_b32 s26, s26, 7")
        a.e(f"s_add_u32 s26, s26, {WS_FL + 48}")
        q.v("buffer_load_dword v1, off, s[12:15], s26 sc1", "xid")
    def xc():
        q.wait("xid")
        a.e("v_readfirstlane_b32 s26, v1")
        a.e("s_getreg_b32 s21, hwreg(HW_REG_XCC_ID, 0, 4)")
        a.e("s_xor_b32 s21, s21, s26")
        if opt.get("far"): a.e("s_mov_b32 s21, 1")
    def e0():
        if role[0] == "qk" or not NB1: xc()
        q.wait("B15")
        a.e("s_barrier")
        if role[0] == "pv" and NB1: xl()
    PQ = opt.get("pq", [11, 11, 12, 13, 14, 15, 16, 16, 17, 17, 18, 18, 19, 19, 20, 20])
    def pub(i):
        tb, sl = i // 4, i % 4
        a.e(f"s_xor_b32 s28, s19, {16384*tb + 1024*sl}")
        q.v(f"buffer_store_dwordx4 a[{64*tb+4*sl}:{64*tb+4*sl+3}], v{YO}, s[8:11], s28 offen sc1", "Xst")
    def arrive():
        a.e(f"v_mov_b32 v1, {LDS_CNT}")
        a.e("v_mov_b32 v14, 1")
        q.wait("Xst")
        a.e("s_mov_b64 exec, 1")
        q.l("ds_add_rtn_u32 v15, v1, v14", "cnt")
        a.e("s_mov_b64 exec, -1")
    def sig2():
        q.wait("cnt")
        a.e("v_readfirstlane_b32 s28, v15")
        a.e("s_and_b32 s26, s2, 3")
        a.e("s_lshl_b32 s26, s26, 6")
        a.e("s_cmp_lg_u32 s28, 1")
        a.e(f"s_cbranch_scc1 {L('sig2')}")
        a.e("s_mov_b64 exec, 1")
        a.e("buffer_atomic_add v14, off, s[92:95], s26 offset:8")
        a.e("s_mov_b64 exec, -1")
        a.label(L("sig2"))
    KS = opt.get("ks", 11); KC = 11
    raw_plan(0, KS, 16)
    c1l = lambda: q.v(cnt_load(0, "v12"), "c1")
    if KS > KC - 3: at(*opt.get('c1p', (KC - 3, 8)), c1l)
    fs(5); fz(13)
    at(0, 1, lambda: fz(14)); at(1, 1, lambda: fz(15))
    steps(0, KS)
    assert not fx[0]
    a.e("s_cmp_ge_u32 s16, 2")
    a.e(f"s_cbranch_scc1 {L('fpv')}")
    state = (list(q.vm), list(q.lg))

    def qk_part():
        role[0] = "qk"; fx[0] = {}
        raw_plan(KS, 16, 16)
        def chk1():
            q.wait("c1")
            if not NB1:
                a.e("s_cmp_lg_u32 s16, 1")
                a.e(f"s_cbranch_scc1 {L('c1_ok')}")
            poll(a, q, L, "c1", [cnt_load(0, "v12")], CNT_OK, "c1", slp=8)
            if not NB1: a.e("s_barrier")
            a.e("s_lshl_b32 s26, s22, 1")
            a.e("s_add_u32 s26, s26, s16")
            a.e("s_lshl_b32 s20, s26, 17")
            a.e("s_lshr_b32 s28, s3, 16")
            a.e("s_lshl_b32 s28, s28, 12")
            a.e("s_add_u32 s20, s20, s28")
            a.e(f"s_add_u32 s20, s20, {WS_MI}")
            if opt.get("mt"):
                a.e("s_lshr_b32 s26, s2, 3")
                a.e("s_lshl_b32 s26, s26, 1")
                a.e("s_add_u32 s26, s26, s16")
                a.e("s_lshl_b32 s26, s26, 13")
                a.e(f"s_add_u32 s26, s26, {WS_MI}")
                a.e("v_lshlrev_b32 v14, 7, v2")
                q.v("buffer_load_dword v0, v14, s[12:15], s26 offen sc1")
        if KS <= KC - 3: at(KC - 3, 8, c1l)
        at(KC, 8, chk1)
        at(KC, 10, xl)
        for kk in range(16, 48):
            k = kk - NQ + 1
            for nb in range(4): at(k, (9 + 2 * nb) if k < 16 else (1 + 4 * nb), lambda kk=kk, nb=nb: mload(kk, nb))
        at(15, 8, e0)
        if PQ:
            for i, k in enumerate(PQ): at(k, 11 if (i and PQ[i - 1] == k) else 3 if k >= 16 else 14, lambda i=i: pub(i))
            at(PQ[-1] + 3, 7, arrive)
            at(PQ[-1] + 4, 7, sig2)
        for g, x in enumerate(["s_lshl_b32 s40, s31, 1", "s_add_u32 s40, s40, s16", "s_lshl_b32 s40, s40, 14", f"s_add_u32 s40, s40, {WS_QP}",
                               "s_lshl_b32 s41, s31, 5", "s_add_u32 s41, s41, s16", "s_lshl_b32 s41, s41, 2", f"s_add_u32 s41, s41, {WS_FL + 16}"]):
            at(15, g, x)
        steps(KS, 16)
        fs(6)
        NA_, NB_ = opt.get("qg", (4, 4))
        gb = gelu(128, "g", lambda b: b >= NA_ + NB_, "s17", 0)
        pre = ["s_lshl_b32 s26, s16, 2", "s_add_u32 s26, s26, s22", "s_lshl_b32 s26, s26, 13", f"s_add_u32 s18, s26, {LDS_XS}", f"v_add_u32 v{QW}, s18, v3",
               "s_xor_b32 s18, s18, 0x2000", "s_add_u32 s7, s40, 4096", "s_xor_b32 s6, s41, 128", "v_mov_b32 v12, 1",
               lambda: run(["s_cmp_eq_u32 s21, 0", "s_cselect_b32 s46, s14, 0", "s_mov_b64 s[44:45], s[12:13]"])]
        steps(16, 32, pre + flat(gb[:NA_]))
        fs(7)
        preg = lambda i: 192 + 32 * (i % 2) + 4 * (i // 2)
        def qst(i, r, srd, mod): return f"buffer_store_dwordx4 v[{r}:{r+3}], v3, s[{srd}:{srd+3}], {'s40' if i < 4 else 's7'} offen offset:{1024*(i%4)} {mod}"
        def pack(p):
            a.e("s_nop 3")
            for i in ((0, 2, 4, 6, 7, 5, 3, 1) if opt.get('o2', 1) else range(8)):
                pr = preg(i); src = [pr + 16 * ee + j for ee in range(2) for j in range(4)]
                for j in range(4): a.e(f"v_cvt_pk_bf16_f32 v{pr+j}, v{src[2*j]}, v{src[2*j+1]}")
                if p: q.v(qst(i, pr, 44, "nt"), "Qst", need=("qa",))
                q.l(f"ds_write_b128 v{QW}, v[{pr}:{pr+3}] offset:{16384*p + 1024*i}", "qw")
        def fetch(p, i):
            if i % 4 == 0:
                a.e(f"s_add_u32 m0, s18, {16384*p + 1024*i}")
                a.e("s_nop 0")
            q.v(f"buffer_load_dwordx4 v3, s[12:15], {'s40' if i < 4 else 's7'} offen offset:{1024*(i%4)} sc1 lds", "qd" if p else "qa")
        SWAP = ["s_xor_b32 s40, s40, 0x8000", "s_xor_b32 s7, s7, 0x8000"]
        pack(0)
        for i in range(8):
            k = 32 + opt.get("qsp", [0, 0, 1, 1, 2, 2, 3, 3])[i]
            r = (WV, TR)[i % 2]
            at(k, 3, lambda i=i, r=r: q.l(f"ds_read_b128 v[{r}:{r+3}], v{QW} offset:{1024*i}", f"qr{i}"))
            at(k, 15, lambda i=i, r=r: q.v(qst(i, r, 12, "sc1"), "Qst", need=(f"qr{i}",)))
        KA_, KB_, KC_ = opt.get("qk_", (39, 43, 45))
        qok = ["v_readfirstlane_b32 s26, v15", "s_cmp_eq_u32 s26, 1"]
        at(KA_, 3, lambda: q.v("buffer_store_dword v12, off, s[12:15], s41 sc1", need=("Qst",)))
        qfa = "buffer_load_dword v15, off, s[12:15], s6 sc1"
        at(KB_, 3, lambda: q.v(qfa, "qf"))
        at(KC_, 0, lambda: (poll(a, q, L, "qa", [qfa], qok, "qf", slp=1), run(SWAP)))
        for i in range(8): at(KC_, 1 + 2 * i, lambda i=i: fetch(0, i))
        at(opt.get("kc2", 41), 7, lambda: q.v(cnt_load(8), "c2"))
        at(43, 7, lambda: (stream_srd(), a.e("s_lshl_b32 s19, s16, 14")))
        at(44, 0, lambda: poll(a, q, L, "c2", [cnt_load(8)], CNT_OK, "c2", slp=8))
        def kvt():
            n = opt.get("kt_", 6)
            a.e("s_lshr_b32 s26, s2, 4")
            a.e("s_lshl_b32 s26, s26, 1")
            a.e("s_add_u32 s26, s26, s16")
            a.e(f"s_lshl_b32 s26, s26, {n + 6}")
            a.e(f"v_lshlrev_b32 v14, {n}, v2")
            q.v("buffer_load_dword v0, v14, s[8:11], s26 offen sc1")
        if opt.get("kt_", 0): at(44, 1, kvt)
        kds = []
        for i in range(16):
            def kd(i=i):
                if i % 4 == 0:
                    a.e(f"s_add_u32 m0, s19, {1024*i}")
                    a.e(f"s_add_u32 s42, s19, {1024*i}")
                q.v(f"buffer_load_dwordx4 v3, s[8:11], s42 offen offset:{1024*(i%4)} sc1 lds", "kv0")
            if i >= opt.get("kn", 4): kds.append(kd)
            else: at(44 + i // 4 + (1 if 44 + i // 4 >= KC_ else 0), 4 + 3 * (i % 4), kd)
        steps(32, 48, flat(gb[NA_:NA_ + NB_]), lead=2)
        assert not fx[0]
        fs(8); fy = Fine(a, opt.get("fy")); fy(0)
        pack(1)
        fy(1)
        rest = gb[NA_ + NB_:]
        W1, W2 = opt.get("qw_", (0, 0))
        run(kds)
        for _ in range(W1): run(rest.pop(0))
        fy(2)
        release(a, q, L, "rq", "Qst", "buffer_store_dword v12, off, s[12:15], s41 offset:8", [qst(i, preg(i), 12, "sc1") for i in range(8)])
        fy(3)
        qfl = "buffer_load_dword v15, off, s[12:15], s6 offset:8 sc1"
        fy(4)
        for _ in range(W2): run(rest.pop(0))
        q.v(qfl, "qf")
        for _ in range(opt.get("w3", 0)): run(rest.pop(0))
        fs(12); fy(5)
        run(SWAP)
        poll(a, q, L, "q", [qfl], qok, "qf", slp=1)
        fy(6)
        for i in range(8): fetch(1, i)
        fy(7)
        run(flat(rest))
        fs(9); fy(8)

    def pv_part(setup, vreads, zero):
        role[0] = "pv"; fx[0] = {}
        a.label(L("fpv"))
        q.vm, q.lg = list(state[0]), list(state[1])
        a.e("s_and_b32 s20, s3, 0xffff0000")
        a.e("s_lshl_b32 s26, s22, 1")
        a.e("s_add_u32 s26, s26, s16")
        a.e("s_sub_u32 s26, s26, 2")
        a.e("s_lshl_b32 s26, s26, 8")
        a.e("s_add_u32 s20, s20, s26")
        raw_plan(KS, 48, 48)
        if not NB1:
            at(KC, 8, "s_barrier")
            at(KC, 10, xl)
        at(15, 8, e0)
        PE = opt.get("pe", [])
        for i, k in enumerate(PE): at(k, 12 if (i and PE[i - 1] == k) else 4, lambda i=i: pub(i))
        steps(KS, 16)
        fs(6)
        N1, N2 = opt.get("pg_", (5, 3))
        gb = gelu(128, "g", lambda b: b < N1, "s17", 0)
        e1 = flat(gb[:N1])
        for i in range(16 if PQ else len(PE), 16): e1.insert((i - len(PE)) * opt.get("pd", 12), lambda i=i: pub(i))
        a.e("s_nop 3")
        run(e1)
        if NB1: xc()
        fs(12)
        K2 = opt.get("k2", 19)
        if not PQ:
            at(K2, 8, arrive)
            at(K2 + 1, 8, sig2)
        steps(16, 32, flat(gb[N1:]), lead=2)
        fs(7)
        a.e("s_lshl_b32 s26, s16, 7")
        a.e("s_add_u32 s17, s17, s26")
        a.e("s_sub_u32 s17, s17, 512")
        ua = gelu(192, "ua", lambda b: b >= N2, "s17", 32768)
        n0 = len(a.lines)
        stream_srd(); setup()
        a.e("s_lshl_b32 s6, s19, 14")
        a.e("s_lshl_b32 s20, s19, 13")
        su = [x.strip() for x in a.lines[n0:]]; del a.lines[n0:]
        if opt.get("sg", 1):
            steps(32, 43, flat(ua[:N2]), tailg=0)
            steps(43, 48, su, lead=0, tailg=0)
        else:
            steps(32, 48, flat(ua[:N2])); run(su)
        assert not fx[0]
        fs(8); fy = Fine(a, opt.get("fy"))
        for k in range(9): fy(k)
        ub = gelu(128, "ub", lambda b: True, "s17", 32768 + 128)
        rest = ua[N2:] + ub
        pend = []
        def dma(n0, n, lds0, tag):
            for i in range(n):
                def f(i=i):
                    if i % 4 == 0:
                        a.e(f"s_add_u32 m0, {lds0}, {n0 + 1024*i}")
                        a.e(f"s_add_u32 s7, {lds0}, {n0 + 1024*i}")
                    q.v(f"buffer_load_dwordx4 v3, s[8:11], s7 offen offset:{1024*(i%4)} sc1 lds", tag)
                pend.append(f)
        BS, BA, BB = opt.get("pb", (6, 9, 11))
        DD = opt.get("dd", 5)
        assert (BA - len(ua[N2:])) % 2 == 0 if BA >= len(ua[N2:]) else (N2 + BA) % 2 == 0
        for n in range(len(rest) + 1):
            if n == BS:
                q.wait("St")
                fy(9)
                a.e("s_barrier")
                fy(10)
                st(2); fs(9)
                if not opt.get("q1"): dma(32768, 16, "s6", "kv1")
                if opt.get("t2", 1): dma(65536, 8, "s20", "kv2")
            if n == BA:
                q.all(vm=False)
                fy(11)
                a.e("s_barrier")
                fy(12)
                a.e(f"s_mul_i32 s26, s19, {16*SS - 8192}")
                a.e(f"s_add_u32 s26, s26, {LDS_SC2 - LDS_SC}")
                a.e(f"v_add_u32 v{SW}, s26, v{SW}")
                a.e(f"v_add_u32 v{SR}, s26, v{SR}")
                run(pend); del pend[:]
                if not opt.get("t2", 1): dma(65536, 8, "s20", "kv2")
                dma(81920, 8, "s20", "kv2")
                if not opt.get("q3", 0): dma(98304, 16, "s6", "kv3")
            if n == BB:
                q.wait("kv1")
                fy(13)
                a.e("s_barrier")
                fy(14)
                fs(10)
                signal(a, L, "sig3", 2, 4)
            if n < len(rest):
                for i, x in enumerate(rest[n]):
                    if opt.get("gr", 1):
                        if i in (0, 16) and n >= BS:
                            for _ in range(opt.get("gd", 4)):
                                if pend: pend.pop(0)()
                            for _ in range(opt.get("gv", 4)):
                                if vreads: q.l(vreads.pop(0))
                    else:
                        if n >= BS and i % 4 == 0 and vreads: q.l(vreads.pop(0))
                        if i % (DD if n < BA else opt.get("d2", 4)) == 1 and pend: pend.pop(0)()
                    run([x])
        assert not vreads
        run(pend)
        zero()
        q.wait("kv2")
        q.all(vm=False)
        fy(15)
    return qk_part, pv_part
```

```python
import sys
sys.path.insert(0, "gen")
from asmlib import *
from layout import *
from conv import Conv
from aux import gen_aux
from front import *

RS = 1056
LDS_P = 131072
LDS_MX = 139264
LDS_FG = LDS_MX + 512
LDS_ML = LDS_MX + 1024
LDS_HALO = LDS_ML + 1024
LDS_TAP = LDS_HALO + 2048
LDS_STT = LDS_TAP + 3072
LDS_ATT = 163840
ES = 272
NA = 16
ARING = [16 * ((i + 11) % 16) for i in range(16)]
BIG = 2.0 ** 100
FK = [0, 8, 16, 20, 24, 28, 30]

DROP = []
ALIGN = [0]
def emit_interval(a, mfmas, fill, lo=0, hi=None):
    for i, m in enumerate(mfmas):
        if i < lo or (hi is not None and i >= hi): continue
        if m is not None:
            if ALIGN[0]: a(".p2alignl 3, 0xbf800000")
            a.e(m)
        for f in fill.get(i, []):
            if any(f.startswith(d) for d in DROP): continue
            a.e(f)

def conv_addr(a, NR, row0):
    a.e("v_lshrrev_b32 v12, 5, v2")
    a.e(f"v_mul_u32_u24 v12, {NR}, v12")
    a.e(f"v_add_u32 v12, {row0}, v12")
    a.e("v_and_b32 v13, 31, v2")
    a.e("v_lshlrev_b32 v13, 4, v13")
    a.e("v_lshl_add_u32 v14, v12, 9, v13")
    a.e("s_and_b32 s26, s25, 3")
    a.e("s_lshl_b32 s26, s26, 15")
    a.e("v_add_u32 v232, s26, v14")
    a.e("v_add_u32 v235, s49, v14")
    a.e("v_and_b32 v14, 4, v12")
    a.e("v_lshlrev_b32 v14, 5, v14")
    a.e("v_xor_b32 v236, v235, v14")
    a.e(f"v_add_u32 v238, {LDS_TAP}, v13")
    a.e(f"v_add_u32 v13, {LDS_HALO}, v13")
    a.e("v_cmp_eq_u32 vcc, 0, v12")
    a.e("v_subrev_u32 v233, 1024, v232")
    a.e(f"v_add_u32 v234, {512*NR}, v232")
    a.e("v_cndmask_b32 v233, v233, v13, vcc")
    a.e(f"v_cmp_eq_u32 vcc, {64-NR}, v12")
    a.e("v_add_u32 v13, 1024, v13")
    a.e("v_lshlrev_b32 v237, 3, v12")
    a.e("v_cndmask_b32 v234, v234, v13, vcc")
    a.e(f"v_add_u32 v237, {LDS_STT}, v237")

def gen_tail(a, L, st, fs, opt):
    q = Seq(a)
    PF = opt.get("pf", 10)
    q.vm = [f"A{k}" for k in range(PF) for _ in range(4)]
    BF = [32, 48]; YR = 64; XR = 96
    NS = 32
    acc = lambda k: 128 if k < 16 else 192
    def bread(k, tb):
        s = k % 8
        r = BF[k % 2] + 4 * tb
        if k % 16 < 8:
            return f"ds_read_b128 v[{r}:{r+3}], v6 offset:{8192*tb + 1024*s}"
        return f"ds_read_b128 v[{r}:{r+3}], v{28 + s % 4} offset:{8192*tb + 256*(s//4)}"
    a.e("v_add_u32 v6, s48, v3")
    a.e("s_waitcnt lgkmcnt(0)")
    fs(5)
    a.e("s_barrier")
    for tb in range(4): q.l(bread(0, tb), "B0")
    a.e("v_and_b32 v4, 15, v2")
    a.e("v_lshrrev_b32 v5, 4, v2")
    a.e("v_mov_b32 v12, 1")
    a.e("v_mov_b32 v15, 0x3f80")
    SEL = 16
    side = {}
    def at(k, g, fn): side.setdefault((k + g // 16, g % 16), []).append(fn)
    def spread(k, g, ops, per=2, skip=lambda g: False):
        n = 16 * k + g
        ops = list(ops)
        while ops:
            if not skip(n % 16):
                for _ in range(per):
                    if ops:
                        o = ops.pop(0)
                        at(n // 16, n % 16, o if callable(o) else (lambda o=o: a.e(o)))
            n += 1
    lo8 = lambda g: g < 8
    spread(0, 8, ["v_and_b32 v13, 7, v4", "v_lshlrev_b32 v13, 1, v13", "v_xor_b32 v13, v13, v5", "v_lshlrev_b32 v13, 4, v13",
                  "v_lshl_add_u32 v13, v4, 9, v13", "v_add_u32 v28, s49, v13", "v_xor_b32 v29, 64, v28", "v_xor_b32 v30, 128, v28",
                  "v_xor_b32 v31, 192, v28",
                  "s_and_b32 s26, s16, 2", "s_add_u32 s26, s26, s25", "s_and_b32 s26, s26, 3", "s_lshl_b32 s26, s26, 1",
                  "s_and_b32 s28, s16, 1", "s_add_u32 s26, s26, s28", "s_lshl_b32 s42, s26, 14",
                  "v_lshrrev_b32 v13, 1, v4", "v_xor_b32 v13, v13, v5", "v_lshlrev_b32 v13, 4, v13", "v_lshl_add_u32 v13, v4, 7, v13",
                  "v_add_u32 v8, s42, v13", "v_xor_b32 v9, 64, v8", "v_add_u32 v7, s42, v3",
                  "v_lshrrev_b32 v13, 3, v2", "v_lshrrev_b32 v14, 4, v2", "v_xor_b32 v14, v14, v2", "v_and_b32 v14, 7, v14",
                  "v_lshlrev_b32 v14, 4, v14", "v_lshl_add_u32 v10, v13, 10, v14", "v_xor_b32 v11, 64, v10",
                  "v_lshrrev_b32 v13, 2, v4", "v_cmp_eq_u32 vcc, v13, v5", "v_and_b32 v13, 1, v4", "v_lshlrev_b32 v13, 4, v13",
                  "v_lshlrev_b32 v13, v13, v15", "v_cndmask_b32 v13, 0, v13, vcc", "v_and_b32 v14, 2, v4", "v_cmp_eq_u32 vcc, 0, v14",
                  f"v_mov_b32 v{SEL+2}, 0", f"v_mov_b32 v{SEL+3}, 0", f"v_cndmask_b32 v{SEL}, 0, v13, vcc", f"v_sub_u32 v{SEL+1}, v13, v{SEL}",
                  f"v_mov_b32 v{SEL+4}, v{SEL}", f"v_mov_b32 v{SEL+5}, v{SEL+1}"], skip=lo8)
    KX = opt.get("kx", 26)
    for i in range(8):
        def xl(i=i):
            a.e(f"s_add_u32 m0, s42, {1024*i}")
            a.e(f"s_add_u32 s26, s58, {8192*i}")
            q.v(f"buffer_load_dwordx4 v{10 + i%2}, s[32:35], s26 offen lds", "X")
        at(KX, 1 + opt.get("dx", 4) * i, xl)
        at(opt.get("ku", 30), 8 + i, lambda i=i: q.l(f"ds_read_b128 v[{XR+4*i}:{XR+4*i+3}], v{8 + i%2} offset:{2048*(i//2)}", "XF", need=("X",)))
    YS = opt.get("ys", 2)
    for i in range(8):
        tb, h = i // 2, i % 2
        k, g0 = (16 + i // 2, 8 + 4 * (i % 2)) if YS == 2 else (16, 8 + 3 * i)
        src = [128 + 16 * (2 * h + ee) + 4 * tb + j for ee in range(2) for j in range(4)]
        for j in range(4):
            at(k, g0 + j // 2, lambda j=j, i=i, src=src: a.e(f"v_cvt_pk_bf16_f32 v{YR+4*i+j}, v{src[2*j]}, v{src[2*j+1]}"))
        at(k, g0 + 2, lambda i=i: q.v(f"buffer_store_dwordx4 v[{YR+4*i}:{YR+4*i+3}], v3, s[44:47], s{54 + i//4} offen offset:{1024*(i%4)} {opt.get('sm_', 'nt')}", "Yst"))
    KF, KL, KC = opt.get("k", (24, 27, 29))
    at(KF, 9, lambda: release(a, q, L, "ry", "Yst", "buffer_store_dword v12, off, s[12:15], s56",
        [f"buffer_store_dwordx4 v[{YR+4*i}:{YR+4*i+3}], v3, s[12:15], s{54 + i//4} offen offset:{1024*(i%4)} sc1" for i in range(8)]))
    yl = f"buffer_load_dword v14, off, s[12:15], s57 {opt.get('pm', 'sc1')}"
    at(KL, 9, lambda: q.v(yl, "yf"))
    def gety():
        poll(a, q, L, "y", [yl], ["v_readfirstlane_b32 s26, v14", "s_cmp_eq_u32 s26, 1"], "yf", slp=1)
        a.e("s_xor_b32 s54, s54, 0x10000")
        a.e("s_xor_b32 s55, s55, 0x10000")
    at(KC, 7, gety)
    for i in range(8):
        at(KC, 8 + i, lambda i=i: q.v(f"buffer_load_dwordx4 v[{YR+4*i}:{YR+4*i+3}], v3, s[12:15], s{54 + i//4} offen offset:{1024*(i%4)} {opt.get('lm', 'sc1')}", f"Y{i}"))
    nl = 4 * PF
    AS = opt.get("as", "4" * 16 + "0000" + "4" * 12)
    LG = opt.get("lg", (1, 5, 9, 13, 3))
    for k in range(NS):
        assert nl >= 4 * min(NS, k + 3)
        if k == 0: st(5)
        if k in FK: fs(6 + FK.index(k))
        q.wait(f"A{k}", f"B{k}")
        g = 0
        for nb_ in range(4):
            for tb_ in range(4):
                nb, tb = ORD16[g] if opt.get("o2", 1) else (nb_, tb_)
                d = acc(k) + 16 * nb + 4 * tb; r = areg(k, nb); b = BF[k % 2] + 4 * tb
                c = "0" if k % 16 == 0 else f"v[{d}:{d+3}]"
                a.e(f"{M16} v[{d}:{d+3}], a[{r}:{r+3}], v[{b}:{b+3}], {c}")
                if g < 8 and g % 2 == 0 and k + 1 < NS:
                    q.l(bread(k + 1, g // 2), f"B{k+1}")
                if nl < 4 * NS and nl // 4 < k + NA and g in LG[:int(AS[k])]:
                    aload(a, q, nl // 4, nl % 4); nl += 1
                for fn in side.pop((k, g), []): fn()
                g += 1
    assert not side, side.keys()
    st(6); fs(13)
    def sel(i, R, tag):
        tb, h = i // 2, i % 2
        out = []
        for ee in range(2):
            d = 192 + 16 * (2 * h + ee) + 4 * tb
            out.append(lambda d=d, ee=ee: q.e(f"{M16} v[{d}:{d+3}], v[{SEL+2*ee}:{SEL+2*ee+3}], v[{R+4*i}:{R+4*i+3}], v[{d}:{d+3}]", need=(tag,)))
        return out
    for i in range(8):
        for f in sel(i, XR, "XF"): f()
    PK = 128
    post = []
    for i in range(8):
        tb, h = i // 2, i % 2
        src = [192 + 16 * (2 * h + ee) + 4 * tb + j for ee in range(2) for j in range(4)]
        o = [f"v_cvt_pk_bf16_f32 v{PK+4*i+j}, v{src[2*j]}, v{src[2*j+1]}" for j in range(4)]
        o.append(lambda i=i, tb=tb, h=h: q.l(f"ds_write_b128 v{8+h}, v[{PK+4*i}:{PK+4*i+3}] offset:{8192 + 2048*tb}"))
        if h:
            o += [lambda ii=ii: q.l(f"ds_read_b128 v[{160+4*ii}:{163+4*ii}], v7 offset:{8192 + 1024*ii}", f"E{ii}") for ii in (i - 1, i)]
        post.append(o)
    def out(ii):
        a.e(f"s_add_u32 s26, s58, {8192*ii}")
        q.v(f"buffer_store_dwordx4 v[{160+4*ii}:{163+4*ii}], v{10 + ii%2}, s[36:39], s26 offen {opt.get('omod', 'nt')}", need=(f"E{ii}",))
    R_ = lambda ops: [x() if callable(x) else a.e(x) for x in ops]
    for i in range(8):
        m = sel(i, YR, f"Y{i}")
        o = post[i - 4] if i >= 4 else []
        m[0](); R_(o[:2]); m[1](); R_(o[2:])
    fs(14)
    for i in range(4, 8):
        R_(post[i])
        out(i - 4)
    for ii in range(4, 8): out(ii)

def ER(i):
    return (96 + 8 * i) if i < 4 else (32 + 8 * (i - 4))

def areg(k, nb):
    return ARING[k % NA] + 4 * nb

def aload(a, q, k, nb):
    s = k % 8
    if nb == 0:
        if k % 16 < 8:
            a.e(f"s_add_u32 s59, {'s52' if k < 16 else 's53'}, {524288 + 32768*(s//4) + 4096*(s%4)}")
        else:
            a.e(f"s_add_u32 s59, {'s50' if k < 16 else 's51'}, {4096*s}")
    r = areg(k, nb)
    q.v(f"buffer_load_dwordx4 a[{r}:{r+3}], v3, s[12:15], s59 offen offset:{1024*nb} sc1", f"A{k}")

def gen_attn(a, name, stamp=False, opt=None):
    dg = [3 + (15 * i) // 4 for i in range(16)]
    opt = dict(dict(ps=1, xe=1, qw=62, dg=dg, mg=[2, 17, 32, 47, 60], rg=[g for g in range(8, 60) if g not in dg][:32], rot=4,
                    kg_=list(range(8, 16)) + list(range(24, 32)), qbe=57, pbe=58, pvg=[4, 57, 60, 60, 60, 61, 61, 61]), **(opt or {}))
    OOL[:] = []
    DROP[:] = opt.get('drop', [])
    ALIGN[0] = opt.get('al', 0)
    Fine.op = 's_memtime' if opt.get('cyc') else 's_memrealtime'
    nP = 16
    L = lambda s: f"{name}_{s}"
    st = Stamper(a, stamp in (1, 5))
    fs = Fine(a, stamp == 2)
    ff = Fine(a, stamp == 3)
    fp = Fine(a, stamp == 6)
    kernel_begin(a, name)
    a.e("s_cmp_ge_u32 s2, 256")
    a.e(f"s_cbranch_scc1 {L('end')}")
    a.e(f"s_load_dwordx2 s[4:5], s[0:1], {KA['ws']}")
    a.e(f"s_load_dwordx2 s[6:7], s[0:1], {KA['x']}")
    a.e(f"s_load_dwordx2 s[40:41], s[0:1], {KA['wq']}")
    a.e(f"s_load_dwordx2 s[8:9], s[0:1], {KA['wk']}")
    a.e(f"s_load_dwordx2 s[96:97], s[0:1], {KA['wup']}")
    a.e(f"s_load_dwordx2 s[44:45], s[0:1], {KA['dw']}")
    a.e(f"s_load_dwordx4 s[48:51], s[0:1], {KA['out']}")
    a.e(f"s_load_dwordx4 s[52:55], s[0:1], {KA['wv']}")
    a.e(f"s_load_dwordx4 s[56:59], s[0:1], {KA['wdn']}")
    a.e("s_and_b32 s20, s2, 7")
    a.e("s_lshl_b32 s20, s20, 5")
    a.e("s_lshr_b32 s21, s2, 3")
    a.e("s_add_u32 s31, s20, s21")
    if opt.get("sw62", 1):
        a.e("s_and_b32 s20, s31, 62")
        a.e("s_cmp_eq_u32 s20, 60")
        a.e("s_cselect_b32 s20, 64, 0")
        a.e("s_xor_b32 s31, s31, s20")
    if opt.get("map") == 1:
        a.e("s_and_b32 s20, s2, 6")
        a.e("s_lshl_b32 s20, s20, 5")
        a.e("s_lshl_b32 s21, s21, 1")
        a.e("s_add_u32 s31, s20, s21")
        a.e("s_and_b32 s20, s2, 1")
        a.e("s_add_u32 s31, s31, s20")
    a.e("s_lshr_b32 s21, s31, 7")
    a.e("s_and_b32 s22, s31, 1")
    a.e("s_bfe_u32 s23, s31, 0x60001")
    a.e("v_lshrrev_b32 v1, 6, v0")
    a.e("v_and_b32 v2, 63, v0")
    a.e("v_readfirstlane_b32 s16, v1")
    a.e("v_lshlrev_b32 v3, 4, v2")
    a.e("s_mul_i32 s24, s21, 4096000")
    N0 = opt.get("n0", 62)
    a.e(f"s_mul_i32 s25, s22, {125 - 2*N0}")
    a.e(f"s_add_i32 s25, s25, {N0}")
    a.e("s_lshl_b32 s27, s23, 16")
    a.e("s_waitcnt lgkmcnt(0)")
    st(0); ff(0)
    def fin_srd(d, n):
        a.e(f"s_and_b32 s{d+1}, s{d+1}, 0xffff")
        a.e(f"s_mov_b32 s{d+2}, {n}")
        a.e(f"s_mov_b32 s{d+3}, 0x00020000")
    q = Seq(a)
    srd_off(a, 32, 6, "s24", 4096000)
    a.e("v_lshrrev_b32 v4, 3, v2")
    a.e("v_and_b32 v5, 7, v2")
    a.e("v_lshlrev_b32 v5, 4, v5")
    a.e("v_lshl_add_u32 v4, v4, 10, v5")
    a.e("s_lshl_b32 s26, s16, 14")
    a.e("s_add_u32 s26, s26, s27")
    a.e("s_lshl_b32 s28, s22, 9")
    a.e("s_add_u32 s26, s26, s28")
    a.e("v_mov_b32 v1, v4")
    a.e("s_mov_b32 s20, s26")
    def xld(s_):
        if s_ % 4 == 0: a.e(f"s_xor_b32 s7, s20, {8192*(s_//8) + 512*((s_//4)%2)}")
        q.v(f"buffer_load_dwordx4 v[{16+4*s_}:{19+4*s_}], v1, s[32:35], s7 offen offset:{128*(s_%4)} {opt.get('xmod', '')}", f"x{s_}")
    NX = opt.get("nx", 16)
    MF = opt.get("mf", 0)
    if MF:
        fin_srd(40, 524288); fin_srd(8, 524288)
        mi = m_issue(a, q)
        for s_ in range(opt.get("mx0", 0)): xld(s_)
        for f in mi: f()
        mi = []
    for s_ in range(opt.get("mx0", 0) if MF else 0, NX): xld(s_)
    opt["xrest"] = [lambda s_=s_: xld(s_) for s_ in range(NX, 16)]
    fin_srd(96, 1048576)
    touches(a, q, L, opt)
    if not MF: fin_srd(40, 524288); fin_srd(8, 524288)
    fin_srd(44, 5120)
    make_srd(a, 12, 4, 0x4000000)
    make_srd(a, 92, 50, 256)
    srd_off(a, 36, 48, "s24", 4096000)
    if not MF: mi = m_issue(a, q)
    def clear():
        a.e("v_mov_b32 v14, 0")
        a.e("v_lshlrev_b32 v13, 2, v2")
        a.e("s_lshl_b32 s26, s31, 2")
        a.e("s_add_u32 s26, s26, s16")
        a.e("s_lshl_b32 s28, s26, 8")
        a.e(f"s_add_u32 s28, s28, {WS_MX}")
        q.v("buffer_store_dword v14, v13, s[12:15], s28 offen sc1", "St")
        a.e("s_lshl_b32 s28, s31, 5")
        a.e("s_add_u32 s28, s28, s16")
        a.e("s_lshl_b32 s28, s28, 2")
        a.e(f"s_add_u32 s28, s28, {WS_FL}")
        a.e("v_and_b32 v13, 48, v2")
        a.e("s_getreg_b32 s26, hwreg(HW_REG_XCC_ID, 0, 4)")
        a.e("v_cmp_eq_u32 vcc, 48, v13")
        a.e("v_mov_b32 v14, s26")
        a.e("s_nop 0")
        a.e("v_cndmask_b32 v14, 0, v14, vcc")
        q.v("buffer_store_dword v14, v13, s[12:15], s28 offen sc1", "St")
    a.e("s_cmp_ge_u32 s23, 63")
    a.e(f"s_cbranch_scc1 {L('aux')}")
    def emit_aux(q0=q, vm0=list(q.vm)):
        a.label(L("aux"))
        q0.vm, q0.lg = list(vm0), []
        for f in mi: f()
        q0.v("buffer_load_dword v0, v7, s[44:47], 0 offen")
        m_addr(a)
        mfin = m_tile(a, q0)
        mfin()
        q0.all()
        a.e("s_barrier")
        signal(a, L, "sig1a", 0, 0)
        signal(a, L, "sig2a", 1, 8)
        signal(a, L, "sig3a", 2, 4)
        a.e("s_lshl_b32 s20, s21, 1")
        a.e("s_add_u32 s20, s20, s22")
        gen_aux(a, L, st, ff, opt)
        signal(a, L, "sig4a", 0, 12, shard=False)
        for k in range(5, 7): st(k)
        for k in range(15): fs(k)
        if stamp in (4, 6):
            for k in range(16): Fine(a, True)(k)
        for k in range(9, 15): ff(k)
        a.e(f"s_branch {L('fin')}")
    qk_part, pv_part = gen_front(a, q, L, st, ff, mi, clear, opt)
    qf = q
    qk_part()
    def tail_consts():
        t = Asm()
        t.e("s_lshl_b32 s26, s22, 2")
        t.e("s_add_u32 s26, s26, s16")
        t.e("s_lshl_b32 s53, s26, 16")
        t.e(f"s_add_u32 s53, s53, {WS_W3}")
        t.e("s_xor_b32 s52, s53, 0x40000")
        t.e("s_lshl_b32 s58, s26, 7")
        t.e("s_add_u32 s58, s58, s27")
        t.e("s_xor_b32 s54, s31, 1")
        t.e("s_lshl_b32 s54, s54, 3")
        t.e("s_add_u32 s54, s54, s16")
        t.e("s_lshl_b32 s54, s54, 13")
        t.e(f"s_add_u32 s54, s54, {WS_GU + 32768}")
        t.e("s_add_u32 s55, s54, 4096")
        t.e("s_lshl_b32 s26, s22, 15")
        t.e("s_add_u32 s50, s52, s26")
        t.e("s_add_u32 s51, s53, s26")
        t.e("s_lshl_b32 s26, s22, 14")
        t.e("s_add_u32 s52, s52, s26")
        t.e("s_add_u32 s53, s53, s26")
        t.e("s_add_u32 s26, s25, 3")
        t.e("s_and_b32 s26, s26, 3")
        t.e("s_lshl_b32 s48, s26, 15")
        t.e("s_add_u32 s26, s25, 1")
        t.e("s_and_b32 s26, s26, 3")
        t.e("s_lshl_b32 s49, s26, 15")
        t.e("s_lshl_b32 s56, s31, 5")
        t.e("s_add_u32 s56, s56, s16")
        t.e("s_lshl_b32 s56, s56, 2")
        t.e(f"s_add_u32 s56, s56, {WS_FL}")
        t.e("s_xor_b32 s57, s56, 128")
        return [x.strip() for x in t.lines]
    a.e("s_mov_b32 s17, s25")
    a.e(f"s_mov_b32 s101, {f2u(-BIG)}")
    NEAR = ["s_cmp_eq_u32 s21, 0", "s_cselect_b32 s46, s14, 0", "s_mov_b64 s[44:45], s[12:13]"]
    def guard(r):
        return [f"v_add_f32 v{r}, v{r}, v{r+1}", f"v_cmp_nle_f32 vcc, s101, v{r}", "s_cmp_eq_u32 s101, 0", "s_cselect_b64 s[28:29], 0, vcc",
                "s_cmp_lg_u64 s[28:29], 0", f"s_cbranch_scc1 {L('redo')}"]

    def dma_group():
        return "s_and_b32 m0, s18, 0x1ffff", [f"buffer_load_dwordx4 v3, s[8:11], s18 offen offset:{1024*j} {opt.get('kvmod', 'sc1')} lds" for j in range(4)]
    def dma_tile():
        for g in range(4):
            pre, ld = dma_group()
            a.e(pre); a.e("s_nop 0")
            for x in ld: a.e(x)
            a.e(f"s_add_u32 s18, s18, {4096 if g < 3 else 32768 - 3*4096}")
    def place_dma(fill, gaps):
        k = 0
        for g in range(4):
            pre, ld = dma_group()
            fill.setdefault(gaps[k] - 1, []).append(pre)
            for j in range(4):
                fill.setdefault(gaps[k], []).append(ld[j]); k += 1
            fill.setdefault(gaps[k - 1] + 1, []).append(f"s_add_u32 s18, s18, {4096 if g < 3 else 32768 - 3*4096}")
    auxl = cnt_load(4, "v11")
    auxc = ["v_cmp_le_u32 vcc, v7, v14"] + CNT_OK[1:]

    KB = [32, 96]; S = 160; NEGM = 176; E = 192; PK = 200; LS = 204
    VK = 8; VPW = 9; TMP = 10
    MX0 = 208
    def qk_setup():
        a.e("v_and_b32 v4, 15, v2")
        a.e("v_lshrrev_b32 v5, 4, v2")
        a.e("v_and_b32 v6, 0x27, v2")
        a.e("v_and_b32 v7, 8, v2")
        a.e("v_lshl_add_u32 v6, v7, 1, v6")
        a.e("v_and_b32 v7, 16, v2")
        a.e("v_lshrrev_b32 v7, 1, v7")
        a.e("v_add_lshl_u32 v6, v6, v7, 4")
        a.e("s_lshl_b32 s29, s16, 14")
        a.e(f"v_add_u32 v{VK}, s29, v6")
        a.e(f"s_lshl_b32 s29, s16, {3 if opt.get('p128') else 11}")
        a.e(f"s_add_u32 s29, s29, {LDS_P}")
        a.e(f"v_lshl_add_u32 v{VPW}, v2, {4 if opt.get('p128') else 3}, s29")
        for i in range(4):
            a.e(f"v_mov_b32 v{LS+i}, 0")
        for i in range(4):
            a.e(f"v_mov_b32 v{MX0+i}, 0xff800000")
    qk_setup()
    def kread(par, s, imm):
        r = KB[par] + 4 * s
        return f"ds_read_b128 v[{r}:{r+3}], v{VK} offset:{imm + 1024*s}"
    def chain(par, qb, c0):
        out = []
        for n in range(16):
            s = 15 - n if (qb % 2 and c0 != "0" and opt.get("zz", 1)) else n
            k = KB[par] + 4 * s; q = 64 * qb + 4 * s; d = S + 4 * qb
            c = c0 if n == 0 else f"v[{d}:{d+3}]"
            out.append(f"{M16} v[{d}:{d+3}], v[{k}:{k+3}], a[{q}:{q+3}], {c}")
        return out
    q = Seq(a)
    mf = [m for qb in range(4) for m in chain(0, qb, "0")]
    ST = 212
    tc = tail_consts() + [
        "s_mul_i32 s28, s16, 34", "s_lshl_b32 s29, s23, 6", "s_add_u32 s28, s28, s29", "s_sub_u32 s28, s28, 2",
        f"v_add_u32 v{ST+16}, s28, v2",
        f"v_max_i32 v{ST+17}, 0, v{ST+16}", f"v_min_i32 v{ST+17}, {T-1}, v{ST+17}", f"v_lshrrev_b32 v{ST+18}, 6, v{ST+17}", f"v_and_b32 v{ST+17}, 63, v{ST+17}",
        f"v_lshlrev_b32 v{ST+17}, 3, v{ST+17}", f"v_lshl_add_u32 v{ST+17}, v{ST+18}, 12, v{ST+17}",
        "s_lshr_b32 s6, s31, 7", "s_lshl_b32 s6, s6, 18", f"s_add_u32 s6, s6, {WS_ST}",
        "s_lshl_b32 s28, s16, 1", "s_add_u32 s28, s28, s23", "s_sub_u32 s28, s28, 1", "s_max_i32 s28, s28, 0", "s_min_i32 s28, s28, 62",
        "s_sub_u32 s28, s28, s23", "s_lshl_b32 s28, s28, 1", "s_add_u32 s28, s28, s31", "s_lshl_b32 s28, s28, 16",
        "s_xor_b32 s29, s16, 1", f"s_mul_i32 s29, s29, {62*512}", "s_add_u32 s28, s28, s29", f"s_add_u32 s7, s28, {WS_GU}",
        "s_lshl_b32 s29, s16, 10", f"s_add_u32 s42, s29, {LDS_HALO}",
        "s_xor_b32 s28, s31, 1", "s_lshl_b32 s28, s28, 1", "s_add_u32 s28, s28, s16", "s_lshl_b32 s28, s28, 9", f"s_add_u32 s28, s28, {WS_MX}",
        f"v_lshl_add_u32 v{ST+18}, v2, 3, s28", f"v_writelane_b32 v{ST+18}, s57, 1",
        f"s_mul_i32 s28, s16, {34*8}", f"s_add_u32 s28, s28, {LDS_STT}", f"v_lshl_add_u32 v{ST+19}, v2, 3, s28"]
    t_ = Asm()
    t_.e("s_lshl_b32 s28, s16, 5")
    conv_addr(t_, 16, "s28")
    for x in ["s_lshl_b32 s28, s16, 9", "s_lshl_b32 s41, s31, 10", "s_add_u32 s41, s41, s28", f"s_add_u32 s41, s41, {WS_MX}",
              f"s_add_u32 s28, s28, {LDS_ML}", "v_lshlrev_b32 v244, 3, v2", "v_add_u32 v245, s28, v244", f"v_add_u32 v246, {LDS_ML + 4}, v244",
              "s_mov_b32 s43, 0xffff0000"]: t_.e(x)
    tc += [x.strip() for x in t_.lines]
    qf.wait("kv0", "qd")
    qf.all(vm=False)
    fy = Fine(a, opt.get("fy")); fy(9)
    a.e("s_barrier")
    fy(10)
    st(2); ff(10)
    if opt.get("qe"):
        for n in range(12): q.l(kread(0, n, 0), f"K{n}")
        for n in range(64):
            q.e(mf[n], need=(f"K{n}",))
            if n < 4: q.l(kread(0, 12 + n, 0), f"K{12+n}")
            elif tc: a.e(tc.pop(0))
    else:
        a.e(f"v_add_u32 v7, {LDS_XS}, v3")
        rd = []
        for n in range(64):
            qb, s = n // 16, n % 16
            rd.append((f"ds_read_b128 a[{64*qb+4*s}:{64*qb+4*s+3}], v7 offset:{16384*((s%8)//2) + 8192*(s//8) + 2048*qb + 1024*(s%2)}", f"Q{n}"))
            if qb == 0: rd.append((kread(0, s, 0), f"Q{n}"))
        for _ in range(14): q.l(*rd.pop(0))
        for n in range(64):
            if n % 2 == 0: q.wait(f"Q{n+1}")
            a.e(mf[n])
            if opt.get("q1") and n % 3 == 0 and n < 48:
                i = n // 3
                if i % 4 == 0:
                    a.e(f"s_add_u32 m0, s19, {32768 + 1024*i}")
                    a.e(f"s_add_u32 s18, s19, {32768 + 1024*i}")
                a.e(f"buffer_load_dwordx4 v3, s[8:11], s18 offen offset:{1024*(i%4)} sc1 lds")
            for _ in range(2 if n < 14 else 1):
                if rd: q.l(*rd.pop(0))
            for _ in range(0 if n < 14 else 2 if rd else 3):
                if tc: a.e(tc.pop(0))
        a.label(L("qk_again"))
        fy(11)
        a.e("s_barrier")
        fy(12)
    assert not tc
    n0_ = len(a.lines)
    a.e("s_nop 7")
    for qb in range(4):
        d = S + 4 * qb
        a.e(f"v_max3_f32 v{E+qb}, v{d}, v{d+1}, v{d+2}")
        a.e(f"v_max3_f32 v{E+qb}, v{E+qb}, v{d+3}, v{MX0+qb}")
    def group_reduce(r, t, op):
        for sw in ("v_permlane16_swap_b32", "v_permlane32_swap_b32"):
            for qb in range(4):
                a.e(f"v_mov_b32 v{t+qb}, v{r+qb}")
            a.e("s_nop 1")
            for qb in range(4):
                a.e(f"{sw} v{r+qb}, v{t+qb}")
            a.e("s_nop 1")
            for qb in range(4):
                a.e(f"{op} v{r+qb}, v{r+qb}, v{t+qb}")
    group_reduce(E, E + 4, "v_max_f32")
    a.e("s_lshl_b32 s29, s16, 8")
    a.e(f"s_add_u32 s29, s29, {LDS_MX}")
    a.e(f"v_lshl_add_u32 v{TMP}, v4, 4, s29")
    a.e(f"ds_write_b128 v{TMP}, v[{E}:{E+3}]")
    a.e(f"v_xor_b32 v{TMP}, 256, v{TMP}")
    if opt.get("q3", 0):
        mx = a.lines[n0_:]; del a.lines[n0_:]
        a.e("s_lshl_b32 s19, s16, 14")
        for n, x in enumerate(mx):
            if n in (0, 13, 27, len(mx) - 1):
                i = 4 * (0, 13, 27, len(mx) - 1).index(n)
                a.e(f"s_add_u32 m0, s19, {98304 + 1024*i}")
                a.e(f"s_add_u32 s18, s19, {98304 + 1024*i}")
                for j in range(4): a.e(f"buffer_load_dwordx4 v3, s[8:11], s18 offen offset:{1024*j} sc1 lds")
            a("    s_nop 2" if n == 0 else x)
    a.e(f"s_waitcnt vmcnt({16 if opt.get('q3', 0) else 0}) lgkmcnt(0)")
    fy(13)
    a.e("s_barrier")
    fy(14)
    a.e(f"ds_read_b128 v[{E+4}:{E+7}], v{TMP}")
    for s in range(8):
        a.e(kread(1, s, 32768))
    a.e("s_waitcnt lgkmcnt(8)")
    for qb in range(4):
        a.e(f"v_max_f32 v{E+qb}, v{E+qb}, v{E+4+qb}")
    for qb in range(4):
        for j in range(4):
            a.e(f"v_sub_f32 v{NEGM+4*qb+j}, 0, v{E+qb}")
    a.e(f"v_mov_b32 v242, v{NEGM}")
    a.e("s_waitcnt lgkmcnt(4)")
    for s in range(8, 16):
        a.e(kread(1, s, 32768))
        if s in (9, 11, 13):
            qb = (s - 7) // 2
            a.e(f"v_mov_b32_dpp v242, v{NEGM+4*qb} quad_perm:[0,1,2,3] row_mask:{1 << qb:#x} bank_mask:0xf")
    for qb in range(4):
        for j in range(4):
            a.e(f"v_add_f32 v{S+4*qb+j}, v{S+4*qb+j}, v{NEGM+4*qb}")
    def softmax_ops(qb, par):
        e = E + 4 * (qb % 2); p = PK + 2 * (qb % 2); d = S + 4 * qb
        ex = [f"v_exp_f32{opt.get('e64', '')} v{e+j}, v{d+j}" for j in range(4)]
        ad = [f"v_add_f32 v{LS+qb}, v{LS+qb}, v{e+j}" for j in range(4)]
        cv = [f"v_cvt_pk_bf16_f32 v{p+j}, v{e+2*j}, v{e+2*j+1}" for j in range(2)]
        wr = f"ds_write_b64 v{VPW}, v[{p}:{p+1}] offset:{par*4096 + qb*(1024 if opt.get('p128') else 512)}"
        return ex, ad, cv, wr
    ex, ad, cv, wr = softmax_ops(0, 0)
    for x in ex + ["s_nop 0"] + cv + ad + [wr]: a.e(x)
    a.e("s_waitcnt lgkmcnt(1)")
    fill = {}
    ops = []
    for qb in range(1, 4):
        ex, ad, cv, wr = softmax_ops(qb, 0)
        ops += ex + [ad[0]] + cv + ad[1:] + [wr]
    for i, x in enumerate(ops):
        fill.setdefault(i * 15 // len(ops), []).append(x)
    ROT = opt.get("rot", 0)
    emit_interval(a, chain(1, 0, f"v[{NEGM}:{NEGM+3}]") + chain(1, 1, f"v[{NEGM+4}:{NEGM+7}]")[:ROT], fill)
    a.e("s_waitcnt vmcnt(0) lgkmcnt(0)")
    a.e("s_sub_u32 s17, s17, 1")
    fy(15)
    a.e("s_barrier")

    XT = ["buffer_load_dword v0, v7, s[32:35], s40 offen", "s_add_u32 s40, s40, 1024"]
    def qk_interval(par, lo=0, hi=None):
        mf = []
        for c in range(5):
            qb = (c + 1) % 4
            mf += chain(par if c < 3 else par ^ 1, qb, f"v[{NEGM+4*qb}:{NEGM+4*qb+3}]")
        mf = mf[ROT:64 + ROT]
        fill = {}
        F_ = lambda g, x: fill.setdefault(g, []).append(x)
        rgaps = opt.get("kg_", [1, 2, 3, 12, 13, 14, 16, 17, 18, 28, 29, 30, 32, 33, 34, 35])
        if par == 1: F_(rgaps[0] - 1, f"v_xor_b32 v{VK}, 0x10000, v{VK}")
        imm = 32768 * (par ^ 1)
        for s in range(16):
            F_(rgaps[s], kread(par ^ 1, s, imm))
        sm = opt.get("sm", [4, 5, 6, 7, 8, 8, 9, 10, 10, 11, 11])
        for c in range(4):
            ex, ad, cv, wr = softmax_ops(c, par)
            for g, x in zip(sm, ex + cv + [wr] + ad): F_(16 * c + g - ROT, x)
        kw = 47 - ROT
        nwr = sum(1 for c in range(4) if rgaps[-1] <= 16 * c + sm[6] - ROT <= kw)
        F_(kw, f"s_waitcnt lgkmcnt({nwr})")
        F_(kw + 1, "s_sub_u32 s17, s17, 1")
        if par == 1:
            F_(kw - 3, "s_cmp_lt_u32 s17, s40")
            fill.setdefault(kw - 2, []).extend([f"s_cbranch_scc1 {L('touch')}", L("touch_ret") + ":"])
        if stamp == 7:
            F_(kw + 2, "s_mov_b32 m0, s17"); F_(kw + 3, "v_writelane_b32 v240, s60, m0"); F_(kw + 3, "s_memtime s[60:61]")
        if opt.get("kt"):
            F_(opt["kt"][1], "buffer_load_dword v0, v3, s[8:11], s41 offen sc1"); F_(46, "s_add_u32 s41, s41, 32768")
        XE = opt.get("xe", 0)
        F_(opt.get("xg", 57) - 1, "s_cmp_eq_u32 s17, 0")
        F_(opt.get("xg", 57), f"s_cbranch_scc1 {L('qk_exit')}")
        F_(opt.get("qw", 63), "s_waitcnt lgkmcnt(0)"); F_(63, "s_barrier")
        for c in range(4):
            last, first = 16 * c - 1 - ROT, 16 * c + sm[0] - ROT
            n = first - last + sum(len([x for x in fill.get(g % 64, []) if not x.endswith(":")]) for g in range(last, first))
            g = last + 2
            while n < 8:
                F_(g % 64, "s_nop 0"); n += 1; g += 1
                assert g <= first
        emit_interval(a, mf, fill, lo, hi)

    if stamp == 7:
        a.e("v_mov_b32 v240, 0")
        a.e("s_memtime s[60:61]")
    a.e("v_and_b32 v11, 3, v2")
    a.e("v_lshlrev_b32 v11, 6, v11")
    a.e("v_mov_b32 v7, 64")
    a.e("v_writelane_b32 v11, 8, 4")
    a.e("v_writelane_b32 v7, 4, 4")
    if opt.get("kt"):
        a.e("s_lshr_b32 s41, s2, 4")
        a.e("s_lshl_b32 s41, s41, 1")
        a.e("s_add_u32 s41, s41, s16")
        a.e("s_lshl_b32 s41, s41, 10")
        a.e(f"s_add_u32 s41, s41, {32768 * opt['kt'][0]}")
    a.e("s_lshr_b32 s40, s31, 1")
    a.e(f"s_and_b32 s40, s40, {opt.get('xs', 7)}")
    a.e("s_lshl_b32 s40, s40, 1")
    a.e(f"s_add_u32 s40, s40, {opt.get('xb', 8)}")
    st(3); ff(11)
    QB = opt.get("qbe", 0)
    if QB:
        a.e(f"s_branch {L('qk_in')}")
        a(".p2align 6")
        a.label(L("qk_loop"))
        XE = opt.get("xe", 0)
        qk_interval(0, QB)
        if not XE: a.e(f"s_cbranch_scc1 {L('qk_done')}")
        a.label(L("qk_in"))
        qk_interval(1)
        if not XE: a.e(f"s_cbranch_scc1 {L('qk_done')}")
        qk_interval(0, 0, QB)
        a.e(f"s_branch {L('qk_loop')}")
        a.label(L("qk_exit"))
    else:
        a(".p2align 6")
        a.label(L("qk_loop"))
        qk_interval(1)
        a.e(f"s_cbranch_scc1 {L('qk_done')}")
        qk_interval(0)
        a.e(f"s_cbranch_scc0 {L('qk_loop')}")
    a.label(L("qk_done"))
    def tl(srd, so):
        a.e("v_lshlrev_b32 v12, 7, v2")
        a.e(f"buffer_load_dword v0, v12, s[{srd}:{srd+3}], {so} offen")
    def b_code():
        a.e("s_getpc_b64 s[28:29]")
        a.label(L("pc0"))
        a.e(f"s_sub_u32 s28, s28, {L('pc0')} - {L('qk_done')}")
        a.e("s_subb_u32 s29, s29, 0")
        a.e("s_lshr_b32 s30, s2, 3")
        a.e("s_lshl_b32 s30, s30, 1")
        a.e("s_add_u32 s30, s30, s16")
        a.e("s_lshl_b32 s30, s30, 10")
        a.e("v_lshl_add_u32 v12, v2, 4, s30")
        a.e(f"v_min_u32 v12, {L('end')} - {L('qk_done')}, v12")
        a.e("global_load_dword v0, v12, s[28:29]")
    def b_w(part):
        def f():
            a.e("s_lshr_b32 s30, s2, 3")
            a.e("s_lshl_b32 s30, s30, 1")
            a.e("s_add_u32 s30, s30, s16")
            a.e("s_lshl_b32 s30, s30, 13")
            a.e(f"s_add_u32 s30, s30, {WS_W3 + 524288*part}")
            tl(12, "s30")
        return f
    foldl = "buffer_load_dword v13, off, s[92:95], 0 offset:12 sc1"
    def b_c3():
        a.e("s_waitcnt vmcnt(0)")
        poll(a, Seq(a), L, "qk_c3", [auxl], auxc, "aux", slp=16)
    def b_c4():
        a.e("s_waitcnt vmcnt(0)")
        poll(a, Seq(a), L, "qk_c4", [foldl], ["v_readfirstlane_b32 s28, v13", "s_cmp_ge_u32 s28, 4"], "aux", slp=16)
    def b_small():
        a.e("s_mov_b32 m0, s42")
        for c in range(8):
            a.e(f"buffer_load_dwordx2 v[{ST+2*c}:{ST+2*c+1}], v{ST+17}, s[12:15], s6 offen offset:{512*c} sc1")
        a.e("buffer_load_dwordx4 v3, s[12:15], s7 offen sc1 lds")
        a.e(f"buffer_load_dword v0, v{ST+18}, s[12:15], 0 offen sc1")
    def b_stat():
        a.e("s_waitcnt vmcnt(0)")
        for ct in range(1, 8):
            a.e(f"v_pk_add_f32 v[{ST}:{ST+1}], v[{ST}:{ST+1}], v[{ST+2*ct}:{ST+2*ct+1}]")
        a.e(f"v_mul_f32 v{ST}, {f2u(1/512)}, v{ST}")
        a.e(f"v_mul_f32 v{ST+1}, {f2u(1/512)}, v{ST+1}")
        a.e(f"v_fma_f32 v{ST+1}, -v{ST}, v{ST}, v{ST+1}")
        a.e(f"v_max_f32 v{ST+1}, 0, v{ST+1}")
        a.e(f"v_add_f32 v{ST+1}, {f2u(1e-5)}, v{ST+1}")
        a.e(f"v_rsq_f32 v{ST+1}, v{ST+1}")
        a.e(f"v_cmp_gt_u32 vcc, {T}, v{ST+16}")
        a.e(f"v_mul_f32 v{ST}, v{ST}, v{ST+1}")
        a.e(f"v_sub_f32 v{ST}, 0, v{ST}")
        a.e(f"v_cndmask_b32 v{ST+2}, 0, v{ST+1}, vcc")
        a.e(f"v_cndmask_b32 v{ST+3}, 0, v{ST}, vcc")
        a.e(f"ds_write_b64 v{ST+19}, v[{ST+2}:{ST+3}]")
    def b_x(r0):
        def f():
            a.e("s_lshl_b32 s30, s22, 1")
            a.e("s_add_u32 s30, s30, s16")
            a.e("s_lshl_b32 s30, s30, 14")
            a.e("s_add_u32 s30, s30, s27")
            a.e(f"s_add_u32 s30, s30, {r0*1024}")
            tl(32, "s30")
        return f
    tb_fns = B = dict(code=b_code, l3=lambda: a.e(auxl), c3=b_c3, small=b_small, stat=b_stat, x0=b_x(0), x8=b_x(8), l4=lambda: a.e(foldl), c4=b_c4, w1=b_w(1), w0=b_w(0))
    st(4); fs(0); ff(13); fp(0)
    if stamp == 7:
        a.e("s_lshl_b32 s26, s2, 1")
        a.e("s_add_u32 s26, s26, s16")
        a.e("s_lshl_b32 s26, s26, 8")
        a.e(f"s_add_u32 s26, s26, {0x3F00000}")
        a.e("v_lshlrev_b32 v241, 2, v2")
        a.e("buffer_store_dword v240, v241, s[12:15], s26 offen")
    q = Seq(a)
    cv = Conv(a, q, 16)
    a.e(f"v_permlane16_swap_b32 v{LS}, v{LS+1}")
    a.e(f"v_permlane16_swap_b32 v{LS+2}, v{LS+3}")
    cv.taps()
    a.e(f"v_add_f32 v{LS}, v{LS}, v{LS+1}")
    a.e(f"v_add_f32 v{LS+2}, v{LS+2}, v{LS+3}")
    tb_fns["stat"]()
    a.e(f"v_permlane32_swap_b32 v{LS}, v{LS+2}")
    a.e("s_nop 0")
    a.e(f"v_add_f32 v243, v{LS}, v{LS+2}")
    a.e("v_or_b32 v243, 0x80000000, v243")
    q.l("ds_write_b64 v245, v[242:243]")
    q.all(vm=False)
    fs(1)
    a.e("s_barrier")
    fs(2)
    q.l(f"ds_read2st64_b32 v[{E}:{E+1}], v246 offset0:0 offset1:2", "lsum")
    cv.prep()
    q.wait("lsum")
    for x in guard(E): a.e(x)
    release(a, q, L, "rm", None, "buffer_store_dwordx2 v[242:243], v244, s[12:15], s41 offen")
    fs(3)
    PF = opt.get("pf", 10); n = 0
    for j in range(20):
        if j in (0, 2, 4, 6, 8, 11, 14, 17): fp(1 + (0, 2, 4, 6, 8, 11, 14, 17).index(j))
        ex = []
        if j >= opt.get("qa", 6):
            for _ in range(3):
                if n < 4 * PF:
                    ex.append(lambda n=n: aload(a, q, n // 4, n % 4)); n += 1
        cv.row(j, ex)
    while n < 4 * PF:
        aload(a, q, n // 4, n % 4); n += 1
    fs(4)
    a.e(f"s_branch {L('tail')}")
    a.label(L("touch"))
    THR = 2 * int(opt.get("blocks", "2")[0]) + 2
    a.e(f"s_cmp_eq_u32 s40, {THR}")
    a.e(f"s_cbranch_scc1 {L('touchb')}")
    a.e(f"s_mov_b32 s40, {THR}")
    B["x0"](); B["x8"]()
    a.e(f"s_branch {L('touch_ret')}")
    a.label(L("touchb"))
    a.e("s_lshr_b32 s26, s17, 1")
    spec = opt.get("blocks", "2:l3 1:c3,small")
    blocks = {int(x.split(":")[0]): [B[y] for y in x.split(":")[1].split(",")] for x in spec.split()}
    for kx, fns in blocks.items():
        a.e(f"s_cmp_lg_u32 s26, {kx}")
        a.e(f"s_cbranch_scc1 {L('touch%d' % kx)}")
        for f in fns: f()
        a.e(f"s_branch {L('touch_ret')}")
        a.label(L("touch%d" % kx))
    a.e(f"s_branch {L('touch_ret')}")

    VB = [16, 80]; PR = [144, 160]
    VV = 8; VPR = 9; PH = opt.get('ph', 2)
    def oreg(db, qb):
        return (f"a[{4*qb}:{4*qb+3}]", None) if db == 0 else (f"v[{16*db+4*qb}:{16*db+4*qb+3}]", 16 * db + 4 * qb)
    def vread(par, db, kb):
        r = VB[par] + 4 * db + 2 * kb
        return f"ds_read_b64_tr_b16 a[{r}:{r+1}], v{VV if db < 8 else 11} offset:{32768*par + 16384*kb + 512*(db%8)}"
    def pvo(pair): return a2s(pair) if opt.get("o1", 1) else [(e, t) for e in range(2) for t in range(4)]
    def pvm(par, pair, first=False):
        out = []
        for e, qb in pvo(pair):
            db = 2 * pair + e
            d = oreg(db, qb)[0]; v = VB[par] + 4 * db; p = PR[par] + 4 * qb
            out.append(f"{M16} {d}, a[{v}:{v+3}], a[{p}:{p+3}], {'0' if first else d}")
        return out
    def pv_setup():
        a.e("s_sub_u32 s19, s16, 2")
        for x in tail_consts(): a.e(x)
        a.e("v_lshrrev_b32 v4, 5, v2")
        a.e("v_lshlrev_b32 v4, 8, v4")
        a.e("v_and_b32 v5, 2, v2")
        a.e("v_lshl_add_u32 v4, v5, 6, v4")
        a.e("v_and_b32 v5, 28, v2")
        a.e("v_lshl_add_u32 v4, v5, 2, v4")
        a.e("v_and_b32 v5, 1, v2")
        a.e("v_lshl_add_u32 v4, v5, 3, v4")
        a.e("s_lshl_b32 s29, s19, 13")
        a.e("s_lshl_b32 s28, s22, 12")
        a.e("s_add_u32 s28, s28, s29")
        a.e("v_add_u32 v11, s28, v4")
        a.e(f"v_xor_b32 v{VV}, 0x1000, v11")
        a.e("s_lshl_b32 s29, s19, 12")
        a.e("s_add_u32 s29, s29, s48")
        a.e("v_add_u32 v10, s29, v3")
        a.e("s_lshl_b32 s40, s31, 2")
        a.e("s_add_u32 s40, s40, s19")
        a.e("s_lshl_b32 s40, s40, 14")
        a.e(f"s_add_u32 s40, s40, {WS_GU + 32768}")
        a.e("s_lshl_b32 s28, s31, 16")
        a.e(f"s_add_u32 s28, s28, {WS_GU}")
        a.e("s_sub_u32 s28, s28, s10")
        a.e("s_add_u32 s98, s4, s28")
        a.e("s_addc_u32 s99, s5, 0")
        a.e("s_and_b32 s99, s99, 0xffff")
        a.e("s_add_u32 s100, s10, 65536")
        if opt.get("xr", 1) == 2:
            a.e("s_lshr_b32 s28, s2, 3")
            a.e("s_lshl_b32 s28, s28, 15")
            a.e(f"s_add_u32 s28, s28, {WS_W3}")
            a.e("s_sub_u32 s28, s28, s100")
            a.e("s_add_u32 s96, s4, s28")
            a.e("s_addc_u32 s97, s5, 0")
            a.e("s_and_b32 s97, s97, 0xffff")
            a.e("s_add_u32 s3, s100, 32768")
        else:
            a.e("s_lshl_b32 s28, s22, 15")
            a.e("s_add_u32 s28, s28, s27")
            a.e("s_sub_u32 s3, 4096000, s28")
            a.e("s_add_u32 s3, s3, s100" if opt.get("xr", 1) else "s_mov_b32 s3, 0")
            a.e("s_add_u32 s96, s32, s28")
            a.e("s_addc_u32 s97, s33, 0")
            a.e("s_sub_u32 s96, s96, s100")
            a.e("s_subb_u32 s97, s97, 0")
        a.e(f"s_mov_b32 s29, {LDS_P}")
        a.e(f"v_lshl_add_u32 v{VPR}, v2, 3, s29")
        a.e(f"v_add_u32 v1, {LDS_ML + 4 - LDS_P}, v{VPR}")
        if opt.get("p128"): a.e(f"v_add_u32 v{VPR}, s29, v3")
        for g in range(1, 4): a.e(f"v_add_u32 v{4+g}, {4096*g}, v3")
    def pv_zero():
        pass
    def emit_pv_again():
        a.label(L("pv"))
        pv_setup()
        a.e("s_lshl_b32 s18, s19, 14")
        a.e("s_add_u32 s18, s18, 65536")
        dma_tile()
        pv_zero()
        a.e("s_barrier")
        a.e("s_waitcnt vmcnt(16)")
        a.e("s_barrier")
        if not opt.get("q3", 0): dma_tile()
        for db in range(16):
            for kb in range(2):
                a.e(vread(0, db, kb))
            if db % 4 == 3: a.e("s_waitcnt lgkmcnt(4)")
        a.e("s_waitcnt vmcnt(0) lgkmcnt(0)")
        a.e(f"s_branch {L('pv_go')}")
    def taps():
        a.e("v_lshrrev_b32 v12, 5, v2")
        a.e("v_lshl_add_u32 v12, v12, 9, v3")
        a.e("s_lshl_b32 s28, s22, 9")
        out = []
        for i in range(3):
            a.e(f"s_mov_b32 m0, {LDS_TAP + 1024*i}")
            a.e(f"s_add_u32 s29, s28, {2048*i}")
            qf.v("buffer_load_dwordx4 v12, s[44:47], s29 offen lds")
        for x in NEAR: a.e(x)
    def setup1():
        pv_setup()
        a.e(f"s_mov_b32 s101, {f2u(-BIG)}")
    pv_part(setup1, [vread(0, db, kb) for db in range(16) for kb in range(2)], taps)
    a.label(L("pv_go"))
    a.e("s_lshl_b32 s18, s19, 14")
    a.e("s_add_u32 s18, s18, 131072")
    a.e("s_sub_u32 s17, s25, 1")
    a.e("s_barrier")

    pvq = []
    MR = 12; MO = 4; AL = 88; TT = 96; RX = 16
    mll = [f"buffer_load_dwordx2 v[{MR+2*w}:{MR+2*w+1}], v9, s[12:15], s42 offen offset:{512*w} {opt.get('pm', 'sc1')}" for w in range(2)]
    ol = f"buffer_load_dword v11, off, s[12:15], s57 offset:24 {opt.get('pm', 'sc1')}"
    def pv_interval(par, last=False, lo=0, hi=None, first=False):
        mf = pvm(par, 7)
        if first:
            z = [f"v_pk_mul_f32 v[{i}:{i+1}], 0, 0" for i in range(256 - 16 * PH, 256, 2)]
            mf = [z[2 * i] + "\n    " + z[2 * i + 1] for i in range(4 * PH)]
        for pr in range(8 if last else 7):
            mf += pvm(par ^ 1, pr, first)
        fill = {}
        for qb in range(4):
            p = PR[par ^ 1] + 4 * qb
            fill.setdefault(opt.get('pg', [0, 0, 1, 1])[qb], []).append(f"ds_read_b128 a[{p}:{p+3}], v{VPR} offset:{4096*(par^1) + 1024*qb}" if opt.get("p128") else
                f"ds_read2st64_b64 a[{p}:{p+3}], v{VPR} offset0:{8*(par^1)+qb} offset1:{8*(par^1)+4+qb}")
        rg = opt.get("rg", [8 + 3 * (i // 2) + (i % 2) for i in range(32)])
        fill.setdefault(4 * PH - 1, []).append(f"s_waitcnt lgkmcnt({0 if last else sum(1 for g in rg if g < 4 * PH - 1)})")
        if last:
            fs(0); fp(0)
            q = Seq(a)
            ops = []
            for sp in range(4):
                for nq, qb in enumerate([t for e, t in pvo(sp) if e]):
                    o = []
                    if sp == 0:
                        o += [f"v_accvgpr_read_b32 v{4+j}, a{4*qb+j}" for j in range(4)]
                        lo = 4
                    else:
                        lo = oreg(2 * sp, qb)[1]
                    hi = oreg(2 * sp + 1, qb)[1]
                    o += [f"v_cvt_pk_bf16_f32 v{hi+3}, v{hi+2}, v{hi+3}", f"v_cvt_pk_bf16_f32 v{hi+2}, v{hi}, v{hi+1}",
                          f"v_cvt_pk_bf16_f32 v{hi}, v{lo}, v{lo+1}", f"v_cvt_pk_bf16_f32 v{hi+1}, v{lo+2}, v{lo+3}"]
                    if nq == 0: o.append(f"s_add_u32 s41, s40, {4096*sp}")
                    o.append(f"buffer_store_dwordx4 v[{hi}:{hi+3}], v3, s[44:47], s41 offen offset:{1024*qb} {opt.get('sm_', 'nt')}")
                    ops += [(8 + 8 * sp + pvo(sp).index((1, qb)) + 6, x) for x in o]
            late = [lambda x=x: a.e(x) for x in ["v_lshlrev_b32 v9, 3, v2", "s_xor_b32 s26, s31, 1", "s_lshl_b32 s26, s26, 10", f"s_add_u32 s42, s26, {WS_MX}"]]
            late += [lambda w=w: q.v(mll[w], "ML") for w in range(2)]
            late += [lambda: a.e("v_subrev_u32 v8, 4, v1"),
                     lambda: q.l(f"ds_read2st64_b64 v[{MO}:{MO+3}], v8 offset0:0 offset1:1", "MLo")]
            late += [lambda x=x: a.e(x) for x in ["v_and_b32 v1, 15, v2", "v_lshlrev_b32 v1, 2, v1", "s_xor_b32 s40, s40, 0x10000", "s_mov_b32 s43, 0xffff0000", "v_mov_b32 v0, 1"]]
            na = 0
            for i, m in enumerate(mf):
                a.e(m)
                for f in fill.get(i, []): a.e(f)
                if i == 2: q.l("ds_read2st64_b32 v[4:5], v1 offset0:0 offset1:2", "lsum")
                if i == 9:
                    fs(1); fs(2)
                    q.wait("lsum")
                    for x in guard(4): a.e(x)
                if i in opt.get("ea", ()):
                    aload(a, q, na // 4, na % 4); na += 1
                if i > 12:
                    n = 0
                    while ops and ops[0][0] <= i and n < opt.get("lp", 3):
                        if opt.get("ls", 1) and n and ops[0][1].startswith("buffer"): break
                        x = ops.pop(0)[1]; n += 1
                        if x.startswith("buffer"): q.v(x, "Ost")
                        else: a.e(x)
                    if n and not ops: fp(1)
                    if n == 0:
                        if not ops and late: late.pop(0)()
                        else: a.e("s_nop 0")
            assert not ops
            while late: late.pop(0)()
            fs(3)
            pvq.append((q, na))
            return
        F_ = lambda g, x: fill.setdefault(g, []).append(x)
        G = opt["pvg"]
        if par == 0:
            F_(G[0], f"v_xor_b32 v{VV}, 0x10000, v{VV}"); F_(G[0], "v_xor_b32 v11, 0x10000, v11")
        for i in range(32): F_(rg[i], vread(par, i // 2, i % 2))
        dg = opt["dg"]
        for g in range(4):
            F_(opt["mg"][g], "s_and_b32 m0, s18, 0x1ffff" if g == 0 else "s_add_u32 m0, m0, 4096")
            for j in range(4):
                F_(dg[4 * g + j], f"buffer_load_dwordx4 v{3 if g == 0 else 4 + g}, s[8:11], s18 offen offset:{1024*j} {opt.get('kvmod', 'sc1')} lds")
        F_(opt["mg"][4], "s_add_u32 s18, s18, 32768")
        sw = ["s_cmp_eq_u32 s17, 3", "s_cselect_b64 s[8:9], s[98:99], s[8:9]", "s_cselect_b32 s10, s100, s10",
              "s_cmp_eq_u32 s17, 1", "s_cselect_b64 s[8:9], s[96:97], s[8:9]", "s_cselect_b32 s10, s3, s10"]
        for n in (0, 3):
            gs = G[2 + n:5 + n]
            assert (gs[2] < min(dg[0], G[1])) or (gs[0] > max(dg[-1], G[1]))
            assert not any(gs[0] < m <= gs[2] for m in opt["mg"] + [G[1]])
            for g, x in zip(gs, sw[n:n + 3]): F_(g, x)
        F_(G[1], "s_sub_u32 s17, s17, 1")
        F_(61, "s_cmp_eq_u32 s17, 0")
        if not first: F_(62, f"s_cbranch_scc1 {L('pv_exit%d' % par)}")
        fill.setdefault(63, []).extend([f"s_waitcnt vmcnt({nP}) lgkmcnt(0)", "s_barrier"])
        emit_interval(a, mf, fill, lo, hi)

    st(3); ff(11)
    PB = opt.get("pbe", 0)
    if PB:
        pv_interval(1, first=True)
        a.e(f"s_branch {L('pv_in')}")
        a(".p2align 6")
        a.label(L("pv_loop"))
        pv_interval(0, False, PB)
        if not opt.get("xe"): a.e(f"s_cbranch_scc1 {L('pv_last1')}")
        pv_interval(1)
        if not opt.get("xe"): a.e(f"s_cbranch_scc1 {L('pv_last0')}")
        a.label(L("pv_in"))
        pv_interval(0, False, 0, PB)
        a.e(f"s_branch {L('pv_loop')}")
    else:
        a(".p2align 6")
        a.label(L("pv_loop"))
        pv_interval(1)
        a.e(f"s_cbranch_scc1 {L('pv_last0')}")
        pv_interval(0)
        a.e(f"s_cbranch_scc0 {L('pv_loop')}")
    if opt.get("xe"):
        a.label(L("pv_exit0"))
        pv_interval(0, False, 63)
    a.label(L("pv_last1"))
    pv_interval(1, True)
    a.e(f"s_branch {L('pv_stage')}")
    if opt.get("xe"):
        a.label(L("pv_exit1"))
        pv_interval(1, False, 63)
    a.label(L("pv_last0"))
    pv_interval(0, True)
    a.label(L("pv_stage"))
    st(4); ff(13)
    q, n = pvq[0]
    assert pvq[1][0].vm == q.vm and pvq[1][0].lg == q.lg
    fp(2)
    release(a, q, L, "ro", "Ost", "buffer_store_dword v0, off, s[12:15], s56 offset:24",
            [x for sp in range(4) for x in [f"s_xor_b32 s41, s40, {0x10000 + 4096*sp}"] +
             [f"buffer_store_dwordx4 {oreg(2*sp+1, qb)[0]}, v3, s[12:15], s41 offen offset:{1024*qb} sc1" for qb in range(4)]])
    fp(3)
    poll(a, q, L, "ml", mll, [f"v_and_b32 v8, v{MR+1}, v{MR+3}", "v_cmp_gt_i32 vcc, 0, v8", "s_nop 1", "s_cmp_eq_u64 vcc, -1"], "ML", slp=1)
    q.wait("MLo")
    for x in [f"v_add_f32 v{MR+1}, v{MR+1}, v{MR+3}", f"v_add_f32 v{MO+1}, v{MO+1}, v{MO+3}",
              f"v_min_f32 v8, v{MR}, v{MO}", f"v_sub_f32 v{MR}, v8, v{MR}", f"v_sub_f32 v{MO}, v8, v{MO}",
              f"v_exp_f32 v{MR}, v{MR}", f"v_exp_f32 v{MO}, v{MO}", f"v_mul_f32 v{MR+1}, v{MR+1}, v{MR}",
              f"v_fmac_f32 v{MR+1}, v{MO+1}, v{MO}", f"v_mul_f32 v{MR+1}, {f2u(XSC)}, v{MR+1}", f"v_rcp_f32 v{MR+1}, v{MR+1}", "s_nop 0",
              f"v_mul_f32 v{MO}, v{MO}, -v{MR+1}", f"v_mul_f32 v{MR}, v{MR}, -v{MR+1}"]: a.e(x)
    for tb in range(4):
        q.l(f"ds_bpermute_b32 v{AL+2*tb}, v1, v{MO} offset:{64*tb}", "AL")
        q.l(f"ds_bpermute_b32 v{AL+2*tb+1}, v1, v{MR} offset:{64*tb}", "AL")
    q.wait("AL")
    for db in range(8, 16):
        for qb in range(4):
            r = oreg(db, qb)[1]
            for j in (0, 2):
                a.e(f"v_pk_mul_f32 v[{r+j}:{r+j+1}], v[{r+j}:{r+j+1}], v[{AL+2*qb}:{AL+2*qb+1}] op_sel_hi:[1,0]")
        if db == opt.get("od", 12): q.v(ol, "of")
        for _ in range(opt.get("an", 2)):
            if n < 4 * PF and db < opt.get("od", 12):
                aload(a, q, n // 4, n % 4); n += 1
    while n < opt.get("pa", 0):
        aload(a, q, n // 4, n % 4); n += 1
    poll(a, q, L, "o", [ol], ["v_readfirstlane_b32 s26, v11", "s_cmp_eq_u32 s26, 1"], "of", slp=1)
    fp(4)
    for f in range(16):
        if f % 4 == 0: a.e(f"s_add_u32 s41, s40, {1024*f}")
        q.v(f"buffer_load_dwordx4 v[{RX+4*f}:{RX+4*f+3}], v3, s[12:15], s41 offen offset:{1024*(f%4)} {opt.get('lm', 'sc1')}", f"O{f}")
    fp(5)
    fp(6)
    for f in range(16):
        sp, qb = f // 4, f % 4
        q.wait(f"O{f}")
        if f in (0, 8): fp(7 + f // 8)
        for j in range(4):
            a.e(f"v_lshlrev_b32 v{TT+2*j}, 16, v{RX+4*f+j}")
            a.e(f"v_and_b32 v{TT+2*j+1}, s43, v{RX+4*f+j}")
        for j in range(4):
            r = oreg(8 + 2 * sp + j // 2, qb)[1] + 2 * (j % 2)
            a.e(f"v_pk_fma_f32 v[{TT+2*j}:{TT+2*j+1}], v[{TT+2*j}:{TT+2*j+1}], v[{AL+2*qb}:{AL+2*qb+1}], v[{r}:{r+1}] op_sel:[0,1,0] op_sel_hi:[1,1,1]")
        for j in range(4):
            a.e(f"v_cvt_pk_bf16_f32 v{RX+4*f+j}, v{TT+2*j}, v{TT+2*j+1}")
        q.l(f"ds_write_b128 v10, v[{RX+4*f}:{RX+4*f+3}] offset:{8192*qb + 1024*sp}")
        for _ in range(2):
            if n < 4 * PF:
                aload(a, q, n // 4, n % 4); n += 1
    while n < 4 * PF:
        aload(a, q, n // 4, n % 4); n += 1
    fs(4)
    a.label(L("tail"))
    ff(14); fp(9)
    gen_tail(a, L, st, fs, opt)
    a.label(L("fin"))
    if stamp == 1:
        a.e("s_waitcnt vmcnt(0)")
        st(7)
        emit_stamps(a, 8, nw=8, off=WS_STAMP + 0x200000)
    if stamp == 5:
        a.e("s_waitcnt vmcnt(0)")
        st(7)
        a.e("s_cmp_lg_u32 s16, 0")
        a.e(f"s_cbranch_scc1 {L('end')}")
        a.e("s_mov_b64 exec, 1")
        a.e("s_cmp_lg_u32 s2, 0")
        a.e(f"s_cbranch_scc1 {L('dbg2')}")
        for k in range(1, 8):
            a.e(f"s_sub_u32 s26, s{62+4*k}, s62")
            a.e("v_mov_b32 v8, s26")
            a.e(f"buffer_store_dword v8, off, s[92:95], 0 offset:{8+4*k}")
        a.e("s_sub_u32 s26, s76, s72")
        a.e("v_mov_b32 v8, s26")
        a.e("buffer_store_dword v8, off, s[92:95], 0 offset:40")
        a.label(L("dbg2"))
        a.e("s_cmp_lg_u32 s2, 255")
        a.e(f"s_cbranch_scc1 {L('end')}")
        for k in range(1, 6):
            a.e(f"s_sub_u32 s26, s{62+4*k}, s62")
            a.e("v_mov_b32 v8, s26")
            a.e(f"buffer_store_dword v8, off, s[92:95], 0 offset:{40+4*k}")
    if stamp in (2, 3, 4, 6):
        for k in range(10, 16): fp(k)
        a.e("s_waitcnt vmcnt(0)")
        fs(15)
        ff(15)
        emit_fine(a, off=WS_STAMP + 0x300000)
    a.label(L("end"))
    a.e("s_endpgm")
    a.label(L("redo"))
    a.e("s_waitcnt vmcnt(0) lgkmcnt(0)")
    a.e("s_mov_b32 s101, 0")
    a.e(f"s_mul_i32 s28, s22, {32768 * N0}")
    a.e("s_add_u32 s28, s28, s24")
    a.e("s_lshl_b32 s26, s25, 15")
    srd_off(a, 8, 4, "s28", "s26")
    a.e("s_lshl_b32 s19, s16, 13")
    qk_setup()
    a.e("s_mov_b32 s17, s25")
    def redo_dma(slot):
        for i in range(8):
            if i % 4 == 0:
                a.e(f"s_add_u32 m0, s19, {32768*slot + 1024*i}")
                a.e(f"s_add_u32 s29, s18, {1024*i}")
            a.e(f"buffer_load_dwordx4 v3, s[8:11], s29 offen offset:{1024*(i%4)} sc1 lds")
    a.label(L("redo_loop"))
    a.e("s_sub_u32 s17, s17, 1")
    a.e("s_lshl_b32 s18, s17, 15")
    a.e("s_add_u32 s18, s18, s19")
    a.e("s_barrier")
    redo_dma(0)
    a.e("s_waitcnt vmcnt(0)")
    a.e("s_barrier")
    a.e("s_cmp_ge_u32 s16, 2")
    a.e(f"s_cbranch_scc1 {L('redo_next')}")
    for n in range(16):
        a.e(kread(0, n, 0))
        if n == 11: a.e("s_waitcnt lgkmcnt(4)")
    a.e("s_waitcnt lgkmcnt(0)")
    for qb in range(4):
        for m in chain(0, qb, "0"): a.e(m)
    a.e("s_nop 7")
    for qb in range(4):
        d = S + 4 * qb
        a.e(f"v_max3_f32 v{MX0+qb}, v{MX0+qb}, v{d}, v{d+1}")
        a.e(f"v_max3_f32 v{MX0+qb}, v{MX0+qb}, v{d+2}, v{d+3}")
    a.label(L("redo_next"))
    a.e("s_cmp_lg_u32 s17, 0")
    a.e(f"s_cbranch_scc1 {L('redo_loop')}")
    a.e("s_add_u32 s18, s19, 32768")
    redo_dma(1)
    a.e("s_mov_b32 s17, s25")
    a.e("s_cmp_ge_u32 s16, 2")
    a.e(f"s_cbranch_scc1 {L('pv')}")
    a.e(f"s_branch {L('qk_again')}")
    emit_pv_again()
    for f in OOL: f()
    emit_aux()
    kernel_desc(a, name, 512, 256)
    return f"; @launch grid=(256,1,1) block=(256,1,1) lds={LDS_ATT}"
```

```python
import sys
sys.path.insert(0, "gen")
from asmlib import *
from layout import *
from conv import Conv
from aux import gen_aux
from front import *

RS = 1056
LDS_P = 131072
LDS_MX = 139264
LDS_FG = LDS_MX + 512
LDS_ML = LDS_MX + 1024
LDS_HALO = LDS_ML + 1024
LDS_TAP = LDS_HALO + 2048
LDS_STT = LDS_TAP + 3072
LDS_ATT = 163840
ES = 272
NA = 16
ARING = [16 * ((i + 11) % 16) for i in range(16)]
BIG = 2.0 ** 100
FK = [0, 8, 16, 20, 24, 28, 30]

DROP = []
ALIGN = [0]
def emit_interval(a, mfmas, fill, lo=0, hi=None):
    for i, m in enumerate(mfmas):
        if i < lo or (hi is not None and i >= hi): continue
        if m is not None:
            if ALIGN[0]: a(".p2alignl 3, 0xbf800000")
            a.e(m)
        for f in fill.get(i, []):
            if any(f.startswith(d) for d in DROP): continue
            a.e(f)

def conv_addr(a, NR, row0):
    a.e("v_lshrrev_b32 v12, 5, v2")
    a.e(f"v_mul_u32_u24 v12, {NR}, v12")
    a.e(f"v_add_u32 v12, {row0}, v12")
    a.e("v_and_b32 v13, 31, v2")
    a.e("v_lshlrev_b32 v13, 4, v13")
    a.e("v_lshl_add_u32 v14, v12, 9, v13")
    a.e("s_and_b32 s26, s25, 3")
    a.e("s_lshl_b32 s26, s26, 15")
    a.e("v_add_u32 v232, s26, v14")
    a.e("v_add_u32 v235, s49, v14")
    a.e("v_and_b32 v14, 4, v12")
    a.e("v_lshlrev_b32 v14, 5, v14")
    a.e("v_xor_b32 v236, v235, v14")
    a.e(f"v_add_u32 v238, {LDS_TAP}, v13")
    a.e(f"v_add_u32 v13, {LDS_HALO}, v13")
    a.e("v_cmp_eq_u32 vcc, 0, v12")
    a.e("v_subrev_u32 v233, 1024, v232")
    a.e(f"v_add_u32 v234, {512*NR}, v232")
    a.e("v_cndmask_b32 v233, v233, v13, vcc")
    a.e(f"v_cmp_eq_u32 vcc, {64-NR}, v12")
    a.e("v_add_u32 v13, 1024, v13")
    a.e("v_lshlrev_b32 v237, 3, v12")
    a.e("v_cndmask_b32 v234, v234, v13, vcc")
    a.e(f"v_add_u32 v237, {LDS_STT}, v237")

def gen_tail(a, L, st, fs, opt):
    q = Seq(a)
    PF = opt.get("pf", 10)
    q.vm = [f"A{k}" for k in range(PF) for _ in range(4)]
    BF = [32, 48]; YR = 64; XR = 96
    NS = 32
    acc = lambda k: 128 if k < 16 else 192
    def bread(k, tb):
        s = k % 8
        r = BF[k % 2] + 4 * tb
        if k % 16 < 8:
            return f"ds_read_b128 v[{r}:{r+3}], v6 offset:{8192*tb + 1024*s}"
        return f"ds_read_b128 v[{r}:{r+3}], v{28 + s % 4} offset:{8192*tb + 256*(s//4)}"
    a.e("v_add_u32 v6, s48, v3")
    a.e("s_waitcnt lgkmcnt(0)")
    fs(5)
    a.e("s_barrier")
    for tb in range(4): q.l(bread(0, tb), "B0")
    a.e("v_and_b32 v4, 15, v2")
    a.e("v_lshrrev_b32 v5, 4, v2")
    a.e("v_mov_b32 v12, 1")
    a.e("v_mov_b32 v15, 0x3f80")
    SEL = 16
    side = {}
    def at(k, g, fn): side.setdefault((k + g // 16, g % 16), []).append(fn)
    def spread(k, g, ops, per=2, skip=lambda g: False):
        n = 16 * k + g
        ops = list(ops)
        while ops:
            if not skip(n % 16):
                for _ in range(per):
                    if ops:
                        o = ops.pop(0)
                        at(n // 16, n % 16, o if callable(o) else (lambda o=o: a.e(o)))
            n += 1
    lo8 = lambda g: g < 8
    spread(0, 8, ["v_and_b32 v13, 7, v4", "v_lshlrev_b32 v13, 1, v13", "v_xor_b32 v13, v13, v5", "v_lshlrev_b32 v13, 4, v13",
                  "v_lshl_add_u32 v13, v4, 9, v13", "v_add_u32 v28, s49, v13", "v_xor_b32 v29, 64, v28", "v_xor_b32 v30, 128, v28",
                  "v_xor_b32 v31, 192, v28",
                  "s_and_b32 s26, s16, 2", "s_add_u32 s26, s26, s25", "s_and_b32 s26, s26, 3", "s_lshl_b32 s26, s26, 1",
                  "s_and_b32 s28, s16, 1", "s_add_u32 s26, s26, s28", "s_lshl_b32 s42, s26, 14",
                  "v_lshrrev_b32 v13, 1, v4", "v_xor_b32 v13, v13, v5", "v_lshlrev_b32 v13, 4, v13", "v_lshl_add_u32 v13, v4, 7, v13",
                  "v_add_u32 v8, s42, v13", "v_xor_b32 v9, 64, v8", "v_add_u32 v7, s42, v3",
                  "v_lshrrev_b32 v13, 3, v2", "v_lshrrev_b32 v14, 4, v2", "v_xor_b32 v14, v14, v2", "v_and_b32 v14, 7, v14",
                  "v_lshlrev_b32 v14, 4, v14", "v_lshl_add_u32 v10, v13, 10, v14", "v_xor_b32 v11, 64, v10",
                  "v_lshrrev_b32 v13, 2, v4", "v_cmp_eq_u32 vcc, v13, v5", "v_and_b32 v13, 1, v4", "v_lshlrev_b32 v13, 4, v13",
                  "v_lshlrev_b32 v13, v13, v15", "v_cndmask_b32 v13, 0, v13, vcc", "v_and_b32 v14, 2, v4", "v_cmp_eq_u32 vcc, 0, v14",
                  f"v_mov_b32 v{SEL+2}, 0", f"v_mov_b32 v{SEL+3}, 0", f"v_cndmask_b32 v{SEL}, 0, v13, vcc", f"v_sub_u32 v{SEL+1}, v13, v{SEL}",
                  f"v_mov_b32 v{SEL+4}, v{SEL}", f"v_mov_b32 v{SEL+5}, v{SEL+1}"], skip=lo8)
    KX = opt.get("kx", 26)
    for i in range(8):
        def xl(i=i):
            a.e(f"s_add_u32 m0, s42, {1024*i}")
            a.e(f"s_add_u32 s26, s58, {8192*i}")
            q.v(f"buffer_load_dwordx4 v{10 + i%2}, s[32:35], s26 offen lds", "X")
        at(KX, 1 + opt.get("dx", 4) * i, xl)
        at(opt.get("ku", 30), 8 + i, lambda i=i: q.l(f"ds_read_b128 v[{XR+4*i}:{XR+4*i+3}], v{8 + i%2} offset:{2048*(i//2)}", "XF", need=("X",)))
    YS = opt.get("ys", 2)
    for i in range(8):
        tb, h = i // 2, i % 2
        k, g0 = (16 + i // 2, 8 + 4 * (i % 2)) if YS == 2 else (16, 8 + 3 * i)
        src = [128 + 16 * (2 * h + ee) + 4 * tb + j for ee in range(2) for j in range(4)]
        for j in range(4):
            at(k, g0 + j // 2, lambda j=j, i=i, src=src: a.e(f"v_cvt_pk_bf16_f32 v{YR+4*i+j}, v{src[2*j]}, v{src[2*j+1]}"))
        at(k, g0 + 2, lambda i=i: q.v(f"buffer_store_dwordx4 v[{YR+4*i}:{YR+4*i+3}], v3, s[44:47], s{54 + i//4} offen offset:{1024*(i%4)} {opt.get('sm_', 'nt')}", "Yst"))
    KF, KL, KC = opt.get("k", (24, 27, 29))
    at(KF, 9, lambda: release(a, q, L, "ry", "Yst", "buffer_store_dword v12, off, s[12:15], s56",
        [f"buffer_store_dwordx4 v[{YR+4*i}:{YR+4*i+3}], v3, s[12:15], s{54 + i//4} offen offset:{1024*(i%4)} sc1" for i in range(8)]))
    yl = f"buffer_load_dword v14, off, s[12:15], s57 {opt.get('pm', 'sc1')}"
    at(KL, 9, lambda: q.v(yl, "yf"))
    def gety():
        poll(a, q, L, "y", [yl], ["v_readfirstlane_b32 s26, v14", "s_cmp_eq_u32 s26, 1"], "yf", slp=1)
        a.e("s_xor_b32 s54, s54, 0x10000")
        a.e("s_xor_b32 s55, s55, 0x10000")
    at(KC, 7, gety)
    for i in range(8):
        at(KC, 8 + i, lambda i=i: q.v(f"buffer_load_dwordx4 v[{YR+4*i}:{YR+4*i+3}], v3, s[12:15], s{54 + i//4} offen offset:{1024*(i%4)} {opt.get('lm', 'sc1')}", f"Y{i}"))
    nl = 4 * PF
    AS = opt.get("as", "4" * 16 + "0000" + "4" * 12)
    LG = opt.get("lg", (1, 5, 9, 13, 3))
    for k in range(NS):
        assert nl >= 4 * min(NS, k + 3)
        if k == 0: st(5)
        if k in FK: fs(6 + FK.index(k))
        q.wait(f"A{k}", f"B{k}")
        g = 0
        for nb_ in range(4):
            for tb_ in range(4):
                nb, tb = ORD16[g] if opt.get("o2", 1) else (nb_, tb_)
                d = acc(k) + 16 * nb + 4 * tb; r = areg(k, nb); b = BF[k % 2] + 4 * tb
                c = "0" if k % 16 == 0 else f"v[{d}:{d+3}]"
                a.e(f"{M16} v[{d}:{d+3}], a[{r}:{r+3}], v[{b}:{b+3}], {c}")
                if g < 8 and g % 2 == 0 and k + 1 < NS:
                    q.l(bread(k + 1, g // 2), f"B{k+1}")
                if nl < 4 * NS and nl // 4 < k + NA and g in LG[:int(AS[k])]:
                    aload(a, q, nl // 4, nl % 4); nl += 1
                for fn in side.pop((k, g), []): fn()
                g += 1
    assert not side, side.keys()
    st(6); fs(13)
    def sel(i, R, tag):
        tb, h = i // 2, i % 2
        out = []
        for ee in range(2):
            d = 192 + 16 * (2 * h + ee) + 4 * tb
            out.append(lambda d=d, ee=ee: q.e(f"{M16} v[{d}:{d+3}], v[{SEL+2*ee}:{SEL+2*ee+3}], v[{R+4*i}:{R+4*i+3}], v[{d}:{d+3}]", need=(tag,)))
        return out
    for i in range(8):
        for f in sel(i, XR, "XF"): f()
    PK = 128
    post = []
    for i in range(8):
        tb, h = i // 2, i % 2
        src = [192 + 16 * (2 * h + ee) + 4 * tb + j for ee in range(2) for j in range(4)]
        o = [f"v_cvt_pk_bf16_f32 v{PK+4*i+j}, v{src[2*j]}, v{src[2*j+1]}" for j in range(4)]
        o.append(lambda i=i, tb=tb, h=h: q.l(f"ds_write_b128 v{8+h}, v[{PK+4*i}:{PK+4*i+3}] offset:{8192 + 2048*tb}"))
        if h:
            o += [lambda ii=ii: q.l(f"ds_read_b128 v[{160+4*ii}:{163+4*ii}], v7 offset:{8192 + 1024*ii}", f"E{ii}") for ii in (i - 1, i)]
        post.append(o)
    def out(ii):
        a.e(f"s_add_u32 s26, s58, {8192*ii}")
        q.v(f"buffer_store_dwordx4 v[{160+4*ii}:{163+4*ii}], v{10 + ii%2}, s[36:39], s26 offen {opt.get('omod', 'nt')}", need=(f"E{ii}",))
    R_ = lambda ops: [x() if callable(x) else a.e(x) for x in ops]
    for i in range(8):
        m = sel(i, YR, f"Y{i}")
        o = post[i - 4] if i >= 4 else []
        m[0](); R_(o[:2]); m[1](); R_(o[2:])
    fs(14)
    for i in range(4, 8):
        R_(post[i])
        out(i - 4)
    for ii in range(4, 8): out(ii)

def ER(i):
    return (96 + 8 * i) if i < 4 else (32 + 8 * (i - 4))

def areg(k, nb):
    return ARING[k % NA] + 4 * nb

def aload(a, q, k, nb):
    s = k % 8
    if nb == 0:
        if k % 16 < 8:
            a.e(f"s_add_u32 s59, {'s52' if k < 16 else 's53'}, {524288 + 32768*(s//4) + 4096*(s%4)}")
        else:
            a.e(f"s_add_u32 s59, {'s50' if k < 16 else 's51'}, {4096*s}")
    r = areg(k, nb)
    q.v(f"buffer_load_dwordx4 a[{r}:{r+3}], v3, s[12:15], s59 offen offset:{1024*nb} sc1", f"A{k}")

def gen_attn(a, name, stamp=False, opt=None):
    dg = [3 + (15 * i) // 4 for i in range(16)]
    opt = dict(dict(ps=1, xe=1, qw=62, dg=dg, mg=[2, 17, 32, 47, 60], rg=[g for g in range(8, 60) if g not in dg][:32], rot=4,
                    kg_=list(range(8, 16)) + list(range(24, 32)), qbe=57, pbe=58, pvg=[4, 57, 60, 60, 60, 61, 61, 61]), **(opt or {}))
    OOL[:] = []
    UI[0] = opt.get('ui', 0)
    DROP[:] = opt.get('drop', [])
    ALIGN[0] = opt.get('al', 0)
    Fine.op = 's_memtime' if opt.get('cyc') else 's_memrealtime'
    nP = 16
    L = lambda s: f"{name}_{s}"
    st = Stamper(a, stamp in (1, 5))
    fs = Fine(a, stamp == 2)
    ff = Fine(a, stamp == 3)
    fp = Fine(a, stamp == 6)
    kernel_begin(a, name)
    a.e("s_cmp_ge_u32 s2, 256")
    a.e(f"s_cbranch_scc1 {L('end')}")
    a.e(f"s_load_dwordx2 s[4:5], s[0:1], {KA['ws']}")
    a.e(f"s_load_dwordx2 s[6:7], s[0:1], {KA['x']}")
    a.e(f"s_load_dwordx2 s[40:41], s[0:1], {KA['wq']}")
    a.e(f"s_load_dwordx2 s[8:9], s[0:1], {KA['wk']}")
    a.e(f"s_load_dwordx2 s[96:97], s[0:1], {KA['wup']}")
    a.e(f"s_load_dwordx2 s[44:45], s[0:1], {KA['dw']}")
    a.e(f"s_load_dwordx4 s[48:51], s[0:1], {KA['out']}")
    a.e(f"s_load_dwordx4 s[52:55], s[0:1], {KA['wv']}")
    a.e(f"s_load_dwordx4 s[56:59], s[0:1], {KA['wdn']}")
    a.e("s_and_b32 s20, s2, 7")
    a.e("s_lshl_b32 s20, s20, 5")
    a.e("s_lshr_b32 s21, s2, 3")
    a.e("s_add_u32 s31, s20, s21")
    if opt.get("sw62", 1):
        a.e("s_and_b32 s20, s31, 62")
        a.e("s_cmp_eq_u32 s20, 60")
        a.e("s_cselect_b32 s20, 64, 0")
        a.e("s_xor_b32 s31, s31, s20")
    if opt.get("map") == 1:
        a.e("s_and_b32 s20, s2, 6")
        a.e("s_lshl_b32 s20, s20, 5")
        a.e("s_lshl_b32 s21, s21, 1")
        a.e("s_add_u32 s31, s20, s21")
        a.e("s_and_b32 s20, s2, 1")
        a.e("s_add_u32 s31, s31, s20")
    a.e("s_lshr_b32 s21, s31, 7")
    a.e("s_and_b32 s22, s31, 1")
    a.e("s_bfe_u32 s23, s31, 0x60001")
    a.e("v_lshrrev_b32 v1, 6, v0")
    a.e("v_and_b32 v2, 63, v0")
    a.e("v_readfirstlane_b32 s16, v1")
    a.e("v_lshlrev_b32 v3, 4, v2")
    a.e("s_mul_i32 s24, s21, 4096000")
    N0 = opt.get("n0", 62)
    a.e(f"s_mul_i32 s25, s22, {125 - 2*N0}")
    a.e(f"s_add_i32 s25, s25, {N0}")
    a.e("s_lshl_b32 s27, s23, 16")
    a.e("s_waitcnt lgkmcnt(0)")
    st(0); ff(0)
    def fin_srd(d, n):
        a.e(f"s_and_b32 s{d+1}, s{d+1}, 0xffff")
        a.e(f"s_mov_b32 s{d+2}, {n}")
        a.e(f"s_mov_b32 s{d+3}, 0x00020000")
    q = Seq(a)
    srd_off(a, 32, 6, "s24", 4096000)
    a.e("v_lshrrev_b32 v4, 3, v2")
    a.e("v_and_b32 v5, 7, v2")
    a.e("v_lshlrev_b32 v5, 4, v5")
    a.e("v_lshl_add_u32 v4, v4, 10, v5")
    a.e("s_lshl_b32 s26, s16, 14")
    a.e("s_add_u32 s26, s26, s27")
    a.e("s_lshl_b32 s28, s22, 9")
    a.e("s_add_u32 s26, s26, s28")
    a.e("v_mov_b32 v1, v4")
    a.e("s_mov_b32 s20, s26")
    def xld(s_):
        if s_ % 4 == 0: a.e(f"s_xor_b32 s7, s20, {8192*(s_//8) + 512*((s_//4)%2)}")
        q.v(f"buffer_load_dwordx4 v[{16+4*s_}:{19+4*s_}], v1, s[32:35], s7 offen offset:{128*(s_%4)} {opt.get('xmod', '')}", f"x{s_}")
    NX = opt.get("nx", 16)
    MF = opt.get("mf", 0)
    if MF:
        fin_srd(40, 524288); fin_srd(8, 524288)
        mi = m_issue(a, q)
        for s_ in range(opt.get("mx0", 0)): xld(s_)
        for f in mi: f()
        mi = []
    for s_ in range(opt.get("mx0", 0) if MF else 0, NX): xld(s_)
    opt["xrest"] = [lambda s_=s_: xld(s_) for s_ in range(NX, 16)]
    fin_srd(96, 1048576)
    touches(a, q, L, opt)
    if not MF: fin_srd(40, 524288); fin_srd(8, 524288)
    fin_srd(44, 5120)
    make_srd(a, 12, 4, 0x4000000)
    make_srd(a, 92, 50, 256)
    srd_off(a, 36, 48, "s24", 4096000)
    if not MF: mi = m_issue(a, q)
    def clear():
        a.e("v_mov_b32 v14, 0")
        a.e("v_lshlrev_b32 v13, 2, v2")
        a.e("s_lshl_b32 s26, s31, 2")
        a.e("s_add_u32 s26, s26, s16")
        a.e("s_lshl_b32 s28, s26, 8")
        a.e(f"s_add_u32 s28, s28, {WS_MX}")
        q.v("buffer_store_dword v14, v13, s[12:15], s28 offen sc1", "St")
        a.e("s_lshl_b32 s28, s31, 5")
        a.e("s_add_u32 s28, s28, s16")
        a.e("s_lshl_b32 s28, s28, 2")
        a.e(f"s_add_u32 s28, s28, {WS_FL}")
        a.e("v_and_b32 v13, 48, v2")
        a.e("s_getreg_b32 s26, hwreg(HW_REG_XCC_ID, 0, 4)")
        a.e("v_cmp_eq_u32 vcc, 48, v13")
        a.e("v_mov_b32 v14, s26")
        a.e("s_nop 0")
        a.e("v_cndmask_b32 v14, 0, v14, vcc")
        q.v("buffer_store_dword v14, v13, s[12:15], s28 offen sc1", "St")
    a.e("s_cmp_ge_u32 s23, 63")
    a.e(f"s_cbranch_scc1 {L('aux')}")
    def emit_aux(q0=q, vm0=list(q.vm)):
        a.label(L("aux"))
        q0.vm, q0.lg = list(vm0), []
        for f in mi: f()
        q0.v("buffer_load_dword v0, v7, s[44:47], 0 offen")
        m_addr(a)
        mfin = m_tile(a, q0)
        mfin()
        q0.all()
        a.e("s_barrier")
        signal(a, L, "sig1a", 0, 0)
        signal(a, L, "sig2a", 1, 8)
        signal(a, L, "sig3a", 2, 4)
        a.e("s_lshl_b32 s20, s21, 1")
        a.e("s_add_u32 s20, s20, s22")
        gen_aux(a, L, st, ff, opt)
        signal(a, L, "sig4a", 0, 12, shard=False)
        for k in range(5, 7): st(k)
        for k in range(15): fs(k)
        if stamp in (4, 6):
            for k in range(16): Fine(a, True)(k)
        for k in range(9, 15): ff(k)
        a.e(f"s_branch {L('fin')}")
    qk_part, pv_part = gen_front(a, q, L, st, ff, mi, clear, opt)
    qf = q
    qk_part()
    def tail_consts():
        t = Asm()
        t.e("s_lshl_b32 s26, s22, 2")
        t.e("s_add_u32 s26, s26, s16")
        t.e("s_lshl_b32 s53, s26, 16")
        t.e(f"s_add_u32 s53, s53, {WS_W3}")
        t.e("s_xor_b32 s52, s53, 0x40000")
        t.e("s_lshl_b32 s58, s26, 7")
        t.e("s_add_u32 s58, s58, s27")
        t.e("s_xor_b32 s54, s31, 1")
        t.e("s_lshl_b32 s54, s54, 3")
        t.e("s_add_u32 s54, s54, s16")
        t.e("s_lshl_b32 s54, s54, 13")
        t.e(f"s_add_u32 s54, s54, {WS_GU + 32768}")
        t.e("s_add_u32 s55, s54, 4096")
        t.e("s_lshl_b32 s26, s22, 15")
        t.e("s_add_u32 s50, s52, s26")
        t.e("s_add_u32 s51, s53, s26")
        t.e("s_lshl_b32 s26, s22, 14")
        t.e("s_add_u32 s52, s52, s26")
        t.e("s_add_u32 s53, s53, s26")
        t.e("s_add_u32 s26, s25, 3")
        t.e("s_and_b32 s26, s26, 3")
        t.e("s_lshl_b32 s48, s26, 15")
        t.e("s_add_u32 s26, s25, 1")
        t.e("s_and_b32 s26, s26, 3")
        t.e("s_lshl_b32 s49, s26, 15")
        t.e("s_lshl_b32 s56, s31, 5")
        t.e("s_add_u32 s56, s56, s16")
        t.e("s_lshl_b32 s56, s56, 2")
        t.e(f"s_add_u32 s56, s56, {WS_FL}")
        t.e("s_xor_b32 s57, s56, 128")
        return [x.strip() for x in t.lines]
    a.e("s_mov_b32 s17, s25")
    a.e(f"s_mov_b32 s101, {f2u(-BIG)}")
    NEAR = ["s_cmp_eq_u32 s21, 0", "s_cselect_b32 s46, s14, 0", "s_mov_b64 s[44:45], s[12:13]"]
    def guard(r):
        return [f"v_add_f32 v{r}, v{r}, v{r+1}", f"v_cmp_nle_f32 vcc, s101, v{r}", "s_cmp_eq_u32 s101, 0", "s_cselect_b64 s[28:29], 0, vcc",
                "s_cmp_lg_u64 s[28:29], 0", f"s_cbranch_scc1 {L('redo')}"]

    def dma_group():
        return "s_and_b32 m0, s18, 0x1ffff", [f"buffer_load_dwordx4 v3, s[8:11], s18 offen offset:{1024*j} {opt.get('kvmod', 'sc1')} lds" for j in range(4)]
    def dma_tile():
        for g in range(4):
            pre, ld = dma_group()
            a.e(pre); a.e("s_nop 0")
            for x in ld: a.e(x)
            a.e(f"s_add_u32 s18, s18, {4096 if g < 3 else 32768 - 3*4096}")
    def place_dma(fill, gaps):
        k = 0
        for g in range(4):
            pre, ld = dma_group()
            fill.setdefault(gaps[k] - 1, []).append(pre)
            for j in range(4):
                fill.setdefault(gaps[k], []).append(ld[j]); k += 1
            fill.setdefault(gaps[k - 1] + 1, []).append(f"s_add_u32 s18, s18, {4096 if g < 3 else 32768 - 3*4096}")
    auxl = cnt_load(4, "v11")
    auxc = ["v_cmp_le_u32 vcc, v7, v14"] + CNT_OK[1:]

    KB = [32, 96]; S = 160; NEGM = 176; E = 192; PK = 200; LS = 204
    VK = 8; VPW = 9; TMP = 10
    MX0 = 208
    def qk_setup():
        a.e("v_and_b32 v4, 15, v2")
        a.e("v_lshrrev_b32 v5, 4, v2")
        a.e("v_and_b32 v6, 0x27, v2")
        a.e("v_and_b32 v7, 8, v2")
        a.e("v_lshl_add_u32 v6, v7, 1, v6")
        a.e("v_and_b32 v7, 16, v2")
        a.e("v_lshrrev_b32 v7, 1, v7")
        a.e("v_add_lshl_u32 v6, v6, v7, 4")
        a.e("s_lshl_b32 s29, s16, 14")
        a.e(f"v_add_u32 v{VK}, s29, v6")
        a.e(f"s_lshl_b32 s29, s16, {3 if opt.get('p128') else 11}")
        a.e(f"s_add_u32 s29, s29, {LDS_P}")
        a.e(f"v_lshl_add_u32 v{VPW}, v2, {4 if opt.get('p128') else 3}, s29")
        for i in range(4):
            a.e(f"v_mov_b32 v{LS+i}, 0")
        for i in range(4):
            a.e(f"v_mov_b32 v{MX0+i}, 0xff800000")
    qk_setup()
    def kread(par, s, imm):
        r = KB[par] + 4 * s
        return f"ds_read_b128 v[{r}:{r+3}], v{VK} offset:{imm + 1024*s}"
    def chain(par, qb, c0):
        out = []
        for n in range(16):
            s = 15 - n if (qb % 2 and c0 != "0" and opt.get("zz", 1)) else n
            k = KB[par] + 4 * s; q = 64 * qb + 4 * s; d = S + 4 * qb
            c = c0 if n == 0 else f"v[{d}:{d+3}]"
            out.append(f"{M16} v[{d}:{d+3}], v[{k}:{k+3}], a[{q}:{q+3}], {c}")
        return out
    q = Seq(a)
    mf = [m for qb in range(4) for m in chain(0, qb, "0")]
    ST = 212
    tc = tail_consts() + [
        "s_mul_i32 s28, s16, 34", "s_lshl_b32 s29, s23, 6", "s_add_u32 s28, s28, s29", "s_sub_u32 s28, s28, 2",
        f"v_add_u32 v{ST+16}, s28, v2",
        f"v_max_i32 v{ST+17}, 0, v{ST+16}", f"v_min_i32 v{ST+17}, {T-1}, v{ST+17}", f"v_lshrrev_b32 v{ST+18}, 6, v{ST+17}", f"v_and_b32 v{ST+17}, 63, v{ST+17}",
        f"v_lshlrev_b32 v{ST+17}, 3, v{ST+17}", f"v_lshl_add_u32 v{ST+17}, v{ST+18}, 12, v{ST+17}",
        "s_lshr_b32 s6, s31, 7", "s_lshl_b32 s6, s6, 18", f"s_add_u32 s6, s6, {WS_ST}",
        "s_lshl_b32 s28, s16, 1", "s_add_u32 s28, s28, s23", "s_sub_u32 s28, s28, 1", "s_max_i32 s28, s28, 0", "s_min_i32 s28, s28, 62",
        "s_sub_u32 s28, s28, s23", "s_lshl_b32 s28, s28, 1", "s_add_u32 s28, s28, s31", "s_lshl_b32 s28, s28, 16",
        "s_xor_b32 s29, s16, 1", f"s_mul_i32 s29, s29, {62*512}", "s_add_u32 s28, s28, s29", f"s_add_u32 s7, s28, {WS_GU}",
        "s_lshl_b32 s29, s16, 10", f"s_add_u32 s42, s29, {LDS_HALO}",
        "s_xor_b32 s28, s31, 1", "s_lshl_b32 s28, s28, 1", "s_add_u32 s28, s28, s16", "s_lshl_b32 s28, s28, 9", f"s_add_u32 s28, s28, {WS_MX}",
        f"v_lshl_add_u32 v{ST+18}, v2, 3, s28", f"v_writelane_b32 v{ST+18}, s57, 1",
        f"s_mul_i32 s28, s16, {34*8}", f"s_add_u32 s28, s28, {LDS_STT}", f"v_lshl_add_u32 v{ST+19}, v2, 3, s28"]
    t_ = Asm()
    t_.e("s_lshl_b32 s28, s16, 5")
    conv_addr(t_, 16, "s28")
    for x in ["s_lshl_b32 s28, s16, 9", "s_lshl_b32 s41, s31, 10", "s_add_u32 s41, s41, s28", f"s_add_u32 s41, s41, {WS_MX}",
              f"s_add_u32 s28, s28, {LDS_ML}", "v_lshlrev_b32 v244, 3, v2", "v_add_u32 v245, s28, v244", f"v_add_u32 v246, {LDS_ML + 4}, v244",
              "s_mov_b32 s43, 0xffff0000"]: t_.e(x)
    tc += [x.strip() for x in t_.lines]
    qf.wait("kv0", "qd")
    qf.all(vm=False)
    fy = Fine(a, opt.get("fy")); fy(9)
    a.e("s_barrier")
    fy(10)
    st(2); ff(10)
    if opt.get("qe"):
        for n in range(12): q.l(kread(0, n, 0), f"K{n}")
        for n in range(64):
            q.e(mf[n], need=(f"K{n}",))
            if n < 4: q.l(kread(0, 12 + n, 0), f"K{12+n}")
            elif tc: a.e(tc.pop(0))
    else:
        a.e(f"v_add_u32 v7, {LDS_XS}, v3")
        rd = []
        for n in range(64):
            qb, s = n // 16, n % 16
            rd.append((f"ds_read_b128 a[{64*qb+4*s}:{64*qb+4*s+3}], v7 offset:{16384*((s%8)//2) + 8192*(s//8) + 2048*qb + 1024*(s%2)}", f"Q{n}"))
            if qb == 0: rd.append((kread(0, s, 0), f"Q{n}"))
        for _ in range(14): q.l(*rd.pop(0))
        for n in range(64):
            if n % 2 == 0: q.wait(f"Q{n+1}")
            a.e(mf[n])
            if opt.get("q1") and n % 3 == 0 and n < 48:
                i = n // 3
                if i % 4 == 0:
                    a.e(f"s_add_u32 m0, s19, {32768 + 1024*i}")
                    a.e(f"s_add_u32 s18, s19, {32768 + 1024*i}")
                a.e(f"buffer_load_dwordx4 v3, s[8:11], s18 offen offset:{1024*(i%4)} sc1 lds")
            for _ in range(2 if n < 14 else 1):
                if rd: q.l(*rd.pop(0))
            for _ in range(0 if n < 14 else 2 if rd else 3):
                if tc: a.e(tc.pop(0))
        a.label(L("qk_again"))
        fy(11)
        a.e("s_barrier")
        fy(12)
    assert not tc
    n0_ = len(a.lines)
    a.e("s_nop 7")
    for qb in range(4):
        d = S + 4 * qb
        a.e(f"v_max3_f32 v{E+qb}, v{d}, v{d+1}, v{d+2}")
        a.e(f"v_max3_f32 v{E+qb}, v{E+qb}, v{d+3}, v{MX0+qb}")
    def group_reduce(r, t, op):
        for sw in ("v_permlane16_swap_b32", "v_permlane32_swap_b32"):
            for qb in range(4):
                a.e(f"v_mov_b32 v{t+qb}, v{r+qb}")
            a.e("s_nop 1")
            for qb in range(4):
                a.e(f"{sw} v{r+qb}, v{t+qb}")
            a.e("s_nop 1")
            for qb in range(4):
                a.e(f"{op} v{r+qb}, v{r+qb}, v{t+qb}")
    group_reduce(E, E + 4, "v_max_f32")
    a.e("s_lshl_b32 s29, s16, 8")
    a.e(f"s_add_u32 s29, s29, {LDS_MX}")
    a.e(f"v_lshl_add_u32 v{TMP}, v4, 4, s29")
    a.e(f"ds_write_b128 v{TMP}, v[{E}:{E+3}]")
    a.e(f"v_xor_b32 v{TMP}, 256, v{TMP}")
    if opt.get("q3", 0):
        mx = a.lines[n0_:]; del a.lines[n0_:]
        a.e("s_lshl_b32 s19, s16, 14")
        for n, x in enumerate(mx):
            if n in (0, 13, 27, len(mx) - 1):
                i = 4 * (0, 13, 27, len(mx) - 1).index(n)
                a.e(f"s_add_u32 m0, s19, {98304 + 1024*i}")
                a.e(f"s_add_u32 s18, s19, {98304 + 1024*i}")
                for j in range(4): a.e(f"buffer_load_dwordx4 v3, s[8:11], s18 offen offset:{1024*j} sc1 lds")
            a("    s_nop 2" if n == 0 else x)
    a.e(f"s_waitcnt vmcnt({16 if opt.get('q3', 0) else 0}) lgkmcnt(0)")
    fy(13)
    a.e("s_barrier")
    fy(14)
    a.e(f"ds_read_b128 v[{E+4}:{E+7}], v{TMP}")
    for s in range(8):
        a.e(kread(1, s, 32768))
    a.e("s_waitcnt lgkmcnt(8)")
    for qb in range(4):
        a.e(f"v_max_f32 v{E+qb}, v{E+qb}, v{E+4+qb}")
    for qb in range(4):
        for j in range(4):
            a.e(f"v_sub_f32 v{NEGM+4*qb+j}, 0, v{E+qb}")
    a.e(f"v_mov_b32 v242, v{NEGM}")
    a.e("s_waitcnt lgkmcnt(4)")
    for s in range(8, 16):
        a.e(kread(1, s, 32768))
        if s in (9, 11, 13):
            qb = (s - 7) // 2
            a.e(f"v_mov_b32_dpp v242, v{NEGM+4*qb} quad_perm:[0,1,2,3] row_mask:{1 << qb:#x} bank_mask:0xf")
    for qb in range(4):
        for j in range(4):
            a.e(f"v_add_f32 v{S+4*qb+j}, v{S+4*qb+j}, v{NEGM+4*qb}")
    def softmax_ops(qb, par):
        e = E + 4 * (qb % 2); p = PK + 2 * (qb % 2); d = S + 4 * qb
        ex = [f"v_exp_f32{opt.get('e64', '')} v{e+j}, v{d+j}" for j in range(4)]
        ad = [f"v_add_f32 v{LS+qb}, v{LS+qb}, v{e+j}" for j in range(4)]
        cv = [f"v_cvt_pk_bf16_f32 v{p+j}, v{e+2*j}, v{e+2*j+1}" for j in range(2)]
        wr = f"ds_write_b64 v{VPW}, v[{p}:{p+1}] offset:{par*4096 + qb*(1024 if opt.get('p128') else 512)}"
        return ex, ad, cv, wr
    FT = opt.get("ft", 0)
    def qk_pre():
        if stamp == 7:
            a.e("v_mov_b32 v240, 0")
            a.e("s_memtime s[60:61]")
        a.e("v_and_b32 v11, 3, v2")
        a.e("v_lshlrev_b32 v11, 6, v11")
        a.e("v_mov_b32 v7, 64")
        a.e("v_writelane_b32 v11, 8, 4")
        a.e("v_writelane_b32 v7, 4, 4")
        if opt.get("kt"):
            a.e("s_lshr_b32 s41, s2, 4")
            a.e("s_lshl_b32 s41, s41, 1")
            a.e("s_add_u32 s41, s41, s16")
            a.e("s_lshl_b32 s41, s41, 10")
            a.e(f"s_add_u32 s41, s41, {32768 * opt['kt'][0]}")
        a.e("s_lshr_b32 s40, s31, 1")
        a.e(f"s_and_b32 s40, s40, {opt.get('xs', 7)}")
        a.e("s_lshl_b32 s40, s40, 1")
        a.e(f"s_add_u32 s40, s40, {opt.get('xb', 8)}")
    if FT: qk_pre()
    ex, ad, cv, wr = softmax_ops(0, 0)
    for x in ex + ["s_nop 0"] + cv + ad + [wr]: a.e(x)
    a.e("s_waitcnt lgkmcnt(1)")
    fill = {}
    ops = []
    for qb in range(1, 4):
        ex, ad, cv, wr = softmax_ops(qb, 0)
        ops += ex + [ad[0]] + cv + ad[1:] + [wr]
    for i, x in enumerate(ops):
        fill.setdefault(i * (13 if FT else 15) // len(ops), []).append(x)
    ROT = opt.get("rot", 0)
    emit_interval(a, chain(1, 0, f"v[{NEGM}:{NEGM+3}]") + chain(1, 1, f"v[{NEGM+4}:{NEGM+7}]")[:ROT], fill, 0,
                  16 + ROT - (64 - opt["qbe"]) if FT else None)
    if not FT: a.e("s_waitcnt vmcnt(0) lgkmcnt(0)")
    a.e("s_sub_u32 s17, s17, 1")
    fy(15)
    if not FT: a.e("s_barrier")
    assert not (FT and opt.get("q3"))

    XT = ["buffer_load_dword v0, v7, s[32:35], s40 offen", "s_add_u32 s40, s40, 1024"]
    def qk_interval(par, lo=0, hi=None):
        mf = []
        for c in range(5):
            qb = (c + 1) % 4
            mf += chain(par if c < 3 else par ^ 1, qb, f"v[{NEGM+4*qb}:{NEGM+4*qb+3}]")
        mf = mf[ROT:64 + ROT]
        fill = {}
        F_ = lambda g, x: fill.setdefault(g, []).append(x)
        rgaps = opt.get("kg_", [1, 2, 3, 12, 13, 14, 16, 17, 18, 28, 29, 30, 32, 33, 34, 35])
        if par == 1: F_(rgaps[0] - 1, f"v_xor_b32 v{VK}, 0x10000, v{VK}")
        imm = 32768 * (par ^ 1)
        for s in range(16):
            F_(rgaps[s], kread(par ^ 1, s, imm))
        sm = opt.get("sm", [4, 5, 6, 7, 8, 8, 9, 10, 10, 11, 11])
        for c in range(4):
            ex, ad, cv, wr = softmax_ops(c, par)
            for g, x in zip(sm, ex + cv + [wr] + ad): F_(16 * c + g - ROT, x)
        kw = 47 - ROT
        nwr = sum(1 for c in range(4) if rgaps[-1] <= 16 * c + sm[6] - ROT <= kw)
        F_(kw, f"s_waitcnt lgkmcnt({nwr})")
        F_(kw + 1, "s_sub_u32 s17, s17, 1")
        if par == 1:
            F_(kw - 3, "s_cmp_lt_u32 s17, s40")
            fill.setdefault(kw - 2, []).extend([f"s_cbranch_scc1 {L('touch')}", L("touch_ret") + ":"])
        if stamp == 7:
            F_(kw + 2, "s_mov_b32 m0, s17"); F_(kw + 3, "v_writelane_b32 v240, s60, m0"); F_(kw + 3, "s_memtime s[60:61]")
        if opt.get("kt"):
            F_(opt["kt"][1], "buffer_load_dword v0, v3, s[8:11], s41 offen sc1"); F_(46, "s_add_u32 s41, s41, 32768")
        XE = opt.get("xe", 0)
        F_(opt.get("xg", 57) - 1, "s_cmp_eq_u32 s17, 0")
        F_(opt.get("xg", 57), f"s_cbranch_scc1 {L('qk_exit')}")
        F_(opt.get("qw", 63), "s_waitcnt lgkmcnt(0)"); F_(63, "s_barrier")
        for c in range(4):
            last, first = 16 * c - 1 - ROT, 16 * c + sm[0] - ROT
            n = first - last + sum(len([x for x in fill.get(g % 64, []) if not x.endswith(":")]) for g in range(last, first))
            g = last + 2
            while n < 8:
                F_(g % 64, "s_nop 0"); n += 1; g += 1
                assert g <= first
        emit_interval(a, mf, fill, lo, hi)

    if not FT: qk_pre()
    st(3); ff(11)
    QB = opt.get("qbe", 0)
    if QB:
        if not FT: a.e(f"s_branch {L('qk_in')}")
        a(f".p2align {opt.get('la', 3) if FT else 6}")
        a.label(L("qk_loop"))
        XE = opt.get("xe", 0)
        qk_interval(0, QB)
        if not XE: a.e(f"s_cbranch_scc1 {L('qk_done')}")
        a.label(L("qk_in"))
        qk_interval(1)
        if not XE: a.e(f"s_cbranch_scc1 {L('qk_done')}")
        qk_interval(0, 0, QB)
        a.e(f"s_branch {L('qk_loop')}")
        a(f".p2align {opt.get('al2', 2)}"); a.label(L("qk_exit"))
    else:
        a(".p2align 6")
        a.label(L("qk_loop"))
        qk_interval(1)
        a.e(f"s_cbranch_scc1 {L('qk_done')}")
        qk_interval(0)
        a.e(f"s_cbranch_scc0 {L('qk_loop')}")
    a.label(L("qk_done"))
    def tl(srd, so):
        a.e("v_lshlrev_b32 v12, 7, v2")
        a.e(f"buffer_load_dword v0, v12, s[{srd}:{srd+3}], {so} offen")
    def b_code():
        a.e("s_getpc_b64 s[28:29]")
        a.label(L("pc0"))
        a.e(f"s_sub_u32 s28, s28, {L('pc0')} - {L('qk_done')}")
        a.e("s_subb_u32 s29, s29, 0")
        a.e("s_lshr_b32 s30, s2, 3")
        a.e("s_lshl_b32 s30, s30, 1")
        a.e("s_add_u32 s30, s30, s16")
        a.e("s_lshl_b32 s30, s30, 10")
        a.e("v_lshl_add_u32 v12, v2, 4, s30")
        a.e(f"v_min_u32 v12, {L('end')} - {L('qk_done')}, v12")
        a.e("global_load_dword v0, v12, s[28:29]")
    def b_w(part):
        def f():
            a.e("s_lshr_b32 s30, s2, 3")
            a.e("s_lshl_b32 s30, s30, 1")
            a.e("s_add_u32 s30, s30, s16")
            a.e("s_lshl_b32 s30, s30, 13")
            a.e(f"s_add_u32 s30, s30, {WS_W3 + 524288*part}")
            tl(12, "s30")
        return f
    foldl = "buffer_load_dword v13, off, s[92:95], 0 offset:12 sc1"
    def b_c3():
        a.e("s_waitcnt vmcnt(0)")
        poll(a, Seq(a), L, "qk_c3", [auxl], auxc, "aux", slp=16)
    def b_c4():
        a.e("s_waitcnt vmcnt(0)")
        poll(a, Seq(a), L, "qk_c4", [foldl], ["v_readfirstlane_b32 s28, v13", "s_cmp_ge_u32 s28, 4"], "aux", slp=16)
    def b_small():
        a.e("s_mov_b32 m0, s42")
        for c in range(8):
            a.e(f"buffer_load_dwordx2 v[{ST+2*c}:{ST+2*c+1}], v{ST+17}, s[12:15], s6 offen offset:{512*c} sc1")
        a.e("buffer_load_dwordx4 v3, s[12:15], s7 offen sc1 lds")
        a.e(f"buffer_load_dword v0, v{ST+18}, s[12:15], 0 offen sc1")
    def b_stat():
        a.e("s_waitcnt vmcnt(0)")
        for ct in range(1, 8):
            a.e(f"v_pk_add_f32 v[{ST}:{ST+1}], v[{ST}:{ST+1}], v[{ST+2*ct}:{ST+2*ct+1}]")
        a.e(f"v_mul_f32 v{ST}, {f2u(1/512)}, v{ST}")
        a.e(f"v_mul_f32 v{ST+1}, {f2u(1/512)}, v{ST+1}")
        a.e(f"v_fma_f32 v{ST+1}, -v{ST}, v{ST}, v{ST+1}")
        a.e(f"v_max_f32 v{ST+1}, 0, v{ST+1}")
        a.e(f"v_add_f32 v{ST+1}, {f2u(1e-5)}, v{ST+1}")
        a.e(f"v_rsq_f32 v{ST+1}, v{ST+1}")
        a.e(f"v_cmp_gt_u32 vcc, {T}, v{ST+16}")
        a.e(f"v_mul_f32 v{ST}, v{ST}, v{ST+1}")
        a.e(f"v_sub_f32 v{ST}, 0, v{ST}")
        a.e(f"v_cndmask_b32 v{ST+2}, 0, v{ST+1}, vcc")
        a.e(f"v_cndmask_b32 v{ST+3}, 0, v{ST}, vcc")
        a.e(f"ds_write_b64 v{ST+19}, v[{ST+2}:{ST+3}]")
    def b_x(r0):
        def f():
            a.e("s_lshl_b32 s30, s22, 1")
            a.e("s_add_u32 s30, s30, s16")
            a.e("s_lshl_b32 s30, s30, 14")
            a.e("s_add_u32 s30, s30, s27")
            a.e(f"s_add_u32 s30, s30, {r0*1024}")
            tl(32, "s30")
        return f
    tb_fns = B = dict(code=b_code, l3=lambda: a.e(auxl), c3=b_c3, small=b_small, stat=b_stat, x0=b_x(0), x8=b_x(8), l4=lambda: a.e(foldl), c4=b_c4, w1=b_w(1), w0=b_w(0))
    st(4); fs(0); ff(13); fp(0)
    if stamp == 7:
        a.e("s_lshl_b32 s26, s2, 1")
        a.e("s_add_u32 s26, s26, s16")
        a.e("s_lshl_b32 s26, s26, 8")
        a.e(f"s_add_u32 s26, s26, {0x3F00000}")
        a.e("v_lshlrev_b32 v241, 2, v2")
        a.e("buffer_store_dword v240, v241, s[12:15], s26 offen")
    q = Seq(a)
    cv = Conv(a, q, 16)
    a.e(f"v_permlane16_swap_b32 v{LS}, v{LS+1}")
    a.e(f"v_permlane16_swap_b32 v{LS+2}, v{LS+3}")
    cv.taps()
    a.e(f"v_add_f32 v{LS}, v{LS}, v{LS+1}")
    a.e(f"v_add_f32 v{LS+2}, v{LS+2}, v{LS+3}")
    tb_fns["stat"]()
    a.e(f"v_permlane32_swap_b32 v{LS}, v{LS+2}")
    a.e("s_nop 0")
    a.e(f"v_add_f32 v243, v{LS}, v{LS+2}")
    a.e("v_or_b32 v243, 0x80000000, v243")
    q.l("ds_write_b64 v245, v[242:243]")
    q.all(vm=False)
    fs(1)
    a.e("s_barrier")
    fs(2)
    q.l(f"ds_read2st64_b32 v[{E}:{E+1}], v246 offset0:0 offset1:2", "lsum")
    cv.prep()
    q.wait("lsum")
    for x in guard(E): a.e(x)
    release(a, q, L, "rm", None, "buffer_store_dwordx2 v[242:243], v244, s[12:15], s41 offen")
    fs(3)
    PF = opt.get("pf", 10); n = 0
    for j in range(20):
        if j in (0, 2, 4, 6, 8, 11, 14, 17): fp(1 + (0, 2, 4, 6, 8, 11, 14, 17).index(j))
        ex = []
        if j >= opt.get("qa", 6):
            for _ in range(3):
                if n < 4 * PF:
                    ex.append(lambda n=n: aload(a, q, n // 4, n % 4)); n += 1
        cv.row(j, ex)
    while n < 4 * PF:
        aload(a, q, n // 4, n % 4); n += 1
    fs(4)
    a.e(f"s_branch {L('tail')}")
    a(f".p2align {opt.get('al2', 2)}"); a.label(L("touch"))
    THR = 2 * int(opt.get("blocks", "2")[0]) + 2
    a.e(f"s_cmp_eq_u32 s40, {THR}")
    a.e(f"s_cbranch_scc1 {L('touchb')}")
    a.e(f"s_mov_b32 s40, {THR}")
    B["x0"](); B["x8"]()
    for i in range(opt.get("gt", 0)):
        a.e("s_lshl_b32 s30, s31, 1")
        a.e("s_add_u32 s30, s30, s16")
        a.e("s_lshl_b32 s30, s30, 15")
        a.e(f"s_add_u32 s30, s30, {WS_GU + 8192*i}")
        a.e("buffer_load_dword v0, v12, s[12:15], s30 offen sc1")
    a.e(f"s_branch {L('touch_ret')}")
    a.label(L("touchb"))
    a.e("s_lshr_b32 s26, s17, 1")
    spec = opt.get("blocks", "2:l3 1:c3,small")
    blocks = {int(x.split(":")[0]): [B[y] for y in x.split(":")[1].split(",")] for x in spec.split()}
    for kx, fns in blocks.items():
        a.e(f"s_cmp_lg_u32 s26, {kx}")
        a.e(f"s_cbranch_scc1 {L('touch%d' % kx)}")
        for f in fns: f()
        a.e(f"s_branch {L('touch_ret')}")
        a.label(L("touch%d" % kx))
    a.e(f"s_branch {L('touch_ret')}")

    VB = [16, 80]; PR = [144, 160]
    VV = 8; VPR = 9; PH = opt.get('ph', 2)
    def oreg(db, qb):
        return (f"a[{4*qb}:{4*qb+3}]", None) if db == 0 else (f"v[{16*db+4*qb}:{16*db+4*qb+3}]", 16 * db + 4 * qb)
    def vread(par, db, kb):
        r = VB[par] + 4 * db + 2 * kb
        return f"ds_read_b64_tr_b16 a[{r}:{r+1}], v{VV if db < 8 else 11} offset:{32768*par + 16384*kb + 512*(db%8)}"
    def pvo(pair): return a2s(pair) if opt.get("o1", 1) else [(e, t) for e in range(2) for t in range(4)]
    def pvm(par, pair, first=False):
        out = []
        for e, qb in pvo(pair):
            db = 2 * pair + e
            d = oreg(db, qb)[0]; v = VB[par] + 4 * db; p = PR[par] + 4 * qb
            out.append(f"{M16} {d}, a[{v}:{v+3}], a[{p}:{p+3}], {'0' if first else d}")
        return out
    def pv_setup():
        a.e("s_sub_u32 s19, s16, 2")
        for x in tail_consts(): a.e(x)
        a.e("v_lshrrev_b32 v4, 5, v2")
        a.e("v_lshlrev_b32 v4, 8, v4")
        a.e("v_and_b32 v5, 2, v2")
        a.e("v_lshl_add_u32 v4, v5, 6, v4")
        a.e("v_and_b32 v5, 28, v2")
        a.e("v_lshl_add_u32 v4, v5, 2, v4")
        a.e("v_and_b32 v5, 1, v2")
        a.e("v_lshl_add_u32 v4, v5, 3, v4")
        a.e("s_lshl_b32 s29, s19, 13")
        a.e("s_lshl_b32 s28, s22, 12")
        a.e("s_add_u32 s28, s28, s29")
        a.e("v_add_u32 v11, s28, v4")
        a.e(f"v_xor_b32 v{VV}, 0x1000, v11")
        a.e("s_lshl_b32 s29, s19, 12")
        a.e("s_add_u32 s29, s29, s48")
        a.e("v_add_u32 v10, s29, v3")
        a.e("s_lshl_b32 s40, s31, 2")
        a.e("s_add_u32 s40, s40, s19")
        a.e("s_lshl_b32 s40, s40, 14")
        a.e(f"s_add_u32 s40, s40, {WS_GU + 32768}")
        a.e("s_lshl_b32 s28, s31, 16")
        a.e(f"s_add_u32 s28, s28, {WS_GU}")
        a.e("s_sub_u32 s28, s28, s10")
        a.e("s_add_u32 s98, s4, s28")
        a.e("s_addc_u32 s99, s5, 0")
        a.e("s_and_b32 s99, s99, 0xffff")
        a.e("s_add_u32 s100, s10, 65536")
        if opt.get("xr", 1) == 2:
            a.e("s_lshr_b32 s28, s2, 3")
            a.e("s_lshl_b32 s28, s28, 15")
            a.e(f"s_add_u32 s28, s28, {WS_W3}")
            a.e("s_sub_u32 s28, s28, s100")
            a.e("s_add_u32 s96, s4, s28")
            a.e("s_addc_u32 s97, s5, 0")
            a.e("s_and_b32 s97, s97, 0xffff")
            a.e("s_add_u32 s3, s100, 32768")
        else:
            a.e("s_lshl_b32 s28, s22, 15")
            a.e("s_add_u32 s28, s28, s27")
            a.e("s_sub_u32 s3, 4096000, s28")
            a.e("s_add_u32 s3, s3, s100" if opt.get("xr", 1) else "s_mov_b32 s3, 0")
            a.e("s_add_u32 s96, s32, s28")
            a.e("s_addc_u32 s97, s33, 0")
            a.e("s_sub_u32 s96, s96, s100")
            a.e("s_subb_u32 s97, s97, 0")
        a.e(f"s_mov_b32 s29, {LDS_P}")
        a.e(f"v_lshl_add_u32 v{VPR}, v2, 3, s29")
        a.e(f"v_add_u32 v1, {LDS_ML + 4 - LDS_P}, v{VPR}")
        if opt.get("p128"): a.e(f"v_add_u32 v{VPR}, s29, v3")
        for g in range(1, 4): a.e(f"v_add_u32 v{4+g}, {4096*g}, v3")
    def pv_zero():
        pass
    def emit_pv_again():
        a.label(L("pv"))
        pv_setup()
        a.e("s_lshl_b32 s18, s19, 14")
        a.e("s_add_u32 s18, s18, 65536")
        dma_tile()
        pv_zero()
        a.e("s_barrier")
        a.e("s_waitcnt vmcnt(16)")
        a.e("s_barrier")
        if not opt.get("q3", 0): dma_tile()
        for db in range(16):
            for kb in range(2):
                a.e(vread(0, db, kb))
            if db % 4 == 3: a.e("s_waitcnt lgkmcnt(4)")
        a.e("s_waitcnt vmcnt(0) lgkmcnt(0)")
        a.e(f"s_branch {L('pv_go')}")
    def taps():
        a.e("v_lshrrev_b32 v12, 5, v2")
        a.e("v_lshl_add_u32 v12, v12, 9, v3")
        a.e("s_lshl_b32 s28, s22, 9")
        out = []
        for i in range(3):
            a.e(f"s_mov_b32 m0, {LDS_TAP + 1024*i}")
            a.e(f"s_add_u32 s29, s28, {2048*i}")
            qf.v("buffer_load_dwordx4 v12, s[44:47], s29 offen lds")
        for x in NEAR: a.e(x)
    def setup1():
        pv_setup()
        a.e(f"s_mov_b32 s101, {f2u(-BIG)}")
    pv_part(setup1, [vread(0, db, kb) for db in range(16) for kb in range(2)], taps)
    a.label(L("pv_go"))
    a.e("s_lshl_b32 s18, s19, 14")
    a.e("s_add_u32 s18, s18, 131072")
    a.e("s_sub_u32 s17, s25, 1")
    a.e("s_barrier")

    pvq = []
    MR = 12; MO = 4; AL = 88; TT = 96; RX = 16
    mll = [f"buffer_load_dwordx2 v[{MR+2*w}:{MR+2*w+1}], v9, s[12:15], s42 offen offset:{512*w} {opt.get('pm', 'sc1')}" for w in range(2)]
    ol = f"buffer_load_dword v11, off, s[12:15], s57 offset:24 {opt.get('pm', 'sc1')}"
    def pv_interval(par, last=False, lo=0, hi=None, first=False):
        mf = pvm(par, 7)
        if first:
            z = [f"v_pk_mul_f32 v[{i}:{i+1}], 0, 0" for i in range(192 if FT else 224, 256, 2)]
            zn = len(z) // 8
            mf = ["\n    ".join(z[zn * i:zn * i + zn]) for i in range(8)]
        for pr in range(8 if last else 7):
            mf += pvm(par ^ 1, pr, first)
        fill = {}
        for qb in range(4):
            p = PR[par ^ 1] + 4 * qb
            fill.setdefault(opt.get('pg', [0, 0, 1, 1])[qb], []).append(f"ds_read_b128 a[{p}:{p+3}], v{VPR} offset:{4096*(par^1) + 1024*qb}" if opt.get("p128") else
                f"ds_read2st64_b64 a[{p}:{p+3}], v{VPR} offset0:{8*(par^1)+qb} offset1:{8*(par^1)+4+qb}")
        rg = opt.get("rg", [8 + 3 * (i // 2) + (i % 2) for i in range(32)])
        fill.setdefault(4 * PH - 1, []).append(f"s_waitcnt lgkmcnt({0 if last else sum(1 for g in rg if g < 4 * PH - 1)})")
        if last:
            fs(0); fp(0)
            q = Seq(a)
            ops = []
            for sp in range(4):
                for nq, qb in enumerate([t for e, t in pvo(sp) if e]):
                    o = []
                    if sp == 0:
                        o += [f"v_accvgpr_read_b32 v{4+j}, a{4*qb+j}" for j in range(4)]
                        lo = 4
                    else:
                        lo = oreg(2 * sp, qb)[1]
                    hi = oreg(2 * sp + 1, qb)[1]
                    o += [f"v_cvt_pk_bf16_f32 v{hi+3}, v{hi+2}, v{hi+3}", f"v_cvt_pk_bf16_f32 v{hi+2}, v{hi}, v{hi+1}",
                          f"v_cvt_pk_bf16_f32 v{hi}, v{lo}, v{lo+1}", f"v_cvt_pk_bf16_f32 v{hi+1}, v{lo+2}, v{lo+3}"]
                    if nq == 0: o.append(f"s_add_u32 s41, s40, {4096*sp}")
                    o.append(f"buffer_store_dwordx4 v[{hi}:{hi+3}], v3, s[44:47], s41 offen offset:{1024*qb} {opt.get('sm_', 'nt')}")
                    ops += [(8 + 8 * sp + pvo(sp).index((1, qb)) + 6, x) for x in o]
            late = [lambda x=x: a.e(x) for x in ["v_lshlrev_b32 v9, 3, v2", "s_xor_b32 s26, s31, 1", "s_lshl_b32 s26, s26, 10", f"s_add_u32 s42, s26, {WS_MX}"]]
            late += [lambda w=w: q.v(mll[w], "ML") for w in range(2)]
            late += [lambda: a.e("v_subrev_u32 v8, 4, v1"),
                     lambda: q.l(f"ds_read2st64_b64 v[{MO}:{MO+3}], v8 offset0:0 offset1:1", "MLo")]
            late += [lambda x=x: a.e(x) for x in ["v_and_b32 v1, 15, v2", "v_lshlrev_b32 v1, 2, v1", "s_xor_b32 s40, s40, 0x10000", "s_mov_b32 s43, 0xffff0000", "v_mov_b32 v0, 1"]]
            na = 0
            for i, m in enumerate(mf):
                a.e(m)
                for f in fill.get(i, []): a.e(f)
                if i == 2: q.l("ds_read2st64_b32 v[4:5], v1 offset0:0 offset1:2", "lsum")
                if i == 9:
                    fs(1); fs(2)
                    q.wait("lsum")
                    for x in guard(4): a.e(x)
                if i in opt.get("ea", ()):
                    aload(a, q, na // 4, na % 4); na += 1
                if i > 12:
                    n = 0
                    while ops and ops[0][0] <= i and n < opt.get("lp", 3):
                        if opt.get("ls", 1) and n and ops[0][1].startswith("buffer"): break
                        x = ops.pop(0)[1]; n += 1
                        if x.startswith("buffer"): q.v(x, "Ost")
                        else: a.e(x)
                    if n and not ops: fp(1)
                    if n == 0:
                        if not ops and late: late.pop(0)()
                        else: a.e("s_nop 0")
            assert not ops
            while late: late.pop(0)()
            fs(3)
            pvq.append((q, na))
            return
        F_ = lambda g, x: fill.setdefault(g, []).append(x)
        G = opt["pvg"]
        if par == 0:
            F_(G[0], f"v_xor_b32 v{VV}, 0x10000, v{VV}"); F_(G[0], "v_xor_b32 v11, 0x10000, v11")
        for i in range(32): F_(rg[i], vread(par, i // 2, i % 2))
        dg = opt["dg"]
        for g in range(4):
            F_(opt["mg"][g], "s_and_b32 m0, s18, 0x1ffff" if g == 0 else "s_add_u32 m0, m0, 4096")
            for j in range(4):
                F_(dg[4 * g + j], f"buffer_load_dwordx4 v{3 if g == 0 else 4 + g}, s[8:11], s18 offen offset:{1024*j} {opt.get('kvmod', 'sc1')} lds")
        F_(opt["mg"][4], "s_add_u32 s18, s18, 32768")
        sw = ["s_cmp_eq_u32 s17, 3", "s_cselect_b64 s[8:9], s[98:99], s[8:9]", "s_cselect_b32 s10, s100, s10",
              "s_cmp_eq_u32 s17, 1", "s_cselect_b64 s[8:9], s[96:97], s[8:9]", "s_cselect_b32 s10, s3, s10"]
        for n in (0, 3):
            gs = G[2 + n:5 + n]
            assert (gs[2] < min(dg[0], G[1])) or (gs[0] > max(dg[-1], G[1]))
            assert not any(gs[0] < m <= gs[2] for m in opt["mg"] + [G[1]])
            for g, x in zip(gs, sw[n:n + 3]): F_(g, x)
        F_(G[1], "s_sub_u32 s17, s17, 1")
        F_(61, "s_cmp_eq_u32 s17, 0")
        if not first: F_(62, f"s_cbranch_scc1 {L('pv_exit%d' % par)}")
        fill.setdefault(63, []).extend([f"s_waitcnt vmcnt({nP}) lgkmcnt(0)", "s_barrier"])
        emit_interval(a, mf, fill, lo, hi)

    st(3); ff(11)
    PB = opt.get("pbe", 0)
    if FT:
        pv_interval(1, False, 0, PB, first=True)
        a(f".p2align {opt.get('la', 3)}")
        a.label(L("pv_loop"))
        pv_interval(1, False, PB)
        pv_interval(0)
        pv_interval(1, False, 0, PB)
        a.e(f"s_branch {L('pv_loop')}")
    elif PB:
        pv_interval(1, first=True)
        a.e(f"s_branch {L('pv_in')}")
        a(".p2align 6")
        a.label(L("pv_loop"))
        pv_interval(0, False, PB)
        if not opt.get("xe"): a.e(f"s_cbranch_scc1 {L('pv_last1')}")
        pv_interval(1)
        if not opt.get("xe"): a.e(f"s_cbranch_scc1 {L('pv_last0')}")
        a.label(L("pv_in"))
        pv_interval(0, False, 0, PB)
        a.e(f"s_branch {L('pv_loop')}")
    else:
        a(".p2align 6")
        a.label(L("pv_loop"))
        pv_interval(1)
        a.e(f"s_cbranch_scc1 {L('pv_last0')}")
        pv_interval(0)
        a.e(f"s_cbranch_scc0 {L('pv_loop')}")
    if opt.get("xe"):
        a(f".p2align {opt.get('al2', 2)}"); a.label(L("pv_exit0"))
        pv_interval(0, False, 63)
    a.label(L("pv_last1"))
    pv_interval(1, True)
    a.e(f"s_branch {L('pv_stage')}")
    if opt.get("xe"):
        a(f".p2align {opt.get('al2', 2)}"); a.label(L("pv_exit1"))
        pv_interval(1, False, 63)
    a.label(L("pv_last0"))
    pv_interval(0, True)
    a(f".p2align {opt.get('al3', 2)}")
    a.label(L("pv_stage"))
    st(4); ff(13)
    q, n = pvq[0]
    assert pvq[1][0].vm == q.vm and pvq[1][0].lg == q.lg
    fp(2)
    release(a, q, L, "ro", "Ost", "buffer_store_dword v0, off, s[12:15], s56 offset:24",
            [x for sp in range(4) for x in [f"s_xor_b32 s41, s40, {0x10000 + 4096*sp}"] +
             [f"buffer_store_dwordx4 {oreg(2*sp+1, qb)[0]}, v3, s[12:15], s41 offen offset:{1024*qb} sc1" for qb in range(4)]])
    fp(3)
    poll(a, q, L, "ml", mll, [f"v_and_b32 v8, v{MR+1}, v{MR+3}", "v_cmp_gt_i32 vcc, 0, v8", "s_nop 1", "s_cmp_eq_u64 vcc, -1"], "ML", slp=1)
    q.wait("MLo")
    for x in [f"v_add_f32 v{MR+1}, v{MR+1}, v{MR+3}", f"v_add_f32 v{MO+1}, v{MO+1}, v{MO+3}",
              f"v_min_f32 v8, v{MR}, v{MO}", f"v_sub_f32 v{MR}, v8, v{MR}", f"v_sub_f32 v{MO}, v8, v{MO}",
              f"v_exp_f32 v{MR}, v{MR}", f"v_exp_f32 v{MO}, v{MO}", f"v_mul_f32 v{MR+1}, v{MR+1}, v{MR}",
              f"v_fmac_f32 v{MR+1}, v{MO+1}, v{MO}", f"v_mul_f32 v{MR+1}, {f2u(XSC)}, v{MR+1}", f"v_rcp_f32 v{MR+1}, v{MR+1}", "s_nop 0",
              f"v_mul_f32 v{MO}, v{MO}, -v{MR+1}", f"v_mul_f32 v{MR}, v{MR}, -v{MR+1}"]: a.e(x)
    for tb in range(4):
        q.l(f"ds_bpermute_b32 v{AL+2*tb}, v1, v{MO} offset:{64*tb}", "AL")
        q.l(f"ds_bpermute_b32 v{AL+2*tb+1}, v1, v{MR} offset:{64*tb}", "AL")
    q.wait("AL")
    for db in range(8, 16):
        for qb in range(4):
            r = oreg(db, qb)[1]
            for j in (0, 2):
                a.e(f"v_pk_mul_f32 v[{r+j}:{r+j+1}], v[{r+j}:{r+j+1}], v[{AL+2*qb}:{AL+2*qb+1}] op_sel_hi:[1,0]")
        if db == opt.get("od", 12): q.v(ol, "of")
        for _ in range(opt.get("an", 2)):
            if n < 4 * PF and db < opt.get("od", 12):
                aload(a, q, n // 4, n % 4); n += 1
    while n < opt.get("pa", 0):
        aload(a, q, n // 4, n % 4); n += 1
    poll(a, q, L, "o", [ol], ["v_readfirstlane_b32 s26, v11", "s_cmp_eq_u32 s26, 1"], "of", slp=1)
    fp(4)
    for f in range(16):
        if f % 4 == 0: a.e(f"s_add_u32 s41, s40, {1024*f}")
        q.v(f"buffer_load_dwordx4 v[{RX+4*f}:{RX+4*f+3}], v3, s[12:15], s41 offen offset:{1024*(f%4)} {opt.get('lm', 'sc1')}", f"O{f}")
    fp(5)
    fp(6)
    for f in range(16):
        sp, qb = f // 4, f % 4
        q.wait(f"O{f}")
        if f in (0, 8): fp(7 + f // 8)
        for j in range(4):
            a.e(f"v_lshlrev_b32 v{TT+2*j}, 16, v{RX+4*f+j}")
            a.e(f"v_and_b32 v{TT+2*j+1}, s43, v{RX+4*f+j}")
        for j in range(4):
            r = oreg(8 + 2 * sp + j // 2, qb)[1] + 2 * (j % 2)
            a.e(f"v_pk_fma_f32 v[{TT+2*j}:{TT+2*j+1}], v[{TT+2*j}:{TT+2*j+1}], v[{AL+2*qb}:{AL+2*qb+1}], v[{r}:{r+1}] op_sel:[0,1,0] op_sel_hi:[1,1,1]")
        for j in range(4):
            a.e(f"v_cvt_pk_bf16_f32 v{RX+4*f+j}, v{TT+2*j}, v{TT+2*j+1}")
        q.l(f"ds_write_b128 v10, v[{RX+4*f}:{RX+4*f+3}] offset:{8192*qb + 1024*sp}")
        for _ in range(2):
            if n < 4 * PF:
                aload(a, q, n // 4, n % 4); n += 1
    while n < 4 * PF:
        aload(a, q, n // 4, n % 4); n += 1
    fs(4)
    a(f".p2align {opt.get('al3', 2)}")
    a.label(L("tail"))
    ff(14); fp(9)
    gen_tail(a, L, st, fs, opt)
    a.label(L("fin"))
    if stamp == 1:
        a.e("s_waitcnt vmcnt(0)")
        st(7)
        emit_stamps(a, 8, nw=8, off=WS_STAMP + 0x200000)
    if stamp == 5:
        a.e("s_waitcnt vmcnt(0)")
        st(7)
        a.e("s_cmp_lg_u32 s16, 0")
        a.e(f"s_cbranch_scc1 {L('end')}")
        a.e("s_mov_b64 exec, 1")
        a.e("s_cmp_lg_u32 s2, 0")
        a.e(f"s_cbranch_scc1 {L('dbg2')}")
        for k in range(1, 8):
            a.e(f"s_sub_u32 s26, s{62+4*k}, s62")
            a.e("v_mov_b32 v8, s26")
            a.e(f"buffer_store_dword v8, off, s[92:95], 0 offset:{8+4*k}")
        a.e("s_sub_u32 s26, s76, s72")
        a.e("v_mov_b32 v8, s26")
        a.e("buffer_store_dword v8, off, s[92:95], 0 offset:40")
        a.label(L("dbg2"))
        a.e("s_cmp_lg_u32 s2, 255")
        a.e(f"s_cbranch_scc1 {L('end')}")
        for k in range(1, 6):
            a.e(f"s_sub_u32 s26, s{62+4*k}, s62")
            a.e("v_mov_b32 v8, s26")
            a.e(f"buffer_store_dword v8, off, s[92:95], 0 offset:{40+4*k}")
    if stamp in (2, 3, 4, 6):
        for k in range(10, 16): fp(k)
        a.e("s_waitcnt vmcnt(0)")
        fs(15)
        ff(15)
        emit_fine(a, off=WS_STAMP + 0x300000)
    a.label(L("end"))
    a.e("s_endpgm")
    a.label(L("redo"))
    a.e("s_waitcnt vmcnt(0) lgkmcnt(0)")
    a.e("s_mov_b32 s101, 0")
    a.e(f"s_mul_i32 s28, s22, {32768 * N0}")
    a.e("s_add_u32 s28, s28, s24")
    a.e("s_lshl_b32 s26, s25, 15")
    srd_off(a, 8, 4, "s28", "s26")
    a.e("s_lshl_b32 s19, s16, 13")
    qk_setup()
    a.e("s_mov_b32 s17, s25")
    def redo_dma(slot):
        for i in range(8):
            if i % 4 == 0:
                a.e(f"s_add_u32 m0, s19, {32768*slot + 1024*i}")
                a.e(f"s_add_u32 s29, s18, {1024*i}")
            a.e(f"buffer_load_dwordx4 v3, s[8:11], s29 offen offset:{1024*(i%4)} sc1 lds")
    a.label(L("redo_loop"))
    a.e("s_sub_u32 s17, s17, 1")
    a.e("s_lshl_b32 s18, s17, 15")
    a.e("s_add_u32 s18, s18, s19")
    a.e("s_barrier")
    redo_dma(0)
    a.e("s_waitcnt vmcnt(0)")
    a.e("s_barrier")
    a.e("s_cmp_ge_u32 s16, 2")
    a.e(f"s_cbranch_scc1 {L('redo_next')}")
    for n in range(16):
        a.e(kread(0, n, 0))
        if n == 11: a.e("s_waitcnt lgkmcnt(4)")
    a.e("s_waitcnt lgkmcnt(0)")
    for qb in range(4):
        for m in chain(0, qb, "0"): a.e(m)
    a.e("s_nop 7")
    for qb in range(4):
        d = S + 4 * qb
        a.e(f"v_max3_f32 v{MX0+qb}, v{MX0+qb}, v{d}, v{d+1}")
        a.e(f"v_max3_f32 v{MX0+qb}, v{MX0+qb}, v{d+2}, v{d+3}")
    a.label(L("redo_next"))
    a.e("s_cmp_lg_u32 s17, 0")
    a.e(f"s_cbranch_scc1 {L('redo_loop')}")
    a.e("s_add_u32 s18, s19, 32768")
    redo_dma(1)
    a.e("s_mov_b32 s17, s25")
    a.e("s_cmp_ge_u32 s16, 2")
    a.e(f"s_cbranch_scc1 {L('pv')}")
    a.e(f"s_branch {L('qk_again')}")
    emit_pv_again()
    for f in OOL: f()
    emit_aux()
    kernel_desc(a, name, 512, 256)
    return f"; @launch grid=(256,1,1) block=(256,1,1) lds={LDS_ATT}"
```

```python
import sys, math
sys.path.insert(0, "gen")
from asmlib import *
from layout import *

RS = 1056
LDS_XS = 98304
LDS_MS = 163840 - 64 * RS
LDS_SC = 81920
LDS_CNT = LDS_SC + 6912
LDS_SC2 = 147456
GC1 = 2 * math.sqrt(2 / math.pi) * math.log2(math.e)
XSC = (GC1 * 0.044715) ** (1.0 / 3)
LDS_UT = LDS_SC
UI = [1]
LDS_MX2 = LDS_SC + 4608
RING = 5
SS = 144
SPIN = 400000

def poll(a, q, L, name, load, cond, tag, slp=2):
    q.wait(tag)
    lab, done = L(name + "_spin"), L(name + "_ok")
    for x in cond: a.e(x)
    a.e(f"s_cbranch_scc0 {L(name + '_retry')}")
    a.label(done)
    def retry():
        a.label(L(name + "_retry"))
        a.e(f"s_mov_b32 s30, {SPIN}")
        a.label(lab)
        a.e(f"s_sleep {slp}")
        for x in load: a.e(x)
        a.e("s_waitcnt vmcnt(0)")
        for x in cond: a.e(x)
        a.e(f"s_cbranch_scc1 {done}")
        a.e("s_sub_u32 s30, s30, 1")
        a.e(f"s_cbranch_scc0 {lab}")
        a.e(f"s_branch {done}")
    OOL.append(retry)

OOL = []

def release(a, q, L, name, tag, store, again=()):
    if tag: q.wait(tag)
    a.e("s_cmp_lg_u32 s21, 0")
    a.e(f"s_cbranch_scc1 {L(name + '_far')}")
    q.v(store)
    a.label(L(name + "_back"))
    def far():
        a.label(L(name + "_far"))
        if again:
            for x in again: a.e(x)
            a.e("s_waitcnt vmcnt(0)")
        a.e(store + " sc1")
        a.e(f"s_branch {L(name + '_back')}")
    OOL.append(far)

def signal(a, L, name, wave, off, shard=True):
    a.e(f"s_cmp_lg_u32 s16, {wave}")
    a.e(f"s_cbranch_scc1 {L(name)}")
    a.e("v_mov_b32 v14, 1")
    a.e(f"s_and_b32 s26, s2, {3 if shard else 0}")
    a.e("s_lshl_b32 s26, s26, 6")
    a.e("s_mov_b64 exec, 1")
    a.e(f"buffer_atomic_add v14, off, s[92:95], s26 offset:{off}")
    a.e("s_mov_b64 exec, -1")
    a.label(L(name))

def cnt_load(off, va="v13"):
    return f"buffer_load_dword v14, {va}, s[92:95], 0 offen offset:{off} sc1"
CNT_OK = ["v_cmp_le_u32 vcc, 64, v14", "s_nop 1", "s_cmp_eq_u64 vcc, -1"]

def m_issue(a, q):
    a.e("s_and_b32 s17, s2, 6")
    a.e("s_lshl_b32 s17, s17, 5")
    a.e("s_and_b32 s18, s2, 24")
    a.e("s_lshl_b32 s18, s18, 1")
    a.e("s_add_u32 s17, s17, s18")
    a.e("s_and_b32 s18, s2, 1")
    a.e("s_lshl_b32 s18, s18, 3")
    a.e("s_add_u32 s17, s17, s18")
    a.e("s_lshr_b32 s18, s2, 5")
    a.e("s_add_u32 s100, s17, s18")
    a.e("s_lshr_b32 s17, s100, 4")
    a.e("s_lshl_b32 s17, s17, 15")
    a.e("s_and_b32 s18, s100, 15")
    a.e("s_lshl_b32 s18, s18, 15")
    a.e("s_lshl_b32 s19, s16, 13")
    a.e("s_add_u32 s17, s17, s19")
    a.e("s_add_u32 s18, s18, s19")
    a.e(f"s_mul_i32 s19, s16, {4*RS}")
    out = []
    for m, (srd, so) in enumerate(((40, "s17"), (8, "s18"))):
        for ee in range(2):
            for j in range(4):
                def f(m=m, srd=srd, so=so, ee=ee, j=j):
                    a.e(f"s_add_u32 m0, s19, {LDS_MS + (32*m + 16*ee + j)*RS - 1024*j}")
                    a.e(f"s_add_u32 {so}, {so}, 4096" if (ee == 1 and j == 0) else "s_nop 0")
                    q.v(f"buffer_load_dwordx4 v3, s[{srd}:{srd+3}], {so} offen offset:{1024*j} lds", "Mst")
                out.append(f)
    def ut():
        a.e("s_lshr_b32 s17, s100, 4")
        a.e("s_lshl_b32 s17, s17, 1")
        a.e("s_and_b32 s19, s16, 1")
        a.e("s_add_u32 s17, s17, s19")
        a.e("s_lshl_b32 s17, s17, 15")
        a.e("s_and_b32 s18, s100, 15")
        a.e("s_lshl_b32 s18, s18, 6")
        a.e("s_add_u32 s17, s17, s18")
        a.e("s_lshl_b32 s19, s19, 10")
        a.e(f"s_add_u32 m0, s19, {LDS_UT}")
        a.e("v_lshrrev_b32 v13, 2, v2")
        a.e("v_and_b32 v14, 3, v2")
        a.e("v_lshlrev_b32 v14, 4, v14")
        a.e("v_lshl_add_u32 v14, v13, 11, v14")
        q.v("buffer_load_dwordx4 v14, s[96:99], s17 offen lds", "Mst")
    if UI[0]: out.append(ut)
    return out

def m_addr(a):
    a.e("v_and_b32 v4, 15, v2")
    a.e("v_lshrrev_b32 v5, 4, v2")
    a.e(f"v_mul_u32_u24 v6, {RS}, v4")
    a.e("v_lshl_add_u32 v6, v5, 4, v6")
    a.e(f"v_add_u32 v6, {LDS_MS}, v6")
    a.e("s_and_b32 s26, s16, 1")
    a.e("s_lshr_b32 s28, s16, 1")
    a.e(f"s_mul_i32 s29, s26, {16*RS}")
    a.e("v_add_u32 v7, s29, v6")
    a.e(f"s_mul_i32 s29, s28, {16*RS}")
    a.e("v_add_u32 v6, s29, v6")
    a.e("s_bfe_u32 s29, s100, 0x30001")
    a.e("s_lshl_b32 s29, s29, 16")
    a.e("s_lshr_b32 s30, s100, 4")
    a.e("s_lshl_b32 s30, s30, 12")
    a.e("s_add_u32 s29, s29, s30")
    a.e("s_and_b32 s30, s100, 1")
    a.e("s_lshl_b32 s30, s30, 1")
    a.e("s_add_u32 s30, s30, s28")
    a.e("s_lshl_b32 s30, s30, 10")
    a.e("s_add_u32 s29, s29, s30")
    a.e("s_lshl_b32 s30, s26, 9")
    a.e("s_add_u32 s29, s29, s30")
    a.e(f"s_add_u32 s30, s29, {WS_MI}")
    a.e("s_lshl_b32 s29, s28, 10")
    a.e("s_lshl_b32 s26, s26, 3")
    a.e("s_add_u32 s29, s29, s26")
    a.e(f"s_add_u32 s29, s29, {LDS_MX2}")
    a.e("v_add_u32 v112, s29, v3")
    a.e("s_lshl_b32 s29, s16, 9")
    a.e(f"s_add_u32 s29, s29, {LDS_MX2}")
    a.e("v_and_b32 v114, 0x1ff, v3")
    a.e("v_add_u32 v113, s29, v114")
    if UI[0]:
        a.e("v_lshrrev_b32 v118, 2, v4")
        a.e("v_lshl_add_u32 v118, v5, 3, v118")
        a.e("v_lshlrev_b32 v118, 6, v118")
        a.e("v_and_b32 v119, 3, v2")
        a.e("v_lshl_add_u32 v118, v119, 3, v118")
        a.e("s_lshl_b32 s29, s28, 5")
        a.e(f"s_add_u32 s29, s29, {LDS_UT}")
        a.e("v_add_u32 v118, s29, v118")
        a.e("s_and_b32 s29, s16, 1")
        a.e("v_lshrrev_b32 v119, 5, v2")
        a.e("v_xor_b32 v119, s29, v119")
        a.e("v_lshl_add_u32 v119, v119, 30, v114")

def m_tile(a, q, fz=lambda k: None, fill=None):
    q.wait("Mst")
    fz(1)
    a.e("s_barrier")
    fz(2)
    def rd(t):
        q.l(f"ds_read_b128 a[{8*t}:{8*t+3}], v7 offset:{64*t}", f"m{t}")
        q.l(f"ds_read_b128 a[{8*t+4}:{8*t+7}], v6 offset:{32*RS + 64*t}", f"m{t}")
    if UI[0]:
        q.l("ds_read_b64_tr_b16 v[120:121], v118", "ur")
        q.l("ds_read_b64_tr_b16 v[122:123], v118 offset:256", "ur")
    for t in range(6): rd(t)
    if fill: fill.pop(0)()
    if UI[0]:
        a.e(f"s_add_u32 s29, s30, {WS_UI - WS_MI}")
        q.v("buffer_store_dwordx4 v[120:123], v119, s[12:15], s29 offen sc1", "St", need=("ur",))
    rd(6)
    for t in range(16):
        q.e(f"{M16} v[8:11], a[{8*t}:{8*t+3}], a[{8*t+4}:{8*t+7}], {'0' if t == 0 else 'v[8:11]'}", need=(f"m{t}",))
        if t + 7 < 16: rd(t + 7)
    fz(3)
    if fill: fill.pop(0)()
    else: a.e("s_nop 7")
    sc = f2u(512 ** -0.5 * math.log2(math.e) / XSC ** 2)
    for i in range(4): a.e(f"v_mul_f32 v{8+i}, {sc}, v{8+i}")
    a.e("v_cvt_pk_bf16_f32 v8, v8, v9")
    a.e("v_cvt_pk_bf16_f32 v9, v10, v11")
    q.l("ds_write_b64 v112, v[8:9]", "mw")
    while fill: fill.pop(0)()
    q.wait("mw")
    a.e("s_barrier")
    q.l("ds_read_b128 v[8:11], v113", "mr")
    def fin():
        q.v("buffer_store_dwordx4 v[8:11], v114, s[12:15], s30 offen sc1", "St", need=("mr",))
    return fin

def touches(a, q, L, opt):
    a.e("v_lshlrev_b32 v7, 7, v2")
    a.e("s_lshr_b32 s26, s2, 3")
    a.e("s_lshl_b32 s26, s26, 2")
    a.e("s_add_u32 s26, s26, s16")
    a.e("s_getpc_b64 s[28:29]")
    a.label(L("pc1"))
    a.e("s_mul_i32 s30, s26, 640")
    a.e("v_and_b32 v12, 7, v2")
    a.e("v_min_u32 v12, 4, v12")
    a.e("v_lshl_add_u32 v12, v12, 7, s30")
    a.e(f"v_min_u32 v12, {L('end')} - {L('pc1')}, v12")
    q.v("global_load_dword v0, v12, s[28:29]")
    if opt.get("tg"):
        a.e("s_lshl_b32 s26, s2, 12")
        a.e("s_lshr_b32 s28, s16, 1")
        a.e("s_lshl_b32 s28, s28, 11")
        a.e("s_add_u32 s26, s26, s28")
        a.e("s_and_b32 s28, s16, 1")
        a.e("s_lshl_b32 s28, s28, 9")
        a.e("s_add_u32 s26, s26, s28")
        a.e("v_lshlrev_b32 v14, 3, v2")
        q.v("buffer_load_dword v0, v14, s[96:99], s26 offen offset:1024")
    if opt.get("tw"):
        a.e("s_lshl_b32 s26, s26, 13")
        q.v("buffer_load_dword v0, v7, s[96:99], s26 offen")

def touch_aux(a, q, mode=1):
    if mode == 2:
        a.e("s_lshl_b32 s28, s2, 2")
        a.e("s_add_u32 s28, s28, s16")
        a.e("s_lshl_b32 s28, s28, 10")
        a.e("v_add_u32 v14, s28, v3")
        q.v("global_load_dword v0, v14, s[58:59]")
        return
    for w in range(1, 4):
        a.e(f"s_cmp_eq_u32 s16, {w}")
        a.e(f"s_cselect_b32 s52, s{52+2*w}, s52")
        a.e(f"s_cselect_b32 s53, s{53+2*w}, s53")
    a.e("s_lshl_b32 s28, s2, 6")
    a.e("v_add_lshl_u32 v14, s28, v2, 5")
    a.e("v_lshlrev_b32 v13, 1, v14")
    a.e("s_cmp_eq_u32 s16, 3")
    a.e("s_cselect_b64 vcc, -1, 0")
    a.e("v_cndmask_b32 v14, v14, v13, vcc")
    q.v("global_load_dword v0, v14, s[52:53]")

def gen_front(a, q, L, st, fs, mi, clear, opt):
    X = 16; F = 128
    if opt.get("skip"):
        v0 = q.v
        def v1(text, tag="_", need=()):
            if text.startswith("buffer_store_dwordx4") and tag[0] in opt["skip"]: return
            v0(text, tag, need)
        q.v = v1
    a.e("v_lshrrev_b32 v12, 3, v2")
    a.e("v_and_b32 v13, 7, v2")
    a.e("v_and_b32 v14, 2, v12")
    a.e("v_xor_b32 v14, v13, v14")
    a.e("v_lshlrev_b32 v14, 4, v14")
    WV = 80
    a.e(f"v_lshl_add_u32 v{WV}, v12, 11, v14")
    a.e(f"v_xor_b32 v{WV+1}, 64, v{WV}")
    a.e(f"v_add_u32 v{WV+1}, {16384-1024}, v{WV+1}")
    a.e(f"v_add_u32 v{WV+2}, {2*(16384-1024)}, v{WV}")
    a.e(f"v_add_u32 v{WV+3}, {2*(16384-1024)}, v{WV+1}")
    a.e("s_lshl_b32 s26, s22, 2")
    a.e("s_add_u32 s26, s26, s16")
    a.e("s_lshl_b32 s28, s22, 1")
    a.e("s_add_u32 s28, s28, s16")
    a.e(f"s_lshl_b32 s29, s23, {opt.get('rt', 0)}")
    a.e("s_add_u32 s28, s28, s29")
    a.e("s_and_b32 s28, s28, 3")
    a.e("s_lshl_b32 s3, s26, 7")
    a.e("s_lshl_b32 s29, s28, 18")
    a.e("s_add_u32 s3, s3, s29")
    a.e(f"s_and_b32 s29, s23, {4 * opt.get('rb', 0)}")
    a.e("s_lshl_b32 s29, s29, 14")
    a.e("s_add_u32 s3, s3, s29")
    a.e(f"s_mul_i32 s6, s16, {RING*4096}")
    a.e("v_and_b32 v4, 15, v2")
    a.e("v_lshrrev_b32 v5, 4, v2")
    def wdma(k, j):
        if j == 0:
            a.e(f"s_add_u32 m0, s6, {4096*(k % RING)}")
            a.e(f"s_xor_b32 s7, {'s3' if k < 16 else 's20'}, {65536*(k % 16) + (1024 if k < 16 else 0 if k < 32 else 128)}")
        q.v(f"buffer_load_dwordx4 v{WV+j}, s[96:99], s7 offen offset:{1024*j} lds", f"W{k}")
    ringf = [lambda k=k, j=j: wdma(k, j) for k in range(RING) for j in range(4)]
    EM = opt.get("early", 0)
    NE = opt.get("ne", 12)
    early = list(mi) + [clear] + ringf[:NE]
    if opt.get("rf"): early = ringf[:opt["rf"]] + list(mi) + [clear] + ringf[opt["rf"]:NE]
    late = ringf[NE:]
    if opt.get("te", 29) is not None: early.insert(opt.get("te", 29) + UI[0], lambda: (touch_u(), touch_aux(a, q, opt.get('ta', 2))))
    SW, SR, SG, QW = 84, 85, 86, 87
    a.e("s_and_b32 s26, s16, 1")
    a.e("s_lshl_b32 s26, s26, 13")
    a.e("s_cmp_lt_u32 s16, 2")
    a.e(f"s_cselect_b32 s28, {16*SS}, 0")
    a.e("s_add_u32 s26, s26, s28")
    a.e(f"s_add_u32 s26, s26, {LDS_SC}")
    a.e(f"v_mul_u32_u24 v{SR}, {SS}, v12")
    a.e(f"v_lshl_add_u32 v{SR}, v13, 4, v{SR}")
    a.e(f"v_add_u32 v{SR}, s26, v{SR}")
    a.e(f"v_lshlrev_b32 v{SG}, 9, v12")
    a.e(f"v_lshl_add_u32 v{SG}, v13, 4, v{SG}")
    a.e(f"v_mul_u32_u24 v{SW}, {SS}, v4")
    a.e(f"v_lshl_add_u32 v{SW}, v5, 3, v{SW}")
    a.e(f"v_add_u32 v{SW}, s26, v{SW}")
    a.e("s_lshl_b32 s26, s16, 14")
    a.e(f"s_add_u32 s26, s26, {LDS_XS}")
    a.e("s_lshl_b32 s28, s22, 13")
    a.e("s_add_u32 s28, s28, s26")
    a.e("v_lshrrev_b32 v14, 1, v12")
    a.e("v_xor_b32 v14, v13, v14")
    a.e("v_lshlrev_b32 v14, 4, v14")
    a.e("v_lshl_add_u32 v14, v12, 7, v14")
    a.e("v_add_u32 v12, s28, v14")
    a.e("v_xor_b32 v116, 0x440, v12")
    a.e("v_xor_b32 v117, 0x2440, v12")
    a.e("v_xor_b32 v15, 0x2000, v12")
    a.e("s_mov_b32 s101, 0xffff0000")
    if EM == 2:
        while early: early.pop(0)()
    ZR, YO = 88, 90
    a.e("v_lshrrev_b32 v13, 1, v4")
    a.e("v_xor_b32 v13, v5, v13")
    a.e("v_lshlrev_b32 v13, 4, v13")
    a.e(f"v_lshl_add_u32 v{ZR}, v4, 7, v13")
    a.e("v_and_b32 v13, 0x27, v2")
    a.e("v_and_b32 v14, 8, v2")
    a.e("v_lshl_add_u32 v13, v14, 1, v13")
    a.e("v_and_b32 v14, 16, v2")
    a.e("v_lshrrev_b32 v14, 1, v14")
    a.e(f"v_add_lshl_u32 v{YO}, v13, v14, 4")
    XR_, TR = 88, 92
    a.e("s_lshr_b32 s26, s3, 17")
    a.e("s_lshl_b32 s26, s26, 11")
    a.e(f"s_add_u32 s26, s26, {LDS_XS}")
    a.e("s_bfe_u32 s28, s3, 0x10010")
    a.e("s_lshl_b32 s28, s28, 6")
    a.e("s_add_u32 s26, s26, s28")
    a.e(f"v_xor_b32 v{XR_}, s26, v{ZR}")
    a.e("v_lshrrev_b32 v14, 2, v4")
    a.e("v_lshl_add_u32 v14, v5, 3, v14")
    a.e("v_lshlrev_b32 v14, 7, v14")
    a.e("v_and_b32 v13, 3, v2")
    a.e("v_lshl_add_u32 v14, v13, 3, v14")
    a.e("v_and_b32 v13, 24, v2")
    a.e("v_lshl_add_u32 v14, v13, 2, v14")
    a.e(f"v_add_u32 v{TR}, s6, v14")
    for nb in range(1, 4):
        a.e(f"v_xor_b32 v{TR+nb}, {32*nb}, v{TR}")
    a.e(f"v_mov_b32 v13, {LDS_CNT}")
    a.e("v_mov_b32 v14, 0")
    q.l("ds_write_b32 v13, v14")
    def touch_u():
        if opt.get("tu") == 0 or UI[0]: return
        if opt.get("tu", 2) == 2:
            a.e("s_lshl_b32 s26, s2, 12")
            a.e("s_lshr_b32 s28, s16, 1")
            a.e("s_lshl_b32 s28, s28, 11")
            a.e("s_add_u32 s26, s26, s28")
            a.e("s_and_b32 s28, s16, 1")
            a.e("s_lshl_b32 s28, s28, 9")
            a.e("s_add_u32 s26, s26, s28")
            a.e("v_lshlrev_b32 v14, 3, v2")
            q.v("buffer_load_dword v0, v14, s[96:99], s26 offen")
            return
        a.e("s_lshr_b32 s26, s2, 3")
        a.e("s_lshl_b32 s26, s26, 2")
        a.e("s_add_u32 s26, s26, s16")
        a.e("s_lshl_b32 s26, s26, 13")
        a.e("v_lshlrev_b32 v14, 6, v4")
        a.e("v_lshl_add_u32 v14, v5, 11, v14")
        q.v("buffer_load_dword v0, v14, s[96:99], s26 offen")
    m_addr(a)
    for f in opt['xrest']: f()
    MF = opt.get("mf", 0)
    if MF:
        mfin = m_tile(a, q)
        early.insert(0, mfin)
    A0 = 96
    def norm(s):
        A = A0 + 8 * (s // 8) + 4
        for j in range(4):
            f = F + 8 * s + 2 * j
            a.e(f"v_pk_fma_f32 v[{f}:{f+1}], v[{f}:{f+1}], v[{A}:{A+1}], v[{A}:{A+1}] op_sel:[0,0,1] op_sel_hi:[1,0,1]")
        for j in range(4):
            f = F + 8 * s + 2 * j
            a.e(f"v_cvt_pk_bf16_f32 v{X+4*s+j}, v{f}, v{f+1}")
    def xw(s):
        h, i = s // 8, s % 8
        q.l(f"ds_write_b128 {(('v12', 'v15'), ('v116', 'v117'))[h][i // 4]}, v[{X+4*s}:{X+4*s+3}] offset:{2048*(i%4)}", "xw")
    def stats(h):
        A = A0 + 8 * h
        for r in (A, A + 2): a.e(f"v_add_f32 v{r}, v{r}, v{r+1}")
        for d in ("quad_perm:[1,0,3,2]", "quad_perm:[2,3,0,1]", "row_half_mirror"):
            a.e("s_nop 0")
            for r in (A, A + 2): a.e(f"v_add_f32_dpp v{r}, v{r}, v{r} {d} row_mask:0xf bank_mask:0xf")
        a.e(f"v_mul_f32 v{A}, {f2u(-1.0/512)}, v{A}")
        a.e(f"v_mul_f32 v{A+2}, {f2u(1.0/512)}, v{A+2}")
        a.e(f"v_fma_f32 v{A+2}, -v{A}, v{A}, v{A+2}")
        a.e(f"v_max_f32 v{A+2}, 0, v{A+2}")
        a.e(f"v_add_f32 v{A+2}, {f2u(1e-5)}, v{A+2}")
        a.e(f"v_rsq_f32 v{A+4}, v{A+2}")
        a.e("s_nop 0")
        a.e(f"v_mul_f32 v{A+4}, {f2u(XSC)}, v{A+4}")
        a.e(f"v_mul_f32 v{A+5}, v{A}, v{A+4}")
    for h in range(2):
        A = A0 + 8 * h
        for i in range(8):
            s = 8 * h + i
            if s == 8: stats(0)
            if h == 1:
                norm(i)
                if MF: xw(i)
            q.wait(f"x{s}")
            if s == 0: fs(1)
            for _ in range(opt.get("ep", [8] + [1] * 15)[s]):
                if early: early.pop(0)()
            for j in range(4):
                x = X + 4 * s + j; f = F + 8 * s + 2 * j
                a.e(f"v_lshlrev_b32 v{f}, 16, v{x}")
                a.e(f"v_and_b32 v{f+1}, s101, v{x}")
            for j in range(4):
                f = F + 8 * s + 2 * j
                if i == 0 and j == 0:
                    a.e(f"v_pk_add_f32 v[{A}:{A+1}], v[{f}:{f+1}], 0")
                    a.e(f"v_pk_mul_f32 v[{A+2}:{A+3}], v[{f}:{f+1}], v[{f}:{f+1}]")
                else:
                    a.e(f"v_pk_add_f32 v[{A}:{A+1}], v[{A}:{A+1}], v[{f}:{f+1}]")
                    a.e(f"v_pk_fma_f32 v[{A+2}:{A+3}], v[{f}:{f+1}], v[{f}:{f+1}], v[{A+2}:{A+3}]")
    fs(2)
    stats(1)
    for s in range(8, 8 if MF else 12):
        for _ in range(2):
            if early: early.pop(0)()
        norm(s)
    while early: early.pop(0)()
    fs(3)
    fz = Fine(a, opt.get("fz"))
    fz(0)
    if not MF: mfin = m_tile(a, q, fz, [lambda s=s: norm(s) for s in range(12, 16)])
    fs(4); fz(4)
    for s in range(8 if MF else 0, 16):
        if MF: norm(s)
        xw(s)
        if s in (1, 5, 8, 12): fz(5 + (1, 5, 8, 12).index(s))
        if s == 3: mfin()
        if s >= 3:
            for _ in range(2):
                if late: late.pop(0)()
        TT = opt.get("tt", 8)
        if opt.get("te", 29) is not None: continue
        if s == TT and opt.get('ta', 2): touch_aux(a, q, opt.get('ta', 2))
        if s == TT + 1 and not opt.get("tw"): touch_u()
    srd_off(a, 8, 4, "s24", 4096000)
    a.e("s_lshr_b32 s19, s3, 16")
    a.e("s_lshl_b32 s19, s19, 10")
    a.e("s_add_u32 s19, s19, s27")
    a.e("v_and_b32 v13, 3, v2")
    fz(9)
    q.wait("xw")
    fz(10)
    q.wait("St")
    fz(11)
    a.e("s_barrier")
    fz(12)
    st(1)
    AR = [16 + 16 * i for i in range(4)] + [96]
    T = 112
    NQ = 5
    role = [None]
    def areg(k): return AR[(k - 16 + 2) % NQ] if ((role[0] == "qk" or UI[0]) and k >= 16) else AR[k % 2]
    def accof(k): return 128 if k < 16 else 192 if (k < 32 or role[0] == "qk") else 128
    def bread(s, tb):
        r = 64 * tb + 4 * s
        if tb == 0: a.e(f"v_xor_b32 v{XR_+1}, {2048*(s//2) + 64*(s%2)}, v{XR_}")
        q.l(f"ds_read_b128 a[{r}:{r+3}], v{XR_+1} offset:{16384*tb}", f"B{s}")
    def tread(k, i):
        nb, h = i // 2, i % 2
        r = areg(k) + 4 * nb + 2 * h
        q.l(f"ds_read_b64_tr_b16 v[{r}:{r+1}], v{TR+nb} offset:{4096*(k % RING) + 512*h}", f"A{k}", need=(f"W{k}",))
    def mload(k, nb):
        if nb == 0: a.e(f"s_xor_b32 s42, s20, {4096*(k-16)}")
        r = areg(k) + 4 * nb
        q.v(f"buffer_load_dwordx4 v[{r}:{r+3}], v3, s[12:15], s42 offen offset:{1024*nb} sc1", f"A{k}")
    for tb in range(4): bread(0, tb)
    for i in range(8): tread(0, i)
    signal(a, L, "sig1", 0, 0)
    for tb in range(4): bread(1, tb)
    a.e(f"s_mov_b32 s0, {f2u(-GC1 / XSC)}")
    a.e(f"s_mov_b32 s1, {f2u(XSC)}")
    a.e("v_lshlrev_b32 v13, 6, v13")
    NB1 = opt.get("nb1", 0)
    a.e("s_cmp_lt_u32 s16, 2" if NB1 else "s_cmp_eq_u32 s16, 1")
    a.e("s_cselect_b32 s26, 0, 0x1000")
    a.e("v_add_u32 v12, s26, v13")
    a.e("s_lshl_b32 s17, s31, 16")
    a.e("s_lshl_b32 s26, s16, 7")
    a.e("s_add_u32 s17, s17, s26")
    a.e(f"s_add_u32 s17, s17, {WS_GU}")
    fx = [{}]
    def at(k, g, fn): fx[0].setdefault((k, g), []).append(fn if callable(fn) else (lambda: a.e(fn)))
    def run(ops):
        for x in ops: x() if callable(x) else a.e(x)
    def cost(x): return 2 if (isinstance(x, str) and x.split()[0] in ("v_exp_f32", "v_rcp_f32")) else 1
    def steps(k0, k1, side=(), lead=10, tailg=4):
        fixed = fx[0]
        gaps = [(k, g) for k in range(k0, k1) for g in range(16)]
        cap = [0 if (n < lead or n >= len(gaps) - tailg) else max(0, 2 - len(fixed.get(x, []))) for n, x in enumerate(gaps)]
        ops = list(side)
        C = sum(map(cost, ops)); tot = sum(cap)
        scale = min(1.0, C / tot)
        extra = max(0.0, (C - tot) / (len(gaps) - lead - tailg))
        budget = 0.0; used = 0
        for n, (k, g) in enumerate(gaps):
            if g == 0:
                if k in opt.get("fk", []): Fine(a, True)(opt["fk"].index(k))
                q.wait(f"A{k}", f"B{k}")
            nb, tb = ORD16[g] if opt.get('o2', 1) else (g // 4, g % 4)
            d = accof(k) + 16 * nb + 4 * tb; r = areg(k) + 4 * nb; b = 64 * tb + 4 * (k % 16)
            c = "0" if k % 16 == 0 else f"v[{d}:{d+3}]"
            a.e(f"{M16} v[{d}:{d+3}], v[{r}:{r+3}], a[{b}:{b+3}], {c}")
            for fn in fixed.pop((k, g), []): fn()
            if lead <= n < len(gaps) - tailg:
                budget += cap[n] * scale + extra
            while ops and (used + cost(ops[0]) <= budget + 1e-6 or n == len(gaps) - max(tailg, 1)):
                x = ops.pop(0); used += cost(x); run([x])
        assert not ops
    def raw_plan(k0, k1, kend):
        for k in range(k0, k1):
            if k + 1 < kend:
                for i in range(8): at(k, i, lambda k=k, i=i: tread(k + 1, i))
            if k + RING < kend:
                for j in range(4): at(k, 9 + 2 * j, lambda k=k, j=j: wdma(k + RING, j))
            if k + 2 < 16:
                for tb in range(4): at(k, 8 + 2 * tb, lambda k=k, tb=tb: bread(k + 2, tb))
    def gelu(acc, kind, pk, base, off):
        out = []
        if opt.get("nogelu"): return [["s_nop 0"] * 40 for _ in range(8)]
        P = lambda r: f"v[{r}:{r+1}]"
        def store(E, i):
            r = acc + 32 + 16 * (i % 2) + 4 * (i // 2)
            def f():
                a.e(f"s_add_u32 s29, {base}, {off + 4096*i}")
                pub = kind == "g" and i in (0, 7)
                q.v(f"buffer_store_dwordx4 v[{r}:{r+3}], v{SG}, s[12:15], s29 offen{' sc1' if pub else ''}", "St" if pub else "_", need=(f"sr{kind}{i}",))
            E(f)
        for tb in range(4):
            for h in range(2):
                o = []; E = o.append; out.append(o)
                src = [acc + 16 * (2 * h + ee) + 4 * tb + j for ee in range(2) for j in range(4)]
                pr = T + 8 + 4 * h
                cv_ = [f"v_cvt_pk_bf16_f32 v{pr+j}, v{src[2*j]}, v{src[2*j+1]}" for j in range(4)]
                if pk(2 * tb + h):
                    f_ = [f"v_pk_fma_f32 {P(T+i)}, {P(src[i])}, {P(src[i])}, s[0:1] op_sel_hi:[1,1,0] neg_lo:[1,0,0] neg_hi:[1,0,0]" for i in range(0, 8, 2)]
                    m_ = [f"v_pk_mul_f32 {P(T+i)}, {P(T+i)}, {P(src[i])}" for i in range(0, 8, 2)]
                    e_ = [f"v_exp_f32 v{T+i}, v{T+i}" for i in range(8)]
                    d_ = [f"v_pk_fma_f32 {P(T+i)}, {P(T+i)}, s[0:1], s[0:1] op_sel:[0,1,1] op_sel_hi:[1,1,1]" for i in range(0, 8, 2)]
                    r_ = [f"v_rcp_f32 v{T+i}, v{T+i}" for i in range(8)]
                    o_ = [f"v_pk_mul_f32 {P(src[i])}, {P(T+i)}, {P(src[i])}" for i in range(0, 8, 2)]
                    if opt.get("gi", 1):
                        for x in [f_[0], m_[0], e_[0], f_[1], e_[1], m_[1], e_[2], f_[2], e_[3], m_[2], e_[4], f_[3], e_[5], m_[3], e_[6], d_[0], e_[7], d_[1],
                                  r_[0], d_[2], r_[1], d_[3], r_[2], o_[0], r_[3], cv_[0], r_[4], o_[1], r_[5], cv_[1], r_[6], o_[2], r_[7], cv_[2], o_[3], cv_[3]]: E(x)
                    else:
                        for x in f_ + m_ + e_ + d_ + r_ + o_ + cv_: E(x)
                else:
                    for i, x in enumerate(src): E(f"v_fma_f32 v{T+i}, -v{x}, v{x}, s0")
                    for i, x in enumerate(src): E(f"v_mul_f32 v{T+i}, v{T+i}, v{x}")
                    for i, x in enumerate(src): E(f"v_exp_f32 v{T+i}, v{T+i}")
                    for i, x in enumerate(src): E(f"v_fma_f32 v{T+i}, v{T+i}, s1, s1")
                    for i, x in enumerate(src): E(f"v_rcp_f32 v{T+i}, v{T+i}")
                    for i, x in enumerate(src): E(f"v_mul_f32 v{x}, v{T+i}, v{x}")
                    for x in cv_: E(x)
                if kind == "g":
                    s0, s1 = acc + 4 * tb, acc + 4 * tb + 1
                    if pk(2 * tb + h):
                        E(f"v_pk_mul_f32 {P(T)}, {P(src[0])}, {P(src[0])}")
                        E(f"v_pk_add_f32 {P(T+2)}, {P(src[0])}, {P(src[2])}")
                        for i in (2, 4, 6):
                            E(f"v_pk_fma_f32 {P(T)}, {P(src[i])}, {P(src[i])}, {P(T)}")
                            if i > 2: E(f"v_pk_add_f32 {P(T+2)}, {P(T+2)}, {P(src[i])}")
                        if h == 0:
                            E(f"v_add_f32 v{s0}, v{T+2}, v{T+3}")
                            E(f"v_add_f32 v{s1}, v{T}, v{T+1}")
                        else:
                            E(f"v_add_f32 v{T+2}, v{T+2}, v{T+3}")
                            E(f"v_add_f32 v{T+3}, v{T}, v{T+1}")
                            E(f"v_pk_add_f32 {P(s0)}, {P(s0)}, {P(T+2)}")
                    elif h == 0:
                        E(f"v_mul_f32 v{T}, v{src[0]}, v{src[0]}")
                        for x in src[1:]: E(f"v_fmac_f32 v{T}, v{x}, v{x}")
                        for x in src[1:]: E(f"v_add_f32 v{s0}, v{s0}, v{x}")
                        E(f"v_mov_b32 v{s1}, v{T}")
                    else:
                        for x in src:
                            E(f"v_add_f32 v{s0}, v{s0}, v{x}")
                            E(f"v_fmac_f32 v{s1}, v{x}, v{x}")
                for ee in range(2):
                    E(lambda ee=ee, pr=pr, h=h: q.l(f"ds_write_b64 v{SW}, v[{pr+2*ee}:{pr+2*ee+1}] offset:{32*(2*h+ee)}"))
                if tb >= 1: store(E, 2 * (tb - 1) + h)
            for i in (2 * tb, 2 * tb + 1):
                r = acc + 32 + 16 * (i % 2) + 4 * tb
                E(lambda i=i, r=r: q.l(f"ds_read_b128 v[{r}:{r+3}], v{SR} offset:{8*SS*(i%2)}", f"sr{kind}{i}"))
        if kind == "g":
            for k in range(2):
                E(f"v_permlane16_swap_b32 v{acc+k}, v{acc+4+k}")
                E(f"v_permlane16_swap_b32 v{acc+8+k}, v{acc+12+k}")
            E("s_lshl_b32 s43, s22, 2")
            for k in range(2):
                E(f"v_add_f32 v{acc+k}, v{acc+k}, v{acc+4+k}")
                E(f"v_add_f32 v{acc+8+k}, v{acc+8+k}, v{acc+12+k}")
            E("s_add_u32 s43, s43, s16")
            E("s_lshl_b32 s43, s43, 9")
            for k in range(2): E(f"v_permlane32_swap_b32 v{acc+k}, v{acc+8+k}")
            E(lambda: (a.e("s_lshr_b32 s29, s31, 1"), a.e("s_lshl_b32 s29, s29, 12"), a.e("s_add_u32 s43, s43, s29")))
            for k in range(2): E(f"v_add_f32 v{T+k}, v{acc+k}, v{acc+8+k}")
            E(f"s_add_u32 s43, s43, {WS_ST}")
            E(f"v_lshlrev_b32 v{T+2}, 3, v2")
            E(lambda: q.v(f"buffer_store_dwordx2 v[{T}:{T+1}], v{T+2}, s[12:15], s43 offen sc1", "St"))
        store(E, 6); store(E, 7)
        return out
    flat = lambda bs: [x for b in bs for x in b]
    def stream_srd():
        a.e(f"s_mul_i32 s28, s22, {32768 * opt.get('n0', 62)}")
        a.e("s_add_u32 s28, s28, s24")
        a.e("s_lshl_b32 s26, s25, 15")
        srd_off(a, 8, 4, "s28", "s26")
    def xl():
        a.e("s_xor_b32 s26, s31, 1")
        a.e("s_lshl_b32 s26, s26, 7")
        a.e(f"s_add_u32 s26, s26, {WS_FL + 48}")
        q.v("buffer_load_dword v1, off, s[12:15], s26 sc1", "xid")
    def xc():
        q.wait("xid")
        a.e("v_readfirstlane_b32 s26, v1")
        a.e("s_getreg_b32 s21, hwreg(HW_REG_XCC_ID, 0, 4)")
        a.e("s_xor_b32 s21, s21, s26")
        if opt.get("far"): a.e("s_mov_b32 s21, 1")
    def e0():
        if role[0] == "qk" or not NB1: xc()
        q.wait("B15")
        a.e("s_barrier")
        if role[0] == "pv" and NB1: xl()
    PQ = opt.get("pq", [11, 11, 12, 13, 14, 15, 16, 16, 17, 17, 18, 18, 19, 19, 20, 20])
    def pub(i):
        tb, sl = i // 4, i % 4
        a.e(f"s_xor_b32 s28, s19, {16384*tb + 1024*sl}")
        q.v(f"buffer_store_dwordx4 a[{64*tb+4*sl}:{64*tb+4*sl+3}], v{YO}, s[8:11], s28 offen sc1", "Xst")
    def arrive():
        a.e(f"v_mov_b32 v1, {LDS_CNT}")
        a.e("v_mov_b32 v14, 1")
        q.wait("Xst")
        a.e("s_mov_b64 exec, 1")
        q.l("ds_add_rtn_u32 v15, v1, v14", "cnt")
        a.e("s_mov_b64 exec, -1")
    def sig2():
        q.wait("cnt")
        a.e("v_readfirstlane_b32 s28, v15")
        a.e("s_and_b32 s26, s2, 3")
        a.e("s_lshl_b32 s26, s26, 6")
        a.e("s_cmp_lg_u32 s28, 1")
        a.e(f"s_cbranch_scc1 {L('sig2')}")
        a.e("s_mov_b64 exec, 1")
        a.e("buffer_atomic_add v14, off, s[92:95], s26 offset:8")
        a.e("s_mov_b64 exec, -1")
        a.label(L("sig2"))
    KS = opt.get("ks", 11); KC = 11
    raw_plan(0, KS, 16)
    c1l = lambda: q.v(cnt_load(0, "v12"), "c1")
    if KS > KC - 3: at(*opt.get('c1p', (KC - 3, 8)), c1l)
    fs(5); fz(13)
    at(0, 1, lambda: fz(14)); at(1, 1, lambda: fz(15))
    steps(0, KS)
    assert not fx[0]
    a.e("s_cmp_ge_u32 s16, 2")
    a.e(f"s_cbranch_scc1 {L('fpv')}")
    state = (list(q.vm), list(q.lg))

    def qk_part():
        role[0] = "qk"; fx[0] = {}
        raw_plan(KS, 16, 16)
        def chk1():
            q.wait("c1")
            if not NB1:
                a.e("s_cmp_lg_u32 s16, 1")
                a.e(f"s_cbranch_scc1 {L('c1_ok')}")
            poll(a, q, L, "c1", [cnt_load(0, "v12")], CNT_OK, "c1", slp=8)
            if not NB1: a.e("s_barrier")
            a.e("s_lshl_b32 s26, s22, 1")
            a.e("s_add_u32 s26, s26, s16")
            a.e("s_lshl_b32 s20, s26, 17")
            a.e("s_lshr_b32 s28, s3, 16")
            a.e("s_lshl_b32 s28, s28, 12")
            a.e("s_add_u32 s20, s20, s28")
            a.e(f"s_add_u32 s20, s20, {WS_MI}")
            if opt.get("mt"):
                a.e("s_lshr_b32 s26, s2, 3")
                a.e("s_lshl_b32 s26, s26, 1")
                a.e("s_add_u32 s26, s26, s16")
                a.e("s_lshl_b32 s26, s26, 13")
                a.e(f"s_add_u32 s26, s26, {WS_MI}")
                a.e("v_lshlrev_b32 v14, 7, v2")
                q.v("buffer_load_dword v0, v14, s[12:15], s26 offen sc1")
        if KS <= KC - 3: at(KC - 3, 8, c1l)
        at(KC, 8, chk1)
        at(KC, 10, xl)
        for kk in range(16, 48):
            k = kk - NQ + 1
            for nb in range(4): at(k, (9 + 2 * nb) if k < 16 else (1 + 4 * nb), lambda kk=kk, nb=nb: mload(kk, nb))
        at(15, 8, e0)
        if PQ:
            for i, k in enumerate(PQ): at(k, 11 if (i and PQ[i - 1] == k) else 3 if k >= 16 else 14, lambda i=i: pub(i))
            at(PQ[-1] + 3, 7, arrive)
            at(PQ[-1] + 4, 7, sig2)
        for g, x in enumerate(["s_lshl_b32 s40, s31, 1", "s_add_u32 s40, s40, s16", "s_lshl_b32 s40, s40, 14", f"s_add_u32 s40, s40, {WS_QP}",
                               "s_lshl_b32 s41, s31, 5", "s_add_u32 s41, s41, s16", "s_lshl_b32 s41, s41, 2", f"s_add_u32 s41, s41, {WS_FL + 16}"]):
            at(15, g, x)
        steps(KS, 16)
        fs(6)
        NA_, NB_ = opt.get("qg", (4, 4))
        gb = gelu(128, "g", lambda b: b >= NA_ + NB_, "s17", 0)
        pre = ["s_lshl_b32 s26, s16, 2", "s_add_u32 s26, s26, s22", "s_lshl_b32 s26, s26, 13", f"s_add_u32 s18, s26, {LDS_XS}", f"v_add_u32 v{QW}, s18, v3",
               "s_xor_b32 s18, s18, 0x2000", "s_add_u32 s7, s40, 4096", "s_xor_b32 s6, s41, 128", "v_mov_b32 v12, 1",
               lambda: run(["s_cmp_eq_u32 s21, 0", "s_cselect_b32 s46, s14, 0", "s_mov_b64 s[44:45], s[12:13]"])]
        steps(16, 32, pre + flat(gb[:NA_]))
        fs(7)
        preg = lambda i: 192 + 32 * (i % 2) + 4 * (i // 2)
        def qst(i, r, srd, mod): return f"buffer_store_dwordx4 v[{r}:{r+3}], v3, s[{srd}:{srd+3}], {'s40' if i < 4 else 's7'} offen offset:{1024*(i%4)} {mod}"
        def pack(p):
            a.e("s_nop 3")
            for i in ((0, 2, 4, 6, 7, 5, 3, 1) if opt.get('o2', 1) else range(8)):
                pr = preg(i); src = [pr + 16 * ee + j for ee in range(2) for j in range(4)]
                for j in range(4): a.e(f"v_cvt_pk_bf16_f32 v{pr+j}, v{src[2*j]}, v{src[2*j+1]}")
                if p: q.v(qst(i, pr, 44, "nt"), "Qst", need=("qa",))
                q.l(f"ds_write_b128 v{QW}, v[{pr}:{pr+3}] offset:{16384*p + 1024*i}", "qw")
        def fetch(p, i):
            if i % 4 == 0:
                a.e(f"s_add_u32 m0, s18, {16384*p + 1024*i}")
                a.e("s_nop 0")
            q.v(f"buffer_load_dwordx4 v3, s[12:15], {'s40' if i < 4 else 's7'} offen offset:{1024*(i%4)} sc1 lds", "qd" if p else "qa")
        SWAP = ["s_xor_b32 s40, s40, 0x8000", "s_xor_b32 s7, s7, 0x8000"]
        pack(0)
        for i in range(8):
            k = 32 + opt.get("qsp", [0, 0, 1, 1, 2, 2, 3, 3])[i]
            r = (WV, TR)[i % 2]
            at(k, 3, lambda i=i, r=r: q.l(f"ds_read_b128 v[{r}:{r+3}], v{QW} offset:{1024*i}", f"qr{i}"))
            at(k, 15, lambda i=i, r=r: q.v(qst(i, r, 12, "sc1"), "Qst", need=(f"qr{i}",)))
        KA_, KB_, KC_ = opt.get("qk_", (39, 43, 45))
        qok = ["v_readfirstlane_b32 s26, v15", "s_cmp_eq_u32 s26, 1"]
        at(KA_, 3, lambda: q.v("buffer_store_dword v12, off, s[12:15], s41 sc1", need=("Qst",)))
        qfa = "buffer_load_dword v15, off, s[12:15], s6 sc1"
        at(KB_, 3, lambda: q.v(qfa, "qf"))
        at(KC_, 0, lambda: (poll(a, q, L, "qa", [qfa], qok, "qf", slp=1), run(SWAP)))
        for i in range(8): at(KC_, 1 + 2 * i, lambda i=i: fetch(0, i))
        at(opt.get("kc2", 41), 7, lambda: q.v(cnt_load(8), "c2"))
        at(43, 7, lambda: (stream_srd(), a.e("s_lshl_b32 s19, s16, 14")))
        at(44, 0, lambda: poll(a, q, L, "c2", [cnt_load(8)], CNT_OK, "c2", slp=8))
        def kvt():
            n = opt.get("kt_", 6)
            a.e("s_lshr_b32 s26, s2, 4")
            a.e("s_lshl_b32 s26, s26, 1")
            a.e("s_add_u32 s26, s26, s16")
            a.e(f"s_lshl_b32 s26, s26, {n + 6}")
            a.e(f"v_lshlrev_b32 v14, {n}, v2")
            q.v("buffer_load_dword v0, v14, s[8:11], s26 offen sc1")
        if opt.get("kt_", 0): at(44, 1, kvt)
        kds = []
        for i in range(16):
            def kd(i=i):
                if i % 4 == 0:
                    a.e(f"s_add_u32 m0, s19, {1024*i}")
                    a.e(f"s_add_u32 s42, s19, {1024*i}")
                q.v(f"buffer_load_dwordx4 v3, s[8:11], s42 offen offset:{1024*(i%4)} sc1 lds", "kv0")
            if i >= opt.get("kn", 4): kds.append(kd)
            else: at(44 + i // 4 + (1 if 44 + i // 4 >= KC_ else 0), 4 + 3 * (i % 4), kd)
        steps(32, 48, flat(gb[NA_:NA_ + NB_]), lead=2)
        assert not fx[0]
        fs(8); fy = Fine(a, opt.get("fy")); fy(0)
        pack(1)
        fy(1)
        rest = gb[NA_ + NB_:]
        W1, W2 = opt.get("qw_", (0, 0))
        run(kds)
        for _ in range(W1): run(rest.pop(0))
        fy(2)
        release(a, q, L, "rq", "Qst", "buffer_store_dword v12, off, s[12:15], s41 offset:8", [qst(i, preg(i), 12, "sc1") for i in range(8)])
        fy(3)
        qfl = "buffer_load_dword v15, off, s[12:15], s6 offset:8 sc1"
        fy(4)
        for _ in range(W2): run(rest.pop(0))
        q.v(qfl, "qf")
        for _ in range(opt.get("w3", 0)): run(rest.pop(0))
        fs(12); fy(5)
        run(SWAP)
        poll(a, q, L, "q", [qfl], qok, "qf", slp=1)
        fy(6)
        for i in range(8): fetch(1, i)
        fy(7)
        run(flat(rest))
        fs(9); fy(8)

    def pv_part(setup, vreads, zero):
        role[0] = "pv"; fx[0] = {}
        a(f".p2align {opt.get('al2', 2)}")
        a.label(L("fpv"))
        q.vm, q.lg = list(state[0]), list(state[1])
        a.e("s_and_b32 s20, s3, 0xffff0000")
        a.e("s_lshl_b32 s26, s22, 1")
        a.e("s_add_u32 s26, s26, s16")
        a.e("s_sub_u32 s26, s26, 2")
        if UI[0]:
            a.e("s_lshr_b32 s20, s20, 4")
            a.e("s_lshl_b32 s26, s26, 17")
            a.e("s_add_u32 s20, s20, s26")
            a.e(f"s_add_u32 s20, s20, {WS_UI}")
            raw_plan(KS, 16, 16)
            for kk in range(16, 48):
                k = kk - NQ + 1
                for nb in range(4): at(k, (9 + 2 * nb) if k < 16 else (3 + 4 * nb), lambda kk=kk, nb=nb: mload(kk, nb))
        else:
            a.e("s_lshl_b32 s26, s26, 8")
            a.e("s_add_u32 s20, s20, s26")
            raw_plan(KS, 48, 48)
        if not NB1:
            at(KC, 8, "s_barrier")
            at(KC, 10, xl)
        at(15, 8, e0)
        PE = opt.get("pe", [])
        for i, k in enumerate(PE): at(k, 12 if (i and PE[i - 1] == k) else 4, lambda i=i: pub(i))
        steps(KS, 16)
        fs(6)
        N1, N2 = opt.get("pg_", (5, 3))
        gb = gelu(128, "g", lambda b: b < N1, "s17", 0)
        e1 = flat(gb[:N1])
        for i in range(16 if PQ else len(PE), 16): e1.insert((i - len(PE)) * opt.get("pd", 12), lambda i=i: pub(i))
        a.e("s_nop 3")
        run(e1)
        if NB1: xc()
        fs(12)
        K2 = opt.get("k2", 19)
        if not PQ:
            at(K2, 8, arrive)
            at(K2 + 1, 8, sig2)
        steps(16, 32, flat(gb[N1:]), lead=2)
        fs(7)
        a.e("s_lshl_b32 s26, s16, 7")
        a.e("s_add_u32 s17, s17, s26")
        a.e("s_sub_u32 s17, s17, 512")
        ua = gelu(192, "ua", lambda b: b >= N2, "s17", 32768)
        n0 = len(a.lines)
        stream_srd(); setup()
        a.e("s_lshl_b32 s6, s19, 14")
        a.e("s_lshl_b32 s20, s19, 13")
        su = [x.strip() for x in a.lines[n0:]]; del a.lines[n0:]
        if opt.get("sg", 1):
            EK = UI[0] and opt.get("ek", 1)
            if EK: at(44, 1, lambda: q.v(cnt_load(8), "c2"))
            steps(32, 44, flat(ua[:N2]), tailg=0)
            steps(44, 48, su, lead=0, tailg=0)
        else:
            steps(32, 48, flat(ua[:N2])); run(su)
        assert not fx[0]
        fs(8); fy = Fine(a, opt.get("fy"))
        for k in range(9): fy(k)
        ub = gelu(128, "ub", lambda b: True, "s17", 32768 + 128)
        rest = ua[N2:] + ub
        pend = []
        def dma(n0, n, lds0, tag):
            for i in range(n):
                def f(i=i):
                    if i % 4 == 0:
                        a.e(f"s_add_u32 m0, {lds0}, {n0 + 1024*i}")
                        a.e(f"s_add_u32 s7, {lds0}, {n0 + 1024*i}")
                    q.v(f"buffer_load_dwordx4 v3, s[8:11], s7 offen offset:{1024*(i%4)} sc1 lds", tag)
                pend.append(f)
        BS, BA, BB = opt.get("pb", (6, 9, 11))
        DD = opt.get("dd", 5)
        assert (BA - len(ua[N2:])) % 2 == 0 if BA >= len(ua[N2:]) else (N2 + BA) % 2 == 0
        if EK:
            poll(a, q, L, "c2p", [cnt_load(8)], CNT_OK, "c2", slp=8)
            dma(32768, 16, "s6", "kv1"); dma(65536, 8, "s20", "kv2")
        for n in range(len(rest) + 1):
            if n == BS:
                q.wait("St")
                fy(9)
                a.e("s_barrier")
                fy(10)
                st(2); fs(9)
                if not EK:
                    if not opt.get("q1"): dma(32768, 16, "s6", "kv1")
                    if opt.get("t2", 1): dma(65536, 8, "s20", "kv2")
            if n == BA:
                q.all(vm=False)
                fy(11)
                a.e("s_barrier")
                fy(12)
                a.e(f"s_mul_i32 s26, s19, {16*SS - 8192}")
                a.e(f"s_add_u32 s26, s26, {LDS_SC2 - LDS_SC}")
                a.e(f"v_add_u32 v{SW}, s26, v{SW}")
                a.e(f"v_add_u32 v{SR}, s26, v{SR}")
                run(pend); del pend[:]
                if not opt.get("t2", 1): dma(65536, 8, "s20", "kv2")
                dma(81920, 8, "s20", "kv2")
                if not opt.get("q3", 0): dma(98304, 16, "s6", "kv3")
            if n == BB:
                q.wait("kv1")
                fy(13)
                a.e("s_barrier")
                fy(14)
                fs(10)
                signal(a, L, "sig3", 2, 4)
            if n < len(rest):
                for i, x in enumerate(rest[n]):
                    if opt.get("gr", 1):
                        if i in (0, 16):
                            for _ in range(opt.get("gd", 4) if n >= BS else opt.get("gd0", 3) if n >= opt.get("es", 0) else 0):
                                if pend: pend.pop(0)()
                            for _ in range(opt.get("gv", 4) if n >= BS else 0):
                                if vreads: q.l(vreads.pop(0))
                    else:
                        if n >= BS and i % 4 == 0 and vreads: q.l(vreads.pop(0))
                        if i % (DD if n < BA else opt.get("d2", 4)) == 1 and pend: pend.pop(0)()
                    run([x])
        assert not vreads
        run(pend)
        zero()
        q.wait("kv2")
        q.all(vm=False)
        fy(15)
    return qk_part, pv_part
```
